```python
import torch

def _softmax(x, axis=-1):
    return torch.softmax(x, dim=axis)
def _gelu(x):
    return torch.nn.functional.gelu(x, approximate="tanh")
def _silu(x):
    return torch.nn.functional.silu(x)
def _sigmoid(x):
    return torch.sigmoid(x)
def _layernorm(x, axis=-1, eps=1e-5):
    m = x.mean(dim=axis, keepdim=True)
    v = x.var(dim=axis, keepdim=True, unbiased=False)
    return (x - m) / torch.sqrt(v + eps)
def _scatter_add(tgt, idx, src, axis=0):
    return tgt.clone().index_add_(axis, idx, src)
def _segment_sum(src, seg, n):
    out = torch.zeros((n,) + src.shape[1:], dtype=src.dtype)
    return out.index_add_(0, seg, src)
def _pad(x, pw):
    flat = tuple(v for pair in reversed(pw) for v in pair)
    return torch.nn.functional.pad(x, flat)

kernel_name = 'parallel_sum__ssm_conv_s4__dense_activation_silu__prompt'

def setup_inputs():

    _w = (lambda a: (lambda t: t.to(torch.bfloat16) if t.is_floating_point() else t)(torch.as_tensor(a)))
    def _A_setup():
        B, L, D, N = 1, 2048, 512, 128
        A_re = -(lambda _x: torch.exp(torch.as_tensor(_x)))((lambda *s: torch.randn(*s, dtype=torch.bfloat16) * 6.4)(D, N))
        A_im = torch.pi * (lambda *s: torch.randn(*s, dtype=torch.bfloat16) * 0.05)(D, N)
        B_re = (lambda *s: torch.randn(*s, dtype=torch.bfloat16) * 0.1)(D, N)
        B_im = (lambda *s: torch.randn(*s, dtype=torch.bfloat16) * 0.1)(D, N)
        C_re = (lambda *s: torch.randn(*s, dtype=torch.bfloat16) * 0.1)(D, N)
        C_im = (lambda *s: torch.randn(*s, dtype=torch.bfloat16) * 0.1)(D, N)
        log_dt = (lambda *s: torch.randn(*s, dtype=torch.bfloat16) * 0.05)(D) * 0.5 - 4.0
        Dskip = (lambda *s: torch.randn(*s, dtype=torch.bfloat16) * 0.05)(D)
        return {
            "u": _w((lambda *s: torch.randn(*s, dtype=torch.bfloat16) * 0.05)(B, L, D)),
            "A_re": _w(A_re),
            "A_im": _w(A_im),
            "B_re": _w(B_re),
            "B_im": _w(B_im),
            "C_re": _w(C_re),
            "C_im": _w(C_im),
            "log_dt": _w(log_dt),
            "Dskip": _w(Dskip),
        }
    _A_in = _A_setup()

    def _B_setup():
        B, S, D, F = 1, 2048, 512, 1376
        return {
            "x": _w((lambda *s: torch.randn(*s, dtype=torch.bfloat16) * 0.05)(B, S, D)),
            "w1": _w((lambda *s: torch.randn(*s, dtype=torch.bfloat16) * 0.8)(D, F) * (D ** -0.5)),
            "w2": _w((lambda *s: torch.randn(*s, dtype=torch.bfloat16) * 0.2)(F, D) * (F ** -0.5)),
        }
    _B_in = _B_setup()

    return {
        "A_u": _A_in["u"],
        "A_A_re": _A_in["A_re"],
        "A_A_im": _A_in["A_im"],
        "A_B_re": _A_in["B_re"],
        "A_B_im": _A_in["B_im"],
        "A_C_re": _A_in["C_re"],
        "A_C_im": _A_in["C_im"],
        "A_log_dt": _A_in["log_dt"],
        "A_Dskip": _A_in["Dskip"],
        "B_x": _B_in["x"],
        "B_w1": _B_in["w1"],
        "B_w2": _B_in["w2"],
    }

def reference(A_u, A_A_re, A_A_im, A_B_re, A_B_im, A_C_re, A_C_im, A_log_dt, A_Dskip, B_x, B_w1, B_w2):
    def _A_ref(u, A_re, A_im, B_re, B_im, C_re, C_im, log_dt, Dskip):
        Bsz, L, D = u.shape
        dt = torch.exp(log_dt)[:, None]
        A = A_re + 1j * A_im
        Bc = B_re + 1j * B_im
        Cc = C_re + 1j * C_im
        logdA = dt * A
        dB = dt * Bc
        l = (lambda x, dt: x.to(dt))(torch.arange(L), A_re.dtype)
        P = torch.exp(logdA[:, :, None] * l[None, None, :])
        K = torch.einsum("dn,dnl,dn->dl", Cc, P, dB).real
        L2 = 2 * L
        Kp = _pad(K, ((0, 0), (0, L)))
        up = (lambda x, *d: x.permute(*d))(u, 0, 2, 1)
        up = _pad(up, ((0, 0), (0, 0), (0, L)))
        Kf = (lambda x, axes=(-2,-1): torch.fft.rfft2(x.float(), dim=axes))(Kp[:, None, :], axes=(-2, -1))
        Uf = (lambda x, axes=(-2,-1): torch.fft.rfft2(x.float(), dim=axes))(up[:, :, None, :], axes=(-2, -1))
        Yf = Uf * Kf[None, :, :, :]
        y = (lambda x, s, axes=(-2,-1): torch.fft.irfft2(x, s=s, dim=axes).to(torch.bfloat16))(Yf, (1, L2), axes=(-2, -1))[:, :, 0, :L]
        y = (lambda x, *d: x.permute(*d))(y, 0, 2, 1) + u * Dskip[None, None, :]
        return y

    def _B_ref(x, w1, w2):
        h = torch.einsum("bsd,df->bsf", x, w1)
        h = _silu(h)
        out = torch.einsum("bsf,fd->bsd", h, w2)
        return out

    x = A_u
    xn = _layernorm(x, axis=-1)
    return x + _A_ref(xn, A_A_re, A_A_im, A_B_re, A_B_im, A_C_re, A_C_im, A_log_dt, A_Dskip) + _B_ref(xn, B_w1, B_w2)
```

```python
import re

TRANS = ("v_exp_f32", "v_log_f32", "v_rcp_f32", "v_rsq_f32", "v_sqrt_f32", "v_sin_f32", "v_cos_f32")

def _regs(tok):
    tok = tok.strip()
    tok = re.sub(r"^-?(abs\()?", "", tok).rstrip(")")
    tok = tok.lstrip("-|").rstrip("|")
    m = re.fullmatch(r"([vsa])\[(\d+):(\d+)\]", tok)
    if m:
        return {(m.group(1), i) for i in range(int(m.group(2)), int(m.group(3)) + 1)}
    m = re.fullmatch(r"([vsa])(\d+)", tok)
    if m:
        return {(m.group(1), int(m.group(2)))}
    if tok == "vcc":
        return {("s", "vcc")}
    if tok == "exec":
        return {("s", "exec")}
    if tok == "m0":
        return {("s", "m0")}
    return set()

class Ins:
    def __init__(self, text):
        self.text = text
        body = text.split(";")[0].strip()
        parts = body.split(None, 1)
        self.op = parts[0]
        ops = parts[1] if len(parts) > 1 else ""
        toks = [t.strip() for t in re.split(r",(?![^\[]*\])", ops)] if ops else []
        self.mods = ""
        if toks:
            last = toks[-1].split(None, 1)
            toks[-1] = last[0]
            self.mods = last[1] if len(last) > 1 else ""
        self.toks = toks
        op = self.op
        self.mfma = op.startswith("v_mfma")
        self.valu = op.startswith("v_") and not self.mfma
        self.trans = op.replace("_e32", "").replace("_e64", "") in TRANS
        self.ds = op.startswith("ds_")
        self.vmem = op.startswith("buffer_") or op.startswith("global_")
        self.salu = op.startswith("s_")
        self.dpp = any(k in self.mods for k in ("row_shr", "row_shl", "row_bcast", "quad_perm", "row_mirror", "row_half_mirror", "row_ror", "wave_", "row_newbcast"))
        self.wr = set(); self.rd = set(); self.srcc = set(); self.srcab = set(); self.stdata = set()
        R = [_regs(t) for t in toks]
        if self.mfma:
            self.wr = R[0]; self.srcab = R[1] | R[2]; self.srcc = R[3]; self.rd = self.srcab | self.srcc
            self.passes = 8 if "32x32x16" in op else 4
        elif self.valu:
            if op.startswith("v_cmp"):
                self.wr = R[0]; self.rd = set().union(*R[1:])
            elif op.startswith("v_permlane") and "swap" in op:
                self.wr = R[0] | R[1]; self.rd = R[0] | R[1]
            elif op.startswith(("v_add_co", "v_addc_co", "v_sub_co")):
                self.wr = R[0] | R[1]; self.rd = set().union(*R[2:])
            else:
                self.wr = R[0]; self.rd = set().union(*R[1:]) if len(R) > 1 else set()
                if op.startswith(("v_fmac", "v_dot2c", "v_pk_fmac", "v_writelane")) or self.dpp:
                    self.rd |= R[0]
        elif self.ds:
            if op.startswith(("ds_read", "ds_bpermute")):
                self.wr = R[0]; self.rd = set().union(*R[1:])
            else:
                self.rd = set().union(*R)
        elif self.vmem:
            lds = re.search(r"\blds\b", self.mods) is not None
            if "load" in op and not lds:
                self.wr = R[0]; self.rd = set().union(*R[1:])
            else:
                self.rd = set().union(*R)
                if lds: self.rd |= {("s", "m0")}
                if "store" in op and ("x4" in op or "x3" in op):
                    self.stdata = R[0] if op.startswith("buffer_") else R[1]
            self.lds = lds
        elif self.salu:
            if op.startswith(("s_cmp", "s_cbranch", "s_branch", "s_waitcnt", "s_nop", "s_barrier", "s_endpgm", "s_setprio", "s_sleep")):
                self.rd = set().union(*R) if R else set()
            else:
                self.wr = R[0] if R else set(); self.rd = set().union(*R[1:]) if len(R) > 1 else set()
                if "saveexec" in op: self.wr |= {("s", "exec")}
        self.slots = 1
        if op == "s_nop":
            self.slots = int(toks[0], 0) + 1

def need(p, c):
    n = 0
    pv = {r for r in p.wr if r[0] in "va"}; ps = {r for r in p.wr if r[0] == "s"}
    if p.valu and c.mfma and pv & c.rd: n = max(n, 2)
    if p.mfma:
        big = p.passes == 8
        if c.mfma:
            if p.wr & c.srcab: n = max(n, 12 if big else 8)
            if p.wr & c.srcc and not (c.srcc == p.wr and c.passes == p.passes): n = max(n, 10 if big else 6)
        elif (c.valu or c.ds or c.vmem) and p.wr & (c.rd | c.wr): n = max(n, 12 if big else 8)
        if c.valu and p.srcc & c.wr: n = max(n, 7 if big else 3)
    if p.trans and c.valu and not c.trans and pv & c.rd: n = max(n, 1)
    if p.trans and (c.ds or c.vmem) and pv & c.rd: n = max(n, 1)
    if p.valu and c.valu and c.dpp and pv & c.rd: n = max(n, 2)
    if p.valu and c.op.startswith("v_permlane") and pv & c.rd: n = max(n, 2)
    if p.valu and c.op.startswith(("v_readlane", "v_readfirstlane")) and pv & c.rd: n = max(n, 1)
    if p.valu and ps:
        if c.vmem and ps & c.rd: n = max(n, 5)
        if c.valu and ps & c.rd: n = max(n, 4 if c.op.startswith(("v_readlane", "v_writelane")) else 2)
        if c.valu and ("s", "vcc") in ps and c.op.startswith("v_cndmask") and len(c.toks) == 3: n = max(n, 2)
        if c.salu and ps & c.rd: n = max(n, 1)
    if p.op.startswith("v_dot") and c.valu and pv & (c.rd | c.wr):
        same_c = c.op == p.op and not (pv & set().union(*[_regs(t) for t in c.toks[1:3]]))
        if not same_c: n = max(n, 3)
    if p.op.startswith("v_dot") and (c.ds or c.vmem or c.mfma) and pv & c.rd: n = max(n, 3)
    if p.salu and ("s", "m0") in p.wr and c.vmem and ("s", "m0") in c.rd: n = max(n, 1)
    if p.stdata and (c.valu or c.mfma) and p.stdata & c.wr: n = max(n, 2)
    if p.stdata and (c.ds or c.vmem) and p.stdata & c.wr: n = max(n, 1)
    if p.valu and "op_sel" in p.mods and not p.op.startswith("v_pk") and c.valu and pv & c.rd: n = max(n, 1)
    return n

class Asm:
    def __init__(self):
        self.lines = []
        self.hist = []
        self.vm = []
        self.lg = []
        self.nops = 0
    def raw(self, s):
        self.lines.append(s)
    def label(self, l):
        self.lines.append(l + ":")
    def comment(self, s):
        self.lines.append("  ; " + s)
    def __call__(self, text, tag=None):
        for t in text.strip().split("\n"):
            t = t.strip()
            if not t: continue
            if t.startswith(";"):
                self.lines.append("  " + t); continue
            if t.endswith(":"):
                self.lines.append(t); continue
            self._emit(t, tag)
    def _emit(self, t, tag):
        c = Ins(t)
        dist = 0; pad = 0
        for p in reversed(self.hist):
            n = need(p, c)
            if n > dist: pad = max(pad, n - dist)
            dist += p.slots
            if dist >= 24: break
        while pad > 0:
            k = min(pad, 16)
            self.lines.append(f"  s_nop {k-1}")
            self.hist.append(Ins(f"s_nop {k-1}"))
            self.nops += k
            pad -= k
        self.lines.append("  " + t)
        self.hist.append(c)
        if len(self.hist) > 64: self.hist = self.hist[-48:]
        if c.vmem: self.vm.append(tag)
        if c.ds: self.lg.append(tag)
    def _count(self, q, tags):
        idx = [i for i, t in enumerate(q) if t in tags]
        if not idx: return None
        return len(q) - 1 - max(idx)
    def wait(self, vm=None, lg=None):
        parts = []
        if vm is not None:
            n = 0 if vm == 0 else self._count(self.vm, vm if isinstance(vm, (tuple, list, set)) else (vm,))
            if n is not None:
                n = min(n, 63)
                parts.append(f"vmcnt({n})"); self.vm = self.vm[len(self.vm) - n:] if n else []
        if lg is not None:
            n = 0 if lg == 0 else self._count(self.lg, lg if isinstance(lg, (tuple, list, set)) else (lg,))
            if n is not None:
                n = min(n, 15)
                parts.append(f"lgkmcnt({n})"); self.lg = self.lg[len(self.lg) - n:] if n else []
        if parts:
            self._emit("s_waitcnt " + " ".join(parts), None)
    def text(self):
        return "\n".join(self.lines) + "\n"

def vr(a, n=1):
    return f"v{a}" if n == 1 else f"v[{a}:{a+n-1}]"
def sr(a, n=1):
    return f"s{a}" if n == 1 else f"s[{a}:{a+n-1}]"
```

```python
import sys
from asmlib import Asm, vr, sr

NAME = "parallel_sum__ssm_conv_s4__dense_activation_silu__prompt"
STAMPS = "--stamps" in sys.argv

H_SIZE = 86 * 64 * 1024
XNP = 0x600000
Y2 = 0x800000
ST = 0xA00000
FX = 0xA10000
FH = 0xA11000
FY = 0xA12000
WS_SIZE = 0xB00000
STAMP_OFF = 0xA80000
SPIN = 4000
LOG2E = 0x3fb8aa3b

a = Asm()
nstamp = [0]
def stamp():
    if STAMPS:
        i = nstamp[0]; nstamp[0] += 1
        a(f"s_memtime s[{60+2*i}:{61+2*i}]")
def stamp_flush(wsrd, wave_s, vt):
    if not STAMPS: return
    n = nstamp[0]
    a("s_memrealtime s[98:99]")
    a("s_waitcnt lgkmcnt(0)")
    a(f"s_lshl_b32 s96, s2, 2\ns_add_u32 s96, s96, {wave_s}\ns_lshl_b32 s96, s96, 7\ns_add_u32 s96, s96, {STAMP_OFF}")
    a("s_mov_b64 exec, 1")
    for i in range(n):
        a(f"v_mov_b32 v{vt}, s{60+2*i}")
        a(f"buffer_store_dword v{vt}, off, {wsrd}, s96 offset:{4*i}")
    a(f"v_mov_b32 v{vt}, s100\nbuffer_store_dword v{vt}, off, {wsrd}, s96 offset:120")
    a(f"v_mov_b32 v{vt}, s98\nbuffer_store_dword v{vt}, off, {wsrd}, s96 offset:124")
    nstamp[0] = 0

def srd(base, size):
    a(f"s_mov_b32 s{base+2}, {size}\ns_mov_b32 s{base+3}, 0x20000")

def cmul(d, x, y):
    a(f"v_pk_mul_f32 {vr(d,2)}, {vr(x,2)}, {vr(y,2)} op_sel:[0,0] op_sel_hi:[0,1]")
    a(f"v_pk_fma_f32 {vr(d,2)}, {vr(x,2)}, {vr(y,2)}, {vr(d,2)} op_sel:[1,1,0] op_sel_hi:[1,0,1] neg_lo:[1,0,0]")

def gemm_role():
    X, W1, WS, W2, OUT, DBG, HS = "s[4:7]", "s[8:11]", "s[12:15]", "s[16:19]", "s[20:23]", "s[24:27]", "s[28:31]"
    sW, sRB, sM, sXB, sWB, sXC, sWC, sT, sLA, sLB, sW2, sHS, sHL = range(32, 45)
    sT2, sT3, sOnes, sCnt, sO, sY = 45, 46, 47, 48, 49, 52
    vL = 1
    vXo, vWo, vXr, vWr, vW2o, vW2r, vL16 = 2, 6, 9, 13, 17, 18, 22
    vT, vNon, vCs, vT2, vC2 = 23, 24, 26, 29, 30
    vSt, vNeg = 32, 36
    ACC1, XF, WF, CSF = 40, 192, 208, 232
    ACC2, STASH, HB = 32, 96, 192

    a(f"""
    s_load_dwordx2 s[4:5], s[0:1], 0
    s_load_dwordx2 s[8:9], s[0:1], 80
    s_load_dwordx2 s[12:13], s[0:1], 112
    s_load_dwordx2 s[16:17], s[0:1], 88
    s_load_dwordx2 s[20:21], s[0:1], 96
    s_load_dwordx2 s[24:25], s[0:1], 104
    s_memrealtime s[50:51]
    v_lshrrev_b32 v{vT}, 6, v0
    v_and_b32 v{vL}, 63, v0
    s_and_b32 s{sT}, s2, 7
    v_readfirstlane_b32 s{sW}, v{vT}
    s_lshr_b32 s{sT2}, s2, 3
    s_and_b32 s{sM}, s{sT2}, 15
    s_lshr_b32 s{sT2}, s{sT2}, 4
    s_lshl_b32 s{sRB}, s{sT}, 1
    s_add_u32 s{sRB}, s{sRB}, s{sT2}
    s_lshl_b32 s{sT2}, s{sT2}, 2
    s_add_u32 s{sXC}, s{sM}, s{sT2}
    s_and_b32 s{sXC}, s{sXC}, 7
    s_mov_b32 s{sWC}, s{sXC}
    """)
    a(f"""
    v_lshrrev_b32 v{vT}, 3, v{vL}
    v_lshlrev_b32 v{vT}, 10, v{vT}
    v_lshrrev_b32 v{vT2}, 4, v{vL}
    v_xor_b32 v{vT2}, v{vT2}, v{vL}
    v_and_b32 v{vT2}, 7, v{vT2}
    v_lshl_add_u32 v{vXo}, v{vT2}, 4, v{vT}
    v_xor_b32 v{vXo+1}, 64, v{vXo}
    v_add_u32 v{vXo+2}, {2*7168}, v{vXo}
    v_add_u32 v{vXo+3}, {3*7168}, v{vXo+1}
    v_add_u32 v{vXo+1}, 7168, v{vXo+1}
    """)
    for j in range(3):
        a(f"""
        v_add_u32 v{vT}, {64*j}, v{vL}
        v_mul_u32_u24 v{vT2}, 5462, v{vT}
        v_lshrrev_b32 v{vT2}, 16, v{vT2}
        v_mul_u32_u24 v{vT2}, {2752-192}, v{vT2}
        v_lshl_add_u32 v{vWo+j}, v{vL}, 4, v{vT2}
        """)
    a(f"""
    s_lshl_b32 s{sXB}, s{sRB}, 17
    s_lshl_b32 s{sT}, s{sW}, 15
    s_add_u32 s{sXB}, s{sXB}, s{sT}
    s_mul_i32 s{sWB}, s{sM}, 192
    s_mul_i32 s{sT}, s{sW}, {16*2752}
    s_add_u32 s{sWB}, s{sWB}, s{sT}
    s_lshl_b32 s{sLA}, s{sW}, 12
    s_mul_i32 s{sLB}, s{sW}, 3072
    s_add_u32 s{sLB}, s{sLB}, 32768
    """)
    srd(4, 2048 * 1024); srd(8, 512 * 2752); srd(12, WS_SIZE); srd(16, 1376 * 1024); srd(20, 2048 * 1024); srd(24, 256); srd(28, H_SIZE)
    a("s_waitcnt lgkmcnt(0)")
    if STAMPS: a("s_mov_b32 s100, s50")
    stamp()
    a(f"""
    s_or_b32 s{sT}, s2, s{sW}
    s_cmp_lg_u32 s{sT}, 0
    s_cbranch_scc1 G_notag
    s_or_b32 s50, s50, 1
    v_mov_b32 v{vNon}, s50
    v_mov_b32 v{vNon+1}, s51
    s_mov_b64 exec, 1
    buffer_store_dwordx2 {vr(vNon,2)}, off, {DBG}, 0 sc1
    s_mov_b64 exec, -1
    G_notag:
    """)
    a.vm = []

    def x_issue(slot, tag):
        a(f"s_lshl_b32 s{sT}, s{sXC}, 7\ns_add_u32 s{sT}, s{sT}, s{sXB}\ns_add_u32 m0, s{sLA}, {slot*16384}")
        a(f"s_add_u32 s{sXC}, s{sXC}, 1")
        ops = [lambda pc=pc: a(f"buffer_load_dwordx4 v{vXo+pc}, {X}, s{sT} offen offset:{pc*1024} lds", tag) for pc in range(4)]
        for o in ops: o()
        a(f"s_and_b32 s{sXC}, s{sXC}, 7")
    def w_issue(slot, tag):
        a(f"s_mul_i32 s{sT2}, s{sWC}, {64*2752}\ns_add_u32 s{sT2}, s{sT2}, s{sWB}\ns_add_u32 m0, s{sLB}, {slot*12288}")
        a(f"s_add_u32 s{sWC}, s{sWC}, 1")
        for j in range(3):
            a(f"buffer_load_dwordx4 v{vWo+j}, {W1}, s{sT2} offen offset:{j*1024} lds", tag)
        a(f"s_and_b32 s{sWC}, s{sWC}, 7")
    GROUPS = [("B", 0, 3), ("B", 1, 3), ("A", 0, 4), ("A", 1, 4), ("B", 3, 3), ("B", 2, 3)]
    LOC = []
    for rg, sl, n in GROUPS:
        for k in range(n):
            LOC.append((rg, sl * (16384 if rg == "A" else 12288) + k * 1024))
    def p_issue(locs, tag):
        i = 0
        while i < len(locs):
            rg, off = LOC[locs[i]]
            a(f"s_add_u32 m0, s{sLA if rg == 'A' else sLB}, {off}")
            k = 0
            while True:
                a(f"buffer_load_dwordx4 v{vW2o}, {W2}, s{sW2} offen offset:{k*1024} lds", tag)
                i += 1; k += 1
                nxt = i < len(locs) and LOC[locs[i]] == (rg, off + k * 1024) and k < 4
                a(f"s_add_u32 s{sW2}, s{sW2}, {7168 if nxt else 8192 + (k-1)*1024}")
                if not nxt: break

    def late_addr():
        a(f"""
        v_and_b32 v{vT}, 31, v{vL}
        v_lshrrev_b32 v{vT2}, 5, v{vL}
        v_lshrrev_b32 v{vC2}, 1, v{vT}
        v_and_b32 v{vC2}, 7, v{vC2}
        v_xor_b32 v{vC2}, v{vC2}, v{vT2}
        v_lshlrev_b32 v{vC2}, 4, v{vC2}
        v_lshl_add_u32 v{vC2}, v{vT}, 7, v{vC2}
        v_add_u32 v{vC2}, s{sLA}, v{vC2}
        v_bfe_u32 v{vT}, v{vL}, 2, 2
        v_lshl_add_u32 v{vT}, v{vT2}, 3, v{vT}
        v_mul_u32_u24 v{vT}, 192, v{vT}
        v_bfe_u32 v{vC2+1}, v{vL}, 4, 1
        v_lshl_add_u32 v{vT}, v{vC2+1}, 5, v{vT}
        v_and_b32 v{vC2+1}, 3, v{vL}
        v_lshl_add_u32 v{vT}, v{vC2+1}, 3, v{vT}
        """)
        for i in range(4):
            a(f"""
            s_add_u32 s{sT3}, s{sW}, {i}
            s_and_b32 s{sT3}, s{sT3}, 3
            s_lshl_b32 s{sCnt}, s{sT3}, 5
            v_xor_b32 v{vXr+i}, s{sCnt}, v{vC2}
            s_mul_i32 s{sT3}, s{sT3}, 3072
            s_add_u32 s{sT3}, s{sT3}, 32768
            v_add_u32 v{vWr+i}, s{sT3}, v{vT}
            """)
    def late_addr2():
        a(f"""
        v_lshlrev_b32 v{vL16}, 4, v{vL}
        v_lshrrev_b32 v{vT}, 3, v{vL}
        v_lshlrev_b32 v{vT}, 10, v{vT}
        v_bfe_u32 v{vT2}, v{vL}, 4, 1
        v_lshlrev_b32 v{vT2}, 2, v{vT2}
        v_xor_b32 v{vT2}, v{vT2}, v{vL}
        v_and_b32 v{vT2}, 7, v{vT2}
        v_lshl_add_u32 v{vW2o}, v{vT2}, 4, v{vT}
        v_lshrrev_b32 v{vT}, 5, v{vL}
        v_bfe_u32 v{vT2}, v{vL}, 2, 2
        v_lshl_add_u32 v{vT}, v{vT}, 2, v{vT2}
        v_lshlrev_b32 v{vT}, 7, v{vT}
        v_bfe_u32 v{vT2}, v{vL}, 3, 1
        v_lshl_add_u32 v{vT}, v{vT2}, 6, v{vT}
        v_bfe_u32 v{vT2}, v{vL}, 4, 1
        v_lshl_add_u32 v{vT}, v{vT2}, 5, v{vT}
        v_and_b32 v{vT2}, 3, v{vL}
        v_lshl_add_u32 v{vT}, v{vT2}, 3, v{vT}
        s_lshl_b32 s{sT3}, s{sW}, 5
        s_and_b32 s{sT3}, s{sT3}, 64
        v_xor_b32 v{vT}, s{sT3}, v{vT}
        v_xor_b32 v{vT2}, 64, v{vT}
        v_add_u32 v{vW2r}, s{sLA}, v{vT}
        v_add_u32 v{vW2r+1}, s{sLA}, v{vT2}
        v_add_u32 v{vW2r+2}, s{sLB}, v{vT}
        v_add_u32 v{vW2r+3}, s{sLB}, v{vT2}
        s_mul_i32 s{sW2}, s{sW}, {352*1024}
        s_lshr_b32 s{sT3}, s{sM}, 1
        s_lshl_b32 s{sT3}, s{sT3}, 7
        s_add_u32 s{sW2}, s{sW2}, s{sT3}
        s_mov_b32 s28, s12
        s_mov_b32 s29, s13
        s_mov_b32 s{sOnes}, 0x3f803f80
        """)

    a(f"s_cmp_eq_u32 s{sM}, 15\ns_cbranch_scc1 G_idle")
    x_issue(0, "X0"); w_issue(0, "W0"); x_issue(1, "X1"); w_issue(1, "W1"); w_issue(2, "W2")
    late_addr(); late_addr2()
    a(f"v_mov_b32 v{vCs}, 0\nv_mov_b32 v{vCs+1}, 0\nv_mov_b32 v{vCs+2}, 0")
    vSa = vC2 + 1
    a(f"""
    v_and_b32 v{vSa}, 31, v{vL}
    v_lshlrev_b32 v{vSa}, 4, v{vSa}
    s_lshr_b32 s{sO}, s{sXB}, 6
    s_add_u32 s{sO}, s{sO}, {ST}
    """)

    def tr_w1(i, slot, buf):
        for ft in range(3):
            for e in range(2):
                a(f"ds_read_b64_tr_b16 {vr(WF+12*buf+4*ft+2*e,2)}, v{vWr+i} offset:{slot*12288+e*768+ft*64}", f"wf{buf}")

    for c in range(8):
        a.comment(f"---- GEMM1 chunk {c}")
        a.wait(vm=(f"X{c}", f"W{c}"))
        if c == 0: stamp()
        for i in range(4):
            a(f"ds_read_b128 {vr(XF+4*i,4)}, v{vXr+i} offset:{(c&1)*16384}", "xf")
        a("s_barrier")
        tr_w1(0, c & 3, 0)
        for i in range(4):
            if i < 3: tr_w1(i + 1, c & 3, (i + 1) & 1)
            if c == 7 and i == 3:
                a.wait(lg=0)
                a("s_barrier")
                for ft in range(3):
                    a(f"ds_read_b128 {vr(CSF+4*ft,4)}, v{vT} offset:{24576+ft*1024}", "csf")
            else:
                a.wait(lg=("xf", f"wf{i&1}"))
            for ft in range(3):
                cc = "0" if (c == 0 and i == 0) else vr(ACC1+16*ft, 16)
                a(f"v_mfma_f32_32x32x16_bf16 {vr(ACC1+16*ft,16)}, {vr(WF+12*(i&1)+4*ft,4)}, {vr(XF+4*i,4)}, {cc}")
                if i == 0:
                    for k in range(4):
                        a(f"v_dot2_f32_bf16 v{vCs+ft}, v{WF+4*ft+k}, s{sOnes}, v{vCs+ft}")
            if i == 0:
                if c + 2 <= 7: x_issue(c & 1, f"X{c+2}")
                if c == 7:
                    for ft in range(3):
                        a(f"v_cvt_pk_bf16_f32 v{CSF+ft}, v{vCs+ft}, v{vCs+ft}")
                    for ft in range(3):
                        a(f"v_lshlrev_b32 v{CSF+ft}, 16, v{CSF+ft}")
                    for ft in range(3):
                        a(f"v_sub_f32 v{CSF+ft}, v{vCs+ft}, v{CSF+ft}")
                    for ft in range(3):
                        a(f"v_cvt_pk_bf16_f32 v{vCs+ft}, v{vCs+ft}, v{CSF+ft}")
                    a(f"s_lshl_b32 s{sT3}, s{sW}, 2\ns_add_u32 s{sT3}, s{sT3}, 57344\nv_add_u32 v{vT2}, s{sT3}, v{vL16}\nv_add_u32 v{vT}, s{sLB}, v{vL16}")
                    for k in range(6):
                        a(f"ds_write2st64_b32 v{vT2}, v{vCs+(2*k)%3}, v{vCs+(2*k+1)%3} offset0:{8*k} offset1:{8*k+4}", "csw")
            if i == 1:
                if c + 3 <= 7: w_issue((c + 3) & 3, f"W{c+3}")
            if i == 2 and c == 3:
                a(f"buffer_load_dwordx2 {vr(vNon,2)}, off, {DBG}, 0 sc1", "non")
            if i == 2 and c == 5:
                a(f"buffer_load_dwordx4 {vr(vSt,4)}, v{vSa}, {WS}, s{sO} offen sc1", "st")
        if c == 5: p_issue([0, 1, 2], "P")
        if c == 6: p_issue([3, 4, 5, 6, 7, 8, 9], "P")
    stamp()
    a.wait(vm=("non", "st"))
    a(f"""
    s_mov_b32 s{sCnt}, 0
    G_stchk:
    v_cmp_ne_u64 vcc, {vr(vNon,2)}, {vr(vSt+2,2)}
    v_cmp_eq_u32 s[54:55], 0, v{vNon}
    s_or_b64 vcc, vcc, s[54:55]
    s_cbranch_vccz G_stok
    s_add_u32 s{sCnt}, s{sCnt}, 1
    s_cmp_ge_u32 s{sCnt}, {SPIN}
    s_cbranch_scc1 G_stok
    """)
    a.raw(f"  buffer_load_dwordx2 {vr(vNon,2)}, off, {DBG}, 0 sc1")
    a.raw(f"  buffer_load_dwordx4 {vr(vSt,4)}, v{vSa}, {WS}, s{sO} offen sc1")
    a.raw("  s_waitcnt vmcnt(0)\n  s_branch G_stchk")
    a("G_stok:")
    for k in range(4): a(f"v_mov_b32 v{vNeg+k}, v{vSt}")
    a(f"v_mul_f32 v{vC2}, 0xbfb8aa3b, v{vSt+1}")
    a.wait(lg="csf")
    for ft in range(3):
        a(f"v_mfma_f32_32x32x16_bf16 {vr(ACC1+16*ft,16)}, {vr(CSF+4*ft,4)}, {vr(vNeg,4)}, {vr(ACC1+16*ft,16)}")
    a(f"""
    s_mul_i32 s{sHS}, s{sM}, {6*64}
    s_lshl_b32 s{sT3}, s{sRB}, 2
    s_add_u32 s{sHS}, s{sHS}, s{sT3}
    s_add_u32 s{sHS}, s{sHS}, s{sW}
    s_lshl_b32 s{sHS}, s{sHS}, 10
    """)
    p_issue([10, 11, 12, 13], "P")
    E1, OB = 192, 208
    pend = [[14, 15, 16], [17, 18, 19], []]
    for ft in range(3):
        A0 = ACC1 + 16 * ft
        for k in range(0, 16, 2):
            a(f"v_pk_mul_f32 {vr(E1+k,2)}, {vr(A0+k,2)}, {vr(vC2,2)} op_sel_hi:[1,0]")
        for k in range(16):
            a(f"v_exp_f32 v{E1+k}, v{E1+k}")
            if k % 2 == 0:
                a(f"v_pk_mul_f32 {vr(A0+k,2)}, {vr(A0+k,2)}, {vr(vSt,2)} op_sel:[0,1] op_sel_hi:[1,1]")
        for k in range(0, 16, 2):
            a(f"v_pk_add_f32 {vr(E1+k,2)}, {vr(E1+k,2)}, 1.0 op_sel_hi:[1,0]")
        for k in range(16):
            a(f"v_rcp_f32 v{E1+k}, v{E1+k}")
        for k in range(0, 16, 2):
            a(f"v_pk_mul_f32 {vr(A0+k,2)}, {vr(A0+k,2)}, {vr(E1+k,2)}")
        for k in range(0, 16, 2):
            a(f"v_cvt_pk_bf16_f32 v{OB+8*ft+k//2}, v{A0+k}, v{A0+k+1}")
        for j in range(2):
            a(f"buffer_store_dwordx4 {vr(OB+8*ft+4*j,4)}, v{vL16}, {HS}, s{sHS} offen sc1", "hs")
            a(f"s_add_u32 s{sHS}, s{sHS}, 65536")
        if pend[ft]: p_issue(pend[ft], "P")
    stamp()
    a.wait(vm=0)
    stamp()
    a(f"""
    s_barrier
    s_cmp_lg_u32 s{sW}, 0
    s_cbranch_scc1 G_join
    s_lshl_b32 s{sT}, s{sRB}, 7
    s_lshl_b32 s{sT2}, s{sM}, 3
    s_add_u32 s{sT}, s{sT}, s{sT2}
    s_add_u32 s{sT}, s{sT}, {FH}
    s_mov_b64 exec, 1
    buffer_store_dwordx2 {vr(vNon,2)}, off, {WS}, s{sT} sc1
    s_mov_b64 exec, -1
    G_join:
    """)
    a.vm = []
    def tr_w2(step, pieces):
        base = STASH + 8 * (step % 12)
        for j in range(2):
            for e in range(2):
                rg, off = LOC[pieces[e]]
                a(f"ds_read_b64_tr_b16 {vr(base+4*j+2*e,2)}, v{vW2r+(0 if rg=='A' else 2)+j} offset:{off}", "w2f")
    ploc = lambda p: p % 20 if p < 40 else p - 40
    for lo, hi in [(0, 3), (3, 5), (5, 7), (7, 10)]:
        for s in range(lo, hi): tr_w2(s, [2 * s, 2 * s + 1])
        a.wait(lg=0)
        p_issue(list(range(2 * lo, 2 * hi)), "Pa" if lo == 0 else "Pb")
    vH, vF = vXo, vXo + 2
    a(f"""
    s_and_b32 s{sT}, s{sW}, 1
    s_lshl_b32 s{sT2}, s{sT}, 10
    v_add_u32 v{vH}, s{sT2}, v{vL16}
    v_xor_b32 v{vH+1}, 0x400, v{vH}
    s_mul_i32 s{sHL}, s{sW}, {22*64}
    s_lshl_b32 s{sT2}, s{sRB}, 2
    s_add_u32 s{sHL}, s{sHL}, s{sT2}
    s_and_b32 s{sT3}, s{sM}, 1
    s_lshl_b32 s{sT3}, s{sT3}, 1
    s_add_u32 s{sHL}, s{sHL}, s{sT3}
    s_lshl_b32 s{sHL}, s{sHL}, 10
    s_add_u32 s{sT2}, s{sT2}, s{sT3}
    s_add_u32 s{sT2}, s{sT2}, s{sT}
    s_lshr_b32 s{sT3}, s{sM}, 1
    s_lshl_b32 s{sT3}, s{sT3}, 1
    s_lshr_b32 s{sT}, s{sW}, 1
    s_add_u32 s{sT3}, s{sT3}, s{sT}
    s_lshl_b32 s{sO}, s{sT2}, 15
    s_lshl_b32 s{sT}, s{sT3}, 6
    s_add_u32 s{sO}, s{sO}, s{sT}
    s_lshl_b32 s{sY}, s{sT3}, 17
    s_lshl_b32 s{sT}, s{sT2}, 7
    s_add_u32 s{sY}, s{sY}, s{sT}
    s_add_u32 s{sY}, s{sY}, {Y2}
    s_lshl_b32 s53, s{sT3}, 7
    s_add_u32 s53, s53, {FY}
    v_and_b32 v{vF}, 15, v{vL}
    v_min_u32 v{vF+1}, 14, v{vF}
    v_lshlrev_b32 v{vF}, 3, v{vF}
    v_lshlrev_b32 v{vF+1}, 3, v{vF+1}
    s_lshl_b32 s{sT}, s{sRB}, 7
    s_add_u32 s{sT}, s{sT}, {FH}
    """)
    a.wait(vm="Pa")
    tr_w2(10, [0, 1]); tr_w2(11, [2, 3])
    a.wait(lg=0)
    p_issue([0, 1, 2, 3], "Pc")
    stamp()
    vP = vXr
    vP = 10
    a(f"s_mov_b32 s{sCnt}, 0\nG_hpoll:")
    a.raw(f"  buffer_load_dwordx2 {vr(vNon,2)}, off, {DBG}, 0 sc1")
    a.raw(f"  buffer_load_dwordx2 {vr(vP,2)}, v{vF+1}, {WS}, s{sT} offen sc1")
    a(f"""
    s_add_u32 s{sCnt}, s{sCnt}, 1
    s_waitcnt vmcnt(0)
    v_cmp_ne_u64 vcc, {vr(vNon,2)}, {vr(vP,2)}
    v_cmp_eq_u32 s[54:55], 0, v{vNon}
    s_or_b64 vcc, vcc, s[54:55]
    s_cbranch_vccz G_hok
    s_cmp_lt_u32 s{sCnt}, {SPIN}
    s_cbranch_scc1 G_hpoll
    G_hok:
    """)
    a.vm = []
    stamp()
    def h_issue(i):
        for j in range(2):
            a(f"buffer_load_dwordx4 {vr(HB+8*(i%8)+4*j,4)}, v{vH+j}, {HS}, s{sHL} offen sc1", f"h{i}")
        a(f"s_add_u32 s{sHL}, s{sHL}, 65536")
    for i in range(8): h_issue(i)
    vO, vY = vWo, vWo + 1
    a(f"""
    v_and_b32 v{vT}, 31, v{vL}
    v_lshrrev_b32 v{vT2}, 5, v{vL}
    v_lshlrev_b32 v{vO}, 10, v{vT}
    v_lshl_add_u32 v{vO}, v{vT2}, 3, v{vO}
    v_lshlrev_b32 v{vY}, 2, v{vT}
    v_lshl_add_u32 v{vY}, v{vT2}, 14, v{vY}
    """)
    vR = vWr
    a(f"v_add_u32 v{vR}, s{sLB}, v{vL16}")
    for k in range(1, 4):
        a(f"s_xor_b32 s{sT}, s{sW}, {k}\ns_mul_i32 s{sT}, s{sT}, 3072\ns_add_u32 s{sT}, s{sT}, 32768\nv_add_u32 v{vR+k}, s{sT}, v{vL16}")
    XR, YR = HB + 8 * (14 % 8), HB + 8 * (15 % 8)
    Z = STASH + 80
    for i in range(22):
        a.wait(vm=f"h{i}", lg=(f"r{i}" if i >= 12 else None))
        if i == 0: stamp()
        sb = STASH + 8 * (i % 12)
        for jd in range(2):
            for jt in range(2):
                ac = ACC2 + 16 * (2 * jd + jt)
                cc = "0" if i == 0 else vr(ac, 16)
                a(f"v_mfma_f32_32x32x16_bf16 {vr(ac,16)}, {vr(sb+4*jd,4)}, {vr(HB+8*(i%8)+4*jt,4)}, {cc}")
        if i + 8 < 22: h_issue(i + 8)
        if i + 12 < 22:
            s = i + 12
            base = STASH + 8 * (s % 12)
            for j in range(2):
                for e in range(2):
                    rg, off = LOC[ploc(2 * s + e)]
                    a(f"ds_read_b64_tr_b16 {vr(base+4*j+2*e,2)}, v{vW2r+(0 if rg=='A' else 2)+j} offset:{off}", f"r{s}")
        if i == 13:
            a(f"buffer_load_dwordx2 {vr(vP,2)}, v{vF}, {WS}, s53 offen sc1", "yf")
        if i == 14:
            for q in range(4):
                a(f"buffer_load_dwordx2 {vr(XR+2*q,2)}, v{vO}, {X}, s{sO} offen offset:{16*q}", "xr")
    stamp()
    for k in range(1, 4):
        for q in range(4):
            idx = (k - 1) * 4 + q
            a(f"ds_write_b128 v{vR}, {vr(ACC2+16*k+4*q,4)} offset:{(idx//3)*12288+(idx%3)*1024}", "rw")
    a.wait(vm="yf")
    a(f"""
    s_mov_b32 s{sCnt}, 0
    G_ychk:
    v_cmp_ne_u64 vcc, {vr(vNon,2)}, {vr(vP,2)}
    s_add_u32 s{sCnt}, s{sCnt}, 1
    s_cbranch_vccz G_yok
    s_cmp_ge_u32 s{sCnt}, {SPIN}
    s_cbranch_scc1 G_yok
    """)
    a.raw(f"  buffer_load_dwordx2 {vr(vP,2)}, v{vF}, {WS}, s53 offen sc1")
    a.raw("  s_waitcnt vmcnt(0)\n  s_branch G_ychk")
    a("G_yok:")
    for q in range(4):
        for ip in range(2):
            a(f"buffer_load_dword v{YR+2*q+ip}, v{vY}, {WS}, s{sY} offen sc1", "yr")
            a(f"s_add_u32 s{sY}, s{sY}, {8192 if ip == 0 else 3*8192}")
    a.wait(lg=0)
    a("s_barrier")
    RB = STASH
    for k in range(1, 4):
        for q in range(4):
            idx = (k - 1) * 4 + q
            a(f"ds_read_b128 {vr(RB+16*(k-1)+4*q,4)}, v{vR+k} offset:{(idx//3)*12288+(idx%3)*1024}", f"rr{k}")
    a.wait(vm="xr")
    a(f"s_mov_b32 s{sT}, 0xffff0000")
    for k in range(8):
        a(f"v_lshlrev_b32 v{Z+2*k}, 16, v{XR+k}\nv_and_b32 v{Z+2*k+1}, s{sT}, v{XR+k}")
    for k in range(8):
        a(f"v_pk_add_f32 {vr(ACC2+2*k,2)}, {vr(ACC2+2*k,2)}, {vr(Z+2*k,2)}")
    for k in range(1, 4):
        a.wait(lg=f"rr{k}")
        for j in range(8):
            a(f"v_pk_add_f32 {vr(ACC2+2*j,2)}, {vr(ACC2+2*j,2)}, {vr(RB+16*(k-1)+2*j,2)}")
    a.wait(vm="yr")
    for k in range(8):
        a(f"v_lshlrev_b32 v{Z+2*k}, 16, v{YR+k}\nv_and_b32 v{Z+2*k+1}, s{sT}, v{YR+k}")
    for k in range(8):
        a(f"v_pk_add_f32 {vr(ACC2+2*k,2)}, {vr(ACC2+2*k,2)}, {vr(Z+2*k,2)}")
    for k in range(8):
        a(f"v_cvt_pk_bf16_f32 v{Z+k}, v{ACC2+2*k}, v{ACC2+2*k+1}")
    for q in range(4):
        a(f"buffer_store_dwordx2 {vr(Z+2*q,2)}, v{vO}, {OUT}, s{sO} offen offset:{16*q}")
    stamp()
    if STAMPS:
        a("s_waitcnt vmcnt(0)"); stamp()
    stamp_flush(WS, f"s{sW}", vT)
    a("s_endpgm")
    a("G_idle:")
    a.hist = []
    late_addr2()
    p_issue(list(range(20)), "P")
    a("s_waitcnt vmcnt(0)\ns_branch G_join")
    a.vm = []; a.lg = []

def ssm_role():
    DBG, WS = "s[8:11]", "s[12:15]"
    sQ, sW, sE, sPar, sT, sT2, sCnt, sOnes, sMask = 3, 4, 5, 6, 7, 34, 35, 40, 41
    sLdt, sD = 42, 43
    sMean, sNeg, sR = 44, 48, 52
    vL, vXr, vF, vC = 1, 2, 10, 26
    vPar, vA, vB, vWc = 44, 50, 51, 52
    vT, vT2, vT3, vT4 = 54, 55, 56, 57
    vNon, vL16, vTab = 58, 60, 61
    CB = lambda e: e * 16640
    UB0, USZ, K0A, TAB = 33280, 4576, 42432, 45056
    a.hist = []; a.vm = []; a.lg = []
    a(f"""
    s_load_dwordx16 s[16:31], s[0:1], 0
    s_load_dwordx2 s[32:33], s[0:1], 64
    s_load_dwordx2 s[8:9], s[0:1], 104
    s_load_dwordx2 s[12:13], s[0:1], 112
    """)
    if STAMPS: a("s_memrealtime s[100:101]")
    a(f"""
    v_lshrrev_b32 v{vT}, 6, v0
    v_and_b32 v{vL}, 63, v0
    s_sub_u32 s{sQ}, s2, 256
    v_readfirstlane_b32 s{sW}, v{vT}
    v_lshlrev_b32 v{vL16}, 4, v{vL}
    s_lshl_b32 s{sT}, s{sQ}, 13
    v_lshl_add_u32 v{vT2}, v{vT}, 11, v{vL16}
    v_add_u32 v{vT2}, s{sT}, v{vT2}
    s_lshl_b32 s{sT}, s{sQ}, 9
    v_lshl_add_u32 v{vT3}, v0, 1, s{sT}
    s_lshr_b32 s{sE}, s{sW}, 1
    s_and_b32 s{sPar}, s{sW}, 1
    s_mov_b32 s{sOnes}, 0x3f803f80
    s_mov_b32 s{sMask}, 0xffff0000
    s_lshl_b32 s{sT}, s{sQ}, 2
    """)
    srd(8, 256); srd(12, WS_SIZE)
    a("s_waitcnt lgkmcnt(0)")
    stamp()
    a(f"global_load_dwordx4 {vr(vXr,4)}, v{vT2}, s[16:17]", "x")
    a(f"global_load_dwordx4 {vr(vXr+4,4)}, v{vT2}, s[16:17] offset:1024", "x")
    for k in range(6):
        a(f"global_load_ushort v{vPar+k}, v{vT3}, s[{18+2*k}:{19+2*k}]", "par")
    a(f"s_load_dword s{sLdt}, s[30:31], s{sT}\ns_load_dword s{sD}, s[32:33], s{sT}")
    a(f"""
    s_mul_i32 s{sT2}, s{sE}, {USZ}
    s_add_u32 s{sT2}, s{sT2}, {UB0}
    v_lshl_add_u32 v{vT}, v{vL}, 3, s{sT2}
    v_mov_b32 v{vT3}, 0
    v_mov_b32 v{vT4}, 0
    ds_write_b64 v{vT}, {vr(vT3,2)}
    s_mul_i32 s{sT2}, s{sW}, 8704
    s_add_u32 s{sT2}, s{sT2}, {TAB}
    v_lshl_add_u32 v{vTab}, v{vL}, 2, s{sT2}
    """)
    a.wait(vm="x")
    stamp()
    a(f"buffer_load_dwordx2 {vr(vNon,2)}, off, {DBG}, 0 sc1", "non")
    S = [vT, vT2]
    def dpp_reduce():
        for ctl in ("row_shr:1", "row_shr:2", "row_shr:4", "row_shr:8"):
            for r in range(2):
                a(f"v_add_f32_dpp v{S[r]}, v{S[r]}, v{S[r]} {ctl} row_mask:0xf bank_mask:0xf bound_ctrl:0")
        for ctl in ("row_bcast:15 row_mask:0xa", "row_bcast:31 row_mask:0xc"):
            for r in range(2):
                a(f"v_add_f32_dpp v{S[r]}, v{S[r]}, v{S[r]} {ctl} bank_mask:0xf")
    for k in range(4):
        for r in range(2):
            a(f"v_dot2_f32_bf16 v{S[r]}, v{vXr+4*r+k}, s{sOnes}, {'0' if k == 0 else 'v%d' % S[r]}")
    for r in range(2):
        for k in range(4):
            a(f"v_lshlrev_b32 v{vF+8*r+2*k}, 16, v{vXr+4*r+k}\nv_and_b32 v{vF+8*r+2*k+1}, s{sMask}, v{vXr+4*r+k}")
    dpp_reduce()
    for r in range(2): a(f"v_mul_f32 v{S[r]}, 0x3b000000, v{S[r]}")
    for r in range(2): a(f"v_cvt_pk_bf16_f32 v{vT3+r}, -v{S[r]}, -v{S[r]}")
    for r in range(2): a(f"v_readlane_b32 s{sMean+2*r}, v{S[r]}, 63")
    for r in range(2): a(f"v_readlane_b32 s{sNeg+2*r+1}, v{vT3+r}, 63")
    for k in range(4):
        for r in range(2):
            a(f"v_pk_add_f32 {vr(vC+8*r+2*k,2)}, {vr(vF+8*r+2*k,2)}, {sr(sMean+2*r,2)} op_sel_hi:[1,0] neg_lo:[0,1] neg_hi:[0,1]")
    for r in range(2): a(f"s_and_b32 s{sNeg+2*r}, s{sNeg+2*r+1}, s{sMask}")
    for r in range(2):
        a(f"v_pk_mul_f32 {vr(vC+8*r,2)}, {vr(vC+8*r,2)}, {vr(vC+8*r,2)}")
    for k in range(1, 4):
        for r in range(2):
            a(f"v_pk_fma_f32 {vr(vC+8*r,2)}, {vr(vC+8*r+2*k,2)}, {vr(vC+8*r+2*k,2)}, {vr(vC+8*r,2)}")
    for r in range(2): a(f"v_add_f32 v{S[r]}, v{vC+8*r}, v{vC+8*r+1}")
    for k in range(4):
        for r in range(2):
            a(f"v_pk_add_f32 {vr(vF+8*r+2*k,2)}, {vr(vF+8*r+2*k,2)}, {sr(sNeg+2*r,2)} op_sel_hi:[1,0]")
    dpp_reduce()
    for r in range(2):
        for k in range(4):
            a(f"v_cvt_pk_bf16_f32 v{vXr+4*r+k}, v{vF+8*r+2*k}, v{vF+8*r+2*k+1}")
    def rnd():
        for r in range(2): a(f"v_cvt_pk_bf16_f32 v{S[r]}, v{S[r]}, v{S[r]}")
        for r in range(2): a(f"v_lshlrev_b32 v{S[r]}, 16, v{S[r]}")
    for r in range(2): a(f"v_mul_f32 v{S[r]}, 0x3b000000, v{S[r]}")
    rnd()
    for r in range(2): a(f"v_add_f32 v{S[r]}, 0x3727c5ac, v{S[r]}")
    rnd()
    for r in range(2): a(f"v_sqrt_f32 v{S[r]}, v{S[r]}")
    rnd()
    for r in range(2): a(f"v_rcp_f32 v{S[r]}, v{S[r]}")
    for r in range(2):
        for k in range(4):
            a(f"v_lshlrev_b32 v{vF+8*r+2*k}, 16, v{vXr+4*r+k}\nv_and_b32 v{vF+8*r+2*k+1}, s{sMask}, v{vXr+4*r+k}")
    for r in range(2): a(f"v_readlane_b32 s{sR+2*r}, v{S[r]}, 63")
    a(f"s_mul_i32 s{sT2}, s{sW}, {2*1088}\nv_add_u32 v{vT3}, s{sT2}, v{vL16}")
    for r in range(2):
        for k in range(4):
            a(f"v_pk_mul_f32 {vr(vF+8*r+2*k,2)}, {vr(vF+8*r+2*k,2)}, {sr(sR+2*r,2)} op_sel_hi:[1,0]")
        for k in range(4):
            a(f"v_cvt_pk_bf16_f32 v{vXr+4*r+k}, v{vF+8*r+2*k}, v{vF+8*r+2*k+1}")
        a(f"ds_write_b128 v{vT3}, {vr(vXr+4*r,4)} offset:{1088*r}", "stg")
    a(f"""
    v_bfe_u32 v{vT}, v{vL}, 2, 2
    v_mul_u32_u24 v{vT}, 1088, v{vT}
    v_lshrrev_b32 v{vT2}, 4, v{vL}
    v_lshl_add_u32 v{vT}, v{vT2}, 5, v{vT}
    v_and_b32 v{vT2}, 3, v{vL}
    v_lshl_add_u32 v{vT}, v{vT2}, 3, v{vT}
    s_lshl_b32 s{sT2}, s{sW}, 8
    v_add_u32 v{vT}, s{sT2}, v{vT}
    s_waitcnt lgkmcnt(0)
    s_barrier
    """)
    a.lg = []
    for b in range(2):
        for e in range(2):
            a(f"ds_read_b64_tr_b16 {vr(vF+4*b+2*e,2)}, v{vT} offset:{128*b+4*1088*e}", "tr")
    a.wait(vm="non")
    a(f"""
    s_mov_b32 s{sCnt}, 0
    S_nchk:
    v_cmp_eq_u32 vcc, 0, v{vNon}
    s_add_u32 s{sCnt}, s{sCnt}, 1
    s_cbranch_vccz S_nok
    s_cmp_ge_u32 s{sCnt}, {SPIN}
    s_cbranch_scc1 S_nok
    """)
    a.raw(f"  buffer_load_dwordx2 {vr(vNon,2)}, off, {DBG}, 0 sc1\n  s_waitcnt vmcnt(0)\n  s_branch S_nchk")
    a("S_nok:")
    a(f"""
    v_mov_b32 v{vC}, s{sNeg+1}
    v_mov_b32 v{vC+1}, s{sR}
    v_mov_b32 v{vC+2}, v{vNon}
    v_mov_b32 v{vC+3}, v{vNon+1}
    v_writelane_b32 v{vC}, s{sNeg+3}, 1
    v_writelane_b32 v{vC+1}, s{sR+2}, 1
    s_lshl_b32 s{sT}, s{sQ}, 7
    s_lshl_b32 s{sT2}, s{sW}, 5
    s_add_u32 s{sT}, s{sT}, s{sT2}
    s_add_u32 s{sT}, s{sT}, {ST}
    s_mov_b64 exec, 3
    buffer_store_dwordx4 {vr(vC,4)}, v{vL16}, {WS}, s{sT} offen sc1
    s_mov_b64 exec, -1
    s_lshl_b32 s{sT}, s{sQ}, 13
    s_lshl_b32 s{sT2}, s{sW}, 11
    s_add_u32 s{sT}, s{sT}, s{sT2}
    s_add_u32 s{sT}, s{sT}, {XNP}
    """)
    a.wait(lg=0)
    for b in range(2):
        a(f"buffer_store_dwordx4 {vr(vF+4*b,4)}, v{vL16}, {WS}, s{sT} offen offset:{1024*b} sc1", "xn")
    stamp()
    E = lambda k: 64 + 2 * k
    EX, GW, E16, E64, GP, AF, GF, KA = 98, 106, 114, 116, 120, 152, 184, 216
    a(f"""
    s_lshl_b32 s{sT}, s{sLdt}, 16
    s_and_b32 s{sT2}, s{sLdt}, s{sMask}
    s_cmp_eq_u32 s{sE}, 0
    s_cselect_b32 s{sT}, s{sT}, s{sT2}
    v_mov_b32 v{vT}, {LOG2E:#x}
    v_mul_f32 v{vT}, s{sT}, v{vT}
    v_exp_f32 v{vT}, v{vT}
    """)
    for k in range(6): a(f"v_lshlrev_b32 v{vPar+k}, 16, v{vPar+k}")
    a(f"""
    v_cvt_pk_bf16_f32 v{vT}, v{vT}, v{vT}
    v_lshlrev_b32 v{vT}, 16, v{vT}
    v_pk_mul_f32 {vr(vA,2)}, {vr(vPar,2)}, {vr(vT,2)} op_sel_hi:[1,0]
    v_pk_mul_f32 {vr(vPar+2,2)}, {vr(vPar+2,2)}, {vr(vT,2)} op_sel_hi:[1,0]
    v_mul_f32 v{vA}, {LOG2E:#x}, v{vA}
    v_mul_f32 v{vB}, 0.15915494, v{vB}
    """)
    cmul(GW, vPar + 4, vPar + 2)
    import struct
    fl = lambda x: "0x%08x" % struct.unpack("<I", struct.pack("<f", x))[0]
    D = [(1, E(1)), (16, E(16)), (512, EX), (1024, EX + 2)]
    TM = 26
    for i, (l, d) in enumerate(D):
        a(f"v_mul_f32 v{TM+2*i}, {fl(l)}, v{vA}\nv_mul_f32 v{TM+2*i+1}, {fl(l)}, v{vB}")
    for i, (l, d) in enumerate(D):
        a(f"v_fract_f32 v{TM+2*i+1}, v{TM+2*i+1}\nv_exp_f32 v{TM+2*i}, v{TM+2*i}")
    for i, (l, d) in enumerate(D):
        a(f"v_cos_f32 v{d}, v{TM+2*i+1}\nv_sin_f32 v{d+1}, v{TM+2*i+1}")
    a(f"v_pk_mul_f32 {vr(E16,2)}, {vr(E(16),2)}, {vr(TM+2,2)} op_sel_hi:[1,0]")
    for i, (l, d) in enumerate(D):
        a(f"v_pk_mul_f32 {vr(d,2)}, {vr(d,2)}, {vr(TM+2*i,2)} op_sel_hi:[1,0] neg_hi:[1,0]")
    O = [0, 1, 2, 3, 4, 5, 6, 7, 8, 512, 516, 520, 1024, 1032, 1536, 1544]
    pk = [0]
    def put_a(off, src):
        t = 34 + (pk[0] % 8); pk[0] += 1
        if src is None: a(f"v_mov_b32 v{t}, 0x3f80")
        else: a(f"v_cvt_pk_bf16_f32 v{t}, v{src}, v{src+1}")
        rows = [8 * (R >> 2) + 4 * h + (R & 3) for R in range(16) for h in range(2) if 8 * h + O[R] == off]
        assert rows
        for row in rows: a(f"ds_write_b32 v{vTab}, v{t} offset:{row*272}", "tw")
    def put_g(hi, src):
        a(f"v_cvt_pk_bf16_f32 v{GP+hi}, v{src}, v{src+1}")
    la, lg_ = [], []
    la.append(lambda: (put_a(0, None), put_a(1, E(1)), put_a(16, E(16)), put_a(512, EX), put_a(1024, EX + 2)))
    for k, x, y in [(2,1,1),(3,2,1),(4,2,2),(5,4,1),(6,4,2),(7,4,3),(8,4,4)] + [(8+j,8,j) for j in range(1,8)]:
        la.append(lambda k=k, x=x, y=y: (cmul(E(k), E(x), E(y)), put_a(k, E(k))))
    la.append(lambda: (cmul(EX + 4, EX, EX + 2), put_a(1536, EX + 4)))
    for base, reg, offs in [(512, EX, (4, 8, 12, 16)), (1024, EX + 2, (8, 16)), (1536, EX + 4, (8, 16))]:
        for o in offs:
            la.append(lambda base=base, reg=reg, o=o: (cmul(EX + 6, reg, E(o)), put_a(base + o, EX + 6)))
    lg_.append(lambda: (put_g(0, GW), cmul(GW + 2, GW, E16), cmul(E64 + 2, E16, E16)))
    lg_.append(lambda: (put_g(1, GW + 2), cmul(GW + 4, GW, E64 + 2), cmul(GW + 6, GW + 2, E64 + 2), cmul(E64, E64 + 2, E64 + 2)))
    lg_.append(lambda: (put_g(2, GW + 4), put_g(3, GW + 6)))
    G2 = 250 - 8
    for r in range(1, 8):
        src, dst = (GW, G2) if r % 2 == 1 else (G2, GW)
        for j in range(4):
            lg_.append(lambda r=r, j=j, src=src, dst=dst: (cmul(dst + 2 * j, src + 2 * j, E64), put_g(4 * r + j, dst + 2 * j)))
    while la or lg_:
        if la: la.pop(0)()
        if lg_: lg_.pop(0)()
        if not la and AF is not None and not getattr(put_a, "done", False):
            put_a.done = True
            a(f"""
            v_and_b32 v{vT}, 31, v{vL}
            v_mul_u32_u24 v{vT}, 272, v{vT}
            v_lshrrev_b32 v{vT2}, 5, v{vL}
            v_lshl_add_u32 v{vT}, v{vT2}, 4, v{vT}
            s_mul_i32 s{sT2}, s{sW}, 8704
            s_add_u32 s{sT2}, s{sT2}, {TAB}
            v_add_u32 v{vT}, s{sT2}, v{vT}
            """)
            for s in range(8): a(f"ds_read_b128 {vr(AF+4*s,4)}, v{vT} offset:{32*s}", "af")
    for hi in range(32): a(f"ds_write_b32 v{vTab}, v{GP+hi} offset:{hi*272}", "tw")
    for s in range(8): a(f"ds_read_b128 {vr(GF+4*s,4)}, v{vT} offset:{32*s}", f"gf{s}")
    for s in range(8):
        a.wait(lg=f"gf{s}")
        a(f"v_mfma_f32_32x32x16_bf16 {vr(KA,16)}, {vr(AF+4*s,4)}, {vr(GF+4*s,4)}, {'0' if s == 0 else vr(KA,16)}")
    a(f"v_add_u32 v{vT2}, s{sT2}, v{vL16}\ns_xor_b32 s{sT}, s{sW}, 1\ns_mul_i32 s{sT}, s{sT}, 8704\ns_add_u32 s{sT}, s{sT}, {TAB}\nv_add_u32 v{vT3}, s{sT}, v{vL16}")
    for q in range(4): a(f"ds_write_b128 v{vT2}, {vr(KA+4*q,4)} offset:{1024*q}", "kx")
    stamp()
    a.wait(vm=0, lg=0)
    a(f"""
    s_barrier
    s_cmp_lg_u32 s{sW}, 0
    s_cbranch_scc1 S_noflag
    s_lshl_b32 s{sT}, s{sQ}, 3
    s_add_u32 s{sT}, s{sT}, {FX}
    s_mov_b64 exec, 1
    buffer_store_dwordx2 {vr(vNon,2)}, off, {WS}, s{sT} sc1
    s_mov_b64 exec, -1
    S_noflag:
    """)
    a.vm = []
    KP = 64
    for q in range(4): a(f"ds_read_b128 {vr(KP+4*q,4)}, v{vT3} offset:{1024*q}", "kp")
    vK = 80
    a(f"""
    v_and_b32 v{vT}, 31, v{vL}
    v_lshrrev_b32 v{vT2}, 5, v{vL}
    v_lshl_add_u32 v{vK}, v{vT}, 1, v{vT2}
    s_mul_i32 s{sT}, s{sE}, 16640
    s_lshl_b32 s{sT2}, s{sPar}, 11
    s_add_u32 s{sT2}, s{sT2}, s{sT}
    s_add_u32 s{sT2}, s{sT2}, 32
    v_lshl_add_u32 v{vK}, v{vK}, 4, s{sT2}
    v_add_u32 v{vK+1}, {2*4160-4}, v{vK}
    v_add_u32 v{vK+2}, {3*4160-4}, v{vK}
    v_add_u32 v{vK+3}, {2*4160-4+1024}, v{vK}
    v_add_u32 v{vK+4}, {3*4160-4+1024}, v{vK}
    """)
    a.wait(lg=0)
    for j in range(8): a(f"v_pk_add_f32 {vr(KA+2*j,2)}, {vr(KA+2*j,2)}, {vr(KP+2*j,2)}")
    PK = 88
    K = lambda i: KA + i
    def packs(run, k):
        for j in range(4): a(f"v_cvt_pk_bf16_f32 v{PK+8*run+j}, v{k[2*j]}, v{k[2*j+1]}")
        for j in range(4): a(f"v_cvt_pk_bf16_f32 v{PK+8*run+4+j}, v{k[2*j+1]}, v{k[2*j+2]}")
    a(f"s_cmp_lg_u32 s{sPar}, 0\ns_cbranch_scc1 S_par1")
    a(f"""
    v_cmp_le_u32 vcc, 16, v{vT}
    v_bfe_u32 v{vT2}, v{vL}, 3, 2
    v_mul_u32_u24 v{vT2}, 4160, v{vT2}
    v_and_b32 v{vT3}, 7, v{vL}
    v_lshl_add_u32 v{vT2}, v{vT3}, 2, v{vT2}
    v_add_u32 v{vT2}, s{sT}, v{vT2}
    v_mov_b32 v{vT3}, 0
    ds_write_b32 v{vT2}, v{vT3}
    v_cndmask_b32 v{K(1)}, v{K(1)}, v{K(0)}, vcc
    v_cndmask_b32 v{K(3)}, v{K(3)}, v{K(4)}, vcc
    v_cndmask_b32 v{K(5)}, v{K(5)}, v{K(4)}, vcc
    v_cndmask_b32 v{K(7)}, v{K(7)}, v{K(8)}, vcc
    s_lshl_b32 s{sT2}, s{sE}, 2
    s_add_u32 s{sT2}, s{sT2}, {K0A}
    v_mov_b32 v{vT2}, s{sT2}
    s_mov_b64 exec, 1
    ds_write_b32 v{vT2}, v{K(0)}
    v_mov_b32 v{K(0)}, 0
    s_mov_b64 exec, -1
    """)
    packs(0, [K(i) for i in range(9)])
    packs(1, [K(9), K(9), K(9), K(10), K(10), K(10), K(11), K(11), K(11)])
    a("s_branch S_parj\nS_par1:")
    a(f"""
    v_cmp_le_u32 vcc, 32, v{vL}
    s_nop 1
    v_cndmask_b32 v{K(0)}, v{K(12)}, v{K(13)}, vcc
    v_cndmask_b32 v{K(1)}, v{K(14)}, v{K(15)}, vcc
    """)
    packs(0, [K(12)] * 4 + [K(0)] + [K(13)] * 4)
    packs(1, [K(14)] * 4 + [K(1)] + [K(15)] * 4)
    a("S_parj:")
    for run in range(2):
        a(f"ds_write_b128 v{vK}, {vr(PK+8*run,4)} offset:{1024*run}")
        a(f"ds_write_b128 v{vK}, {vr(PK+8*run+4,4)} offset:{4160+1024*run}")
        for cp in range(2):
            for j in range(2):
                a(f"ds_write2_b32 v{vK+1+2*run+cp}, v{PK+8*run+4*cp+2*j}, v{PK+8*run+4*cp+2*j+1} offset0:{2*j} offset1:{2*j+1}")
    stamp()
    vP, vU = 26, 30
    a(f"""
    s_lshl_b32 s{sT}, s{sPar}, 10
    s_add_u32 s{sT}, s{sT}, {FX}
    v_lshlrev_b32 v{vT}, 3, v{vL}
    v_lshlrev_b32 v{vT2}, 13, v{vL}
    s_mov_b32 s{sCnt}, 0
    S_xpoll:
    """)
    a.raw(f"  buffer_load_dwordx2 {vr(vP,2)}, v{vT}, {WS}, s{sT} offen sc1")
    a.raw(f"  buffer_load_dwordx2 {vr(vP+2,2)}, v{vT}, {WS}, s{sT} offen offset:512 sc1")
    a(f"""
    s_add_u32 s{sCnt}, s{sCnt}, 1
    s_waitcnt vmcnt(0)
    v_cmp_ne_u64 vcc, {vr(vNon,2)}, {vr(vP,2)}
    v_cmp_ne_u64 s[56:57], {vr(vNon,2)}, {vr(vP+2,2)}
    s_or_b64 vcc, vcc, s[56:57]
    s_cbranch_vccz S_xok
    s_cmp_lt_u32 s{sCnt}, {SPIN}
    s_cbranch_scc1 S_xpoll
    S_xok:
    s_lshl_b32 s{sT}, s{sPar}, 20
    s_lshl_b32 s{sT2}, s{sQ}, 5
    s_add_u32 s{sT}, s{sT}, s{sT2}
    s_lshl_b32 s{sT2}, s{sE}, 4
    s_add_u32 s{sT}, s{sT}, s{sT2}
    s_add_u32 s{sT}, s{sT}, {XNP}
    s_add_u32 s{sT2}, s{sT}, {64*8192}
    """)
    stamp()
    a(f"buffer_load_dwordx4 {vr(vU,4)}, v{vT2}, {WS}, s{sT} offen sc1", "u")
    a(f"buffer_load_dwordx4 {vr(vU+4,4)}, v{vT2}, {WS}, s{sT2} offen sc1", "u")
    vAa, vBa = 62, 63
    a(f"""
    s_mul_i32 s{sT}, s{sE}, {USZ}
    s_add_u32 s{sT}, s{sT}, {UB0}
    s_lshl_b32 s{sT2}, s{sPar}, 11
    s_add_u32 s{sT2}, s{sT2}, s{sT}
    v_add_u32 v{vT}, s{sT2}, v{vL16}
    s_lshl_b32 s{sT2}, s{sPar}, 8
    s_sub_u32 s{sT}, s{sT}, s{sT2}
    s_add_u32 s{sT}, s{sT}, 256
    v_and_b32 v{vT2}, 15, v{vL}
    v_lshrrev_b32 v{vT3}, 4, v{vL}
    v_lshlrev_b32 v{vT3}, 4, v{vT3}
    v_lshl_add_u32 v{vBa}, v{vT2}, 5, v{vT3}
    v_add_u32 v{vBa}, s{sT}, v{vBa}
    v_bfe_u32 v{vT2}, v{vL}, 2, 2
    v_sub_u32 v{vT4}, 0, v{vT2}
    v_and_b32 v{vT4}, 3, v{vT4}
    v_mul_u32_u24 v{vAa}, 4160, v{vT4}
    v_min_u32 v{vT2}, 1, v{vT2}
    v_lshlrev_b32 v{vT2}, 3, v{vT2}
    v_sub_u32 v{vAa}, v{vAa}, v{vT2}
    v_sub_u32 v{vAa}, v{vAa}, v{vT3}
    v_and_b32 v{vT2}, 3, v{vL}
    v_lshl_add_u32 v{vAa}, v{vT2}, 3, v{vAa}
    s_mul_i32 s{sT}, s{sE}, 16640
    s_add_u32 s{sT}, s{sT}, s{sT2}
    s_add_u32 s{sT}, s{sT}, {32+32-8}
    v_add_u32 v{vAa}, s{sT}, v{vAa}
    """)
    a.wait(vm="u")
    a(f"ds_write_b128 v{vT}, {vr(vU,4)} offset:480\nds_write_b128 v{vT}, {vr(vU+4,4)} offset:{480+1024}")
    a("s_waitcnt lgkmcnt(0)\ns_barrier")
    a.lg = []
    stamp()
    AS, BS, YA = [64, 128], [96, 160], 192
    def reads(rho):
        s = rho & 1; L = []
        for j in range(8):
            L.append((f"ds_read_b128 {vr(BS[s]+4*j,4)}, v{vBa} offset:{512*j+64*(3-rho)}", f"b{rho}_{j}"))
            L.append((f"ds_read_b64_tr_b16 {vr(AS[s]+4*j,2)}, v{vAa} offset:{64*(8*j+rho)+8}", f"a{rho}_{j}"))
            L.append((f"ds_read_b64_tr_b16 {vr(AS[s]+4*j+2,2)}, v{vAa} offset:{64*(8*j+rho)}", f"a{rho}_{j}"))
        return L
    for t, tag in reads(0): a(t, tag)
    first = [True] * 8
    for rho in range(4):
        s = rho & 1
        nxt = reads(rho + 1) if rho < 3 else []
        pairs = sorted([(p, q) for p in range(8) for q in range(8) if p + q <= 7], key=lambda x: max(x))
        for n, (p, q) in enumerate(pairs):
            a.wait(lg=(f"a{rho}_{p}", f"b{rho}_{q}"))
            ct = p + q
            a(f"v_mfma_f32_16x16x32_bf16 {vr(YA+4*ct,4)}, {vr(AS[s]+4*p,4)}, {vr(BS[s]+4*q,4)}, {'0' if first[ct] else vr(YA+4*ct,4)}")
            first[ct] = False
            if n >= 8 and nxt:
                t, tag = nxt.pop(0); a(t, tag)
        for t, tag in nxt: a(t, tag)
    stamp()
    a(f"s_mul_i32 s{sT2}, s{sW}, 8704\ns_add_u32 s{sT2}, s{sT2}, {TAB}\nv_add_u32 v{vT}, s{sT2}, v{vL16}")
    for ct in range(8): a(f"ds_write_b128 v{vT}, {vr(YA+4*ct,4)} offset:{1024*ct}")
    a(f"""
    v_and_b32 v{vT2}, 3, v{vL}
    v_lshrrev_b32 v{vT3}, 2, v{vL}
    v_lshl_add_u32 v{vT2}, v{vT2}, 4, v{vT3}
    s_lshl_b32 s{sT}, s{sW}, 11
    s_add_u32 s{sT2}, s{sT}, {TAB}
    v_lshl_add_u32 v{vT2}, v{vT2}, 4, s{sT2}
    s_lshl_b32 s{sT2}, s{sW}, 10
    s_add_u32 s{sT2}, s{sT2}, {UB0+480}
    v_lshl_add_u32 v{vT3}, v{vL}, 3, s{sT2}
    v_mov_b32 v{vT4}, {K0A}
    """)
    UU, KD, RR = 2, 10, 64
    for e in range(2):
        for k in range(2):
            a(f"ds_read_b64 {vr(UU+4*e+2*k,2)}, v{vT3} offset:{USZ*e+512*k}")
    a(f"ds_read_b64 {vr(KD,2)}, v{vT4}")
    a("s_waitcnt lgkmcnt(0)\ns_barrier")
    a.lg = []
    for sw in range(4):
        for k in range(2):
            a(f"ds_read_b128 {vr(RR+8*sw+4*k,4)}, v{vT2} offset:{8704*sw+1024*k}")
    UF = 12
    a(f"""
    s_lshl_b32 s{sT2}, s{sD}, 16
    v_add_f32 v{KD}, s{sT2}, v{KD}
    s_and_b32 s{sT2}, s{sD}, s{sMask}
    v_add_f32 v{KD+1}, s{sT2}, v{KD+1}
    """)
    for j in range(8):
        a(f"v_lshlrev_b32 v{UF+2*j}, 16, v{UU+j}\nv_and_b32 v{UF+2*j+1}, s{sMask}, v{UU+j}")
    a("s_waitcnt lgkmcnt(0)")
    a.lg = []
    for e in range(2):
        for j in range(4):
            a(f"v_pk_add_f32 {vr(RR+16*e+2*j,2)}, {vr(RR+16*e+2*j,2)}, {vr(RR+16*e+8+2*j,2)}")
    for e in range(2):
        sel = "op_sel_hi:[1,0,1]" if e == 0 else "op_sel:[0,1,0] op_sel_hi:[1,1,1]"
        for j in range(4):
            a(f"v_pk_fma_f32 {vr(RR+16*e+2*j,2)}, {vr(UF+8*e+2*j,2)}, {vr(KD,2)}, {vr(RR+16*e+2*j,2)} {sel}")
    for j in range(8):
        a(f"v_cvt_pk_bf16_f32 v{RR+8+j}, v{RR+j}, v{RR+16+j}")
    a(f"s_lshl_b32 s{sT2}, s{sQ}, 13\ns_add_u32 s{sT}, s{sT}, s{sT2}\ns_add_u32 s{sT}, s{sT}, {Y2}")
    for k in range(2):
        a(f"buffer_store_dwordx4 {vr(RR+8+4*k,4)}, v{vL16}, {WS}, s{sT} offen offset:{1024*k} sc1")
    stamp()
    a(f"""
    s_waitcnt vmcnt(0)
    s_barrier
    s_cmp_lg_u32 s{sW}, 0
    s_cbranch_scc1 S_end
    s_lshl_b32 s{sT}, s{sQ}, 3
    s_add_u32 s{sT}, s{sT}, {FY}
    s_mov_b64 exec, 1
    buffer_store_dwordx2 {vr(vNon,2)}, off, {WS}, s{sT} sc1
    S_end:
    """)
    stamp()
    stamp_flush(WS, f"s{sW}", vT)
    a("s_endpgm")

hdr = open("cdna_kernels/" + NAME + ".s.ref").read().split("\n")
top = [l for l in hdr if l.startswith(";") and "@launch" not in l][:17]
a.raw("\n".join(top))
a.raw("; @launch grid=(512,1,1) block=(256,1,1) lds=81920")
a.raw(f""".amdgcn_target "amdgcn-amd-amdhsa--gfx950"
.text
.globl {NAME}_kernel
.p2align 8
.type {NAME}_kernel,@function
{NAME}_kernel:""")
stamp()
a("s_cmp_ge_u32 s2, 256\ns_cbranch_scc1 L_ssm")
gemm_role()
a.raw(".p2align 6")
a("L_ssm:")
if STAMPS: nstamp[0] = 1
a("s_cmp_ge_u32 s2, 512\ns_cbranch_scc1 L_exit")
ssm_role()
a("L_exit:\ns_endpgm")
a.raw(f""".section .rodata,"a"
.p2align 6
.amdhsa_kernel {NAME}_kernel
  .amdhsa_next_free_vgpr 256
  .amdhsa_next_free_sgpr 102
  .amdhsa_accum_offset 256
  .amdhsa_group_segment_fixed_size 0
  .amdhsa_kernarg_size 120
  .amdhsa_user_sgpr_count 2
  .amdhsa_user_sgpr_kernarg_segment_ptr 1
  .amdhsa_system_sgpr_workgroup_id_x 1
.end_amdhsa_kernel""")
sys.stdout.write(a.text())
sys.stderr.write(f"nops inserted: {a.nops}\n")
```

```python
import sys, struct
from asmlib import Asm, vr, sr

NAME = "parallel_sum__ssm_conv_s4__dense_activation_silu__prompt"
OPT = {x.split("=")[0][2:]: (x.split("=")[1] if "=" in x else "1") for x in sys.argv[1:] if x.startswith("--")}
STAMPS = "stamps" in OPT
SPIN = int(OPT.get("spin", 4000))
M1, M2 = OPT.get("m1", "81"), OPT.get("m2", "81")
LOCAL = M1 == "81" and M2 == "81" and "nolocal" not in OPT
HSF = "" if LOCAL else "sc1"

HROW = 88 * 1024
H_SIZE = 64 * HROW
ST = 0x580000
FH = 0x590000
GS = 18432
XNP = 0x600000
XS = 9216
FX = 0x5A0000
Y2 = 0xA80000
WS_SIZE = 0x1000000
STAMP_OFF = 0xF80000
LOG2E = 0x3fb8aa3b
fl = lambda x: "0x%08x" % struct.unpack("<I", struct.pack("<f", x))[0]

a = Asm()
nstamp = [0]
NST = [16]
def stamp(force=False):
    if STAMPS and nstamp[0] < NST[0] and (force or "cs" not in OPT or nstamp[0] in (0, 13)):
        i = nstamp[0]; nstamp[0] += 1
        a(f"s_memtime s[{60+2*i}:{61+2*i}]")
def stamp_flush(wsrd, wave_s, vt):
    if not STAMPS: return
    n = nstamp[0]
    a("s_memrealtime s[98:99]")
    a("s_waitcnt lgkmcnt(0)")
    a(f"s_lshl_b32 s96, s2, 2\ns_add_u32 s96, s96, {wave_s}\ns_lshl_b32 s96, s96, 7\ns_add_u32 s96, s96, {STAMP_OFF}")
    a("s_mov_b64 exec, 1")
    for i in range(n):
        a(f"v_mov_b32 v{vt}, s{60+2*i}")
        a(f"buffer_store_dword v{vt}, off, {wsrd}, s96 offset:{4*i}")
    a(f"v_mov_b32 v{vt}, s97\nbuffer_store_dword v{vt}, off, {wsrd}, s96 offset:116")
    a(f"v_mov_b32 v{vt}, s100\nbuffer_store_dword v{vt}, off, {wsrd}, s96 offset:120")
    a(f"v_mov_b32 v{vt}, s98\nbuffer_store_dword v{vt}, off, {wsrd}, s96 offset:124")
    nstamp[0] = 0
def retry_mark(bit):
    return f"  s_add_u32 s97, s97, {1 << bit}\n" if STAMPS else ""

def srd(base, size):
    a(f"s_mov_b32 s{base+2}, {size}\ns_mov_b32 s{base+3}, 0x20000")

def cmul(d, x, y):
    a(f"v_mul_f32 v{d}, v{x+1}, v{y+1}")
    a(f"v_mul_f32 v{d+1}, v{x+1}, v{y}")
    a(f"v_fma_f32 v{d}, v{x}, v{y}, -v{d}")
    a(f"v_fmac_f32 v{d+1}, v{x}, v{y+1}")

def tag_slow(pfx, sTag, dbg, offs, vt, sCnt):
    a.raw(f"{pfx}_tagslow:")
    a.raw(retry_mark(0).rstrip("\n"))
    for o in offs:
        a.raw(f"  s_load_dwordx2 {sr(sTag,2)}, s[{dbg}:{dbg+1}], {o}\n  s_waitcnt lgkmcnt(0)\n  s_cmp_lg_u32 s{sTag}, 0\n  s_cbranch_scc1 {pfx}_tagok")
    a.raw(f"""  s_mov_b32 s{sCnt}, 0
{pfx}_tagloop:
  buffer_load_dwordx2 {vr(vt,2)}, off, s[{dbg}:{dbg+3}], 0 sc1
  s_add_u32 s{sCnt}, s{sCnt}, 1
  s_waitcnt vmcnt(0)
  v_readfirstlane_b32 s{sTag}, v{vt}
  v_readfirstlane_b32 s{sTag+1}, v{vt+1}
  s_nop 3
  s_cmp_lg_u32 s{sTag}, 0
  s_cbranch_scc1 {pfx}_tagok
  s_cmp_lt_u32 s{sCnt}, {SPIN}
  s_cbranch_scc1 {pfx}_tagloop
  s_branch {pfx}_tagok""")

def gemm_role():
    X, W1, WS, W2, OUT, DBG, HS = "s[4:7]", "s[8:11]", "s[12:15]", "s[16:19]", "s[20:23]", "s[24:27]", "s[28:31]"
    sP = 3
    sW, sRB, sM, sXB, sWB, sC, sTx, sT, sLA, sLB, sW2, sHS, sHL = range(32, 45)
    sT2, sT3, sL2e, sCnt, sO, sTag, sFl, sRT = 45, 46, 47, 48, 49, 50, 52, 53
    sB1, sMask, sCG, sXcc, sFar, sHS2, sIa = 54, 55, 56, 57, 58, 59, 101
    sY, sRet = sFl, sFar
    sMean, sNeg = 88, 92
    sXn, sSt, sFx = 89, 90, 91
    vL = 1
    vXo, vWo, vXr, vWr, vW2o, vW2r, vL16 = 2, 6, 9, 13, 17, 18, 22
    vT, vNon, vCs, vT2, vC2, vSa = 23, 24, 26, 29, 30, 31
    vSt, vNeg = 32, 36
    HALF, vSw, vSr, vIa, vT3 = 88, 92, 93, 94, 95
    ACC1, WF, CSA, XF, CSF = 40, 96, 144, 192, 192
    LX, LF, LG, vId = 224, 232, 248, 252
    ACC2, STASH, HB, HD = 32, 96, 192, 8
    SROW, STG = 1088, 32768 + 3 * 12288
    FARAWAY = 0x40000000
    a(f"""
    s_load_dwordx2 s[4:5], s[0:1], 0
    s_load_dwordx2 s[24:25], s[0:1], 104
    s_load_dwordx2 s[8:9], s[0:1], 80
    s_load_dwordx2 s[12:13], s[0:1], 112
    s_load_dwordx2 s[16:17], s[0:1], 88
    s_load_dwordx2 s[20:21], s[0:1], 96
    s_memrealtime {sr(sTag,2)}
    v_lshrrev_b32 v{vT}, 6, v0
    v_and_b32 v{vL}, 63, v0
    s_and_b32 s{sP}, s2, 7
    v_readfirstlane_b32 s{sW}, v{vT}
    s_lshl_b32 s{sP}, s{sP}, 5
    s_bfe_u32 s{sT}, s2, 0x50003
    s_add_u32 s{sP}, s{sP}, s{sT}
    s_lshr_b32 s{sRB}, s{sP}, 4
    s_and_b32 s{sM}, s{sP}, 15
    s_and_b32 s{sC}, s{sP}, 7
    v_lshlrev_b32 v{vL16}, 4, v{vL}
    s_lshl2_add_u32 s{sO}, s{sP}, s{sW}
    s_lshl_b32 s{sO}, s{sO}, 11
    v_lshl_add_u32 v{vT3}, v{vL}, 6, s{sO}
    s_setprio 2
    """)
    srd(4, 2048 * 1024); srd(24, 256); srd(8, 512 * 2752)
    a(f"""
    v_lshrrev_b32 v{vT}, 3, v{vL}
    v_lshlrev_b32 v{vT}, 10, v{vT}
    v_lshrrev_b32 v{vT2}, 4, v{vL}
    v_xor_b32 v{vT2}, v{vT2}, v{vL}
    v_and_b32 v{vT2}, 7, v{vT2}
    v_lshl_add_u32 v{vXo}, v{vT2}, 4, v{vT}
    v_xor_b32 v{vXo+1}, 64, v{vXo}
    v_add_u32 v{vXo+2}, {2*7168}, v{vXo}
    v_add_u32 v{vXo+3}, {3*7168}, v{vXo+1}
    v_add_u32 v{vXo+1}, 7168, v{vXo+1}
    s_movk_i32 s{sT}, 5462
    s_movk_i32 s{sT2}, {2752-192}
    v_mul_u32_u24 v{vT}, s{sT}, v{vL}
    """)
    for j in range(3):
        if j: a(f"v_add_u32 v{vT}, {64*5462}, v{vT}")
        a(f"v_lshrrev_b32 v{vT2}, 16, v{vT}\nv_mad_u32_u24 v{vWo+j}, v{vT2}, s{sT2}, v{vL16}")
    a("s_waitcnt lgkmcnt(0)")
    if STAMPS: a(f"s_mov_b32 s100, s{sTag}\ns_mov_b32 s97, 0")
    stamp()
    for r in range(2):
        a(f"buffer_load_dwordx4 {vr(LX+4*r,4)}, v{vL16}, {X}, s{sO} offen offset:{1024*r}", "xrow")
    a(f"""
    s_or_b32 s{sTag}, s{sTag}, 1
    v_mov_b32 v{vNon}, s{sTag}
    v_mov_b32 v{vNon+1}, s{sTag+1}
    s_lshl2_add_u32 s{sXB}, s{sRB}, s{sW}
    s_lshl_b32 s{sXB}, s{sXB}, 15
    buffer_store_dwordx2 {vr(vNon,2)}, v{vT3}, {DBG}, 0 offen sc1
    s_mul_i32 s{sWB}, s{sM}, 192
    s_mul_i32 s{sT}, s{sW}, {16*2752}
    s_add_u32 s{sWB}, s{sWB}, s{sT}
    s_lshr_b32 s{sO}, s{sXB}, 6
    s_cmp_eq_u32 s{sM}, 15
    s_cselect_b32 s{sXB}, {FARAWAY}, s{sXB}
    s_cselect_b32 s{sWB}, {FARAWAY}, s{sWB}
    s_lshl_b32 s{sLA}, s{sW}, 12
    s_mul_i32 s{sLB}, s{sW}, 3072
    s_add_u32 s{sLB}, s{sLB}, 32768
    """)
    if "nogemm" in OPT: a("s_endpgm")

    def chunk_ops(c):
        ops = []
        for j in range(3):
            def f(j=j):
                if j == 0:
                    a(f"s_mul_i32 s{sT2}, s{sC}, {64*2752}\ns_add_u32 m0, s{sLB}, {(c&3)*12288}\ns_add_u32 s{sT2}, s{sT2}, s{sWB}")
                a(f"buffer_load_dwordx4 v{vWo+j}, {W1}, s{sT2} offen offset:{j*1024} lds", f"C{c}")
            ops.append(f)
        for pc in range(4):
            def f(pc=pc):
                if pc == 0:
                    a(f"s_lshl_b32 s{sTx}, s{sC}, 7\ns_add_u32 m0, s{sLA}, {(c&1)*16384}\ns_add_u32 s{sTx}, s{sTx}, s{sXB}")
                a(f"buffer_load_dwordx4 v{vXo+pc}, {X}, s{sTx} offen offset:{pc*1024} lds", f"C{c}")
                if pc == 0:
                    a(f"s_add_u32 s{sC}, s{sC}, 1\ns_and_b32 s{sC}, s{sC}, 7")
            ops.append(f)
        return ops
    ops = {c: chunk_ops(c) for c in range(8)}
    def issue(c, n):
        for _ in range(n): ops[c].pop(0)()
    issue(0, 7)
    a(f"""
    v_and_b32 v{vSa}, 31, v{vL}
    v_lshrrev_b32 v{vT2}, 5, v{vL}
    v_bfe_u32 v{vC2}, v{vL}, 1, 3
    v_xor_b32 v{vC2}, v{vC2}, v{vT2}
    v_lshl_add_u32 v{vC2}, v{vC2}, 4, s{sLA}
    v_lshl_add_u32 v{vC2}, v{vSa}, 7, v{vC2}
    v_bfe_u32 v{vT3}, v{vL}, 2, 2
    v_lshl_add_u32 v{vT}, v{vT2}, 3, v{vT3}
    v_mul_u32_u24 v{vT}, 192, v{vT}
    v_bfe_u32 v{vT2}, v{vL}, 4, 1
    v_lshl_add_u32 v{vT}, v{vT2}, 5, v{vT}
    v_and_b32 v{vT2}, 3, v{vL}
    v_lshl_add_u32 v{vT}, v{vT2}, 3, v{vT}
    v_add_u32 v{vT}, 0x8000, v{vT}
    """)
    for i in range(4):
        a(f"""
        s_add_u32 s{sT3}, s{sW}, {i}
        s_and_b32 s{sT3}, s{sT3}, 3
        s_lshl_b32 s{sCnt}, s{sT3}, 5
        s_mulk_i32 s{sT3}, 3072
        v_xor_b32 v{vXr+i}, s{sCnt}, v{vC2}
        v_add_u32 v{vWr+i}, s{sT3}, v{vT}
        """)
    issue(1, 3)
    a(f"""
    s_getreg_b32 s{sXcc}, hwreg(HW_REG_XCC_ID, 0, 4)
    s_mov_b32 s{sB1}, 0x3f803f80
    s_mov_b32 s{sMask}, 0xffff0000
    s_mul_i32 s{sT3}, s{sW}, {2*SROW}
    s_add_u32 s{sT3}, s{sT3}, {STG}
    v_add_u32 v{vSw}, s{sT3}, v{vL16}
    v_mul_u32_u24 v{vT}, {SROW}, v{vT3}
    v_lshl_add_u32 v{vT}, v{vT2}, 3, v{vT}
    v_lshrrev_b32 v{vT2}, 4, v{vL}
    v_lshl_add_u32 v{vT}, v{vT2}, 5, v{vT}
    s_lshl_b32 s{sT3}, s{sW}, 8
    s_add_u32 s{sT3}, s{sT3}, {STG}
    v_add_u32 v{vSr}, s{sT3}, v{vT}
    """)
    srd(12, WS_SIZE)
    for k in range(4): a(f"v_mov_b32 v{HALF+k}, 0x3f003f00")
    a.wait(vm="xrow")
    stamp()

    vC = CSA; S = [252, 253]; vN = 254; sR = sMean
    def dpp_reduce(fill):
        for ctl in ("row_shr:1 row_mask:0xf bank_mask:0xf bound_ctrl:0", "row_shr:2 row_mask:0xf bank_mask:0xf bound_ctrl:0",
                    "row_shr:4 row_mask:0xf bank_mask:0xf bound_ctrl:0", "row_shr:8 row_mask:0xf bank_mask:0xf bound_ctrl:0",
                    "row_bcast:15 row_mask:0xa bank_mask:0xf", "row_bcast:31 row_mask:0xc bank_mask:0xf"):
            for r in range(2):
                a(f"v_add_f32_dpp v{S[r]}, v{S[r]}, v{S[r]} {ctl}")
            for _ in range(3):
                if fill: a(fill.pop(0))
        while fill: a(fill.pop(0))
    for k in range(4):
        for r in range(2):
            a(f"v_dot2_f32_bf16 v{S[r]}, v{LX+4*r+k}, s{sB1}, {'0' if k == 0 else 'v%d' % S[r]}")
    unpack = lambda: [t for r in range(2) for k in range(4) for t in
                      (f"v_lshlrev_b32 v{LF+8*r+2*k}, 16, v{LX+4*r+k}", f"v_and_b32 v{LF+8*r+2*k+1}, s{sMask}, v{LX+4*r+k}")]
    fill = unpack()
    for _ in range(3): a(fill.pop(0))
    dpp_reduce(fill)
    issue(1, 2)
    for r in range(2): a(f"v_mul_f32 v{S[r]}, 0x3b000000, v{S[r]}")
    for r in range(2): a(f"v_cvt_pk_bf16_f32 v{vN+r}, -v{S[r]}, -v{S[r]}")
    for r in range(2): a(f"v_readlane_b32 s{sMean+2*r}, v{S[r]}, 63")
    for r in range(2): a(f"v_readlane_b32 s{sNeg+2*r}, v{vN+r}, 63")
    for k in range(4):
        for r in range(2):
            a(f"v_pk_add_f32 {vr(vC+8*r+2*k,2)}, {vr(LF+8*r+2*k,2)}, {sr(sMean+2*r,2)} op_sel_hi:[1,0] neg_lo:[0,1] neg_hi:[0,1]")
    for r in range(2): a(f"s_and_b32 s{sNeg+2*r}, s{sNeg+2*r}, s{sMask}")
    for r in range(2): a(f"s_or_b32 s{sNeg+2*r+1}, s{sNeg+2*r}, s{sXcc}")
    for r in range(2):
        a(f"v_pk_mul_f32 {vr(vC+8*r,2)}, {vr(vC+8*r,2)}, {vr(vC+8*r,2)}")
    for k in range(1, 4):
        for r in range(2):
            a(f"v_pk_fma_f32 {vr(vC+8*r,2)}, {vr(vC+8*r+2*k,2)}, {vr(vC+8*r+2*k,2)}, {vr(vC+8*r,2)}")
    for r in range(2): a(f"v_add_f32 v{S[r]}, v{vC+8*r}, v{vC+8*r+1}")
    issue(1, 2)
    fill = [f"v_pk_add_f32 {vr(LF+8*r+2*k,2)}, {vr(LF+8*r+2*k,2)}, {sr(sNeg+2*r,2)} op_sel_hi:[1,0]" for k in range(4) for r in range(2)]
    fill += [f"v_cvt_pk_bf16_f32 v{LX+4*r+k}, v{LF+8*r+2*k}, v{LF+8*r+2*k+1}" for k in range(4) for r in range(2)]
    dpp_reduce(fill)
    def rnd():
        for r in range(2): a(f"v_cvt_pk_bf16_f32 v{S[r]}, v{S[r]}, v{S[r]}")
        for r in range(2): a(f"v_lshlrev_b32 v{S[r]}, 16, v{S[r]}")
    for r in range(2): a(f"v_mul_f32 v{S[r]}, 0x3b000000, v{S[r]}")
    rnd()
    for r in range(2): a(f"v_add_f32 v{S[r]}, 0x3727c5ac, v{S[r]}")
    rnd()
    for r in range(2): a(f"v_sqrt_f32 v{S[r]}, v{S[r]}")
    rnd()
    for r in range(2): a(f"v_rcp_f32 v{S[r]}, v{S[r]}")
    for t in unpack(): a(t)
    for r in range(2): a(f"v_readlane_b32 s{sR+2*r}, v{S[r]}, 63")
    a(f"s_load_dwordx2 {sr(sTag,2)}, s[24:25], 0")
    for r in range(2):
        for k in range(4):
            a(f"v_pk_mul_f32 {vr(LF+8*r+2*k,2)}, {vr(LF+8*r+2*k,2)}, {sr(sR+2*r,2)} op_sel_hi:[1,0]")
        for k in range(4):
            a(f"v_cvt_pk_bf16_f32 v{LX+4*r+k}, v{LF+8*r+2*k}, v{LF+8*r+2*k+1}")
        a(f"ds_write_b128 v{vSw}, {vr(LX+4*r,4)} offset:{SROW*r}", "stg")
    a(f"""
    v_mov_b32 v{LG}, s{sNeg+1}
    v_mov_b32 v{LG+1}, s{sR}
    v_writelane_b32 v{LG}, s{sNeg+3}, 1
    v_writelane_b32 v{LG+1}, s{sR+2}, 1
    s_mul_i32 s{sXn}, s{sP}, {XS}
    s_lshl_b32 s{sT3}, s{sW}, 11
    s_add_u32 s{sXn}, s{sXn}, s{sT3}
    s_add_u32 s{sXn}, s{sXn}, {XNP}
    s_lshl3_add_u32 s{sFx}, s{sP}, s{sT3}
    s_add_u32 s{sFx}, s{sFx}, {FX}
    s_lshl2_add_u32 s{sSt}, s{sP}, s{sW}
    s_lshl_b32 s{sSt}, s{sSt}, 5
    s_add_u32 s{sSt}, s{sSt}, {ST}
    """)
    issue(2, 3)
    a.wait(lg=0)
    stamp()

    FILL = [u.strip() for u in f"""
    s_mov_b32 s18, {1376*1024}
    s_mov_b32 s19, 0x20000
    s_mov_b32 s22, {2048*1024}
    s_mov_b32 s23, 0x20000
    s_mov_b32 s28, s12
    s_mov_b32 s29, s13
    s_mov_b32 s30, {H_SIZE}
    s_mov_b32 s31, 0x20000
    s_mov_b32 s{sL2e}, {LOG2E:#x}
    v_lshlrev_b32 v{vSa}, 4, v{vSa}
    s_add_u32 s{sO}, s{sO}, {ST}
    v_and_b32 v{vIa}, 15, v{vL}
    v_lshlrev_b32 v{vIa}, 7, v{vIa}
    s_lshl_b32 s{sIa}, s{sRB}, 11
    s_add_u32 s{sIa}, s{sIa}, {ST}
    v_lshrrev_b32 v{vT}, 3, v{vL}
    v_lshlrev_b32 v{vT}, 10, v{vT}
    v_bfe_u32 v{vT2}, v{vL}, 4, 1
    v_lshlrev_b32 v{vT3}, 2, v{vT2}
    v_xor_b32 v{vT3}, v{vT3}, v{vL}
    v_and_b32 v{vT3}, 7, v{vT3}
    v_lshl_add_u32 v{vW2o}, v{vT3}, 4, v{vT}
    v_lshrrev_b32 v{vT}, 5, v{vL}
    v_bfe_u32 v{vT3}, v{vL}, 2, 2
    v_lshl_add_u32 v{vT}, v{vT}, 2, v{vT3}
    v_lshlrev_b32 v{vT}, 7, v{vT}
    v_lshl_add_u32 v{vT}, v{vT2}, 5, v{vT}
    v_bfe_u32 v{vT2}, v{vL}, 3, 1
    v_lshl_add_u32 v{vT}, v{vT2}, 6, v{vT}
    v_and_b32 v{vT2}, 3, v{vL}
    v_lshl_add_u32 v{vT}, v{vT2}, 3, v{vT}
    s_lshl_b32 s{sT3}, s{sW}, 5
    s_and_b32 s{sT3}, s{sT3}, 64
    v_xor_b32 v{vT}, s{sT3}, v{vT}
    v_xor_b32 v{vT2}, 64, v{vT}
    v_add_u32 v{vW2r}, s{sLA}, v{vT}
    v_add_u32 v{vW2r+1}, s{sLA}, v{vT2}
    v_add_u32 v{vW2r+2}, s{sLB}, v{vT}
    v_add_u32 v{vW2r+3}, s{sLB}, v{vT2}
    s_and_b32 s{sT3}, s{sP}, 1
    s_lshl1_add_u32 s{sRT}, s{sRB}, s{sT3}
    s_lshr_b32 s{sCG}, s{sM}, 1
    s_mul_i32 s{sW2}, s{sW}, {352*1024}
    s_lshl_b32 s{sT}, s{sCG}, 7
    s_add_u32 s{sW2}, s{sW2}, s{sT}
    s_mul_i32 s{sHL}, s{sRT}, {2*HROW}
    s_mul_i32 s{sT}, s{sW}, {22*1024}
    s_add_u32 s{sHL}, s{sHL}, s{sT}
    s_lshl_b32 s{sT3}, s{sW}, 8
    s_add_u32 s{sT3}, s{sT3}, {32768+12288}
    v_lshl_add_u32 v{vT2}, v{vL}, 2, s{sT3}
    s_add_u32 s{sT3}, s{sLB}, 12288
    v_lshl_add_u32 v{vT}, v{vL}, 2, s{sT3}
    s_lshl2_add_u32 s{sT3}, s{sRB}, s{sW}
    s_mul_i32 s{sT3}, s{sT3}, {HROW}
    s_mul_i32 s{sHS}, s{sM}, 6144
    s_add_u32 s{sHS}, s{sHS}, s{sT3}
    s_add_u32 s{sHS2}, s{sHS}, 4096
    s_cmp_ge_u32 s{sM}, 14 | s_cselect_b32 s{sHS2}, {H_SIZE}, s{sHS2}
    s_lshr_b32 s{sT3}, s{sW}, 1
    s_lshl1_add_u32 s{sT3}, s{sRB}, s{sT3}
    s_lshl4_add_u32 s{sT3}, s{sT3}, s{sM}
    s_and_b32 s{sFl}, s{sW}, 1
    s_lshl1_add_u32 s{sFl}, s{sT3}, s{sFl}
    s_lshl_b32 s{sFl}, s{sFl}, 3
    s_add_u32 s{sFl}, s{sFl}, {FH}
    s_cmp_eq_u32 s{sM}, 15 | s_cselect_b32 s{sHS}, {H_SIZE}, s{sHS} | s_cselect_b32 s{sFl}, {WS_SIZE}, s{sFl}
    """.strip().split("\n")]
    def fill(n):
        for _ in range(n):
            if FILL: a(FILL.pop(0).replace(" | ", "\n"))

    GROUPS = [("A", 0, 4), ("B", 0, 3), ("A", 1, 4), ("B", 2, 3), ("B", 3, 3), ("B", 1, 3)]
    LOC = []
    for rg, sl, n in GROUPS:
        for k in range(n):
            LOC.append((rg, sl * (16384 if rg == "A" else 12288) + k * 1024))
    ploc = lambda p: p % 20 if p < 40 else p - 40
    pn = [0]
    def p_next():
        p = pn[0]; pn[0] += 1
        rg, off = LOC[ploc(p)]
        a(f"s_add_u32 m0, s{sLA if rg == 'A' else sLB}, {off}")
        a(f"s_add_u32 s{sT3}, s{sW2}, {8192*p}")
        a(f"buffer_load_dwordx4 v{vW2o}, {W2}, s{sT3} offen lds", f"P{p}")

    wb = lambda s_: WF + 12 * (s_ % 3)
    def tr_pair(s_, ft):
        c, i = divmod(s_, 4)
        for e in range(2):
            a(f"ds_read_b64_tr_b16 {vr(wb(s_)+4*ft+2*e,2)}, v{vWr+i} offset:{(c&3)*12288+e*768+ft*64}", f"wf{s_}")
    def rd_x(c, i):
        a(f"ds_read_b128 {vr(XF+16*(c&1)+4*i,4)}, v{vXr+i} offset:{(c&1)*16384}", f"xf{c}_{i}")
    def open_chunk(c):
        if "cs" in OPT and c in (3, 5): stamp(True)
        a.wait(vm=f"C{c}")
        if c == 0 or ("cs" in OPT and c in (3, 5)): stamp(True)
        a("s_barrier")
        if "cs" in OPT and c: stamp(True)

    open_chunk(0)
    for i in range(4): rd_x(0, i)
    for ft in range(3): tr_pair(0, ft)
    for b in range(2):
        for e in range(2):
            a(f"ds_read_b64_tr_b16 {vr(LF+4*b+2*e,2)}, v{vSr} offset:{128*b+4*SROW*e}", "tr")
    for ft in range(3): tr_pair(1, ft)
    PS = int(OPT.get("ps", 26))
    def bg_op(c, i, ft):
        if i < 2 and c + 2 <= 7:
            if (i, ft) in ((0, 0), (0, 1), (0, 2), (1, 1)): issue(c + 2, 1)
        elif i >= 2 and c + 3 <= 7:
            if (i, ft) in ((2, 0), (2, 2), (3, 1)): issue(c + 3, 1)
        elif 4 * c + i >= PS and ft != 1:
            lim = 0 if c < 6 else 7 if c == 6 else 11 if i < 2 else 17
            if pn[0] < lim: p_next()
    for c in range(8):
        a.comment(f"---- GEMM1 chunk {c}")
        for i in range(4):
            s_ = 4 * c + i
            if i == 2:
                if c < 7: open_chunk(c + 1)
                else:
                    a.wait(lg=0)
                    a("s_barrier")
            a.wait(lg=(f"xf{c}_3", f"wf{s_}"))
            for ft in range(3):
                cc = "0" if s_ == 0 else vr(ACC1+16*ft, 16)
                a(f"v_mfma_f32_32x32x16_bf16 {vr(ACC1+16*ft,16)}, {vr(wb(s_)+4*ft,4)}, {vr(XF+16*(c&1)+4*i,4)}, {cc}")
                if i == 2 and c < 7:
                    if ft == 0: rd_x(c + 1, 0)
                    rd_x(c + 1, ft + 1)
                if s_ + 2 < 32: tr_pair(s_ + 2, ft)
                if s_ == 30:
                    for k in range(2):
                        a(f"ds_read2st64_b32 {vr(CSF+4*ft+2*k,2)}, v{vT} offset0:{4*ft+2*k} offset1:{4*ft+2*k+1}", "csf")
                if s_ == 0 and ft == 0:
                    a.wait(lg="tr")
                    for b in range(2):
                        a(f"buffer_store_dwordx4 {vr(LF+4*b,4)}, v{vL16}, {WS}, s{sXn} offen offset:{1024*b} sc1", "xn")
                if s_ == 6 and ft == 1:
                    assert "xn" not in a.vm
                    a(f"""
                    s_cmp_eq_u32 s{sTag}, 0
                    s_cbranch_scc1 G_tagslow
                    G_tagok:
                    v_mov_b32 v{LG+2}, s{sTag}
                    v_mov_b32 v{LG+3}, s{sTag+1}
                    s_mov_b64 exec, 3
                    buffer_store_dwordx4 {vr(LG,4)}, v{vL16}, {WS}, s{sSt} offen sc1
                    s_mov_b64 exec, 1
                    buffer_store_dwordx2 {vr(LG+2,2)}, off, {WS}, s{sFx} sc1
                    s_mov_b64 exec, -1
                    v_mov_b32 v{vNon}, s{sTag}
                    v_mov_b32 v{vNon+1}, s{sTag+1}
                    """)
                if i == 0:
                    a(f"v_mfma_f32_32x32x16_bf16 {vr(CSA+16*ft,16)}, {vr(HALF,4)}, {vr(wb(s_)+4*ft,4)}, {'0' if c == 0 else vr(CSA+16*ft,16)}")
                bg_op(c, i, ft)
                if s_ >= 3: fill(3 if i in (0, 3) else 1)
                if s_ == 29:
                    a(f"v_cvt_pk_bf16_f32 v{CSF+ft}, v{CSA+16*ft}, v{CSA+16*ft}")
                    a(f"v_lshlrev_b32 v{CSF+ft}, 16, v{CSF+ft}")
                    a(f"v_sub_f32 v{CSF+ft}, v{CSA+16*ft}, v{CSF+ft}")
                    a(f"v_cvt_pk_bf16_f32 v{vCs+ft}, v{CSA+16*ft}, v{CSF+ft}")
                    for k in range(2):
                        a(f"ds_write2st64_b32 v{vT2}, v{vCs+ft}, v{vCs+ft} offset0:{24*k+4*ft} offset1:{24*k+12+4*ft}", "csw")
            if s_ == 22:
                assert not FILL
                a(f"buffer_load_dwordx4 {vr(vSt,4)}, v{vSa}, {WS}, s{sO} offen sc1", "st")
                a(f"buffer_load_dwordx4 {vr(vId,4)}, v{vIa}, {WS}, s{sIa} offen sc1", "st")
            if s_ == 30:
                a.wait(vm="st")
                a(f"""
                s_mov_b32 s{sCnt}, 0
                G_stchk:
                v_cmp_ne_u64 vcc, {sr(sTag,2)}, {vr(vSt+2,2)}
                v_cmp_ne_u64 s[88:89], {sr(sTag,2)}, {vr(vId+2,2)}
                v_and_b32 v{vId+1}, 0xffff, v{vId}
                v_cmp_ne_u32 s[90:91], s{sXcc}, v{vId+1}
                s_or_b64 vcc, vcc, s[88:89]
                s_cbranch_vccnz G_stslow
                G_stok:
                """)
            if s_ == 31:
                a(f"""
                v_lshrrev_b32 v{vNeg+1}, 16, v{vSt}
                v_bfi_b32 v{vNeg}, s{sMask}, v{vSt}, v{vNeg+1}
                v_bfi_b32 v{vNeg+2}, s{sMask}, v{vSt}, v{vNeg+1}
                v_bfi_b32 v{vNeg+3}, s{sMask}, v{vSt}, v{vNeg+1}
                v_bfi_b32 v{vNeg+1}, s{sMask}, v{vSt}, v{vNeg+1}
                v_mul_f32 v{vC2}, s{sL2e}, v{vSt+1}
                s_or_b32 s{sFar}, s90, s91
                """)
    assert not any(ops.values())
    stamp()
    a.wait(lg="csf")
    for ft in range(3):
        a(f"v_mfma_f32_32x32x16_bf16 {vr(ACC1+16*ft,16)}, {vr(CSF+4*ft,4)}, {vr(vNeg,4)}, {vr(ACC1+16*ft,16)}")
    E1, OB = 208, 224
    NPE = int(OPT.get("npe", 32))
    LAG = int(OPT.get("lag", 14))
    def tr_w2(step, tag):
        base = STASH + 8 * (step % 12)
        for j in range(2):
            for e in range(2):
                rg, off = LOC[ploc(2 * step + e)]
                a(f"ds_read_b64_tr_b16 {vr(base+4*j+2*e,2)}, v{vW2r+(0 if rg=='A' else 2)+j} offset:{off}", tag)
    sn = [0]
    def w2_next():
        p = pn[0]
        if p >= 20: a.wait(lg=f"S{(p-20)//2}")
        p_next()
        while sn[0] < 12 and 2 * sn[0] + 1 + LAG <= p:
            a.wait(vm=f"P{2*sn[0]+1}")
            tr_w2(sn[0], f"S{sn[0]}"); sn[0] += 1
    assert LAG <= 18
    w2_next(); w2_next()
    for ft in range(3):
        for j in range(2):
            A0 = ACC1 + 16 * ft + 8 * j
            T0 = E1 + 8 * j
            for k in range(8): a(f"v_mul_f32 v{A0+k}, v{vC2}, v{A0+k}")
            for k in range(8):
                a(f"v_exp_f32_e64 v{T0+k}, -v{A0+k}")
                if k == 3 and pn[0] < NPE: w2_next()
            for k in range(8): a(f"v_fma_f32 v{T0+k}, v{T0+k}, s{sL2e}, s{sL2e}")
            if pn[0] < NPE: w2_next()
            for k in range(8): a(f"v_rcp_f32 v{T0+k}, v{T0+k}")
            if pn[0] < NPE: w2_next()
            for k in range(8): a(f"v_mul_f32 v{A0+k}, v{A0+k}, v{T0+k}")
            for k in range(0, 8, 2): a(f"v_cvt_pk_bf16_f32 v{OB+8*ft+4*j+k//2}, v{A0+k}, v{A0+k+1}")
            a(f"buffer_store_dwordx4 {vr(OB+8*ft+4*j,4)}, v{vL16}, {HS}, s{sHS if ft < 2 else sHS2} offen offset:{1024*((2*ft+j)&3)}", "hs")
    stamp()
    NPD = int(OPT.get("npd", 4))
    for _ in range(NPD):
        if pn[0] < 44: w2_next()
    a(f"s_cmp_lg_u32 s{sFar}, 0\ns_cbranch_scc1 G_far")
    a.wait(vm="hs")
    stamp()
    a(f"s_mov_b64 exec, 1\nbuffer_store_dwordx2 {vr(vNon,2)}, off, {WS}, s{sFl}\nG_pub:\ns_mov_b64 exec, -1")
    while pn[0] < 44: w2_next()
    assert sn[0] == 12
    vH, vF, vXg, vO, vY, vXl, vR, vP = 2, 4, 5, 6, 7, 8, 13, 10
    YB = lambda k: (176 + 4 * k) if k < 4 else (240 + 4 * (k - 4))
    a(f"""
    s_lshl_b32 s{sRet}, s{sRT}, 8
    s_add_u32 s{sRet}, s{sRet}, {FH}
    s_lshl_b32 s{sT}, s{sW}, 3
    s_lshr_b32 s{sT2}, 0x160e0600, s{sT}
    s_and_b32 s{sT2}, s{sT2}, 0xff
    s_lshr_b32 s{sT}, 0x1d150f07, s{sT}
    s_and_b32 s{sT}, s{sT}, 0xff
    v_max_u32 v{vF}, s{sT2}, v{vL}
    v_min_u32 v{vF}, s{sT}, v{vF}
    v_lshlrev_b32 v{vF}, 3, v{vF}
    s_and_b32 s{sT}, s{sW}, 1
    s_mul_i32 s{sT2}, s{sT}, {HROW}
    v_add_u32 v{vH}, s{sT2}, v{vL16}
    s_sub_u32 s{sT2}, {HROW}, s{sT2}
    v_add_u32 v{vH+1}, s{sT2}, v{vL16}
    s_mov_b32 s{sCnt}, 0
    """)
    stamp()
    a("G_hpoll:")
    a.raw(f"  buffer_load_dwordx2 {vr(vP,2)}, v{vF}, {WS}, s{sRet} offen sc1")
    a(f"""
    s_add_u32 s{sCnt}, s{sCnt}, 1
    s_waitcnt vmcnt(0)
    v_cmp_ne_u64 vcc, {sr(sTag,2)}, {vr(vP,2)}
    s_cmp_lt_u32 s{sCnt}, {SPIN}
    s_cselect_b64 vcc, vcc, 0
    s_cbranch_vccnz G_hpoll
    """)
    a.vm = []
    stamp()
    if STAMPS: a(f"s_lshl_b32 s{sCnt}, s{sCnt}, 16\ns_add_u32 s97, s97, s{sCnt}")
    def h_load(i, j):
        if j == 0 and i and i % 4 == 0: a(f"s_add_u32 s{sHL}, s{sHL}, 4096")
        a(f"buffer_load_dwordx4 {vr(HB+8*(i%HD)+4*j,4)}, v{vH+j}, {HS}, s{sHL} offen offset:{1024*(i%4)} sc1", f"h{i}")
    NH0 = int(OPT.get("nh0", 4))
    for i in range(NH0): h_load(i, 0); h_load(i, 1)
    a(f"""
    s_lshl1_add_u32 s{sT2}, s{sRT}, s{sT}
    s_lshr_b32 s{sT}, s{sW}, 1
    s_lshl1_add_u32 s{sCnt}, s{sCG}, s{sT}
    s_lshl_b32 s{sO}, s{sT2}, 15
    s_lshl_b32 s{sT}, s{sCnt}, 6
    s_add_u32 s{sO}, s{sO}, s{sT}
    s_mul_i32 s{sY}, s{sCnt}, {16*GS}
    s_lshl_b32 s{sT}, s{sT2}, 8
    s_add_u32 s{sY}, s{sY}, s{sT}
    s_add_u32 s{sY}, s{sY}, {Y2}
    v_and_b32 v{vT}, 31, v{vL}
    v_lshrrev_b32 v{vT2}, 5, v{vL}
    v_lshlrev_b32 v{vO}, 10, v{vT}
    v_lshl_add_u32 v{vO}, v{vT2}, 4, v{vO}
    v_lshl_add_u32 v{vXl}, v{vT}, 6, s{sLA}
    v_lshl_add_u32 v{vXl}, v{vT2}, 3, v{vXl}
    v_lshrrev_b32 v{vY}, 1, v{vT}
    v_lshlrev_b32 v{vY}, 4, v{vY}
    v_mul_u32_u24 v{vT2}, {2*GS}, v{vT2}
    v_add_u32 v{vY}, v{vT2}, v{vY}
    v_lshrrev_b32 v{vXg}, 2, v{vL}
    v_lshlrev_b32 v{vXg}, 10, v{vXg}
    v_and_b32 v{vT}, 3, v{vL}
    v_lshl_add_u32 v{vXg}, v{vT}, 4, v{vXg}
    v_add_u32 v{vR}, s{sLB}, v{vL16}
    v_and_b32 v{vT}, 1, v{vL}
    v_cmp_eq_u32 s[88:89], 1, v{vT}
    """)
    for k in range(1, 4):
        a(f"s_xor_b32 s{sT}, s{sW}, {k}\ns_mulk_i32 s{sT}, 3072\ns_add_u32 s{sT}, s{sT}, 32768\nv_add_u32 v{vR+k}, s{sT}, v{vL16}")
    def y_loads(emit, ks=range(8)):
        for k in ks:
            emit(f"s_add_u32 s{sT2}, s{sY}, {(4*(k>>1)+(k&1))*GS}")
            emit(f"buffer_load_dwordx4 {vr(YB(k),4)}, v{vY}, {WS}, s{sT2} offen sc1")
    XR = 24
    hq = [(i, j) for i in range(NH0, 22) for j in range(2)]
    for i in range(22):
        a.wait(vm=f"h{i}", lg=(f"r{i}" if i >= 12 else 0 if i == 0 else None))
        if i == 0: stamp()
        sb = STASH + 8 * (i % 12)
        for k in range(4):
            jd, jt = k >> 1, k & 1
            ac = ACC2 + 16 * k
            a(f"v_mfma_f32_32x32x16_bf16 {vr(ac,16)}, {vr(sb+4*jd,4)}, {vr(HB+8*(i%HD)+4*jt,4)}, {'0' if i == 0 else vr(ac,16)}")
            if hq and hq[0][0] < i + HD and (k != 3 or hq[0][0] < i + HD - 1): h_load(*hq.pop(0))
            if k == 1 and 1 <= i and i + 11 < 22: tr_w2(i + 11, f"r{i+11}")
            if k == 2 and 15 <= i < 19: y_loads(lambda t: a(t, "yr"), [2 * (i - 15), 2 * (i - 15) + 1])
            if k == 0 and i == 15:
                a.wait(lg=0)
                a(f"s_mov_b32 m0, s{sLA}\ns_add_u32 s{sT2}, s{sO}, {16384-1024}")
                a(f"buffer_load_dwordx4 v{vXg}, {X}, s{sO} offen lds", "xr")
                a(f"buffer_load_dwordx4 v{vXg}, {X}, s{sT2} offen offset:1024 lds", "xr")
    assert not hq
    stamp()
    a.wait(vm="xr")
    for q in range(4): a(f"ds_read_b64 {vr(XR+2*q,2)}, v{vXl} offset:{16*q}", "xl")
    for k in range(1, 4):
        for q in range(4):
            idx = (k - 1) * 4 + q
            a(f"ds_write_b128 v{vR}, {vr(ACC2+16*k+4*q,4)} offset:{(idx//3)*12288+(idx%3)*1024}", "rw")
    a.wait(vm="yr")
    a(f"s_mov_b32 s{sCnt}, 0\nG_ychk:")
    a(f"v_cmp_ne_u64 vcc, {sr(sTag,2)}, {vr(YB(0)+2,2)}")
    for k in range(1, 8):
        a(f"v_cmp_ne_u64 s[{90+2*(k&1)}:{91+2*(k&1)}], {sr(sTag,2)}, {vr(YB(k)+2,2)}")
        if k > 1: a(f"s_or_b64 vcc, vcc, s[{90+2*((k-1)&1)}:{91+2*((k-1)&1)}]")
    a("s_or_b64 vcc, vcc, s[92:93]")
    a("s_cbranch_vccnz G_yslow\nG_yok:")
    for k in range(8): a(f"v_cndmask_b32 v{YB(k)}, v{YB(k)}, v{YB(k)+1}, s[88:89]")
    for k in range(8): a(f"v_lshlrev_b32 v{YB(k)+2}, 16, v{YB(k)}\nv_and_b32 v{YB(k)+3}, s{sMask}, v{YB(k)}")
    a.wait(lg="xl")
    for k in range(8): a(f"v_lshlrev_b32 v{YB(k)}, 16, v{XR+k}\nv_and_b32 v{YB(k)+1}, s{sMask}, v{XR+k}")
    a.wait(lg=0)
    a("s_barrier")
    RB = STASH
    for k in range(1, 4):
        for q in range(4):
            idx = (k - 1) * 4 + q
            a(f"ds_read_b128 {vr(RB+16*(k-1)+4*q,4)}, v{vR+k} offset:{(idx//3)*12288+(idx%3)*1024}", f"rr{k}")
    for o in (2, 0):
        for k in range(8):
            a(f"v_pk_add_f32 {vr(ACC2+2*k,2)}, {vr(ACC2+2*k,2)}, {vr(YB(k)+o,2)}")
    for k in range(1, 4):
        a.wait(lg=f"rr{k}")
        for j in range(8):
            a(f"v_pk_add_f32 {vr(ACC2+2*j,2)}, {vr(ACC2+2*j,2)}, {vr(RB+16*(k-1)+2*j,2)}")
    for k in range(8):
        a(f"v_cvt_pk_bf16_f32 v{XR+k}, v{ACC2+2*k}, v{ACC2+2*k+1}")
    for q in range(2):
        a(f"v_permlane32_swap_b32 v{XR+4*q}, v{XR+4*q+2}\nv_permlane32_swap_b32 v{XR+4*q+1}, v{XR+4*q+3}")
        a(f"buffer_store_dwordx4 {vr(XR+4*q,4)}, v{vO}, {OUT}, s{sO} offen offset:{32*q} {OPT.get('osf', '').replace('_', ' ')}")
    stamp()
    if STAMPS:
        a("s_waitcnt vmcnt(0)"); stamp()
    stamp_flush(WS, f"s{sW}", vT)
    a("s_endpgm")
    tag_slow("G", sTag, 24, [64, 192], vNon, sCnt)
    a.raw(f"""G_stslow:
{retry_mark(4)}  s_add_u32 s{sCnt}, s{sCnt}, 1
  s_cmp_ge_u32 s{sCnt}, {SPIN}
  s_cbranch_scc1 G_stok
  buffer_load_dwordx4 {vr(vSt,4)}, v{vSa}, {WS}, s{sO} offen sc1
  buffer_load_dwordx4 {vr(vId,4)}, v{vIa}, {WS}, s{sIa} offen sc1
  s_waitcnt vmcnt(0)
  s_branch G_stchk
G_yslow:
{retry_mark(8)}  s_add_u32 s{sCnt}, s{sCnt}, 1
  s_cmp_ge_u32 s{sCnt}, {1 if "nossm" in OPT else SPIN}
  s_cbranch_scc1 G_yok""")
    y_loads(lambda t: a.raw("  " + t))
    a.raw("  s_waitcnt vmcnt(0)\n  s_branch G_ychk")
    a.hist = []
    a("G_far:\ns_waitcnt vmcnt(0)")
    for k in range(6):
        a(f"buffer_store_dwordx4 {vr(OB+4*k,4)}, v{vL16}, {HS}, s{sHS if k < 4 else sHS2} offen offset:{1024*(k&3)} sc1")
    a(f"s_waitcnt vmcnt(0)\ns_mov_b64 exec, 1\nbuffer_store_dwordx2 {vr(vNon,2)}, off, {WS}, s{sFl} sc1\ns_branch G_pub")
    a.vm = []; a.lg = []

def ssm_role():
    DBG, WS = "s[8:11]", "s[12:15]"
    sQ, sW, sE, sPar, sT, sT2, sCnt, sOnes, sMask = 3, 4, 5, 6, 7, 34, 35, 40, 41
    sLdt, sD, sTag, sU = 42, 43, 36, 38
    sMean, sNeg, sR = 44, 48, 52
    vL, vXr, vF, vC = 1, 2, 10, 26
    vPar, vA, vB = 44, 50, 51
    vT, vT2, vT3, vT4 = 54, 55, 56, 57
    vNon, vL16, vTab = 42, 60, 61
    UB0, USZ, K0A, TAB, SROW = 33280, 4576, 42432, 45056, 1088
    a.hist = []; a.vm = []; a.lg = []
    a(f"""
    s_load_dwordx16 s[16:31], s[0:1], 0
    s_load_dwordx2 s[8:9], s[0:1], 104
    s_load_dwordx2 s[32:33], s[0:1], 64
    s_load_dwordx2 s[12:13], s[0:1], 112
    s_load_dwordx2 s[92:93], s[0:1], 88
    s_and_b32 s{sQ}, s2, 7
    s_lshl_b32 s{sQ}, s{sQ}, 5
    s_lshr_b32 s{sT}, s2, 3
    s_add_u32 s{sQ}, s{sQ}, s{sT}
    v_lshrrev_b32 v{vT}, 6, v0
    v_and_b32 v{vL}, 63, v0
    s_lshl_b32 s{sT}, s{sQ}, 9
    v_readfirstlane_b32 s{sW}, v{vT}
    v_lshlrev_b32 v{vL16}, 4, v{vL}
    v_lshl_add_u32 v{vT3}, v0, 1, s{sT}
    s_lshl_b32 s{sT}, s{sQ}, 2
    """)
    srd(8, 256)
    if STAMPS: a("s_memrealtime s[100:101]\ns_mov_b32 s97, 0")
    a("s_waitcnt lgkmcnt(0)")
    stamp()
    if "nossm" in OPT: a("s_endpgm")
    for k in range(6):
        a(f"global_load_ushort v{vPar+k}, v{vT3}, s[{18+2*k}:{19+2*k}]", "par")
    a(f"s_load_dword s{sLdt}, s[30:31], s{sT}\ns_load_dword s{sD}, s[32:33], s{sT}")
    srd(12, WS_SIZE)
    a(f"""
    s_lshr_b32 s{sE}, s{sW}, 1
    s_and_b32 s{sPar}, s{sW}, 1
    s_mov_b32 s{sMask}, 0xffff0000
    s_mul_i32 s{sT2}, s{sE}, {USZ}
    s_add_u32 s{sT2}, s{sT2}, {UB0}
    v_lshl_add_u32 v{vT}, v{vL}, 3, s{sT2}
    v_mov_b32 v{vT3}, 0
    v_mov_b32 v{vT4}, 0
    ds_write_b64 v{vT}, {vr(vT3,2)}
    s_mul_i32 s{sT2}, s{sW}, 8704
    s_add_u32 s{sT2}, s{sT2}, {TAB}
    v_add_u32 v{vTab}, s{sT2}, v{vL16}
    """)
    vOA, vOG, vPb = 50, 51, 59
    a(f"""
    v_and_b32 v{vT}, 15, v{vL}
    v_lshlrev_b32 v{vOG}, 3, v{vT}
    v_lshlrev_b32 v{vT2}, 2, v{vT}
    v_add_u32 v{vT2}, {512-36}, v{vT2}
    v_cmp_lt_u32 vcc, 8, v{vT}
    v_add_u32 v{vT3}, {1024-96}, v{vOG}
    v_add_u32 v{vT4}, {1536-112}, v{vOG}
    v_cndmask_b32 v{vOA}, v{vT}, v{vT2}, vcc
    v_cmp_lt_u32 vcc, 11, v{vT}
    v_cmp_lt_u32 s[56:57], 13, v{vT}
    v_cvt_f32_u32 v{vOG}, v{vOG}
    v_cndmask_b32 v{vOA}, v{vOA}, v{vT3}, vcc
    v_cndmask_b32 v{vOA}, v{vOA}, v{vT4}, s[56:57]
    v_cvt_f32_u32 v{vOA}, v{vOA}
    s_mul_i32 s{sT2}, s{sW}, 8704
    s_add_u32 s{sT2}, s{sT2}, {TAB}
    v_lshrrev_b32 v{vT}, 4, v{vL}
    v_lshl_add_u32 v{vPb}, v{vT}, 6, s{sT2}
    """)
    def k_mfma(s_):
        F = 152 + 16 * (s_ & 1)
        for hh in range(2):
            for gt in range(2):
                d = 200 + 8 * hh + 4 * gt
                a(f"v_mfma_f32_16x16x32_bf16 {vr(d,4)}, {vr(F+4*hh,4)}, {vr(F+8+4*gt,4)}, {'0' if s_ == 0 else vr(d,4)}")
    a("s_waitcnt lgkmcnt(0)")
    a.lg = []
    PR, PB, FR, KT, KA = 64, 72, 152, 200, 216
    sXf, vXf = 58, 31
    a(f"""
    s_lshl_b32 s{sT}, s{sLdt}, 16
    s_and_b32 s{sT2}, s{sLdt}, s{sMask}
    s_cmp_eq_u32 s{sE}, 0
    s_cselect_b32 s{sT}, s{sT}, s{sT2}
    v_mov_b32 v{vT}, {LOG2E:#x}
    v_mul_f32 v{vT}, s{sT}, v{vT}
    v_exp_f32 v{vT}, v{vT}
    """)
    a.wait(vm="par")
    stamp()
    for k in range(6): a(f"v_lshlrev_b32 v{vPar+k}, 16, v{vPar+k}")
    TM = 136
    a(f"""
    v_cvt_pk_bf16_f32 v{vT}, v{vT}, v{vT}
    v_lshlrev_b32 v{vT}, 16, v{vT}
    v_mul_f32 v{PR}, v{vPar}, v{vT}
    v_mul_f32 v{PR+1}, v{vPar+1}, v{vT}
    v_mul_f32 v{vPar+2}, v{vPar+2}, v{vT}
    v_mul_f32 v{vPar+3}, v{vPar+3}, v{vT}
    v_mul_f32 v{PR}, {LOG2E:#x}, v{PR}
    v_mul_f32 v{PR+1}, 0.15915494, v{PR+1}
    """)
    cmul(PR + 2, vPar + 4, vPar + 2)
    for i, l in enumerate((128, 256)):
        a(f"v_mul_f32 v{TM+4*i}, {fl(l)}, v{PR}\nv_mul_f32 v{TM+4*i+1}, {fl(l)}, v{PR+1}")
    for i in range(2): a(f"v_fract_f32 v{TM+4*i+1}, v{TM+4*i+1}\nv_exp_f32 v{TM+4*i}, v{TM+4*i}")
    for i in range(2): a(f"v_cos_f32 v{TM+4*i+2}, v{TM+4*i+1}\nv_sin_f32 v{TM+4*i+3}, v{TM+4*i+1}")
    a(f"ds_write_b128 v{vTab}, {vr(PR,4)}", "pw")
    a(f"""
    v_mul_f32 v{TM+2}, v{TM+2}, v{TM}
    v_mul_f32 v{TM+3}, v{TM+3}, v{TM}
    v_mul_f32 v{PR+6}, v{TM+6}, v{TM+4}
    v_mul_f32_e64 v{PR+7}, -v{TM+7}, v{TM+4}
    """)
    cmul(PR + 4, PR + 2, TM + 2)
    a(f"ds_write_b128 v{vTab}, {vr(PR+4,4)} offset:1024", "pw")
    def p_reads(s_):
        for j in range(4):
            for k in range(2):
                a(f"ds_read_b128 {vr(PB+32*(s_&1)+8*j+4*k,4)}, v{vPb} offset:{256*s_+16*j+1024*k}", f"pb{s_}")
    p_reads(0)
    stamp()
    for s_ in range(4):
        if s_ < 3: p_reads(s_ + 1)
        a.wait(lg=f"pb{s_}")
        if s_ == 3: a(f"s_load_dwordx2 {sr(sTag,2)}, s[8:9], 128")
        F = FR + 16 * (s_ & 1)
        for jp in range(2):
            js = (2 * jp, 2 * jp + 1)
            P = lambda j: PB + 32 * (s_ & 1) + 8 * j
            T = lambda j, w_: TM + 8 * (j & 1) + 4 * w_
            for j in js:
                for w_, o in enumerate((vOA, vOG)):
                    a(f"v_mul_f32 v{T(j,w_)}, v{P(j)}, v{o}\nv_mul_f32 v{T(j,w_)+1}, v{P(j)+1}, v{o}")
            for j in js:
                for w_ in range(2):
                    a(f"v_fract_f32 v{T(j,w_)+1}, v{T(j,w_)+1}\nv_exp_f32 v{T(j,w_)}, v{T(j,w_)}")
            for j in js:
                for w_ in range(2):
                    a(f"v_cos_f32 v{T(j,w_)+2}, v{T(j,w_)+1}\nv_sin_f32 v{T(j,w_)+3}, v{T(j,w_)+1}")
            for j in js:
                a(f"v_mul_f32 v{T(j,0)+2}, v{T(j,0)+2}, v{T(j,0)}\nv_mul_f32_e64 v{T(j,0)+3}, -v{T(j,0)+3}, v{T(j,0)}")
                a(f"v_mul_f32 v{T(j,1)+2}, v{T(j,1)+2}, v{T(j,1)}\nv_mul_f32 v{T(j,1)+3}, v{T(j,1)+3}, v{T(j,1)}")
            for j in js:
                a(f"v_cvt_pk_bf16_f32 v{F+j}, v{T(j,0)+2}, v{T(j,0)+3}")
                cmul(T(j, 0), T(j, 0) + 2, P(j) + 6)
                cmul(T(j, 1), T(j, 1) + 2, P(j) + 2)
                a(f"v_cvt_pk_bf16_f32 v{F+4+j}, v{T(j,0)}, v{T(j,0)+1}")
                cmul(T(j, 0) + 2, T(j, 1) + 2, P(j) + 4)
                a(f"v_cvt_pk_bf16_f32 v{F+8+j}, v{T(j,1)}, v{T(j,1)+1}")
                a(f"v_cvt_pk_bf16_f32 v{F+12+j}, v{T(j,0)+2}, v{T(j,0)+3}")
            if jp == 0 and s_ > 0: k_mfma(s_ - 1)
        if str(s_) in OPT.get("pf", "9"):
            half = OPT.get("pf", "9").index(str(s_))
            a(f"""
            s_lshr_b32 s{sT}, s2, 3
            s_mul_i32 s{sT}, s{sT}, 43
            s_mul_i32 s{sT2}, s{sW}, 11
            v_lshrrev_b32 v{vT}, 2, v{vL}
            v_min_u32 v{vT}, 10, v{vT}
            v_add_u32 v{vT}, s{sT2}, v{vT}
            v_min_u32 v{vT}, 42, v{vT}
            v_add_u32 v{vT}, s{sT}, v{vT}
            v_and_b32 v{vT2}, 3, v{vL}
            v_lshlrev_b32 v{vT2}, 7, v{vT2}
            v_lshl_add_u32 v{vT}, v{vT}, 10, v{vT2}
            """)
            if M2 == "42": a(f"s_and_b32 s{sT}, s2, 1\ns_lshl_b32 s{sT}, s{sT}, 9\nv_add_u32 v{vT}, s{sT}, v{vT}")
            a("s_setprio 3")
            a(f"global_load_dword v30, v{vT}, s[92:93] offset:{0 if M2 == '42' else 512*half}", "pf")
            a("s_setprio 0")
        if s_ == 1: stamp()
    stamp()
    vUg, vUw, vU = 62, 63, 10
    a(f"""
    v_lshrrev_b32 v{vT3}, 1, v{vL}
    v_and_b32 v{vT2}, 1, v{vL}
    v_mul_u32_u24 v{vUg}, {XS}, v{vT3}
    v_lshl_add_u32 v{vUg}, v{vT2}, 4, v{vUg}
    v_mul_u32_u24 v{vUw}, {USZ}, v{vT2}
    v_lshl_add_u32 v{vUw}, v{vT3}, 4, v{vUw}
    s_lshl_b32 s{sT}, s{sW}, 10
    s_add_u32 s{sT}, s{sT}, {UB0+480}
    v_add_u32 v{vUw}, s{sT}, v{vUw}
    s_mul_i32 s{sU}, s{sW}, {64*XS}
    s_lshl_b32 s{sT}, s{sQ}, 5
    s_add_u32 s{sU}, s{sU}, s{sT}
    s_add_u32 s{sU}, s{sU}, {XNP}
    s_add_u32 s{sU+1}, s{sU}, {32*XS}
    s_mov_b32 s{sCnt}, 0
    """)
    k_mfma(3)
    vK = 80
    a(f"""
    v_lshrrev_b32 v{vT2}, 4, v{vL}
    v_and_b32 v{vT3}, 15, v{vL}
    v_lshlrev_b32 v{vT3}, 4, v{vT3}
    v_lshl_add_u32 v{vT2}, v{vT2}, 10, v{vT3}
    s_mul_i32 s{sT2}, s{sW}, 8704
    s_add_u32 s{sT2}, s{sT2}, {TAB+2048}
    v_add_u32 v{vT2}, s{sT2}, v{vT2}
    s_mul_i32 s{sT}, s{sE}, {2*8704}
    s_add_u32 s{sT}, s{sT}, {TAB+2048}
    v_add_u32 v{vT3}, s{sT}, v{vL16}
    """)
    for t in range(4): a(f"ds_write_b128 v{vT2}, {vr(KT+4*t,4)} offset:{256*t}")
    a(f"""
    s_mul_i32 s{sT}, s{sE}, 16640
    s_lshl_b32 s{sT2}, s{sPar}, 11
    s_add_u32 s{sT2}, s{sT2}, s{sT}
    s_add_u32 s{sT2}, s{sT2}, 32
    v_add_u32 v{vK}, s{sT2}, v{vL16}
    v_bfe_u32 v{vT}, v{vL}, 3, 2
    v_mul_u32_u24 v{vT}, 4160, v{vT}
    v_and_b32 v{vT4}, 7, v{vL}
    v_lshl_add_u32 v{vT}, v{vT4}, 2, v{vT}
    v_add_u32 v{vT}, s{sT}, v{vT}
    v_and_b32 v{vT4}, 1, v{vL}
    v_cmp_eq_u32 vcc, 1, v{vT4}
    v_cmp_le_u32 s[56:57], 32, v{vL}
    """)
    stamp()
    a("s_waitcnt lgkmcnt(0)\ns_barrier")
    stamp()
    a(f"""
    s_lshr_b32 s{sXf}, s{sQ}, 6
    s_lshl_b32 s{sXf}, s{sXf}, 11
    s_lshl_b32 s{sT2}, s{sW}, 9
    s_add_u32 s{sXf}, s{sXf}, s{sT2}
    s_add_u32 s{sXf}, s{sXf}, {FX}
    v_lshlrev_b32 v{vXf}, 3, v{vL}
    s_setprio 3
    """)
    a(f"buffer_load_dwordx2 {vr(vXf+1,2)}, v{vXf}, {WS}, s{sXf} offen sc1", "xf")
    a("s_setprio 0")
    a(f"s_cmp_lg_u32 s{sPar}, 0\ns_cbranch_scc1 S_par1")
    KP = 64
    PK = 88
    K = lambda i: KA + i
    def packs(run, k):
        for cp in range(4):
            for j in range(4): a(f"v_cvt_pk_bf16_f32 v{PK+16*run+4*cp+j}, v{k[cp+2*j]}, v{k[cp+2*j+1]}")
            a(f"ds_write_b128 v{vK}, {vr(PK+16*run+4*cp,4)} offset:{4160*cp+1024*run}")
    hist0 = list(a.hist)
    for q in range(3):
        a(f"ds_read_b128 {vr(KA+4*q,4)}, v{vT3} offset:{1024*q}\nds_read_b128 {vr(KP+4*q,4)}, v{vT3} offset:{8704+1024*q}")
    a(f"""
    v_mov_b32 v{vT4}, 0
    ds_write_b32 v{vT}, v{vT4}
    s_lshl_b32 s{sT2}, s{sE}, 2
    s_add_u32 s{sT2}, s{sT2}, {K0A}
    v_mov_b32 v{vT2}, s{sT2}
    v_mov_b32 v{vT3}, s{sT}
    s_waitcnt lgkmcnt(1)
    """)
    for j in range(12): a(f"v_add_f32 v{KA+j}, v{KA+j}, v{KP+j}")
    a(f"""
    v_cndmask_b32 v{K(1)}, v{K(1)}, v{K(0)}, s[56:57]
    v_cndmask_b32 v{K(3)}, v{K(3)}, v{K(4)}, s[56:57]
    v_cndmask_b32 v{K(5)}, v{K(5)}, v{K(4)}, s[56:57]
    v_cndmask_b32 v{K(7)}, v{K(7)}, v{K(8)}, s[56:57]
    v_mov_b32 v{K(12)}, v{K(8)}
    v_mov_b32 v{K(13)}, v{K(8)}
    s_mov_b64 exec, 1
    ds_write_b32 v{vT2}, v{K(0)}
    v_mov_b32 v{K(0)}, 0
    s_mov_b64 exec, -1
    v_mov_b32_dpp v{K(12)}, v{K(1)} wave_shl:1 row_mask:0xf bank_mask:0xf
    v_mov_b32_dpp v{K(13)}, v{K(2)} wave_shl:1 row_mask:0xf bank_mask:0xf
    """)
    packs(1, [K(9)] * 3 + [K(10)] * 3 + [K(11)] * 5)
    packs(0, [K(i) for i in range(9)] + [K(12), K(13)])
    a(f"""
    s_mov_b64 exec, 1
    ds_write_b32 v{vT3}, v{PK} offset:{2*4160+28}
    ds_write_b32 v{vT3}, v{PK+4} offset:{3*4160+28}
    s_mov_b64 exec, -1
    s_branch S_parj
    S_par1:
    """)
    a.hist = hist0
    a(f"ds_read_b128 {vr(KA+12,4)}, v{vT3} offset:3072\nds_read_b128 {vr(KP,4)}, v{vT3} offset:{8704+3072}\ns_waitcnt lgkmcnt(0)")
    for j in range(4): a(f"v_add_f32 v{KA+12+j}, v{KA+12+j}, v{KP+j}")
    a(f"v_cndmask_b32 v{K(0)}, v{K(12)}, v{K(13)}, vcc\nv_cndmask_b32 v{K(1)}, v{K(14)}, v{K(15)}, vcc")
    packs(0, [K(12)] * 4 + [K(0)] + [K(13)] * 6)
    packs(1, [K(14)] * 4 + [K(1)] + [K(15)] * 6)
    a("S_parj:")
    a.lg = []
    a(f"s_cmp_eq_u32 s{sTag}, 0\ns_cbranch_scc1 S_tagslow\nS_tagok:\ns_mov_b32 s{sCnt}, 0")
    a.wait(vm="xf")
    a(f"""
    S_uchk:
    v_cmp_ne_u64 s[46:47], {sr(sTag,2)}, {vr(vXf+1,2)}
    s_setprio 3
    s_cmp_lg_u64 s[46:47], 0
    s_cbranch_scc1 S_uslow
    S_uok:
    """)
    for k in range(2):
        a(f"buffer_load_dwordx4 {vr(vU+4*k,4)}, v{vUg}, {WS}, s{sU+k} offen sc1", "u")
    a("s_setprio 0")
    stamp()
    vAa, vBa = 52, 53
    a(f"""
    s_mul_i32 s{sT}, s{sE}, {USZ}
    s_add_u32 s{sT}, s{sT}, {UB0}
    s_lshl_b32 s{sT2}, s{sPar}, 8
    s_sub_u32 s{sT}, s{sT}, s{sT2}
    s_add_u32 s{sT}, s{sT}, 256
    v_and_b32 v{vT2}, 15, v{vL}
    v_lshrrev_b32 v{vT3}, 4, v{vL}
    v_lshlrev_b32 v{vT3}, 4, v{vT3}
    v_lshl_add_u32 v{vBa}, v{vT2}, 5, v{vT3}
    v_add_u32 v{vBa}, s{sT}, v{vBa}
    v_bfe_u32 v{vT2}, v{vL}, 2, 2
    v_sub_u32 v{vT4}, 0, v{vT2}
    v_and_b32 v{vT4}, 3, v{vT4}
    v_mul_u32_u24 v{vAa}, 4160, v{vT4}
    v_min_u32 v{vT2}, 1, v{vT2}
    v_lshlrev_b32 v{vT2}, 3, v{vT2}
    v_sub_u32 v{vAa}, v{vAa}, v{vT2}
    v_sub_u32 v{vAa}, v{vAa}, v{vT3}
    v_and_b32 v{vT2}, 3, v{vL}
    v_lshl_add_u32 v{vAa}, v{vT2}, 3, v{vAa}
    s_mul_i32 s{sT}, s{sE}, 16640
    s_add_u32 s{sT}, s{sT}, s{sT2}
    s_add_u32 s{sT}, s{sT}, {32+32-8}
    v_add_u32 v{vAa}, s{sT}, v{vAa}
    """)
    stamp()
    a.wait(vm="u")
    stamp()
    for k in range(2): a(f"ds_write_b128 v{vUw}, {vr(vU+4*k,4)} offset:{512*k}")
    a("s_waitcnt lgkmcnt(0)\ns_barrier")
    a.lg = []
    stamp()
    AS, BS, YA = [64, 128], [96, 160], 192
    def reads(rho):
        s = rho & 1; L = []
        for j in range(8):
            L.append((f"ds_read_b128 {vr(BS[s]+4*j,4)}, v{vBa} offset:{512*j+64*(3-rho)}", f"b{rho}_{j}"))
            L.append((f"ds_read_b64_tr_b16 {vr(AS[s]+4*j,2)}, v{vAa} offset:{64*(8*j+rho)+8}", f"a{rho}_{j}"))
            L.append((f"ds_read_b64_tr_b16 {vr(AS[s]+4*j+2,2)}, v{vAa} offset:{64*(8*j+rho)}", f"a{rho}_{j}"))
        return L
    for t, tag in reads(0): a(t, tag)
    UU, KD, RR, UF, OV = 2, 10, 64, 12, 96
    a(f"""
    s_mul_i32 s{sT2}, s{sW}, 8704
    s_add_u32 s{sT2}, s{sT2}, {TAB}
    v_add_u32 v{vT}, s{sT2}, v{vL16}
    v_bfe_u32 v{vT2}, v{vL}, 1, 2
    v_lshlrev_b32 v{vT2}, 8, v{vT2}
    v_lshrrev_b32 v{vT3}, 3, v{vL}
    v_lshl_add_u32 v{vT2}, v{vT3}, 4, v{vT2}
    v_and_b32 v{vT3}, 1, v{vL}
    v_lshl_add_u32 v{vT2}, v{vT3}, 3, v{vT2}
    s_lshl_b32 s{sT}, s{sW}, 11
    s_add_u32 s{sT}, s{sT}, {TAB}
    v_add_u32 v{vT2}, s{sT}, v{vT2}
    s_lshl_b32 s{sT2}, s{sW}, 10
    s_add_u32 s{sT2}, s{sT2}, {UB0+480}
    v_lshl_add_u32 v{vT3}, v{vL}, 2, s{sT2}
    v_mov_b32 v{vT4}, {K0A}
    s_mul_i32 s{sT}, s{sQ}, {GS}
    s_lshl_b32 s{sT2}, s{sW}, 12
    s_add_u32 s{sT}, s{sT}, s{sT2}
    s_add_u32 s{sT}, s{sT}, {Y2}
    """)
    first = [True] * 8
    for rho in range(4):
        s = rho & 1
        if rho < 3: nxt = reads(rho + 1)
        else:
            nxt = [(f"ds_read_b32 v{UU+4*e+k}, v{vT3} offset:{USZ*e+256*k}", "uu") for e in range(2) for k in range(4)]
            nxt.append((f"ds_read_b64 {vr(KD,2)}, v{vT4}", "uu"))
        pairs = sorted([(p, q) for p in range(8) for q in range(8) if p + q <= 7], key=(lambda x: max(x)) if rho < 3 else (lambda x: x[0] + x[1]))
        done = 0
        for n, (p, q) in enumerate(pairs):
            a.wait(lg=(f"a{rho}_{p}", f"b{rho}_{q}"))
            ct = p + q
            a(f"v_mfma_f32_16x16x32_bf16 {vr(YA+4*ct,4)}, {vr(AS[s]+4*p,4)}, {vr(BS[s]+4*q,4)}, {'0' if first[ct] else vr(YA+4*ct,4)}")
            first[ct] = False
            if n >= 8 and nxt:
                t, tag = nxt.pop(0); a(t, tag)
            if rho == 3:
                while done < ct - 1 and n >= (done + 1) * (done + 2) // 2 + 8:
                    a(f"ds_write_b128 v{vT}, {vr(YA+4*done,4)} offset:{1024*done}"); done += 1
        for t, tag in nxt: a(t, tag)
    stamp()
    a.wait(lg="uu")
    a(f"""
    s_lshl_b32 s{sT2}, s{sD}, 16
    v_add_f32 v{KD}, s{sT2}, v{KD}
    s_and_b32 s{sT2}, s{sD}, s{sMask}
    v_add_f32 v{KD+1}, s{sT2}, v{KD+1}
    """)
    unp = [t for j in range(8) for t in (f"v_lshlrev_b32 v{UF+2*j}, 16, v{UU+j}", f"v_and_b32 v{UF+2*j+1}, s{sMask}, v{UU+j}")]
    for t in unp[:6]: a(t)
    for ct in range(done, 8): a(f"ds_write_b128 v{vT}, {vr(YA+4*ct,4)} offset:{1024*ct}")
    for t in unp[6:]: a(t)
    for kk in range(4): a(f"v_mov_b32 v{OV+4*kk+2}, s{sTag}\nv_mov_b32 v{OV+4*kk+3}, s{sTag+1}")
    a("s_waitcnt lgkmcnt(0)\ns_barrier\ns_setprio 3")
    a.lg = []
    for kk in range(4):
        for sw in range(4):
            a(f"ds_read_b64 {vr(RR+8*sw+2*kk,2)}, v{vT2} offset:{8704*sw+1024*(kk>>1)+128*(kk&1)}", f"rr{kk}")
    for kk in range(4):
        a.wait(lg=f"rr{kk}")
        for e in range(2):
            for j in range(2):
                a(f"v_fmac_f32 v{RR+16*e+2*kk+j}, v{UF+8*e+2*kk+j}, v{KD+e}")
        for e in range(2):
            for j in range(2):
                a(f"v_add_f32 v{RR+16*e+2*kk+j}, v{RR+16*e+2*kk+j}, v{RR+16*e+8+2*kk+j}")
        for j in range(2):
            a(f"v_cvt_pk_bf16_f32 v{OV+4*kk+j}, v{RR+2*kk+j}, v{RR+16+2*kk+j}")
        a(f"buffer_store_dwordx4 {vr(OV+4*kk,4)}, v{vL16}, {WS}, s{sT} offen offset:{1024*kk} sc1")
    stamp()
    if STAMPS:
        a("s_waitcnt vmcnt(0)"); stamp()
    stamp_flush(WS, f"s{sW}", vT)
    a("s_endpgm")
    tag_slow("S", sTag, 8, [192], vNon, sCnt)
    a.raw(f"""S_uslow:
{retry_mark(4)}  s_add_u32 s{sCnt}, s{sCnt}, 1
  s_cmp_ge_u32 s{sCnt}, {SPIN}
  s_cbranch_scc1 S_uok
  s_setprio 0
  s_sleep 8""")
    a.raw(f"  buffer_load_dwordx2 {vr(vXf+1,2)}, v{vXf}, {WS}, s{sXf} offen sc1")
    a.raw("  s_waitcnt vmcnt(0)\n  s_branch S_uchk")

hdr = open("cdna_kernels/" + NAME + ".s.ref").read().split("\n")
top = [l for l in hdr if l.startswith(";") and "@launch" not in l][:16]
a.raw("\n".join(top))
a.raw("; @launch grid=(512,1,1) block=(256,1,1) lds=81920")
a.raw(f""".amdgcn_target "amdgcn-amd-amdhsa--gfx950"
.text
.globl {NAME}_kernel
.p2align 8
.type {NAME}_kernel,@function
{NAME}_kernel:""")
stamp()
NST[0] = 14
if "nocpf" not in OPT:
    a(f"""
    s_getpc_b64 s[94:95]
    s_bfe_u32 s96, s2, 0x60003
    s_lshl_b32 s96, s96, 9
    v_and_b32 v255, 3, v0
    v_lshl_add_u32 v255, v255, 7, s96
    v_min_u32 v255, L_exit-{NAME}_kernel-64, v255
    global_load_dword v254, v255, s[94:95]
    """)
a("s_cmp_lt_u32 s2, 256\ns_cbranch_scc1 L_ssm\ns_cmp_ge_u32 s2, 512\ns_cbranch_scc1 L_exit")
gemm_role()
a.raw(".p2align 6")
a("L_ssm:")
if STAMPS: nstamp[0] = 1
NST[0] = 16
ssm_role()
a("L_exit:\ns_endpgm")
a.raw(f""".section .rodata,"a"
.p2align 6
.amdhsa_kernel {NAME}_kernel
  .amdhsa_next_free_vgpr 256
  .amdhsa_next_free_sgpr 102
  .amdhsa_accum_offset 256
  .amdhsa_group_segment_fixed_size 0
  .amdhsa_kernarg_size 120
  .amdhsa_user_sgpr_count 2
  .amdhsa_user_sgpr_kernarg_segment_ptr 1
  .amdhsa_system_sgpr_workgroup_id_x 1
.end_amdhsa_kernel""")
sys.stdout.write(a.text())
sys.stderr.write(f"nops inserted: {a.nops}\n")
```

```python
import sys, struct
from asmlib import Asm, vr, sr

NAME = "parallel_sum__ssm_conv_s4__dense_activation_silu__prompt"
OPT = {x.split("=")[0][2:]: (x.split("=")[1] if "=" in x else "1") for x in sys.argv[1:] if x.startswith("--")}
STAMPS = "stamps" in OPT
SPIN = int(OPT.get("spin", 4000))
M1, M2 = OPT.get("m1", "81"), OPT.get("m2", "81")
LOCAL = M1 == "81" and M2 == "81" and "nolocal" not in OPT
HSF = "" if LOCAL else "sc1"

HROW = 88 * 1024
H_SIZE = 64 * HROW
ST = 0x580000
FH = 0x590000
GS = 18432
XNP = 0x600000
XS = 9216
FX = 0x5A0000
Y2 = 0xA80000
WS_SIZE = 0x1000000
STAMP_OFF = 0xF80000
LOG2E = 0x3fb8aa3b
fl = lambda x: "0x%08x" % struct.unpack("<I", struct.pack("<f", x))[0]

a = Asm()
nstamp = [0]
NST = [16]
def stamp(force=False):
    if STAMPS and nstamp[0] < NST[0] and (force or "cs" not in OPT or nstamp[0] in (0, 13)):
        i = nstamp[0]; nstamp[0] += 1
        a(f"s_memtime s[{60+2*i}:{61+2*i}]")
def stamp_flush(wsrd, wave_s, vt):
    if not STAMPS: return
    n = nstamp[0]
    a("s_memrealtime s[98:99]")
    a("s_waitcnt lgkmcnt(0)")
    a(f"s_lshl_b32 s96, s2, 2\ns_add_u32 s96, s96, {wave_s}\ns_lshl_b32 s96, s96, 7\ns_add_u32 s96, s96, {STAMP_OFF}")
    a("s_mov_b64 exec, 1")
    for i in range(n):
        a(f"v_mov_b32 v{vt}, s{60+2*i}")
        a(f"buffer_store_dword v{vt}, off, {wsrd}, s96 offset:{4*i}")
    a(f"v_mov_b32 v{vt}, s97\nbuffer_store_dword v{vt}, off, {wsrd}, s96 offset:116")
    a(f"v_mov_b32 v{vt}, s100\nbuffer_store_dword v{vt}, off, {wsrd}, s96 offset:120")
    a(f"v_mov_b32 v{vt}, s98\nbuffer_store_dword v{vt}, off, {wsrd}, s96 offset:124")
    nstamp[0] = 0
def retry_mark(bit):
    return f"  s_add_u32 s97, s97, {1 << bit}\n" if STAMPS else ""

def srd(base, size):
    a(f"s_mov_b32 s{base+2}, {size}\ns_mov_b32 s{base+3}, 0x20000")

def cmul(d, x, y):
    a(f"v_mul_f32 v{d}, v{x+1}, v{y+1}")
    a(f"v_mul_f32 v{d+1}, v{x+1}, v{y}")
    a(f"v_fma_f32 v{d}, v{x}, v{y}, -v{d}")
    a(f"v_fmac_f32 v{d+1}, v{x}, v{y+1}")

def tag_slow(pfx, sTag, dbg, offs, vt, sCnt):
    a.raw(f"{pfx}_tagslow:")
    a.raw(retry_mark(0).rstrip("\n"))
    for o in offs:
        a.raw(f"  s_load_dwordx2 {sr(sTag,2)}, s[{dbg}:{dbg+1}], {o}\n  s_waitcnt lgkmcnt(0)\n  s_cmp_lg_u32 s{sTag}, 0\n  s_cbranch_scc1 {pfx}_tagok")
    a.raw(f"""  s_mov_b32 s{sCnt}, 0
{pfx}_tagloop:
  buffer_load_dwordx2 {vr(vt,2)}, off, s[{dbg}:{dbg+3}], 0 sc1
  s_add_u32 s{sCnt}, s{sCnt}, 1
  s_waitcnt vmcnt(0)
  v_readfirstlane_b32 s{sTag}, v{vt}
  v_readfirstlane_b32 s{sTag+1}, v{vt+1}
  s_nop 3
  s_cmp_lg_u32 s{sTag}, 0
  s_cbranch_scc1 {pfx}_tagok
  s_cmp_lt_u32 s{sCnt}, {SPIN}
  s_cbranch_scc1 {pfx}_tagloop
  s_branch {pfx}_tagok""")

def gemm_role():
    X, W1, WS, W2, OUT, DBG, HS = "s[4:7]", "s[8:11]", "s[12:15]", "s[16:19]", "s[20:23]", "s[24:27]", "s[28:31]"
    sP = 3
    sW, sRB, sM, sXB, sWB, sC, sTx, sT, sLA, sLB, sW2, sHS, sHL = range(32, 45)
    sT2, sT3, sL2e, sCnt, sO, sTag, sFl, sRT = 45, 46, 47, 48, 49, 50, 52, 53
    sB1, sMask, sCG, sXcc, sFar, sHS2, sIa = 54, 55, 56, 57, 58, 59, 101
    sY, sRet = sFl, sFar
    sMean, sNeg = 88, 92
    sXn, sSt, sFx = 89, 90, 91
    vL = 1
    vXo, vWo, vXr, vWr, vW2o, vW2r, vL16 = 2, 6, 9, 13, 17, 18, 22
    vT, vNon, vCs, vT2, vC2, vSa = 23, 24, 26, 29, 30, 31
    vSt, vNeg = 32, 36
    HALF, vSw, vSr, vIa, vT3 = 88, 92, 93, 94, 95
    ACC1, WF, CSA, XF, CSF = 40, 96, 144, 192, 192
    LX, LF, LG, vId = 224, 232, 248, 252
    ACC2, STASH, HB, HD = 32, 96, 192, 8
    SROW, STG = 1088, 32768 + 3 * 12288
    FARAWAY = 0x40000000
    a(f"""
    s_load_dwordx2 s[4:5], s[0:1], 0
    s_load_dwordx2 s[24:25], s[0:1], 104
    s_load_dwordx2 s[8:9], s[0:1], 80
    s_load_dwordx2 s[12:13], s[0:1], 112
    s_load_dwordx2 s[16:17], s[0:1], 88
    s_load_dwordx2 s[20:21], s[0:1], 96
    s_memrealtime {sr(sTag,2)}
    v_lshrrev_b32 v{vT}, 6, v0
    v_and_b32 v{vL}, 63, v0
    s_and_b32 s{sP}, s2, 7
    v_readfirstlane_b32 s{sW}, v{vT}
    s_lshl_b32 s{sP}, s{sP}, 5
    s_bfe_u32 s{sT}, s2, 0x50003
    s_add_u32 s{sP}, s{sP}, s{sT}
    s_lshr_b32 s{sRB}, s{sP}, 4
    s_and_b32 s{sM}, s{sP}, 15
    s_and_b32 s{sC}, s{sP}, 7
    v_lshlrev_b32 v{vL16}, 4, v{vL}
    s_lshl2_add_u32 s{sO}, s{sP}, s{sW}
    s_lshl_b32 s{sO}, s{sO}, 11
    v_lshl_add_u32 v{vT3}, v{vL}, 6, s{sO}
    s_setprio 2
    """)
    srd(4, 2048 * 1024); srd(24, 256); srd(8, 512 * 2752)
    a(f"""
    v_lshrrev_b32 v{vT}, 3, v{vL}
    v_lshlrev_b32 v{vT}, 10, v{vT}
    v_lshrrev_b32 v{vT2}, 4, v{vL}
    v_xor_b32 v{vT2}, v{vT2}, v{vL}
    v_and_b32 v{vT2}, 7, v{vT2}
    v_lshl_add_u32 v{vXo}, v{vT2}, 4, v{vT}
    v_xor_b32 v{vXo+1}, 64, v{vXo}
    v_add_u32 v{vXo+2}, {2*7168}, v{vXo}
    v_add_u32 v{vXo+3}, {3*7168}, v{vXo+1}
    v_add_u32 v{vXo+1}, 7168, v{vXo+1}
    s_movk_i32 s{sT}, 5462
    s_movk_i32 s{sT2}, {2752-192}
    v_mul_u32_u24 v{vT}, s{sT}, v{vL}
    """)
    for j in range(3):
        if j: a(f"v_add_u32 v{vT}, {64*5462}, v{vT}")
        a(f"v_lshrrev_b32 v{vT2}, 16, v{vT}\nv_mad_u32_u24 v{vWo+j}, v{vT2}, s{sT2}, v{vL16}")
    a("s_waitcnt lgkmcnt(0)")
    if STAMPS: a(f"s_mov_b32 s100, s{sTag}\ns_mov_b32 s97, 0")
    stamp()
    for r in range(2):
        a(f"buffer_load_dwordx4 {vr(LX+4*r,4)}, v{vL16}, {X}, s{sO} offen offset:{1024*r}", "xrow")
    a(f"""
    s_or_b32 s{sTag}, s{sTag}, 1
    v_mov_b32 v{vNon}, s{sTag}
    v_mov_b32 v{vNon+1}, s{sTag+1}
    s_lshl2_add_u32 s{sXB}, s{sRB}, s{sW}
    s_lshl_b32 s{sXB}, s{sXB}, 15
    buffer_store_dwordx2 {vr(vNon,2)}, v{vT3}, {DBG}, 0 offen sc1
    s_mul_i32 s{sWB}, s{sM}, 192
    s_mul_i32 s{sT}, s{sW}, {16*2752}
    s_add_u32 s{sWB}, s{sWB}, s{sT}
    s_lshr_b32 s{sO}, s{sXB}, 6
    s_cmp_eq_u32 s{sM}, 15
    s_cselect_b32 s{sXB}, {FARAWAY}, s{sXB}
    s_cselect_b32 s{sWB}, {FARAWAY}, s{sWB}
    s_lshl_b32 s{sLA}, s{sW}, 12
    s_mul_i32 s{sLB}, s{sW}, 3072
    s_add_u32 s{sLB}, s{sLB}, 32768
    """)
    if "nogemm" in OPT: a("s_endpgm")

    def chunk_ops(c):
        ops = []
        for j in range(3):
            def f(j=j):
                if j == 0:
                    a(f"s_mul_i32 s{sT2}, s{sC}, {64*2752}\ns_add_u32 m0, s{sLB}, {(c&3)*12288}\ns_add_u32 s{sT2}, s{sT2}, s{sWB}")
                a(f"buffer_load_dwordx4 v{vWo+j}, {W1}, s{sT2} offen offset:{j*1024} lds", f"C{c}")
            ops.append(f)
        for pc in range(4):
            def f(pc=pc):
                if pc == 0:
                    a(f"s_lshl_b32 s{sTx}, s{sC}, 7\ns_add_u32 m0, s{sLA}, {(c&1)*16384}\ns_add_u32 s{sTx}, s{sTx}, s{sXB}")
                a(f"buffer_load_dwordx4 v{vXo+pc}, {X}, s{sTx} offen offset:{pc*1024} lds", f"C{c}")
                if pc == 0:
                    a(f"s_add_u32 s{sC}, s{sC}, 1\ns_and_b32 s{sC}, s{sC}, 7")
            ops.append(f)
        return ops
    ops = {c: chunk_ops(c) for c in range(8)}
    def issue(c, n):
        for _ in range(n): ops[c].pop(0)()
    issue(0, 7)
    a(f"""
    v_and_b32 v{vSa}, 31, v{vL}
    v_lshrrev_b32 v{vT2}, 5, v{vL}
    v_bfe_u32 v{vC2}, v{vL}, 1, 3
    v_xor_b32 v{vC2}, v{vC2}, v{vT2}
    v_lshl_add_u32 v{vC2}, v{vC2}, 4, s{sLA}
    v_lshl_add_u32 v{vC2}, v{vSa}, 7, v{vC2}
    v_bfe_u32 v{vT3}, v{vL}, 2, 2
    v_lshl_add_u32 v{vT}, v{vT2}, 3, v{vT3}
    v_mul_u32_u24 v{vT}, 192, v{vT}
    v_bfe_u32 v{vT2}, v{vL}, 4, 1
    v_lshl_add_u32 v{vT}, v{vT2}, 5, v{vT}
    v_and_b32 v{vT2}, 3, v{vL}
    v_lshl_add_u32 v{vT}, v{vT2}, 3, v{vT}
    v_add_u32 v{vT}, 0x8000, v{vT}
    """)
    for i in range(4):
        a(f"""
        s_add_u32 s{sT3}, s{sW}, {i}
        s_and_b32 s{sT3}, s{sT3}, 3
        s_lshl_b32 s{sCnt}, s{sT3}, 5
        s_mulk_i32 s{sT3}, 3072
        v_xor_b32 v{vXr+i}, s{sCnt}, v{vC2}
        v_add_u32 v{vWr+i}, s{sT3}, v{vT}
        """)
    issue(1, 3)
    a(f"""
    s_getreg_b32 s{sXcc}, hwreg(HW_REG_XCC_ID, 0, 4)
    s_mov_b32 s{sB1}, 0x3f803f80
    s_mov_b32 s{sMask}, 0xffff0000
    s_mul_i32 s{sT3}, s{sW}, {2*SROW}
    s_add_u32 s{sT3}, s{sT3}, {STG}
    v_add_u32 v{vSw}, s{sT3}, v{vL16}
    v_mul_u32_u24 v{vT}, {SROW}, v{vT3}
    v_lshl_add_u32 v{vT}, v{vT2}, 3, v{vT}
    v_lshrrev_b32 v{vT2}, 4, v{vL}
    v_lshl_add_u32 v{vT}, v{vT2}, 5, v{vT}
    s_lshl_b32 s{sT3}, s{sW}, 8
    s_add_u32 s{sT3}, s{sT3}, {STG}
    v_add_u32 v{vSr}, s{sT3}, v{vT}
    """)
    srd(12, WS_SIZE)
    for k in range(4): a(f"v_mov_b32 v{HALF+k}, 0x3f003f00")
    a.wait(vm="xrow")
    stamp()

    vC = CSA; S = [252, 253]; vN = 254; sR = sMean
    def dpp_reduce(fill):
        for ctl in ("row_shr:1 row_mask:0xf bank_mask:0xf bound_ctrl:0", "row_shr:2 row_mask:0xf bank_mask:0xf bound_ctrl:0",
                    "row_shr:4 row_mask:0xf bank_mask:0xf bound_ctrl:0", "row_shr:8 row_mask:0xf bank_mask:0xf bound_ctrl:0",
                    "row_bcast:15 row_mask:0xa bank_mask:0xf", "row_bcast:31 row_mask:0xc bank_mask:0xf"):
            for r in range(2):
                a(f"v_add_f32_dpp v{S[r]}, v{S[r]}, v{S[r]} {ctl}")
            for _ in range(3):
                if fill: a(fill.pop(0))
        while fill: a(fill.pop(0))
    for k in range(4):
        for r in range(2):
            a(f"v_dot2_f32_bf16 v{S[r]}, v{LX+4*r+k}, s{sB1}, {'0' if k == 0 else 'v%d' % S[r]}")
    unpack = lambda: [t for r in range(2) for k in range(4) for t in
                      (f"v_lshlrev_b32 v{LF+8*r+2*k}, 16, v{LX+4*r+k}", f"v_and_b32 v{LF+8*r+2*k+1}, s{sMask}, v{LX+4*r+k}")]
    fill = unpack()
    for _ in range(3): a(fill.pop(0))
    dpp_reduce(fill)
    issue(1, 2)
    for r in range(2): a(f"v_mul_f32 v{S[r]}, 0x3b000000, v{S[r]}")
    for r in range(2): a(f"v_cvt_pk_bf16_f32 v{vN+r}, -v{S[r]}, -v{S[r]}")
    for r in range(2): a(f"v_readlane_b32 s{sMean+2*r}, v{S[r]}, 63")
    for r in range(2): a(f"v_readlane_b32 s{sNeg+2*r}, v{vN+r}, 63")
    for k in range(4):
        for r in range(2):
            a(f"v_pk_add_f32 {vr(vC+8*r+2*k,2)}, {vr(LF+8*r+2*k,2)}, {sr(sMean+2*r,2)} op_sel_hi:[1,0] neg_lo:[0,1] neg_hi:[0,1]")
    for r in range(2): a(f"s_and_b32 s{sNeg+2*r}, s{sNeg+2*r}, s{sMask}")
    for r in range(2): a(f"s_or_b32 s{sNeg+2*r+1}, s{sNeg+2*r}, s{sXcc}")
    for r in range(2):
        a(f"v_pk_mul_f32 {vr(vC+8*r,2)}, {vr(vC+8*r,2)}, {vr(vC+8*r,2)}")
    for k in range(1, 4):
        for r in range(2):
            a(f"v_pk_fma_f32 {vr(vC+8*r,2)}, {vr(vC+8*r+2*k,2)}, {vr(vC+8*r+2*k,2)}, {vr(vC+8*r,2)}")
    for r in range(2): a(f"v_add_f32 v{S[r]}, v{vC+8*r}, v{vC+8*r+1}")
    issue(1, 2)
    fill = [f"v_pk_add_f32 {vr(LF+8*r+2*k,2)}, {vr(LF+8*r+2*k,2)}, {sr(sNeg+2*r,2)} op_sel_hi:[1,0]" for k in range(4) for r in range(2)]
    fill += [f"v_cvt_pk_bf16_f32 v{LX+4*r+k}, v{LF+8*r+2*k}, v{LF+8*r+2*k+1}" for k in range(4) for r in range(2)]
    dpp_reduce(fill)
    def rnd():
        for r in range(2): a(f"v_cvt_pk_bf16_f32 v{S[r]}, v{S[r]}, v{S[r]}")
        for r in range(2): a(f"v_lshlrev_b32 v{S[r]}, 16, v{S[r]}")
    for r in range(2): a(f"v_mul_f32 v{S[r]}, 0x3b000000, v{S[r]}")
    rnd()
    for r in range(2): a(f"v_add_f32 v{S[r]}, 0x3727c5ac, v{S[r]}")
    rnd()
    for r in range(2): a(f"v_sqrt_f32 v{S[r]}, v{S[r]}")
    rnd()
    for r in range(2): a(f"v_rcp_f32 v{S[r]}, v{S[r]}")
    for t in unpack(): a(t)
    for r in range(2): a(f"v_readlane_b32 s{sR+2*r}, v{S[r]}, 63")
    a(f"s_load_dwordx2 {sr(sTag,2)}, s[24:25], 0")
    for r in range(2):
        for k in range(4):
            a(f"v_pk_mul_f32 {vr(LF+8*r+2*k,2)}, {vr(LF+8*r+2*k,2)}, {sr(sR+2*r,2)} op_sel_hi:[1,0]")
        for k in range(4):
            a(f"v_cvt_pk_bf16_f32 v{LX+4*r+k}, v{LF+8*r+2*k}, v{LF+8*r+2*k+1}")
        a(f"ds_write_b128 v{vSw}, {vr(LX+4*r,4)} offset:{SROW*r}", "stg")
    a(f"""
    v_mov_b32 v{LG}, s{sNeg+1}
    v_mov_b32 v{LG+1}, s{sR}
    v_writelane_b32 v{LG}, s{sNeg+3}, 1
    v_writelane_b32 v{LG+1}, s{sR+2}, 1
    s_mul_i32 s{sXn}, s{sP}, {XS}
    s_lshl_b32 s{sT3}, s{sW}, 11
    s_add_u32 s{sXn}, s{sXn}, s{sT3}
    s_add_u32 s{sXn}, s{sXn}, {XNP}
    s_lshl3_add_u32 s{sFx}, s{sP}, s{sT3}
    s_add_u32 s{sFx}, s{sFx}, {FX}
    s_lshl2_add_u32 s{sSt}, s{sP}, s{sW}
    s_lshl_b32 s{sSt}, s{sSt}, 5
    s_add_u32 s{sSt}, s{sSt}, {ST}
    """)
    issue(2, 3)
    a.wait(lg=0)
    stamp()

    FILL = [u.strip() for u in f"""
    s_mov_b32 s18, {1376*1024}
    s_mov_b32 s19, 0x20000
    s_mov_b32 s22, {2048*1024}
    s_mov_b32 s23, 0x20000
    s_mov_b32 s28, s12
    s_mov_b32 s29, s13
    s_mov_b32 s30, {H_SIZE}
    s_mov_b32 s31, 0x20000
    s_mov_b32 s{sL2e}, {LOG2E:#x}
    v_lshlrev_b32 v{vSa}, 4, v{vSa}
    s_add_u32 s{sO}, s{sO}, {ST}
    v_and_b32 v{vIa}, 15, v{vL}
    v_lshlrev_b32 v{vIa}, 7, v{vIa}
    s_lshl_b32 s{sIa}, s{sRB}, 11
    s_add_u32 s{sIa}, s{sIa}, {ST}
    v_lshrrev_b32 v{vT}, 3, v{vL}
    v_lshlrev_b32 v{vT}, 10, v{vT}
    v_bfe_u32 v{vT2}, v{vL}, 4, 1
    v_lshlrev_b32 v{vT3}, 2, v{vT2}
    v_xor_b32 v{vT3}, v{vT3}, v{vL}
    v_and_b32 v{vT3}, 7, v{vT3}
    v_lshl_add_u32 v{vW2o}, v{vT3}, 4, v{vT}
    v_lshrrev_b32 v{vT}, 5, v{vL}
    v_bfe_u32 v{vT3}, v{vL}, 2, 2
    v_lshl_add_u32 v{vT}, v{vT}, 2, v{vT3}
    v_lshlrev_b32 v{vT}, 7, v{vT}
    v_lshl_add_u32 v{vT}, v{vT2}, 5, v{vT}
    v_bfe_u32 v{vT2}, v{vL}, 3, 1
    v_lshl_add_u32 v{vT}, v{vT2}, 6, v{vT}
    v_and_b32 v{vT2}, 3, v{vL}
    v_lshl_add_u32 v{vT}, v{vT2}, 3, v{vT}
    s_lshl_b32 s{sT3}, s{sW}, 5
    s_and_b32 s{sT3}, s{sT3}, 64
    v_xor_b32 v{vT}, s{sT3}, v{vT}
    v_xor_b32 v{vT2}, 64, v{vT}
    v_add_u32 v{vW2r}, s{sLA}, v{vT}
    v_add_u32 v{vW2r+1}, s{sLA}, v{vT2}
    v_add_u32 v{vW2r+2}, s{sLB}, v{vT}
    v_add_u32 v{vW2r+3}, s{sLB}, v{vT2}
    s_and_b32 s{sT3}, s{sP}, 1
    s_lshl1_add_u32 s{sRT}, s{sRB}, s{sT3}
    s_lshr_b32 s{sCG}, s{sM}, 1
    s_mul_i32 s{sW2}, s{sW}, {352*1024}
    s_lshl_b32 s{sT}, s{sCG}, 7
    s_add_u32 s{sW2}, s{sW2}, s{sT}
    s_mul_i32 s{sHL}, s{sRT}, {2*HROW}
    s_mul_i32 s{sT}, s{sW}, {22*1024}
    s_add_u32 s{sHL}, s{sHL}, s{sT}
    s_lshl_b32 s{sT3}, s{sW}, 8
    s_add_u32 s{sT3}, s{sT3}, {32768+12288}
    v_lshl_add_u32 v{vT2}, v{vL}, 2, s{sT3}
    s_add_u32 s{sT3}, s{sLB}, 12288
    v_lshl_add_u32 v{vT}, v{vL}, 2, s{sT3}
    s_lshl2_add_u32 s{sT3}, s{sRB}, s{sW}
    s_mul_i32 s{sT3}, s{sT3}, {HROW}
    s_mul_i32 s{sHS}, s{sM}, 6144
    s_add_u32 s{sHS}, s{sHS}, s{sT3}
    s_add_u32 s{sHS2}, s{sHS}, 4096
    s_cmp_ge_u32 s{sM}, 14 | s_cselect_b32 s{sHS2}, {H_SIZE}, s{sHS2}
    s_lshr_b32 s{sT3}, s{sW}, 1
    s_lshl1_add_u32 s{sT3}, s{sRB}, s{sT3}
    s_lshl4_add_u32 s{sT3}, s{sT3}, s{sM}
    s_and_b32 s{sFl}, s{sW}, 1
    s_lshl1_add_u32 s{sFl}, s{sT3}, s{sFl}
    s_lshl_b32 s{sFl}, s{sFl}, 3
    s_add_u32 s{sFl}, s{sFl}, {FH}
    s_cmp_eq_u32 s{sM}, 15 | s_cselect_b32 s{sHS}, {H_SIZE}, s{sHS} | s_cselect_b32 s{sFl}, {WS_SIZE}, s{sFl}
    """.strip().split("\n")]
    def fill(n):
        for _ in range(n):
            if FILL: a(FILL.pop(0).replace(" | ", "\n"))

    GROUPS = [("A", 0, 4), ("B", 0, 3), ("A", 1, 4), ("B", 2, 3), ("B", 3, 3), ("B", 1, 3)]
    LOC = []
    for rg, sl, n in GROUPS:
        for k in range(n):
            LOC.append((rg, sl * (16384 if rg == "A" else 12288) + k * 1024))
    ploc = lambda p: p % 20 if p < 40 else p - 40
    pn = [0]
    def p_next():
        p = pn[0]; pn[0] += 1
        rg, off = LOC[ploc(p)]
        a(f"s_add_u32 m0, s{sLA if rg == 'A' else sLB}, {off}")
        a(f"s_add_u32 s{sT3}, s{sW2}, {8192*p}")
        a(f"buffer_load_dwordx4 v{vW2o}, {W2}, s{sT3} offen lds", f"P{p}")

    wb = lambda s_: WF + 12 * (s_ % 3)
    def tr_pair(s_, ft):
        c, i = divmod(s_, 4)
        for e in range(2):
            a(f"ds_read_b64_tr_b16 {vr(wb(s_)+4*ft+2*e,2)}, v{vWr+i} offset:{(c&3)*12288+e*768+ft*64}", f"wf{s_}")
    def rd_x(c, i):
        a(f"ds_read_b128 {vr(XF+16*(c&1)+4*i,4)}, v{vXr+i} offset:{(c&1)*16384}", f"xf{c}_{i}")
    def open_chunk(c):
        if "cs" in OPT and c in (3, 5): stamp(True)
        a.wait(vm=f"C{c}")
        if c == 0 or ("cs" in OPT and c in (3, 5)): stamp(True)
        a("s_barrier")
        if "cs" in OPT and c: stamp(True)

    open_chunk(0)
    for i in range(4): rd_x(0, i)
    for ft in range(3): tr_pair(0, ft)
    for b in range(2):
        for e in range(2):
            a(f"ds_read_b64_tr_b16 {vr(LF+4*b+2*e,2)}, v{vSr} offset:{128*b+4*SROW*e}", "tr")
    for ft in range(3): tr_pair(1, ft)
    PS = int(OPT.get("ps", 26))
    def bg_op(c, i, ft):
        if i < 2 and c + 2 <= 7:
            if (i, ft) in ((0, 0), (0, 1), (0, 2), (1, 1)): issue(c + 2, 1)
        elif i >= 2 and c + 3 <= 7:
            if (i, ft) in ((2, 0), (2, 2), (3, 1)): issue(c + 3, 1)
        elif 4 * c + i >= PS and ft != 1:
            lim = 0 if c < 6 else 7 if c == 6 else 11 if i < 2 else 17
            if pn[0] < lim: p_next()
    for c in range(8):
        a.comment(f"---- GEMM1 chunk {c}")
        for i in range(4):
            s_ = 4 * c + i
            if i == 2:
                if c < 7: open_chunk(c + 1)
                else:
                    a.wait(lg=0)
                    a("s_barrier")
            a.wait(lg=(f"xf{c}_3", f"wf{s_}"))
            for ft in range(3):
                cc = "0" if s_ == 0 else vr(ACC1+16*ft, 16)
                a(f"v_mfma_f32_32x32x16_bf16 {vr(ACC1+16*ft,16)}, {vr(wb(s_)+4*ft,4)}, {vr(XF+16*(c&1)+4*i,4)}, {cc}")
                if i == 2 and c < 7:
                    if ft == 0: rd_x(c + 1, 0)
                    rd_x(c + 1, ft + 1)
                if s_ + 2 < 32: tr_pair(s_ + 2, ft)
                if s_ == 30:
                    for k in range(2):
                        a(f"ds_read2st64_b32 {vr(CSF+4*ft+2*k,2)}, v{vT} offset0:{4*ft+2*k} offset1:{4*ft+2*k+1}", "csf")
                if s_ == 0 and ft == 0:
                    a.wait(lg="tr")
                    for b in range(2):
                        a(f"buffer_store_dwordx4 {vr(LF+4*b,4)}, v{vL16}, {WS}, s{sXn} offen offset:{1024*b} sc1", "xn")
                if s_ == 6 and ft == 1:
                    assert "xn" not in a.vm
                    a(f"""
                    s_cmp_eq_u32 s{sTag}, 0
                    s_cbranch_scc1 G_tagslow
                    G_tagok:
                    v_mov_b32 v{LG+2}, s{sTag}
                    v_mov_b32 v{LG+3}, s{sTag+1}
                    s_mov_b64 exec, 3
                    buffer_store_dwordx4 {vr(LG,4)}, v{vL16}, {WS}, s{sSt} offen sc1
                    s_mov_b64 exec, 1
                    buffer_store_dwordx2 {vr(LG+2,2)}, off, {WS}, s{sFx} sc1
                    s_mov_b64 exec, -1
                    v_mov_b32 v{vNon}, s{sTag}
                    v_mov_b32 v{vNon+1}, s{sTag+1}
                    """)
                if i == 0:
                    a(f"v_mfma_f32_32x32x16_bf16 {vr(CSA+16*ft,16)}, {vr(HALF,4)}, {vr(wb(s_)+4*ft,4)}, {'0' if c == 0 else vr(CSA+16*ft,16)}")
                bg_op(c, i, ft)
                if s_ >= 3: fill(3 if i in (0, 3) else 1)
                if s_ == 29:
                    a(f"v_cvt_pk_bf16_f32 v{CSF+ft}, v{CSA+16*ft}, v{CSA+16*ft}")
                    a(f"v_lshlrev_b32 v{CSF+ft}, 16, v{CSF+ft}")
                    a(f"v_sub_f32 v{CSF+ft}, v{CSA+16*ft}, v{CSF+ft}")
                    a(f"v_cvt_pk_bf16_f32 v{vCs+ft}, v{CSA+16*ft}, v{CSF+ft}")
                    for k in range(2):
                        a(f"ds_write2st64_b32 v{vT2}, v{vCs+ft}, v{vCs+ft} offset0:{24*k+4*ft} offset1:{24*k+12+4*ft}", "csw")
            if s_ == 22:
                assert not FILL
                a(f"buffer_load_dwordx4 {vr(vSt,4)}, v{vSa}, {WS}, s{sO} offen sc1", "st")
                a(f"buffer_load_dwordx4 {vr(vId,4)}, v{vIa}, {WS}, s{sIa} offen sc1", "st")
            if s_ == 30:
                a.wait(vm="st")
                a(f"""
                s_mov_b32 s{sCnt}, 0
                G_stchk:
                v_cmp_ne_u64 vcc, {sr(sTag,2)}, {vr(vSt+2,2)}
                v_cmp_ne_u64 s[88:89], {sr(sTag,2)}, {vr(vId+2,2)}
                v_and_b32 v{vId+1}, 0xffff, v{vId}
                v_cmp_ne_u32 s[90:91], s{sXcc}, v{vId+1}
                s_or_b64 vcc, vcc, s[88:89]
                s_cbranch_vccnz G_stslow
                G_stok:
                """)
            if s_ == 31:
                a(f"""
                v_lshrrev_b32 v{vNeg+1}, 16, v{vSt}
                v_bfi_b32 v{vNeg}, s{sMask}, v{vSt}, v{vNeg+1}
                v_bfi_b32 v{vNeg+2}, s{sMask}, v{vSt}, v{vNeg+1}
                v_bfi_b32 v{vNeg+3}, s{sMask}, v{vSt}, v{vNeg+1}
                v_bfi_b32 v{vNeg+1}, s{sMask}, v{vSt}, v{vNeg+1}
                v_mul_f32 v{vC2}, s{sL2e}, v{vSt+1}
                s_or_b32 s{sFar}, s90, {1 if 'forcefar' in OPT else 's91'}
                """)
    assert not any(ops.values())
    stamp()
    a.wait(lg="csf")
    for ft in range(3):
        a(f"v_mfma_f32_32x32x16_bf16 {vr(ACC1+16*ft,16)}, {vr(CSF+4*ft,4)}, {vr(vNeg,4)}, {vr(ACC1+16*ft,16)}")
    E1, OB = 208, 224
    NPE = int(OPT.get("npe", 32))
    LAG = int(OPT.get("lag", 14))
    def tr_w2(step, tag):
        base = STASH + 8 * (step % 12)
        for j in range(2):
            for e in range(2):
                rg, off = LOC[ploc(2 * step + e)]
                a(f"ds_read_b64_tr_b16 {vr(base+4*j+2*e,2)}, v{vW2r+(0 if rg=='A' else 2)+j} offset:{off}", tag)
    sn = [0]
    def w2_next():
        p = pn[0]
        if p >= 20: a.wait(lg=f"S{(p-20)//2}")
        p_next()
        while sn[0] < 12 and 2 * sn[0] + 1 + LAG <= p:
            a.wait(vm=f"P{2*sn[0]+1}")
            tr_w2(sn[0], f"S{sn[0]}"); sn[0] += 1
    assert LAG <= 18
    w2_next(); w2_next()
    for ft in range(3):
        for j in range(2):
            A0 = ACC1 + 16 * ft + 8 * j
            T0 = E1 + 8 * j
            for k in range(8): a(f"v_mul_f32 v{A0+k}, v{vC2}, v{A0+k}")
            for k in range(8):
                a(f"v_exp_f32_e64 v{T0+k}, -v{A0+k}")
                if k == 3 and pn[0] < NPE: w2_next()
            for k in range(8): a(f"v_fma_f32 v{T0+k}, v{T0+k}, s{sL2e}, s{sL2e}")
            if pn[0] < NPE: w2_next()
            for k in range(8): a(f"v_rcp_f32 v{T0+k}, v{T0+k}")
            if pn[0] < NPE: w2_next()
            for k in range(8): a(f"v_mul_f32 v{A0+k}, v{A0+k}, v{T0+k}")
            for k in range(0, 8, 2): a(f"v_cvt_pk_bf16_f32 v{OB+8*ft+4*j+k//2}, v{A0+k}, v{A0+k+1}")
            a(f"buffer_store_dwordx4 {vr(OB+8*ft+4*j,4)}, v{vL16}, {HS}, s{sHS if ft < 2 else sHS2} offen offset:{1024*((2*ft+j)&3)}", "hs")
    stamp()
    NPD = int(OPT.get("npd", 4))
    for _ in range(NPD):
        if pn[0] < 44: w2_next()
    a(f"s_cmp_lg_u32 s{sFar}, 0\ns_cbranch_scc1 G_far")
    a.wait(vm="hs")
    stamp()
    a(f"s_mov_b64 exec, 1\nbuffer_store_dwordx2 {vr(vNon,2)}, off, {WS}, s{sFl}\nG_pub:\ns_mov_b64 exec, -1")
    while pn[0] < 44: w2_next()
    assert sn[0] == 12
    vH, vF, vXg, vO, vY, vXl, vR, vP = 2, 4, 5, 6, 7, 8, 13, 10
    YB = lambda k: (176 + 4 * k) if k < 4 else (240 + 4 * (k - 4))
    a(f"""
    s_lshl_b32 s{sRet}, s{sRT}, 8
    s_add_u32 s{sRet}, s{sRet}, {FH}
    s_lshl_b32 s{sT}, s{sW}, 3
    s_lshr_b32 s{sT2}, 0x160e0600, s{sT}
    s_and_b32 s{sT2}, s{sT2}, 0xff
    s_lshr_b32 s{sT}, 0x1d150f07, s{sT}
    s_and_b32 s{sT}, s{sT}, 0xff
    v_max_u32 v{vF}, s{sT2}, v{vL}
    v_min_u32 v{vF}, s{sT}, v{vF}
    v_lshlrev_b32 v{vF}, 3, v{vF}
    s_and_b32 s{sT}, s{sW}, 1
    s_mul_i32 s{sT2}, s{sT}, {HROW}
    v_add_u32 v{vH}, s{sT2}, v{vL16}
    s_sub_u32 s{sT2}, {HROW}, s{sT2}
    v_add_u32 v{vH+1}, s{sT2}, v{vL16}
    s_mov_b32 s{sCnt}, 0
    """)
    stamp()
    a("G_hpoll:")
    a.raw(f"  buffer_load_dwordx2 {vr(vP,2)}, v{vF}, {WS}, s{sRet} offen sc1")
    a(f"""
    s_add_u32 s{sCnt}, s{sCnt}, 1
    s_waitcnt vmcnt(0)
    v_cmp_ne_u64 vcc, {sr(sTag,2)}, {vr(vP,2)}
    s_cmp_lt_u32 s{sCnt}, {SPIN}
    s_cselect_b64 vcc, vcc, 0
    s_cbranch_vccnz G_hpoll
    """)
    a.vm = []
    stamp()
    if STAMPS: a(f"s_lshl_b32 s{sCnt}, s{sCnt}, 16\ns_add_u32 s97, s97, s{sCnt}")
    def h_load(i, j):
        if j == 0 and i and i % 4 == 0: a(f"s_add_u32 s{sHL}, s{sHL}, 4096")
        a(f"buffer_load_dwordx4 {vr(HB+8*(i%HD)+4*j,4)}, v{vH+j}, {HS}, s{sHL} offen offset:{1024*(i%4)} sc1", f"h{i}")
    NH0 = int(OPT.get("nh0", 4))
    for i in range(NH0): h_load(i, 0); h_load(i, 1)
    a(f"""
    s_lshl1_add_u32 s{sT2}, s{sRT}, s{sT}
    s_lshr_b32 s{sT}, s{sW}, 1
    s_lshl1_add_u32 s{sCnt}, s{sCG}, s{sT}
    s_lshl_b32 s{sO}, s{sT2}, 15
    s_lshl_b32 s{sT}, s{sCnt}, 6
    s_add_u32 s{sO}, s{sO}, s{sT}
    s_mul_i32 s{sY}, s{sCnt}, {16*GS}
    s_lshl_b32 s{sT}, s{sT2}, 8
    s_add_u32 s{sY}, s{sY}, s{sT}
    s_add_u32 s{sY}, s{sY}, {Y2}
    v_and_b32 v{vT}, 31, v{vL}
    v_lshrrev_b32 v{vT2}, 5, v{vL}
    v_lshlrev_b32 v{vO}, 10, v{vT}
    v_lshl_add_u32 v{vO}, v{vT2}, 4, v{vO}
    v_lshl_add_u32 v{vXl}, v{vT}, 6, s{sLA}
    v_lshl_add_u32 v{vXl}, v{vT2}, 3, v{vXl}
    v_lshrrev_b32 v{vY}, 1, v{vT}
    v_lshlrev_b32 v{vY}, 4, v{vY}
    v_mul_u32_u24 v{vT2}, {2*GS}, v{vT2}
    v_add_u32 v{vY}, v{vT2}, v{vY}
    v_lshrrev_b32 v{vXg}, 2, v{vL}
    v_lshlrev_b32 v{vXg}, 10, v{vXg}
    v_and_b32 v{vT}, 3, v{vL}
    v_lshl_add_u32 v{vXg}, v{vT}, 4, v{vXg}
    v_add_u32 v{vR}, s{sLB}, v{vL16}
    v_and_b32 v{vT}, 1, v{vL}
    v_cmp_eq_u32 s[88:89], 1, v{vT}
    """)
    for k in range(1, 4):
        a(f"s_xor_b32 s{sT}, s{sW}, {k}\ns_mulk_i32 s{sT}, 3072\ns_add_u32 s{sT}, s{sT}, 32768\nv_add_u32 v{vR+k}, s{sT}, v{vL16}")
    def y_loads(emit, ks=range(8)):
        for k in ks:
            emit(f"s_add_u32 s{sT2}, s{sY}, {(4*(k>>1)+(k&1))*GS}")
            emit(f"buffer_load_dwordx4 {vr(YB(k),4)}, v{vY}, {WS}, s{sT2} offen sc1")
    XR = 24
    hq = [(i, j) for i in range(NH0, 22) for j in range(2)]
    for i in range(22):
        a.wait(vm=f"h{i}", lg=(f"r{i}" if i >= 12 else 0 if i == 0 else None))
        if i == 0: stamp()
        sb = STASH + 8 * (i % 12)
        for k in range(4):
            jd, jt = k >> 1, k & 1
            ac = ACC2 + 16 * k
            a(f"v_mfma_f32_32x32x16_bf16 {vr(ac,16)}, {vr(sb+4*jd,4)}, {vr(HB+8*(i%HD)+4*jt,4)}, {'0' if i == 0 else vr(ac,16)}")
            if hq and hq[0][0] < i + HD and (k != 3 or hq[0][0] < i + HD - 1): h_load(*hq.pop(0))
            if k == 1 and 1 <= i and i + 11 < 22: tr_w2(i + 11, f"r{i+11}")
            if k == 2 and 15 <= i < 19: y_loads(lambda t: a(t, "yr"), [2 * (i - 15), 2 * (i - 15) + 1])
            if k == 0 and i == 15:
                a.wait(lg=0)
                a(f"s_mov_b32 m0, s{sLA}\ns_add_u32 s{sT2}, s{sO}, {16384-1024}")
                a(f"buffer_load_dwordx4 v{vXg}, {X}, s{sO} offen lds", "xr")
                a(f"buffer_load_dwordx4 v{vXg}, {X}, s{sT2} offen offset:1024 lds", "xr")
    assert not hq
    stamp()
    a.wait(vm="xr")
    for q in range(4): a(f"ds_read_b64 {vr(XR+2*q,2)}, v{vXl} offset:{16*q}", "xl")
    for k in range(1, 4):
        for q in range(4):
            idx = (k - 1) * 4 + q
            a(f"ds_write_b128 v{vR}, {vr(ACC2+16*k+4*q,4)} offset:{(idx//3)*12288+(idx%3)*1024}", "rw")
    a.wait(vm="yr")
    a(f"s_mov_b32 s{sCnt}, 0\nG_ychk:")
    a(f"v_cmp_ne_u64 vcc, {sr(sTag,2)}, {vr(YB(0)+2,2)}")
    for k in range(1, 8):
        a(f"v_cmp_ne_u64 s[{90+2*(k&1)}:{91+2*(k&1)}], {sr(sTag,2)}, {vr(YB(k)+2,2)}")
        if k > 1: a(f"s_or_b64 vcc, vcc, s[{90+2*((k-1)&1)}:{91+2*((k-1)&1)}]")
    a("s_or_b64 vcc, vcc, s[92:93]")
    a("s_cbranch_vccnz G_yslow\nG_yok:")
    for k in range(8): a(f"v_cndmask_b32 v{YB(k)}, v{YB(k)}, v{YB(k)+1}, s[88:89]")
    for k in range(8): a(f"v_lshlrev_b32 v{YB(k)+2}, 16, v{YB(k)}\nv_and_b32 v{YB(k)+3}, s{sMask}, v{YB(k)}")
    a.wait(lg="xl")
    for k in range(8): a(f"v_lshlrev_b32 v{YB(k)}, 16, v{XR+k}\nv_and_b32 v{YB(k)+1}, s{sMask}, v{XR+k}")
    a.wait(lg=0)
    a("s_barrier")
    RB = STASH
    for k in range(1, 4):
        for q in range(4):
            idx = (k - 1) * 4 + q
            a(f"ds_read_b128 {vr(RB+16*(k-1)+4*q,4)}, v{vR+k} offset:{(idx//3)*12288+(idx%3)*1024}", f"rr{k}")
    for o in (2, 0):
        for k in range(8):
            a(f"v_pk_add_f32 {vr(ACC2+2*k,2)}, {vr(ACC2+2*k,2)}, {vr(YB(k)+o,2)}")
    for k in range(1, 4):
        a.wait(lg=f"rr{k}")
        for j in range(8):
            a(f"v_pk_add_f32 {vr(ACC2+2*j,2)}, {vr(ACC2+2*j,2)}, {vr(RB+16*(k-1)+2*j,2)}")
    for k in range(8):
        a(f"v_cvt_pk_bf16_f32 v{XR+k}, v{ACC2+2*k}, v{ACC2+2*k+1}")
    for q in range(2):
        a(f"v_permlane32_swap_b32 v{XR+4*q}, v{XR+4*q+2}\nv_permlane32_swap_b32 v{XR+4*q+1}, v{XR+4*q+3}")
        a(f"buffer_store_dwordx4 {vr(XR+4*q,4)}, v{vO}, {OUT}, s{sO} offen offset:{32*q} {OPT.get('osf', '').replace('_', ' ')}")
    stamp()
    if STAMPS:
        a("s_waitcnt vmcnt(0)"); stamp()
    if "padto" in OPT:
        a(f"G_pad:\ns_memrealtime s[98:99]\ns_waitcnt lgkmcnt(0)\ns_sub_u32 s96, s98, s{sTag}\ns_cmp_lt_u32 s96, {OPT['padto']}\ns_cbranch_scc1 G_pad")
    if "dbg" in OPT:
        n = nstamp[0]
        a(f"s_memrealtime s[98:99]\ns_waitcnt lgkmcnt(0)\ns_lshl2_add_u32 s96, s2, s{sW}\ns_cmp_lg_u32 s96, {4*int(OPT['dbg'])}\ns_cbranch_scc1 G_nodbg\ns_mov_b64 exec, 1")
        for i in range(1, n):
            a(f"s_sub_u32 s96, s{60+2*i}, s60\nv_mov_b32 v{vT}, s96\nbuffer_store_dword v{vT}, off, {DBG}, 0 offset:{4+4*i}")
        a(f"s_sub_u32 s96, s98, s{sTag}\nv_mov_b32 v{vT}, s96\nbuffer_store_dword v{vT}, off, {DBG}, 0 offset:60")
        a("G_nodbg:")
    stamp_flush(WS, f"s{sW}", vT)
    a("s_endpgm")
    tag_slow("G", sTag, 24, [64, 192], vNon, sCnt)
    a.raw(f"""G_stslow:
{retry_mark(4)}  s_add_u32 s{sCnt}, s{sCnt}, 1
  s_cmp_ge_u32 s{sCnt}, {SPIN}
  s_cbranch_scc1 G_stok
  buffer_load_dwordx4 {vr(vSt,4)}, v{vSa}, {WS}, s{sO} offen sc1
  buffer_load_dwordx4 {vr(vId,4)}, v{vIa}, {WS}, s{sIa} offen sc1
  s_waitcnt vmcnt(0)
  s_branch G_stchk
G_yslow:
{retry_mark(8)}  s_add_u32 s{sCnt}, s{sCnt}, 1
  s_cmp_ge_u32 s{sCnt}, {1 if "nossm" in OPT else SPIN}
  s_cbranch_scc1 G_yok""")
    y_loads(lambda t: a.raw("  " + t))
    a.raw("  s_waitcnt vmcnt(0)\n  s_branch G_ychk")
    a.hist = []
    a("G_far:\ns_waitcnt vmcnt(0)")
    for k in range(6):
        a(f"buffer_store_dwordx4 {vr(OB+4*k,4)}, v{vL16}, {HS}, s{sHS if k < 4 else sHS2} offen offset:{1024*(k&3)} sc1")
    a(f"s_waitcnt vmcnt(0)\ns_mov_b64 exec, 1\nbuffer_store_dwordx2 {vr(vNon,2)}, off, {WS}, s{sFl} sc1\ns_branch G_pub")
    a.vm = []; a.lg = []

def ssm_role():
    DBG, WS = "s[8:11]", "s[12:15]"
    sQ, sW, sE, sPar, sT, sT2, sCnt, sOnes, sMask = 3, 4, 5, 6, 7, 34, 35, 40, 41
    sLdt, sD, sTag, sU = 42, 43, 36, 38
    sMean, sNeg, sR = 44, 48, 52
    vL, vXr, vF, vC = 1, 2, 10, 26
    vPar, vA, vB = 44, 50, 51
    vT, vT2, vT3, vT4 = 54, 55, 56, 57
    vNon, vL16, vTab = 42, 60, 61
    UB0, USZ, K0A, TAB, SROW = 33280, 4576, 42432, 45056, 1088
    a.hist = []; a.vm = []; a.lg = []
    a(f"""
    s_load_dwordx16 s[16:31], s[0:1], 0
    s_load_dwordx2 s[8:9], s[0:1], 104
    s_load_dwordx2 s[32:33], s[0:1], 64
    s_load_dwordx2 s[12:13], s[0:1], 112
    s_load_dwordx2 s[92:93], s[0:1], 88
    s_and_b32 s{sQ}, s2, 7
    s_lshl_b32 s{sQ}, s{sQ}, 5
    s_lshr_b32 s{sT}, s2, 3
    s_add_u32 s{sQ}, s{sQ}, s{sT}
    v_lshrrev_b32 v{vT}, 6, v0
    v_and_b32 v{vL}, 63, v0
    s_lshl_b32 s{sT}, s{sQ}, 9
    v_readfirstlane_b32 s{sW}, v{vT}
    v_lshlrev_b32 v{vL16}, 4, v{vL}
    v_lshl_add_u32 v{vT3}, v0, 1, s{sT}
    s_lshl_b32 s{sT}, s{sQ}, 2
    """)
    srd(8, 256)
    if STAMPS: a("s_memrealtime s[100:101]\ns_mov_b32 s97, 0")
    a("s_waitcnt lgkmcnt(0)")
    stamp()
    if "nossm" in OPT: a("s_endpgm")
    for k in range(6):
        a(f"global_load_ushort v{vPar+k}, v{vT3}, s[{18+2*k}:{19+2*k}]", "par")
    a(f"s_load_dword s{sLdt}, s[30:31], s{sT}\ns_load_dword s{sD}, s[32:33], s{sT}")
    srd(12, WS_SIZE)
    a(f"""
    s_lshr_b32 s{sE}, s{sW}, 1
    s_and_b32 s{sPar}, s{sW}, 1
    s_mov_b32 s{sMask}, 0xffff0000
    s_mul_i32 s{sT2}, s{sE}, {USZ}
    s_add_u32 s{sT2}, s{sT2}, {UB0}
    v_lshl_add_u32 v{vT}, v{vL}, 3, s{sT2}
    v_mov_b32 v{vT3}, 0
    v_mov_b32 v{vT4}, 0
    ds_write_b64 v{vT}, {vr(vT3,2)}
    s_mul_i32 s{sT2}, s{sW}, 8704
    s_add_u32 s{sT2}, s{sT2}, {TAB}
    v_add_u32 v{vTab}, s{sT2}, v{vL16}
    """)
    vOA, vOG, vPb = 50, 51, 59
    a(f"""
    v_and_b32 v{vT}, 15, v{vL}
    v_lshlrev_b32 v{vOG}, 3, v{vT}
    v_lshlrev_b32 v{vT2}, 2, v{vT}
    v_add_u32 v{vT2}, {512-36}, v{vT2}
    v_cmp_lt_u32 vcc, 8, v{vT}
    v_add_u32 v{vT3}, {1024-96}, v{vOG}
    v_add_u32 v{vT4}, {1536-112}, v{vOG}
    v_cndmask_b32 v{vOA}, v{vT}, v{vT2}, vcc
    v_cmp_lt_u32 vcc, 11, v{vT}
    v_cmp_lt_u32 s[56:57], 13, v{vT}
    v_cvt_f32_u32 v{vOG}, v{vOG}
    v_cndmask_b32 v{vOA}, v{vOA}, v{vT3}, vcc
    v_cndmask_b32 v{vOA}, v{vOA}, v{vT4}, s[56:57]
    v_cvt_f32_u32 v{vOA}, v{vOA}
    s_mul_i32 s{sT2}, s{sW}, 8704
    s_add_u32 s{sT2}, s{sT2}, {TAB}
    v_lshrrev_b32 v{vT}, 4, v{vL}
    v_lshl_add_u32 v{vPb}, v{vT}, 6, s{sT2}
    """)
    def k_mfma(s_):
        F = 152 + 16 * (s_ & 1)
        for hh in range(2):
            for gt in range(2):
                d = 200 + 8 * hh + 4 * gt
                a(f"v_mfma_f32_16x16x32_bf16 {vr(d,4)}, {vr(F+4*hh,4)}, {vr(F+8+4*gt,4)}, {'0' if s_ == 0 else vr(d,4)}")
    a("s_waitcnt lgkmcnt(0)")
    a.lg = []
    PR, PB, FR, KT, KA = 64, 72, 152, 200, 216
    sXf, vXf = 58, 31
    a(f"""
    s_lshl_b32 s{sT}, s{sLdt}, 16
    s_and_b32 s{sT2}, s{sLdt}, s{sMask}
    s_cmp_eq_u32 s{sE}, 0
    s_cselect_b32 s{sT}, s{sT}, s{sT2}
    v_mov_b32 v{vT}, {LOG2E:#x}
    v_mul_f32 v{vT}, s{sT}, v{vT}
    v_exp_f32 v{vT}, v{vT}
    """)
    a.wait(vm="par")
    stamp()
    for k in range(6): a(f"v_lshlrev_b32 v{vPar+k}, 16, v{vPar+k}")
    TM = 136
    a(f"""
    v_cvt_pk_bf16_f32 v{vT}, v{vT}, v{vT}
    v_lshlrev_b32 v{vT}, 16, v{vT}
    v_mul_f32 v{PR}, v{vPar}, v{vT}
    v_mul_f32 v{PR+1}, v{vPar+1}, v{vT}
    v_mul_f32 v{vPar+2}, v{vPar+2}, v{vT}
    v_mul_f32 v{vPar+3}, v{vPar+3}, v{vT}
    v_mul_f32 v{PR}, {LOG2E:#x}, v{PR}
    v_mul_f32 v{PR+1}, 0.15915494, v{PR+1}
    """)
    cmul(PR + 2, vPar + 4, vPar + 2)
    for i, l in enumerate((128, 256)):
        a(f"v_mul_f32 v{TM+4*i}, {fl(l)}, v{PR}\nv_mul_f32 v{TM+4*i+1}, {fl(l)}, v{PR+1}")
    for i in range(2): a(f"v_fract_f32 v{TM+4*i+1}, v{TM+4*i+1}\nv_exp_f32 v{TM+4*i}, v{TM+4*i}")
    for i in range(2): a(f"v_cos_f32 v{TM+4*i+2}, v{TM+4*i+1}\nv_sin_f32 v{TM+4*i+3}, v{TM+4*i+1}")
    a(f"ds_write_b128 v{vTab}, {vr(PR,4)}", "pw")
    a(f"""
    v_mul_f32 v{TM+2}, v{TM+2}, v{TM}
    v_mul_f32 v{TM+3}, v{TM+3}, v{TM}
    v_mul_f32 v{PR+6}, v{TM+6}, v{TM+4}
    v_mul_f32_e64 v{PR+7}, -v{TM+7}, v{TM+4}
    """)
    cmul(PR + 4, PR + 2, TM + 2)
    a(f"ds_write_b128 v{vTab}, {vr(PR+4,4)} offset:1024", "pw")
    def p_reads(s_):
        for j in range(4):
            for k in range(2):
                a(f"ds_read_b128 {vr(PB+32*(s_&1)+8*j+4*k,4)}, v{vPb} offset:{256*s_+16*j+1024*k}", f"pb{s_}")
    p_reads(0)
    stamp()
    for s_ in range(4):
        if s_ < 3: p_reads(s_ + 1)
        a.wait(lg=f"pb{s_}")
        if s_ == 3: a(f"s_load_dwordx2 {sr(sTag,2)}, s[8:9], 128")
        F = FR + 16 * (s_ & 1)
        for jp in range(2):
            js = (2 * jp, 2 * jp + 1)
            P = lambda j: PB + 32 * (s_ & 1) + 8 * j
            T = lambda j, w_: TM + 8 * (j & 1) + 4 * w_
            for j in js:
                for w_, o in enumerate((vOA, vOG)):
                    a(f"v_mul_f32 v{T(j,w_)}, v{P(j)}, v{o}\nv_mul_f32 v{T(j,w_)+1}, v{P(j)+1}, v{o}")
            for j in js:
                for w_ in range(2):
                    a(f"v_fract_f32 v{T(j,w_)+1}, v{T(j,w_)+1}\nv_exp_f32 v{T(j,w_)}, v{T(j,w_)}")
            for j in js:
                for w_ in range(2):
                    a(f"v_cos_f32 v{T(j,w_)+2}, v{T(j,w_)+1}\nv_sin_f32 v{T(j,w_)+3}, v{T(j,w_)+1}")
            for j in js:
                a(f"v_mul_f32 v{T(j,0)+2}, v{T(j,0)+2}, v{T(j,0)}\nv_mul_f32_e64 v{T(j,0)+3}, -v{T(j,0)+3}, v{T(j,0)}")
                a(f"v_mul_f32 v{T(j,1)+2}, v{T(j,1)+2}, v{T(j,1)}\nv_mul_f32 v{T(j,1)+3}, v{T(j,1)+3}, v{T(j,1)}")
            for j in js:
                a(f"v_cvt_pk_bf16_f32 v{F+j}, v{T(j,0)+2}, v{T(j,0)+3}")
                cmul(T(j, 0), T(j, 0) + 2, P(j) + 6)
                cmul(T(j, 1), T(j, 1) + 2, P(j) + 2)
                a(f"v_cvt_pk_bf16_f32 v{F+4+j}, v{T(j,0)}, v{T(j,0)+1}")
                cmul(T(j, 0) + 2, T(j, 1) + 2, P(j) + 4)
                a(f"v_cvt_pk_bf16_f32 v{F+8+j}, v{T(j,1)}, v{T(j,1)+1}")
                a(f"v_cvt_pk_bf16_f32 v{F+12+j}, v{T(j,0)+2}, v{T(j,0)+3}")
            if jp == 0 and s_ > 0: k_mfma(s_ - 1)
        if str(s_) in OPT.get("pf", "9"):
            half = OPT.get("pf", "9").index(str(s_))
            a(f"""
            s_lshr_b32 s{sT}, s2, 3
            s_mul_i32 s{sT}, s{sT}, 43
            s_mul_i32 s{sT2}, s{sW}, 11
            v_lshrrev_b32 v{vT}, 2, v{vL}
            v_min_u32 v{vT}, 10, v{vT}
            v_add_u32 v{vT}, s{sT2}, v{vT}
            v_min_u32 v{vT}, 42, v{vT}
            v_add_u32 v{vT}, s{sT}, v{vT}
            v_and_b32 v{vT2}, 3, v{vL}
            v_lshlrev_b32 v{vT2}, 7, v{vT2}
            v_lshl_add_u32 v{vT}, v{vT}, 10, v{vT2}
            """)
            if M2 == "42": a(f"s_and_b32 s{sT}, s2, 1\ns_lshl_b32 s{sT}, s{sT}, 9\nv_add_u32 v{vT}, s{sT}, v{vT}")
            a("s_setprio 3")
            a(f"global_load_dword v30, v{vT}, s[92:93] offset:{0 if M2 == '42' else 512*half}", "pf")
            a("s_setprio 0")
        if s_ == 1: stamp()
    stamp()
    vUg, vUw, vU = 62, 63, 10
    a(f"""
    v_lshrrev_b32 v{vT3}, 1, v{vL}
    v_and_b32 v{vT2}, 1, v{vL}
    v_mul_u32_u24 v{vUg}, {XS}, v{vT3}
    v_lshl_add_u32 v{vUg}, v{vT2}, 4, v{vUg}
    v_mul_u32_u24 v{vUw}, {USZ}, v{vT2}
    v_lshl_add_u32 v{vUw}, v{vT3}, 4, v{vUw}
    s_lshl_b32 s{sT}, s{sW}, 10
    s_add_u32 s{sT}, s{sT}, {UB0+480}
    v_add_u32 v{vUw}, s{sT}, v{vUw}
    s_mul_i32 s{sU}, s{sW}, {64*XS}
    s_lshl_b32 s{sT}, s{sQ}, 5
    s_add_u32 s{sU}, s{sU}, s{sT}
    s_add_u32 s{sU}, s{sU}, {XNP}
    s_add_u32 s{sU+1}, s{sU}, {32*XS}
    s_mov_b32 s{sCnt}, 0
    """)
    k_mfma(3)
    vK = 80
    a(f"""
    v_lshrrev_b32 v{vT2}, 4, v{vL}
    v_and_b32 v{vT3}, 15, v{vL}
    v_lshlrev_b32 v{vT3}, 4, v{vT3}
    v_lshl_add_u32 v{vT2}, v{vT2}, 10, v{vT3}
    s_mul_i32 s{sT2}, s{sW}, 8704
    s_add_u32 s{sT2}, s{sT2}, {TAB+2048}
    v_add_u32 v{vT2}, s{sT2}, v{vT2}
    s_mul_i32 s{sT}, s{sE}, {2*8704}
    s_add_u32 s{sT}, s{sT}, {TAB+2048}
    v_add_u32 v{vT3}, s{sT}, v{vL16}
    """)
    for t in range(4): a(f"ds_write_b128 v{vT2}, {vr(KT+4*t,4)} offset:{256*t}")
    a(f"""
    s_mul_i32 s{sT}, s{sE}, 16640
    s_lshl_b32 s{sT2}, s{sPar}, 11
    s_add_u32 s{sT2}, s{sT2}, s{sT}
    s_add_u32 s{sT2}, s{sT2}, 32
    v_add_u32 v{vK}, s{sT2}, v{vL16}
    v_bfe_u32 v{vT}, v{vL}, 3, 2
    v_mul_u32_u24 v{vT}, 4160, v{vT}
    v_and_b32 v{vT4}, 7, v{vL}
    v_lshl_add_u32 v{vT}, v{vT4}, 2, v{vT}
    v_add_u32 v{vT}, s{sT}, v{vT}
    v_and_b32 v{vT4}, 1, v{vL}
    v_cmp_eq_u32 vcc, 1, v{vT4}
    v_cmp_le_u32 s[56:57], 32, v{vL}
    """)
    stamp()
    a("s_waitcnt lgkmcnt(0)\ns_barrier")
    stamp()
    a(f"""
    s_lshr_b32 s{sXf}, s{sQ}, 6
    s_lshl_b32 s{sXf}, s{sXf}, 11
    s_lshl_b32 s{sT2}, s{sW}, 9
    s_add_u32 s{sXf}, s{sXf}, s{sT2}
    s_add_u32 s{sXf}, s{sXf}, {FX}
    v_lshlrev_b32 v{vXf}, 3, v{vL}
    s_setprio 3
    """)
    a(f"buffer_load_dwordx2 {vr(vXf+1,2)}, v{vXf}, {WS}, s{sXf} offen sc1", "xf")
    a("s_setprio 0")
    a(f"s_cmp_lg_u32 s{sPar}, 0\ns_cbranch_scc1 S_par1")
    KP = 64
    PK = 88
    K = lambda i: KA + i
    def packs(run, k):
        for cp in range(4):
            for j in range(4): a(f"v_cvt_pk_bf16_f32 v{PK+16*run+4*cp+j}, v{k[cp+2*j]}, v{k[cp+2*j+1]}")
            a(f"ds_write_b128 v{vK}, {vr(PK+16*run+4*cp,4)} offset:{4160*cp+1024*run}")
    hist0 = list(a.hist)
    for q in range(3):
        a(f"ds_read_b128 {vr(KA+4*q,4)}, v{vT3} offset:{1024*q}\nds_read_b128 {vr(KP+4*q,4)}, v{vT3} offset:{8704+1024*q}")
    a(f"""
    v_mov_b32 v{vT4}, 0
    ds_write_b32 v{vT}, v{vT4}
    s_lshl_b32 s{sT2}, s{sE}, 2
    s_add_u32 s{sT2}, s{sT2}, {K0A}
    v_mov_b32 v{vT2}, s{sT2}
    v_mov_b32 v{vT3}, s{sT}
    s_waitcnt lgkmcnt(1)
    """)
    for j in range(12): a(f"v_add_f32 v{KA+j}, v{KA+j}, v{KP+j}")
    a(f"""
    v_cndmask_b32 v{K(1)}, v{K(1)}, v{K(0)}, s[56:57]
    v_cndmask_b32 v{K(3)}, v{K(3)}, v{K(4)}, s[56:57]
    v_cndmask_b32 v{K(5)}, v{K(5)}, v{K(4)}, s[56:57]
    v_cndmask_b32 v{K(7)}, v{K(7)}, v{K(8)}, s[56:57]
    v_mov_b32 v{K(12)}, v{K(8)}
    v_mov_b32 v{K(13)}, v{K(8)}
    s_mov_b64 exec, 1
    ds_write_b32 v{vT2}, v{K(0)}
    v_mov_b32 v{K(0)}, 0
    s_mov_b64 exec, -1
    v_mov_b32_dpp v{K(12)}, v{K(1)} wave_shl:1 row_mask:0xf bank_mask:0xf
    v_mov_b32_dpp v{K(13)}, v{K(2)} wave_shl:1 row_mask:0xf bank_mask:0xf
    """)
    packs(1, [K(9)] * 3 + [K(10)] * 3 + [K(11)] * 5)
    packs(0, [K(i) for i in range(9)] + [K(12), K(13)])
    a(f"""
    s_mov_b64 exec, 1
    ds_write_b32 v{vT3}, v{PK} offset:{2*4160+28}
    ds_write_b32 v{vT3}, v{PK+4} offset:{3*4160+28}
    s_mov_b64 exec, -1
    s_branch S_parj
    S_par1:
    """)
    a.hist = hist0
    a(f"ds_read_b128 {vr(KA+12,4)}, v{vT3} offset:3072\nds_read_b128 {vr(KP,4)}, v{vT3} offset:{8704+3072}\ns_waitcnt lgkmcnt(0)")
    for j in range(4): a(f"v_add_f32 v{KA+12+j}, v{KA+12+j}, v{KP+j}")
    a(f"v_cndmask_b32 v{K(0)}, v{K(12)}, v{K(13)}, vcc\nv_cndmask_b32 v{K(1)}, v{K(14)}, v{K(15)}, vcc")
    packs(0, [K(12)] * 4 + [K(0)] + [K(13)] * 6)
    packs(1, [K(14)] * 4 + [K(1)] + [K(15)] * 6)
    a("S_parj:")
    a.lg = []
    a(f"s_cmp_eq_u32 s{sTag}, 0\ns_cbranch_scc1 S_tagslow\nS_tagok:\ns_mov_b32 s{sCnt}, 0")
    a.wait(vm="xf")
    a(f"""
    S_uchk:
    v_cmp_ne_u64 s[46:47], {sr(sTag,2)}, {vr(vXf+1,2)}
    s_setprio 3
    s_cmp_lg_u64 s[46:47], 0
    s_cbranch_scc1 S_uslow
    S_uok:
    """)
    for k in range(2):
        a(f"buffer_load_dwordx4 {vr(vU+4*k,4)}, v{vUg}, {WS}, s{sU+k} offen sc1", "u")
    a("s_setprio 0")
    stamp()
    vAa, vBa = 52, 53
    a(f"""
    s_mul_i32 s{sT}, s{sE}, {USZ}
    s_add_u32 s{sT}, s{sT}, {UB0}
    s_lshl_b32 s{sT2}, s{sPar}, 8
    s_sub_u32 s{sT}, s{sT}, s{sT2}
    s_add_u32 s{sT}, s{sT}, 256
    v_and_b32 v{vT2}, 15, v{vL}
    v_lshrrev_b32 v{vT3}, 4, v{vL}
    v_lshlrev_b32 v{vT3}, 4, v{vT3}
    v_lshl_add_u32 v{vBa}, v{vT2}, 5, v{vT3}
    v_add_u32 v{vBa}, s{sT}, v{vBa}
    v_bfe_u32 v{vT2}, v{vL}, 2, 2
    v_sub_u32 v{vT4}, 0, v{vT2}
    v_and_b32 v{vT4}, 3, v{vT4}
    v_mul_u32_u24 v{vAa}, 4160, v{vT4}
    v_min_u32 v{vT2}, 1, v{vT2}
    v_lshlrev_b32 v{vT2}, 3, v{vT2}
    v_sub_u32 v{vAa}, v{vAa}, v{vT2}
    v_sub_u32 v{vAa}, v{vAa}, v{vT3}
    v_and_b32 v{vT2}, 3, v{vL}
    v_lshl_add_u32 v{vAa}, v{vT2}, 3, v{vAa}
    s_mul_i32 s{sT}, s{sE}, 16640
    s_add_u32 s{sT}, s{sT}, s{sT2}
    s_add_u32 s{sT}, s{sT}, {32+32-8}
    v_add_u32 v{vAa}, s{sT}, v{vAa}
    """)
    stamp()
    a.wait(vm="u")
    stamp()
    for k in range(2): a(f"ds_write_b128 v{vUw}, {vr(vU+4*k,4)} offset:{512*k}")
    a("s_waitcnt lgkmcnt(0)\ns_barrier")
    a.lg = []
    stamp()
    AS, BS, YA = [64, 128], [96, 160], 192
    def reads(rho):
        s = rho & 1; L = []
        for j in range(8):
            L.append((f"ds_read_b128 {vr(BS[s]+4*j,4)}, v{vBa} offset:{512*j+64*(3-rho)}", f"b{rho}_{j}"))
            L.append((f"ds_read_b64_tr_b16 {vr(AS[s]+4*j,2)}, v{vAa} offset:{64*(8*j+rho)+8}", f"a{rho}_{j}"))
            L.append((f"ds_read_b64_tr_b16 {vr(AS[s]+4*j+2,2)}, v{vAa} offset:{64*(8*j+rho)}", f"a{rho}_{j}"))
        return L
    for t, tag in reads(0): a(t, tag)
    UU, KD, RR, UF, OV = 2, 10, 64, 12, 96
    a(f"""
    s_mul_i32 s{sT2}, s{sW}, 8704
    s_add_u32 s{sT2}, s{sT2}, {TAB}
    v_add_u32 v{vT}, s{sT2}, v{vL16}
    v_bfe_u32 v{vT2}, v{vL}, 1, 2
    v_lshlrev_b32 v{vT2}, 8, v{vT2}
    v_lshrrev_b32 v{vT3}, 3, v{vL}
    v_lshl_add_u32 v{vT2}, v{vT3}, 4, v{vT2}
    v_and_b32 v{vT3}, 1, v{vL}
    v_lshl_add_u32 v{vT2}, v{vT3}, 3, v{vT2}
    s_lshl_b32 s{sT}, s{sW}, 11
    s_add_u32 s{sT}, s{sT}, {TAB}
    v_add_u32 v{vT2}, s{sT}, v{vT2}
    s_lshl_b32 s{sT2}, s{sW}, 10
    s_add_u32 s{sT2}, s{sT2}, {UB0+480}
    v_lshl_add_u32 v{vT3}, v{vL}, 2, s{sT2}
    v_mov_b32 v{vT4}, {K0A}
    s_mul_i32 s{sT}, s{sQ}, {GS}
    s_lshl_b32 s{sT2}, s{sW}, 12
    s_add_u32 s{sT}, s{sT}, s{sT2}
    s_add_u32 s{sT}, s{sT}, {Y2}
    """)
    first = [True] * 8
    for rho in range(4):
        s = rho & 1
        if rho < 3: nxt = reads(rho + 1)
        else:
            nxt = [(f"ds_read_b32 v{UU+4*e+k}, v{vT3} offset:{USZ*e+256*k}", "uu") for e in range(2) for k in range(4)]
            nxt.append((f"ds_read_b64 {vr(KD,2)}, v{vT4}", "uu"))
        pairs = sorted([(p, q) for p in range(8) for q in range(8) if p + q <= 7], key=(lambda x: max(x)) if rho < 3 else (lambda x: x[0] + x[1]))
        done = 0
        for n, (p, q) in enumerate(pairs):
            a.wait(lg=(f"a{rho}_{p}", f"b{rho}_{q}"))
            ct = p + q
            a(f"v_mfma_f32_16x16x32_bf16 {vr(YA+4*ct,4)}, {vr(AS[s]+4*p,4)}, {vr(BS[s]+4*q,4)}, {'0' if first[ct] else vr(YA+4*ct,4)}")
            first[ct] = False
            if n >= 8 and nxt:
                t, tag = nxt.pop(0); a(t, tag)
            if rho == 3:
                while done < ct - 1 and n >= (done + 1) * (done + 2) // 2 + 8:
                    a(f"ds_write_b128 v{vT}, {vr(YA+4*done,4)} offset:{1024*done}"); done += 1
        for t, tag in nxt: a(t, tag)
    stamp()
    a.wait(lg="uu")
    a(f"""
    s_lshl_b32 s{sT2}, s{sD}, 16
    v_add_f32 v{KD}, s{sT2}, v{KD}
    s_and_b32 s{sT2}, s{sD}, s{sMask}
    v_add_f32 v{KD+1}, s{sT2}, v{KD+1}
    """)
    unp = [t for j in range(8) for t in (f"v_lshlrev_b32 v{UF+2*j}, 16, v{UU+j}", f"v_and_b32 v{UF+2*j+1}, s{sMask}, v{UU+j}")]
    for t in unp[:6]: a(t)
    for ct in range(done, 8): a(f"ds_write_b128 v{vT}, {vr(YA+4*ct,4)} offset:{1024*ct}")
    for t in unp[6:]: a(t)
    for kk in range(4): a(f"v_mov_b32 v{OV+4*kk+2}, s{sTag}\nv_mov_b32 v{OV+4*kk+3}, s{sTag+1}")
    a("s_waitcnt lgkmcnt(0)\ns_barrier\ns_setprio 3")
    a.lg = []
    for kk in range(4):
        for sw in range(4):
            a(f"ds_read_b64 {vr(RR+8*sw+2*kk,2)}, v{vT2} offset:{8704*sw+1024*(kk>>1)+128*(kk&1)}", f"rr{kk}")
    for kk in range(4):
        a.wait(lg=f"rr{kk}")
        for e in range(2):
            for j in range(2):
                a(f"v_fmac_f32 v{RR+16*e+2*kk+j}, v{UF+8*e+2*kk+j}, v{KD+e}")
        for e in range(2):
            for j in range(2):
                a(f"v_add_f32 v{RR+16*e+2*kk+j}, v{RR+16*e+2*kk+j}, v{RR+16*e+8+2*kk+j}")
        for j in range(2):
            a(f"v_cvt_pk_bf16_f32 v{OV+4*kk+j}, v{RR+2*kk+j}, v{RR+16+2*kk+j}")
        a(f"buffer_store_dwordx4 {vr(OV+4*kk,4)}, v{vL16}, {WS}, s{sT} offen offset:{1024*kk} sc1")
    stamp()
    if STAMPS:
        a("s_waitcnt vmcnt(0)"); stamp()
    stamp_flush(WS, f"s{sW}", vT)
    a("s_endpgm")
    tag_slow("S", sTag, 8, [192], vNon, sCnt)
    a.raw(f"""S_uslow:
{retry_mark(4)}  s_add_u32 s{sCnt}, s{sCnt}, 1
  s_cmp_ge_u32 s{sCnt}, {SPIN}
  s_cbranch_scc1 S_uok
  s_setprio 0
  s_sleep 8""")
    a.raw(f"  buffer_load_dwordx2 {vr(vXf+1,2)}, v{vXf}, {WS}, s{sXf} offen sc1")
    a.raw("  s_waitcnt vmcnt(0)\n  s_branch S_uchk")

hdr = open("cdna_kernels/" + NAME + ".s.ref").read().split("\n")
top = [l for l in hdr if l.startswith(";") and "@launch" not in l][:16]
a.raw("\n".join(top))
a.raw("; @launch grid=(512,1,1) block=(256,1,1) lds=81920")
a.raw(f""".amdgcn_target "amdgcn-amd-amdhsa--gfx950"
.text
.globl {NAME}_kernel
.p2align 8
.type {NAME}_kernel,@function
{NAME}_kernel:""")
stamp()
NST[0] = 14
if "nocpf" not in OPT:
    a(f"""
    s_getpc_b64 s[94:95]
    s_bfe_u32 s96, s2, 0x60003
    s_lshl_b32 s96, s96, 9
    v_and_b32 v255, 3, v0
    v_lshl_add_u32 v255, v255, 7, s96
    v_min_u32 v255, L_exit-{NAME}_kernel-64, v255
    global_load_dword v254, v255, s[94:95]
    """)
a("s_cmp_lt_u32 s2, 256\ns_cbranch_scc1 L_ssm\ns_cmp_ge_u32 s2, 512\ns_cbranch_scc1 L_exit")
gemm_role()
a.raw(".p2align 6")
a("L_ssm:")
if STAMPS: nstamp[0] = 1
NST[0] = 16
ssm_role()
a("L_exit:\ns_endpgm")
a.raw(f""".section .rodata,"a"
.p2align 6
.amdhsa_kernel {NAME}_kernel
  .amdhsa_next_free_vgpr 256
  .amdhsa_next_free_sgpr 102
  .amdhsa_accum_offset 256
  .amdhsa_group_segment_fixed_size 0
  .amdhsa_kernarg_size 120
  .amdhsa_user_sgpr_count 2
  .amdhsa_user_sgpr_kernarg_segment_ptr 1
  .amdhsa_system_sgpr_workgroup_id_x 1
.end_amdhsa_kernel""")
sys.stdout.write(a.text())
sys.stderr.write(f"nops inserted: {a.nops}\n")
```

```python
import sys, struct
from asmlib import Asm, vr, sr

NAME = "parallel_sum__ssm_conv_s4__dense_activation_silu__prompt"
OPT = {x.split("=")[0][2:]: (x.split("=")[1] if "=" in x else "1") for x in sys.argv[1:] if x.startswith("--")}
STAMPS = "stamps" in OPT
SPIN = int(OPT.get("spin", 4000))
M1, M2 = OPT.get("m1", "81"), OPT.get("m2", "81")
LOCAL = M1 == "81" and M2 == "81" and "nolocal" not in OPT
HSF = "" if LOCAL else "sc1"

HROW = 88 * 1024
H_SIZE = 64 * HROW
ST = 0x580000
FH = 0x590000
GS = 18432
XNP = 0x600000
XS = 9216
FX = 0x5A0000
FG = 0x5B0000
Y2 = 0xA80000
WS_SIZE = 0x1000000
STAMP_OFF = 0xF80000
LOG2E = 0x3fb8aa3b
fl = lambda x: "0x%08x" % struct.unpack("<I", struct.pack("<f", x))[0]

a = Asm()
nstamp = [0]
NST = [16]
def stamp(force=False):
    if STAMPS and nstamp[0] < NST[0] and (force or "cs" not in OPT or nstamp[0] in (0, 13)):
        i = nstamp[0]; nstamp[0] += 1
        a(f"s_memtime s[{60+2*i}:{61+2*i}]")
def stamp_flush(wsrd, wave_s, vt):
    if not STAMPS: return
    n = nstamp[0]
    a("s_memrealtime s[98:99]")
    a("s_waitcnt lgkmcnt(0)")
    a(f"s_lshl_b32 s96, s2, 2\ns_add_u32 s96, s96, {wave_s}\ns_lshl_b32 s96, s96, 7\ns_add_u32 s96, s96, {STAMP_OFF}")
    a("s_mov_b64 exec, 1")
    for i in range(n):
        a(f"v_mov_b32 v{vt}, s{60+2*i}")
        a(f"buffer_store_dword v{vt}, off, {wsrd}, s96 offset:{4*i}")
    a(f"v_mov_b32 v{vt}, s97\nbuffer_store_dword v{vt}, off, {wsrd}, s96 offset:116")
    a(f"v_mov_b32 v{vt}, s100\nbuffer_store_dword v{vt}, off, {wsrd}, s96 offset:120")
    a(f"v_mov_b32 v{vt}, s98\nbuffer_store_dword v{vt}, off, {wsrd}, s96 offset:124")
    nstamp[0] = 0
def retry_mark(bit):
    return f"  s_add_u32 s97, s97, {1 << bit}\n" if STAMPS else ""

def srd(base, size):
    a(f"s_mov_b32 s{base+2}, {size}\ns_mov_b32 s{base+3}, 0x20000")

def cmul(d, x, y):
    a(f"v_mul_f32 v{d}, v{x+1}, v{y+1}")
    a(f"v_mul_f32 v{d+1}, v{x+1}, v{y}")
    a(f"v_fma_f32 v{d}, v{x}, v{y}, -v{d}")
    a(f"v_fmac_f32 v{d+1}, v{x}, v{y+1}")

def tag_slow(pfx, sTag, dbg, offs, vt, sCnt):
    a.raw(f"{pfx}_tagslow:")
    a.raw(retry_mark(0).rstrip("\n"))
    for o in offs:
        a.raw(f"  s_load_dwordx2 {sr(sTag,2)}, s[{dbg}:{dbg+1}], {o}\n  s_waitcnt lgkmcnt(0)\n  s_cmp_lg_u32 s{sTag}, 0\n  s_cbranch_scc1 {pfx}_tagok")
    a.raw(f"""  s_mov_b32 s{sCnt}, 0
{pfx}_tagloop:
  buffer_load_dwordx2 {vr(vt,2)}, off, s[{dbg}:{dbg+3}], 0 sc1
  s_add_u32 s{sCnt}, s{sCnt}, 1
  s_waitcnt vmcnt(0)
  v_readfirstlane_b32 s{sTag}, v{vt}
  v_readfirstlane_b32 s{sTag+1}, v{vt+1}
  s_nop 3
  s_cmp_lg_u32 s{sTag}, 0
  s_cbranch_scc1 {pfx}_tagok
  s_cmp_lt_u32 s{sCnt}, {SPIN}
  s_cbranch_scc1 {pfx}_tagloop
  s_branch {pfx}_tagok""")

def gemm_role():
    X, W1, WS, W2, OUT, DBG, HS = "s[4:7]", "s[8:11]", "s[12:15]", "s[16:19]", "s[20:23]", "s[24:27]", "s[28:31]"
    sP = 3
    sW, sRB, sM, sXB, sWB, sC, sTx, sT, sLA, sLB, sW2, sHS, sHL = range(32, 45)
    sT2, sT3, sL2e, sCnt, sO, sTag, sFl, sRT = 45, 46, 47, 48, 49, 50, 52, 53
    sB1, sMask, sCG, sXcc, sFar, sHS2, sIa = 54, 55, 56, 57, 58, 59, 101
    sY, sRet = sFl, sFar
    sMean, sNeg = 88, 92
    sXn, sSt, sFx = 89, 90, 91
    vL = 1
    vXo, vWo, vXr, vWr, vW2o, vW2r, vL16 = 2, 6, 9, 13, 17, 18, 22
    vT, vNon, vCs, vT2, vC2, vSa = 23, 24, 26, 29, 30, 31
    vSt, vNeg = 32, 36
    HALF, vSw, vSr, vIa, vT3 = 88, 92, 93, 94, 95
    ACC1, WF, CSA, XF, CSF = 40, 96, 144, 192, 192
    LX, LF, LG, vId = 224, 232, 248, 252
    ACC2, STASH, HB, HD = 32, 96, 192, 8
    SROW, STG = 1088, 32768 + 3 * 12288
    FARAWAY = 0x40000000
    a(f"""
    s_load_dwordx2 s[4:5], s[0:1], 0
    s_load_dwordx2 s[24:25], s[0:1], 104
    s_load_dwordx2 s[8:9], s[0:1], 80
    s_load_dwordx2 s[12:13], s[0:1], 112
    s_load_dwordx2 s[16:17], s[0:1], 88
    s_load_dwordx2 s[20:21], s[0:1], 96
    s_memrealtime {sr(sTag,2)}
    v_lshrrev_b32 v{vT}, 6, v0
    v_and_b32 v{vL}, 63, v0
    s_and_b32 s{sP}, s2, 7
    v_readfirstlane_b32 s{sW}, v{vT}
    s_lshl_b32 s{sP}, s{sP}, 5
    s_bfe_u32 s{sT}, s2, 0x50003
    s_add_u32 s{sP}, s{sP}, s{sT}
    s_lshr_b32 s{sRB}, s{sP}, 4
    s_and_b32 s{sM}, s{sP}, 15
    s_and_b32 s{sC}, s{sP}, 7
    v_lshlrev_b32 v{vL16}, 4, v{vL}
    s_lshl2_add_u32 s{sO}, s{sP}, s{sW}
    s_lshl_b32 s{sO}, s{sO}, 11
    v_lshl_add_u32 v{vT3}, v{vL}, 6, s{sO}
    s_setprio 2
    """)
    srd(4, 2048 * 1024); srd(24, 256); srd(8, 512 * 2752)
    a(f"""
    v_lshrrev_b32 v{vT}, 3, v{vL}
    v_lshlrev_b32 v{vT}, 10, v{vT}
    v_lshrrev_b32 v{vT2}, 4, v{vL}
    v_xor_b32 v{vT2}, v{vT2}, v{vL}
    v_and_b32 v{vT2}, 7, v{vT2}
    v_lshl_add_u32 v{vXo}, v{vT2}, 4, v{vT}
    v_xor_b32 v{vXo+1}, 64, v{vXo}
    v_add_u32 v{vXo+2}, {2*7168}, v{vXo}
    v_add_u32 v{vXo+3}, {3*7168}, v{vXo+1}
    v_add_u32 v{vXo+1}, 7168, v{vXo+1}
    s_movk_i32 s{sT}, 5462
    s_movk_i32 s{sT2}, {2752-192}
    v_mul_u32_u24 v{vT}, s{sT}, v{vL}
    """)
    for j in range(3):
        if j: a(f"v_add_u32 v{vT}, {64*5462}, v{vT}")
        a(f"v_lshrrev_b32 v{vT2}, 16, v{vT}\nv_mad_u32_u24 v{vWo+j}, v{vT2}, s{sT2}, v{vL16}")
    a("s_waitcnt lgkmcnt(0)")
    if STAMPS: a(f"s_mov_b32 s100, s{sTag}\ns_mov_b32 s97, 0")
    stamp()
    for r in range(2):
        a(f"buffer_load_dwordx4 {vr(LX+4*r,4)}, v{vL16}, {X}, s{sO} offen offset:{1024*r}", "xrow")
    a(f"""
    s_or_b32 s{sTag}, s{sTag}, 1
    v_mov_b32 v{vNon}, s{sTag}
    v_mov_b32 v{vNon+1}, s{sTag+1}
    s_lshl2_add_u32 s{sXB}, s{sRB}, s{sW}
    s_lshl_b32 s{sXB}, s{sXB}, 15
    buffer_store_dwordx2 {vr(vNon,2)}, v{vT3}, {DBG}, 0 offen sc1
    s_mul_i32 s{sWB}, s{sM}, 192
    s_mul_i32 s{sT}, s{sW}, {16*2752}
    s_add_u32 s{sWB}, s{sWB}, s{sT}
    s_lshr_b32 s{sO}, s{sXB}, 6
    s_cmp_eq_u32 s{sM}, 15             ; the 16th workgroup of a row block has no GEMM1 tile: its tile loads go out of range
    s_cselect_b32 s{sXB}, {FARAWAY}, s{sXB}
    s_cselect_b32 s{sWB}, {FARAWAY}, s{sWB}
    s_lshl_b32 s{sLA}, s{sW}, 12
    s_mul_i32 s{sLB}, s{sW}, 3072
    s_add_u32 s{sLB}, s{sLB}, 32768
    """)
    if "nogemm" in OPT: a("s_endpgm")

    def chunk_ops(c):
        ops = []
        for j in range(3):
            def f(j=j):
                if j == 0:
                    a(f"s_mul_i32 s{sT2}, s{sC}, {64*2752}\ns_add_u32 m0, s{sLB}, {(c&3)*12288}\ns_add_u32 s{sT2}, s{sT2}, s{sWB}")
                a(f"buffer_load_dwordx4 v{vWo+j}, {W1}, s{sT2} offen offset:{j*1024} lds", f"C{c}")
            ops.append(f)
        for pc in range(4):
            def f(pc=pc):
                if pc == 0:
                    a(f"s_lshl_b32 s{sTx}, s{sC}, 7\ns_add_u32 m0, s{sLA}, {(c&1)*16384}\ns_add_u32 s{sTx}, s{sTx}, s{sXB}")
                a(f"buffer_load_dwordx4 v{vXo+pc}, {X}, s{sTx} offen offset:{pc*1024} lds", f"C{c}")
                if pc == 0:
                    a(f"s_add_u32 s{sC}, s{sC}, 1\ns_and_b32 s{sC}, s{sC}, 7")
            ops.append(f)
        return ops
    ops = {c: chunk_ops(c) for c in range(8)}
    def issue(c, n):
        for _ in range(n): ops[c].pop(0)()
    issue(0, 7)
    a(f"""
    v_and_b32 v{vSa}, 31, v{vL}
    v_lshrrev_b32 v{vT2}, 5, v{vL}
    v_bfe_u32 v{vC2}, v{vL}, 1, 3
    v_xor_b32 v{vC2}, v{vC2}, v{vT2}
    v_lshl_add_u32 v{vC2}, v{vC2}, 4, s{sLA}
    v_lshl_add_u32 v{vC2}, v{vSa}, 7, v{vC2}
    v_bfe_u32 v{vT3}, v{vL}, 2, 2
    v_lshl_add_u32 v{vT}, v{vT2}, 3, v{vT3}
    v_mul_u32_u24 v{vT}, 192, v{vT}
    v_bfe_u32 v{vT2}, v{vL}, 4, 1
    v_lshl_add_u32 v{vT}, v{vT2}, 5, v{vT}
    v_and_b32 v{vT2}, 3, v{vL}
    v_lshl_add_u32 v{vT}, v{vT2}, 3, v{vT}
    v_add_u32 v{vT}, 0x8000, v{vT}
    """)
    for i in range(4):
        a(f"""
        s_add_u32 s{sT3}, s{sW}, {i}
        s_and_b32 s{sT3}, s{sT3}, 3
        s_lshl_b32 s{sCnt}, s{sT3}, 5
        s_mulk_i32 s{sT3}, 3072
        v_xor_b32 v{vXr+i}, s{sCnt}, v{vC2}
        v_add_u32 v{vWr+i}, s{sT3}, v{vT}
        """)
    issue(1, 3)
    a(f"""
    s_getreg_b32 s{sXcc}, hwreg(HW_REG_XCC_ID, 0, 4)
    s_mov_b32 s{sB1}, 0x3f803f80
    s_mov_b32 s{sMask}, 0xffff0000
    s_mul_i32 s{sT3}, s{sW}, {2*SROW}
    s_add_u32 s{sT3}, s{sT3}, {STG}
    v_add_u32 v{vSw}, s{sT3}, v{vL16}
    v_mul_u32_u24 v{vT}, {SROW}, v{vT3}
    v_lshl_add_u32 v{vT}, v{vT2}, 3, v{vT}
    v_lshrrev_b32 v{vT2}, 4, v{vL}
    v_lshl_add_u32 v{vT}, v{vT2}, 5, v{vT}
    s_lshl_b32 s{sT3}, s{sW}, 8
    s_add_u32 s{sT3}, s{sT3}, {STG}
    v_add_u32 v{vSr}, s{sT3}, v{vT}
    """)
    srd(12, WS_SIZE)
    for k in range(4): a(f"v_mov_b32 v{HALF+k}, 0x3f003f00")
    PFN = int(OPT.get("pfn", 0))
    vPf, sPf = 132, 96
    if PFN:
        srd(16, 1376 * 1024)
        a(f"""
        v_lshlrev_b32 v{vPf}, 7, v{vL}
        v_cmp_gt_u32 vcc, {PFN}, v{vL}
        s_and_b32 s{sPf}, s{sP}, 31
        s_lshl2_add_u32 s{sPf}, s{sPf}, s{sW}
        s_mulk_i32 s{sPf}, {86*128}
        v_cndmask_b32 v{vPf}, -1, v{vPf}, vcc
        """)
    a.wait(vm="xrow")
    stamp()

    vC = CSA; S = [252, 253]; vN = 254; sR = sMean
    def dpp_reduce(fill):
        for ctl in ("row_shr:1 row_mask:0xf bank_mask:0xf bound_ctrl:0", "row_shr:2 row_mask:0xf bank_mask:0xf bound_ctrl:0",
                    "row_shr:4 row_mask:0xf bank_mask:0xf bound_ctrl:0", "row_shr:8 row_mask:0xf bank_mask:0xf bound_ctrl:0",
                    "row_bcast:15 row_mask:0xa bank_mask:0xf", "row_bcast:31 row_mask:0xc bank_mask:0xf"):
            for r in range(2):
                a(f"v_add_f32_dpp v{S[r]}, v{S[r]}, v{S[r]} {ctl}")
            for _ in range(3):
                if fill: a(fill.pop(0))
        while fill: a(fill.pop(0))
    for k in range(4):
        for r in range(2):
            a(f"v_dot2_f32_bf16 v{S[r]}, v{LX+4*r+k}, s{sB1}, {'0' if k == 0 else 'v%d' % S[r]}")
    unpack = lambda: [t for r in range(2) for k in range(4) for t in
                      (f"v_lshlrev_b32 v{LF+8*r+2*k}, 16, v{LX+4*r+k}", f"v_and_b32 v{LF+8*r+2*k+1}, s{sMask}, v{LX+4*r+k}")]
    fill = unpack()
    for _ in range(3): a(fill.pop(0))
    dpp_reduce(fill)
    for r in range(2): a(f"v_mul_f32 v{S[r]}, 0x3b000000, v{S[r]}")
    for r in range(2): a(f"v_cvt_pk_bf16_f32 v{vN+r}, -v{S[r]}, -v{S[r]}")
    for r in range(2): a(f"v_readlane_b32 s{sMean+2*r}, v{S[r]}, 63")
    for r in range(2): a(f"v_readlane_b32 s{sNeg+2*r}, v{vN+r}, 63")
    for k in range(4):
        for r in range(2):
            a(f"v_pk_add_f32 {vr(vC+8*r+2*k,2)}, {vr(LF+8*r+2*k,2)}, {sr(sMean+2*r,2)} op_sel_hi:[1,0] neg_lo:[0,1] neg_hi:[0,1]")
    for r in range(2): a(f"s_and_b32 s{sNeg+2*r}, s{sNeg+2*r}, s{sMask}")
    for r in range(2): a(f"s_or_b32 s{sNeg+2*r+1}, s{sNeg+2*r}, s{sXcc}")
    for r in range(2):
        a(f"v_pk_mul_f32 {vr(vC+8*r,2)}, {vr(vC+8*r,2)}, {vr(vC+8*r,2)}")
    for k in range(1, 4):
        for r in range(2):
            a(f"v_pk_fma_f32 {vr(vC+8*r,2)}, {vr(vC+8*r+2*k,2)}, {vr(vC+8*r+2*k,2)}, {vr(vC+8*r,2)}")
    for r in range(2): a(f"v_add_f32 v{S[r]}, v{vC+8*r}, v{vC+8*r+1}")
    fill = [f"v_pk_add_f32 {vr(LF+8*r+2*k,2)}, {vr(LF+8*r+2*k,2)}, {sr(sNeg+2*r,2)} op_sel_hi:[1,0]" for k in range(4) for r in range(2)]
    fill += [f"v_cvt_pk_bf16_f32 v{LX+4*r+k}, v{LF+8*r+2*k}, v{LF+8*r+2*k+1}" for k in range(4) for r in range(2)]
    dpp_reduce(fill)
    def rnd():
        for r in range(2): a(f"v_cvt_pk_bf16_f32 v{S[r]}, v{S[r]}, v{S[r]}")
        for r in range(2): a(f"v_lshlrev_b32 v{S[r]}, 16, v{S[r]}")
    for r in range(2): a(f"v_mul_f32 v{S[r]}, 0x3b000000, v{S[r]}")
    rnd()
    for r in range(2): a(f"v_add_f32 v{S[r]}, 0x3727c5ac, v{S[r]}")
    rnd()
    for r in range(2): a(f"v_sqrt_f32 v{S[r]}, v{S[r]}")
    rnd()
    for r in range(2): a(f"v_rcp_f32 v{S[r]}, v{S[r]}")
    for t in unpack(): a(t)
    for r in range(2): a(f"v_readlane_b32 s{sR+2*r}, v{S[r]}, 63")
    a(f"s_load_dwordx2 {sr(sTag,2)}, s[24:25], 0")
    for r in range(2):
        for k in range(4):
            a(f"v_pk_mul_f32 {vr(LF+8*r+2*k,2)}, {vr(LF+8*r+2*k,2)}, {sr(sR+2*r,2)} op_sel_hi:[1,0]")
        for k in range(4):
            a(f"v_cvt_pk_bf16_f32 v{LX+4*r+k}, v{LF+8*r+2*k}, v{LF+8*r+2*k+1}")
        a(f"ds_write_b128 v{vSw}, {vr(LX+4*r,4)} offset:{SROW*r}", "stg")
    a(f"""
    v_mov_b32 v{LG}, s{sNeg+1}
    v_mov_b32 v{LG+1}, s{sR}
    v_writelane_b32 v{LG}, s{sNeg+3}, 1
    v_writelane_b32 v{LG+1}, s{sR+2}, 1
    s_mul_i32 s{sXn}, s{sP}, {XS}
    s_lshl_b32 s{sT3}, s{sW}, 11
    s_add_u32 s{sXn}, s{sXn}, s{sT3}
    s_add_u32 s{sXn}, s{sXn}, {XNP}
    s_lshl3_add_u32 s{sFx}, s{sP}, s{sT3}
    s_add_u32 s{sFx}, s{sFx}, {FX}
    s_lshl2_add_u32 s{sSt}, s{sP}, s{sW}
    s_lshl_b32 s{sSt}, s{sSt}, 5
    s_add_u32 s{sSt}, s{sSt}, {ST}
    """)
    issue(1, 4); issue(2, 3)
    a.wait(lg=0)
    stamp()

    FILL = [u.strip() for u in f"""
    s_mov_b32 s18, {1376*1024}
    s_mov_b32 s19, 0x20000
    s_mov_b32 s22, {2048*1024}
    s_mov_b32 s23, 0x20000
    s_mov_b32 s28, s12
    s_mov_b32 s29, s13
    s_mov_b32 s30, {H_SIZE}
    s_mov_b32 s31, 0x20000
    s_mov_b32 s{sL2e}, {LOG2E:#x}
    v_lshlrev_b32 v{vSa}, 4, v{vSa}
    s_add_u32 s{sO}, s{sO}, {ST}
    v_and_b32 v{vIa}, 15, v{vL}
    v_lshlrev_b32 v{vIa}, 7, v{vIa}
    s_lshl_b32 s{sIa}, s{sRB}, 11
    s_add_u32 s{sIa}, s{sIa}, {ST}
    v_lshrrev_b32 v{vT}, 3, v{vL}
    v_lshlrev_b32 v{vT}, 10, v{vT}
    v_bfe_u32 v{vT2}, v{vL}, 4, 1
    v_lshlrev_b32 v{vT3}, 2, v{vT2}
    v_xor_b32 v{vT3}, v{vT3}, v{vL}
    v_and_b32 v{vT3}, 7, v{vT3}
    v_lshl_add_u32 v{vW2o}, v{vT3}, 4, v{vT}
    v_lshrrev_b32 v{vT}, 5, v{vL}
    v_bfe_u32 v{vT3}, v{vL}, 2, 2
    v_lshl_add_u32 v{vT}, v{vT}, 2, v{vT3}
    v_lshlrev_b32 v{vT}, 7, v{vT}
    v_lshl_add_u32 v{vT}, v{vT2}, 5, v{vT}
    v_bfe_u32 v{vT2}, v{vL}, 3, 1
    v_lshl_add_u32 v{vT}, v{vT2}, 6, v{vT}
    v_and_b32 v{vT2}, 3, v{vL}
    v_lshl_add_u32 v{vT}, v{vT2}, 3, v{vT}
    s_lshl_b32 s{sT3}, s{sW}, 5
    s_and_b32 s{sT3}, s{sT3}, 64
    v_xor_b32 v{vT}, s{sT3}, v{vT}
    v_xor_b32 v{vT2}, 64, v{vT}
    v_add_u32 v{vW2r}, s{sLA}, v{vT}
    v_add_u32 v{vW2r+1}, s{sLA}, v{vT2}
    v_add_u32 v{vW2r+2}, s{sLB}, v{vT}
    v_add_u32 v{vW2r+3}, s{sLB}, v{vT2}
    s_and_b32 s{sT3}, s{sP}, 1
    s_lshl1_add_u32 s{sRT}, s{sRB}, s{sT3}
    s_lshr_b32 s{sCG}, s{sM}, 1
    s_mul_i32 s{sW2}, s{sW}, {352*1024}
    s_lshl_b32 s{sT}, s{sCG}, 7
    s_add_u32 s{sW2}, s{sW2}, s{sT}
    s_mul_i32 s{sHL}, s{sRT}, {2*HROW}
    s_mul_i32 s{sT}, s{sW}, {22*1024}
    s_add_u32 s{sHL}, s{sHL}, s{sT}
    s_lshl_b32 s{sT3}, s{sW}, 8
    s_add_u32 s{sT3}, s{sT3}, {32768+12288}
    v_lshl_add_u32 v{vT2}, v{vL}, 2, s{sT3}
    s_add_u32 s{sT3}, s{sLB}, 12288
    v_lshl_add_u32 v{vT}, v{vL}, 2, s{sT3}
    s_lshl2_add_u32 s{sT3}, s{sRB}, s{sW}
    s_mul_i32 s{sT3}, s{sT3}, {HROW}
    s_mul_i32 s{sHS}, s{sM}, 6144
    s_add_u32 s{sHS}, s{sHS}, s{sT3}
    s_add_u32 s{sHS2}, s{sHS}, 4096
    s_cmp_ge_u32 s{sM}, 14 | s_cselect_b32 s{sHS2}, {H_SIZE}, s{sHS2}
    s_lshr_b32 s{sT3}, s{sW}, 1
    s_lshl1_add_u32 s{sT3}, s{sRB}, s{sT3}
    s_lshl4_add_u32 s{sT3}, s{sT3}, s{sM}
    s_and_b32 s{sFl}, s{sW}, 1
    s_lshl1_add_u32 s{sFl}, s{sT3}, s{sFl}
    s_lshl_b32 s{sFl}, s{sFl}, 3
    s_add_u32 s{sFl}, s{sFl}, {FH}
    s_cmp_eq_u32 s{sM}, 15 | s_cselect_b32 s{sHS}, {H_SIZE}, s{sHS} | s_cselect_b32 s{sFl}, {WS_SIZE}, s{sFl}
    """.strip().split("\n")]
    def fill(n):
        for _ in range(n):
            if FILL: a(FILL.pop(0).replace(" | ", "\n"))

    GROUPS = [("A", 0, 4), ("B", 0, 3), ("A", 1, 4), ("B", 2, 3), ("B", 3, 3), ("B", 1, 3)]
    LOC = []
    for rg, sl, n in GROUPS:
        for k in range(n):
            LOC.append((rg, sl * (16384 if rg == "A" else 12288) + k * 1024))
    ploc = lambda p: p % 20 if p < 40 else p - 40
    pn = [0]
    def p_next():
        p = pn[0]; pn[0] += 1
        rg, off = LOC[ploc(p)]
        a(f"s_add_u32 m0, s{sLA if rg == 'A' else sLB}, {off}")
        a(f"s_add_u32 s{sT3}, s{sW2}, {8192*p}")
        a(f"buffer_load_dwordx4 v{vW2o}, {W2}, s{sT3} offen lds", f"P{p}")

    wb = lambda s_: WF + 12 * (s_ % 3)
    def tr_pair(s_, ft):
        c, i = divmod(s_, 4)
        for e in range(2):
            a(f"ds_read_b64_tr_b16 {vr(wb(s_)+4*ft+2*e,2)}, v{vWr+i} offset:{(c&3)*12288+e*768+ft*64}", f"wf{s_}")
    def rd_x(c, i):
        a(f"ds_read_b128 {vr(XF+16*(c&1)+4*i,4)}, v{vXr+i} offset:{(c&1)*16384}", f"xf{c}_{i}")
    def open_chunk(c):
        if "cs" in OPT and c in (3, 5): stamp(True)
        a.wait(vm=f"C{c}")
        if c == 0 or ("cs" in OPT and c in (3, 5)): stamp(True)
        a("s_barrier")
        if "cs" in OPT and c: stamp(True)

    open_chunk(0)
    for i in range(4): rd_x(0, i)
    for ft in range(3): tr_pair(0, ft)
    for b in range(2):
        for e in range(2):
            a(f"ds_read_b64_tr_b16 {vr(LF+4*b+2*e,2)}, v{vSr} offset:{128*b+4*SROW*e}", "tr")
    for ft in range(3): tr_pair(1, ft)
    PS = int(OPT.get("ps", 24))
    def bg_op(c, i, ft):
        if i < 2 and c + 2 <= 7:
            if (i, ft) in ((0, 0), (0, 1), (0, 2), (1, 1)): issue(c + 2, 1)
        elif i >= 2 and c + 3 <= 7:
            if (i, ft) in ((2, 0), (2, 2), (3, 1)): issue(c + 3, 1)
        elif 4 * c + i >= PS and ft != 1:
            lim = 0 if c < 6 else 7 if c == 6 else 11 if i < 2 else 17
            if pn[0] < lim: p_next()
    for c in range(8):
        a.comment(f"---- GEMM1 chunk {c}")
        for i in range(4):
            s_ = 4 * c + i
            if i == 2:
                if c < 7: open_chunk(c + 1)
                else:
                    a.wait(lg=0)
                    a("s_barrier")
            a.wait(lg=(f"xf{c}_3", f"wf{s_}"))
            for ft in range(3):
                cc = "0" if s_ == 0 else vr(ACC1+16*ft, 16)
                a(f"v_mfma_f32_32x32x16_bf16 {vr(ACC1+16*ft,16)}, {vr(wb(s_)+4*ft,4)}, {vr(XF+16*(c&1)+4*i,4)}, {cc}")
                if i == 2 and c < 7:
                    if ft == 0: rd_x(c + 1, 0)
                    rd_x(c + 1, ft + 1)
                if s_ + 2 < 32: tr_pair(s_ + 2, ft)
                if s_ == 30:
                    for k in range(2):
                        a(f"ds_read2st64_b32 {vr(CSF+4*ft+2*k,2)}, v{vT} offset0:{4*ft+2*k} offset1:{4*ft+2*k+1}", "csf")
                if s_ == 0 and ft == 0:
                    a.wait(lg="tr")
                    for b in range(2):
                        a(f"buffer_store_dwordx4 {vr(LF+4*b,4)}, v{vL16}, {WS}, s{sXn} offen offset:{1024*b} sc1", "xn")
                if s_ == 6 and ft == 1:
                    assert "xn" not in a.vm
                    a(f"""
                    s_cmp_eq_u32 s{sTag}, 0
                    s_cbranch_scc1 G_tagslow
                    G_tagok:
                    v_mov_b32 v{LG+2}, s{sTag}
                    v_mov_b32 v{LG+3}, s{sTag+1}
                    s_mov_b64 exec, 3
                    buffer_store_dwordx4 {vr(LG,4)}, v{vL16}, {WS}, s{sSt} offen sc1
                    s_mov_b64 exec, 1
                    buffer_store_dwordx2 {vr(LG+2,2)}, off, {WS}, s{sFx} sc1
                    s_mov_b64 exec, -1
                    v_mov_b32 v{vNon}, s{sTag}
                    v_mov_b32 v{vNon+1}, s{sTag+1}
                    """)
                if i == 0:
                    a(f"v_mfma_f32_32x32x16_bf16 {vr(CSA+16*ft,16)}, {vr(HALF,4)}, {vr(wb(s_)+4*ft,4)}, {'0' if c == 0 else vr(CSA+16*ft,16)}")
                bg_op(c, i, ft)
                if PFN and (i, ft) == (3, 2) and c * PFN < 86:
                    a(f"buffer_load_dword v{vPf+1}, v{vPf}, {W2}, s{sPf} offen", "pf")
                    a(f"s_add_u32 s{sPf}, s{sPf}, {PFN*128}")
                if s_ >= 3: fill(3 if i in (0, 3) else 1)
                if s_ == 29:
                    a(f"v_cvt_pk_bf16_f32 v{CSF+ft}, v{CSA+16*ft}, v{CSA+16*ft}")
                    a(f"v_lshlrev_b32 v{CSF+ft}, 16, v{CSF+ft}")
                    a(f"v_sub_f32 v{CSF+ft}, v{CSA+16*ft}, v{CSF+ft}")
                    a(f"v_cvt_pk_bf16_f32 v{vCs+ft}, v{CSA+16*ft}, v{CSF+ft}")
                    for k in range(2):
                        a(f"ds_write2st64_b32 v{vT2}, v{vCs+ft}, v{vCs+ft} offset0:{24*k+4*ft} offset1:{24*k+12+4*ft}", "csw")
            if s_ == 22:
                assert not FILL
                a(f"buffer_load_dwordx4 {vr(vSt,4)}, v{vSa}, {WS}, s{sO} offen sc1", "st")
                a(f"buffer_load_dwordx4 {vr(vId,4)}, v{vIa}, {WS}, s{sIa} offen sc1", "st")
            if s_ == 30:
                a.wait(vm="st")
                a(f"""
                s_mov_b32 s{sCnt}, 0
                G_stchk:
                v_cmp_ne_u64 vcc, {sr(sTag,2)}, {vr(vSt+2,2)}
                v_cmp_ne_u64 s[88:89], {sr(sTag,2)}, {vr(vId+2,2)}
                v_and_b32 v{vId+1}, 0xffff, v{vId}
                v_cmp_ne_u32 s[90:91], s{sXcc}, v{vId+1}
                s_or_b64 vcc, vcc, s[88:89]
                s_cbranch_vccnz G_stslow
                G_stok:
                """)
            if s_ == 31:
                a(f"""
                v_lshrrev_b32 v{vNeg+1}, 16, v{vSt}
                v_bfi_b32 v{vNeg}, s{sMask}, v{vSt}, v{vNeg+1}
                v_bfi_b32 v{vNeg+2}, s{sMask}, v{vSt}, v{vNeg+1}
                v_bfi_b32 v{vNeg+3}, s{sMask}, v{vSt}, v{vNeg+1}
                v_bfi_b32 v{vNeg+1}, s{sMask}, v{vSt}, v{vNeg+1}
                v_mul_f32 v{vC2}, s{sL2e}, v{vSt+1}
                s_or_b32 s{sFar}, s90, {1 if 'forcefar' in OPT else 's91'}
                """)
    assert not any(ops.values())
    stamp()
    a.wait(lg="csf")
    for ft in range(3):
        a(f"v_mfma_f32_32x32x16_bf16 {vr(ACC1+16*ft,16)}, {vr(CSF+4*ft,4)}, {vr(vNeg,4)}, {vr(ACC1+16*ft,16)}")
    E1, OB = 208, 224
    def tr_w2(step, tag):
        base = STASH + 8 * (step % 12)
        for j in range(2):
            for e in range(2):
                rg, off = LOC[ploc(2 * step + e)]
                a(f"ds_read_b64_tr_b16 {vr(base+4*j+2*e,2)}, v{vW2r+(0 if rg=='A' else 2)+j} offset:{off}", tag)
    for _ in range(3):
        if pn[0] < 20: p_next()
    NSE = int(OPT.get("nse", 0))
    sn = [0]
    for ft in range(3):
        for j in range(2):
            A0 = ACC1 + 16 * ft + 8 * j
            T0 = E1 + 8 * j
            for k in range(8): a(f"v_mul_f32 v{A0+k}, v{vC2}, v{A0+k}")
            for k in range(8): a(f"v_exp_f32_e64 v{T0+k}, -v{A0+k}")
            if pn[0] < 20 + 2 * max(0, sn[0] - 1): a.wait(lg=0); p_next()
            for k in range(8): a(f"v_fma_f32 v{T0+k}, v{T0+k}, s{sL2e}, s{sL2e}")
            for k in range(8): a(f"v_rcp_f32 v{T0+k}, v{T0+k}")
            if pn[0] < 20 + 2 * max(0, sn[0] - 1): p_next()
            if sn[0] < NSE:
                a.wait(vm=f"P{2*sn[0]+1}"); tr_w2(sn[0], "S"); sn[0] += 1
            for k in range(8): a(f"v_mul_f32 v{A0+k}, v{A0+k}, v{T0+k}")
            for k in range(0, 8, 2): a(f"v_cvt_pk_bf16_f32 v{OB+8*ft+4*j+k//2}, v{A0+k}, v{A0+k+1}")
            a(f"buffer_store_dwordx4 {vr(OB+8*ft+4*j,4)}, v{vL16}, {HS}, s{sHS if ft < 2 else sHS2} offen offset:{1024*((2*ft+j)&3)}", "hs")
            if 2 * ft + j == int(OPT.get("go", 9)):
                a(f"s_lshl_b32 s{sT}, s{sP}, 7\ns_add_u32 s{sT}, s{sT}, {FG}\ns_mov_b64 exec, 1")
                a(f"buffer_store_dwordx2 {vr(vNon,2)}, off, {WS}, s{sT}", "go")
                a("s_mov_b64 exec, -1")
    stamp()
    assert pn[0] >= 20
    a.wait(vm="P19")
    while sn[0] < 10:
        tr_w2(sn[0], f"S{sn[0]}"); sn[0] += 1
    vH, vF, vXg, vO, vY, vXl, vR, vP, vYl = 2, 4, 5, 6, 7, 8, 13, 10, 9
    a(f"""
    s_lshl_b32 s{sT}, s{sW}, 3
    s_lshr_b32 s{sT2}, 0x160e0600, s{sT}
    s_and_b32 s{sT2}, s{sT2}, 0xff
    s_lshr_b32 s{sT}, 0x1d150f07, s{sT}
    s_and_b32 s{sT}, s{sT}, 0xff
    v_max_u32 v{vF}, s{sT2}, v{vL}
    v_min_u32 v{vF}, s{sT}, v{vF}
    v_lshlrev_b32 v{vF}, 3, v{vF}
    s_and_b32 s{sT}, s{sW}, 1
    s_mul_i32 s{sT2}, s{sT}, {HROW}
    v_add_u32 v{vH}, s{sT2}, v{vL16}
    s_sub_u32 s{sT2}, {HROW}, s{sT2}
    v_add_u32 v{vH+1}, s{sT2}, v{vL16}
    s_mov_b32 s{sCnt}, 0
    """)
    a.wait(lg=0)
    NPD = int(OPT.get("npd", 4))
    for _ in range(NPD): p_next()
    a(f"s_cmp_lg_u32 s{sFar}, 0\ns_cbranch_scc1 G_far")
    a.wait(vm="hs")
    stamp()
    a(f"s_mov_b64 exec, 1\nbuffer_store_dwordx2 {vr(vNon,2)}, off, {WS}, s{sFl}\nG_pub:\ns_mov_b64 exec, -1")
    while pn[0] < 36: p_next()
    a.wait(vm="P23")
    tr_w2(10, "S"); tr_w2(11, "S")
    while pn[0] < 40: p_next()
    a.wait(lg=0)
    while pn[0] < 44: p_next()
    a(f"s_lshl_b32 s{sRet}, s{sRT}, 8\ns_add_u32 s{sRet}, s{sRet}, {FH}")
    stamp()
    a("G_hpoll:")
    a.raw(f"  buffer_load_dwordx2 {vr(vP,2)}, v{vF}, {WS}, s{sRet} offen sc1")
    a(f"""
    s_add_u32 s{sCnt}, s{sCnt}, 1
    s_waitcnt vmcnt(0)
    v_cmp_ne_u64 vcc, {sr(sTag,2)}, {vr(vP,2)}
    s_cmp_lt_u32 s{sCnt}, {SPIN}
    s_cselect_b64 vcc, vcc, 0
    s_cbranch_vccnz G_hpoll
    """)
    a.vm = []
    stamp()
    if STAMPS: a(f"s_lshl_b32 s{sCnt}, s{sCnt}, 16\ns_add_u32 s97, s97, s{sCnt}")
    def h_load(i, j):
        if j == 0 and i and i % 4 == 0: a(f"s_add_u32 s{sHL}, s{sHL}, 4096")
        a(f"buffer_load_dwordx4 {vr(HB+8*(i%HD)+4*j,4)}, v{vH+j}, {HS}, s{sHL} offen offset:{1024*(i%4)} sc1", f"h{i}")
    NH0 = int(OPT.get("nh0", 4))
    for i in range(NH0): h_load(i, 0); h_load(i, 1)
    a(f"""
    s_lshl1_add_u32 s{sT2}, s{sRT}, s{sT}
    s_lshr_b32 s{sT}, s{sW}, 1
    s_lshl1_add_u32 s{sCnt}, s{sCG}, s{sT}
    s_lshl_b32 s{sO}, s{sT2}, 15
    s_lshl_b32 s{sT}, s{sCnt}, 6
    s_add_u32 s{sO}, s{sO}, s{sT}
    s_mul_i32 s{sY}, s{sCnt}, {16*GS}
    s_lshl_b32 s{sT}, s{sT2}, 8
    s_add_u32 s{sY}, s{sY}, s{sT}
    s_add_u32 s{sY}, s{sY}, {Y2}
    v_and_b32 v{vT}, 31, v{vL}
    v_lshrrev_b32 v{vT2}, 5, v{vL}
    v_lshlrev_b32 v{vO}, 10, v{vT}
    v_lshl_add_u32 v{vO}, v{vT2}, 4, v{vO}
    v_lshl_add_u32 v{vXl}, v{vT}, 6, s{sLA}
    v_lshl_add_u32 v{vXl}, v{vT2}, 3, v{vXl}
    v_lshrrev_b32 v{vYl}, 1, v{vT}
    v_lshl_add_u32 v{vYl}, v{vYl}, 4, s{sLA}
    v_lshl_add_u32 v{vYl}, v{vT2}, 9, v{vYl}
    v_and_b32 v{vT}, 1, v{vL}
    v_lshl_add_u32 v{vYl}, v{vT}, 2, v{vYl}
    v_lshrrev_b32 v{vY}, 4, v{vL}
    v_mul_u32_u24 v{vY}, {GS}, v{vY}
    v_and_b32 v{vT}, 15, v{vL}
    v_lshl_add_u32 v{vY}, v{vT}, 4, v{vY}
    v_add_u32 v{vP}, s{sLA}, v{vL16}
    v_lshrrev_b32 v{vXg}, 2, v{vL}
    v_lshlrev_b32 v{vXg}, 10, v{vXg}
    v_and_b32 v{vT}, 3, v{vL}
    v_lshl_add_u32 v{vXg}, v{vT}, 4, v{vXg}
    v_add_u32 v{vR}, s{sLB}, v{vL16}
    """)
    for k in range(1, 4):
        a(f"s_xor_b32 s{sT}, s{sW}, {k}\ns_mulk_i32 s{sT}, 3072\ns_add_u32 s{sT}, s{sT}, 32768\nv_add_u32 v{vR+k}, s{sT}, v{vL16}")
    YO = 16384
    YV, YT, Z = 176, 184, 240
    def y_loads(emit):
        emit(f"s_add_u32 m0, s{sLA}, {YO}")
        for k in range(4):
            emit(f"s_add_u32 s{sT2}, s{sY}, {4*k*GS-1024*k}")
            emit(f"buffer_load_dwordx4 v{vY}, {WS}, s{sT2} offen offset:{1024*k} sc1 lds")
    def y_reads(emit):
        for k in range(4): emit(f"ds_read_b64 {vr(YT+2*k,2)}, v{vP} offset:{YO+1024*k+8}")
        for k in range(8): emit(f"ds_read_b32 v{YV+k}, v{vYl} offset:{YO+1024*(k>>1)+256*(k&1)}")
    XR = 24
    hq = [(i, j) for i in range(NH0, 22) for j in range(2)]
    NT = int(OPT.get("nt", 5))
    def mm(i, k):
        ac = ACC2 + 16 * k
        a(f"v_mfma_f32_32x32x16_bf16 {vr(ac,16)}, {vr(STASH+8*(i%12)+4*(k>>1),4)}, {vr(HB+8*(i%HD)+4*(k&1),4)}, {'0' if i == 0 else vr(ac,16)}")
    YS = int(OPT.get("ys", 9))
    for i in range(22 - NT):
        a.wait(vm=f"h{i}", lg=(f"r{i}" if i >= 12 else 0 if i == 0 else None))
        if i == 0: stamp()
        for k in range(4):
            mm(i, k)
            if hq and hq[0][0] < i + HD and (k != 3 or hq[0][0] < i + HD - 1): h_load(*hq.pop(0))
            if k == 1 and 1 <= i and i + 11 < 22: tr_w2(i + 11, f"r{i+11}")
            if k == 2 and i == YS:
                a.wait(lg="r15")
                y_loads(lambda t: a(t, "yr"))
            if k == 2 and i == 12:
                a.wait(lg=0)
                a(f"s_mov_b32 m0, s{sLA}\ns_add_u32 s{sT2}, s{sO}, {16384-1024}")
                a(f"buffer_load_dwordx4 v{vXg}, {X}, s{sO} offen lds", "xr")
                a(f"buffer_load_dwordx4 v{vXg}, {X}, s{sT2} offen offset:1024 lds", "xr")
    assert not hq
    if "ts" in OPT: stamp()
    def r_write(k, q):
        idx = (k - 1) * 4 + q
        a(f"ds_write_b128 v{vR}, {vr(ACC2+16*k+4*q,4)} offset:{(idx//3)*12288+(idx%3)*1024}", "rw")
    side = []
    for k in (3, 2, 1, 0):
        for n, i in enumerate(range(22 - NT, 22)):
            if k == 3: a.wait(vm=f"h{i}")
            mm(i, k)
            if k < 3 and n >= NT - 4: r_write(k + 1, n - (NT - 4))
            if k == 2 and n == 0:
                a.wait(vm=("xr", "yr"))
                y_reads(lambda t: a(t, "yl"))
                for q in range(4): a(f"ds_read_b64 {vr(XR+2*q,2)}, v{vXl} offset:{16*q}", "xl")
            if k == 2 and n == NT - 1:
                a.wait(lg="xl")
                a(f"s_mov_b32 s{sCnt}, 0\nG_ychk:")
                a(f"v_cmp_ne_u64 vcc, {sr(sTag,2)}, {vr(YT,2)}")
                for j in range(1, 4): a(f"v_cmp_ne_u64 s[{86+2*j}:{87+2*j}], {sr(sTag,2)}, {vr(YT+2*j,2)}")
                for j in range(1, 4): a(f"s_or_b64 vcc, vcc, s[{86+2*j}:{87+2*j}]")
                a("s_cbranch_vccnz G_yslow\nG_yok:")
                for j in range(8):
                    t = YT + 2 * (j & 3)
                    side += [f"v_lshlrev_b32 v{Z+2*j}, 16, v{YV+j}", f"v_and_b32 v{Z+2*j+1}, s{sMask}, v{YV+j}",
                             f"v_lshlrev_b32 v{t}, 16, v{XR+j}", f"v_and_b32 v{t+1}, s{sMask}, v{XR+j}",
                             f"v_add_f32 v{Z+2*j}, v{Z+2*j}, v{t}", f"v_add_f32 v{Z+2*j+1}, v{Z+2*j+1}, v{t+1}"]
            elif side:
                for _ in range(5):
                    if side: a(side.pop(0))
    stamp()
    a.wait(lg=0)
    a("s_barrier")
    RB = 48
    for k in range(1, 4):
        for q in range(4):
            idx = (k - 1) * 4 + q
            a(f"ds_read_b128 {vr(RB+16*(k-1)+4*q,4)}, v{vR+k} offset:{(idx//3)*12288+(idx%3)*1024}", f"rr{k}")
    while side: a(side.pop(0))
    for k in range(8):
        a(f"v_pk_add_f32 {vr(ACC2+2*k,2)}, {vr(ACC2+2*k,2)}, {vr(Z+2*k,2)}")
    for k in range(1, 4):
        a.wait(lg=f"rr{k}")
        for j in range(8):
            a(f"v_pk_add_f32 {vr(ACC2+2*j,2)}, {vr(ACC2+2*j,2)}, {vr(RB+16*(k-1)+2*j,2)}")
    for k in range(8):
        a(f"v_cvt_pk_bf16_f32 v{XR+k}, v{ACC2+2*k}, v{ACC2+2*k+1}")
    for q in range(2):
        a(f"v_permlane32_swap_b32 v{XR+4*q}, v{XR+4*q+2}\nv_permlane32_swap_b32 v{XR+4*q+1}, v{XR+4*q+3}")
        a(f"buffer_store_dwordx4 {vr(XR+4*q,4)}, v{vO}, {OUT}, s{sO} offen offset:{32*q} {OPT.get('osf', '').replace('_', ' ')}")
    stamp()
    if STAMPS:
        a("s_waitcnt vmcnt(0)"); stamp()
    if "padto" in OPT:
        a(f"G_pad:\ns_memrealtime s[98:99]\ns_waitcnt lgkmcnt(0)\ns_sub_u32 s96, s98, s{sTag}\ns_cmp_lt_u32 s96, {OPT['padto']}\ns_cbranch_scc1 G_pad")
    if "dbg" in OPT:
        n = nstamp[0]
        a(f"s_memrealtime s[98:99]\ns_waitcnt lgkmcnt(0)\ns_lshl2_add_u32 s96, s2, s{sW}\ns_cmp_lg_u32 s96, {4*int(OPT['dbg'])}\ns_cbranch_scc1 G_nodbg\ns_mov_b64 exec, 1")
        for i in range(1, n):
            a(f"s_sub_u32 s96, s{60+2*i}, s60\nv_mov_b32 v{vT}, s96\nbuffer_store_dword v{vT}, off, {DBG}, 0 offset:{4+4*i}")
        a(f"s_sub_u32 s96, s98, s{sTag}\nv_mov_b32 v{vT}, s96\nbuffer_store_dword v{vT}, off, {DBG}, 0 offset:60")
        a("G_nodbg:")
    stamp_flush(WS, f"s{sW}", vT)
    a("s_endpgm")
    tag_slow("G", sTag, 24, [64, 192], vNon, sCnt)
    a.raw(f"""G_stslow:
{retry_mark(4)}  s_add_u32 s{sCnt}, s{sCnt}, 1
  s_cmp_ge_u32 s{sCnt}, {SPIN}
  s_cbranch_scc1 G_stok
  buffer_load_dwordx4 {vr(vSt,4)}, v{vSa}, {WS}, s{sO} offen sc1
  buffer_load_dwordx4 {vr(vId,4)}, v{vIa}, {WS}, s{sIa} offen sc1
  s_waitcnt vmcnt(0)
  s_branch G_stchk
G_yslow:
{retry_mark(8)}  s_add_u32 s{sCnt}, s{sCnt}, 1
  s_cmp_ge_u32 s{sCnt}, {1 if "nossm" in OPT else SPIN}
  s_cbranch_scc1 G_yok""")
    y_loads(lambda t: a.raw("  " + t))
    a.raw("  s_waitcnt vmcnt(0)")
    y_reads(lambda t: a.raw("  " + t))
    a.raw("  s_waitcnt lgkmcnt(0)\n  s_branch G_ychk")
    a.hist = []
    a("G_far:\ns_waitcnt vmcnt(0)")
    for k in range(6):
        a(f"buffer_store_dwordx4 {vr(OB+4*k,4)}, v{vL16}, {HS}, s{sHS if k < 4 else sHS2} offen offset:{1024*(k&3)} sc1")
    a(f"s_waitcnt vmcnt(0)\ns_mov_b64 exec, 1\nbuffer_store_dwordx2 {vr(vNon,2)}, off, {WS}, s{sFl} sc1\ns_branch G_pub")
    a.vm = []; a.lg = []

def ssm_role():
    DBG, WS = "s[8:11]", "s[12:15]"
    sQ, sW, sE, sPar, sT, sT2, sCnt, sOnes, sMask = 3, 4, 5, 6, 7, 34, 35, 40, 41
    sLdt, sD, sTag, sU = 42, 43, 36, 38
    sMean, sNeg, sR = 44, 48, 52
    vL, vXr, vF, vC = 1, 2, 10, 26
    vPar, vA, vB = 44, 50, 51
    vT, vT2, vT3, vT4 = 54, 55, 56, 57
    vNon, vL16, vTab = 42, 60, 61
    UB0, USZ, K0A, TAB, SROW = 33280, 4576, 42432, 45056, 1088
    a.hist = []; a.vm = []; a.lg = []
    a(f"""
    s_load_dwordx16 s[16:31], s[0:1], 0
    s_load_dwordx2 s[8:9], s[0:1], 104
    s_load_dwordx2 s[32:33], s[0:1], 64
    s_load_dwordx2 s[12:13], s[0:1], 112
    s_and_b32 s{sQ}, s2, 7
    s_lshl_b32 s{sQ}, s{sQ}, 5
    s_lshr_b32 s{sT}, s2, 3
    s_add_u32 s{sQ}, s{sQ}, s{sT}
    s_lshl_b32 s{sT}, s{sQ}, 9
    v_lshl_add_u32 v{vT3}, v0, 1, s{sT}
    s_lshl_b32 s{sT}, s{sQ}, 2
    """)
    if STAMPS: a("s_memrealtime s[100:101]\ns_mov_b32 s97, 0")
    a("s_waitcnt lgkmcnt(0)")
    stamp()
    if "nossm" in OPT: a("s_endpgm")
    for k in range(6):
        a(f"global_load_ushort v{vPar+k}, v{vT3}, s[{18+2*k}:{19+2*k}]", "par")
    a(f"s_load_dword s{sLdt}, s[30:31], s{sT}\ns_load_dword s{sD}, s[32:33], s{sT}\ns_branch L_ssm")
    keep = (list(a.vm), nstamp[0])
    yield
    a.hist = []; a.lg = []; a.vm = keep[0]; nstamp[0] = keep[1]
    a(f"""
    v_lshrrev_b32 v{vT}, 6, v0
    v_and_b32 v{vL}, 63, v0
    v_lshlrev_b32 v{vL16}, 4, v{vL}
    v_readfirstlane_b32 s{sW}, v{vT}
    """)
    srd(8, 256); srd(12, WS_SIZE)
    a(f"""
    s_lshr_b32 s{sE}, s{sW}, 1
    s_and_b32 s{sPar}, s{sW}, 1
    s_mov_b32 s{sMask}, 0xffff0000
    s_mul_i32 s{sT2}, s{sE}, {USZ}
    s_add_u32 s{sT2}, s{sT2}, {UB0}
    v_lshl_add_u32 v{vT}, v{vL}, 3, s{sT2}
    v_mov_b32 v{vT3}, 0
    v_mov_b32 v{vT4}, 0
    ds_write_b64 v{vT}, {vr(vT3,2)}
    s_mul_i32 s{sT2}, s{sW}, 8704
    s_add_u32 s{sT2}, s{sT2}, {TAB}
    v_add_u32 v{vTab}, s{sT2}, v{vL16}
    """)
    vOA, vOG, vPb = 50, 51, 59
    a(f"""
    v_and_b32 v{vT}, 15, v{vL}
    v_lshlrev_b32 v{vOG}, 3, v{vT}
    v_lshlrev_b32 v{vT2}, 2, v{vT}
    v_add_u32 v{vT2}, {512-36}, v{vT2}
    v_cmp_lt_u32 vcc, 8, v{vT}
    v_add_u32 v{vT3}, {1024-96}, v{vOG}
    v_add_u32 v{vT4}, {1536-112}, v{vOG}
    v_cndmask_b32 v{vOA}, v{vT}, v{vT2}, vcc
    v_cmp_lt_u32 vcc, 11, v{vT}
    v_cmp_lt_u32 s[56:57], 13, v{vT}
    v_cvt_f32_u32 v{vOG}, v{vOG}
    v_cndmask_b32 v{vOA}, v{vOA}, v{vT3}, vcc
    v_cndmask_b32 v{vOA}, v{vOA}, v{vT4}, s[56:57]
    v_cvt_f32_u32 v{vOA}, v{vOA}
    s_mul_i32 s{sT2}, s{sW}, 8704
    s_add_u32 s{sT2}, s{sT2}, {TAB}
    v_lshrrev_b32 v{vT}, 4, v{vL}
    v_lshl_add_u32 v{vPb}, v{vT}, 6, s{sT2}
    """)
    def k_mfma(s_):
        F = 152 + 16 * (s_ & 1)
        for hh in range(2):
            for gt in range(2):
                d = 200 + 8 * hh + 4 * gt
                a(f"v_mfma_f32_16x16x32_bf16 {vr(d,4)}, {vr(F+4*hh,4)}, {vr(F+8+4*gt,4)}, {'0' if s_ == 0 else vr(d,4)}")
    a("s_waitcnt lgkmcnt(0)")
    a.lg = []
    PR, PB, FR, KT, KA = 64, 72, 152, 200, 216
    sXf, vXf = 58, 31
    a(f"""
    s_lshl_b32 s{sT}, s{sLdt}, 16
    s_and_b32 s{sT2}, s{sLdt}, s{sMask}
    s_cmp_eq_u32 s{sE}, 0
    s_cselect_b32 s{sT}, s{sT}, s{sT2}
    v_mov_b32 v{vT}, {LOG2E:#x}
    v_mul_f32 v{vT}, s{sT}, v{vT}
    v_exp_f32 v{vT}, v{vT}
    """)
    a.wait(vm="par")
    stamp()
    for k in range(6): a(f"v_lshlrev_b32 v{vPar+k}, 16, v{vPar+k}")
    TM = 136
    a(f"""
    v_cvt_pk_bf16_f32 v{vT}, v{vT}, v{vT}
    v_lshlrev_b32 v{vT}, 16, v{vT}
    v_mul_f32 v{PR}, v{vPar}, v{vT}
    v_mul_f32 v{PR+1}, v{vPar+1}, v{vT}
    v_mul_f32 v{vPar+2}, v{vPar+2}, v{vT}
    v_mul_f32 v{vPar+3}, v{vPar+3}, v{vT}
    v_mul_f32 v{PR}, {LOG2E:#x}, v{PR}
    v_mul_f32 v{PR+1}, 0.15915494, v{PR+1}
    """)
    cmul(PR + 2, vPar + 4, vPar + 2)
    for i, l in enumerate((128, 256)):
        a(f"v_mul_f32 v{TM+4*i}, {fl(l)}, v{PR}\nv_mul_f32 v{TM+4*i+1}, {fl(l)}, v{PR+1}")
    for i in range(2): a(f"v_fract_f32 v{TM+4*i+1}, v{TM+4*i+1}\nv_exp_f32 v{TM+4*i}, v{TM+4*i}")
    for i in range(2): a(f"v_cos_f32 v{TM+4*i+2}, v{TM+4*i+1}\nv_sin_f32 v{TM+4*i+3}, v{TM+4*i+1}")
    a(f"ds_write_b128 v{vTab}, {vr(PR,4)}", "pw")
    a(f"""
    v_mul_f32 v{TM+2}, v{TM+2}, v{TM}
    v_mul_f32 v{TM+3}, v{TM+3}, v{TM}
    v_mul_f32 v{PR+6}, v{TM+6}, v{TM+4}
    v_mul_f32_e64 v{PR+7}, -v{TM+7}, v{TM+4}
    """)
    cmul(PR + 4, PR + 2, TM + 2)
    a(f"ds_write_b128 v{vTab}, {vr(PR+4,4)} offset:1024", "pw")
    def p_reads(s_):
        for j in range(4):
            for k in range(2):
                a(f"ds_read_b128 {vr(PB+32*(s_&1)+8*j+4*k,4)}, v{vPb} offset:{256*s_+16*j+1024*k}", f"pb{s_}")
    p_reads(0)
    stamp()
    for s_ in range(4):
        if s_ < 3: p_reads(s_ + 1)
        a.wait(lg=f"pb{s_}")
        if s_ == 3: a(f"s_load_dwordx2 {sr(sTag,2)}, s[8:9], 128")
        F = FR + 16 * (s_ & 1)
        for jp in range(2):
            js = (2 * jp, 2 * jp + 1)
            P = lambda j: PB + 32 * (s_ & 1) + 8 * j
            T = lambda j, w_: TM + 8 * (j & 1) + 4 * w_
            for j in js:
                for w_, o in enumerate((vOA, vOG)):
                    a(f"v_mul_f32 v{T(j,w_)}, v{P(j)}, v{o}\nv_mul_f32 v{T(j,w_)+1}, v{P(j)+1}, v{o}")
            for j in js:
                for w_ in range(2):
                    a(f"v_fract_f32 v{T(j,w_)+1}, v{T(j,w_)+1}\nv_exp_f32 v{T(j,w_)}, v{T(j,w_)}")
            for j in js:
                for w_ in range(2):
                    a(f"v_cos_f32 v{T(j,w_)+2}, v{T(j,w_)+1}\nv_sin_f32 v{T(j,w_)+3}, v{T(j,w_)+1}")
            for j in js:
                a(f"v_mul_f32 v{T(j,0)+2}, v{T(j,0)+2}, v{T(j,0)}\nv_mul_f32_e64 v{T(j,0)+3}, -v{T(j,0)+3}, v{T(j,0)}")
                a(f"v_mul_f32 v{T(j,1)+2}, v{T(j,1)+2}, v{T(j,1)}\nv_mul_f32 v{T(j,1)+3}, v{T(j,1)+3}, v{T(j,1)}")
            for j in js:
                a(f"v_cvt_pk_bf16_f32 v{F+j}, v{T(j,0)+2}, v{T(j,0)+3}")
                cmul(T(j, 0), T(j, 0) + 2, P(j) + 6)
                cmul(T(j, 1), T(j, 1) + 2, P(j) + 2)
                a(f"v_cvt_pk_bf16_f32 v{F+4+j}, v{T(j,0)}, v{T(j,0)+1}")
                cmul(T(j, 0) + 2, T(j, 1) + 2, P(j) + 4)
                a(f"v_cvt_pk_bf16_f32 v{F+8+j}, v{T(j,1)}, v{T(j,1)+1}")
                a(f"v_cvt_pk_bf16_f32 v{F+12+j}, v{T(j,0)+2}, v{T(j,0)+3}")
            if jp == 0 and s_ > 0: k_mfma(s_ - 1)
        if s_ == 1: stamp()
    stamp()
    vUg, vUw, vU = 62, 63, 10
    a(f"""
    v_lshrrev_b32 v{vT3}, 1, v{vL}
    v_and_b32 v{vT2}, 1, v{vL}
    v_mul_u32_u24 v{vUg}, {XS}, v{vT3}
    v_lshl_add_u32 v{vUg}, v{vT2}, 4, v{vUg}
    v_mul_u32_u24 v{vUw}, {USZ}, v{vT2}
    v_lshl_add_u32 v{vUw}, v{vT3}, 4, v{vUw}
    s_lshl_b32 s{sT}, s{sW}, 10
    s_add_u32 s{sT}, s{sT}, {UB0+480}
    v_add_u32 v{vUw}, s{sT}, v{vUw}
    s_mul_i32 s{sU}, s{sW}, {64*XS}
    s_lshl_b32 s{sT}, s{sQ}, 5
    s_add_u32 s{sU}, s{sU}, s{sT}
    s_add_u32 s{sU}, s{sU}, {XNP}
    s_add_u32 s{sU+1}, s{sU}, {32*XS}
    s_mov_b32 s{sCnt}, 0
    """)
    k_mfma(3)
    vK = 80
    a(f"""
    v_lshrrev_b32 v{vT2}, 4, v{vL}
    v_and_b32 v{vT3}, 15, v{vL}
    v_lshlrev_b32 v{vT3}, 4, v{vT3}
    v_lshl_add_u32 v{vT2}, v{vT2}, 10, v{vT3}
    s_mul_i32 s{sT2}, s{sW}, 8704
    s_add_u32 s{sT2}, s{sT2}, {TAB+2048}
    v_add_u32 v{vT2}, s{sT2}, v{vT2}
    s_mul_i32 s{sT}, s{sE}, {2*8704}
    s_add_u32 s{sT}, s{sT}, {TAB+2048}
    v_add_u32 v{vT3}, s{sT}, v{vL16}
    """)
    for t in range(4): a(f"ds_write_b128 v{vT2}, {vr(KT+4*t,4)} offset:{256*t}")
    a(f"""
    s_mul_i32 s{sT}, s{sE}, 16640
    s_lshl_b32 s{sT2}, s{sPar}, 11
    s_add_u32 s{sT2}, s{sT2}, s{sT}
    s_add_u32 s{sT2}, s{sT2}, 32
    v_add_u32 v{vK}, s{sT2}, v{vL16}
    v_bfe_u32 v{vT}, v{vL}, 3, 2
    v_mul_u32_u24 v{vT}, 4160, v{vT}
    v_and_b32 v{vT4}, 7, v{vL}
    v_lshl_add_u32 v{vT}, v{vT4}, 2, v{vT}
    v_add_u32 v{vT}, s{sT}, v{vT}
    v_and_b32 v{vT4}, 1, v{vL}
    v_cmp_eq_u32 vcc, 1, v{vT4}
    v_cmp_le_u32 s[56:57], 32, v{vL}
    """)
    stamp()
    a("s_waitcnt lgkmcnt(0)\ns_barrier")
    stamp()
    a(f"""
    s_lshr_b32 s{sXf}, s{sQ}, 6
    s_lshl_b32 s{sXf}, s{sXf}, 11
    s_lshl_b32 s{sT2}, s{sW}, 9
    s_add_u32 s{sXf}, s{sXf}, s{sT2}
    s_add_u32 s{sXf}, s{sXf}, {FX}
    v_lshlrev_b32 v{vXf}, 3, v{vL}
    s_setprio 3
    """)
    a(f"buffer_load_dwordx2 {vr(vXf+1,2)}, v{vXf}, {WS}, s{sXf} offen sc1", "xf")
    a("s_setprio 0")
    a(f"s_cmp_lg_u32 s{sPar}, 0\ns_cbranch_scc1 S_par1")
    KP = 64
    PK = 88
    K = lambda i: KA + i
    def packs(run, k):
        for cp in range(4):
            for j in range(4): a(f"v_cvt_pk_bf16_f32 v{PK+16*run+4*cp+j}, v{k[cp+2*j]}, v{k[cp+2*j+1]}")
            a(f"ds_write_b128 v{vK}, {vr(PK+16*run+4*cp,4)} offset:{4160*cp+1024*run}")
    hist0 = list(a.hist)
    for q in range(3):
        a(f"ds_read_b128 {vr(KA+4*q,4)}, v{vT3} offset:{1024*q}\nds_read_b128 {vr(KP+4*q,4)}, v{vT3} offset:{8704+1024*q}")
    a(f"""
    v_mov_b32 v{vT4}, 0
    ds_write_b32 v{vT}, v{vT4}
    s_lshl_b32 s{sT2}, s{sE}, 2
    s_add_u32 s{sT2}, s{sT2}, {K0A}
    v_mov_b32 v{vT2}, s{sT2}
    v_mov_b32 v{vT3}, s{sT}
    s_waitcnt lgkmcnt(1)
    """)
    for j in range(12): a(f"v_add_f32 v{KA+j}, v{KA+j}, v{KP+j}")
    a(f"""
    v_cndmask_b32 v{K(1)}, v{K(1)}, v{K(0)}, s[56:57]
    v_cndmask_b32 v{K(3)}, v{K(3)}, v{K(4)}, s[56:57]
    v_cndmask_b32 v{K(5)}, v{K(5)}, v{K(4)}, s[56:57]
    v_cndmask_b32 v{K(7)}, v{K(7)}, v{K(8)}, s[56:57]
    v_mov_b32 v{K(12)}, v{K(8)}
    v_mov_b32 v{K(13)}, v{K(8)}
    s_mov_b64 exec, 1
    ds_write_b32 v{vT2}, v{K(0)}
    v_mov_b32 v{K(0)}, 0
    s_mov_b64 exec, -1
    v_mov_b32_dpp v{K(12)}, v{K(1)} wave_shl:1 row_mask:0xf bank_mask:0xf
    v_mov_b32_dpp v{K(13)}, v{K(2)} wave_shl:1 row_mask:0xf bank_mask:0xf
    """)
    packs(1, [K(9)] * 3 + [K(10)] * 3 + [K(11)] * 5)
    packs(0, [K(i) for i in range(9)] + [K(12), K(13)])
    a(f"""
    s_mov_b64 exec, 1
    ds_write_b32 v{vT3}, v{PK} offset:{2*4160+28}
    ds_write_b32 v{vT3}, v{PK+4} offset:{3*4160+28}
    s_mov_b64 exec, -1
    s_branch S_parj
    S_par1:
    """)
    a.hist = hist0
    a(f"ds_read_b128 {vr(KA+12,4)}, v{vT3} offset:3072\nds_read_b128 {vr(KP,4)}, v{vT3} offset:{8704+3072}\ns_waitcnt lgkmcnt(0)")
    for j in range(4): a(f"v_add_f32 v{KA+12+j}, v{KA+12+j}, v{KP+j}")
    a(f"v_cndmask_b32 v{K(0)}, v{K(12)}, v{K(13)}, vcc\nv_cndmask_b32 v{K(1)}, v{K(14)}, v{K(15)}, vcc")
    packs(0, [K(12)] * 4 + [K(0)] + [K(13)] * 6)
    packs(1, [K(14)] * 4 + [K(1)] + [K(15)] * 6)
    a("S_parj:")
    a.lg = []
    a(f"s_cmp_eq_u32 s{sTag}, 0\ns_cbranch_scc1 S_tagslow\nS_tagok:\ns_mov_b32 s{sCnt}, 0")
    a.wait(vm="xf")
    a(f"""
    S_uchk:
    v_cmp_ne_u64 s[46:47], {sr(sTag,2)}, {vr(vXf+1,2)}
    s_setprio 3
    s_cmp_lg_u64 s[46:47], 0
    s_cbranch_scc1 S_uslow
    S_uok:
    """)
    for k in range(2):
        a(f"buffer_load_dwordx4 {vr(vU+4*k,4)}, v{vUg}, {WS}, s{sU+k} offen sc1", "u")
    a("s_setprio 0")
    stamp()
    vAa, vBa = 52, 53
    a(f"""
    s_mul_i32 s{sT}, s{sE}, {USZ}
    s_add_u32 s{sT}, s{sT}, {UB0}
    s_lshl_b32 s{sT2}, s{sPar}, 8
    s_sub_u32 s{sT}, s{sT}, s{sT2}
    s_add_u32 s{sT}, s{sT}, 256
    v_and_b32 v{vT2}, 15, v{vL}
    v_lshrrev_b32 v{vT3}, 4, v{vL}
    v_lshlrev_b32 v{vT3}, 4, v{vT3}
    v_lshl_add_u32 v{vBa}, v{vT2}, 5, v{vT3}
    v_add_u32 v{vBa}, s{sT}, v{vBa}
    v_bfe_u32 v{vT2}, v{vL}, 2, 2
    v_sub_u32 v{vT4}, 0, v{vT2}
    v_and_b32 v{vT4}, 3, v{vT4}
    v_mul_u32_u24 v{vAa}, 4160, v{vT4}
    v_min_u32 v{vT2}, 1, v{vT2}
    v_lshlrev_b32 v{vT2}, 3, v{vT2}
    v_sub_u32 v{vAa}, v{vAa}, v{vT2}
    v_sub_u32 v{vAa}, v{vAa}, v{vT3}
    v_and_b32 v{vT2}, 3, v{vL}
    v_lshl_add_u32 v{vAa}, v{vT2}, 3, v{vAa}
    s_mul_i32 s{sT}, s{sE}, 16640
    s_add_u32 s{sT}, s{sT}, s{sT2}
    s_add_u32 s{sT}, s{sT}, {32+32-8}
    v_add_u32 v{vAa}, s{sT}, v{vAa}
    """)
    stamp()
    a.wait(vm="u")
    stamp()
    for k in range(2): a(f"ds_write_b128 v{vUw}, {vr(vU+4*k,4)} offset:{512*k}")
    if int(OPT.get("go", 9)) < 6:
        a(f"""
        s_cmp_lg_u32 s{sW}, 0
        s_cbranch_scc1 S_go
        s_lshl_b32 s{sT}, s{sQ}, 7
        s_add_u32 s{sT}, s{sT}, {FG}
        s_mov_b32 s{sCnt}, 0
        S_gopoll:
        buffer_load_dwordx2 {vr(vXf+1,2)}, off, {WS}, s{sT} sc1
        s_add_u32 s{sCnt}, s{sCnt}, 1
        s_waitcnt vmcnt(0)
        v_cmp_ne_u64 vcc, {sr(sTag,2)}, {vr(vXf+1,2)}
        s_cmp_lt_u32 s{sCnt}, 12
        s_cselect_b64 vcc, vcc, 0
        s_cbranch_vccnz S_gopoll
        S_go:
        """)
        a.vm = []
    a("s_waitcnt lgkmcnt(0)\ns_barrier")
    a.lg = []
    stamp()
    AS, BS, YA = [64, 128], [96, 160], 192
    def reads(rho):
        s = rho & 1; L = []
        for j in range(8):
            L.append((f"ds_read_b128 {vr(BS[s]+4*j,4)}, v{vBa} offset:{512*j+64*(3-rho)}", f"b{rho}_{j}"))
            L.append((f"ds_read_b64_tr_b16 {vr(AS[s]+4*j,2)}, v{vAa} offset:{64*(8*j+rho)+8}", f"a{rho}_{j}"))
            L.append((f"ds_read_b64_tr_b16 {vr(AS[s]+4*j+2,2)}, v{vAa} offset:{64*(8*j+rho)}", f"a{rho}_{j}"))
        return L
    for t, tag in reads(0): a(t, tag)
    UU, KD, RR, UF, OV = 2, 10, 64, 12, 96
    a(f"""
    s_mul_i32 s{sT2}, s{sW}, 8704
    s_add_u32 s{sT2}, s{sT2}, {TAB}
    v_add_u32 v{vT}, s{sT2}, v{vL16}
    v_bfe_u32 v{vT2}, v{vL}, 1, 2
    v_lshlrev_b32 v{vT2}, 8, v{vT2}
    v_lshrrev_b32 v{vT3}, 3, v{vL}
    v_lshl_add_u32 v{vT2}, v{vT3}, 4, v{vT2}
    v_and_b32 v{vT3}, 1, v{vL}
    v_lshl_add_u32 v{vT2}, v{vT3}, 3, v{vT2}
    s_lshl_b32 s{sT}, s{sW}, 11
    s_add_u32 s{sT}, s{sT}, {TAB}
    v_add_u32 v{vT2}, s{sT}, v{vT2}
    s_lshl_b32 s{sT2}, s{sW}, 10
    s_add_u32 s{sT2}, s{sT2}, {UB0+480}
    v_lshl_add_u32 v{vT3}, v{vL}, 2, s{sT2}
    v_mov_b32 v{vT4}, {K0A}
    s_mul_i32 s{sT}, s{sQ}, {GS}
    s_lshl_b32 s{sT2}, s{sW}, 12
    s_add_u32 s{sT}, s{sT}, s{sT2}
    s_add_u32 s{sT}, s{sT}, {Y2}
    """)
    first = [True] * 8
    for rho in range(4):
        s = rho & 1
        if rho < 3: nxt = reads(rho + 1)
        else:
            nxt = [(f"ds_read_b32 v{UU+4*e+k}, v{vT3} offset:{USZ*e+256*k}", "uu") for e in range(2) for k in range(4)]
            nxt.append((f"ds_read_b64 {vr(KD,2)}, v{vT4}", "uu"))
        pairs = sorted([(p, q) for p in range(8) for q in range(8) if p + q <= 7], key=(lambda x: max(x)) if rho < 3 else (lambda x: x[0] + x[1]))
        done = 0
        for n, (p, q) in enumerate(pairs):
            a.wait(lg=(f"a{rho}_{p}", f"b{rho}_{q}"))
            ct = p + q
            a(f"v_mfma_f32_16x16x32_bf16 {vr(YA+4*ct,4)}, {vr(AS[s]+4*p,4)}, {vr(BS[s]+4*q,4)}, {'0' if first[ct] else vr(YA+4*ct,4)}")
            first[ct] = False
            if n >= 8 and nxt:
                t, tag = nxt.pop(0); a(t, tag)
            if rho == 3:
                while done < ct - 1 and n >= (done + 1) * (done + 2) // 2 + 8:
                    a(f"ds_write_b128 v{vT}, {vr(YA+4*done,4)} offset:{1024*done}"); done += 1
        for t, tag in nxt: a(t, tag)
    stamp()
    a.wait(lg="uu")
    a(f"""
    s_lshl_b32 s{sT2}, s{sD}, 16
    v_add_f32 v{KD}, s{sT2}, v{KD}
    s_and_b32 s{sT2}, s{sD}, s{sMask}
    v_add_f32 v{KD+1}, s{sT2}, v{KD+1}
    """)
    unp = [t for j in range(8) for t in (f"v_lshlrev_b32 v{UF+2*j}, 16, v{UU+j}", f"v_and_b32 v{UF+2*j+1}, s{sMask}, v{UU+j}")]
    for t in unp[:6]: a(t)
    for ct in range(done, 8): a(f"ds_write_b128 v{vT}, {vr(YA+4*ct,4)} offset:{1024*ct}")
    for t in unp[6:]: a(t)
    for kk in range(4): a(f"v_mov_b32 v{OV+4*kk+2}, s{sTag}\nv_mov_b32 v{OV+4*kk+3}, s{sTag+1}")
    a("s_waitcnt lgkmcnt(0)\ns_barrier\ns_setprio 3")
    a.lg = []
    for kk in range(4):
        for sw in range(4):
            a(f"ds_read_b64 {vr(RR+8*sw+2*kk,2)}, v{vT2} offset:{8704*sw+1024*(kk>>1)+128*(kk&1)}", f"rr{kk}")
    for kk in range(4):
        a.wait(lg=f"rr{kk}")
        for e in range(2):
            for j in range(2):
                a(f"v_fmac_f32 v{RR+16*e+2*kk+j}, v{UF+8*e+2*kk+j}, v{KD+e}")
        for e in range(2):
            for j in range(2):
                a(f"v_add_f32 v{RR+16*e+2*kk+j}, v{RR+16*e+2*kk+j}, v{RR+16*e+8+2*kk+j}")
        for j in range(2):
            a(f"v_cvt_pk_bf16_f32 v{OV+4*kk+j}, v{RR+2*kk+j}, v{RR+16+2*kk+j}")
        a(f"buffer_store_dwordx4 {vr(OV+4*kk,4)}, v{vL16}, {WS}, s{sT} offen offset:{1024*kk} sc1")
    stamp()
    if STAMPS:
        a("s_waitcnt vmcnt(0)"); stamp()
    if "wb" in OPT:
        a(f"s_lshr_b32 s{sT}, s2, 3\ns_or_b32 s{sT}, s{sT}, s{sW}\ns_cmp_lg_u32 s{sT}, 0\ns_cbranch_scc1 S_nowb\nbuffer_wbl2 sc1\nS_nowb:")
    stamp_flush(WS, f"s{sW}", vT)
    a("s_endpgm")
    tag_slow("S", sTag, 8, [192], vNon, sCnt)
    a.raw(f"""S_uslow:
{retry_mark(4)}  s_add_u32 s{sCnt}, s{sCnt}, 1
  s_cmp_ge_u32 s{sCnt}, {SPIN}
  s_cbranch_scc1 S_uok
  s_setprio 0
  s_sleep 8""")
    a.raw(f"  buffer_load_dwordx2 {vr(vXf+1,2)}, v{vXf}, {WS}, s{sXf} offen sc1")
    a.raw("  s_waitcnt vmcnt(0)\n  s_branch S_uchk")

hdr = open("cdna_kernels/" + NAME + ".s.ref").read().split("\n")
top = [l for l in hdr if l.startswith(";") and "@launch" not in l][:16]
a.raw("\n".join(top))
a.raw("; @launch grid=(512,1,1) block=(256,1,1) lds=81920")
a.raw(f""".amdgcn_target "amdgcn-amd-amdhsa--gfx950"
.text
.globl {NAME}_kernel
.p2align 8
.type {NAME}_kernel,@function
{NAME}_kernel:""")
stamp()
NST[0] = 14
if "nocpf" not in OPT:
    a(f"""
    s_getpc_b64 s[94:95]
    s_bfe_u32 s96, s2, 0x60003
    s_lshl_b32 s96, s96, 9
    v_and_b32 v255, 3, v0
    v_lshl_add_u32 v255, v255, 7, s96
    v_min_u32 v255, L_exit-{NAME}_kernel-64, v255
    global_load_dword v254, v255, s[94:95]
    """)
a("s_cmp_ge_u32 s2, 256\ns_cbranch_scc1 L_gemm")
ssm = ssm_role()
next(ssm)
a("L_gemm:\ns_cmp_ge_u32 s2, 512\ns_cbranch_scc1 L_exit")
a.hist = []; a.vm = []; a.lg = []
if STAMPS: nstamp[0] = 1
gemm_role()
a.raw(".p2align 6")
a("L_ssm:")
NST[0] = 16
for _ in ssm: pass
a("L_exit:\ns_endpgm")
a.raw(f""".section .rodata,"a"
.p2align 6
.amdhsa_kernel {NAME}_kernel
  .amdhsa_next_free_vgpr 256
  .amdhsa_next_free_sgpr 102
  .amdhsa_accum_offset 256
  .amdhsa_group_segment_fixed_size 0
  .amdhsa_kernarg_size 120
  .amdhsa_user_sgpr_count 2
  .amdhsa_user_sgpr_kernarg_segment_ptr 1
  .amdhsa_system_sgpr_workgroup_id_x 1
.end_amdhsa_kernel""")
sys.stdout.write(a.text())
sys.stderr.write(f"nops inserted: {a.nops}\n")
```

```python
import sys, struct
from asmlib import Asm, vr, sr

NAME = "parallel_sum__ssm_conv_s4__dense_activation_silu__prompt"
OPT = {x.split("=")[0][2:]: (x.split("=")[1] if "=" in x else "1") for x in sys.argv[1:] if x.startswith("--")}
STAMPS = "stamps" in OPT
SPIN = int(OPT.get("spin", 4000))
PLF = OPT.get("plf", "sc1").replace("_", " ")
FSF = OPT.get("fsf", "sc1").replace("_", " ")
M1, M2 = OPT.get("m1", "81"), OPT.get("m2", "81")
LOCAL = M1 == "81" and M2 == "81" and "nolocal" not in OPT
HSF = "" if LOCAL else "sc1"

HROW = 88 * 1024
H_SIZE = 64 * HROW
ST = 0x580000
FH = 0x590000
GS = 18432
GC = 9216
XNP = 0x600000
XS = 9216
FX = 0x5A0000
FG = 0x5B0000
Y2 = 0xA80000
WS_SIZE = 0x1000000
STAMP_OFF = 0xF80000
LOG2E = 0x3fb8aa3b
fl = lambda x: "0x%08x" % struct.unpack("<I", struct.pack("<f", x))[0]

a = Asm()
nstamp = [0]
NST = [16]
def stamp(force=False):
    if STAMPS and nstamp[0] < NST[0] and (force or ("cs" not in OPT and "g2" not in OPT) or nstamp[0] in (0, 13) or ("g2" in OPT and nstamp[0] >= 7)):
        i = nstamp[0]; nstamp[0] += 1
        a(f"s_memtime s[{60+2*i}:{61+2*i}]")
def stamp_flush(wsrd, wave_s, vt):
    if not STAMPS: return
    n = nstamp[0]
    a("s_memrealtime s[98:99]")
    a("s_waitcnt lgkmcnt(0)")
    a(f"s_lshl_b32 s96, s2, 2\ns_add_u32 s96, s96, {wave_s}\ns_lshl_b32 s96, s96, 7\ns_add_u32 s96, s96, {STAMP_OFF}")
    a("s_mov_b64 exec, 1")
    for i in range(n):
        a(f"v_mov_b32 v{vt}, s{60+2*i}")
        a(f"buffer_store_dword v{vt}, off, {wsrd}, s96 offset:{4*i}")
    a(f"v_mov_b32 v{vt}, s97\nbuffer_store_dword v{vt}, off, {wsrd}, s96 offset:116")
    a(f"v_mov_b32 v{vt}, s100\nbuffer_store_dword v{vt}, off, {wsrd}, s96 offset:120")
    a(f"v_mov_b32 v{vt}, s98\nbuffer_store_dword v{vt}, off, {wsrd}, s96 offset:124")
    nstamp[0] = 0
def retry_mark(bit):
    return f"  s_add_u32 s97, s97, {1 << bit}\n" if STAMPS else ""

def srd(base, size):
    a(f"s_mov_b32 s{base+2}, {size}\ns_mov_b32 s{base+3}, 0x20000")

def cmul(d, x, y):
    a(f"v_mul_f32 v{d}, v{x+1}, v{y+1}")
    a(f"v_mul_f32 v{d+1}, v{x+1}, v{y}")
    a(f"v_fma_f32 v{d}, v{x}, v{y}, -v{d}")
    a(f"v_fmac_f32 v{d+1}, v{x}, v{y+1}")

def tag_slow(pfx, sTag, dbg, offs, vt, sCnt):
    a.raw(f"{pfx}_tagslow:")
    a.raw(retry_mark(0).rstrip("\n"))
    for o in offs:
        a.raw(f"  s_load_dwordx2 {sr(sTag,2)}, s[{dbg}:{dbg+1}], {o}\n  s_waitcnt lgkmcnt(0)\n  s_cmp_lg_u32 s{sTag}, 0\n  s_cbranch_scc1 {pfx}_tagok")
    a.raw(f"""  s_mov_b32 s{sCnt}, 0
{pfx}_tagloop:
  buffer_load_dwordx2 {vr(vt,2)}, off, s[{dbg}:{dbg+3}], 0 sc1
  s_add_u32 s{sCnt}, s{sCnt}, 1
  s_waitcnt vmcnt(0)
  v_readfirstlane_b32 s{sTag}, v{vt}
  v_readfirstlane_b32 s{sTag+1}, v{vt+1}
  s_nop 3
  s_cmp_lg_u32 s{sTag}, 0
  s_cbranch_scc1 {pfx}_tagok
  s_cmp_lt_u32 s{sCnt}, {SPIN}
  s_cbranch_scc1 {pfx}_tagloop
  s_branch {pfx}_tagok""")

def gemm_role():
    X, W1, WS, W2, OUT, DBG, HS = "s[4:7]", "s[8:11]", "s[12:15]", "s[16:19]", "s[20:23]", "s[24:27]", "s[28:31]"
    sP = 3
    sW, sRB, sM, sXB, sWB, sC, sTx, sT, sLA, sLB, sW2, sHS, sHL = range(32, 45)
    sT2, sT3, sL2e, sCnt, sO, sTag, sFl, sRT = 45, 46, 47, 48, 49, 50, 52, 53
    sB1, sMask, sCG, sXcc, sFar, sHS2, sIa = 54, 55, 56, 57, 58, 59, 101
    sY, sRet = sFl, sFar
    sMean, sNeg = 88, 92
    sXn, sSt, sFx = 89, 90, 91
    vL = 1
    vXo, vWo, vXr, vWr, vW2o, vW2r, vL16 = 2, 6, 9, 13, 17, 18, 22
    vT, vNon, vCs, vT2, vC2, vSa = 23, 24, 26, 29, 30, 31
    vSt, vNeg = 32, 36
    HALF, vSw, vSr, vIa, vT3 = 88, 92, 93, 94, 95
    ACC1, WF, CSA, XF, CSF = 40, 96, 144, 192, 168
    LX, LF, LG, vId = 224, 232, 248, 252
    ACC2, STASH, HB, HD = 32, 96, 192, 8
    SROW, STG = 1056, 32768 + 3 * 12288
    FARAWAY = 0x40000000
    a(f"""
    s_load_dwordx2 s[4:5], s[0:1], 0
    s_load_dwordx2 s[24:25], s[0:1], 104
    s_load_dwordx2 s[8:9], s[0:1], 80
    s_load_dwordx2 s[12:13], s[0:1], 112
    s_load_dwordx2 s[16:17], s[0:1], 88
    s_load_dwordx2 s[20:21], s[0:1], 96
    s_memrealtime {sr(sTag,2)}
    v_lshrrev_b32 v{vT}, 6, v0
    v_and_b32 v{vL}, 63, v0
    s_and_b32 s{sP}, s2, 7
    v_readfirstlane_b32 s{sW}, v{vT}
    s_lshl_b32 s{sP}, s{sP}, 5
    s_bfe_u32 s{sT}, s2, 0x50003
    s_add_u32 s{sP}, s{sP}, s{sT}
    s_lshr_b32 s{sRB}, s{sP}, 4
    s_and_b32 s{sM}, s{sP}, 15
    s_and_b32 s{sC}, s{sP}, 7
    v_lshlrev_b32 v{vL16}, 4, v{vL}
    s_lshl2_add_u32 s{sO}, s{sP}, s{sW}
    s_lshl_b32 s{sO}, s{sO}, 11
    v_lshl_add_u32 v{vT3}, v{vL}, 6, s{sO}
    s_setprio 2
    """)
    srd(4, 2048 * 1024); srd(24, 256); srd(8, 512 * 2752)
    a(f"""
    v_lshrrev_b32 v{vT}, 3, v{vL}
    v_lshlrev_b32 v{vT}, 10, v{vT}
    v_lshrrev_b32 v{vT2}, 4, v{vL}
    v_xor_b32 v{vT2}, v{vT2}, v{vL}
    v_and_b32 v{vT2}, 7, v{vT2}
    v_lshl_add_u32 v{vXo}, v{vT2}, 4, v{vT}
    v_xor_b32 v{vXo+1}, 64, v{vXo}
    v_add_u32 v{vXo+2}, {2*7168}, v{vXo}
    v_add_u32 v{vXo+3}, {3*7168}, v{vXo+1}
    v_add_u32 v{vXo+1}, 7168, v{vXo+1}
    s_movk_i32 s{sT}, 5462
    s_movk_i32 s{sT2}, {2752-192}
    v_mul_u32_u24 v{vT}, s{sT}, v{vL}
    """)
    for j in range(3):
        if j: a(f"v_add_u32 v{vT}, {64*5462}, v{vT}")
        a(f"v_lshrrev_b32 v{vT2}, 16, v{vT}\nv_mad_u32_u24 v{vWo+j}, v{vT2}, s{sT2}, v{vL16}")
    a("s_waitcnt lgkmcnt(0)")
    if STAMPS: a(f"s_mov_b32 s100, s{sTag}\ns_mov_b32 s97, 0")
    stamp()
    for r in range(2):
        a(f"buffer_load_dwordx4 {vr(LX+4*r,4)}, v{vL16}, {X}, s{sO} offen offset:{1024*r}", "xrow")
    a(f"""
    s_or_b32 s{sTag}, s{sTag}, 1
    v_mov_b32 v{vNon}, s{sTag}
    v_mov_b32 v{vNon+1}, s{sTag+1}
    s_lshl2_add_u32 s{sXB}, s{sRB}, s{sW}
    s_lshl_b32 s{sXB}, s{sXB}, 15
    buffer_store_dwordx2 {vr(vNon,2)}, v{vT3}, {DBG}, 0 offen sc1
    s_mul_i32 s{sWB}, s{sM}, 192
    s_mul_i32 s{sT}, s{sW}, {16*2752}
    s_add_u32 s{sWB}, s{sWB}, s{sT}
    s_lshr_b32 s{sO}, s{sXB}, 6
    s_cmp_eq_u32 s{sM}, 15             ; the 16th workgroup of a row block has no GEMM1 tile: its tile loads go out of range
    s_cselect_b32 s{sXB}, {FARAWAY}, s{sXB}
    s_cselect_b32 s{sWB}, {FARAWAY}, s{sWB}
    s_lshl_b32 s{sLA}, s{sW}, 12
    s_mul_i32 s{sLB}, s{sW}, 3072
    s_add_u32 s{sLB}, s{sLB}, 32768
    """)
    if "nogemm" in OPT: a("s_endpgm")

    def chunk_ops(c):
        ops = []
        for j in range(3):
            def f(j=j):
                if j == 0:
                    a(f"s_mul_i32 s{sT2}, s{sC}, {64*2752}\ns_add_u32 m0, s{sLB}, {(c&3)*12288}\ns_add_u32 s{sT2}, s{sT2}, s{sWB}")
                a(f"buffer_load_dwordx4 v{vWo+j}, {W1}, s{sT2} offen offset:{j*1024} lds", f"C{c}")
            ops.append(f)
        for pc in range(4):
            def f(pc=pc):
                if pc == 0:
                    a(f"s_lshl_b32 s{sTx}, s{sC}, 7\ns_add_u32 m0, s{sLA}, {(c&1)*16384}\ns_add_u32 s{sTx}, s{sTx}, s{sXB}")
                a(f"buffer_load_dwordx4 v{vXo+pc}, {X}, s{sTx} offen offset:{pc*1024} lds", f"C{c}")
                if pc == 0:
                    a(f"s_add_u32 s{sC}, s{sC}, 1\ns_and_b32 s{sC}, s{sC}, 7")
            ops.append(f)
        return ops
    ops = {c: chunk_ops(c) for c in range(8)}
    def issue(c, n):
        for _ in range(n): ops[c].pop(0)()
    issue(0, 7)
    a(f"""
    v_and_b32 v{vSa}, 31, v{vL}
    v_lshrrev_b32 v{vT2}, 5, v{vL}
    v_bfe_u32 v{vC2}, v{vL}, 1, 3
    v_xor_b32 v{vC2}, v{vC2}, v{vT2}
    v_lshl_add_u32 v{vC2}, v{vC2}, 4, s{sLA}
    v_lshl_add_u32 v{vC2}, v{vSa}, 7, v{vC2}
    v_bfe_u32 v{vT3}, v{vL}, 2, 2
    v_lshl_add_u32 v{vT}, v{vT2}, 3, v{vT3}
    v_mul_u32_u24 v{vT}, 192, v{vT}
    v_bfe_u32 v{vT2}, v{vL}, 4, 1
    v_lshl_add_u32 v{vT}, v{vT2}, 5, v{vT}
    v_and_b32 v{vT2}, 3, v{vL}
    v_lshl_add_u32 v{vT}, v{vT2}, 3, v{vT}
    v_add_u32 v{vT}, 0x8000, v{vT}
    """)
    for i in range(4):
        a(f"""
        s_add_u32 s{sT3}, s{sW}, {i}
        s_and_b32 s{sT3}, s{sT3}, 3
        s_lshl_b32 s{sCnt}, s{sT3}, 5
        s_mulk_i32 s{sT3}, 3072
        v_xor_b32 v{vXr+i}, s{sCnt}, v{vC2}
        v_add_u32 v{vWr+i}, s{sT3}, v{vT}
        """)
    issue(1, 3)
    a(f"""
    s_getreg_b32 s{sXcc}, hwreg(HW_REG_XCC_ID, 0, 4)
    s_mov_b32 s{sB1}, 0x3f803f80
    s_mov_b32 s{sMask}, 0xffff0000
    s_mul_i32 s{sT3}, s{sW}, {2*SROW}
    s_add_u32 s{sT3}, s{sT3}, {STG}
    v_add_u32 v{vSw}, s{sT3}, v{vL16}
    v_and_b32 v{vT}, 1, v{vL}
    v_lshl_add_u32 v{vT}, v{vT}, 2, v{vT3}
    v_mul_u32_u24 v{vT}, {SROW}, v{vT}
    v_and_b32 v{vT2}, 2, v{vL}
    v_lshl_add_u32 v{vT}, v{vT2}, 2, v{vT}
    v_lshrrev_b32 v{vT2}, 4, v{vL}
    v_lshl_add_u32 v{vT}, v{vT2}, 4, v{vT}
    s_lshl_b32 s{sT3}, s{sW}, 8
    s_add_u32 s{sT3}, s{sT3}, {STG}
    v_add_u32 v{vSr}, s{sT3}, v{vT}
    """)
    srd(12, WS_SIZE)
    a(f"""
    v_lshrrev_b32 v{vT}, 2, v{vL}
    v_xor_b32 v{vT}, v{vT}, v{vT2}
    v_and_b32 v{vT}, 1, v{vT}
    v_add_u32 v{vT}, -1, v{vT}
    """)
    for k in range(4): a(f"v_and_b32 v{HALF+k}, s{sB1}, v{vT}")
    FILL = [u.strip() for u in f"""
    s_mov_b32 s18, {1376*1024}
    s_mov_b32 s19, 0x20000
    s_mov_b32 s22, {2048*1024}
    s_mov_b32 s23, 0x20000
    s_mov_b32 s28, s12
    s_mov_b32 s29, s13
    s_mov_b32 s30, {H_SIZE}
    s_mov_b32 s31, 0x20000
    s_mov_b32 s{sL2e}, {LOG2E:#x}
    v_lshlrev_b32 v{vSa}, 4, v{vSa}
    s_add_u32 s{sO}, s{sO}, {ST}
    v_and_b32 v{vIa}, 15, v{vL}
    v_lshlrev_b32 v{vIa}, 7, v{vIa}
    s_lshl_b32 s{sIa}, s{sRB}, 11
    s_add_u32 s{sIa}, s{sIa}, {ST}
    v_lshrrev_b32 v{vT}, 3, v{vL}
    v_lshlrev_b32 v{vT}, 10, v{vT}
    v_bfe_u32 v{vT2}, v{vL}, 4, 1
    v_lshlrev_b32 v{vT3}, 2, v{vT2}
    v_xor_b32 v{vT3}, v{vT3}, v{vL}
    v_and_b32 v{vT3}, 7, v{vT3}
    v_lshl_add_u32 v{vW2o}, v{vT3}, 4, v{vT}
    v_lshrrev_b32 v{vT}, 5, v{vL}
    v_bfe_u32 v{vT3}, v{vL}, 2, 2
    v_lshl_add_u32 v{vT}, v{vT}, 2, v{vT3}
    v_lshlrev_b32 v{vT}, 7, v{vT}
    v_lshl_add_u32 v{vT}, v{vT2}, 5, v{vT}
    v_bfe_u32 v{vT2}, v{vL}, 3, 1
    v_lshl_add_u32 v{vT}, v{vT2}, 6, v{vT}
    v_and_b32 v{vT2}, 3, v{vL}
    v_lshl_add_u32 v{vT}, v{vT2}, 3, v{vT}
    s_lshl_b32 s{sT3}, s{sW}, 5
    s_and_b32 s{sT3}, s{sT3}, 64
    v_xor_b32 v{vT}, s{sT3}, v{vT}
    v_xor_b32 v{vT2}, 64, v{vT}
    v_add_u32 v{vW2r}, s{sLA}, v{vT}
    v_add_u32 v{vW2r+1}, s{sLA}, v{vT2}
    v_add_u32 v{vW2r+2}, s{sLB}, v{vT}
    v_add_u32 v{vW2r+3}, s{sLB}, v{vT2}
    s_and_b32 s{sT3}, s{sP}, 1
    s_lshl1_add_u32 s{sRT}, s{sRB}, s{sT3}
    s_lshr_b32 s{sCG}, s{sM}, 1
    s_mul_i32 s{sW2}, s{sW}, {352*1024}
    s_lshl_b32 s{sT}, s{sCG}, 7
    s_add_u32 s{sW2}, s{sW2}, s{sT}
    s_mul_i32 s{sHL}, s{sRT}, {2*HROW}
    s_mul_i32 s{sT}, s{sW}, {22*1024}
    s_add_u32 s{sHL}, s{sHL}, s{sT}
    s_lshl_b32 s{sT3}, s{sW}, 8
    s_add_u32 s{sT3}, s{sT3}, 32768
    v_lshl_add_u32 v{vT2}, v{vL}, 2, s{sT3}
    v_lshl_add_u32 v{vT}, v{vL}, 2, s{sLB}
    s_lshl2_add_u32 s{sT3}, s{sRB}, s{sW}
    s_mul_i32 s{sT3}, s{sT3}, {HROW}
    s_mul_i32 s{sHS}, s{sM}, 6144
    s_add_u32 s{sHS}, s{sHS}, s{sT3}
    s_add_u32 s{sHS2}, s{sHS}, 4096
    s_cmp_ge_u32 s{sM}, 14 | s_cselect_b32 s{sHS2}, {H_SIZE}, s{sHS2}
    s_lshr_b32 s{sT3}, s{sW}, 1
    s_lshl1_add_u32 s{sT3}, s{sRB}, s{sT3}
    s_lshl4_add_u32 s{sT3}, s{sT3}, s{sM}
    s_and_b32 s{sFl}, s{sW}, 1
    s_lshl1_add_u32 s{sFl}, s{sT3}, s{sFl}
    s_lshl_b32 s{sFl}, s{sFl}, 3
    s_add_u32 s{sFl}, s{sFl}, {FH}
    s_cmp_eq_u32 s{sM}, 15 | s_cselect_b32 s{sHS}, {H_SIZE}, s{sHS} | s_cselect_b32 s{sFl}, {WS_SIZE}, s{sFl}
    """.strip().split("\n")]
    def fill_(n):
        for _ in range(n):
            if FILL: a(FILL.pop(0).replace(" | ", "\n"))

    fill_(int(OPT.get("nfill", 99)))
    issue(1, int(OPT.get("nx1", 4)))
    a.wait(vm="xrow")
    stamp()

    vC = CSA; S = [252, 253]; vN = 254; sR = sMean
    def dpp_reduce(fill):
        for ctl in ("row_shr:1 row_mask:0xf bank_mask:0xf bound_ctrl:0", "row_shr:2 row_mask:0xf bank_mask:0xf bound_ctrl:0",
                    "row_shr:4 row_mask:0xf bank_mask:0xf bound_ctrl:0", "row_shr:8 row_mask:0xf bank_mask:0xf bound_ctrl:0",
                    "row_bcast:15 row_mask:0xa bank_mask:0xf", "row_bcast:31 row_mask:0xc bank_mask:0xf"):
            for r in range(2):
                a(f"v_add_f32_dpp v{S[r]}, v{S[r]}, v{S[r]} {ctl}")
            for _ in range(3):
                if fill: a(fill.pop(0))
        while fill: a(fill.pop(0))
    for k in range(4):
        for r in range(2):
            a(f"v_dot2_f32_bf16 v{S[r]}, v{LX+4*r+k}, s{sB1}, {'0' if k == 0 else 'v%d' % S[r]}")
    unpack = lambda: [t for r in range(2) for k in range(4) for t in
                      (f"v_lshlrev_b32 v{LF+8*r+2*k}, 16, v{LX+4*r+k}", f"v_and_b32 v{LF+8*r+2*k+1}, s{sMask}, v{LX+4*r+k}")]
    fill = unpack()
    for _ in range(3): a(fill.pop(0))
    dpp_reduce(fill)
    for r in range(2): a(f"v_mul_f32 v{S[r]}, 0x3b000000, v{S[r]}")
    for r in range(2): a(f"v_cvt_pk_bf16_f32 v{vN+r}, -v{S[r]}, -v{S[r]}")
    for r in range(2): a(f"v_readlane_b32 s{sMean+2*r}, v{S[r]}, 63")
    for r in range(2): a(f"v_readlane_b32 s{sNeg+2*r}, v{vN+r}, 63")
    for k in range(4):
        for r in range(2):
            a(f"v_pk_add_f32 {vr(vC+8*r+2*k,2)}, {vr(LF+8*r+2*k,2)}, {sr(sMean+2*r,2)} op_sel_hi:[1,0] neg_lo:[0,1] neg_hi:[0,1]")
    for r in range(2): a(f"s_and_b32 s{sNeg+2*r}, s{sNeg+2*r}, s{sMask}")
    for r in range(2): a(f"s_or_b32 s{sNeg+2*r+1}, s{sNeg+2*r}, s{sXcc}")
    for r in range(2):
        a(f"v_pk_mul_f32 {vr(vC+8*r,2)}, {vr(vC+8*r,2)}, {vr(vC+8*r,2)}")
    for k in range(1, 4):
        for r in range(2):
            a(f"v_pk_fma_f32 {vr(vC+8*r,2)}, {vr(vC+8*r+2*k,2)}, {vr(vC+8*r+2*k,2)}, {vr(vC+8*r,2)}")
    for r in range(2): a(f"v_add_f32 v{S[r]}, v{vC+8*r}, v{vC+8*r+1}")
    fill = [f"v_pk_add_f32 {vr(LF+8*r+2*k,2)}, {vr(LF+8*r+2*k,2)}, {sr(sNeg+2*r,2)} op_sel_hi:[1,0]" for k in range(4) for r in range(2)]
    fill += [f"v_cvt_pk_bf16_f32 v{LX+4*r+k}, v{LF+8*r+2*k}, v{LF+8*r+2*k+1}" for k in range(4) for r in range(2)]
    dpp_reduce(fill)
    def rnd():
        for r in range(2): a(f"v_cvt_pk_bf16_f32 v{S[r]}, v{S[r]}, v{S[r]}")
        for r in range(2): a(f"v_lshlrev_b32 v{S[r]}, 16, v{S[r]}")
    for r in range(2): a(f"v_mul_f32 v{S[r]}, 0x3b000000, v{S[r]}")
    rnd()
    for r in range(2): a(f"v_add_f32 v{S[r]}, 0x3727c5ac, v{S[r]}")
    rnd()
    for r in range(2): a(f"v_sqrt_f32 v{S[r]}, v{S[r]}")
    rnd()
    for r in range(2): a(f"v_rcp_f32 v{S[r]}, v{S[r]}")
    for t in unpack(): a(t)
    for r in range(2): a(f"v_readlane_b32 s{sR+2*r}, v{S[r]}, 63")
    a(f"s_load_dwordx2 {sr(sTag,2)}, s[24:25], 0")
    for r in range(2):
        for k in range(4):
            a(f"v_pk_mul_f32 {vr(LF+8*r+2*k,2)}, {vr(LF+8*r+2*k,2)}, {sr(sR+2*r,2)} op_sel_hi:[1,0]")
        for k in range(4):
            a(f"v_cvt_pk_bf16_f32 v{LX+4*r+k}, v{LF+8*r+2*k}, v{LF+8*r+2*k+1}")
        a(f"ds_write_b128 v{vSw}, {vr(LX+4*r,4)} offset:{SROW*r}", "stg")
    a(f"""
    v_mov_b32 v{LG}, s{sNeg+1}
    v_mov_b32 v{LG+1}, s{sR}
    v_writelane_b32 v{LG}, s{sNeg+3}, 1
    v_writelane_b32 v{LG+1}, s{sR+2}, 1
    s_mul_i32 s{sXn}, s{sP}, {GS}
    s_lshl_b32 s{sT3}, s{sW}, 12
    s_add_u32 s{sXn}, s{sXn}, s{sT3}
    s_add_u32 s{sXn}, s{sXn}, {XNP}
    s_lshl2_add_u32 s{sSt}, s{sP}, s{sW}
    s_lshl_b32 s{sSt}, s{sSt}, 5
    s_add_u32 s{sSt}, s{sSt}, {ST}
    """)
    issue(1, len(ops[1])); issue(2, 3)
    a.wait(lg=0)
    stamp()

    GROUPS = [("A", 0, 4), ("B", 1, 3), ("A", 1, 4), ("B", 0, 3), ("B", 2, 3), ("B", 3, 3)]
    LOC = []
    for rg, sl, n in GROUPS:
        for k in range(n):
            LOC.append((rg, sl * (16384 if rg == "A" else 12288) + k * 1024))
    ploc = lambda p: p % 20 if p < 40 else p - 40
    pn = [0]
    def p_next():
        p = pn[0]; pn[0] += 1
        rg, off = LOC[ploc(p)]
        a(f"s_add_u32 m0, s{sLA if rg == 'A' else sLB}, {off}")
        a(f"s_add_u32 s{sT3}, s{sW2}, {8192*p}")
        a(f"buffer_load_dwordx4 v{vW2o}, {W2}, s{sT3} offen lds", f"P{p}")

    wb = lambda s_: WF + 12 * (s_ % 3)
    def tr_pair(s_, ft):
        c, i = divmod(s_, 4)
        for e in range(2):
            a(f"ds_read_b64_tr_b16 {vr(wb(s_)+4*ft+2*e,2)}, v{vWr+i} offset:{(c&3)*12288+e*768+ft*64}", f"wf{s_}")
    def rd_x(c, i):
        a(f"ds_read_b128 {vr(XF+16*(c&1)+4*i,4)}, v{vXr+i} offset:{(c&1)*16384}", f"xf{c}_{i}")
    def open_chunk(c):
        if "cs" in OPT and c in (3, 5): stamp(True)
        a.wait(vm=f"C{c}")
        if c == 0 or ("cs" in OPT and c in (3, 5)): stamp(True)
        a("s_barrier")
        if "cs" in OPT and c: stamp(True)

    open_chunk(0)
    for i in range(4): rd_x(0, i)
    for ft in range(3): tr_pair(0, ft)
    for k in range(4):
        a(f"ds_read_b64_tr_b16 {vr(LF+4*k,2)}, v{vSr} offset:{64*k}", "tr")
    for ft in range(3): tr_pair(1, ft)
    a(f"s_cmp_eq_u32 s{sTag}, 0\ns_cbranch_scc1 G_tagslow\nG_tagok:")
    for k in range(5): a(f"v_mov_b32 v{LF+4*k+2}, s{sTag}\nv_mov_b32 v{LF+4*k+3}, s{sTag+1}")
    a(f"s_mov_b64 exec, 3\nbuffer_store_dwordx4 {vr(LG,4)}, v{vL16}, {WS}, s{sSt} offen sc1\ns_mov_b64 exec, -1")
    PS = int(OPT.get("ps", 24))
    def bg_op(c, i, ft):
        if i < 2 and c + 2 <= 7:
            if (i, ft) in ((0, 0), (0, 1), (0, 2), (1, 1)): issue(c + 2, 1)
        elif i >= 2 and c + 3 <= 7:
            if (i, ft) in ((2, 0), (2, 2), (3, 1)): issue(c + 3, 1)
        elif 4 * c + i >= PS and ft != 1:
            lim = 0 if c < 6 else (4 if i < 2 else 7) if c == 6 else 14 if i < 3 else 20
            if pn[0] < lim: p_next()
    XSL = [(0, 1), (0, 2), (1, 0), (1, 2)] if 'xlate' not in OPT else [(1, 2), (2, 1), (3, 0), (3, 2)]
    def split(dst, src, tmp):
        return [f"v_cvt_pk_bf16_f32 v{tmp}, v{src}, v{src}", f"v_lshlrev_b32 v{tmp}, 16, v{tmp}",
                f"v_sub_f32 v{tmp}, v{src}, v{tmp}", f"v_cvt_pk_bf16_f32 v{dst}, v{src}, v{tmp}"]
    for c in range(8):
        a.comment(f"---- GEMM1 chunk {c}")
        for i in range(4):
            s_ = 4 * c + i
            if s_ == 2: fill_(int(OPT.get("nf1", 40)))
            if s_ == 6: fill_(99)
            if i == 2 and c < 7: open_chunk(c + 1)
            a.wait(lg=(f"xf{c}_3", f"wf{s_}"))
            if s_ == 28:
                assert "csw" not in a.lg
                a("s_barrier")
            if s_ == 31: a("s_barrier")
            for ft in range(3):
                cs = i == 0 or c >= 7
                if cs and s_ == 31:
                    a(f"v_mfma_f32_16x16x32_bf16 {vr(CSA+12+4*ft,4)}, {vr(HALF,4)}, {vr(wb(s_)+4*ft,4)}, {vr(CSA+12+4*ft,4)}")
            for ft in range(3):
                cc = "0" if s_ == 0 else vr(ACC1+16*ft, 16)
                a(f"v_mfma_f32_32x32x16_bf16 {vr(ACC1+16*ft,16)}, {vr(wb(s_)+4*ft,4)}, {vr(XF+16*(c&1)+4*i,4)}, {cc}")
                if i == 2 and c < 7:
                    if ft == 0: rd_x(c + 1, 0)
                    rd_x(c + 1, ft + 1)
                if s_ + 2 < 32: tr_pair(s_ + 2, ft)
                if (s_, ft) in XSL:
                    a.wait(lg="tr")
                    k = XSL.index((s_, ft))
                    a(f"buffer_store_dwordx4 {vr(LF+4*k,4)}, v{vL16}, {WS}, s{sXn} offen offset:{1024*k} sc1", "xn")
                bg_op(c, i, ft)
                if (i == 0 or c >= 7) and s_ != 31:
                    d = CSA + 4 * ft + (12 if c >= 7 else 0)
                    a(f"v_mfma_f32_16x16x32_bf16 {vr(d,4)}, {vr(HALF,4)}, {vr(wb(s_)+4*ft,4)}, {'0' if s_ in (0, 28) else vr(d,4)}")
                if s_ == 25:
                    for t in split(vCs + ft, CSA + 4 * ft, CSA + 4 * ft + 1): a(t)
                if s_ == 25:
                    for k in range(2):
                        a(f"ds_write2st64_b32 v{vT2}, v{vCs+ft}, v{vCs+ft} offset0:{24*k+4*ft} offset1:{24*k+12+4*ft}", "csw")
                if s_ == 23:
                    for k in range(4): a(f"v_mov_b32 v{CSF+4*ft+k}, 0")
                if s_ == 28:
                    a("s_mov_b32 exec_hi, 0")
                    for k in range(2):
                        a(f"ds_read2st64_b32 {vr(CSF+4*ft+2*k,2)}, v{vT} offset0:{4*ft+2*k} offset1:{4*ft+2*k+1}", "csf")
                    a("s_mov_b32 exec_hi, -1")
                if s_ == 29 and ft == 2:
                    a.wait(vm="st", lg="csf")
                    a(f"""
                    s_mov_b32 s{sCnt}, 0
                    G_stchk:
                    v_cmp_ne_u64 vcc, {sr(sTag,2)}, {vr(vSt+2,2)}
                    v_cmp_ne_u64 s[88:89], {sr(sTag,2)}, {vr(vId+2,2)}
                    v_and_b32 v{vId+1}, 0xffff, v{vId}
                    s_or_b64 vcc, vcc, s[88:89]
                    s_cbranch_vccnz G_stslow
                    G_stok:
                    """)
                if s_ == 30 and ft == 2:
                    a(f"""
                    s_and_b32 s{sXn}, s{sP}, 31
                    s_mulk_i32 s{sXn}, 6144
                    s_mul_i32 s{sT}, s{sW}, {352*1024}
                    s_add_u32 s{sXn}, s{sXn}, s{sT}
                    s_add_u32 s{sXn}, s{sXn}, {160*1024}
                    v_min_u32 v{vSw}, 47, v{vL}
                    v_lshlrev_b32 v{vSw}, 7, v{vSw}
                    """)
                if s_ == 30 and ft == 0:
                    a(f"""
                    v_cmp_ne_u32 s[90:91], s{sXcc}, v{vId+1}
                    v_lshrrev_b32 v{vNeg+1}, 16, v{vSt}
                    v_bfi_b32 v{vNeg}, s{sMask}, v{vSt}, v{vNeg+1}
                    v_bfi_b32 v{vNeg+2}, s{sMask}, v{vSt}, v{vNeg+1}
                    """)
                if s_ == 30 and ft == 1:
                    a(f"""
                    v_bfi_b32 v{vNeg+3}, s{sMask}, v{vSt}, v{vNeg+1}
                    v_bfi_b32 v{vNeg+1}, s{sMask}, v{vSt}, v{vNeg+1}
                    v_mul_f32 v{vC2}, s{sL2e}, v{vSt+1}
                    s_or_b32 s{sFar}, s90, {1 if 'forcefar' in OPT else 's91'}
                    v_mov_b32 v{vNon}, s{sTag}
                    v_mov_b32 v{vNon+1}, s{sTag+1}
                    """)
                if s_ == 31:
                    sp = split(CSF + 4 * ft, CSA + 12 + 4 * ft, CSA + 13 + 4 * ft)
                    for t in sp[:3]: a(t)
                    a(f"s_mov_b32 exec_lo, 0\n{sp[3]}\ns_mov_b32 exec_lo, -1")
            if s_ == 23:
                assert not FILL
                a(f"buffer_load_dwordx4 {vr(vSt,4)}, v{vSa}, {WS}, s{sO} offen sc1", "st")
                a(f"buffer_load_dwordx4 {vr(vId,4)}, v{vIa}, {WS}, s{sIa} offen sc1", "st")
    assert not any(ops.values())
    stamp()
    for ft in range(3):
        a(f"v_mfma_f32_32x32x16_bf16 {vr(ACC1+16*ft,16)}, {vr(CSF+4*ft,4)}, {vr(vNeg,4)}, {vr(ACC1+16*ft,16)}")
    E1, OB = 208, 224
    def tr_w2(step, tag):
        base = STASH + 8 * (step % 12)
        for j in range(2):
            for e in range(2):
                rg, off = LOC[ploc(2 * step + e)]
                a(f"ds_read_b64_tr_b16 {vr(base+4*j+2*e,2)}, v{vW2r+(0 if rg=='A' else 2)+j} offset:{off}", tag)
    for _ in range(3):
        if pn[0] < 20: p_next()
    NSE = int(OPT.get("nse", 0))
    sn = [0]
    for ft in range(3):
        for j in range(2):
            A0 = ACC1 + 16 * ft + 8 * j
            T0 = E1 + 8 * j
            for k in range(8): a(f"v_mul_f32 v{A0+k}, v{vC2}, v{A0+k}")
            for k in range(8): a(f"v_exp_f32_e64 v{T0+k}, -v{A0+k}")
            if pn[0] < 20 + 2 * max(0, sn[0] - 1): a.wait(lg=0); p_next()
            if 2 * ft + j == int(OPT.get("tp", 0)):
                a(f"buffer_load_dword v{vT3}, v{vSw}, {W2}, s{sXn} offen", "tp")
            for k in range(8): a(f"v_fma_f32 v{T0+k}, v{T0+k}, s{sL2e}, s{sL2e}")
            for k in range(8): a(f"v_rcp_f32 v{T0+k}, v{T0+k}")
            if pn[0] < 20 + 2 * max(0, sn[0] - 1): p_next()
            if sn[0] < NSE:
                a.wait(vm=f"P{2*sn[0]+1}"); tr_w2(sn[0], "S"); sn[0] += 1
            for k in range(8): a(f"v_mul_f32 v{A0+k}, v{A0+k}, v{T0+k}")
            for k in range(0, 8, 2): a(f"v_cvt_pk_bf16_f32 v{OB+8*ft+4*j+k//2}, v{A0+k}, v{A0+k+1}")
            a(f"buffer_store_dwordx4 {vr(OB+8*ft+4*j,4)}, v{vL16}, {HS}, s{sHS if ft < 2 else sHS2} offen offset:{1024*((2*ft+j)&3)}", "hs")
    stamp()
    assert pn[0] >= 20
    a.wait(vm="P19")
    while sn[0] < 10:
        tr_w2(sn[0], f"S{sn[0]}"); sn[0] += 1
    vH, vF, vXg, vO, vY, vXl, vR, vP, vYl = 2, 4, 5, 6, 7, 8, 13, 10, 9
    a(f"""
    s_lshl_b32 s{sT}, s{sW}, 3
    s_lshr_b32 s{sT2}, 0x160e0600, s{sT}
    s_and_b32 s{sT2}, s{sT2}, 0xff
    s_lshr_b32 s{sT}, 0x1d150f07, s{sT}
    s_and_b32 s{sT}, s{sT}, 0xff
    v_max_u32 v{vF}, s{sT2}, v{vL}
    v_min_u32 v{vF}, s{sT}, v{vF}
    v_lshlrev_b32 v{vF}, 3, v{vF}
    s_and_b32 s{sT}, s{sW}, 1
    s_mul_i32 s{sT2}, s{sT}, {HROW}
    v_add_u32 v{vH}, s{sT2}, v{vL16}
    s_sub_u32 s{sT2}, {HROW}, s{sT2}
    v_add_u32 v{vH+1}, s{sT2}, v{vL16}
    s_mov_b32 s{sCnt}, 0
    """)
    a.wait(lg=0)
    NPD = int(OPT.get("npd", 4))
    for _ in range(NPD): p_next()
    a(f"s_cmp_lg_u32 s{sFar}, 0\ns_cbranch_scc1 G_far")
    a.wait(vm="hs")
    stamp()
    a(f"s_mov_b64 exec, 1\nbuffer_store_dwordx2 {vr(vNon,2)}, off, {WS}, s{sFl}\nG_pub:\ns_mov_b64 exec, -1")
    a(f"s_lshl_b32 s{sRet}, s{sRT}, 8\ns_add_u32 s{sRet}, s{sRet}, {FH}")
    PI = int(OPT.get("pi", 36))
    def p_upto(n):
        while pn[0] < n:
            if pn[0] == PI: a(f"buffer_load_dwordx2 {vr(vP,2)}, v{vF}, {WS}, s{sRet} offen sc1", "poll")
            p_next()
    p_upto(36)
    a.wait(vm="P23")
    tr_w2(10, "S"); tr_w2(11, "S")
    p_upto(40)
    a.wait(lg=0)
    p_upto(44)
    if PI >= 44: a(f"buffer_load_dwordx2 {vr(vP,2)}, v{vF}, {WS}, s{sRet} offen sc1", "poll")
    stamp()
    a.wait(vm="poll")
    a(f"G_hchk:\nv_cmp_ne_u64 vcc, {sr(sTag,2)}, {vr(vP,2)}\ns_add_u32 s{sCnt}, s{sCnt}, 1\ns_cbranch_vccnz G_hslow\nG_hok:")
    stamp()
    if STAMPS: a(f"s_lshl_b32 s{sCnt}, s{sCnt}, 16\ns_add_u32 s97, s97, s{sCnt}")
    HS_ = [(i, 1) for i in range(12)] + [(i, j) for i in range(12, 22) for j in (1, 0)] + [(i, 0) for i in range(12)]
    HR, WR = int(OPT.get("hr", 10)), 232
    grp = [None]
    def h_load(n):
        i, j = HS_[n]
        if i // 4 != grp[0]:
            grp[0] = i // 4; a(f"s_add_u32 s{sTx}, s{sHL}, {4096*(i//4)}")
        a(f"buffer_load_dwordx4 {vr(HB+4*(n%HR),4)}, v{vH+j}, {HS}, s{sTx} offen offset:{1024*(i%4)} {OPT.get('hlf', 'sc1').replace('_', ' ')}", f"h{n}")
    for n in range(HR - 1): h_load(n)
    a(f"""
    s_lshl1_add_u32 s{sT2}, s{sRT}, s{sT}
    s_lshr_b32 s{sT}, s{sW}, 1
    s_lshl1_add_u32 s{sCnt}, s{sCG}, s{sT}
    s_lshl_b32 s{sO}, s{sT2}, 15
    s_lshl_b32 s{sT}, s{sCnt}, 6
    s_add_u32 s{sO}, s{sO}, s{sT}
    s_mul_i32 s{sY}, s{sCnt}, {32*GC}
    s_lshl_b32 s{sT}, s{sT2}, 7
    s_add_u32 s{sY}, s{sY}, s{sT}
    s_add_u32 s{sY}, s{sY}, {Y2}
    v_and_b32 v{vT}, 31, v{vL}
    v_lshrrev_b32 v{vT2}, 5, v{vL}
    v_lshlrev_b32 v{vO}, 10, v{vT}
    v_lshl_add_u32 v{vO}, v{vT2}, 4, v{vO}
    v_lshl_add_u32 v{vXl}, v{vT}, 6, s{sLA}
    v_lshl_add_u32 v{vXl}, v{vT2}, 4, v{vXl}
    v_lshlrev_b32 v{vYl}, 3, v{vT2}
    v_sub_u32 v{vF}, v{vT}, v{vYl}
    v_bfe_u32 v{vT}, v{vL}, 2, 2
    v_add_u32 v{vYl}, v{vYl}, v{vT}
    v_lshl_add_u32 v{vYl}, v{vYl}, 7, s{sLA}
    v_bfe_u32 v{vT}, v{vL}, 4, 1
    v_lshl_add_u32 v{vYl}, v{vT}, 6, v{vYl}
    v_and_b32 v{vT}, 3, v{vL}
    v_lshl_add_u32 v{vYl}, v{vT}, 4, v{vYl}
    v_lshrrev_b32 v{vY}, 3, v{vL}
    v_mul_u32_u24 v{vY}, {GC}, v{vY}
    v_and_b32 v{vT}, 7, v{vL}
    v_lshl_add_u32 v{vY}, v{vT}, 4, v{vY}
    v_add_u32 v{vP}, s{sLA}, v{vL16}
    v_lshrrev_b32 v{vXg}, 2, v{vL}
    v_lshlrev_b32 v{vXg}, 10, v{vXg}
    v_and_b32 v{vT}, 3, v{vL}
    v_lshl_add_u32 v{vXg}, v{vT}, 4, v{vXg}
    v_add_u32 v{vR}, s{sLB}, v{vL16}
    """)
    for k in range(1, 4):
        a(f"s_xor_b32 s{sT}, s{sW}, {k}\ns_mulk_i32 s{sT}, 3072\ns_add_u32 s{sT}, s{sT}, 32768\nv_add_u32 v{vR+k}, s{sT}, v{vL16}")
    YO = 16384
    YT, YF, XFr, IDN = 232, 240, 248, 24
    XR = 24
    if "touch" in OPT:
        a(f"v_and_b32 v{vT}, 31, v{vL}\nv_mul_u32_u24 v{vT}, {GC}, v{vT}")
        a(f"buffer_load_dword v12, v{vT}, {WS}, s{sY} offen sc1", "yt")
    a(f"v_and_b32 v{vT}, 1, v{vF}\nv_lshlrev_b32 v{vT}, 4, v{vT}\nv_lshlrev_b32 v{vT}, v{vT}, v{vW2o}" if False else
      f"v_and_b32 v{vT}, 1, v{vF}\nv_lshlrev_b32 v{vT}, 4, v{vT}\nv_mov_b32 v11, 0x3f80\nv_lshlrev_b32 v11, v{vT}, v11\nv_ashrrev_i32 v{vF}, 1, v{vF}")
    for k in range(8):
        a(f"v_cmp_eq_u32 s[{88+2*(k&1)}:{89+2*(k&1)}], {8*(k>>2)+(k&3)}, v{vF}")
        if k: a(f"v_cndmask_b32 v{IDN+k-1}, 0, v11, s[{88+2*((k-1)&1)}:{89+2*((k-1)&1)}]")
    a(f"v_cndmask_b32 v{IDN+7}, 0, v11, s[90:91]")
    def y_loads(emit):
        emit(f"s_add_u32 m0, s{sLA}, {YO}")
        for k in range(4):
            emit(f"s_add_u32 s{sT2}, s{sY}, {8*k*GC-1024*k}")
            emit(f"buffer_load_dwordx4 v{vY}, {WS}, s{sT2} offen offset:{1024*k} sc1 lds")
    def y_reads(emit):
        for k in range(4): emit(f"ds_read_b64 {vr(YT+2*k,2)}, v{vP} offset:{YO+1024*k+8}")
        for k in range(4): emit(f"ds_read_b64_tr_b16 {vr(YF+2*k,2)}, v{vYl} offset:{YO+2048*(k>>1)+512*(k&1)}")
    wreg = lambda i: STASH + 8 * i if i < 12 else WR + 8 * (i % 3)
    def w_reads(i, half):
        j = half
        for e in range(2):
            rg, off = LOC[ploc(2 * i + e)]
            a(f"ds_read_b64_tr_b16 {vr(wreg(i)+4*j+2*e,2)}, v{vW2r+(0 if rg=='A' else 2)+j} offset:{off}", f"r{i}")
    started = set()
    def mm(n, jd):
        i, j = HS_[n]; k = 2 * jd + j
        ac = ACC2 + 16 * k
        a(f"v_mfma_f32_32x32x16_bf16 {vr(ac,16)}, {vr(wreg(i)+4*jd,4)}, {vr(HB+4*(n%HR),4)}, {vr(ac,16) if k in started else '0'}")
        started.add(k)
    roff = lambda k, q: (((k - 1) * 4 + q) // 3) * 12288 + (((k - 1) * 4 + q) % 3) * 1024
    def r_write(k, q): a(f"ds_write_b128 v{vR}, {vr(ACC2+16*k+4*q,4)} offset:{roff(k,q)}", "rw")
    def r_read(k, q): a(f"ds_read_b128 {vr(ACC2+16*k+4*q,4)}, v{vR+k} offset:{roff(k,q)}", f"rr{k}")
    YS = int(OPT.get("ys", 34))
    NT = 4
    side = []
    def run_side(c):
        for _ in range(c):
            if side:
                t = side.pop(0)
                if callable(t): t()
                else: a(t)
    for n in range(44 - NT):
        i, j = HS_[n]
        a.wait(vm=f"h{n}", lg=(f"r{i}" if i >= 12 else 0 if n == 0 else None))
        if n == 0 or ("g2" in OPT and n in (12, 24, 32, 36)): stamp(True)
        for jd in range(2):
            mm(n, jd)
            if jd == 0 and n + HR - 1 < 44: h_load(n + HR - 1)
            if n in (8, 10): w_reads(12 + (n - 8) // 2, jd)
            if 12 <= n < 28 and j == 1: w_reads(i + 2, jd)
            if jd == 1 and n == YS:
                a.wait(lg="r15")
                y_loads(lambda t: a(t, "yr"))
            if jd == 1 and n == 30:
                a(f"s_mov_b32 m0, s{sLA}\ns_add_u32 s{sT2}, s{sO}, {16384-1024}")
                a(f"buffer_load_dwordx4 v{vXg}, {X}, s{sO} offen lds", "xr")
                a(f"buffer_load_dwordx4 v{vXg}, {X}, s{sT2} offen offset:1024 lds", "xr")
            g = 2 * (n - 32) + jd
            if 0 <= g < 12 and g % 3 != 2:
                w = g - g // 3; r_write(1 if w < 4 else 3, w & 3)
            if g == 12:
                a.wait(vm="xr")
                for q in range(2): a(f"ds_read_b128 {vr(XFr+4*q,4)}, v{vXl} offset:{32*q}", "xl")
            if g == 14:
                a.wait(lg="rw")
                a("s_barrier")
                for q in range(4): r_read(1, q)
            if g == 15:
                for q in range(4): r_read(3, q)
    if "ts" in OPT: stamp()
    side = [lambda: a.wait(lg="rr3")] + [f"v_add_f32 v{ACC2+16+q}, v{ACC2+16+q}, v{ACC2+48+q}" for q in range(16)]
    for q, n in enumerate(range(44 - NT, 44)):
        a.wait(vm=f"h{n}")
        mm(n, 1)
        if q >= 2: run_side(6)
    tail = [lambda n=n: mm(n, 0) for n in range(44 - NT, 44)]
    for src in (XFr, YF):
        for q in range(2):
            tail.append(lambda src=src, q=q: a(f"v_mfma_f32_32x32x16_bf16 {vr(ACC2,16)}, {vr(IDN+4*q,4)}, {vr(src+4*q,4)}, {vr(ACC2,16)}"))
    for q, t in enumerate(tail):
        t()
        if q == 0: run_side(99)
        if 1 <= q <= 4: r_write(2, q - 1)
        if q == 4:
            a.wait(vm="yr")
            y_reads(lambda t: a(t, "yl"))
        if q == 5:
            a.wait(lg="rw")
            a("s_barrier")
            for q2 in range(4): r_read(2, q2)
            a.wait(lg="yl")
            a(f"s_mov_b32 s{sCnt}, 0\nG_ychk:")
            a(f"v_cmp_ne_u64 vcc, {sr(sTag,2)}, {vr(YT,2)}")
            for q2 in range(1, 4): a(f"v_cmp_ne_u64 s[{86+2*q2}:{87+2*q2}], {sr(sTag,2)}, {vr(YT+2*q2,2)}")
            for q2 in range(1, 4): a(f"s_or_b64 vcc, vcc, s[{86+2*q2}:{87+2*q2}]")
            a("s_cbranch_vccnz G_yslow\nG_yok:")
    stamp()
    a.wait(lg="rr2")
    for q in range(16): a(f"v_add_f32 v{ACC2+16+q}, v{ACC2+16+q}, v{ACC2+32+q}")
    for k in range(8):
        a(f"v_pk_add_f32 {vr(ACC2+2*k,2)}, {vr(ACC2+2*k,2)}, {vr(ACC2+16+2*k,2)}")
    for k in range(8):
        a(f"v_cvt_pk_bf16_f32 v{XR+k}, v{ACC2+2*k}, v{ACC2+2*k+1}")
    for q in range(2):
        a(f"v_permlane32_swap_b32 v{XR+4*q}, v{XR+4*q+2}\nv_permlane32_swap_b32 v{XR+4*q+1}, v{XR+4*q+3}")
        a(f"buffer_store_dwordx4 {vr(XR+4*q,4)}, v{vO}, {OUT}, s{sO} offen offset:{32*q} {OPT.get('osf', '').replace('_', ' ')}")
    stamp()
    if STAMPS:
        a("s_waitcnt vmcnt(0)"); stamp()
    if "padto" in OPT:
        a(f"G_pad:\ns_memrealtime s[98:99]\ns_waitcnt lgkmcnt(0)\ns_sub_u32 s96, s98, s{sTag}\ns_cmp_lt_u32 s96, {OPT['padto']}\ns_cbranch_scc1 G_pad")
    if "dbg" in OPT:
        n = nstamp[0]
        a(f"s_memrealtime s[98:99]\ns_waitcnt lgkmcnt(0)\ns_lshl2_add_u32 s96, s2, s{sW}\ns_cmp_lg_u32 s96, {4*int(OPT['dbg'])}\ns_cbranch_scc1 G_nodbg\ns_mov_b64 exec, 1")
        for i in range(1, n):
            a(f"s_sub_u32 s96, s{60+2*i}, s60\nv_mov_b32 v{vT}, s96\nbuffer_store_dword v{vT}, off, {DBG}, 0 offset:{4+4*i}")
        a(f"s_sub_u32 s96, s98, s{sTag}\nv_mov_b32 v{vT}, s96\nbuffer_store_dword v{vT}, off, {DBG}, 0 offset:60")
        a("G_nodbg:")
    stamp_flush(WS, f"s{sW}", vT)
    a("s_endpgm")
    tag_slow("G", sTag, 24, [64, 192], vNon, sCnt)
    a.raw(f"""G_stslow:
{retry_mark(4)}  s_add_u32 s{sCnt}, s{sCnt}, 1
  s_cmp_ge_u32 s{sCnt}, {SPIN}
  s_cbranch_scc1 G_stok
  buffer_load_dwordx4 {vr(vSt,4)}, v{vSa}, {WS}, s{sO} offen sc1
  buffer_load_dwordx4 {vr(vId,4)}, v{vIa}, {WS}, s{sIa} offen sc1
  s_waitcnt vmcnt(0)
  s_branch G_stchk
G_hslow:
  s_cmp_ge_u32 s{sCnt}, {SPIN}
  s_cbranch_scc1 G_hok
  buffer_load_dwordx2 {vr(vP,2)}, v{vF}, {WS}, s{sRet} offen sc1
  s_waitcnt vmcnt(0)
  s_branch G_hchk
G_yslow:
{retry_mark(8)}  s_add_u32 s{sCnt}, s{sCnt}, 1
  s_cmp_ge_u32 s{sCnt}, {1 if "nossm" in OPT else SPIN}
  s_cbranch_scc1 G_yok""")
    y_loads(lambda t: a.raw("  " + t))
    a.raw("  s_waitcnt vmcnt(0)")
    y_reads(lambda t: a.raw("  " + t))
    a.raw("  s_waitcnt lgkmcnt(0)\n  s_branch G_ychk")
    a.hist = []
    a("G_far:\ns_waitcnt vmcnt(0)")
    for k in range(6):
        a(f"buffer_store_dwordx4 {vr(OB+4*k,4)}, v{vL16}, {HS}, s{sHS if k < 4 else sHS2} offen offset:{1024*(k&3)} sc1")
    a(f"s_waitcnt vmcnt(0)\ns_mov_b64 exec, 1\nbuffer_store_dwordx2 {vr(vNon,2)}, off, {WS}, s{sFl} sc1\ns_branch G_pub")
    a.vm = []; a.lg = []

def ssm_role():
    DBG, WS = "s[8:11]", "s[12:15]"
    sQ, sW, sE, sPar, sT, sT2, sCnt, sOnes, sMask = 3, 4, 5, 6, 7, 34, 35, 40, 41
    sLdt, sD, sTag, sU = 42, 43, 36, 38
    sMean, sNeg, sR = 44, 48, 52
    vL, vXr, vF, vC = 1, 2, 10, 26
    vPar, vA, vB = 44, 50, 51
    vT, vT2, vT3, vT4 = 54, 55, 56, 57
    vNon, vL16, vTab = 42, 60, 61
    UB0, USZ, K0A, TAB, SROW = 33280, 4576, 42432, 45056, 1088
    a.hist = []; a.vm = []; a.lg = []
    a(f"""
    s_load_dwordx16 s[16:31], s[0:1], 0
    s_load_dwordx2 s[8:9], s[0:1], 104
    s_load_dwordx2 s[32:33], s[0:1], 64
    s_load_dwordx2 s[12:13], s[0:1], 112
    s_load_dwordx2 s[92:93], s[0:1], 80
    s_setprio 3
    s_and_b32 s{sQ}, s2, 7
    s_lshl_b32 s{sQ}, s{sQ}, 5
    s_lshr_b32 s{sT}, s2, 3
    s_add_u32 s{sQ}, s{sQ}, s{sT}
    s_lshl_b32 s{sT}, s{sQ}, 9
    v_lshl_add_u32 v{vT3}, v0, 1, s{sT}
    s_lshl_b32 s{sT}, s{sQ}, 2
    """)
    if STAMPS: a("s_memrealtime s[100:101]\ns_mov_b32 s97, 0")
    a("s_waitcnt lgkmcnt(0)")
    stamp()
    if "nossm" in OPT: a("s_endpgm")
    for k in range(6):
        a(f"global_load_ushort v{vPar+k}, v{vT3}, s[{18+2*k}:{19+2*k}]", "par")
    a(f"s_load_dword s{sLdt}, s[30:31], s{sT}\ns_load_dword s{sD}, s[32:33], s{sT}\ns_setprio 0\ns_branch L_ssm")
    keep = (list(a.vm), nstamp[0])
    yield
    a.hist = []; a.lg = []; a.vm = keep[0]; nstamp[0] = keep[1]
    a(f"""
    v_lshrrev_b32 v{vT}, 6, v0
    v_and_b32 v{vL}, 63, v0
    v_lshlrev_b32 v{vL16}, 4, v{vL}
    v_readfirstlane_b32 s{sW}, v{vT}
    """)
    srd(8, 256); srd(12, WS_SIZE)
    W1P = int(OPT.get("w1p", 0))
    def w1_touch():
        a(f"s_lshr_b32 s{sT2}, s2, 3\ns_mul_i32 s{sT2}, s{sT2}, {344*128}\nv_lshl_add_u32 v{vT2}, v0, 7, s{sT2}\nv_min_u32 v{vT4}, 87, v0\nv_lshl_add_u32 v{vT4}, v{vT4}, 7, s{sT2}\nv_add_u32 v{vT4}, 32768, v{vT4}\ns_setprio 3")
        a(f"global_load_dword v30, v{vT2}, s[92:93]", "mp")
        a(f"global_load_dword v29, v{vT4}, s[92:93]", "mp")
        a("s_setprio 0")
    if W1P == 1: w1_touch()
    a(f"""
    s_lshr_b32 s{sE}, s{sW}, 1
    s_and_b32 s{sPar}, s{sW}, 1
    s_mov_b32 s{sMask}, 0xffff0000
    s_mul_i32 s{sT2}, s{sE}, {USZ}
    s_add_u32 s{sT2}, s{sT2}, {UB0}
    v_lshl_add_u32 v{vT}, v{vL}, 3, s{sT2}
    v_mov_b32 v{vT3}, 0
    v_mov_b32 v{vT4}, 0
    ds_write_b64 v{vT}, {vr(vT3,2)}
    s_mul_i32 s{sT2}, s{sW}, 8704
    s_add_u32 s{sT2}, s{sT2}, {TAB}
    v_add_u32 v{vTab}, s{sT2}, v{vL16}
    """)
    vOA, vOG, vPb = 50, 51, 59
    a(f"""
    v_and_b32 v{vT}, 15, v{vL}
    v_lshlrev_b32 v{vOG}, 3, v{vT}
    v_lshlrev_b32 v{vT2}, 2, v{vT}
    v_add_u32 v{vT2}, {512-36}, v{vT2}
    v_cmp_lt_u32 vcc, 8, v{vT}
    v_add_u32 v{vT3}, {1024-96}, v{vOG}
    v_add_u32 v{vT4}, {1536-112}, v{vOG}
    v_cndmask_b32 v{vOA}, v{vT}, v{vT2}, vcc
    v_cmp_lt_u32 vcc, 11, v{vT}
    v_cmp_lt_u32 s[56:57], 13, v{vT}
    v_cvt_f32_u32 v{vOG}, v{vOG}
    v_cndmask_b32 v{vOA}, v{vOA}, v{vT3}, vcc
    v_cndmask_b32 v{vOA}, v{vOA}, v{vT4}, s[56:57]
    v_cvt_f32_u32 v{vOA}, v{vOA}
    s_mul_i32 s{sT2}, s{sW}, 8704
    s_add_u32 s{sT2}, s{sT2}, {TAB}
    v_lshrrev_b32 v{vT}, 4, v{vL}
    v_lshl_add_u32 v{vPb}, v{vT}, 6, s{sT2}
    """)
    def k_mfma(s_):
        F = 152 + 16 * (s_ & 1)
        for hh in range(2):
            for gt in range(2):
                d = 200 + 8 * hh + 4 * gt
                a(f"v_mfma_f32_16x16x32_bf16 {vr(d,4)}, {vr(F+4*hh,4)}, {vr(F+8+4*gt,4)}, {'0' if s_ == 0 else vr(d,4)}")
    a("s_waitcnt lgkmcnt(0)")
    a.lg = []
    PR, PB, FR, KT, KA = 64, 72, 152, 200, 216
    sXf, vXf = 58, 31
    a(f"""
    s_lshl_b32 s{sT}, s{sLdt}, 16
    s_and_b32 s{sT2}, s{sLdt}, s{sMask}
    s_cmp_eq_u32 s{sE}, 0
    s_cselect_b32 s{sT}, s{sT}, s{sT2}
    v_mov_b32 v{vT}, {LOG2E:#x}
    v_mul_f32 v{vT}, s{sT}, v{vT}
    v_exp_f32 v{vT}, v{vT}
    """)
    a.wait(vm="par")
    stamp()
    for k in range(6): a(f"v_lshlrev_b32 v{vPar+k}, 16, v{vPar+k}")
    TM = 136
    a(f"""
    v_cvt_pk_bf16_f32 v{vT}, v{vT}, v{vT}
    v_lshlrev_b32 v{vT}, 16, v{vT}
    v_mul_f32 v{PR}, v{vPar}, v{vT}
    v_mul_f32 v{PR+1}, v{vPar+1}, v{vT}
    v_mul_f32 v{vPar+2}, v{vPar+2}, v{vT}
    v_mul_f32 v{vPar+3}, v{vPar+3}, v{vT}
    v_mul_f32 v{PR}, {LOG2E:#x}, v{PR}
    v_mul_f32 v{PR+1}, 0.15915494, v{PR+1}
    """)
    cmul(PR + 2, vPar + 4, vPar + 2)
    for i, l in enumerate((128, 256)):
        a(f"v_mul_f32 v{TM+4*i}, {fl(l)}, v{PR}\nv_mul_f32 v{TM+4*i+1}, {fl(l)}, v{PR+1}")
    for i in range(2): a(f"v_fract_f32 v{TM+4*i+1}, v{TM+4*i+1}\nv_exp_f32 v{TM+4*i}, v{TM+4*i}")
    for i in range(2): a(f"v_cos_f32 v{TM+4*i+2}, v{TM+4*i+1}\nv_sin_f32 v{TM+4*i+3}, v{TM+4*i+1}")
    a(f"ds_write_b128 v{vTab}, {vr(PR,4)}", "pw")
    a(f"""
    v_mul_f32 v{TM+2}, v{TM+2}, v{TM}
    v_mul_f32 v{TM+3}, v{TM+3}, v{TM}
    v_mul_f32 v{PR+6}, v{TM+6}, v{TM+4}
    v_mul_f32_e64 v{PR+7}, -v{TM+7}, v{TM+4}
    """)
    cmul(PR + 4, PR + 2, TM + 2)
    a(f"ds_write_b128 v{vTab}, {vr(PR+4,4)} offset:1024", "pw")
    def p_reads(s_):
        for j in range(4):
            for k in range(2):
                a(f"ds_read_b128 {vr(PB+32*(s_&1)+8*j+4*k,4)}, v{vPb} offset:{256*s_+16*j+1024*k}", f"pb{s_}")
    p_reads(0)
    if W1P == 2: w1_touch()
    stamp()
    for s_ in range(4):
        if s_ < 3: p_reads(s_ + 1)
        a.wait(lg=f"pb{s_}")
        if s_ == 3: a(f"s_load_dwordx2 {sr(sTag,2)}, s[8:9], 128")
        F = FR + 16 * (s_ & 1)
        for jp in range(2):
            js = (2 * jp, 2 * jp + 1)
            P = lambda j: PB + 32 * (s_ & 1) + 8 * j
            T = lambda j, w_: TM + 8 * (j & 1) + 4 * w_
            for j in js:
                for w_, o in enumerate((vOA, vOG)):
                    a(f"v_mul_f32 v{T(j,w_)}, v{P(j)}, v{o}\nv_mul_f32 v{T(j,w_)+1}, v{P(j)+1}, v{o}")
            for j in js:
                for w_ in range(2):
                    a(f"v_fract_f32 v{T(j,w_)+1}, v{T(j,w_)+1}\nv_exp_f32 v{T(j,w_)}, v{T(j,w_)}")
            for j in js:
                for w_ in range(2):
                    a(f"v_cos_f32 v{T(j,w_)+2}, v{T(j,w_)+1}\nv_sin_f32 v{T(j,w_)+3}, v{T(j,w_)+1}")
            for j in js:
                a(f"v_mul_f32 v{T(j,0)+2}, v{T(j,0)+2}, v{T(j,0)}\nv_mul_f32_e64 v{T(j,0)+3}, -v{T(j,0)+3}, v{T(j,0)}")
                a(f"v_mul_f32 v{T(j,1)+2}, v{T(j,1)+2}, v{T(j,1)}\nv_mul_f32 v{T(j,1)+3}, v{T(j,1)+3}, v{T(j,1)}")
            for j in js:
                a(f"v_cvt_pk_bf16_f32 v{F+j}, v{T(j,0)+2}, v{T(j,0)+3}")
                cmul(T(j, 0), T(j, 0) + 2, P(j) + 6)
                cmul(T(j, 1), T(j, 1) + 2, P(j) + 2)
                a(f"v_cvt_pk_bf16_f32 v{F+4+j}, v{T(j,0)}, v{T(j,0)+1}")
                cmul(T(j, 0) + 2, T(j, 1) + 2, P(j) + 4)
                a(f"v_cvt_pk_bf16_f32 v{F+8+j}, v{T(j,1)}, v{T(j,1)+1}")
                a(f"v_cvt_pk_bf16_f32 v{F+12+j}, v{T(j,0)+2}, v{T(j,0)+3}")
            if jp == 0 and s_ > 0: k_mfma(s_ - 1)
        if s_ == 1: stamp()
    stamp()
    vUg, vUw, vU = 62, 63, 10
    a(f"""
    v_lshrrev_b32 v{vT3}, 2, v{vL}
    v_bfe_u32 v{vT4}, v{vL}, 1, 1
    v_and_b32 v{vT2}, 1, v{vL}
    v_mul_u32_u24 v{vUg}, {GS}, v{vT3}
    v_lshl_add_u32 v{vUg}, v{vT4}, 6, v{vUg}
    v_lshl_add_u32 v{vUg}, v{vT2}, 4, v{vUg}
    v_mul_u32_u24 v{vUw}, {USZ}, v{vT2}
    v_lshl_add_u32 v{vUw}, v{vT3}, 4, v{vUw}
    v_lshl_add_u32 v{vUw}, v{vT4}, 3, v{vUw}
    s_lshl_b32 s{sT}, s{sW}, 10
    s_add_u32 s{sT}, s{sT}, {UB0+480}
    v_add_u32 v{vUw}, s{sT}, v{vUw}
    s_mul_i32 s{sU}, s{sW}, {64*GS}
    s_lshr_b32 s{sT}, s{sQ}, 1
    s_lshl_b32 s{sT}, s{sT}, 7
    s_add_u32 s{sU}, s{sU}, s{sT}
    s_and_b32 s{sT}, s{sQ}, 1
    s_lshl_b32 s{sT}, s{sT}, 5
    s_add_u32 s{sU}, s{sU}, s{sT}
    s_add_u32 s{sU}, s{sU}, {XNP}
    """)
    def u_loads(emit):
        emit("s_setprio 3")
        for k in range(4):
            emit(f"s_add_u32 s{sU+1}, s{sU}, {k*16*GS}")
            emit(f"buffer_load_dwordx4 {vr(vU+4*k,4)}, v{vUg}, {WS}, s{sU+1} offen sc1")
        emit("s_setprio 0")
    k_mfma(3)
    vK = 80
    a(f"""
    v_lshrrev_b32 v{vT2}, 4, v{vL}
    v_and_b32 v{vT3}, 15, v{vL}
    v_lshlrev_b32 v{vT3}, 4, v{vT3}
    v_lshl_add_u32 v{vT2}, v{vT2}, 10, v{vT3}
    s_mul_i32 s{sT2}, s{sW}, 8704
    s_add_u32 s{sT2}, s{sT2}, {TAB+2048}
    v_add_u32 v{vT2}, s{sT2}, v{vT2}
    s_mul_i32 s{sT}, s{sE}, {2*8704}
    s_add_u32 s{sT}, s{sT}, {TAB+2048}
    v_add_u32 v{vT3}, s{sT}, v{vL16}
    """)
    a(f"""
    s_mul_i32 s{sT}, s{sE}, 16640
    s_lshl_b32 s{sT2}, s{sPar}, 11
    s_add_u32 s{sT2}, s{sT2}, s{sT}
    s_add_u32 s{sT2}, s{sT2}, 32
    v_add_u32 v{vK}, s{sT2}, v{vL16}
    v_bfe_u32 v{vT}, v{vL}, 3, 2
    v_mul_u32_u24 v{vT}, 4160, v{vT}
    v_and_b32 v{vT4}, 7, v{vL}
    v_lshl_add_u32 v{vT}, v{vT4}, 2, v{vT}
    v_add_u32 v{vT}, s{sT}, v{vT}
    v_and_b32 v{vT4}, 1, v{vL}
    v_cmp_eq_u32 vcc, 1, v{vT4}
    v_cmp_le_u32 s[56:57], 32, v{vL}
    """)
    a(f"""
    s_waitcnt lgkmcnt(0)
    s_cmp_eq_u32 s{sTag}, 0
    s_cbranch_scc1 S_tagslow
    S_tagok:
    s_mov_b32 s{sCnt}, 0
    """)
    for t in range(4): a(f"ds_write_b128 v{vT2}, {vr(KT+4*t,4)} offset:{256*t}")
    stamp()
    if "uearly" in OPT: u_loads(lambda t: a(t, "u"))
    a("s_waitcnt lgkmcnt(0)\ns_barrier")
    stamp()
    if "uearly" not in OPT: u_loads(lambda t: a(t, "u"))
    a(f"s_cmp_lg_u32 s{sPar}, 0\ns_cbranch_scc1 S_par1")
    KP = 64
    PK = 88
    K = lambda i: KA + i
    def packs(run, k):
        for cp in range(4):
            for j in range(4): a(f"v_cvt_pk_bf16_f32 v{PK+16*run+4*cp+j}, v{k[cp+2*j]}, v{k[cp+2*j+1]}")
            a(f"ds_write_b128 v{vK}, {vr(PK+16*run+4*cp,4)} offset:{4160*cp+1024*run}")
    hist0 = list(a.hist)
    for q in range(3):
        a(f"ds_read_b128 {vr(KA+4*q,4)}, v{vT3} offset:{1024*q}\nds_read_b128 {vr(KP+4*q,4)}, v{vT3} offset:{8704+1024*q}")
    a(f"""
    v_mov_b32 v{vT4}, 0
    ds_write_b32 v{vT}, v{vT4}
    s_lshl_b32 s{sT2}, s{sE}, 2
    s_add_u32 s{sT2}, s{sT2}, {K0A}
    v_mov_b32 v{vT2}, s{sT2}
    v_mov_b32 v{vT3}, s{sT}
    s_waitcnt lgkmcnt(1)
    """)
    for j in range(12): a(f"v_add_f32 v{KA+j}, v{KA+j}, v{KP+j}")
    a(f"""
    v_cndmask_b32 v{K(1)}, v{K(1)}, v{K(0)}, s[56:57]
    v_cndmask_b32 v{K(3)}, v{K(3)}, v{K(4)}, s[56:57]
    v_cndmask_b32 v{K(5)}, v{K(5)}, v{K(4)}, s[56:57]
    v_cndmask_b32 v{K(7)}, v{K(7)}, v{K(8)}, s[56:57]
    v_mov_b32 v{K(12)}, v{K(8)}
    v_mov_b32 v{K(13)}, v{K(8)}
    s_mov_b64 exec, 1
    ds_write_b32 v{vT2}, v{K(0)}
    v_mov_b32 v{K(0)}, 0
    s_mov_b64 exec, -1
    v_mov_b32_dpp v{K(12)}, v{K(1)} wave_shl:1 row_mask:0xf bank_mask:0xf
    v_mov_b32_dpp v{K(13)}, v{K(2)} wave_shl:1 row_mask:0xf bank_mask:0xf
    """)
    packs(1, [K(9)] * 3 + [K(10)] * 3 + [K(11)] * 5)
    packs(0, [K(i) for i in range(9)] + [K(12), K(13)])
    a(f"""
    s_mov_b64 exec, 1
    ds_write_b32 v{vT3}, v{PK} offset:{2*4160+28}
    ds_write_b32 v{vT3}, v{PK+4} offset:{3*4160+28}
    s_mov_b64 exec, -1
    s_branch S_parj
    S_par1:
    """)
    a.hist = hist0
    a(f"ds_read_b128 {vr(KA+12,4)}, v{vT3} offset:3072\nds_read_b128 {vr(KP,4)}, v{vT3} offset:{8704+3072}\ns_waitcnt lgkmcnt(0)")
    for j in range(4): a(f"v_add_f32 v{KA+12+j}, v{KA+12+j}, v{KP+j}")
    a(f"v_cndmask_b32 v{K(0)}, v{K(12)}, v{K(13)}, vcc\nv_cndmask_b32 v{K(1)}, v{K(14)}, v{K(15)}, vcc")
    packs(0, [K(12)] * 4 + [K(0)] + [K(13)] * 6)
    packs(1, [K(14)] * 4 + [K(1)] + [K(15)] * 6)
    a("S_parj:")
    a.lg = []
    stamp()
    vAa, vBa, vUa, vBp = 52, 53, 50, 51
    a(f"""
    s_mul_i32 s{sT}, s{sE}, {USZ}
    s_add_u32 s{sT}, s{sT}, {UB0+256}
    s_lshl_b32 s{sT2}, s{sPar}, 8
    v_and_b32 v{vT2}, 15, v{vL}
    v_lshrrev_b32 v{vT3}, 4, v{vL}
    v_lshl_add_u32 v{vBa}, v{vT2}, 5, s{sT}
    v_lshl_add_u32 v{vUa}, v{vT3}, 3, v{vBa}
    v_lshlrev_b32 v{vT3}, 4, v{vT3}
    v_add_u32 v{vBa}, v{vT3}, v{vBa}
    v_subrev_u32 v{vBa}, s{sT2}, v{vBa}
    v_bfe_u32 v{vT2}, v{vL}, 2, 2
    v_sub_u32 v{vT4}, 0, v{vT2}
    v_and_b32 v{vT4}, 3, v{vT4}
    v_mul_u32_u24 v{vAa}, 4160, v{vT4}
    v_min_u32 v{vT2}, 1, v{vT2}
    v_lshlrev_b32 v{vT2}, 3, v{vT2}
    v_sub_u32 v{vAa}, v{vAa}, v{vT2}
    v_sub_u32 v{vAa}, v{vAa}, v{vT3}
    v_and_b32 v{vT2}, 3, v{vL}
    v_lshl_add_u32 v{vAa}, v{vT2}, 3, v{vAa}
    s_mul_i32 s{sT}, s{sE}, 16640
    s_add_u32 s{sT}, s{sT}, {32+32-8}
    s_add_u32 s{sT}, s{sT}, s{sT2}
    v_add_u32 v{vAa}, s{sT}, v{vAa}
    s_xor_b32 s{sT}, s{sW}, 1
    s_mul_i32 s{sT}, s{sT}, 8704
    s_add_u32 s{sT}, s{sT}, {TAB}
    v_add_u32 v{vPb}, s{sT}, v{vL16}
    v_lshrrev_b32 v{vT3}, 2, v{vL}
    v_lshl_add_u32 v{vBp}, v{vT2}, 4, v{vT3}
    v_lshlrev_b32 v{vBp}, 2, v{vBp}
    s_lshl2_add_u32 s{sT}, s{sE}, {K0A}
    v_mov_b32 v{vT4}, s{sT}
    s_lshl_b32 s{sT}, s{sD}, 16
    s_and_b32 s{sT2}, s{sD}, s{sMask}
    s_cmp_eq_u32 s{sE}, 0
    s_cselect_b32 s{sD}, s{sT}, s{sT2}
    s_lshl1_add_u32 s{sT}, s{sQ}, s{sE}
    s_mul_i32 s{sT}, s{sT}, {GC}
    s_add_u32 s{sT}, s{sT}, {Y2}
    s_add_u32 s{sT2}, s{sT}, 4096
    s_mov_b32 s{sCnt}, 0
    """)
    AS, BS, YA, OV, UU, KD = [64, 128], [96, 160], 192, 224, 2, 26
    for k in range(4): a(f"v_mov_b32 v{OV+4*k+2}, s{sTag}\nv_mov_b32 v{OV+4*k+3}, s{sTag+1}")
    stamp()
    a.wait(vm="u")
    a("S_uchk:")
    a(f"v_cmp_ne_u64 vcc, {sr(sTag,2)}, {vr(vU+2,2)}")
    for k in range(1, 4): a(f"v_cmp_ne_u64 s[{42+2*k}:{43+2*k}], {sr(sTag,2)}, {vr(vU+4*k+2,2)}")
    for k in range(1, 4): a(f"s_or_b64 vcc, vcc, s[{42+2*k}:{43+2*k}]")
    a(f"s_cbranch_vccnz S_uslow\nS_uok:\ns_mov_b32 s{sCnt}, 0")
    stamp()
    for k in range(4): a(f"ds_write_b64 v{vUw}, {vr(vU+4*k,2)} offset:{256*k}")
    a("s_waitcnt lgkmcnt(0)\ns_barrier")
    a.lg = []
    stamp()
    def reads(rho):
        s_ = rho & 1; L = []
        for j in range(8):
            L.append((f"ds_read_b128 {vr(BS[s_]+4*j,4)}, v{vBa} offset:{512*j+64*(3-rho)}", f"f{rho}_{j}"))
            L.append((f"ds_read_b64_tr_b16 {vr(AS[s_]+4*j,2)}, v{vAa} offset:{64*(8*j+rho)+8}", f"f{rho}_{j}"))
            L.append((f"ds_read_b64_tr_b16 {vr(AS[s_]+4*j+2,2)}, v{vAa} offset:{64*(8*j+rho)}", f"f{rho}_{j}"))
        return L
    for t, tag in reads(0): a(t, tag)
    first = [True] * 8
    def cm(rho, p, q):
        a.wait(lg=f"f{rho}_{max(p,q)}")
        ct = p + q; s_ = rho & 1
        a(f"v_mfma_f32_16x16x32_bf16 {vr(YA+4*ct,4)}, {vr(AS[s_]+4*p,4)}, {vr(BS[s_]+4*q,4)}, {'0' if first[ct] else vr(YA+4*ct,4)}")
        first[ct] = False
    for rho in range(3):
        nxt = reads(rho + 1)
        for n, (p, q) in enumerate(sorted([(p, q) for p in range(8) for q in range(8) if p + q <= 7], key=lambda x: max(x))):
            cm(rho, p, q)
            if n >= 8 and nxt:
                t, tag = nxt.pop(0); a(t, tag)
        assert not nxt
    a(f"s_cmp_lg_u32 s{sPar}, 0\ns_cbranch_scc1 S_conv1")
    keep = (list(a.hist), list(a.lg), nstamp[0])
    ZB, PB_ = 64, 80
    for par, (KEEP, SEND) in enumerate((((0, 3, 4, 7), (1, 2, 5, 6)), ((1, 2, 5, 6), (0, 3, 4, 7)))):
        if par: a("S_conv1:")
        a.hist, a.lg, nstamp[0] = list(keep[0]), list(keep[1]), keep[2]
        side = [lambda: a(f"ds_read_b32 v{KD}, v{vT4}", "uu")]
        side += [lambda k=k, ct=ct: a(f"ds_read_b64 {vr(UU+2*k,2)}, v{vUa} offset:{480-256+512*ct}", "uu") for k, ct in enumerate(KEEP)]
        side += [None] * 5
        side += [lambda: (a.wait(lg="uu"), a(f"v_add_f32 v{KD}, s{sD}, v{KD}"))]
        side += [lambda j=j: a(f"v_lshlrev_b32 v{ZB+2*j}, 16, v{UU+j}\nv_and_b32 v{ZB+2*j+1}, s{sMask}, v{UU+j}") for j in range(8)]
        order = [(p, ct - p) for ct in SEND + KEEP for p in range(ct + 1)]
        ends = {}
        for n, (p, q) in enumerate(order): ends[p + q] = n
        wq = list(SEND)
        for n, (p, q) in enumerate(order):
            cm(3, p, q)
            if wq and n >= ends[wq[0]] + 5:
                ct = wq.pop(0); a(f"ds_write_b128 v{vTab}, {vr(YA+4*ct,4)} offset:{1024*SEND.index(ct)}", "sw")
            elif side:
                t = side.pop(0)
                if t: t()
            if n == 29:
                assert not wq and not side
                a.wait(lg=0)
                a("s_barrier")
                for k in range(4): a(f"ds_read_b128 {vr(PB_+4*k,4)}, v{vPb} offset:{1024*k}", "pr")
        stamp()
        a.wait(lg="pr")
        for j in range(16): a(f"v_fmac_f32 v{PB_+j}, v{KD}, v{ZB+j}")
        a("s_setprio 3")
        for k, ct in enumerate(KEEP):
            for j in range(4): a(f"v_add_f32 v{PB_+4*k+j}, v{PB_+4*k+j}, v{YA+4*ct+j}")
            for j in range(2): a(f"v_cvt_pk_bf16_f32 v{UU+2*k+j}, v{PB_+4*k+2*j}, v{PB_+4*k+2*j+1}")
            for j in range(2): a(f"ds_bpermute_b32 v{OV+4*k+j}, v{vBp}, v{UU+2*k+j}", f"bp{k}")
        for k, ct in enumerate(KEEP):
            a.wait(lg=f"bp{k}")
            a(f"buffer_store_dwordx4 {vr(OV+4*k,4)}, v{vL16}, {WS}, s{sT if ct < 4 else sT2} offen offset:{1024*(ct&3)} sc1")
        if par == 0: a("s_branch S_done")
    a("S_done:")
    stamp()
    if STAMPS:
        a("s_waitcnt vmcnt(0)"); stamp()
    if "wb" in OPT:
        a(f"s_lshr_b32 s{sT}, s2, 3\ns_or_b32 s{sT}, s{sT}, s{sW}\ns_cmp_lg_u32 s{sT}, 0\ns_cbranch_scc1 S_nowb\nbuffer_wbl2 sc1\nS_nowb:")
    stamp_flush(WS, f"s{sW}", vT)
    a("s_endpgm")
    tag_slow("S", sTag, 8, [192], vNon, sCnt)
    a.raw(f"""S_uslow:
{retry_mark(4)}  s_add_u32 s{sCnt}, s{sCnt}, 1
  s_cmp_ge_u32 s{sCnt}, {SPIN}
  s_cbranch_scc1 S_uok
  s_sleep 4""")
    u_loads(lambda t: a.raw("  " + t))
    a.raw("  s_waitcnt vmcnt(0)\n  s_branch S_uchk")

hdr = open("cdna_kernels/" + NAME + ".s.ref").read().split("\n")
top = [l for l in hdr if l.startswith(";") and "@launch" not in l][:16]
a.raw("\n".join(top))
a.raw("; @launch grid=(512,1,1) block=(256,1,1) lds=81920")
a.raw(f""".amdgcn_target "amdgcn-amd-amdhsa--gfx950"
.text
.globl {NAME}_kernel
.p2align 8
.type {NAME}_kernel,@function
{NAME}_kernel:""")
stamp()
NST[0] = 14
if "nocpf" not in OPT:
    a(f"""
    s_getpc_b64 s[94:95]
    s_bfe_u32 s96, s2, 0x60003
    s_lshl_b32 s96, s96, 9
    v_and_b32 v255, 3, v0
    v_lshl_add_u32 v255, v255, 7, s96
    v_min_u32 v255, L_exit-{NAME}_kernel-64, v255
    global_load_dword v254, v255, s[94:95]
    """)
a("s_cmp_ge_u32 s2, 256\ns_cbranch_scc1 L_gemm")
ssm = ssm_role()
next(ssm)
a("L_gemm:\ns_cmp_ge_u32 s2, 512\ns_cbranch_scc1 L_exit")
a.hist = []; a.vm = []; a.lg = []
if STAMPS: nstamp[0] = 1
gemm_role()
a.raw(".p2align 6")
a("L_ssm:")
NST[0] = 16
for _ in ssm: pass
a("L_exit:\ns_endpgm")
a.raw(f""".section .rodata,"a"
.p2align 6
.amdhsa_kernel {NAME}_kernel
  .amdhsa_next_free_vgpr 256
  .amdhsa_next_free_sgpr 102
  .amdhsa_accum_offset 256
  .amdhsa_group_segment_fixed_size 0
  .amdhsa_kernarg_size 120
  .amdhsa_user_sgpr_count 2
  .amdhsa_user_sgpr_kernarg_segment_ptr 1
  .amdhsa_system_sgpr_workgroup_id_x 1
.end_amdhsa_kernel""")
sys.stdout.write(a.text())
sys.stderr.write(f"nops inserted: {a.nops}\n")
```

```python
import re

TRANS = ("v_exp_f32", "v_log_f32", "v_rcp_f32", "v_rsq_f32", "v_sqrt_f32", "v_sin_f32", "v_cos_f32")

def _regs(tok):
    tok = tok.strip()
    tok = re.sub(r"^-?(abs\()?", "", tok).rstrip(")")
    tok = tok.lstrip("-|").rstrip("|")
    m = re.fullmatch(r"([vsa])\[(\d+):(\d+)\]", tok)
    if m:
        return {(m.group(1), i) for i in range(int(m.group(2)), int(m.group(3)) + 1)}
    m = re.fullmatch(r"([vsa])(\d+)", tok)
    if m:
        return {(m.group(1), int(m.group(2)))}
    if tok == "vcc":
        return {("s", "vcc")}
    if tok == "exec":
        return {("s", "exec")}
    if tok == "m0":
        return {("s", "m0")}
    return set()

class Ins:
    def __init__(self, text):
        self.text = text
        body = text.split(";")[0].strip()
        parts = body.split(None, 1)
        self.op = parts[0]
        ops = parts[1] if len(parts) > 1 else ""
        toks = [t.strip() for t in re.split(r",(?![^\[]*\])", ops)] if ops else []
        self.mods = ""
        if toks:
            last = toks[-1].split(None, 1)
            toks[-1] = last[0]
            self.mods = last[1] if len(last) > 1 else ""
        self.toks = toks
        op = self.op
        self.mfma = op.startswith("v_mfma")
        self.valu = op.startswith("v_") and not self.mfma
        self.trans = op.replace("_e32", "").replace("_e64", "") in TRANS
        self.ds = op.startswith("ds_")
        self.vmem = op.startswith("buffer_") or op.startswith("global_")
        self.salu = op.startswith("s_")
        self.dpp = any(k in self.mods for k in ("row_shr", "row_shl", "row_bcast", "quad_perm", "row_mirror", "row_half_mirror", "row_ror", "wave_", "row_newbcast"))
        self.wr = set(); self.rd = set(); self.srcc = set(); self.srcab = set(); self.stdata = set()
        R = [_regs(t) for t in toks]
        if self.mfma:
            self.wr = R[0]; self.srcab = R[1] | R[2]; self.srcc = R[3]; self.rd = self.srcab | self.srcc
            self.passes = 8 if "32x32x16" in op else 4
        elif self.valu:
            if op.startswith("v_cmp"):
                self.wr = R[0]; self.rd = set().union(*R[1:])
            elif op.startswith("v_permlane") and "swap" in op:
                self.wr = R[0] | R[1]; self.rd = R[0] | R[1]
            elif op.startswith(("v_add_co", "v_addc_co", "v_sub_co")):
                self.wr = R[0] | R[1]; self.rd = set().union(*R[2:])
            else:
                self.wr = R[0]; self.rd = set().union(*R[1:]) if len(R) > 1 else set()
                if op.startswith(("v_fmac", "v_dot2c", "v_pk_fmac", "v_writelane")) or self.dpp:
                    self.rd |= R[0]
        elif self.ds:
            if op.startswith(("ds_read", "ds_bpermute")):
                self.wr = R[0]; self.rd = set().union(*R[1:])
            else:
                self.rd = set().union(*R)
        elif self.vmem:
            lds = re.search(r"\blds\b", self.mods) is not None
            if "load" in op and not lds:
                self.wr = R[0]; self.rd = set().union(*R[1:])
            else:
                self.rd = set().union(*R)
                if lds: self.rd |= {("s", "m0")}
                if "store" in op and ("x4" in op or "x3" in op):
                    self.stdata = R[0] if op.startswith("buffer_") else R[1]
            self.lds = lds
        elif self.salu:
            if op.startswith(("s_cmp", "s_cbranch", "s_branch", "s_waitcnt", "s_nop", "s_barrier", "s_endpgm", "s_setprio", "s_sleep")):
                self.rd = set().union(*R) if R else set()
            else:
                self.wr = R[0] if R else set(); self.rd = set().union(*R[1:]) if len(R) > 1 else set()
                if "saveexec" in op: self.wr |= {("s", "exec")}
        self.slots = 1
        if op == "s_nop":
            self.slots = int(toks[0], 0) + 1

def need(p, c):
    n = 0
    pv = {r for r in p.wr if r[0] in "va"}; ps = {r for r in p.wr if r[0] == "s"}
    if p.valu and c.mfma and pv & c.rd: n = max(n, 2)
    if p.mfma:
        big = p.passes == 8
        if c.mfma:
            if p.wr & c.srcab: n = max(n, 12 if big else 8)
            if p.wr & c.srcc and not (c.srcc == p.wr and c.passes == p.passes): n = max(n, 10 if big else 6)
        elif (c.valu or c.ds or c.vmem) and p.wr & (c.rd | c.wr): n = max(n, 12 if big else 8)
        if c.valu and p.srcc & c.wr: n = max(n, 7 if big else 3)
    if p.trans and c.valu and not c.trans and pv & c.rd: n = max(n, 1)
    if p.trans and (c.ds or c.vmem) and pv & c.rd: n = max(n, 1)
    if p.valu and c.valu and c.dpp and pv & c.rd: n = max(n, 2)
    if p.valu and c.op.startswith("v_permlane") and pv & c.rd: n = max(n, 2)
    if p.valu and c.op.startswith(("v_readlane", "v_readfirstlane")) and pv & c.rd: n = max(n, 1)
    if p.valu and ps:
        if c.vmem and ps & c.rd: n = max(n, 5)
        if c.valu and ps & c.rd: n = max(n, 4 if c.op.startswith(("v_readlane", "v_writelane")) else 2)
        if c.valu and ("s", "vcc") in ps and c.op.startswith("v_cndmask") and len(c.toks) == 3: n = max(n, 2)
        if c.salu and ps & c.rd: n = max(n, 1)
    if p.op.startswith("v_dot") and c.valu and pv & (c.rd | c.wr):
        same_c = c.op == p.op and not (pv & set().union(*[_regs(t) for t in c.toks[1:3]]))
        if not same_c: n = max(n, 3)
    if p.op.startswith("v_dot") and (c.ds or c.vmem or c.mfma) and pv & c.rd: n = max(n, 3)
    if p.salu and ("s", "m0") in p.wr and c.vmem and ("s", "m0") in c.rd: n = max(n, 1)
    if p.stdata and (c.valu or c.mfma) and p.stdata & c.wr: n = max(n, 2)
    if p.stdata and (c.ds or c.vmem) and p.stdata & c.wr: n = max(n, 1)
    if p.valu and "op_sel" in p.mods and not p.op.startswith("v_pk") and c.valu and pv & c.rd: n = max(n, 1)
    return n

class Asm:
    def __init__(self):
        self.lines = []
        self.hist = []
        self.vm = []
        self.lg = []
        self.nops = 0
        self.metro = None
        self.cost = 0
        self.hold = False
        self.on_bar = None
    def raw(self, s):
        self.lines.append(s)
    def label(self, l):
        self.lines.append(l + ":")
    def comment(self, s):
        self.lines.append("  ; " + s)
    def __call__(self, text, tag=None):
        for t in text.strip().split("\n"):
            t = t.strip()
            if not t: continue
            if t.startswith(";"):
                self.lines.append("  " + t); continue
            if t.endswith(":"):
                self.lines.append(t); continue
            self._emit(t, tag)
    def _emit(self, t, tag):
        c = Ins(t)
        dist = 0; pad = 0
        for p in reversed(self.hist):
            n = need(p, c)
            if n > dist: pad = max(pad, n - dist)
            dist += p.slots
            if dist >= 24: break
        while pad > 0:
            k = min(pad, 16)
            self.lines.append(f"  s_nop {k-1}")
            self.hist.append(Ins(f"s_nop {k-1}"))
            self.nops += k
            pad -= k
        self.lines.append("  " + t)
        self.hist.append(c)
        if len(self.hist) > 64: self.hist = self.hist[-48:]
        if c.vmem: self.vm.append(tag)
        if c.ds: self.lg.append(tag)
        if self.metro:
            self.cost += 8 if (c.trans or c.mfma or c.ds) else 24 if c.vmem else 4
            if self.cost >= self.metro[0] and not self.hold and c.valu:
                self.tick()
    def tick(self):
        self.metro.pop(0); self.cost = 0
        m, self.metro = self.metro, None
        self._emit("s_barrier", None)
        self.metro = m
        if self.on_bar: self.on_bar(len(m))
    def _count(self, q, tags):
        idx = [i for i, t in enumerate(q) if t in tags]
        if not idx: return None
        return len(q) - 1 - max(idx)
    def wait(self, vm=None, lg=None):
        parts = []
        if vm is not None:
            n = 0 if vm == 0 else self._count(self.vm, vm if isinstance(vm, (tuple, list, set)) else (vm,))
            if n is not None:
                n = min(n, 63)
                parts.append(f"vmcnt({n})"); self.vm = self.vm[len(self.vm) - n:] if n else []
        if lg is not None:
            n = 0 if lg == 0 else self._count(self.lg, lg if isinstance(lg, (tuple, list, set)) else (lg,))
            if n is not None:
                n = min(n, 15)
                parts.append(f"lgkmcnt({n})"); self.lg = self.lg[len(self.lg) - n:] if n else []
        if parts:
            self._emit("s_waitcnt " + " ".join(parts), None)
    def text(self):
        return "\n".join(self.lines) + "\n"

def vr(a, n=1):
    return f"v{a}" if n == 1 else f"v[{a}:{a+n-1}]"
def sr(a, n=1):
    return f"s{a}" if n == 1 else f"s[{a}:{a+n-1}]"
```

```python
import sys, struct
from asmlib import Asm, vr, sr

NAME = "parallel_sum__ssm_conv_s4__dense_activation_silu__prompt"
OPT = {x.split("=")[0][2:]: (x.split("=")[1] if "=" in x else "1") for x in sys.argv[1:] if x.startswith("--")}
STAMPS = "stamps" in OPT
SPIN = int(OPT.get("spin", 4000))
PLF = OPT.get("plf", "sc1").replace("_", " ")
FSF = OPT.get("fsf", "sc1").replace("_", " ")
M1, M2 = OPT.get("m1", "81"), OPT.get("m2", "81")
LOCAL = M1 == "81" and M2 == "81" and "nolocal" not in OPT
HSF = "" if LOCAL else "sc1"

HROW = 88 * 1024
H_SIZE = 64 * HROW
ST = 0x580000
FH = 0x590000
GS = 18432
GC = 9216
XNP = 0x600000
XS = 9216
FX = 0x5A0000
FG = 0x5B0000
Y2 = 0xA80000
WS_SIZE = 0x1000000
STAMP_OFF = 0xF80000
LOG2E = 0x3fb8aa3b
fl = lambda x: "0x%08x" % struct.unpack("<I", struct.pack("<f", x))[0]

a = Asm()
SHARED = {}
nstamp = [0]
NST = [16]
def stamp(force=False):
    if STAMPS and nstamp[0] < NST[0] and (force or ("cs" not in OPT and "g2" not in OPT) or nstamp[0] in (0, 13) or ("g2" in OPT and nstamp[0] >= 7)):
        i = nstamp[0]; nstamp[0] += 1
        a(f"s_memtime s[{60+2*i}:{61+2*i}]")
def stamp_flush(wsrd, wave_s, vt, row=0):
    if not STAMPS: return
    n = nstamp[0]
    a("s_memrealtime s[98:99]")
    a("s_waitcnt lgkmcnt(0)")
    a(f"s_lshl_b32 s96, s2, 2\ns_add_u32 s96, s96, {wave_s}\ns_lshl_b32 s96, s96, 7\ns_add_u32 s96, s96, {STAMP_OFF+row*512}")
    a("s_mov_b64 exec, 1")
    for i in range(n):
        a(f"v_mov_b32 v{vt}, s{60+2*i}")
        a(f"buffer_store_dword v{vt}, off, {wsrd}, s96 offset:{4*i}")
    a(f"v_mov_b32 v{vt}, s97\nbuffer_store_dword v{vt}, off, {wsrd}, s96 offset:116")
    a(f"v_mov_b32 v{vt}, s100\nbuffer_store_dword v{vt}, off, {wsrd}, s96 offset:120")
    a(f"v_mov_b32 v{vt}, s98\nbuffer_store_dword v{vt}, off, {wsrd}, s96 offset:124")
    nstamp[0] = 0
def retry_mark(bit):
    return f"  s_add_u32 s97, s97, {1 << bit}\n" if STAMPS else ""

def srd(base, size):
    a(f"s_mov_b32 s{base+2}, {size}\ns_mov_b32 s{base+3}, 0x20000")

def cmul(d, x, y):
    a(f"v_mul_f32 v{d}, v{x+1}, v{y+1}")
    a(f"v_mul_f32 v{d+1}, v{x+1}, v{y}")
    a(f"v_fma_f32 v{d}, v{x}, v{y}, -v{d}")
    a(f"v_fmac_f32 v{d+1}, v{x}, v{y+1}")

def tag_slow(pfx, sTag, dbg, offs, vt, sCnt):
    a.raw(f"{pfx}_tagslow:")
    a.raw(retry_mark(0).rstrip("\n"))
    for o in offs:
        a.raw(f"  s_load_dwordx2 {sr(sTag,2)}, s[{dbg}:{dbg+1}], {o}\n  s_waitcnt lgkmcnt(0)\n  s_cmp_lg_u32 s{sTag}, 0\n  s_cbranch_scc1 {pfx}_tagok")
    a.raw(f"""  s_mov_b32 s{sCnt}, 0
{pfx}_tagloop:
  buffer_load_dwordx2 {vr(vt,2)}, off, s[{dbg}:{dbg+3}], 0 sc1
  s_add_u32 s{sCnt}, s{sCnt}, 1
  s_waitcnt vmcnt(0)
  v_readfirstlane_b32 s{sTag}, v{vt}
  v_readfirstlane_b32 s{sTag+1}, v{vt+1}
  s_nop 3
  s_cmp_lg_u32 s{sTag}, 0
  s_cbranch_scc1 {pfx}_tagok
  s_cmp_lt_u32 s{sCnt}, {SPIN}
  s_cbranch_scc1 {pfx}_tagloop
  s_branch {pfx}_tagok""")

def gemm_role():
    X, W1, WS, W2, OUT, DBG, HS = "s[4:7]", "s[8:11]", "s[12:15]", "s[16:19]", "s[20:23]", "s[24:27]", "s[28:31]"
    sP = 3
    sW, sRB, sM, sXB, sWB, sC, sTx, sT, sLA, sLB, sW2, sHS, sHL = range(32, 45)
    sT2, sT3, sL2e, sCnt, sO, sTag, sFl, sRT = 45, 46, 47, 48, 49, 50, 52, 53
    sB1, sMask, sCG, sXcc, sFar, sHS2, sIa = 54, 55, 56, 57, 58, 59, 101
    sY, sRet = sFl, sFar
    sMean, sNeg = 88, 92
    sXn, sSt, sCx = 89, 90, 96
    SROW, STG = 1056, 98304
    vL = 1
    vXo, vWo, vXr, vWr, vW2o, vW2r, vL16 = 2, 6, 9, 13, 17, 18, 22
    vT, vNon, vCs, vT2, vC2, vSa = 23, 24, 26, 29, 30, 31
    vSt, vNeg = 32, 36
    HALF, vSw, vSr, vIa, vT3 = 88, 92, 93, 94, 95
    ACC1, WF, CSA, XF, CSF = 40, 96, 144, 192, 168
    LX, LF, LG, vId = 224, 232, 248, 252
    ACC2, STASH, HB, HD = 32, 96, 192, 8
    LB0 = 49152
    FARAWAY = 0x40000000
    a(f"""
    s_load_dwordx2 s[4:5], s[0:1], 0
    s_load_dwordx2 s[8:9], s[0:1], 80
    s_load_dwordx2 s[24:25], s[0:1], 104
    s_load_dwordx2 s[12:13], s[0:1], 112
    s_load_dwordx2 s[16:17], s[0:1], 88
    s_load_dwordx2 s[20:21], s[0:1], 96
    v_and_b32 v{vL}, 63, v0
    s_lshr_b32 s{sRB}, s{sP}, 4
    s_and_b32 s{sM}, s{sP}, 15
    s_and_b32 s{sC}, s{sP}, 7
    s_mov_b32 s{sCx}, s{sC}
    v_lshlrev_b32 v{vL16}, 4, v{vL}
    s_lshl2_add_u32 s{sCnt}, s{sP}, s{sW}
    s_lshl_b32 s{sCnt}, s{sCnt}, 11
    s_setprio 2
    """)
    if STAMPS: a("s_memrealtime s[98:99]")
    srd(4, 2048 * 1024); srd(8, 512 * 2752)
    a(f"""
    v_lshrrev_b32 v{vT}, 3, v{vL}
    v_lshlrev_b32 v{vT}, 10, v{vT}
    v_lshrrev_b32 v{vT2}, 4, v{vL}
    v_xor_b32 v{vT2}, v{vT2}, v{vL}
    v_and_b32 v{vT2}, 7, v{vT2}
    v_lshl_add_u32 v{vXo}, v{vT2}, 4, v{vT}
    v_xor_b32 v{vXo+1}, 64, v{vXo}
    v_add_u32 v{vXo+2}, {2*7168}, v{vXo}
    v_add_u32 v{vXo+3}, {3*7168}, v{vXo+1}
    v_add_u32 v{vXo+1}, 7168, v{vXo+1}
    s_movk_i32 s{sT}, 5462
    s_movk_i32 s{sT2}, {2752-192}
    v_mul_u32_u24 v{vT}, s{sT}, v{vL}
    """)
    for j in range(3):
        if j: a(f"v_add_u32 v{vT}, {64*5462}, v{vT}")
        a(f"v_lshrrev_b32 v{vT2}, 16, v{vT}\nv_mad_u32_u24 v{vWo+j}, v{vT2}, s{sT2}, v{vL16}")
    a(f"""
    s_lshl2_add_u32 s{sXB}, s{sRB}, s{sW}
    s_lshl_b32 s{sXB}, s{sXB}, 15
    s_mul_i32 s{sWB}, s{sM}, 192
    s_mul_i32 s{sT}, s{sW}, {16*2752}
    s_add_u32 s{sWB}, s{sWB}, s{sT}
    s_lshr_b32 s{sO}, s{sXB}, 6
    s_cmp_eq_u32 s{sM}, 15             ; the 16th workgroup of a row block has no GEMM1 tile: its tile loads go out of range
    s_cselect_b32 s{sXB}, {FARAWAY}, s{sXB}
    s_cselect_b32 s{sWB}, {FARAWAY}, s{sWB}
    s_lshl_b32 s{sLA}, s{sW}, 12
    s_mul_i32 s{sLB}, s{sW}, 3072
    s_add_u32 s{sLB}, s{sLB}, {LB0}
    s_waitcnt lgkmcnt(0)
    """)
    if STAMPS: a("s_mov_b32 s100, s98\ns_mov_b32 s97, 0")
    stamp()

    def w_ops(c):
        ops = []
        for j in range(3):
            def f(j=j):
                if j == 0:
                    a(f"s_mul_i32 s{sT2}, s{sC}, {64*2752}\ns_add_u32 m0, s{sLB}, {(c&3)*12288}\ns_add_u32 s{sT2}, s{sT2}, s{sWB}")
                a(f"buffer_load_dwordx4 v{vWo+j}, {W1}, s{sT2} offen offset:{j*1024} lds", f"C{c}")
                if j == 0: a(f"s_add_u32 s{sC}, s{sC}, 1\ns_and_b32 s{sC}, s{sC}, 7")
            ops.append(f)
        return ops
    def x_ops(c):
        ops = []
        for pc in range(4):
            def f(pc=pc):
                if pc == 0:
                    a(f"s_lshl_b32 s{sTx}, s{sCx}, 7\ns_add_u32 m0, s{sLA}, {(c%3)*16384}\ns_add_u32 s{sTx}, s{sTx}, s{sXB}")
                a(f"buffer_load_dwordx4 v{vXo+pc}, {X}, s{sTx} offen offset:{pc*1024} lds", f"C{c}")
                if pc == 0: a(f"s_add_u32 s{sCx}, s{sCx}, 1\ns_and_b32 s{sCx}, s{sCx}, 7")
            ops.append(f)
        return ops
    DQ = []; QT = []
    for c in range(8):
        first = (w_ops(c), x_ops(c)) if c < 2 else (x_ops(c), w_ops(c))
        for grp_ in first:
            isx = len(grp_) == 4
            lim = -1 if c < (3 if isx else 4) else (4 * (c - 3) if isx else 4 * (c - 3) + 2)
            DQ += [(lim, f) for f in grp_]
            QT += [f'C{c}'] * len(grp_)
    def issue(n, s_=-1):
        for _ in range(n):
            if DQ and DQ[0][0] <= s_: DQ.pop(0)[1]()
    for r in range(2):
        a(f"buffer_load_dwordx4 {vr(LX+4*r,4)}, v{vL16}, {X}, s{sCnt} offen offset:{1024*r}", "xrow")
    a(f"""
    s_getreg_b32 s{sXcc}, hwreg(HW_REG_XCC_ID, 0, 4)
    s_mov_b32 s{sB1}, 0x3f803f80
    s_mov_b32 s{sMask}, 0xffff0000
    s_mul_i32 s{sT3}, s{sW}, {2*SROW}
    s_add_u32 s{sT3}, s{sT3}, {STG}
    v_add_u32 v{vSw}, s{sT3}, v{vL16}
    v_bfe_u32 v{vT3}, v{vL}, 2, 2
    v_and_b32 v{vT}, 1, v{vL}
    v_lshl_add_u32 v{vT}, v{vT}, 2, v{vT3}
    v_mul_u32_u24 v{vT}, {SROW}, v{vT}
    v_and_b32 v{vT2}, 2, v{vL}
    v_lshl_add_u32 v{vT}, v{vT2}, 2, v{vT}
    v_lshrrev_b32 v{vT2}, 4, v{vL}
    v_lshl_add_u32 v{vT}, v{vT2}, 4, v{vT}
    s_lshl_b32 s{sT3}, s{sW}, 8
    s_add_u32 s{sT3}, s{sT3}, {STG}
    v_add_u32 v{vSr}, s{sT3}, v{vT}
    """)
    issue(7)
    a(f"""
    v_and_b32 v{vSa}, 31, v{vL}
    v_lshrrev_b32 v{vT2}, 5, v{vL}
    v_bfe_u32 v{vC2}, v{vL}, 1, 3
    v_xor_b32 v{vC2}, v{vC2}, v{vT2}
    v_lshl_add_u32 v{vC2}, v{vC2}, 4, s{sLA}
    v_lshl_add_u32 v{vC2}, v{vSa}, 7, v{vC2}
    v_bfe_u32 v{vT3}, v{vL}, 2, 2
    v_lshl_add_u32 v{vT}, v{vT2}, 3, v{vT3}
    v_mul_u32_u24 v{vT}, 192, v{vT}
    v_bfe_u32 v{vT2}, v{vL}, 4, 1
    v_lshl_add_u32 v{vT}, v{vT2}, 5, v{vT}
    v_and_b32 v{vT2}, 3, v{vL}
    v_lshl_add_u32 v{vT}, v{vT2}, 3, v{vT}
    v_add_u32 v{vT}, {LB0}, v{vT}
    """)
    for i in range(4):
        a(f"""
        s_add_u32 s{sT3}, s{sW}, {i}
        s_and_b32 s{sT3}, s{sT3}, 3
        s_lshl_b32 s{sCnt}, s{sT3}, 5
        s_mulk_i32 s{sT3}, 3072
        v_xor_b32 v{vXr+i}, s{sCnt}, v{vC2}
        v_add_u32 v{vWr+i}, s{sT3}, v{vT}
        """)
    issue(3)
    a(f"""
    v_lshrrev_b32 v{vT2}, 4, v{vL}
    """)
    srd(24, 256)
    srd(12, WS_SIZE)
    a(f"""
    v_lshrrev_b32 v{vT}, 2, v{vL}
    v_xor_b32 v{vT}, v{vT}, v{vT2}
    v_and_b32 v{vT}, 1, v{vT}
    v_add_u32 v{vT}, -1, v{vT}
    """)
    for k in range(4): a(f"v_and_b32 v{HALF+k}, s{sB1}, v{vT}")
    FILL = [u.strip() for u in f"""
    s_mov_b32 s18, {1376*1024}
    s_mov_b32 s19, 0x20000
    s_mov_b32 s22, {2048*1024}
    s_mov_b32 s23, 0x20000
    s_mov_b32 s28, s12
    s_mov_b32 s29, s13
    s_mov_b32 s30, {H_SIZE}
    s_mov_b32 s31, 0x20000
    s_mov_b32 s{sL2e}, {LOG2E:#x}
    v_lshlrev_b32 v{vSa}, 4, v{vSa}
    s_add_u32 s{sO}, s{sO}, {ST}
    v_and_b32 v{vIa}, 15, v{vL}
    v_lshlrev_b32 v{vIa}, 7, v{vIa}
    s_lshl_b32 s{sIa}, s{sRB}, 11
    s_add_u32 s{sIa}, s{sIa}, {ST}
    v_lshrrev_b32 v{vT}, 3, v{vL}
    v_lshlrev_b32 v{vT}, 10, v{vT}
    v_bfe_u32 v{vT2}, v{vL}, 4, 1
    v_lshlrev_b32 v{vT3}, 2, v{vT2}
    v_xor_b32 v{vT3}, v{vT3}, v{vL}
    v_and_b32 v{vT3}, 7, v{vT3}
    v_lshl_add_u32 v{vW2o}, v{vT3}, 4, v{vT}
    v_lshrrev_b32 v{vT}, 5, v{vL}
    v_bfe_u32 v{vT3}, v{vL}, 2, 2
    v_lshl_add_u32 v{vT}, v{vT}, 2, v{vT3}
    v_lshlrev_b32 v{vT}, 7, v{vT}
    v_lshl_add_u32 v{vT}, v{vT2}, 5, v{vT}
    v_bfe_u32 v{vT2}, v{vL}, 3, 1
    v_lshl_add_u32 v{vT}, v{vT2}, 6, v{vT}
    v_and_b32 v{vT2}, 3, v{vL}
    v_lshl_add_u32 v{vT}, v{vT2}, 3, v{vT}
    s_lshl_b32 s{sT3}, s{sW}, 5
    s_and_b32 s{sT3}, s{sT3}, 64
    v_xor_b32 v{vT}, s{sT3}, v{vT}
    v_xor_b32 v{vT2}, 64, v{vT}
    v_add_u32 v{vW2r}, s{sLA}, v{vT}
    v_add_u32 v{vW2r+1}, s{sLA}, v{vT2}
    v_add_u32 v{vW2r+2}, s{sLB}, v{vT}
    v_add_u32 v{vW2r+3}, s{sLB}, v{vT2}
    s_and_b32 s{sT3}, s{sP}, 1
    s_lshl1_add_u32 s{sRT}, s{sRB}, s{sT3}
    s_lshr_b32 s{sCG}, s{sM}, 1
    s_mul_i32 s{sW2}, s{sW}, {352*1024}
    s_lshl_b32 s{sT}, s{sCG}, 7
    s_add_u32 s{sW2}, s{sW2}, s{sT}
    s_mul_i32 s{sHL}, s{sRT}, {2*HROW}
    s_mul_i32 s{sT}, s{sW}, {22*1024}
    s_add_u32 s{sHL}, s{sHL}, s{sT}
    s_lshl_b32 s{sT3}, s{sW}, 8
    s_add_u32 s{sT3}, s{sT3}, {LB0}
    v_lshl_add_u32 v{vT2}, v{vL}, 2, s{sT3}
    v_lshl_add_u32 v{vT}, v{vL}, 2, s{sLB}
    s_lshl2_add_u32 s{sT3}, s{sRB}, s{sW}
    s_mul_i32 s{sT3}, s{sT3}, {HROW}
    s_mul_i32 s{sHS}, s{sM}, 6144
    s_add_u32 s{sHS}, s{sHS}, s{sT3}
    s_add_u32 s{sHS2}, s{sHS}, 4096
    s_cmp_ge_u32 s{sM}, 14 | s_cselect_b32 s{sHS2}, {H_SIZE}, s{sHS2}
    s_lshr_b32 s{sT3}, s{sW}, 1
    s_lshl1_add_u32 s{sT3}, s{sRB}, s{sT3}
    s_lshl4_add_u32 s{sT3}, s{sT3}, s{sM}
    s_and_b32 s{sFl}, s{sW}, 1
    s_lshl1_add_u32 s{sFl}, s{sT3}, s{sFl}
    s_lshl_b32 s{sFl}, s{sFl}, 3
    s_add_u32 s{sFl}, s{sFl}, {FH}
    s_cmp_eq_u32 s{sM}, 15 | s_cselect_b32 s{sHS}, {H_SIZE}, s{sHS} | s_cselect_b32 s{sFl}, {WS_SIZE}, s{sFl}
    """.strip().split("\n")]
    def fill_(n):
        for _ in range(n):
            if FILL: a(FILL.pop(0).replace(" | ", "\n"))

    fill_(int(OPT.get("nfill", 99)))
    issue(int(OPT.get("n0", 14)) - 10)
    a.wait(vm="xrow")
    stamp()

    vC = CSA; S = [252, 253]; vN = 254; sR = sMean
    def dpp_reduce(fill):
        for ctl in ("row_shr:1 row_mask:0xf bank_mask:0xf bound_ctrl:0", "row_shr:2 row_mask:0xf bank_mask:0xf bound_ctrl:0",
                    "row_shr:4 row_mask:0xf bank_mask:0xf bound_ctrl:0", "row_shr:8 row_mask:0xf bank_mask:0xf bound_ctrl:0",
                    "row_bcast:15 row_mask:0xa bank_mask:0xf", "row_bcast:31 row_mask:0xc bank_mask:0xf"):
            for r in range(2):
                a(f"v_add_f32_dpp v{S[r]}, v{S[r]}, v{S[r]} {ctl}")
            for _ in range(3):
                if fill: a(fill.pop(0))
        while fill: a(fill.pop(0))
    for k in range(4):
        for r in range(2):
            a(f"v_dot2_f32_bf16 v{S[r]}, v{LX+4*r+k}, s{sB1}, {'0' if k == 0 else 'v%d' % S[r]}")
    unpack = lambda: [t for r in range(2) for k in range(4) for t in
                      (f"v_lshlrev_b32 v{LF+8*r+2*k}, 16, v{LX+4*r+k}", f"v_and_b32 v{LF+8*r+2*k+1}, s{sMask}, v{LX+4*r+k}")]
    fill = unpack()
    for _ in range(3): a(fill.pop(0))
    dpp_reduce(fill)
    for r in range(2): a(f"v_mul_f32 v{S[r]}, 0x3b000000, v{S[r]}")
    for r in range(2): a(f"v_cvt_pk_bf16_f32 v{vN+r}, -v{S[r]}, -v{S[r]}")
    for r in range(2): a(f"v_readlane_b32 s{sMean+2*r}, v{S[r]}, 63")
    for r in range(2): a(f"v_readlane_b32 s{sNeg+2*r}, v{vN+r}, 63")
    for k in range(4):
        for r in range(2):
            a(f"v_pk_add_f32 {vr(vC+8*r+2*k,2)}, {vr(LF+8*r+2*k,2)}, {sr(sMean+2*r,2)} op_sel_hi:[1,0] neg_lo:[0,1] neg_hi:[0,1]")
    for r in range(2): a(f"s_and_b32 s{sNeg+2*r}, s{sNeg+2*r}, s{sMask}")
    for r in range(2): a(f"s_or_b32 s{sNeg+2*r+1}, s{sNeg+2*r}, s{sXcc}")
    for r in range(2):
        a(f"v_pk_mul_f32 {vr(vC+8*r,2)}, {vr(vC+8*r,2)}, {vr(vC+8*r,2)}")
    for k in range(1, 4):
        for r in range(2):
            a(f"v_pk_fma_f32 {vr(vC+8*r,2)}, {vr(vC+8*r+2*k,2)}, {vr(vC+8*r+2*k,2)}, {vr(vC+8*r,2)}")
    for r in range(2): a(f"v_add_f32 v{S[r]}, v{vC+8*r}, v{vC+8*r+1}")
    fill = [f"v_pk_add_f32 {vr(LF+8*r+2*k,2)}, {vr(LF+8*r+2*k,2)}, {sr(sNeg+2*r,2)} op_sel_hi:[1,0]" for k in range(4) for r in range(2)]
    fill += [f"v_cvt_pk_bf16_f32 v{LX+4*r+k}, v{LF+8*r+2*k}, v{LF+8*r+2*k+1}" for k in range(4) for r in range(2)]
    dpp_reduce(fill)
    issue(int(OPT.get('n1', 0)))
    def rnd():
        for r in range(2): a(f"v_cvt_pk_bf16_f32 v{S[r]}, v{S[r]}, v{S[r]}")
        for r in range(2): a(f"v_lshlrev_b32 v{S[r]}, 16, v{S[r]}")
    for r in range(2): a(f"v_mul_f32 v{S[r]}, 0x3b000000, v{S[r]}")
    rnd()
    for r in range(2): a(f"v_add_f32 v{S[r]}, 0x3727c5ac, v{S[r]}")
    rnd()
    for r in range(2): a(f"v_sqrt_f32 v{S[r]}, v{S[r]}")
    rnd()
    for r in range(2): a(f"v_rcp_f32 v{S[r]}, v{S[r]}")
    for t in unpack(): a(t)
    for r in range(2): a(f"v_readlane_b32 s{sR+2*r}, v{S[r]}, 63")
    a(f"s_load_dwordx2 {sr(sTag,2)}, s[24:25], 0")
    for r in range(2):
        for k in range(4):
            a(f"v_pk_mul_f32 {vr(LF+8*r+2*k,2)}, {vr(LF+8*r+2*k,2)}, {sr(sR+2*r,2)} op_sel_hi:[1,0]")
        for k in range(4):
            a(f"v_cvt_pk_bf16_f32 v{LX+4*r+k}, v{LF+8*r+2*k}, v{LF+8*r+2*k+1}")
        a(f"ds_write_b128 v{vSw}, {vr(LX+4*r,4)} offset:{SROW*r}", "stg")
    a(f"""
    v_mov_b32 v{LG}, s{sNeg+1}
    v_mov_b32 v{LG+1}, s{sR}
    v_writelane_b32 v{LG}, s{sNeg+3}, 1
    v_writelane_b32 v{LG+1}, s{sR+2}, 1
    s_mul_i32 s{sXn}, s{sP}, {GS}
    s_lshl_b32 s{sT3}, s{sW}, 12
    s_add_u32 s{sXn}, s{sXn}, s{sT3}
    s_add_u32 s{sXn}, s{sXn}, {XNP}
    s_lshl2_add_u32 s{sSt}, s{sP}, s{sW}
    s_lshl_b32 s{sSt}, s{sSt}, 5
    s_add_u32 s{sSt}, s{sSt}, {ST}
    """)
    issue(int(OPT.get('n2', 7)))
    a.wait(lg=0)
    stamp()

    GROUPS = [("A", 2, 4), ("A", 0, 4), ("B", 1, 3), ("A", 1, 4), ("B", 0, 3), ("B", 2, 3), ("B", 3, 3)]
    LOC = []
    for rg, sl, n in GROUPS:
        for k in range(n):
            LOC.append((rg, sl * (16384 if rg == "A" else 12288) + k * 1024))
    PL2 = list(range(4, 24))
    ploc = lambda p: p if p < 24 else PL2[p - 24]
    SHARED['LOC'] = LOC
    pn = [0]
    def p_next():
        p = pn[0]; pn[0] += 1
        rg, off = LOC[ploc(p)]
        a(f"s_add_u32 m0, s{sLA if rg == 'A' else sLB}, {off}")
        a(f"s_add_u32 s{sT3}, s{sW2}, {8192*p}")
        a(f"buffer_load_dwordx4 v{vW2o}, {W2}, s{sT3} offen lds", f"P{p}")

    wb = lambda s_: WF + 12 * (s_ % 3)
    def tr_pair(s_, ft):
        c, i = divmod(s_, 4)
        for e in range(2):
            a(f"ds_read_b64_tr_b16 {vr(wb(s_)+4*ft+2*e,2)}, v{vWr+i} offset:{(c&3)*12288+e*768+ft*64}", f"wf{s_}")
    def rd_x(c, i):
        a(f"ds_read_b128 {vr(XF+16*(c&1)+4*i,4)}, v{vXr+i} offset:{(c%3)*16384}", f"xf{c}_{i}")
    def open_chunk(c):
        if "cs" in OPT and c in (3, 5): stamp(True)
        a.wait(vm=f"C{c}")
        if c == 0 or ("cs" in OPT and c in (3, 5)): stamp(True)
        a("s_barrier")
        if "cs" in OPT and c: stamp(True)

    open_chunk(0)
    for i in range(4): rd_x(0, i)
    for ft in range(3): tr_pair(0, ft)
    for k in range(4):
        a(f"ds_read_b64_tr_b16 {vr(LF+4*k,2)}, v{vSr} offset:{64*k}", "tr")
    for ft in range(3): tr_pair(1, ft)
    a(f"s_cmp_eq_u32 s{sTag}, 0\ns_cbranch_scc1 G_tagslow\nG_tagok:")
    for k in range(5): a(f"v_mov_b32 v{LF+4*k+2}, s{sTag}\nv_mov_b32 v{LF+4*k+3}, s{sTag+1}")
    a(f"s_mov_b64 exec, 3\nbuffer_store_dwordx4 {vr(LG,4)}, v{vL16}, {WS}, s{sSt} offen sc1\ns_mov_b64 exec, -1")
    XSL = [(0, 1), (0, 2), (1, 0), (1, 2)]
    PS = 99
    def bg_op(c, i, ft):
        s_ = 4 * c + i
        if DQ: issue(1, s_)
        elif s_ >= PS and ft != 1:
            lim = 0 if s_ < 20 else 4 if s_ < 24 else 8 if s_ < 26 else 11 if s_ < 28 else 15 if s_ < 30 else 18 if s_ < 31 else 24
            if pn[0] < lim: p_next()
    def split(dst, src, tmp):
        return [f"v_cvt_pk_bf16_f32 v{tmp}, v{src}, v{src}", f"v_lshlrev_b32 v{tmp}, 16, v{tmp}",
                f"v_sub_f32 v{tmp}, v{src}, v{tmp}", f"v_cvt_pk_bf16_f32 v{dst}, v{src}, v{tmp}"]
    for c in range(8):
        a.comment(f"---- GEMM1 chunk {c}")
        for i in range(4):
            s_ = 4 * c + i
            if i == 2 and c < 7:
                issue(int(OPT.get('flush', 0)), s_ - 1)
                assert not any(t == f'C{c+1}' for t in QT[len(QT)-len(DQ):])
                open_chunk(c + 1)
            a.wait(lg=(f"xf{c}_3", f"wf{s_}"))
            if s_ == 28:
                assert "csw" not in a.lg
                a("s_barrier")
            if s_ == 31: a("s_barrier")
            for ft in range(3):
                cs = i == 0 or c >= 7
                if cs and s_ == 31:
                    a(f"v_mfma_f32_16x16x32_bf16 {vr(CSA+12+4*ft,4)}, {vr(HALF,4)}, {vr(wb(s_)+4*ft,4)}, {vr(CSA+12+4*ft,4)}")
            for ft in range(3):
                cc = "0" if s_ == 0 else vr(ACC1+16*ft, 16)
                a(f"v_mfma_f32_32x32x16_bf16 {vr(ACC1+16*ft,16)}, {vr(wb(s_)+4*ft,4)}, {vr(XF+16*(c&1)+4*i,4)}, {cc}")
                if i == 2 and c < 7:
                    if ft == 0: rd_x(c + 1, 0)
                    rd_x(c + 1, ft + 1)
                if s_ + 2 < 32: tr_pair(s_ + 2, ft)
                if (s_, ft) in XSL:
                    a.wait(lg="tr")
                    k = XSL.index((s_, ft))
                    a(f"buffer_store_dwordx4 {vr(LF+4*k,4)}, v{vL16}, {WS}, s{sXn} offen offset:{1024*k} sc1", "xn")
                else: bg_op(c, i, ft)
                if (i == 0 or c >= 7) and s_ != 31:
                    d = CSA + 4 * ft + (12 if c >= 7 else 0)
                    a(f"v_mfma_f32_16x16x32_bf16 {vr(d,4)}, {vr(HALF,4)}, {vr(wb(s_)+4*ft,4)}, {'0' if s_ in (0, 28) else vr(d,4)}")
                if s_ == 25:
                    for t in split(vCs + ft, CSA + 4 * ft, CSA + 4 * ft + 1): a(t)
                if s_ == 25:
                    for k in range(2):
                        a(f"ds_write2st64_b32 v{vT2}, v{vCs+ft}, v{vCs+ft} offset0:{24*k+4*ft} offset1:{24*k+12+4*ft}", "csw")
                if s_ == 23:
                    for k in range(4): a(f"v_mov_b32 v{CSF+4*ft+k}, 0")
                if s_ == 28:
                    a("s_mov_b32 exec_hi, 0")
                    for k in range(2):
                        a(f"ds_read2st64_b32 {vr(CSF+4*ft+2*k,2)}, v{vT} offset0:{4*ft+2*k} offset1:{4*ft+2*k+1}", "csf")
                    a("s_mov_b32 exec_hi, -1")
                if s_ == 29 and ft == 2:
                    a.wait(vm="st", lg="csf")
                    a(f"""
                    s_mov_b32 s{sCnt}, 0
                    G_stchk:
                    v_cmp_ne_u64 vcc, {sr(sTag,2)}, {vr(vSt+2,2)}
                    v_cmp_ne_u64 s[88:89], {sr(sTag,2)}, {vr(vId+2,2)}
                    v_and_b32 v{vId+1}, 0xffff, v{vId}
                    s_or_b64 vcc, vcc, s[88:89]
                    s_cbranch_vccnz G_stslow
                    G_stok:
                    """)
                if s_ == 30 and ft == 0:
                    a(f"""
                    v_cmp_ne_u32 s[90:91], s{sXcc}, v{vId+1}
                    v_lshrrev_b32 v{vNeg+1}, 16, v{vSt}
                    v_bfi_b32 v{vNeg}, s{sMask}, v{vSt}, v{vNeg+1}
                    v_bfi_b32 v{vNeg+2}, s{sMask}, v{vSt}, v{vNeg+1}
                    """)
                if s_ == 30 and ft == 1:
                    a(f"""
                    v_bfi_b32 v{vNeg+3}, s{sMask}, v{vSt}, v{vNeg+1}
                    v_bfi_b32 v{vNeg+1}, s{sMask}, v{vSt}, v{vNeg+1}
                    v_mul_f32 v{vC2}, s{sL2e}, v{vSt+1}
                    s_or_b32 s{sFar}, s90, {1 if 'forcefar' in OPT else 's91'}
                    v_mov_b32 v{vNon}, s{sTag}
                    v_mov_b32 v{vNon+1}, s{sTag+1}
                    """)
                if s_ == 31:
                    sp = split(CSF + 4 * ft, CSA + 12 + 4 * ft, CSA + 13 + 4 * ft)
                    for t in sp[:3]: a(t)
                    a(f"s_mov_b32 exec_lo, 0\n{sp[3]}\ns_mov_b32 exec_lo, -1")
            if s_ == 23:
                assert not FILL
                a(f"buffer_load_dwordx4 {vr(vSt,4)}, v{vSa}, {WS}, s{sO} offen sc1", "st")
                a(f"buffer_load_dwordx4 {vr(vId,4)}, v{vIa}, {WS}, s{sIa} offen sc1", "st")
    assert not DQ
    stamp()
    for ft in range(3):
        a(f"v_mfma_f32_32x32x16_bf16 {vr(ACC1+16*ft,16)}, {vr(CSF+4*ft,4)}, {vr(vNeg,4)}, {vr(ACC1+16*ft,16)}")
    E1, OB = 208, 224
    def tr_w2(step, tag):
        base = STASH + 8 * (step % 12)
        for j in range(2):
            for e in range(2):
                rg, off = LOC[ploc(2 * step + e)]
                a(f"ds_read_b64_tr_b16 {vr(base+4*j+2*e,2)}, v{vW2r+(0 if rg=='A' else 2)+j} offset:{off}", tag)
    pn[0] = 24
    B9, B10 = int(OPT.get("b9", 1)), int(OPT.get("b10", 6))
    for ft in range(3):
        for j in range(2):
            A0 = ACC1 + 16 * ft + 8 * j
            T0 = E1 + 8 * j
            for k in range(8): a(f"v_mul_f32 v{A0+k}, v{vC2}, v{A0+k}")
            for k in range(8): a(f"v_exp_f32_e64 v{T0+k}, -v{A0+k}")
            if pn[0] < 24: p_next()
            for k in range(8): a(f"v_fma_f32 v{T0+k}, v{T0+k}, s{sL2e}, s{sL2e}")
            for k in range(8): a(f"v_rcp_f32 v{T0+k}, v{T0+k}")
            if pn[0] < 24: p_next()
            for k in range(8): a(f"v_mul_f32 v{A0+k}, v{A0+k}, v{T0+k}")
            for k in range(0, 8, 2): a(f"v_cvt_pk_bf16_f32 v{OB+8*ft+4*j+k//2}, v{A0+k}, v{A0+k+1}")
            a(f"buffer_store_dwordx4 {vr(OB+8*ft+4*j,4)}, v{vL16}, {HS}, s{sHS if ft < 2 else sHS2} offen offset:{1024*((2*ft+j)&3)}", "hs")
    stamp()
    a("s_barrier")
    for k in range(12): tr_w2(k, "S")
    vH, vF, vXg, vO, vY, vXl, vR, vP, vYl = 2, 4, 5, 6, 7, 8, 13, 10, 9
    a(f"""
    s_lshl_b32 s{sT}, s{sW}, 3
    s_lshr_b32 s{sT2}, 0x160e0600, s{sT}
    s_and_b32 s{sT2}, s{sT2}, 0xff
    s_lshr_b32 s{sT}, 0x1d150f07, s{sT}
    s_and_b32 s{sT}, s{sT}, 0xff
    v_max_u32 v{vF}, s{sT2}, v{vL}
    v_min_u32 v{vF}, s{sT}, v{vF}
    v_lshlrev_b32 v{vF}, 3, v{vF}
    s_and_b32 s{sT}, s{sW}, 1
    s_mul_i32 s{sT2}, s{sT}, {HROW}
    v_add_u32 v{vH}, s{sT2}, v{vL16}
    s_sub_u32 s{sT2}, {HROW}, s{sT2}
    v_add_u32 v{vH+1}, s{sT2}, v{vL16}
    s_mov_b32 s{sCnt}, 0
    """)
    a.wait(lg=0)
    NPD = int(OPT.get("npd", 4))
    for _ in range(NPD): p_next()
    a(f"s_cmp_lg_u32 s{sFar}, 0\ns_cbranch_scc1 G_far")
    a.wait(vm="hs")
    stamp()
    a(f"s_mov_b64 exec, 1\nbuffer_store_dwordx2 {vr(vNon,2)}, off, {WS}, s{sFl}\nG_pub:\ns_mov_b64 exec, -1")
    a(f"s_lshl_b32 s{sRet}, s{sRT}, 8\ns_add_u32 s{sRet}, s{sRet}, {FH}")
    PI = int(OPT.get("pi", 38))
    def p_upto(n):
        while pn[0] < n:
            if pn[0] == PI: a(f"buffer_load_dwordx2 {vr(vP,2)}, v{vF}, {WS}, s{sRet} offen sc1", "poll")
            p_next()
    p_upto(44)
    if PI >= 44: a(f"buffer_load_dwordx2 {vr(vP,2)}, v{vF}, {WS}, s{sRet} offen sc1", "poll")
    stamp()
    a.wait(vm="poll")
    a(f"G_hchk:\nv_cmp_ne_u64 vcc, {sr(sTag,2)}, {vr(vP,2)}\ns_add_u32 s{sCnt}, s{sCnt}, 1\ns_cbranch_vccnz G_hslow\nG_hok:")
    stamp()
    if STAMPS: a(f"s_lshl_b32 s{sCnt}, s{sCnt}, 16\ns_add_u32 s97, s97, s{sCnt}")
    HS_ = [(i, 1) for i in range(12)] + [(i, j) for i in range(12, 22) for j in (1, 0)] + [(i, 0) for i in range(12)]
    HR, WR = int(OPT.get("hr", 10)), 232
    grp = [None]
    def h_load(n):
        i, j = HS_[n]
        if i // 4 != grp[0]:
            grp[0] = i // 4; a(f"s_add_u32 s{sTx}, s{sHL}, {4096*(i//4)}")
        a(f"buffer_load_dwordx4 {vr(HB+4*(n%HR),4)}, v{vH+j}, {HS}, s{sTx} offen offset:{1024*(i%4)} {OPT.get('hlf', 'sc1').replace('_', ' ')}", f"h{n}")
    for n in range(HR - 1): h_load(n)
    a(f"""
    s_lshl1_add_u32 s{sT2}, s{sRT}, s{sT}
    s_lshr_b32 s{sT}, s{sW}, 1
    s_lshl1_add_u32 s{sCnt}, s{sCG}, s{sT}
    s_lshl_b32 s{sO}, s{sT2}, 15
    s_lshl_b32 s{sT}, s{sCnt}, 6
    s_add_u32 s{sO}, s{sO}, s{sT}
    s_mul_i32 s{sY}, s{sCnt}, {32*GC}
    s_lshl_b32 s{sT}, s{sT2}, 7
    s_add_u32 s{sY}, s{sY}, s{sT}
    s_add_u32 s{sY}, s{sY}, {Y2}
    v_and_b32 v{vT}, 31, v{vL}
    v_lshrrev_b32 v{vT2}, 5, v{vL}
    v_lshlrev_b32 v{vO}, 10, v{vT}
    v_lshl_add_u32 v{vO}, v{vT2}, 4, v{vO}
    v_lshl_add_u32 v{vXl}, v{vT}, 6, s{sLA}
    v_lshl_add_u32 v{vXl}, v{vT2}, 4, v{vXl}
    v_lshlrev_b32 v{vYl}, 3, v{vT2}
    v_sub_u32 v{vF}, v{vT}, v{vYl}
    v_bfe_u32 v{vT}, v{vL}, 2, 2
    v_add_u32 v{vYl}, v{vYl}, v{vT}
    v_lshl_add_u32 v{vYl}, v{vYl}, 7, s{sLA}
    v_bfe_u32 v{vT}, v{vL}, 4, 1
    v_lshl_add_u32 v{vYl}, v{vT}, 6, v{vYl}
    v_and_b32 v{vT}, 3, v{vL}
    v_lshl_add_u32 v{vYl}, v{vT}, 4, v{vYl}
    v_lshrrev_b32 v{vY}, 3, v{vL}
    v_mul_u32_u24 v{vY}, {GC}, v{vY}
    v_and_b32 v{vT}, 7, v{vL}
    v_lshl_add_u32 v{vY}, v{vT}, 4, v{vY}
    v_add_u32 v{vP}, s{sLA}, v{vL16}
    v_lshrrev_b32 v{vXg}, 2, v{vL}
    v_lshlrev_b32 v{vXg}, 10, v{vXg}
    v_and_b32 v{vT}, 3, v{vL}
    v_lshl_add_u32 v{vXg}, v{vT}, 4, v{vXg}
    v_add_u32 v{vR}, s{sLB}, v{vL16}
    """)
    for k in range(1, 4):
        a(f"s_xor_b32 s{sT}, s{sW}, {k}\ns_mulk_i32 s{sT}, 3072\ns_add_u32 s{sT}, s{sT}, {LB0}\nv_add_u32 v{vR+k}, s{sT}, v{vL16}")
    YO = 32768
    YT, YF, XFr, IDN = 232, 240, 248, 24
    XR = 24
    if "touch" in OPT:
        a(f"v_and_b32 v{vT}, 31, v{vL}\nv_mul_u32_u24 v{vT}, {GC}, v{vT}")
        a(f"buffer_load_dword v12, v{vT}, {WS}, s{sY} offen sc1", "yt")
    a(f"v_and_b32 v{vT}, 1, v{vF}\nv_lshlrev_b32 v{vT}, 4, v{vT}\nv_lshlrev_b32 v{vT}, v{vT}, v{vW2o}" if False else
      f"v_and_b32 v{vT}, 1, v{vF}\nv_lshlrev_b32 v{vT}, 4, v{vT}\nv_mov_b32 v11, 0x3f80\nv_lshlrev_b32 v11, v{vT}, v11\nv_ashrrev_i32 v{vF}, 1, v{vF}")
    for k in range(8):
        a(f"v_cmp_eq_u32 s[{88+2*(k&1)}:{89+2*(k&1)}], {8*(k>>2)+(k&3)}, v{vF}")
        if k: a(f"v_cndmask_b32 v{IDN+k-1}, 0, v11, s[{88+2*((k-1)&1)}:{89+2*((k-1)&1)}]")
    a(f"v_cndmask_b32 v{IDN+7}, 0, v11, s[90:91]")
    def y_loads(emit):
        emit(f"s_add_u32 m0, s{sLA}, {YO}")
        for k in range(4):
            emit(f"s_add_u32 s{sT2}, s{sY}, {8*k*GC-1024*k}")
            emit(f"buffer_load_dwordx4 v{vY}, {WS}, s{sT2} offen offset:{1024*k} sc1 lds")
    def y_reads(emit):
        for k in range(4): emit(f"ds_read_b64 {vr(YT+2*k,2)}, v{vP} offset:{YO+1024*k+8}")
        for k in range(4): emit(f"ds_read_b64_tr_b16 {vr(YF+2*k,2)}, v{vYl} offset:{YO+2048*(k>>1)+512*(k&1)}")
    wreg = lambda i: STASH + 8 * i if i < 12 else WR + 8 * (i % 3)
    def w_reads(i, half):
        j = half
        for e in range(2):
            rg, off = LOC[ploc(2 * i + e)]
            a(f"ds_read_b64_tr_b16 {vr(wreg(i)+4*j+2*e,2)}, v{vW2r+(0 if rg=='A' else 2)+j} offset:{off}", f"r{i}")
    started = set()
    def mm(n, jd):
        i, j = HS_[n]; k = 2 * jd + j
        ac = ACC2 + 16 * k
        a(f"v_mfma_f32_32x32x16_bf16 {vr(ac,16)}, {vr(wreg(i)+4*jd,4)}, {vr(HB+4*(n%HR),4)}, {vr(ac,16) if k in started else '0'}")
        started.add(k)
    roff = lambda k, q: (((k - 1) * 4 + q) // 3) * 12288 + (((k - 1) * 4 + q) % 3) * 1024
    def r_write(k, q): a(f"ds_write_b128 v{vR}, {vr(ACC2+16*k+4*q,4)} offset:{roff(k,q)}", "rw")
    def r_read(k, q): a(f"ds_read_b128 {vr(ACC2+16*k+4*q,4)}, v{vR+k} offset:{roff(k,q)}", f"rr{k}")
    YS = int(OPT.get("ys", 34))
    NT = 4
    side = []
    def run_side(c):
        for _ in range(c):
            if side:
                t = side.pop(0)
                if callable(t): t()
                else: a(t)
    for n in range(44 - NT):
        i, j = HS_[n]
        a.wait(vm=f"h{n}", lg=(f"r{i}" if i >= 12 else 0 if n == 0 else None))
        if n == 0 or ("g2" in OPT and n in (12, 24, 32, 36)): stamp(True)
        for jd in range(2):
            mm(n, jd)
            if jd == 0 and n + HR - 1 < 44: h_load(n + HR - 1)
            if n in (8, 10): w_reads(12 + (n - 8) // 2, jd)
            if 12 <= n < 28 and j == 1: w_reads(i + 2, jd)
            if jd == 1 and n == YS:
                y_loads(lambda t: a(t, "yr"))
            if jd == 1 and n == 30:
                a(f"s_mov_b32 m0, s{sLA}\ns_add_u32 s{sT2}, s{sO}, {16384-1024}")
                a(f"buffer_load_dwordx4 v{vXg}, {X}, s{sO} offen lds", "xr")
                a(f"buffer_load_dwordx4 v{vXg}, {X}, s{sT2} offen offset:1024 lds", "xr")
            g = 2 * (n - 32) + jd
            if 0 <= g < 12 and g % 3 != 2:
                w = g - g // 3; r_write(1 if w < 4 else 3, w & 3)
            if g == 12:
                a.wait(vm="xr")
                for q in range(2): a(f"ds_read_b128 {vr(XFr+4*q,4)}, v{vXl} offset:{32*q}", "xl")
            if g == 14:
                a.wait(lg="rw")
                a("s_barrier")
                for q in range(4): r_read(1, q)
            if g == 15:
                for q in range(4): r_read(3, q)
    if "ts" in OPT: stamp()
    side = [lambda: a.wait(lg="rr3")] + [f"v_add_f32 v{ACC2+16+q}, v{ACC2+16+q}, v{ACC2+48+q}" for q in range(16)]
    for q, n in enumerate(range(44 - NT, 44)):
        a.wait(vm=f"h{n}")
        mm(n, 1)
        if q >= 2: run_side(6)
    tail = [lambda n=n: mm(n, 0) for n in range(44 - NT, 44)]
    for src in (XFr, YF):
        for q in range(2):
            tail.append(lambda src=src, q=q: a(f"v_mfma_f32_32x32x16_bf16 {vr(ACC2,16)}, {vr(IDN+4*q,4)}, {vr(src+4*q,4)}, {vr(ACC2,16)}"))
    for q, t in enumerate(tail):
        t()
        if q == 0: run_side(99)
        if 1 <= q <= 4: r_write(2, q - 1)
        if q == 4:
            a.wait(vm="yr")
            y_reads(lambda t: a(t, "yl"))
        if q == 5:
            a.wait(lg="rw")
            a("s_barrier")
            for q2 in range(4): r_read(2, q2)
            a.wait(lg="yl")
            a(f"s_mov_b32 s{sCnt}, 0\nG_ychk:")
            a(f"v_cmp_ne_u64 vcc, {sr(sTag,2)}, {vr(YT,2)}")
            for q2 in range(1, 4): a(f"v_cmp_ne_u64 s[{86+2*q2}:{87+2*q2}], {sr(sTag,2)}, {vr(YT+2*q2,2)}")
            for q2 in range(1, 4): a(f"s_or_b64 vcc, vcc, s[{86+2*q2}:{87+2*q2}]")
            a("s_cbranch_vccnz G_yslow\nG_yok:")
    stamp()
    a.wait(lg="rr2")
    for q in range(16): a(f"v_add_f32 v{ACC2+16+q}, v{ACC2+16+q}, v{ACC2+32+q}")
    for k in range(8):
        a(f"v_pk_add_f32 {vr(ACC2+2*k,2)}, {vr(ACC2+2*k,2)}, {vr(ACC2+16+2*k,2)}")
    for k in range(8):
        a(f"v_cvt_pk_bf16_f32 v{XR+k}, v{ACC2+2*k}, v{ACC2+2*k+1}")
    for q in range(2):
        a(f"v_permlane32_swap_b32 v{XR+4*q}, v{XR+4*q+2}\nv_permlane32_swap_b32 v{XR+4*q+1}, v{XR+4*q+3}")
        a(f"buffer_store_dwordx4 {vr(XR+4*q,4)}, v{vO}, {OUT}, s{sO} offen offset:{32*q} {OPT.get('osf', '').replace('_', ' ')}")
    stamp()
    if STAMPS:
        a("s_waitcnt vmcnt(0)"); stamp()
    if "padto" in OPT:
        a(f"G_pad:\ns_memrealtime s[98:99]\ns_waitcnt lgkmcnt(0)\ns_sub_u32 s96, s98, s{sTag}\ns_cmp_lt_u32 s96, {OPT['padto']}\ns_cbranch_scc1 G_pad")
    if "dbg" in OPT:
        n = nstamp[0]
        a(f"s_memrealtime s[98:99]\ns_waitcnt lgkmcnt(0)\ns_lshl2_add_u32 s96, s2, s{sW}\ns_cmp_lg_u32 s96, {4*int(OPT['dbg'])}\ns_cbranch_scc1 G_nodbg\ns_mov_b64 exec, 1")
        for i in range(1, n):
            a(f"s_sub_u32 s96, s{60+2*i}, s60\nv_mov_b32 v{vT}, s96\nbuffer_store_dword v{vT}, off, {DBG}, 0 offset:{4+4*i}")
        a(f"s_sub_u32 s96, s98, s{sTag}\nv_mov_b32 v{vT}, s96\nbuffer_store_dword v{vT}, off, {DBG}, 0 offset:60")
        a("G_nodbg:")
    stamp_flush(WS, f"s{sW}", vT, 256)
    a("s_endpgm")
    tag_slow("G", sTag, 24, [64, 192], vNon, sCnt)
    a.raw(f"""G_stslow:
{retry_mark(4)}  s_add_u32 s{sCnt}, s{sCnt}, 1
  s_cmp_ge_u32 s{sCnt}, {SPIN}
  s_cbranch_scc1 G_stok
  buffer_load_dwordx4 {vr(vSt,4)}, v{vSa}, {WS}, s{sO} offen sc1
  buffer_load_dwordx4 {vr(vId,4)}, v{vIa}, {WS}, s{sIa} offen sc1
  s_waitcnt vmcnt(0)
  s_branch G_stchk
G_hslow:
  s_cmp_ge_u32 s{sCnt}, {SPIN}
  s_cbranch_scc1 G_hok
  buffer_load_dwordx2 {vr(vP,2)}, v{vF}, {WS}, s{sRet} offen sc1
  s_waitcnt vmcnt(0)
  s_branch G_hchk
G_yslow:
{retry_mark(8)}  s_add_u32 s{sCnt}, s{sCnt}, 1
  s_cmp_ge_u32 s{sCnt}, {1 if "nossm" in OPT else SPIN}
  s_cbranch_scc1 G_yok""")
    y_loads(lambda t: a.raw("  " + t))
    a.raw("  s_waitcnt vmcnt(0)")
    y_reads(lambda t: a.raw("  " + t))
    a.raw("  s_waitcnt lgkmcnt(0)\n  s_branch G_ychk")
    a.hist = []
    a("G_far:\ns_waitcnt vmcnt(0)")
    for k in range(6):
        a(f"buffer_store_dwordx4 {vr(OB+4*k,4)}, v{vL16}, {HS}, s{sHS if k < 4 else sHS2} offen offset:{1024*(k&3)} sc1")
    a(f"s_waitcnt vmcnt(0)\ns_mov_b64 exec, 1\nbuffer_store_dwordx2 {vr(vNon,2)}, off, {WS}, s{sFl} sc1\ns_branch G_pub")
    a.vm = []; a.lg = []

def ssm_role():
    DBG, WS = "s[8:11]", "s[12:15]"
    sQ, sW, sE, sPar, sT, sT2, sCnt, sB1, sMask = 3, 32, 5, 6, 7, 34, 35, 40, 41
    sLdt, sD, sTag, sU, sXcc = 42, 43, 36, 38, 4
    sMean, sNeg = 44, 48
    vL, LX, LF, vC, LG = 1, 2, 10, 30, 26
    vPar = 44
    vT, vT2, vT3, vT4 = 54, 55, 56, 57
    vNon, vL16, vTab = 52, 60, 61
    SB = 98304
    CB0, UB0, USZ, K0A, FLG, TAB, TSZ, SROW = SB, SB + 33280, 4576, SB + 42432, SB + 42448, SB + 45056, 4096, 1056
    a.hist = []; a.vm = []; a.lg = []
    a(f"""
    s_load_dwordx16 s[16:31], s[0:1], 0
    s_load_dwordx2 s[8:9], s[0:1], 104
    s_load_dwordx2 s[52:53], s[0:1], 64
    s_load_dwordx2 s[92:93], s[0:1], 88
    s_load_dwordx2 s[12:13], s[0:1], 112
    s_memrealtime {sr(sTag,2)}
    s_setprio 3
    s_sub_u32 s{sW}, s{sW}, 4
    v_and_b32 v{vL}, 63, v0
    v_and_b32 v{vT}, 255, v0
    s_lshl_b32 s{sT}, s{sQ}, 9
    v_lshl_add_u32 v{vT3}, v{vT}, 1, s{sT}
    s_lshl2_add_u32 s{sT2}, s{sQ}, s{sW}
    s_lshl_b32 s{sT2}, s{sT2}, 11
    v_lshlrev_b32 v{vL16}, 4, v{vL}
    v_lshl_add_u32 v{vT4}, v{vL}, 6, s{sT2}
    s_lshl_b32 s{sT}, s{sQ}, 2
    """)
    srd(8, 256)
    a("s_waitcnt lgkmcnt(0)")
    if STAMPS: a(f"s_mov_b32 s100, s{sTag}\ns_mov_b32 s97, 0")
    stamp()
    a(f"""
    s_or_b32 s{sTag}, s{sTag}, 1
    v_mov_b32 v{vNon}, s{sTag}
    v_mov_b32 v{vNon+1}, s{sTag+1}
    buffer_store_dwordx2 {vr(vNon,2)}, v{vT4}, {DBG}, 0 offen sc1
    """)
    for k in range(6):
        a(f"global_load_ushort v{vPar+k}, v{vT3}, s[{18+2*k}:{19+2*k}]", "par")
    a(f"s_load_dword s{sLdt}, s[30:31], s{sT}\ns_load_dword s{sD}, s[52:53], s{sT}\ns_setprio 0\ns_branch L_ssm")
    keep = (list(a.vm), nstamp[0])
    yield
    a.hist = []; a.lg = []; a.vm = keep[0]; nstamp[0] = keep[1]
    srd(12, WS_SIZE)
    vSw, vSr = 62, 63
    vOA, vOG, vPb = 50, 51, 59
    a(f"""
    s_lshr_b32 s{sE}, s{sW}, 1
    s_and_b32 s{sPar}, s{sW}, 1
    s_mov_b32 s{sMask}, 0xffff0000
    s_mul_i32 s{sT2}, s{sE}, {USZ}
    s_add_u32 s{sT2}, s{sT2}, {UB0}
    v_lshl_add_u32 v{vT}, v{vL}, 3, s{sT2}
    v_mov_b32 v{vT3}, 0
    v_mov_b32 v{vT4}, 0
    ds_write_b64 v{vT}, {vr(vT3,2)}
    s_lshl2_add_u32 s{sT2}, s{sW}, {FLG}
    v_mov_b32 v58, s{sT2}
    ds_write_b32 v58, v{vT3}
    ds_write_b32 v58, v{vT3} offset:16
    s_lshl_b32 s{sT2}, s{sW}, 12
    s_add_u32 s{sT2}, s{sT2}, {TAB}
    v_add_u32 v{vTab}, s{sT2}, v{vL16}
    v_lshrrev_b32 v{vT}, 4, v{vL}
    v_lshl_add_u32 v{vPb}, v{vT}, 6, s{sT2}
    v_and_b32 v{vT}, 15, v{vL}
    v_lshlrev_b32 v{vOG}, 3, v{vT}
    v_lshlrev_b32 v{vT2}, 2, v{vT}
    v_add_u32 v{vT2}, {512-36}, v{vT2}
    v_cmp_lt_u32 vcc, 8, v{vT}
    v_add_u32 v{vT3}, {1024-96}, v{vOG}
    v_add_u32 v{vT4}, {1536-112}, v{vOG}
    v_cndmask_b32 v{vOA}, v{vT}, v{vT2}, vcc
    v_cmp_lt_u32 vcc, 11, v{vT}
    v_cmp_lt_u32 s[56:57], 13, v{vT}
    v_cvt_f32_u32 v{vOG}, v{vOG}
    v_cndmask_b32 v{vOA}, v{vOA}, v{vT3}, vcc
    v_cndmask_b32 v{vOA}, v{vOA}, v{vT4}, s[56:57]
    v_cvt_f32_u32 v{vOA}, v{vOA}
    """)
    def k_mfma(s_):
        F = 152 + 16 * (s_ & 1)
        for hh in range(2):
            for gt in range(2):
                d = 200 + 8 * hh + 4 * gt
                a(f"v_mfma_f32_16x16x32_bf16 {vr(d,4)}, {vr(F+4*hh,4)}, {vr(F+8+4*gt,4)}, {'0' if s_ == 0 else vr(d,4)}")
    UG = int(OPT.get("ug", 99))
    vUg, vUw, vU, sG = 30, 31, 232, 54
    def u_addr():
        a(f"""
        v_lshrrev_b32 v{vT3}, 2, v{vL}
        v_bfe_u32 v{vT4}, v{vL}, 1, 1
        v_and_b32 v{vT2}, 1, v{vL}
        v_mul_u32_u24 v{vUg}, {GS}, v{vT3}
        v_lshl_add_u32 v{vUg}, v{vT4}, 6, v{vUg}
        v_lshl_add_u32 v{vUg}, v{vT2}, 4, v{vUg}
        v_mul_u32_u24 v{vUw}, {USZ}, v{vT2}
        v_lshl_add_u32 v{vUw}, v{vT3}, 4, v{vUw}
        v_lshl_add_u32 v{vUw}, v{vT4}, 3, v{vUw}
        s_lshl_b32 s{sT}, s{sW}, 10
        s_add_u32 s{sT}, s{sT}, {UB0+480}
        v_add_u32 v{vUw}, s{sT}, v{vUw}
        s_mul_i32 s{sG}, s{sW}, {64*GS}
        s_lshr_b32 s{sT}, s{sQ}, 1
        s_lshl_b32 s{sT}, s{sT}, 7
        s_add_u32 s{sG}, s{sG}, s{sT}
        s_and_b32 s{sT}, s{sQ}, 1
        s_lshl_b32 s{sT}, s{sT}, 5
        s_add_u32 s{sG}, s{sG}, s{sT}
        s_add_u32 s{sG}, s{sG}, {XNP}
        """)
    def u_loads(emit, ks=range(4)):
        emit("s_setprio 3")
        for k in ks:
            emit(f"s_add_u32 s{sG+1}, s{sG}, {k*16*GS}")
            emit(f"buffer_load_dwordx4 {vr(vU+4*k,4)}, v{vUg}, {WS}, s{sG+1} offen sc1")
        emit("s_setprio 0")
    u_addr()
    W2 = "s[92:95]"
    vW2o, vTp, sW2, sLA, sLB, sTp = 62, 63, 16, 17, 18, 19
    srd(92, 1376 * 1024)
    a(f"""
    v_lshrrev_b32 v{vT}, 3, v{vL}
    v_lshlrev_b32 v{vT}, 10, v{vT}
    v_bfe_u32 v{vT2}, v{vL}, 4, 1
    v_lshlrev_b32 v{vT3}, 2, v{vT2}
    v_xor_b32 v{vT3}, v{vT3}, v{vL}
    v_and_b32 v{vT3}, 7, v{vT3}
    v_lshl_add_u32 v{vW2o}, v{vT3}, 4, v{vT}
    v_min_u32 v{vTp}, 43, v{vL}
    v_lshlrev_b32 v{vTp}, 7, v{vTp}
    s_mul_i32 s{sW2}, s{sW}, {352*1024}
    s_and_b32 s{sTp}, s{sQ}, 31
    s_mulk_i32 s{sTp}, 5632
    s_add_u32 s{sTp}, s{sTp}, s{sW2}
    s_bfe_u32 s{sT}, s{sQ}, 0x30001
    s_lshl_b32 s{sT}, s{sT}, 7
    s_add_u32 s{sW2}, s{sW2}, s{sT}
    s_lshl_b32 s{sLA}, s{sW}, 12
    s_mul_i32 s{sLB}, s{sW}, 3072
    s_add_u32 s{sLB}, s{sLB}, 49152
    """)
    def touch(half):
        a(f"s_add_u32 s44, s{sTp}, {half*176*1024}")
        a(f"buffer_load_dword v29, v{vTp}, {W2}, s44 offen", "tp")
    TP0, TP1 = int(OPT.get("tp0", 5)), int(OPT.get("tp1", 7))
    PR, PB, FR, KT, KA = 64, 72, 152, 200, 216
    a("s_waitcnt lgkmcnt(0)")
    a.lg = []
    BP = int(OPT.get("bp", 400))
    NKB = int(OPT.get("nkb", 7))
    a.metro = ([int(OPT.get("bb0", 800)), int(OPT.get("b01", 250))] + [int(OPT.get("bq", 400))] * 3 + [BP] * 3 + [BP // 2, 3 * BP // 4])[:NKB]
    a.cost = 0
    uq = list(range(4))
    def on_bar(left):
        nb = NKB - 1 - left
        if nb in (0, 2, 5): stamp()
        if nb == TP0: touch(0)
        if nb == TP1: touch(1)
        if nb >= UG:
            for _ in range(int(OPT.get("un", 2))):
                if uq: u_loads(lambda t: a(t, "u"), [uq.pop(0)])
    a.on_bar = on_bar
    a(f"""
    s_lshl_b32 s{sT}, s{sLdt}, 16
    s_and_b32 s{sT2}, s{sLdt}, s{sMask}
    s_cmp_eq_u32 s{sE}, 0
    s_cselect_b32 s{sT}, s{sT}, s{sT2}
    v_mov_b32 v{vT}, {LOG2E:#x}
    v_mul_f32 v{vT}, s{sT}, v{vT}
    v_exp_f32 v{vT}, v{vT}
    """)
    a.wait(vm="par")
    stamp()
    for k in range(6): a(f"v_lshlrev_b32 v{vPar+k}, 16, v{vPar+k}")
    TM = 136
    a(f"""
    v_cvt_pk_bf16_f32 v{vT}, v{vT}, v{vT}
    v_lshlrev_b32 v{vT}, 16, v{vT}
    v_mul_f32 v{PR}, v{vPar}, v{vT}
    v_mul_f32 v{PR+1}, v{vPar+1}, v{vT}
    v_mul_f32 v{vPar+2}, v{vPar+2}, v{vT}
    v_mul_f32 v{vPar+3}, v{vPar+3}, v{vT}
    v_mul_f32 v{PR}, {LOG2E:#x}, v{PR}
    v_mul_f32 v{PR+1}, 0.15915494, v{PR+1}
    v_rndne_f32 v{vT}, v{PR+1}
    v_sub_f32 v{PR+1}, v{PR+1}, v{vT}
    """)
    cmul(PR + 2, vPar + 4, vPar + 2)
    for i, l in enumerate((128, 256)):
        a(f"v_mul_f32 v{TM+4*i}, {fl(l)}, v{PR}\nv_mul_f32 v{TM+4*i+1}, {fl(l)}, v{PR+1}")
    for i in range(2): a(f"v_fract_f32 v{TM+4*i+1}, v{TM+4*i+1}\nv_exp_f32 v{TM+4*i}, v{TM+4*i}")
    for i in range(2): a(f"v_cos_f32 v{TM+4*i+2}, v{TM+4*i+1}\nv_sin_f32 v{TM+4*i+3}, v{TM+4*i+1}")
    a(f"ds_write_b128 v{vTab}, {vr(PR,4)}", "pw")
    a(f"""
    v_mul_f32 v{TM+2}, v{TM+2}, v{TM}
    v_mul_f32 v{TM+3}, v{TM+3}, v{TM}
    v_mul_f32 v{PR+6}, v{TM+6}, v{TM+4}
    v_mul_f32_e64 v{PR+7}, -v{TM+7}, v{TM+4}
    """)
    cmul(PR + 4, PR + 2, TM + 2)
    a(f"ds_write_b128 v{vTab}, {vr(PR+4,4)} offset:1024", "pw")
    def p_reads(s_):
        for j in range(4):
            for k in range(2):
                a(f"ds_read_b128 {vr(PB+32*(s_&1)+8*j+4*k,4)}, v{vPb} offset:{256*s_+16*j+1024*k}", f"pb{s_}")
    p_reads(0)
    for s_ in range(4):
        if s_ < 3: p_reads(s_ + 1)
        a.wait(lg=f"pb{s_}")
        if s_ == 3: a(f"s_load_dwordx2 {sr(sTag,2)}, s[8:9], 128")
        F = FR + 16 * (s_ & 1)
        for jp in range(2):
            js = (2 * jp, 2 * jp + 1)
            P = lambda j: PB + 32 * (s_ & 1) + 8 * j
            T = lambda j, w_: TM + 8 * (j & 1) + 4 * w_
            for j in js:
                for w_, o in enumerate((vOA, vOG)):
                    a(f"v_mul_f32 v{T(j,w_)}, v{P(j)}, v{o}\nv_mul_f32 v{T(j,w_)+1}, v{P(j)+1}, v{o}")
            for j in js:
                a(f"v_fract_f32 v{T(j,0)+1}, v{T(j,0)+1}")
                for w_ in range(2): a(f"v_exp_f32 v{T(j,w_)}, v{T(j,w_)}")
            for j in js:
                for w_ in range(2):
                    a(f"v_cos_f32 v{T(j,w_)+2}, v{T(j,w_)+1}\nv_sin_f32 v{T(j,w_)+3}, v{T(j,w_)+1}")
            for j in js:
                a(f"v_mul_f32 v{T(j,0)+2}, v{T(j,0)+2}, v{T(j,0)}\nv_mul_f32_e64 v{T(j,0)+3}, -v{T(j,0)+3}, v{T(j,0)}")
                a(f"v_mul_f32 v{T(j,1)+2}, v{T(j,1)+2}, v{T(j,1)}\nv_mul_f32 v{T(j,1)+3}, v{T(j,1)+3}, v{T(j,1)}")
            for j in js:
                a(f"v_cvt_pk_bf16_f32 v{F+j}, v{T(j,0)+2}, v{T(j,0)+3}")
                cmul(T(j, 0), T(j, 0) + 2, P(j) + 6)
                cmul(T(j, 1), T(j, 1) + 2, P(j) + 2)
                a(f"v_cvt_pk_bf16_f32 v{F+4+j}, v{T(j,0)}, v{T(j,0)+1}")
                cmul(T(j, 0) + 2, T(j, 1) + 2, P(j) + 4)
                a(f"v_cvt_pk_bf16_f32 v{F+8+j}, v{T(j,1)}, v{T(j,1)+1}")
                a(f"v_cvt_pk_bf16_f32 v{F+12+j}, v{T(j,0)+2}, v{T(j,0)+3}")
            if jp == 0 and s_ > 0: k_mfma(s_ - 1)
    k_mfma(3)
    vK = 80
    a(f"""
    v_lshrrev_b32 v{vT2}, 4, v{vL}
    v_and_b32 v{vT3}, 15, v{vL}
    v_lshlrev_b32 v{vT3}, 4, v{vT3}
    v_lshl_add_u32 v{vT2}, v{vT2}, 10, v{vT3}
    s_lshl_b32 s{sT2}, s{sW}, 12
    s_add_u32 s{sT2}, s{sT2}, {TAB}
    v_add_u32 v{vT2}, s{sT2}, v{vT2}
    s_lshl_b32 s{sT}, s{sE}, 13
    s_add_u32 s{sT}, s{sT}, {TAB}
    v_add_u32 v{vT3}, s{sT}, v{vL16}
    """)
    sys.stderr.write(f"metronome left {a.metro} cost {a.cost}\n")
    while a.metro: a.tick()
    a.metro = None
    stamp()
    a(f"s_setprio {OPT.get('xprio', 0)}")
    for t in range(4): a(f"ds_write_b128 v{vT2}, {vr(KT+4*t,4)} offset:{256*t}")
    if NKB == 10: a("ds_write_b32 v58, v58 offset:16\nv_xor_b32 v27, 4, v58")
    a(f"""
    s_mul_i32 s{sT}, s{sE}, 16640
    s_add_u32 s{sT}, s{sT}, {CB0}
    s_lshl_b32 s{sT2}, s{sPar}, 11
    s_add_u32 s{sT2}, s{sT2}, s{sT}
    s_add_u32 s{sT2}, s{sT2}, 32
    v_add_u32 v{vK}, s{sT2}, v{vL16}
    v_bfe_u32 v{vT}, v{vL}, 3, 2
    v_mul_u32_u24 v{vT}, 4160, v{vT}
    v_and_b32 v{vT4}, 7, v{vL}
    v_lshl_add_u32 v{vT}, v{vT4}, 2, v{vT}
    v_add_u32 v{vT}, s{sT}, v{vT}
    v_and_b32 v{vT4}, 1, v{vL}
    v_cmp_eq_u32 vcc, 1, v{vT4}
    v_cmp_le_u32 s[56:57], 32, v{vL}
    """)
    a(f"s_waitcnt lgkmcnt(0)\ns_cmp_eq_u32 s{sTag}, 0\ns_cbranch_scc1 S_tagslow\nS_tagok:")
    stamp()
    if NKB < 10:
        a("s_barrier")
        sv = sT
        if TP1 == NKB: a(f"s_add_u32 s44, s{sTp}, {176*1024}\nbuffer_load_dword v29, v{vTp}, {W2}, s44 offen")
    else:
        a("""
        S_xw:
        ds_read_b32 v28, v27 offset:16
        s_waitcnt lgkmcnt(0)
        v_readfirstlane_b32 s44, v28
        s_cmp_eq_u32 s44, 0
        s_cbranch_scc1 S_xw
        """)
    stamp()
    NREST = max(0, 10 - NKB - 2)
    a(f"s_cmp_lg_u32 s{sPar}, 0\ns_cbranch_scc1 S_par1")
    KP = 64
    PK = 88
    K = lambda i: KA + i
    cnt = [0]
    CBAR = [int(x) for x in OPT.get('cbar', '2,5,6,7').split(',')]
    def packs(run, k):
        for cp in range(4):
            for j in range(4): a(f"v_cvt_pk_bf16_f32 v{PK+16*run+4*cp+j}, v{k[cp+2*j]}, v{k[cp+2*j+1]}")
            if cnt[0] in CBAR[:NREST]: a("s_barrier")
            cnt[0] += 1
            a(f"ds_write_b128 v{vK}, {vr(PK+16*run+4*cp,4)} offset:{4160*cp+1024*run}")
    hist0 = list(a.hist)
    for q in range(3):
        a(f"ds_read_b128 {vr(KA+4*q,4)}, v{vT3} offset:{1024*q}\nds_read_b128 {vr(KP+4*q,4)}, v{vT3} offset:{TSZ+1024*q}")
    a(f"""
    v_mov_b32 v{vT4}, 0
    ds_write_b32 v{vT}, v{vT4}
    s_lshl_b32 s{sT2}, s{sE}, 2
    s_add_u32 s{sT2}, s{sT2}, {K0A}
    v_mov_b32 v{vT2}, s{sT2}
    v_mov_b32 v{vT3}, s{sT}
    s_waitcnt lgkmcnt(1)
    """)
    for j in range(12): a(f"v_add_f32 v{KA+j}, v{KA+j}, v{KP+j}")
    a(f"""
    v_cndmask_b32 v{K(1)}, v{K(1)}, v{K(0)}, s[56:57]
    v_cndmask_b32 v{K(3)}, v{K(3)}, v{K(4)}, s[56:57]
    v_cndmask_b32 v{K(5)}, v{K(5)}, v{K(4)}, s[56:57]
    v_cndmask_b32 v{K(7)}, v{K(7)}, v{K(8)}, s[56:57]
    v_mov_b32 v{K(12)}, v{K(8)}
    v_mov_b32 v{K(13)}, v{K(8)}
    s_mov_b64 exec, 1
    ds_write_b32 v{vT2}, v{K(0)}
    v_mov_b32 v{K(0)}, 0
    s_mov_b64 exec, -1
    v_mov_b32_dpp v{K(12)}, v{K(1)} wave_shl:1 row_mask:0xf bank_mask:0xf
    v_mov_b32_dpp v{K(13)}, v{K(2)} wave_shl:1 row_mask:0xf bank_mask:0xf
    """)
    packs(1, [K(9)] * 3 + [K(10)] * 3 + [K(11)] * 5)
    packs(0, [K(i) for i in range(9)] + [K(12), K(13)])
    a(f"""
    s_mov_b64 exec, 1
    ds_write_b32 v{vT3}, v{PK} offset:{2*4160+28}
    ds_write_b32 v{vT3}, v{PK+4} offset:{3*4160+28}
    s_mov_b64 exec, -1
    s_branch S_parj
    S_par1:
    """)
    a.hist = hist0; cnt[0] = 0
    a(f"ds_read_b128 {vr(KA+12,4)}, v{vT3} offset:3072\nds_read_b128 {vr(KP,4)}, v{vT3} offset:{TSZ+3072}\ns_waitcnt lgkmcnt(0)")
    for j in range(4): a(f"v_add_f32 v{KA+12+j}, v{KA+12+j}, v{KP+j}")
    a(f"v_cndmask_b32 v{K(0)}, v{K(12)}, v{K(13)}, vcc\nv_cndmask_b32 v{K(1)}, v{K(14)}, v{K(15)}, vcc")
    packs(0, [K(12)] * 4 + [K(0)] + [K(13)] * 6)
    packs(1, [K(14)] * 4 + [K(1)] + [K(15)] * 6)
    a("S_parj:")
    a.lg = []
    vAa, vBa, vUa, vBp = 52, 53, 50, 51
    a(f"""
    s_mul_i32 s{sT}, s{sE}, {USZ}
    s_add_u32 s{sT}, s{sT}, {UB0+256}
    s_lshl_b32 s{sT2}, s{sPar}, 8
    v_and_b32 v{vT2}, 15, v{vL}
    v_lshrrev_b32 v{vT3}, 4, v{vL}
    v_lshl_add_u32 v{vBa}, v{vT2}, 5, s{sT}
    v_lshl_add_u32 v{vUa}, v{vT3}, 3, v{vBa}
    v_lshlrev_b32 v{vT3}, 4, v{vT3}
    v_add_u32 v{vBa}, v{vT3}, v{vBa}
    v_subrev_u32 v{vBa}, s{sT2}, v{vBa}
    v_bfe_u32 v{vT2}, v{vL}, 2, 2
    v_sub_u32 v{vT4}, 0, v{vT2}
    v_and_b32 v{vT4}, 3, v{vT4}
    v_mul_u32_u24 v{vAa}, 4160, v{vT4}
    v_min_u32 v{vT2}, 1, v{vT2}
    v_lshlrev_b32 v{vT2}, 3, v{vT2}
    v_sub_u32 v{vAa}, v{vAa}, v{vT2}
    v_sub_u32 v{vAa}, v{vAa}, v{vT3}
    v_and_b32 v{vT2}, 3, v{vL}
    v_lshl_add_u32 v{vAa}, v{vT2}, 3, v{vAa}
    s_mul_i32 s{sT}, s{sE}, 16640
    s_add_u32 s{sT}, s{sT}, {CB0+32+32-8}
    s_add_u32 s{sT}, s{sT}, s{sT2}
    v_add_u32 v{vAa}, s{sT}, v{vAa}
    s_xor_b32 s{sT}, s{sW}, 1
    s_lshl2_add_u32 s{sLdt}, s{sT}, {FLG}
    v_mov_b32 v27, s{sLdt}
    s_lshl_b32 s{sT}, s{sT}, 12
    s_add_u32 s{sT}, s{sT}, {TAB}
    v_add_u32 v{vPb}, s{sT}, v{vL16}
    v_lshrrev_b32 v{vT3}, 2, v{vL}
    v_lshl_add_u32 v{vBp}, v{vT2}, 4, v{vT3}
    v_lshlrev_b32 v{vBp}, 2, v{vBp}
    s_lshl2_add_u32 s{sT}, s{sE}, {K0A}
    v_mov_b32 v{vT4}, s{sT}
    s_lshl_b32 s{sT}, s{sD}, 16
    s_and_b32 s{sT2}, s{sD}, s{sMask}
    s_cmp_eq_u32 s{sE}, 0
    s_cselect_b32 s{sD}, s{sT}, s{sT2}
    s_lshl1_add_u32 s{sT}, s{sQ}, s{sE}
    s_mul_i32 s{sT}, s{sT}, {GC}
    s_add_u32 s{sT}, s{sT}, {Y2}
    s_add_u32 s{sT2}, s{sT}, 4096
    s_mov_b32 s{sCnt}, 0
    """)
    AS, BS, YA, OV, UU, KD = [64, 128], [96, 160], 192, 10, 2, 26
    for k in range(4): a(f"v_mov_b32 v{OV+4*k+2}, s{sTag}\nv_mov_b32 v{OV+4*k+3}, s{sTag+1}")
    stamp()
    a("s_barrier")
    while uq: u_loads(lambda t: a(t, "u"), [uq.pop(0)])
    def piece(p):
        rg, off = SHARED['LOC'][p]
        a(f"s_add_u32 m0, s{sLA if rg == 'A' else sLB}, {off}\ns_add_u32 s44, s{sW2}, {8192*p}")
        a(f"buffer_load_dwordx4 v{vW2o}, {W2}, s44 offen lds", "P")
    for p in range(24): piece(p)
    a.wait(vm="u")
    a("S_uchk:")
    a(f"v_cmp_ne_u64 vcc, {sr(sTag,2)}, {vr(vU+2,2)}")
    for k in range(1, 4): a(f"v_cmp_ne_u64 s[{42+2*k}:{43+2*k}], {sr(sTag,2)}, {vr(vU+4*k+2,2)}")
    for k in range(1, 4): a(f"s_or_b64 vcc, vcc, s[{42+2*k}:{43+2*k}]")
    a(f"s_cbranch_vccnz S_uslow\nS_uok:\ns_mov_b32 s{sCnt}, 0")
    stamp()
    for k in range(4): a(f"ds_write_b64 v{vUw}, {vr(vU+4*k,2)} offset:{256*k}")
    a(f"s_waitcnt vmcnt(0) lgkmcnt(0)\ns_setprio {OPT.get('cprio', 1)}\ns_barrier")
    a.vm = []
    a.lg = []
    stamp()
    def reads(rho):
        s_ = rho & 1; L = []
        for j in range(8):
            L.append((f"ds_read_b128 {vr(BS[s_]+4*j,4)}, v{vBa} offset:{512*j+64*(3-rho)}", f"f{rho}_{j}"))
            L.append((f"ds_read_b64_tr_b16 {vr(AS[s_]+4*j,2)}, v{vAa} offset:{64*(8*j+rho)+8}", f"f{rho}_{j}"))
            L.append((f"ds_read_b64_tr_b16 {vr(AS[s_]+4*j+2,2)}, v{vAa} offset:{64*(8*j+rho)}", f"f{rho}_{j}"))
        return L
    for t, tag in reads(0): a(t, tag)
    first = [True] * 8
    def cm(rho, p, q):
        a.wait(lg=f"f{rho}_{max(p,q)}")
        ct = p + q; s_ = rho & 1
        a(f"v_mfma_f32_16x16x32_bf16 {vr(YA+4*ct,4)}, {vr(AS[s_]+4*p,4)}, {vr(BS[s_]+4*q,4)}, {'0' if first[ct] else vr(YA+4*ct,4)}")
        first[ct] = False
    for rho in range(3):
        if rho == int(OPT.get("cp3", 2)): a("s_setprio 3")
        nxt = reads(rho + 1)
        for n, (p, q) in enumerate(sorted([(p, q) for p in range(8) for q in range(8) if p + q <= 7], key=lambda x: max(x))):
            cm(rho, p, q)
            if n >= 8 and nxt:
                t, tag = nxt.pop(0); a(t, tag)
        assert not nxt
    a(f"s_cmp_lg_u32 s{sPar}, 0\ns_cbranch_scc1 S_conv1")
    keep = (list(a.hist), list(a.lg), nstamp[0])
    ZB, PB_ = 64, 80
    for par, (KEEP, SEND) in enumerate((((0, 3, 4, 7), (1, 2, 5, 6)), ((1, 2, 5, 6), (0, 3, 4, 7)))):
        if par: a("S_conv1:")
        a.hist, a.lg, nstamp[0] = list(keep[0]), list(keep[1]), keep[2]
        side = [lambda: a(f"ds_read_b32 v{KD}, v{vT4}", "uu")]
        side += [lambda k=k, ct=ct: a(f"ds_read_b64 {vr(UU+2*k,2)}, v{vUa} offset:{480-256+512*ct}", "uu") for k, ct in enumerate(KEEP)]
        side += [None] * 5
        side += [lambda: (a.wait(lg="uu"), a(f"v_add_f32 v{KD}, s{sD}, v{KD}"))]
        side += [lambda j=j: a(f"v_lshlrev_b32 v{ZB+2*j}, 16, v{UU+j}\nv_and_b32 v{ZB+2*j+1}, s{sMask}, v{UU+j}") for j in range(8)]
        order = [(p, ct - p) for ct in SEND + KEEP for p in range(ct + 1)]
        ends = {}
        for n, (p, q) in enumerate(order): ends[p + q] = n
        wq = list(SEND)
        for n, (p, q) in enumerate(order):
            cm(3, p, q)
            if wq and n >= ends[wq[0]] + 5:
                ct = wq.pop(0); a(f"ds_write_b128 v{vTab}, {vr(YA+4*ct,4)} offset:{1024*SEND.index(ct)}", "sw")
                if not wq: a(f"ds_write_b32 v58, v58", "sw")
            elif side:
                t = side.pop(0)
                if t: t()
            if n == 31:
                assert not wq and not side
                a("ds_read_b32 v28, v27", "pr")
                for k in range(4): a(f"ds_read_b128 {vr(PB_+4*k,4)}, v{vPb} offset:{1024*k}", "pr")
        stamp()
        a.wait(lg=0)
        a(f"""
        v_cmp_eq_u32 vcc, 0, v28
        s_cbranch_vccz S_pok{par}
        S_pw{par}:
        ds_read_b32 v28, v27
        """)
        for k in range(4): a(f"ds_read_b128 {vr(PB_+4*k,4)}, v{vPb} offset:{1024*k}")
        a(f"""
        s_waitcnt lgkmcnt(0)
        v_cmp_eq_u32 vcc, 0, v28
        s_cbranch_vccnz S_pw{par}
        S_pok{par}:
        """)
        a.lg = []
        for j in range(16): a(f"v_fmac_f32 v{PB_+j}, v{KD}, v{ZB+j}")
        a("s_setprio 3")
        for k, ct in enumerate(KEEP):
            for j in range(4): a(f"v_add_f32 v{PB_+4*k+j}, v{PB_+4*k+j}, v{YA+4*ct+j}")
            for j in range(2): a(f"v_cvt_pk_bf16_f32 v{UU+2*k+j}, v{PB_+4*k+2*j}, v{PB_+4*k+2*j+1}")
            for j in range(2): a(f"ds_bpermute_b32 v{OV+4*k+j}, v{vBp}, v{UU+2*k+j}", f"bp{k}")
        for k, ct in enumerate(KEEP):
            a.wait(lg=f"bp{k}")
            a(f"buffer_store_dwordx4 {vr(OV+4*k,4)}, v{vL16}, {WS}, s{sT if ct < 4 else sT2} offen offset:{1024*(ct&3)} sc1")
        if par == 0: a("s_branch S_done")
    a("S_done:")
    stamp()
    if STAMPS:
        a("s_waitcnt vmcnt(0)"); stamp()
    if "wb" in OPT:
        a(f"s_lshr_b32 s{sT}, s2, 3\ns_or_b32 s{sT}, s{sT}, s{sW}\ns_cmp_lg_u32 s{sT}, 0\ns_cbranch_scc1 S_nowb\nbuffer_wbl2 sc1\nS_nowb:")
    stamp_flush(WS, f"s{sW}", vT)
    a("s_endpgm")
    tag_slow("S", sTag, 8, [192], vNon, sCnt)
    a.raw(f"""S_uslow:
{retry_mark(4)}  s_add_u32 s{sCnt}, s{sCnt}, 1
  s_cmp_ge_u32 s{sCnt}, {SPIN}
  s_cbranch_scc1 S_uok
  s_sleep 4""")
    u_loads(lambda t: a.raw("  " + t))
    a.raw("  s_waitcnt vmcnt(0)\n  s_branch S_uchk")

hdr = open("cdna_kernels/" + NAME + ".s.ref").read().split("\n")
top = [l for l in hdr if l.startswith(";") and "@launch" not in l][:16]
a.raw("\n".join(top))
a.raw("; @launch grid=(256,1,1) block=(512,1,1) lds=163840")
a.raw(f""".amdgcn_target "amdgcn-amd-amdhsa--gfx950"
.text
.globl {NAME}_kernel
.p2align 8
.type {NAME}_kernel,@function
{NAME}_kernel:""")
stamp()
NST[0] = 14
a(f"""
v_lshrrev_b32 v1, 6, v0
s_cmp_ge_u32 s2, 256
s_cbranch_scc1 L_exit
v_readfirstlane_b32 s32, v1
s_and_b32 s3, s2, 7
s_lshl_b32 s3, s3, 5
s_lshr_b32 s96, s2, 3
s_add_u32 s3, s3, s96
s_cmp_lt_u32 s32, 4
s_cbranch_scc1 L_gemm
""")
if "nocpf" not in OPT:
    a(f"""
    s_getpc_b64 s[94:95]
    s_lshl_b32 s96, s96, 10
    v_and_b32 v255, 7, v0
    v_lshl_add_u32 v255, v255, 7, s96
    v_min_u32 v255, L_exit-{NAME}_kernel-128, v255
    global_load_dword v254, v255, s[94:95]
    """)
ssm = ssm_role()
next(ssm)
a("L_gemm:")
a.hist = []; a.vm = []; a.lg = []
if STAMPS: nstamp[0] = 1
gemm_role()
a.raw(".p2align 6")
a("L_ssm:")
NST[0] = 16
for _ in ssm: pass
a("L_exit:\ns_endpgm")
a.raw(f""".section .rodata,"a"
.p2align 6
.amdhsa_kernel {NAME}_kernel
  .amdhsa_next_free_vgpr 256
  .amdhsa_next_free_sgpr 102
  .amdhsa_accum_offset 256
  .amdhsa_group_segment_fixed_size 0
  .amdhsa_kernarg_size 120
  .amdhsa_user_sgpr_count 2
  .amdhsa_user_sgpr_kernarg_segment_ptr 1
  .amdhsa_system_sgpr_workgroup_id_x 1
.end_amdhsa_kernel""")
sys.stdout.write(a.text())
sys.stderr.write(f"nops inserted: {a.nops}\n")
```

```python
import sys, struct
from asmlib import Asm, vr, sr

NAME = "parallel_sum__ssm_conv_s4__dense_activation_silu__prompt"
OPT = {x.split("=")[0][2:]: (x.split("=")[1] if "=" in x else "1") for x in sys.argv[1:] if x.startswith("--")}
STAMPS = "stamps" in OPT
SPIN = int(OPT.get("spin", 4000))
PLF = OPT.get("plf", "sc1").replace("_", " ")
FSF = OPT.get("fsf", "sc1").replace("_", " ")
M1, M2 = OPT.get("m1", "81"), OPT.get("m2", "81")
LOCAL = M1 == "81" and M2 == "81" and "nolocal" not in OPT
HSF = "" if LOCAL else "sc1"

HROW = 88 * 1024
H_SIZE = 64 * HROW
ST = 0x580000
FH = 0x590000
GS = 18432
GC = 9216
XNP = 0x600000
XS = 9216
FX = 0x5A0000
FG = 0x5B0000
Y2 = 0xA80000
WS_SIZE = 0x1000000
STAMP_OFF = 0xF80000
LOG2E = 0x3fb8aa3b
fl = lambda x: "0x%08x" % struct.unpack("<I", struct.pack("<f", x))[0]

a = Asm()
SHARED = {}
nstamp = [0]
EV = [0, True]
NST = [16]
def stamp(force=False):
    if "padev" in OPT and EV[1]:
        if EV[0] == int(OPT["padev"]): a("s_memrealtime s[86:87]")
        EV[0] += 1
    if STAMPS and nstamp[0] < NST[0] and (force or ("cs" not in OPT and "g2" not in OPT) or nstamp[0] in (0, 13) or ("g2" in OPT and nstamp[0] >= 7)):
        i = nstamp[0]; nstamp[0] += 1
        a(f"s_memtime s[{60+2*i}:{61+2*i}]")
def stamp_flush(wsrd, wave_s, vt, row=0):
    if not STAMPS: return
    n = nstamp[0]
    a("s_memrealtime s[98:99]")
    a("s_waitcnt lgkmcnt(0)")
    a(f"s_lshl_b32 s96, s2, 2\ns_add_u32 s96, s96, {wave_s}\ns_lshl_b32 s96, s96, 7\ns_add_u32 s96, s96, {STAMP_OFF+row*512}")
    a("s_mov_b64 exec, 1")
    for i in range(n):
        a(f"v_mov_b32 v{vt}, s{60+2*i}")
        a(f"buffer_store_dword v{vt}, off, {wsrd}, s96 offset:{4*i}")
    a(f"v_mov_b32 v{vt}, s97\nbuffer_store_dword v{vt}, off, {wsrd}, s96 offset:116")
    a(f"v_mov_b32 v{vt}, s100\nbuffer_store_dword v{vt}, off, {wsrd}, s96 offset:120")
    a(f"v_mov_b32 v{vt}, s98\nbuffer_store_dword v{vt}, off, {wsrd}, s96 offset:124")
    nstamp[0] = 0
def retry_mark(bit):
    return f"  s_add_u32 s97, s97, {1 << bit}\n" if STAMPS else ""

def srd(base, size):
    a(f"s_mov_b32 s{base+2}, {size}\ns_mov_b32 s{base+3}, 0x20000")

def cmul(d, x, y):
    a(f"v_mul_f32 v{d}, v{x+1}, v{y+1}")
    a(f"v_mul_f32 v{d+1}, v{x+1}, v{y}")
    a(f"v_fma_f32 v{d}, v{x}, v{y}, -v{d}")
    a(f"v_fmac_f32 v{d+1}, v{x}, v{y+1}")

def tag_slow(pfx, sTag, dbg, offs, vt, sCnt):
    a.raw(f"{pfx}_tagslow:")
    a.raw(retry_mark(0).rstrip("\n"))
    for o in offs:
        a.raw(f"  s_load_dwordx2 {sr(sTag,2)}, s[{dbg}:{dbg+1}], {o}\n  s_waitcnt lgkmcnt(0)\n  s_cmp_lg_u32 s{sTag}, 0\n  s_cbranch_scc1 {pfx}_tagok")
    a.raw(f"""  s_mov_b32 s{sCnt}, 0
{pfx}_tagloop:
  buffer_load_dwordx2 {vr(vt,2)}, off, s[{dbg}:{dbg+3}], 0 sc1
  s_add_u32 s{sCnt}, s{sCnt}, 1
  s_waitcnt vmcnt(0)
  v_readfirstlane_b32 s{sTag}, v{vt}
  v_readfirstlane_b32 s{sTag+1}, v{vt+1}
  s_nop 3
  s_cmp_lg_u32 s{sTag}, 0
  s_cbranch_scc1 {pfx}_tagok
  s_cmp_lt_u32 s{sCnt}, {SPIN}
  s_cbranch_scc1 {pfx}_tagloop
  s_branch {pfx}_tagok""")

def gemm_role():
    X, W1, WS, W2, OUT, DBG, HS = "s[4:7]", "s[8:11]", "s[12:15]", "s[16:19]", "s[20:23]", "s[24:27]", "s[28:31]"
    sP = 3
    sW, sRB, sM, sXB, sWB, sC, sTx, sT, sLA, sLB, sW2, sHS, sHL = range(32, 45)
    sT2, sT3, sL2e, sCnt, sO, sTag, sFl, sRT = 45, 46, 47, 48, 49, 50, 52, 53
    sB1, sMask, sCG, sXcc, sFar, sHS2, sIa = 54, 55, 56, 57, 58, 59, 101
    sY, sRet = sFl, sFar
    sMean, sNeg = 88, 92
    sXn, sSt, sCx = 89, 90, 96
    SROW, STG = 1056, 98304
    vL = 1
    vXo, vWo, vXr, vWr, vW2o, vW2r, vL16 = 2, 6, 9, 13, 17, 18, 22
    vT, vNon, vCs, vT2, vC2, vSa = 23, 24, 26, 29, 30, 31
    vSt, vNeg = 32, 36
    HALF, vSw, vSr, vIa, vT3 = 88, 92, 93, 94, 95
    ACC1, WF, CSA, XF, CSF = 40, 96, 144, 192, 168
    LX, LF, LG, vId = 224, 232, 248, 252
    ACC2, STASH, HB, HD = 32, 96, 192, 8
    LB0 = 49152
    FARAWAY = 0x40000000
    a(f"""
    s_load_dwordx2 s[4:5], s[0:1], 0
    s_load_dwordx2 s[8:9], s[0:1], 80
    s_load_dwordx2 s[24:25], s[0:1], 104
    s_load_dwordx2 s[12:13], s[0:1], 112
    s_load_dwordx2 s[16:17], s[0:1], 88
    s_load_dwordx2 s[20:21], s[0:1], 96
    v_and_b32 v{vL}, 63, v0
    s_lshr_b32 s{sRB}, s{sP}, 4
    s_and_b32 s{sM}, s{sP}, 15
    s_and_b32 s{sC}, s{sP}, 7
    s_mov_b32 s{sCx}, s{sC}
    v_lshlrev_b32 v{vL16}, 4, v{vL}
    s_lshl2_add_u32 s{sCnt}, s{sP}, s{sW}
    s_lshl_b32 s{sCnt}, s{sCnt}, 11
    s_setprio 2
    """)
    if STAMPS: a("s_memrealtime s[98:99]")
    srd(4, 2048 * 1024); srd(8, 512 * 2752)
    a(f"""
    v_lshrrev_b32 v{vT}, 3, v{vL}
    v_lshlrev_b32 v{vT}, 10, v{vT}
    v_lshrrev_b32 v{vT2}, 4, v{vL}
    v_xor_b32 v{vT2}, v{vT2}, v{vL}
    v_and_b32 v{vT2}, 7, v{vT2}
    v_lshl_add_u32 v{vXo}, v{vT2}, 4, v{vT}
    v_xor_b32 v{vXo+1}, 64, v{vXo}
    v_add_u32 v{vXo+2}, {2*7168}, v{vXo}
    v_add_u32 v{vXo+3}, {3*7168}, v{vXo+1}
    v_add_u32 v{vXo+1}, 7168, v{vXo+1}
    s_movk_i32 s{sT}, 5462
    s_movk_i32 s{sT2}, {2752-192}
    v_mul_u32_u24 v{vT}, s{sT}, v{vL}
    """)
    for j in range(3):
        if j: a(f"v_add_u32 v{vT}, {64*5462}, v{vT}")
        a(f"v_lshrrev_b32 v{vT2}, 16, v{vT}\nv_mad_u32_u24 v{vWo+j}, v{vT2}, s{sT2}, v{vL16}")
    a(f"""
    s_lshl2_add_u32 s{sXB}, s{sRB}, s{sW}
    s_lshl_b32 s{sXB}, s{sXB}, 15
    s_mul_i32 s{sWB}, s{sM}, 192
    s_mul_i32 s{sT}, s{sW}, {16*2752}
    s_add_u32 s{sWB}, s{sWB}, s{sT}
    s_lshr_b32 s{sO}, s{sXB}, 6
    s_cmp_eq_u32 s{sM}, 15             ; the 16th workgroup of a row block has no GEMM1 tile: its tile loads go out of range
    s_cselect_b32 s{sXB}, {FARAWAY}, s{sXB}
    s_cselect_b32 s{sWB}, {FARAWAY}, s{sWB}
    s_lshl_b32 s{sLA}, s{sW}, 12
    s_mul_i32 s{sLB}, s{sW}, 3072
    s_add_u32 s{sLB}, s{sLB}, {LB0}
    s_waitcnt lgkmcnt(0)
    """)
    if STAMPS: a("s_mov_b32 s100, s98\ns_mov_b32 s97, 0")
    stamp()

    def w_ops(c):
        ops = []
        for j in range(3):
            def f(j=j):
                if j == 0:
                    a(f"s_mul_i32 s{sT2}, s{sC}, {64*2752}\ns_add_u32 m0, s{sLB}, {(c&3)*12288}\ns_add_u32 s{sT2}, s{sT2}, s{sWB}")
                a(f"buffer_load_dwordx4 v{vWo+j}, {W1}, s{sT2} offen offset:{j*1024} lds", f"C{c}")
                if j == 0: a(f"s_add_u32 s{sC}, s{sC}, 1\ns_and_b32 s{sC}, s{sC}, 7")
            ops.append(f)
        return ops
    def x_ops(c):
        ops = []
        for pc in range(4):
            def f(pc=pc):
                if pc == 0:
                    a(f"s_lshl_b32 s{sTx}, s{sCx}, 7\ns_add_u32 m0, s{sLA}, {(c%3)*16384}\ns_add_u32 s{sTx}, s{sTx}, s{sXB}")
                a(f"buffer_load_dwordx4 v{vXo+pc}, {X}, s{sTx} offen offset:{pc*1024} lds", f"C{c}")
                if pc == 0: a(f"s_add_u32 s{sCx}, s{sCx}, 1\ns_and_b32 s{sCx}, s{sCx}, 7")
            ops.append(f)
        return ops
    DQ = []; QT = []
    for c in range(8):
        first = (w_ops(c), x_ops(c)) if c < 2 else (x_ops(c), w_ops(c))
        for grp_ in first:
            isx = len(grp_) == 4
            lim = -1 if c < (3 if isx else 4) else (4 * (c - 3) if isx else 4 * (c - 3) + 2)
            DQ += [(lim, f) for f in grp_]
            QT += [f'C{c}'] * len(grp_)
    def issue(n, s_=-1):
        for _ in range(n):
            if DQ and DQ[0][0] <= s_: DQ.pop(0)[1]()
    for r in range(2):
        a(f"buffer_load_dwordx4 {vr(LX+4*r,4)}, v{vL16}, {X}, s{sCnt} offen offset:{1024*r}", "xrow")
    a(f"""
    s_getreg_b32 s{sXcc}, hwreg(HW_REG_XCC_ID, 0, 4)
    s_mov_b32 s{sB1}, 0x3f803f80
    s_mov_b32 s{sMask}, 0xffff0000
    s_mul_i32 s{sT3}, s{sW}, {2*SROW}
    s_add_u32 s{sT3}, s{sT3}, {STG}
    v_add_u32 v{vSw}, s{sT3}, v{vL16}
    v_bfe_u32 v{vT3}, v{vL}, 2, 2
    v_and_b32 v{vT}, 1, v{vL}
    v_lshl_add_u32 v{vT}, v{vT}, 2, v{vT3}
    v_mul_u32_u24 v{vT}, {SROW}, v{vT}
    v_and_b32 v{vT2}, 2, v{vL}
    v_lshl_add_u32 v{vT}, v{vT2}, 2, v{vT}
    v_lshrrev_b32 v{vT2}, 4, v{vL}
    v_lshl_add_u32 v{vT}, v{vT2}, 4, v{vT}
    s_lshl_b32 s{sT3}, s{sW}, 8
    s_add_u32 s{sT3}, s{sT3}, {STG}
    v_add_u32 v{vSr}, s{sT3}, v{vT}
    """)
    issue(7)
    a(f"""
    v_and_b32 v{vSa}, 31, v{vL}
    v_lshrrev_b32 v{vT2}, 5, v{vL}
    v_bfe_u32 v{vC2}, v{vL}, 1, 3
    v_xor_b32 v{vC2}, v{vC2}, v{vT2}
    v_lshl_add_u32 v{vC2}, v{vC2}, 4, s{sLA}
    v_lshl_add_u32 v{vC2}, v{vSa}, 7, v{vC2}
    v_bfe_u32 v{vT3}, v{vL}, 2, 2
    v_lshl_add_u32 v{vT}, v{vT2}, 3, v{vT3}
    v_mul_u32_u24 v{vT}, 192, v{vT}
    v_bfe_u32 v{vT2}, v{vL}, 4, 1
    v_lshl_add_u32 v{vT}, v{vT2}, 5, v{vT}
    v_and_b32 v{vT2}, 3, v{vL}
    v_lshl_add_u32 v{vT}, v{vT2}, 3, v{vT}
    v_add_u32 v{vT}, {LB0}, v{vT}
    """)
    for i in range(4):
        a(f"""
        s_add_u32 s{sT3}, s{sW}, {i}
        s_and_b32 s{sT3}, s{sT3}, 3
        s_lshl_b32 s{sCnt}, s{sT3}, 5
        s_mulk_i32 s{sT3}, 3072
        v_xor_b32 v{vXr+i}, s{sCnt}, v{vC2}
        v_add_u32 v{vWr+i}, s{sT3}, v{vT}
        """)
    issue(3)
    a(f"""
    v_lshrrev_b32 v{vT2}, 4, v{vL}
    """)
    srd(24, 256)
    srd(12, WS_SIZE)
    a(f"""
    v_lshrrev_b32 v{vT}, 2, v{vL}
    v_xor_b32 v{vT}, v{vT}, v{vT2}
    v_and_b32 v{vT}, 1, v{vT}
    v_add_u32 v{vT}, -1, v{vT}
    """)
    for k in range(4): a(f"v_and_b32 v{HALF+k}, s{sB1}, v{vT}")
    FILL = [u.strip() for u in f"""
    s_mov_b32 s18, {1376*1024}
    s_mov_b32 s19, 0x20000
    s_mov_b32 s22, {2048*1024}
    s_mov_b32 s23, 0x20000
    s_mov_b32 s28, s12
    s_mov_b32 s29, s13
    s_mov_b32 s30, {H_SIZE}
    s_mov_b32 s31, 0x20000
    s_mov_b32 s{sL2e}, {LOG2E:#x}
    v_lshlrev_b32 v{vSa}, 4, v{vSa}
    s_add_u32 s{sO}, s{sO}, {ST}
    v_and_b32 v{vIa}, 15, v{vL}
    v_lshlrev_b32 v{vIa}, 7, v{vIa}
    s_lshl_b32 s{sIa}, s{sRB}, 11
    s_add_u32 s{sIa}, s{sIa}, {ST}
    v_lshrrev_b32 v{vT}, 3, v{vL}
    v_lshlrev_b32 v{vT}, 10, v{vT}
    v_bfe_u32 v{vT2}, v{vL}, 4, 1
    v_lshlrev_b32 v{vT3}, 2, v{vT2}
    v_xor_b32 v{vT3}, v{vT3}, v{vL}
    v_and_b32 v{vT3}, 7, v{vT3}
    v_lshl_add_u32 v{vW2o}, v{vT3}, 4, v{vT}
    v_lshrrev_b32 v{vT}, 5, v{vL}
    v_bfe_u32 v{vT3}, v{vL}, 2, 2
    v_lshl_add_u32 v{vT}, v{vT}, 2, v{vT3}
    v_lshlrev_b32 v{vT}, 7, v{vT}
    v_lshl_add_u32 v{vT}, v{vT2}, 5, v{vT}
    v_bfe_u32 v{vT2}, v{vL}, 3, 1
    v_lshl_add_u32 v{vT}, v{vT2}, 6, v{vT}
    v_and_b32 v{vT2}, 3, v{vL}
    v_lshl_add_u32 v{vT}, v{vT2}, 3, v{vT}
    s_lshl_b32 s{sT3}, s{sW}, 5
    s_and_b32 s{sT3}, s{sT3}, 64
    v_xor_b32 v{vT}, s{sT3}, v{vT}
    v_xor_b32 v{vT2}, 64, v{vT}
    v_add_u32 v{vW2r}, s{sLA}, v{vT}
    v_add_u32 v{vW2r+1}, s{sLA}, v{vT2}
    v_add_u32 v{vW2r+2}, s{sLB}, v{vT}
    v_add_u32 v{vW2r+3}, s{sLB}, v{vT2}
    s_and_b32 s{sT3}, s{sP}, 1
    s_lshl1_add_u32 s{sRT}, s{sRB}, s{sT3}
    s_lshr_b32 s{sCG}, s{sM}, 1
    s_mul_i32 s{sW2}, s{sW}, {352*1024}
    s_lshl_b32 s{sT}, s{sCG}, 7
    s_add_u32 s{sW2}, s{sW2}, s{sT}
    s_mul_i32 s{sHL}, s{sRT}, {2*HROW}
    s_mul_i32 s{sT}, s{sW}, {22*1024}
    s_add_u32 s{sHL}, s{sHL}, s{sT}
    s_lshl_b32 s{sT3}, s{sW}, 8
    s_add_u32 s{sT3}, s{sT3}, {LB0}
    v_lshl_add_u32 v{vT2}, v{vL}, 2, s{sT3}
    v_lshl_add_u32 v{vT}, v{vL}, 2, s{sLB}
    s_lshl2_add_u32 s{sT3}, s{sRB}, s{sW}
    s_mul_i32 s{sT3}, s{sT3}, {HROW}
    s_mul_i32 s{sHS}, s{sM}, 6144
    s_add_u32 s{sHS}, s{sHS}, s{sT3}
    s_add_u32 s{sHS2}, s{sHS}, 4096
    s_cmp_ge_u32 s{sM}, 14 | s_cselect_b32 s{sHS2}, {H_SIZE}, s{sHS2}
    s_lshr_b32 s{sT3}, s{sW}, 1
    s_lshl1_add_u32 s{sT3}, s{sRB}, s{sT3}
    s_lshl4_add_u32 s{sT3}, s{sT3}, s{sM}
    s_and_b32 s{sFl}, s{sW}, 1
    s_lshl1_add_u32 s{sFl}, s{sT3}, s{sFl}
    s_lshl_b32 s{sFl}, s{sFl}, 3
    s_add_u32 s{sFl}, s{sFl}, {FH}
    s_cmp_eq_u32 s{sM}, 15 | s_cselect_b32 s{sHS}, {H_SIZE}, s{sHS} | s_cselect_b32 s{sFl}, {WS_SIZE}, s{sFl}
    """.strip().split("\n")]
    def fill_(n):
        for _ in range(n):
            if FILL: a(FILL.pop(0).replace(" | ", "\n"))

    fill_(int(OPT.get("nfill", 99)))
    issue(int(OPT.get("n0", 14)) - 10)
    a.wait(vm="xrow")
    stamp()

    vC = CSA; S = [252, 253]; vN = 254; sR = sMean
    def dpp_reduce(fill):
        for ctl in ("row_shr:1 row_mask:0xf bank_mask:0xf bound_ctrl:0", "row_shr:2 row_mask:0xf bank_mask:0xf bound_ctrl:0",
                    "row_shr:4 row_mask:0xf bank_mask:0xf bound_ctrl:0", "row_shr:8 row_mask:0xf bank_mask:0xf bound_ctrl:0",
                    "row_bcast:15 row_mask:0xa bank_mask:0xf", "row_bcast:31 row_mask:0xc bank_mask:0xf"):
            for r in range(2):
                a(f"v_add_f32_dpp v{S[r]}, v{S[r]}, v{S[r]} {ctl}")
            for _ in range(3):
                if fill: a(fill.pop(0))
        while fill: a(fill.pop(0))
    for k in range(4):
        for r in range(2):
            a(f"v_dot2_f32_bf16 v{S[r]}, v{LX+4*r+k}, s{sB1}, {'0' if k == 0 else 'v%d' % S[r]}")
    unpack = lambda: [t for r in range(2) for k in range(4) for t in
                      (f"v_lshlrev_b32 v{LF+8*r+2*k}, 16, v{LX+4*r+k}", f"v_and_b32 v{LF+8*r+2*k+1}, s{sMask}, v{LX+4*r+k}")]
    fill = unpack()
    for _ in range(3): a(fill.pop(0))
    dpp_reduce(fill)
    for r in range(2): a(f"v_mul_f32 v{S[r]}, 0x3b000000, v{S[r]}")
    for r in range(2): a(f"v_cvt_pk_bf16_f32 v{vN+r}, -v{S[r]}, -v{S[r]}")
    for r in range(2): a(f"v_readlane_b32 s{sMean+2*r}, v{S[r]}, 63")
    for r in range(2): a(f"v_readlane_b32 s{sNeg+2*r}, v{vN+r}, 63")
    for k in range(4):
        for r in range(2):
            a(f"v_pk_add_f32 {vr(vC+8*r+2*k,2)}, {vr(LF+8*r+2*k,2)}, {sr(sMean+2*r,2)} op_sel_hi:[1,0] neg_lo:[0,1] neg_hi:[0,1]")
    for r in range(2): a(f"s_and_b32 s{sNeg+2*r}, s{sNeg+2*r}, s{sMask}")
    for r in range(2): a(f"s_or_b32 s{sNeg+2*r+1}, s{sNeg+2*r}, s{sXcc}")
    for r in range(2):
        a(f"v_pk_mul_f32 {vr(vC+8*r,2)}, {vr(vC+8*r,2)}, {vr(vC+8*r,2)}")
    for k in range(1, 4):
        for r in range(2):
            a(f"v_pk_fma_f32 {vr(vC+8*r,2)}, {vr(vC+8*r+2*k,2)}, {vr(vC+8*r+2*k,2)}, {vr(vC+8*r,2)}")
    for r in range(2): a(f"v_add_f32 v{S[r]}, v{vC+8*r}, v{vC+8*r+1}")
    fill = [f"v_pk_add_f32 {vr(LF+8*r+2*k,2)}, {vr(LF+8*r+2*k,2)}, {sr(sNeg+2*r,2)} op_sel_hi:[1,0]" for k in range(4) for r in range(2)]
    fill += [f"v_cvt_pk_bf16_f32 v{LX+4*r+k}, v{LF+8*r+2*k}, v{LF+8*r+2*k+1}" for k in range(4) for r in range(2)]
    dpp_reduce(fill)
    issue(int(OPT.get('n1', 0)))
    def rnd():
        for r in range(2): a(f"v_cvt_pk_bf16_f32 v{S[r]}, v{S[r]}, v{S[r]}")
        for r in range(2): a(f"v_lshlrev_b32 v{S[r]}, 16, v{S[r]}")
    for r in range(2): a(f"v_mul_f32 v{S[r]}, 0x3b000000, v{S[r]}")
    rnd()
    for r in range(2): a(f"v_add_f32 v{S[r]}, 0x3727c5ac, v{S[r]}")
    rnd()
    for r in range(2): a(f"v_sqrt_f32 v{S[r]}, v{S[r]}")
    rnd()
    for r in range(2): a(f"v_rcp_f32 v{S[r]}, v{S[r]}")
    for t in unpack(): a(t)
    for r in range(2): a(f"v_readlane_b32 s{sR+2*r}, v{S[r]}, 63")
    a(f"s_load_dwordx2 {sr(sTag,2)}, s[24:25], 0")
    for r in range(2):
        for k in range(4):
            a(f"v_pk_mul_f32 {vr(LF+8*r+2*k,2)}, {vr(LF+8*r+2*k,2)}, {sr(sR+2*r,2)} op_sel_hi:[1,0]")
        for k in range(4):
            a(f"v_cvt_pk_bf16_f32 v{LX+4*r+k}, v{LF+8*r+2*k}, v{LF+8*r+2*k+1}")
        a(f"ds_write_b128 v{vSw}, {vr(LX+4*r,4)} offset:{SROW*r}", "stg")
    a(f"""
    v_mov_b32 v{LG}, s{sNeg+1}
    v_mov_b32 v{LG+1}, s{sR}
    v_writelane_b32 v{LG}, s{sNeg+3}, 1
    v_writelane_b32 v{LG+1}, s{sR+2}, 1
    s_mul_i32 s{sXn}, s{sP}, {GS}
    s_lshl_b32 s{sT3}, s{sW}, 12
    s_add_u32 s{sXn}, s{sXn}, s{sT3}
    s_add_u32 s{sXn}, s{sXn}, {XNP}
    s_lshl2_add_u32 s{sSt}, s{sP}, s{sW}
    s_lshl_b32 s{sSt}, s{sSt}, 5
    s_add_u32 s{sSt}, s{sSt}, {ST}
    """)
    issue(int(OPT.get('n2', 7)))
    a.wait(lg=0)
    stamp()

    GROUPS = [("A", 2, 4), ("A", 0, 4), ("B", 1, 3), ("A", 1, 4), ("B", 0, 3), ("B", 2, 3), ("B", 3, 3)]
    LOC = []
    for rg, sl, n in GROUPS:
        for k in range(n):
            LOC.append((rg, sl * (16384 if rg == "A" else 12288) + k * 1024))
    PL2 = list(range(4, 24))
    ploc = lambda p: p if p < 24 else PL2[p - 24]
    SHARED['LOC'] = LOC
    pn = [0]
    def p_next():
        p = pn[0]; pn[0] += 1
        rg, off = LOC[ploc(p)]
        a(f"s_add_u32 m0, s{sLA if rg == 'A' else sLB}, {off}")
        a(f"s_add_u32 s{sT3}, s{sW2}, {8192*p}")
        a(f"buffer_load_dwordx4 v{vW2o}, {W2}, s{sT3} offen lds", f"P{p}")

    wb = lambda s_: WF + 12 * (s_ % 3)
    def tr_pair(s_, ft):
        c, i = divmod(s_, 4)
        for e in range(2):
            a(f"ds_read_b64_tr_b16 {vr(wb(s_)+4*ft+2*e,2)}, v{vWr+i} offset:{(c&3)*12288+e*768+ft*64}", f"wf{s_}")
    def rd_x(c, i):
        a(f"ds_read_b128 {vr(XF+16*(c&1)+4*i,4)}, v{vXr+i} offset:{(c%3)*16384}", f"xf{c}_{i}")
    def open_chunk(c):
        if "cs" in OPT and c in (3, 5): stamp(True)
        a.wait(vm=f"C{c}")
        if c == 0 or ("cs" in OPT and c in (3, 5)): stamp(True)
        a("s_barrier")
        if "cs" in OPT and c: stamp(True)

    open_chunk(0)
    for i in range(4): rd_x(0, i)
    for ft in range(3): tr_pair(0, ft)
    for k in range(4):
        a(f"ds_read_b64_tr_b16 {vr(LF+4*k,2)}, v{vSr} offset:{64*k}", "tr")
    for ft in range(3): tr_pair(1, ft)
    a(f"s_cmp_eq_u32 s{sTag}, 0\ns_cbranch_scc1 G_tagslow\nG_tagok:")
    for k in range(5): a(f"v_mov_b32 v{LF+4*k+2}, s{sTag}\nv_mov_b32 v{LF+4*k+3}, s{sTag+1}")
    a(f"s_mov_b64 exec, 3\nbuffer_store_dwordx4 {vr(LG,4)}, v{vL16}, {WS}, s{sSt} offen sc1\ns_mov_b64 exec, -1")
    XSL = [(0, 1), (0, 2), (1, 0), (1, 2)]
    PS = 99
    def bg_op(c, i, ft):
        s_ = 4 * c + i
        if DQ: issue(1, s_)
        elif s_ >= PS and ft != 1:
            lim = 0 if s_ < 20 else 4 if s_ < 24 else 8 if s_ < 26 else 11 if s_ < 28 else 15 if s_ < 30 else 18 if s_ < 31 else 24
            if pn[0] < lim: p_next()
    def split(dst, src, tmp):
        return [f"v_cvt_pk_bf16_f32 v{tmp}, v{src}, v{src}", f"v_lshlrev_b32 v{tmp}, 16, v{tmp}",
                f"v_sub_f32 v{tmp}, v{src}, v{tmp}", f"v_cvt_pk_bf16_f32 v{dst}, v{src}, v{tmp}"]
    for c in range(8):
        a.comment(f"---- GEMM1 chunk {c}")
        for i in range(4):
            s_ = 4 * c + i
            if i == 2 and c < 7:
                issue(int(OPT.get('flush', 0)), s_ - 1)
                assert not any(t == f'C{c+1}' for t in QT[len(QT)-len(DQ):])
                open_chunk(c + 1)
            a.wait(lg=(f"xf{c}_3", f"wf{s_}"))
            if s_ == 28:
                assert "csw" not in a.lg
                a("s_barrier")
            if s_ == 31: a("s_barrier")
            for ft in range(3):
                cs = i == 0 or c >= 7
                if cs and s_ == 31:
                    a(f"v_mfma_f32_16x16x32_bf16 {vr(CSA+12+4*ft,4)}, {vr(HALF,4)}, {vr(wb(s_)+4*ft,4)}, {vr(CSA+12+4*ft,4)}")
            for ft in range(3):
                cc = "0" if s_ == 0 else vr(ACC1+16*ft, 16)
                a(f"v_mfma_f32_32x32x16_bf16 {vr(ACC1+16*ft,16)}, {vr(wb(s_)+4*ft,4)}, {vr(XF+16*(c&1)+4*i,4)}, {cc}")
                if i == 2 and c < 7:
                    if ft == 0: rd_x(c + 1, 0)
                    rd_x(c + 1, ft + 1)
                if s_ + 2 < 32: tr_pair(s_ + 2, ft)
                if (s_, ft) in XSL:
                    a.wait(lg="tr")
                    k = XSL.index((s_, ft))
                    a(f"buffer_store_dwordx4 {vr(LF+4*k,4)}, v{vL16}, {WS}, s{sXn} offen offset:{1024*k} sc1", "xn")
                else: bg_op(c, i, ft)
                if (i == 0 or c >= 7) and s_ != 31:
                    d = CSA + 4 * ft + (12 if c >= 7 else 0)
                    a(f"v_mfma_f32_16x16x32_bf16 {vr(d,4)}, {vr(HALF,4)}, {vr(wb(s_)+4*ft,4)}, {'0' if s_ in (0, 28) else vr(d,4)}")
                if s_ == 25:
                    for t in split(vCs + ft, CSA + 4 * ft, CSA + 4 * ft + 1): a(t)
                if s_ == 25:
                    for k in range(2):
                        a(f"ds_write2st64_b32 v{vT2}, v{vCs+ft}, v{vCs+ft} offset0:{24*k+4*ft} offset1:{24*k+12+4*ft}", "csw")
                if s_ == 23:
                    for k in range(4): a(f"v_mov_b32 v{CSF+4*ft+k}, 0")
                if s_ == 28:
                    a("s_mov_b32 exec_hi, 0")
                    for k in range(2):
                        a(f"ds_read2st64_b32 {vr(CSF+4*ft+2*k,2)}, v{vT} offset0:{4*ft+2*k} offset1:{4*ft+2*k+1}", "csf")
                    a("s_mov_b32 exec_hi, -1")
                if s_ == 29 and ft == 2:
                    a.wait(vm="st", lg="csf")
                    a(f"""
                    s_mov_b32 s{sCnt}, 0
                    G_stchk:
                    v_cmp_ne_u64 vcc, {sr(sTag,2)}, {vr(vSt+2,2)}
                    v_cmp_ne_u64 s[88:89], {sr(sTag,2)}, {vr(vId+2,2)}
                    v_and_b32 v{vId+1}, 0xffff, v{vId}
                    s_or_b64 vcc, vcc, s[88:89]
                    s_cbranch_vccnz G_stslow
                    G_stok:
                    """)
                if s_ == 30 and ft == 0:
                    a(f"""
                    v_cmp_ne_u32 s[90:91], s{sXcc}, v{vId+1}
                    v_lshrrev_b32 v{vNeg+1}, 16, v{vSt}
                    v_bfi_b32 v{vNeg}, s{sMask}, v{vSt}, v{vNeg+1}
                    v_bfi_b32 v{vNeg+2}, s{sMask}, v{vSt}, v{vNeg+1}
                    """)
                if s_ == 30 and ft == 1:
                    a(f"""
                    v_bfi_b32 v{vNeg+3}, s{sMask}, v{vSt}, v{vNeg+1}
                    v_bfi_b32 v{vNeg+1}, s{sMask}, v{vSt}, v{vNeg+1}
                    v_mul_f32 v{vC2}, s{sL2e}, v{vSt+1}
                    s_or_b32 s{sFar}, s90, {1 if 'forcefar' in OPT else 's91'}
                    v_mov_b32 v{vNon}, s{sTag}
                    v_mov_b32 v{vNon+1}, s{sTag+1}
                    """)
                if s_ == 31:
                    sp = split(CSF + 4 * ft, CSA + 12 + 4 * ft, CSA + 13 + 4 * ft)
                    for t in sp[:3]: a(t)
                    a(f"s_mov_b32 exec_lo, 0\n{sp[3]}\ns_mov_b32 exec_lo, -1")
            if s_ == 23:
                assert not FILL
                a(f"buffer_load_dwordx4 {vr(vSt,4)}, v{vSa}, {WS}, s{sO} offen sc1", "st")
                a(f"buffer_load_dwordx4 {vr(vId,4)}, v{vIa}, {WS}, s{sIa} offen sc1", "st")
    assert not DQ
    stamp()
    for ft in range(3):
        a(f"v_mfma_f32_32x32x16_bf16 {vr(ACC1+16*ft,16)}, {vr(CSF+4*ft,4)}, {vr(vNeg,4)}, {vr(ACC1+16*ft,16)}")
    E1, OB = 208, 224
    def tr_w2(step, tag):
        base = STASH + 8 * (step % 12)
        for j in range(2):
            for e in range(2):
                rg, off = LOC[ploc(2 * step + e)]
                a(f"ds_read_b64_tr_b16 {vr(base+4*j+2*e,2)}, v{vW2r+(0 if rg=='A' else 2)+j} offset:{off}", tag)
    pn[0] = 24
    B9, B10 = int(OPT.get("b9", 1)), int(OPT.get("b10", 6))
    for ft in range(3):
        for j in range(2):
            A0 = ACC1 + 16 * ft + 8 * j
            T0 = E1 + 8 * j
            for k in range(8): a(f"v_mul_f32 v{A0+k}, v{vC2}, v{A0+k}")
            for k in range(8): a(f"v_exp_f32_e64 v{T0+k}, -v{A0+k}")
            if pn[0] < 24: p_next()
            for k in range(8): a(f"v_fma_f32 v{T0+k}, v{T0+k}, s{sL2e}, s{sL2e}")
            for k in range(8): a(f"v_rcp_f32 v{T0+k}, v{T0+k}")
            if pn[0] < 24: p_next()
            for k in range(8): a(f"v_mul_f32 v{A0+k}, v{A0+k}, v{T0+k}")
            for k in range(0, 8, 2): a(f"v_cvt_pk_bf16_f32 v{OB+8*ft+4*j+k//2}, v{A0+k}, v{A0+k+1}")
            a(f"buffer_store_dwordx4 {vr(OB+8*ft+4*j,4)}, v{vL16}, {HS}, s{sHS if ft < 2 else sHS2} offen offset:{1024*((2*ft+j)&3)}", "hs")
    stamp()
    a("s_barrier")
    for k in range(12): tr_w2(k, "S")
    vH, vF, vXg, vO, vY, vXl, vR, vP, vYl = 2, 4, 5, 6, 7, 8, 13, 10, 9
    a(f"""
    s_lshl_b32 s{sT}, s{sW}, 3
    s_lshr_b32 s{sT2}, 0x160e0600, s{sT}
    s_and_b32 s{sT2}, s{sT2}, 0xff
    s_lshr_b32 s{sT}, 0x1d150f07, s{sT}
    s_and_b32 s{sT}, s{sT}, 0xff
    v_max_u32 v{vF}, s{sT2}, v{vL}
    v_min_u32 v{vF}, s{sT}, v{vF}
    v_lshlrev_b32 v{vF}, 3, v{vF}
    s_and_b32 s{sT}, s{sW}, 1
    s_mul_i32 s{sT2}, s{sT}, {HROW}
    v_add_u32 v{vH}, s{sT2}, v{vL16}
    s_sub_u32 s{sT2}, {HROW}, s{sT2}
    v_add_u32 v{vH+1}, s{sT2}, v{vL16}
    s_mov_b32 s{sCnt}, 0
    """)
    a.wait(lg=0)
    NPD = int(OPT.get("npd", 4))
    for _ in range(NPD): p_next()
    a(f"s_cmp_lg_u32 s{sFar}, 0\ns_cbranch_scc1 G_far")
    a.wait(vm="hs")
    stamp()
    a(f"s_mov_b64 exec, 1\nbuffer_store_dwordx2 {vr(vNon,2)}, off, {WS}, s{sFl}\nG_pub:\ns_mov_b64 exec, -1")
    a(f"s_lshl_b32 s{sRet}, s{sRT}, 8\ns_add_u32 s{sRet}, s{sRet}, {FH}")
    PI = int(OPT.get("pi", 38))
    def p_upto(n):
        while pn[0] < n:
            if pn[0] == PI: a(f"buffer_load_dwordx2 {vr(vP,2)}, v{vF}, {WS}, s{sRet} offen sc1", "poll")
            p_next()
    p_upto(44)
    if PI >= 44: a(f"buffer_load_dwordx2 {vr(vP,2)}, v{vF}, {WS}, s{sRet} offen sc1", "poll")
    stamp()
    a.wait(vm="poll")
    a(f"G_hchk:\nv_cmp_ne_u64 vcc, {sr(sTag,2)}, {vr(vP,2)}\ns_add_u32 s{sCnt}, s{sCnt}, 1\ns_cbranch_vccnz G_hslow\nG_hok:")
    stamp()
    if STAMPS: a(f"s_lshl_b32 s{sCnt}, s{sCnt}, 16\ns_add_u32 s97, s97, s{sCnt}")
    HS_ = [(i, 1) for i in range(12)] + [(i, j) for i in range(12, 22) for j in (1, 0)] + [(i, 0) for i in range(12)]
    HR, WR = int(OPT.get("hr", 10)), 232
    grp = [None]
    def h_load(n):
        i, j = HS_[n]
        if i // 4 != grp[0]:
            grp[0] = i // 4; a(f"s_add_u32 s{sTx}, s{sHL}, {4096*(i//4)}")
        a(f"buffer_load_dwordx4 {vr(HB+4*(n%HR),4)}, v{vH+j}, {HS}, s{sTx} offen offset:{1024*(i%4)} {OPT.get('hlf', 'sc1').replace('_', ' ')}", f"h{n}")
    for n in range(HR - 1): h_load(n)
    a(f"""
    s_lshl1_add_u32 s{sT2}, s{sRT}, s{sT}
    s_lshr_b32 s{sT}, s{sW}, 1
    s_lshl1_add_u32 s{sCnt}, s{sCG}, s{sT}
    s_lshl_b32 s{sO}, s{sT2}, 15
    s_lshl_b32 s{sT}, s{sCnt}, 6
    s_add_u32 s{sO}, s{sO}, s{sT}
    s_mul_i32 s{sY}, s{sCnt}, {32*GC}
    s_lshl_b32 s{sT}, s{sT2}, 7
    s_add_u32 s{sY}, s{sY}, s{sT}
    s_add_u32 s{sY}, s{sY}, {Y2}
    v_and_b32 v{vT}, 31, v{vL}
    v_lshrrev_b32 v{vT2}, 5, v{vL}
    v_lshlrev_b32 v{vO}, 10, v{vT}
    v_lshl_add_u32 v{vO}, v{vT2}, 4, v{vO}
    v_lshl_add_u32 v{vXl}, v{vT}, 6, s{sLA}
    v_lshl_add_u32 v{vXl}, v{vT2}, 4, v{vXl}
    v_lshlrev_b32 v{vYl}, 3, v{vT2}
    v_sub_u32 v{vF}, v{vT}, v{vYl}
    v_bfe_u32 v{vT}, v{vL}, 2, 2
    v_add_u32 v{vYl}, v{vYl}, v{vT}
    v_lshl_add_u32 v{vYl}, v{vYl}, 7, s{sLA}
    v_bfe_u32 v{vT}, v{vL}, 4, 1
    v_lshl_add_u32 v{vYl}, v{vT}, 6, v{vYl}
    v_and_b32 v{vT}, 3, v{vL}
    v_lshl_add_u32 v{vYl}, v{vT}, 4, v{vYl}
    v_lshrrev_b32 v{vY}, 3, v{vL}
    v_mul_u32_u24 v{vY}, {GC}, v{vY}
    v_and_b32 v{vT}, 7, v{vL}
    v_lshl_add_u32 v{vY}, v{vT}, 4, v{vY}
    v_add_u32 v{vP}, s{sLA}, v{vL16}
    v_lshrrev_b32 v{vXg}, 2, v{vL}
    v_lshlrev_b32 v{vXg}, 10, v{vXg}
    v_and_b32 v{vT}, 3, v{vL}
    v_lshl_add_u32 v{vXg}, v{vT}, 4, v{vXg}
    v_add_u32 v{vR}, s{sLB}, v{vL16}
    """)
    for k in range(1, 4):
        a(f"s_xor_b32 s{sT}, s{sW}, {k}\ns_mulk_i32 s{sT}, 3072\ns_add_u32 s{sT}, s{sT}, {LB0}\nv_add_u32 v{vR+k}, s{sT}, v{vL16}")
    YO = 32768
    YT, YF, XFr, IDN = 232, 240, 248, 24
    XR = 24
    if "touch" in OPT:
        a(f"v_and_b32 v{vT}, 31, v{vL}\nv_mul_u32_u24 v{vT}, {GC}, v{vT}")
        a(f"buffer_load_dword v12, v{vT}, {WS}, s{sY} offen sc1", "yt")
    a(f"v_and_b32 v{vT}, 1, v{vF}\nv_lshlrev_b32 v{vT}, 4, v{vT}\nv_lshlrev_b32 v{vT}, v{vT}, v{vW2o}" if False else
      f"v_and_b32 v{vT}, 1, v{vF}\nv_lshlrev_b32 v{vT}, 4, v{vT}\nv_mov_b32 v11, 0x3f80\nv_lshlrev_b32 v11, v{vT}, v11\nv_ashrrev_i32 v{vF}, 1, v{vF}")
    for k in range(8):
        a(f"v_cmp_eq_u32 s[{88+2*(k&1)}:{89+2*(k&1)}], {8*(k>>2)+(k&3)}, v{vF}")
        if k: a(f"v_cndmask_b32 v{IDN+k-1}, 0, v11, s[{88+2*((k-1)&1)}:{89+2*((k-1)&1)}]")
    a(f"v_cndmask_b32 v{IDN+7}, 0, v11, s[90:91]")
    def y_loads(emit):
        emit(f"s_add_u32 m0, s{sLA}, {YO}")
        for k in range(4):
            emit(f"s_add_u32 s{sT2}, s{sY}, {8*k*GC-1024*k}")
            emit(f"buffer_load_dwordx4 v{vY}, {WS}, s{sT2} offen offset:{1024*k} sc1 lds")
    def y_reads(emit):
        for k in range(4): emit(f"ds_read_b64 {vr(YT+2*k,2)}, v{vP} offset:{YO+1024*k+8}")
        for k in range(4): emit(f"ds_read_b64_tr_b16 {vr(YF+2*k,2)}, v{vYl} offset:{YO+2048*(k>>1)+512*(k&1)}")
    wreg = lambda i: STASH + 8 * i if i < 12 else WR + 8 * (i % 3)
    def w_reads(i, half):
        j = half
        for e in range(2):
            rg, off = LOC[ploc(2 * i + e)]
            a(f"ds_read_b64_tr_b16 {vr(wreg(i)+4*j+2*e,2)}, v{vW2r+(0 if rg=='A' else 2)+j} offset:{off}", f"r{i}")
    started = set()
    def mm(n, jd):
        i, j = HS_[n]; k = 2 * jd + j
        ac = ACC2 + 16 * k
        a(f"v_mfma_f32_32x32x16_bf16 {vr(ac,16)}, {vr(wreg(i)+4*jd,4)}, {vr(HB+4*(n%HR),4)}, {vr(ac,16) if k in started else '0'}")
        started.add(k)
    roff = lambda k, q: (((k - 1) * 4 + q) // 3) * 12288 + (((k - 1) * 4 + q) % 3) * 1024
    def r_write(k, q): a(f"ds_write_b128 v{vR}, {vr(ACC2+16*k+4*q,4)} offset:{roff(k,q)}", "rw")
    def r_read(k, q): a(f"ds_read_b128 {vr(ACC2+16*k+4*q,4)}, v{vR+k} offset:{roff(k,q)}", f"rr{k}")
    YS = int(OPT.get("ys", 34))
    NT = 4
    side = []
    def run_side(c):
        for _ in range(c):
            if side:
                t = side.pop(0)
                if callable(t): t()
                else: a(t)
    for n in range(44 - NT):
        i, j = HS_[n]
        a.wait(vm=f"h{n}", lg=(f"r{i}" if i >= 12 else 0 if n == 0 else None))
        if n == 0 or ("g2" in OPT and n in (12, 24, 32, 36)): stamp(True)
        for jd in range(2):
            mm(n, jd)
            if jd == 0 and n + HR - 1 < 44: h_load(n + HR - 1)
            if n in (8, 10): w_reads(12 + (n - 8) // 2, jd)
            if 12 <= n < 28 and j == 1: w_reads(i + 2, jd)
            if jd == 1 and n == YS:
                y_loads(lambda t: a(t, "yr"))
            if jd == 1 and n == 30:
                a(f"s_mov_b32 m0, s{sLA}\ns_add_u32 s{sT2}, s{sO}, {16384-1024}")
                a(f"buffer_load_dwordx4 v{vXg}, {X}, s{sO} offen lds", "xr")
                a(f"buffer_load_dwordx4 v{vXg}, {X}, s{sT2} offen offset:1024 lds", "xr")
            g = 2 * (n - 32) + jd
            if 0 <= g < 12 and g % 3 != 2:
                w = g - g // 3; r_write(1 if w < 4 else 3, w & 3)
            if g == 12:
                a.wait(vm="xr")
                for q in range(2): a(f"ds_read_b128 {vr(XFr+4*q,4)}, v{vXl} offset:{32*q}", "xl")
            if g == 14:
                a.wait(lg="rw")
                a("s_barrier")
                for q in range(4): r_read(1, q)
            if g == 15:
                for q in range(4): r_read(3, q)
    if "ts" in OPT: stamp()
    side = [lambda: a.wait(lg="rr3")] + [f"v_add_f32 v{ACC2+16+q}, v{ACC2+16+q}, v{ACC2+48+q}" for q in range(16)]
    for q, n in enumerate(range(44 - NT, 44)):
        a.wait(vm=f"h{n}")
        mm(n, 1)
        if q >= 2: run_side(6)
    tail = [lambda n=n: mm(n, 0) for n in range(44 - NT, 44)]
    for src in (XFr, YF):
        for q in range(2):
            tail.append(lambda src=src, q=q: a(f"v_mfma_f32_32x32x16_bf16 {vr(ACC2,16)}, {vr(IDN+4*q,4)}, {vr(src+4*q,4)}, {vr(ACC2,16)}"))
    for q, t in enumerate(tail):
        t()
        if q == 0: run_side(99)
        if 1 <= q <= 4: r_write(2, q - 1)
        if q == 4:
            a.wait(vm="yr")
            y_reads(lambda t: a(t, "yl"))
        if q == 5:
            a.wait(lg="rw")
            a("s_barrier")
            for q2 in range(4): r_read(2, q2)
            a.wait(lg="yl")
            a(f"s_mov_b32 s{sCnt}, 0\nG_ychk:")
            a(f"v_cmp_ne_u64 vcc, {sr(sTag,2)}, {vr(YT,2)}")
            for q2 in range(1, 4): a(f"v_cmp_ne_u64 s[{86+2*q2}:{87+2*q2}], {sr(sTag,2)}, {vr(YT+2*q2,2)}")
            for q2 in range(1, 4): a(f"s_or_b64 vcc, vcc, s[{86+2*q2}:{87+2*q2}]")
            a("s_cbranch_vccnz G_yslow\nG_yok:")
    stamp()
    a.wait(lg="rr2")
    for q in range(16): a(f"v_add_f32 v{ACC2+16+q}, v{ACC2+16+q}, v{ACC2+32+q}")
    for k in range(8):
        a(f"v_pk_add_f32 {vr(ACC2+2*k,2)}, {vr(ACC2+2*k,2)}, {vr(ACC2+16+2*k,2)}")
    for k in range(8):
        a(f"v_cvt_pk_bf16_f32 v{XR+k}, v{ACC2+2*k}, v{ACC2+2*k+1}")
    for q in range(2):
        a(f"v_permlane32_swap_b32 v{XR+4*q}, v{XR+4*q+2}\nv_permlane32_swap_b32 v{XR+4*q+1}, v{XR+4*q+3}")
        a(f"buffer_store_dwordx4 {vr(XR+4*q,4)}, v{vO}, {OUT}, s{sO} offen offset:{32*q} {OPT.get('osf', '').replace('_', ' ')}")
    stamp()
    if STAMPS:
        a("s_waitcnt vmcnt(0)"); stamp()
    if "padev" in OPT:
        a(f"G_pad2:\ns_memrealtime s[98:99]\ns_waitcnt lgkmcnt(0)\ns_sub_u32 s96, s98, s86\ns_cmp_lt_u32 s96, 3000\ns_cbranch_scc1 G_pad2")
    if "padto" in OPT:
        a(f"G_pad:\ns_memrealtime s[98:99]\ns_waitcnt lgkmcnt(0)\ns_sub_u32 s96, s98, s{sTag}\ns_cmp_lt_u32 s96, {OPT['padto']}\ns_cbranch_scc1 G_pad")
    if "dbg" in OPT:
        n = nstamp[0]
        a(f"s_memrealtime s[98:99]\ns_waitcnt lgkmcnt(0)\ns_lshl2_add_u32 s96, s2, s{sW}\ns_cmp_lg_u32 s96, {4*int(OPT['dbg'])}\ns_cbranch_scc1 G_nodbg\ns_mov_b64 exec, 1")
        for i in range(1, n):
            a(f"s_sub_u32 s96, s{60+2*i}, s60\nv_mov_b32 v{vT}, s96\nbuffer_store_dword v{vT}, off, {DBG}, 0 offset:{4+4*i}")
        a(f"s_sub_u32 s96, s98, s{sTag}\nv_mov_b32 v{vT}, s96\nbuffer_store_dword v{vT}, off, {DBG}, 0 offset:60")
        a("G_nodbg:")
    stamp_flush(WS, f"s{sW}", vT, 256)
    a("s_endpgm")
    tag_slow("G", sTag, 24, [64, 192], vNon, sCnt)
    a.raw(f"""G_stslow:
{retry_mark(4)}  s_add_u32 s{sCnt}, s{sCnt}, 1
  s_cmp_ge_u32 s{sCnt}, {SPIN}
  s_cbranch_scc1 G_stok
  buffer_load_dwordx4 {vr(vSt,4)}, v{vSa}, {WS}, s{sO} offen sc1
  buffer_load_dwordx4 {vr(vId,4)}, v{vIa}, {WS}, s{sIa} offen sc1
  s_waitcnt vmcnt(0)
  s_branch G_stchk
G_hslow:
  s_cmp_ge_u32 s{sCnt}, {SPIN}
  s_cbranch_scc1 G_hok
  buffer_load_dwordx2 {vr(vP,2)}, v{vF}, {WS}, s{sRet} offen sc1
  s_waitcnt vmcnt(0)
  s_branch G_hchk
G_yslow:
{retry_mark(8)}  s_add_u32 s{sCnt}, s{sCnt}, 1
  s_cmp_ge_u32 s{sCnt}, {1 if "nossm" in OPT else SPIN}
  s_cbranch_scc1 G_yok""")
    y_loads(lambda t: a.raw("  " + t))
    a.raw("  s_waitcnt vmcnt(0)")
    y_reads(lambda t: a.raw("  " + t))
    a.raw("  s_waitcnt lgkmcnt(0)\n  s_branch G_ychk")
    a.hist = []
    a("G_far:\ns_waitcnt vmcnt(0)")
    for k in range(6):
        a(f"buffer_store_dwordx4 {vr(OB+4*k,4)}, v{vL16}, {HS}, s{sHS if k < 4 else sHS2} offen offset:{1024*(k&3)} sc1")
    a(f"s_waitcnt vmcnt(0)\ns_mov_b64 exec, 1\nbuffer_store_dwordx2 {vr(vNon,2)}, off, {WS}, s{sFl} sc1\ns_branch G_pub")
    a.vm = []; a.lg = []

def ssm_role():
    DBG, WS = "s[8:11]", "s[12:15]"
    sQ, sW, sE, sPar, sT, sT2, sCnt, sB1, sMask = 3, 32, 5, 6, 7, 34, 35, 40, 41
    sLdt, sD, sTag, sU, sXcc = 42, 43, 36, 38, 4
    sMean, sNeg = 44, 48
    vL, LX, LF, vC, LG = 1, 2, 10, 30, 26
    vPar = 44
    vT, vT2, vT3, vT4 = 54, 55, 56, 57
    vNon, vL16, vTab = 52, 60, 61
    SB = 98304
    CB0, UB0, USZ, K0A, FLG, TAB, TSZ, SROW = SB, SB + 33280, 4576, SB + 42432, SB + 42448, SB + 45056, 4096, 1056
    a.hist = []; a.vm = []; a.lg = []
    a(f"""
    s_load_dwordx16 s[16:31], s[0:1], 0
    s_load_dwordx2 s[8:9], s[0:1], 104
    s_load_dwordx2 s[52:53], s[0:1], 64
    s_load_dwordx2 s[92:93], s[0:1], 88
    s_load_dwordx2 s[12:13], s[0:1], 112
    s_memrealtime {sr(sTag,2)}
    s_setprio 3
    s_sub_u32 s{sW}, s{sW}, 4
    v_and_b32 v{vL}, 63, v0
    v_and_b32 v{vT}, 255, v0
    s_lshl_b32 s{sT}, s{sQ}, 9
    v_lshl_add_u32 v{vT3}, v{vT}, 1, s{sT}
    s_lshl2_add_u32 s{sT2}, s{sQ}, s{sW}
    s_lshl_b32 s{sT2}, s{sT2}, 11
    v_lshlrev_b32 v{vL16}, 4, v{vL}
    v_lshl_add_u32 v{vT4}, v{vL}, 6, s{sT2}
    s_lshl_b32 s{sT}, s{sQ}, 2
    """)
    srd(8, 256)
    a("s_waitcnt lgkmcnt(0)")
    if STAMPS: a(f"s_mov_b32 s100, s{sTag}\ns_mov_b32 s97, 0")
    stamp()
    a(f"""
    s_or_b32 s{sTag}, s{sTag}, 1
    v_mov_b32 v{vNon}, s{sTag}
    v_mov_b32 v{vNon+1}, s{sTag+1}
    buffer_store_dwordx2 {vr(vNon,2)}, v{vT4}, {DBG}, 0 offen sc1
    """)
    for k in range(6):
        a(f"global_load_ushort v{vPar+k}, v{vT3}, s[{18+2*k}:{19+2*k}]", "par")
    a(f"s_load_dword s{sLdt}, s[30:31], s{sT}\ns_load_dword s{sD}, s[52:53], s{sT}\ns_setprio 0\ns_branch L_ssm")
    keep = (list(a.vm), nstamp[0])
    yield
    a.hist = []; a.lg = []; a.vm = keep[0]; nstamp[0] = keep[1]
    srd(12, WS_SIZE)
    vSw, vSr = 62, 63
    vOA, vOG, vPb = 50, 51, 59
    a(f"""
    s_lshr_b32 s{sE}, s{sW}, 1
    s_and_b32 s{sPar}, s{sW}, 1
    s_mov_b32 s{sMask}, 0xffff0000
    s_mul_i32 s{sT2}, s{sE}, {USZ}
    s_add_u32 s{sT2}, s{sT2}, {UB0}
    v_lshl_add_u32 v{vT}, v{vL}, 3, s{sT2}
    v_mov_b32 v{vT3}, 0
    v_mov_b32 v{vT4}, 0
    ds_write_b64 v{vT}, {vr(vT3,2)}
    s_lshl2_add_u32 s{sT2}, s{sW}, {FLG}
    v_mov_b32 v58, s{sT2}
    ds_write_b32 v58, v{vT3}
    ds_write_b32 v58, v{vT3} offset:16
    s_lshl_b32 s{sT2}, s{sW}, 12
    s_add_u32 s{sT2}, s{sT2}, {TAB}
    v_add_u32 v{vTab}, s{sT2}, v{vL16}
    v_lshrrev_b32 v{vT}, 4, v{vL}
    v_lshl_add_u32 v{vPb}, v{vT}, 6, s{sT2}
    v_and_b32 v{vT}, 15, v{vL}
    v_lshlrev_b32 v{vOG}, 3, v{vT}
    v_lshlrev_b32 v{vT2}, 2, v{vT}
    v_add_u32 v{vT2}, {512-36}, v{vT2}
    v_cmp_lt_u32 vcc, 8, v{vT}
    v_add_u32 v{vT3}, {1024-96}, v{vOG}
    v_add_u32 v{vT4}, {1536-112}, v{vOG}
    v_cndmask_b32 v{vOA}, v{vT}, v{vT2}, vcc
    v_cmp_lt_u32 vcc, 11, v{vT}
    v_cmp_lt_u32 s[56:57], 13, v{vT}
    v_cvt_f32_u32 v{vOG}, v{vOG}
    v_cndmask_b32 v{vOA}, v{vOA}, v{vT3}, vcc
    v_cndmask_b32 v{vOA}, v{vOA}, v{vT4}, s[56:57]
    v_cvt_f32_u32 v{vOA}, v{vOA}
    """)
    def k_mfma(s_):
        F = 152 + 16 * (s_ & 1)
        for hh in range(2):
            for gt in range(2):
                d = 200 + 8 * hh + 4 * gt
                a(f"v_mfma_f32_16x16x32_bf16 {vr(d,4)}, {vr(F+4*hh,4)}, {vr(F+8+4*gt,4)}, {'0' if s_ == 0 else vr(d,4)}")
    UG = int(OPT.get("ug", 99))
    vUg, vUw, vU, sG = 30, 31, 232, 54
    def u_addr():
        a(f"""
        v_lshrrev_b32 v{vT3}, 2, v{vL}
        v_bfe_u32 v{vT4}, v{vL}, 1, 1
        v_and_b32 v{vT2}, 1, v{vL}
        v_mul_u32_u24 v{vUg}, {GS}, v{vT3}
        v_lshl_add_u32 v{vUg}, v{vT4}, 6, v{vUg}
        v_lshl_add_u32 v{vUg}, v{vT2}, 4, v{vUg}
        v_mul_u32_u24 v{vUw}, {USZ}, v{vT2}
        v_lshl_add_u32 v{vUw}, v{vT3}, 4, v{vUw}
        v_lshl_add_u32 v{vUw}, v{vT4}, 3, v{vUw}
        s_lshl_b32 s{sT}, s{sW}, 10
        s_add_u32 s{sT}, s{sT}, {UB0+480}
        v_add_u32 v{vUw}, s{sT}, v{vUw}
        s_mul_i32 s{sG}, s{sW}, {64*GS}
        s_lshr_b32 s{sT}, s{sQ}, 1
        s_lshl_b32 s{sT}, s{sT}, 7
        s_add_u32 s{sG}, s{sG}, s{sT}
        s_and_b32 s{sT}, s{sQ}, 1
        s_lshl_b32 s{sT}, s{sT}, 5
        s_add_u32 s{sG}, s{sG}, s{sT}
        s_add_u32 s{sG}, s{sG}, {XNP}
        """)
    def u_loads(emit, ks=range(4)):
        emit("s_setprio 3")
        for k in ks:
            emit(f"s_add_u32 s{sG+1}, s{sG}, {k*16*GS}")
            emit(f"buffer_load_dwordx4 {vr(vU+4*k,4)}, v{vUg}, {WS}, s{sG+1} offen sc1")
        emit("s_setprio 0")
    u_addr()
    W2 = "s[92:95]"
    vW2o, vTp, sW2, sLA, sLB, sTp = 62, 63, 16, 17, 18, 19
    srd(92, 1376 * 1024)
    a(f"""
    v_lshrrev_b32 v{vT}, 3, v{vL}
    v_lshlrev_b32 v{vT}, 10, v{vT}
    v_bfe_u32 v{vT2}, v{vL}, 4, 1
    v_lshlrev_b32 v{vT3}, 2, v{vT2}
    v_xor_b32 v{vT3}, v{vT3}, v{vL}
    v_and_b32 v{vT3}, 7, v{vT3}
    v_lshl_add_u32 v{vW2o}, v{vT3}, 4, v{vT}
    v_min_u32 v{vTp}, 43, v{vL}
    v_lshlrev_b32 v{vTp}, 7, v{vTp}
    s_mul_i32 s{sW2}, s{sW}, {352*1024}
    s_and_b32 s{sTp}, s{sQ}, 31
    s_mulk_i32 s{sTp}, 5632
    s_add_u32 s{sTp}, s{sTp}, s{sW2}
    s_bfe_u32 s{sT}, s{sQ}, 0x30001
    s_lshl_b32 s{sT}, s{sT}, 7
    s_add_u32 s{sW2}, s{sW2}, s{sT}
    s_lshl_b32 s{sLA}, s{sW}, 12
    s_mul_i32 s{sLB}, s{sW}, 3072
    s_add_u32 s{sLB}, s{sLB}, 49152
    """)
    def touch(half):
        a(f"s_add_u32 s44, s{sTp}, {half*176*1024}")
        a(f"buffer_load_dword v29, v{vTp}, {W2}, s44 offen", "tp")
    TP0, TP1 = int(OPT.get("tp0", 6)), int(OPT.get("tp1", 8))
    PR, PB, FR, KT, KA = 64, 72, 152, 200, 216
    a("s_waitcnt lgkmcnt(0)")
    a.lg = []
    BP = int(OPT.get("bp", 260))
    NKB = int(OPT.get("nkb", 8))
    a.metro = ([int(OPT.get("bb0", 800)), int(OPT.get("b01", 250))] + [int(OPT.get("bq", 400))] * 3 + [BP] * 3 + [BP // 2, 3 * BP // 4])[:NKB]
    a.cost = 0
    uq = list(range(4))
    def on_bar(left):
        nb = NKB - 1 - left
        if nb in (0, 2, 5): stamp()
        if nb == TP0: touch(0)
        if nb == TP1: touch(1)
        if nb >= UG:
            for _ in range(int(OPT.get("un", 2))):
                if uq: u_loads(lambda t: a(t, "u"), [uq.pop(0)])
    a.on_bar = on_bar
    a(f"""
    s_lshl_b32 s{sT}, s{sLdt}, 16
    s_and_b32 s{sT2}, s{sLdt}, s{sMask}
    s_cmp_eq_u32 s{sE}, 0
    s_cselect_b32 s{sT}, s{sT}, s{sT2}
    v_mov_b32 v{vT}, {LOG2E:#x}
    v_mul_f32 v{vT}, s{sT}, v{vT}
    v_exp_f32 v{vT}, v{vT}
    """)
    a.wait(vm="par")
    stamp()
    for k in range(6): a(f"v_lshlrev_b32 v{vPar+k}, 16, v{vPar+k}")
    TM = 136
    a(f"""
    v_cvt_pk_bf16_f32 v{vT}, v{vT}, v{vT}
    v_lshlrev_b32 v{vT}, 16, v{vT}
    v_mul_f32 v{PR}, v{vPar}, v{vT}
    v_mul_f32 v{PR+1}, v{vPar+1}, v{vT}
    v_mul_f32 v{vPar+2}, v{vPar+2}, v{vT}
    v_mul_f32 v{vPar+3}, v{vPar+3}, v{vT}
    v_mul_f32 v{PR}, {LOG2E:#x}, v{PR}
    v_mul_f32 v{PR+1}, 0.15915494, v{PR+1}
    v_rndne_f32 v{vT}, v{PR+1}
    v_sub_f32 v{PR+1}, v{PR+1}, v{vT}
    """)
    cmul(PR + 2, vPar + 4, vPar + 2)
    for i, l in enumerate((128, 256)):
        a(f"v_mul_f32 v{TM+4*i}, {fl(l)}, v{PR}\nv_mul_f32 v{TM+4*i+1}, {fl(l)}, v{PR+1}")
    for i in range(2): a(f"v_fract_f32 v{TM+4*i+1}, v{TM+4*i+1}\nv_exp_f32 v{TM+4*i}, v{TM+4*i}")
    for i in range(2): a(f"v_cos_f32 v{TM+4*i+2}, v{TM+4*i+1}\nv_sin_f32 v{TM+4*i+3}, v{TM+4*i+1}")
    a(f"ds_write_b128 v{vTab}, {vr(PR,4)}", "pw")
    a(f"""
    v_mul_f32 v{TM+2}, v{TM+2}, v{TM}
    v_mul_f32 v{TM+3}, v{TM+3}, v{TM}
    v_mul_f32 v{PR+6}, v{TM+6}, v{TM+4}
    v_mul_f32_e64 v{PR+7}, -v{TM+7}, v{TM+4}
    """)
    cmul(PR + 4, PR + 2, TM + 2)
    a(f"ds_write_b128 v{vTab}, {vr(PR+4,4)} offset:1024", "pw")
    def p_reads(s_):
        for j in range(4):
            for k in range(2):
                a(f"ds_read_b128 {vr(PB+32*(s_&1)+8*j+4*k,4)}, v{vPb} offset:{256*s_+16*j+1024*k}", f"pb{s_}")
    p_reads(0)
    for s_ in range(4):
        if s_ < 3: p_reads(s_ + 1)
        a.wait(lg=f"pb{s_}")
        if s_ == 3: a(f"s_load_dwordx2 {sr(sTag,2)}, s[8:9], 128")
        F = FR + 16 * (s_ & 1)
        for jp in range(2):
            js = (2 * jp, 2 * jp + 1)
            P = lambda j: PB + 32 * (s_ & 1) + 8 * j
            T = lambda j, w_: TM + 8 * (j & 1) + 4 * w_
            for j in js:
                for w_, o in enumerate((vOA, vOG)):
                    a(f"v_mul_f32 v{T(j,w_)}, v{P(j)}, v{o}\nv_mul_f32 v{T(j,w_)+1}, v{P(j)+1}, v{o}")
            for j in js:
                a(f"v_fract_f32 v{T(j,0)+1}, v{T(j,0)+1}")
                for w_ in range(2): a(f"v_exp_f32 v{T(j,w_)}, v{T(j,w_)}")
            for j in js:
                for w_ in range(2):
                    a(f"v_cos_f32 v{T(j,w_)+2}, v{T(j,w_)+1}\nv_sin_f32 v{T(j,w_)+3}, v{T(j,w_)+1}")
            for j in js:
                a(f"v_mul_f32 v{T(j,0)+2}, v{T(j,0)+2}, v{T(j,0)}\nv_mul_f32_e64 v{T(j,0)+3}, -v{T(j,0)+3}, v{T(j,0)}")
                a(f"v_mul_f32 v{T(j,1)+2}, v{T(j,1)+2}, v{T(j,1)}\nv_mul_f32 v{T(j,1)+3}, v{T(j,1)+3}, v{T(j,1)}")
            for j in js:
                a(f"v_cvt_pk_bf16_f32 v{F+j}, v{T(j,0)+2}, v{T(j,0)+3}")
                cmul(T(j, 0), T(j, 0) + 2, P(j) + 6)
                cmul(T(j, 1), T(j, 1) + 2, P(j) + 2)
                a(f"v_cvt_pk_bf16_f32 v{F+4+j}, v{T(j,0)}, v{T(j,0)+1}")
                cmul(T(j, 0) + 2, T(j, 1) + 2, P(j) + 4)
                a(f"v_cvt_pk_bf16_f32 v{F+8+j}, v{T(j,1)}, v{T(j,1)+1}")
                a(f"v_cvt_pk_bf16_f32 v{F+12+j}, v{T(j,0)+2}, v{T(j,0)+3}")
            if jp == 0 and s_ > 0: k_mfma(s_ - 1)
    k_mfma(3)
    vK = 80
    a(f"""
    v_lshrrev_b32 v{vT2}, 4, v{vL}
    v_and_b32 v{vT3}, 15, v{vL}
    v_lshlrev_b32 v{vT3}, 4, v{vT3}
    v_lshl_add_u32 v{vT2}, v{vT2}, 10, v{vT3}
    s_lshl_b32 s{sT2}, s{sW}, 12
    s_add_u32 s{sT2}, s{sT2}, {TAB}
    v_add_u32 v{vT2}, s{sT2}, v{vT2}
    s_lshl_b32 s{sT}, s{sE}, 13
    s_add_u32 s{sT}, s{sT}, {TAB}
    v_add_u32 v{vT3}, s{sT}, v{vL16}
    """)
    sys.stderr.write(f"metronome left {a.metro} cost {a.cost}\n")
    while a.metro: a.tick()
    a.metro = None
    stamp()
    a(f"s_setprio {OPT.get('xprio', 0)}")
    for t in range(4): a(f"ds_write_b128 v{vT2}, {vr(KT+4*t,4)} offset:{256*t}")
    if NKB == 10: a("ds_write_b32 v58, v58 offset:16\nv_xor_b32 v27, 4, v58")
    a(f"""
    s_mul_i32 s{sT}, s{sE}, 16640
    s_add_u32 s{sT}, s{sT}, {CB0}
    s_lshl_b32 s{sT2}, s{sPar}, 11
    s_add_u32 s{sT2}, s{sT2}, s{sT}
    s_add_u32 s{sT2}, s{sT2}, 32
    v_add_u32 v{vK}, s{sT2}, v{vL16}
    v_bfe_u32 v{vT}, v{vL}, 3, 2
    v_mul_u32_u24 v{vT}, 4160, v{vT}
    v_and_b32 v{vT4}, 7, v{vL}
    v_lshl_add_u32 v{vT}, v{vT4}, 2, v{vT}
    v_add_u32 v{vT}, s{sT}, v{vT}
    v_and_b32 v{vT4}, 1, v{vL}
    v_cmp_eq_u32 vcc, 1, v{vT4}
    v_cmp_le_u32 s[56:57], 32, v{vL}
    """)
    a(f"s_waitcnt lgkmcnt(0)\ns_cmp_eq_u32 s{sTag}, 0\ns_cbranch_scc1 S_tagslow\nS_tagok:")
    stamp()
    if NKB < 10:
        a("s_barrier")
        sv = sT
        if TP1 == NKB: a(f"s_add_u32 s44, s{sTp}, {176*1024}\nbuffer_load_dword v29, v{vTp}, {W2}, s44 offen")
    else:
        a("""
        S_xw:
        ds_read_b32 v28, v27 offset:16
        s_waitcnt lgkmcnt(0)
        v_readfirstlane_b32 s44, v28
        s_cmp_eq_u32 s44, 0
        s_cbranch_scc1 S_xw
        """)
    stamp()
    NREST = max(0, 10 - NKB - 2)
    a(f"s_cmp_lg_u32 s{sPar}, 0\ns_cbranch_scc1 S_par1")
    KP = 64
    PK = 88
    K = lambda i: KA + i
    cnt = [0]
    CBAR = [int(x) for x in OPT.get('cbar', '2,5,6,7').split(',')]
    def packs(run, k):
        for cp in range(4):
            for j in range(4): a(f"v_cvt_pk_bf16_f32 v{PK+16*run+4*cp+j}, v{k[cp+2*j]}, v{k[cp+2*j+1]}")
            if cnt[0] in CBAR[:NREST]: a("s_barrier")
            cnt[0] += 1
            a(f"ds_write_b128 v{vK}, {vr(PK+16*run+4*cp,4)} offset:{4160*cp+1024*run}")
    hist0 = list(a.hist)
    for q in range(3):
        a(f"ds_read_b128 {vr(KA+4*q,4)}, v{vT3} offset:{1024*q}\nds_read_b128 {vr(KP+4*q,4)}, v{vT3} offset:{TSZ+1024*q}")
    a(f"""
    v_mov_b32 v{vT4}, 0
    ds_write_b32 v{vT}, v{vT4}
    s_lshl_b32 s{sT2}, s{sE}, 2
    s_add_u32 s{sT2}, s{sT2}, {K0A}
    v_mov_b32 v{vT2}, s{sT2}
    v_mov_b32 v{vT3}, s{sT}
    s_waitcnt lgkmcnt(1)
    """)
    for j in range(12): a(f"v_add_f32 v{KA+j}, v{KA+j}, v{KP+j}")
    a(f"""
    v_cndmask_b32 v{K(1)}, v{K(1)}, v{K(0)}, s[56:57]
    v_cndmask_b32 v{K(3)}, v{K(3)}, v{K(4)}, s[56:57]
    v_cndmask_b32 v{K(5)}, v{K(5)}, v{K(4)}, s[56:57]
    v_cndmask_b32 v{K(7)}, v{K(7)}, v{K(8)}, s[56:57]
    v_mov_b32 v{K(12)}, v{K(8)}
    v_mov_b32 v{K(13)}, v{K(8)}
    s_mov_b64 exec, 1
    ds_write_b32 v{vT2}, v{K(0)}
    v_mov_b32 v{K(0)}, 0
    s_mov_b64 exec, -1
    v_mov_b32_dpp v{K(12)}, v{K(1)} wave_shl:1 row_mask:0xf bank_mask:0xf
    v_mov_b32_dpp v{K(13)}, v{K(2)} wave_shl:1 row_mask:0xf bank_mask:0xf
    """)
    packs(1, [K(9)] * 3 + [K(10)] * 3 + [K(11)] * 5)
    packs(0, [K(i) for i in range(9)] + [K(12), K(13)])
    a(f"""
    s_mov_b64 exec, 1
    ds_write_b32 v{vT3}, v{PK} offset:{2*4160+28}
    ds_write_b32 v{vT3}, v{PK+4} offset:{3*4160+28}
    s_mov_b64 exec, -1
    s_branch S_parj
    S_par1:
    """)
    a.hist = hist0; cnt[0] = 0
    a(f"ds_read_b128 {vr(KA+12,4)}, v{vT3} offset:3072\nds_read_b128 {vr(KP,4)}, v{vT3} offset:{TSZ+3072}\ns_waitcnt lgkmcnt(0)")
    for j in range(4): a(f"v_add_f32 v{KA+12+j}, v{KA+12+j}, v{KP+j}")
    a(f"v_cndmask_b32 v{K(0)}, v{K(12)}, v{K(13)}, vcc\nv_cndmask_b32 v{K(1)}, v{K(14)}, v{K(15)}, vcc")
    packs(0, [K(12)] * 4 + [K(0)] + [K(13)] * 6)
    packs(1, [K(14)] * 4 + [K(1)] + [K(15)] * 6)
    a("S_parj:")
    a.lg = []
    vAa, vBa, vUa, vBp = 52, 53, 50, 51
    a(f"""
    s_mul_i32 s{sT}, s{sE}, {USZ}
    s_add_u32 s{sT}, s{sT}, {UB0+256}
    s_lshl_b32 s{sT2}, s{sPar}, 8
    v_and_b32 v{vT2}, 15, v{vL}
    v_lshrrev_b32 v{vT3}, 4, v{vL}
    v_lshl_add_u32 v{vBa}, v{vT2}, 5, s{sT}
    v_lshl_add_u32 v{vUa}, v{vT3}, 3, v{vBa}
    v_lshlrev_b32 v{vT3}, 4, v{vT3}
    v_add_u32 v{vBa}, v{vT3}, v{vBa}
    v_subrev_u32 v{vBa}, s{sT2}, v{vBa}
    v_bfe_u32 v{vT2}, v{vL}, 2, 2
    v_sub_u32 v{vT4}, 0, v{vT2}
    v_and_b32 v{vT4}, 3, v{vT4}
    v_mul_u32_u24 v{vAa}, 4160, v{vT4}
    v_min_u32 v{vT2}, 1, v{vT2}
    v_lshlrev_b32 v{vT2}, 3, v{vT2}
    v_sub_u32 v{vAa}, v{vAa}, v{vT2}
    v_sub_u32 v{vAa}, v{vAa}, v{vT3}
    v_and_b32 v{vT2}, 3, v{vL}
    v_lshl_add_u32 v{vAa}, v{vT2}, 3, v{vAa}
    s_mul_i32 s{sT}, s{sE}, 16640
    s_add_u32 s{sT}, s{sT}, {CB0+32+32-8}
    s_add_u32 s{sT}, s{sT}, s{sT2}
    v_add_u32 v{vAa}, s{sT}, v{vAa}
    s_xor_b32 s{sT}, s{sW}, 1
    s_lshl2_add_u32 s{sLdt}, s{sT}, {FLG}
    v_mov_b32 v27, s{sLdt}
    s_lshl_b32 s{sT}, s{sT}, 12
    s_add_u32 s{sT}, s{sT}, {TAB}
    v_add_u32 v{vPb}, s{sT}, v{vL16}
    v_lshrrev_b32 v{vT3}, 2, v{vL}
    v_lshl_add_u32 v{vBp}, v{vT2}, 4, v{vT3}
    v_lshlrev_b32 v{vBp}, 2, v{vBp}
    s_lshl2_add_u32 s{sT}, s{sE}, {K0A}
    v_mov_b32 v{vT4}, s{sT}
    s_lshl_b32 s{sT}, s{sD}, 16
    s_and_b32 s{sT2}, s{sD}, s{sMask}
    s_cmp_eq_u32 s{sE}, 0
    s_cselect_b32 s{sD}, s{sT}, s{sT2}
    s_lshl1_add_u32 s{sT}, s{sQ}, s{sE}
    s_mul_i32 s{sT}, s{sT}, {GC}
    s_add_u32 s{sT}, s{sT}, {Y2}
    s_add_u32 s{sT2}, s{sT}, 4096
    s_mov_b32 s{sCnt}, 0
    """)
    AS, BS, YA, OV, UU, KD = [64, 128], [96, 160], 192, 10, 2, 26
    for k in range(4): a(f"v_mov_b32 v{OV+4*k+2}, s{sTag}\nv_mov_b32 v{OV+4*k+3}, s{sTag+1}")
    stamp()
    a("s_barrier")
    while uq: u_loads(lambda t: a(t, "u"), [uq.pop(0)])
    def piece(p):
        rg, off = SHARED['LOC'][p]
        a(f"s_add_u32 m0, s{sLA if rg == 'A' else sLB}, {off}\ns_add_u32 s44, s{sW2}, {8192*p}")
        a(f"buffer_load_dwordx4 v{vW2o}, {W2}, s44 offen lds", "P")
    for p in range(24): piece(p)
    a.wait(vm="u")
    a("S_uchk:")
    a(f"v_cmp_ne_u64 vcc, {sr(sTag,2)}, {vr(vU+2,2)}")
    for k in range(1, 4): a(f"v_cmp_ne_u64 s[{42+2*k}:{43+2*k}], {sr(sTag,2)}, {vr(vU+4*k+2,2)}")
    for k in range(1, 4): a(f"s_or_b64 vcc, vcc, s[{42+2*k}:{43+2*k}]")
    a(f"s_cbranch_vccnz S_uslow\nS_uok:\ns_mov_b32 s{sCnt}, 0")
    stamp()
    for k in range(4): a(f"ds_write_b64 v{vUw}, {vr(vU+4*k,2)} offset:{256*k}")
    a(f"s_waitcnt vmcnt(0) lgkmcnt(0)\ns_setprio {OPT.get('cprio', 1)}\ns_barrier")
    a.vm = []
    a.lg = []
    stamp()
    def reads(rho):
        s_ = rho & 1; L = []
        for j in range(8):
            L.append((f"ds_read_b128 {vr(BS[s_]+4*j,4)}, v{vBa} offset:{512*j+64*(3-rho)}", f"f{rho}_{j}"))
            L.append((f"ds_read_b64_tr_b16 {vr(AS[s_]+4*j,2)}, v{vAa} offset:{64*(8*j+rho)+8}", f"f{rho}_{j}"))
            L.append((f"ds_read_b64_tr_b16 {vr(AS[s_]+4*j+2,2)}, v{vAa} offset:{64*(8*j+rho)}", f"f{rho}_{j}"))
        return L
    for t, tag in reads(0): a(t, tag)
    first = [True] * 8
    def cm(rho, p, q):
        a.wait(lg=f"f{rho}_{max(p,q)}")
        ct = p + q; s_ = rho & 1
        a(f"v_mfma_f32_16x16x32_bf16 {vr(YA+4*ct,4)}, {vr(AS[s_]+4*p,4)}, {vr(BS[s_]+4*q,4)}, {'0' if first[ct] else vr(YA+4*ct,4)}")
        first[ct] = False
    for rho in range(3):
        if rho == int(OPT.get("cp3", 2)): a("s_setprio 3")
        nxt = reads(rho + 1)
        for n, (p, q) in enumerate(sorted([(p, q) for p in range(8) for q in range(8) if p + q <= 7], key=lambda x: max(x))):
            cm(rho, p, q)
            if n >= 8 and nxt:
                t, tag = nxt.pop(0); a(t, tag)
        assert not nxt
    a(f"s_cmp_lg_u32 s{sPar}, 0\ns_cbranch_scc1 S_conv1")
    keep = (list(a.hist), list(a.lg), nstamp[0])
    ZB, PB_ = 64, 80
    for par, (KEEP, SEND) in enumerate((((0, 3, 4, 7), (1, 2, 5, 6)), ((1, 2, 5, 6), (0, 3, 4, 7)))):
        if par: a("S_conv1:")
        a.hist, a.lg, nstamp[0] = list(keep[0]), list(keep[1]), keep[2]
        side = [lambda: a(f"ds_read_b32 v{KD}, v{vT4}", "uu")]
        side += [lambda k=k, ct=ct: a(f"ds_read_b64 {vr(UU+2*k,2)}, v{vUa} offset:{480-256+512*ct}", "uu") for k, ct in enumerate(KEEP)]
        side += [None] * 5
        side += [lambda: (a.wait(lg="uu"), a(f"v_add_f32 v{KD}, s{sD}, v{KD}"))]
        side += [lambda j=j: a(f"v_lshlrev_b32 v{ZB+2*j}, 16, v{UU+j}\nv_and_b32 v{ZB+2*j+1}, s{sMask}, v{UU+j}") for j in range(8)]
        order = [(p, ct - p) for ct in SEND + KEEP for p in range(ct + 1)]
        ends = {}
        for n, (p, q) in enumerate(order): ends[p + q] = n
        wq = list(SEND)
        for n, (p, q) in enumerate(order):
            cm(3, p, q)
            if wq and n >= ends[wq[0]] + 5:
                ct = wq.pop(0); a(f"ds_write_b128 v{vTab}, {vr(YA+4*ct,4)} offset:{1024*SEND.index(ct)}", "sw")
                if not wq: a(f"ds_write_b32 v58, v58", "sw")
            elif side:
                t = side.pop(0)
                if t: t()
            if n == 31:
                assert not wq and not side
                a("ds_read_b32 v28, v27", "pr")
                for k in range(4): a(f"ds_read_b128 {vr(PB_+4*k,4)}, v{vPb} offset:{1024*k}", "pr")
        stamp()
        a.wait(lg=0)
        a(f"""
        v_cmp_eq_u32 vcc, 0, v28
        s_cbranch_vccz S_pok{par}
        S_pw{par}:
        ds_read_b32 v28, v27
        """)
        for k in range(4): a(f"ds_read_b128 {vr(PB_+4*k,4)}, v{vPb} offset:{1024*k}")
        a(f"""
        s_waitcnt lgkmcnt(0)
        v_cmp_eq_u32 vcc, 0, v28
        s_cbranch_vccnz S_pw{par}
        S_pok{par}:
        """)
        a.lg = []
        for j in range(16): a(f"v_fmac_f32 v{PB_+j}, v{KD}, v{ZB+j}")
        a("s_setprio 3")
        for k, ct in enumerate(KEEP):
            for j in range(4): a(f"v_add_f32 v{PB_+4*k+j}, v{PB_+4*k+j}, v{YA+4*ct+j}")
            for j in range(2): a(f"v_cvt_pk_bf16_f32 v{UU+2*k+j}, v{PB_+4*k+2*j}, v{PB_+4*k+2*j+1}")
            for j in range(2): a(f"ds_bpermute_b32 v{OV+4*k+j}, v{vBp}, v{UU+2*k+j}", f"bp{k}")
        for k, ct in enumerate(KEEP):
            a.wait(lg=f"bp{k}")
            a(f"buffer_store_dwordx4 {vr(OV+4*k,4)}, v{vL16}, {WS}, s{sT if ct < 4 else sT2} offen offset:{1024*(ct&3)} sc1")
        if par == 0: a("s_branch S_done")
    a("S_done:")
    stamp()
    if STAMPS:
        a("s_waitcnt vmcnt(0)"); stamp()
    if "wb" in OPT:
        a(f"s_lshr_b32 s{sT}, s2, 3\ns_or_b32 s{sT}, s{sT}, s{sW}\ns_cmp_lg_u32 s{sT}, 0\ns_cbranch_scc1 S_nowb\nbuffer_wbl2 sc1\nS_nowb:")
    stamp_flush(WS, f"s{sW}", vT)
    a("s_endpgm")
    tag_slow("S", sTag, 8, [192], vNon, sCnt)
    a.raw(f"""S_uslow:
{retry_mark(4)}  s_add_u32 s{sCnt}, s{sCnt}, 1
  s_cmp_ge_u32 s{sCnt}, {SPIN}
  s_cbranch_scc1 S_uok
  s_sleep 4""")
    u_loads(lambda t: a.raw("  " + t))
    a.raw("  s_waitcnt vmcnt(0)\n  s_branch S_uchk")

hdr = open("cdna_kernels/" + NAME + ".s.ref").read().split("\n")
top = [l for l in hdr if l.startswith(";") and "@launch" not in l][:16]
a.raw("\n".join(top))
a.raw("; @launch grid=(256,1,1) block=(512,1,1) lds=163840")
a.raw(f""".amdgcn_target "amdgcn-amd-amdhsa--gfx950"
.text
.globl {NAME}_kernel
.p2align 8
.type {NAME}_kernel,@function
{NAME}_kernel:""")
stamp()
NST[0] = 14
a(f"""
v_lshrrev_b32 v1, 6, v0
s_cmp_ge_u32 s2, 256
s_cbranch_scc1 L_exit
v_readfirstlane_b32 s32, v1
s_and_b32 s3, s2, 7
s_lshl_b32 s3, s3, 5
s_lshr_b32 s96, s2, 3
s_add_u32 s3, s3, s96
s_cmp_lt_u32 s32, 4
s_cbranch_scc1 L_gemm
""")
if "nocpf" not in OPT:
    a(f"""
    s_getpc_b64 s[94:95]
    s_lshl_b32 s96, s96, 10
    v_and_b32 v255, 7, v0
    v_lshl_add_u32 v255, v255, 7, s96
    v_min_u32 v255, L_exit-{NAME}_kernel-128, v255
    global_load_dword v254, v255, s[94:95]
    """)
EV[1] = False
ssm = ssm_role()
next(ssm)
EV[1] = True
a("L_gemm:")
a.hist = []; a.vm = []; a.lg = []
if STAMPS: nstamp[0] = 1
gemm_role()
a.raw(".p2align 6")
a("L_ssm:")
NST[0] = 16
EV[1] = False
for _ in ssm: pass
a("L_exit:\ns_endpgm")
a.raw(f""".section .rodata,"a"
.p2align 6
.amdhsa_kernel {NAME}_kernel
  .amdhsa_next_free_vgpr 256
  .amdhsa_next_free_sgpr 102
  .amdhsa_accum_offset 256
  .amdhsa_group_segment_fixed_size 0
  .amdhsa_kernarg_size 120
  .amdhsa_user_sgpr_count 2
  .amdhsa_user_sgpr_kernarg_segment_ptr 1
  .amdhsa_system_sgpr_workgroup_id_x 1
.end_amdhsa_kernel""")
sys.stdout.write(a.text())
sys.stderr.write(f"nops inserted: {a.nops}\n")
```

```python
import re

TRANS = ("v_exp_f32", "v_log_f32", "v_rcp_f32", "v_rsq_f32", "v_sqrt_f32", "v_sin_f32", "v_cos_f32")

def _regs(tok):
    tok = tok.strip()
    tok = re.sub(r"^-?(abs\()?", "", tok).rstrip(")")
    tok = tok.lstrip("-|").rstrip("|")
    m = re.fullmatch(r"([vsa])\[(\d+):(\d+)\]", tok)
    if m:
        return {(m.group(1), i) for i in range(int(m.group(2)), int(m.group(3)) + 1)}
    m = re.fullmatch(r"([vsa])(\d+)", tok)
    if m:
        return {(m.group(1), int(m.group(2)))}
    if tok == "vcc":
        return {("s", "vcc")}
    if tok == "exec":
        return {("s", "exec")}
    if tok == "m0":
        return {("s", "m0")}
    return set()

class Ins:
    def __init__(self, text):
        self.text = text
        body = text.split(";")[0].strip()
        parts = body.split(None, 1)
        self.op = parts[0]
        ops = parts[1] if len(parts) > 1 else ""
        toks = [t.strip() for t in re.split(r",(?![^\[]*\])", ops)] if ops else []
        self.mods = ""
        if toks:
            last = toks[-1].split(None, 1)
            toks[-1] = last[0]
            self.mods = last[1] if len(last) > 1 else ""
        self.toks = toks
        op = self.op
        self.mfma = op.startswith("v_mfma")
        self.valu = op.startswith("v_") and not self.mfma
        self.trans = op.replace("_e32", "").replace("_e64", "") in TRANS
        self.ds = op.startswith("ds_")
        self.vmem = op.startswith("buffer_") or op.startswith("global_")
        self.salu = op.startswith("s_")
        self.dpp = any(k in self.mods for k in ("row_shr", "row_shl", "row_bcast", "quad_perm", "row_mirror", "row_half_mirror", "row_ror", "wave_", "row_newbcast"))
        self.wr = set(); self.rd = set(); self.srcc = set(); self.srcab = set(); self.stdata = set()
        R = [_regs(t) for t in toks]
        if self.mfma:
            self.wr = R[0]; self.srcab = R[1] | R[2]; self.srcc = R[3]; self.rd = self.srcab | self.srcc
            self.passes = 8 if "32x32x16" in op else 4
        elif self.valu:
            if op.startswith("v_cmp"):
                self.wr = R[0]; self.rd = set().union(*R[1:])
            elif op.startswith("v_permlane") and "swap" in op:
                self.wr = R[0] | R[1]; self.rd = R[0] | R[1]
            elif op.startswith(("v_add_co", "v_addc_co", "v_sub_co")):
                self.wr = R[0] | R[1]; self.rd = set().union(*R[2:])
            else:
                self.wr = R[0]; self.rd = set().union(*R[1:]) if len(R) > 1 else set()
                if op.startswith(("v_fmac", "v_dot2c", "v_pk_fmac", "v_writelane")) or self.dpp:
                    self.rd |= R[0]
        elif self.ds:
            if op.startswith(("ds_read", "ds_bpermute")):
                self.wr = R[0]; self.rd = set().union(*R[1:])
            else:
                self.rd = set().union(*R)
        elif self.vmem:
            lds = re.search(r"\blds\b", self.mods) is not None
            if "load" in op and not lds:
                self.wr = R[0]; self.rd = set().union(*R[1:])
            else:
                self.rd = set().union(*R)
                if lds: self.rd |= {("s", "m0")}
                if "store" in op and ("x4" in op or "x3" in op):
                    self.stdata = R[0] if op.startswith("buffer_") else R[1]
            self.lds = lds
        elif self.salu:
            if op.startswith(("s_cmp", "s_cbranch", "s_branch", "s_waitcnt", "s_nop", "s_barrier", "s_endpgm", "s_setprio", "s_sleep")):
                self.rd = set().union(*R) if R else set()
            else:
                self.wr = R[0] if R else set(); self.rd = set().union(*R[1:]) if len(R) > 1 else set()
                if "saveexec" in op: self.wr |= {("s", "exec")}
        self.slots = 1
        if op == "s_nop":
            self.slots = int(toks[0], 0) + 1

def need(p, c):
    n = 0
    pv = {r for r in p.wr if r[0] in "va"}; ps = {r for r in p.wr if r[0] == "s"}
    if p.valu and c.mfma and pv & c.rd: n = max(n, 2)
    if p.mfma:
        big = p.passes == 8
        if c.mfma:
            if p.wr & c.srcab: n = max(n, 12 if big else 8)
            if p.wr & c.srcc and not (c.srcc == p.wr and c.passes == p.passes): n = max(n, 10 if big else 6)
        elif (c.valu or c.ds or c.vmem) and p.wr & (c.rd | c.wr): n = max(n, 12 if big else 8)
        if c.valu and p.srcc & c.wr: n = max(n, 7 if big else 3)
    if p.trans and c.valu and not c.trans and pv & c.rd: n = max(n, 1)
    if p.trans and (c.ds or c.vmem) and pv & c.rd: n = max(n, 1)
    if p.valu and c.valu and c.dpp and pv & c.rd: n = max(n, 2)
    if p.valu and c.op.startswith("v_permlane") and pv & c.rd: n = max(n, 2)
    if p.valu and c.op.startswith(("v_readlane", "v_readfirstlane")) and pv & c.rd: n = max(n, 1)
    if p.valu and ps:
        if c.vmem and ps & c.rd: n = max(n, 5)
        if c.valu and ps & c.rd: n = max(n, 4 if c.op.startswith(("v_readlane", "v_writelane")) else 2)
        if c.valu and ("s", "vcc") in ps and c.op.startswith("v_cndmask") and len(c.toks) == 3: n = max(n, 2)
        if c.salu and ps & c.rd: n = max(n, 1)
    if p.op.startswith("v_dot") and c.valu and pv & (c.rd | c.wr):
        same_c = c.op == p.op and not (pv & set().union(*[_regs(t) for t in c.toks[1:3]]))
        if not same_c: n = max(n, 3)
    if p.op.startswith("v_dot") and (c.ds or c.vmem or c.mfma) and pv & c.rd: n = max(n, 3)
    if p.salu and ("s", "m0") in p.wr and c.vmem and ("s", "m0") in c.rd: n = max(n, 1)
    if p.stdata and (c.valu or c.mfma) and p.stdata & c.wr: n = max(n, 2)
    if p.stdata and (c.ds or c.vmem) and p.stdata & c.wr: n = max(n, 1)
    if p.valu and "op_sel" in p.mods and not p.op.startswith("v_pk") and c.valu and pv & c.rd: n = max(n, 1)
    return n

class Asm:
    def __init__(self):
        self.lines = []
        self.hist = []
        self.vm = []
        self.lg = []
        self.nops = 0
        self.metro = None
        self.cost = 0
        self.hold = False
        self.on_bar = None
        self.pre_bar = None
        self.on_gap = None
        self.gap_len = 48
        self.gap = 0
    def raw(self, s):
        self.lines.append(s)
    def label(self, l):
        self.lines.append(l + ":")
    def comment(self, s):
        self.lines.append("  ; " + s)
    def __call__(self, text, tag=None):
        for t in text.strip().split("\n"):
            t = t.strip()
            if not t: continue
            if t.startswith(";"):
                self.lines.append("  " + t); continue
            if t.endswith(":"):
                self.lines.append(t); continue
            self._emit(t, tag)
    def _emit(self, t, tag):
        c = Ins(t)
        dist = 0; pad = 0
        for p in reversed(self.hist):
            n = need(p, c)
            if n > dist: pad = max(pad, n - dist)
            dist += p.slots
            if dist >= 24: break
        while pad > 0:
            k = min(pad, 16)
            self.lines.append(f"  s_nop {k-1}")
            self.hist.append(Ins(f"s_nop {k-1}"))
            self.nops += k
            pad -= k
        self.lines.append("  " + t)
        self.hist.append(c)
        if len(self.hist) > 64: self.hist = self.hist[-48:]
        if c.vmem: self.vm.append(tag)
        if c.ds: self.lg.append(tag)
        if self.metro:
            k = 8 if (c.trans or c.mfma or c.ds) else 16 if c.vmem else 4
            self.cost += k; self.gap += k
            if c.valu and not self.hold and not c.op.startswith("v_cmp"):
                if self.cost >= self.metro[0]: self.tick()
                elif self.on_gap and self.gap >= self.gap_len:
                    self.gap = 0; self.on_gap(); self.gap = 0
    def tick(self):
        self.metro.pop(0); self.cost = 0
        m, self.metro = self.metro, None
        if self.pre_bar: self.pre_bar(len(m))
        self._emit("s_barrier", None)
        self.metro = m
        if self.on_bar: self.on_bar(len(m))
    def _count(self, q, tags):
        idx = [i for i, t in enumerate(q) if t in tags]
        if not idx: return None
        return len(q) - 1 - max(idx)
    def wait(self, vm=None, lg=None):
        parts = []
        if vm is not None:
            n = 0 if vm == 0 else self._count(self.vm, vm if isinstance(vm, (tuple, list, set)) else (vm,))
            if n is not None:
                n = min(n, 63)
                parts.append(f"vmcnt({n})"); self.vm = self.vm[len(self.vm) - n:] if n else []
        if lg is not None:
            n = 0 if lg == 0 else self._count(self.lg, lg if isinstance(lg, (tuple, list, set)) else (lg,))
            if n is not None:
                n = min(n, 15)
                parts.append(f"lgkmcnt({n})"); self.lg = self.lg[len(self.lg) - n:] if n else []
        if parts:
            self._emit("s_waitcnt " + " ".join(parts), None)
    def text(self):
        return "\n".join(self.lines) + "\n"

def vr(a, n=1):
    return f"v{a}" if n == 1 else f"v[{a}:{a+n-1}]"
def sr(a, n=1):
    return f"s{a}" if n == 1 else f"s[{a}:{a+n-1}]"
```

```python
import sys, struct
from asmlib import Asm, vr, sr

NAME = "parallel_sum__ssm_conv_s4__dense_activation_silu__prompt"
OPT = {x.split("=")[0][2:]: (x.split("=")[1] if "=" in x else "1") for x in sys.argv[1:] if x.startswith("--")}
STAMPS = "stamps" in OPT
SPIN = int(OPT.get("spin", 4000))
PLF = OPT.get("plf", "sc1").replace("_", " ")
FSF = OPT.get("fsf", "sc1").replace("_", " ")
M1, M2 = OPT.get("m1", "81"), OPT.get("m2", "81")
LOCAL = M1 == "81" and M2 == "81" and "nolocal" not in OPT
HSF = "" if LOCAL else "sc1"

HROW = 88 * 1024
H_SIZE = 64 * HROW
ST = 0x580000
FH = 0x590000
GS = 18432
GC = 9216
XNP = 0x600000
XS = 9216
FX = 0x5A0000
FG = 0x5B0000
Y2 = 0xA80000
WS_SIZE = 0x1000000
STAMP_OFF = 0xF80000
LOG2E = 0x3fb8aa3b
fl = lambda x: "0x%08x" % struct.unpack("<I", struct.pack("<f", x))[0]

a = Asm()
SHARED = {}
nstamp = [0]
EV = [0, True]
NST = [16]
def stamp(force=False):
    if "padev" in OPT and EV[1]:
        if EV[0] == int(OPT["padev"]): a("s_memrealtime s[86:87]")
        EV[0] += 1
    if STAMPS and nstamp[0] < NST[0] and (force or ("cs" not in OPT and "g2" not in OPT) or nstamp[0] in (0, 13) or ("g2" in OPT and nstamp[0] >= 7)):
        i = nstamp[0]; nstamp[0] += 1
        a(f"s_memtime s[{60+2*i}:{61+2*i}]")
def stamp_flush(wsrd, wave_s, vt, row=0):
    if not STAMPS: return
    n = nstamp[0]
    a("s_memrealtime s[98:99]")
    a("s_waitcnt lgkmcnt(0)")
    a(f"s_lshl_b32 s96, s2, 2\ns_add_u32 s96, s96, {wave_s}\ns_lshl_b32 s96, s96, 7\ns_add_u32 s96, s96, {STAMP_OFF+row*512}")
    a("s_mov_b64 exec, 1")
    for i in range(n):
        a(f"v_mov_b32 v{vt}, s{60+2*i}")
        a(f"buffer_store_dword v{vt}, off, {wsrd}, s96 offset:{4*i}")
    a(f"v_mov_b32 v{vt}, s97\nbuffer_store_dword v{vt}, off, {wsrd}, s96 offset:116")
    a(f"v_mov_b32 v{vt}, s100\nbuffer_store_dword v{vt}, off, {wsrd}, s96 offset:120")
    a(f"v_mov_b32 v{vt}, s98\nbuffer_store_dword v{vt}, off, {wsrd}, s96 offset:124")
    nstamp[0] = 0
def retry_mark(bit):
    return f"  s_add_u32 s97, s97, {1 << bit}\n" if STAMPS else ""

def srd(base, size):
    a(f"s_mov_b32 s{base+2}, {size}\ns_mov_b32 s{base+3}, 0x20000")

def cmul(d, x, y):
    a(f"v_mul_f32 v{d}, v{x+1}, v{y+1}")
    a(f"v_mul_f32 v{d+1}, v{x+1}, v{y}")
    a(f"v_fma_f32 v{d}, v{x}, v{y}, -v{d}")
    a(f"v_fmac_f32 v{d+1}, v{x}, v{y+1}")

def tag_slow(pfx, sTag, dbg, offs, vt, sCnt):
    a.raw(f"{pfx}_tagslow:")
    a.raw(retry_mark(0).rstrip("\n"))
    for o in offs:
        a.raw(f"  s_load_dwordx2 {sr(sTag,2)}, s[{dbg}:{dbg+1}], {o}\n  s_waitcnt lgkmcnt(0)\n  s_cmp_lg_u32 s{sTag}, 0\n  s_cbranch_scc1 {pfx}_tagok")
    a.raw(f"""  s_mov_b32 s{sCnt}, 0
{pfx}_tagloop:
  buffer_load_dwordx2 {vr(vt,2)}, off, s[{dbg}:{dbg+3}], 0 sc1
  s_add_u32 s{sCnt}, s{sCnt}, 1
  s_waitcnt vmcnt(0)
  v_readfirstlane_b32 s{sTag}, v{vt}
  v_readfirstlane_b32 s{sTag+1}, v{vt+1}
  s_nop 3
  s_cmp_lg_u32 s{sTag}, 0
  s_cbranch_scc1 {pfx}_tagok
  s_cmp_lt_u32 s{sCnt}, {SPIN}
  s_cbranch_scc1 {pfx}_tagloop
  s_branch {pfx}_tagok""")

def gemm_role():
    X, W1, WS, W2, OUT, DBG, HS = "s[4:7]", "s[8:11]", "s[12:15]", "s[16:19]", "s[20:23]", "s[24:27]", "s[28:31]"
    sP = 3
    sW, sRB, sM, sXB, sWB, sC, sTx, sT, sLA, sLB, sW2, sHS, sHL = range(32, 45)
    sT2, sT3, sL2e, sCnt, sO, sTag, sFl, sRT = 45, 46, 47, 48, 49, 50, 52, 53
    sB1, sMask, sCG, sXcc, sFar, sHS2, sIa = 54, 55, 56, 57, 58, 59, 101
    sY, sRet = sFl, sFar
    sMean, sNeg = 88, 92
    sXn, sSt, sCx = 89, 90, 96
    SROW, STG = 1056, 98304
    vL = 1
    vXo, vWo, vXr, vWr, vW2o, vW2r, vL16 = 2, 6, 9, 13, 17, 18, 22
    vT, vNon, vCs, vT2, vC2, vSa = 23, 24, 26, 29, 30, 31
    vSt, vNeg = 32, 36
    HALF, vSw, vSr, vIa, vT3 = 88, 92, 93, 94, 95
    ACC1, WF, CSA, XF, CSF = 40, 96, 144, 192, 168
    LX, LF, LG, vId = 224, 232, 248, 252
    ACC2, STASH, HB, HD = 32, 96, 192, 8
    LB0 = 49152
    FARAWAY = 0x40000000
    a(f"""
    s_load_dwordx2 s[4:5], s[0:1], 0
    s_load_dwordx2 s[8:9], s[0:1], 80
    s_load_dwordx2 s[24:25], s[0:1], 104
    s_load_dwordx2 s[12:13], s[0:1], 112
    s_load_dwordx2 s[16:17], s[0:1], 88
    s_load_dwordx2 s[20:21], s[0:1], 96
    v_and_b32 v{vL}, 63, v0
    s_lshr_b32 s{sRB}, s{sP}, 4
    s_and_b32 s{sM}, s{sP}, 15
    s_and_b32 s{sC}, s{sP}, 7
    s_mov_b32 s{sCx}, s{sC}
    v_lshlrev_b32 v{vL16}, 4, v{vL}
    s_lshl2_add_u32 s{sCnt}, s{sP}, s{sW}
    s_lshl_b32 s{sCnt}, s{sCnt}, 11
    s_setprio 2
    """)
    if STAMPS: a("s_memrealtime s[98:99]")
    srd(4, 2048 * 1024); srd(8, 512 * 2752)
    a(f"""
    v_lshrrev_b32 v{vT}, 3, v{vL}
    v_lshlrev_b32 v{vT}, 10, v{vT}
    v_lshrrev_b32 v{vT2}, 4, v{vL}
    v_xor_b32 v{vT2}, v{vT2}, v{vL}
    v_and_b32 v{vT2}, 7, v{vT2}
    v_lshl_add_u32 v{vXo}, v{vT2}, 4, v{vT}
    v_xor_b32 v{vXo+1}, 64, v{vXo}
    v_add_u32 v{vXo+2}, {2*7168}, v{vXo}
    v_add_u32 v{vXo+3}, {3*7168}, v{vXo+1}
    v_add_u32 v{vXo+1}, 7168, v{vXo+1}
    s_movk_i32 s{sT}, 5462
    s_movk_i32 s{sT2}, {2752-192}
    v_mul_u32_u24 v{vT}, s{sT}, v{vL}
    """)
    for j in range(3):
        if j: a(f"v_add_u32 v{vT}, {64*5462}, v{vT}")
        a(f"v_lshrrev_b32 v{vT2}, 16, v{vT}\nv_mad_u32_u24 v{vWo+j}, v{vT2}, s{sT2}, v{vL16}")
    a(f"""
    s_lshl2_add_u32 s{sXB}, s{sRB}, s{sW}
    s_lshl_b32 s{sXB}, s{sXB}, 15
    s_mul_i32 s{sWB}, s{sM}, 192
    s_mul_i32 s{sT}, s{sW}, {16*2752}
    s_add_u32 s{sWB}, s{sWB}, s{sT}
    s_lshr_b32 s{sO}, s{sXB}, 6
    s_cmp_eq_u32 s{sM}, 15             ; the 16th workgroup of a row block has no GEMM1 tile: its tile loads go out of range
    s_cselect_b32 s{sXB}, {FARAWAY}, s{sXB}
    s_cselect_b32 s{sWB}, {FARAWAY}, s{sWB}
    s_lshl_b32 s{sLA}, s{sW}, 12
    s_mul_i32 s{sLB}, s{sW}, 3072
    s_add_u32 s{sLB}, s{sLB}, {LB0}
    s_waitcnt lgkmcnt(0)
    """)
    if STAMPS: a("s_mov_b32 s100, s98\ns_mov_b32 s97, 0")
    stamp()

    def w_ops(c):
        ops = []
        for j in range(3):
            def f(j=j):
                if j == 0:
                    a(f"s_mul_i32 s{sT2}, s{sC}, {64*2752}\ns_add_u32 m0, s{sLB}, {(c&3)*12288}\ns_add_u32 s{sT2}, s{sT2}, s{sWB}")
                a(f"buffer_load_dwordx4 v{vWo+j}, {W1}, s{sT2} offen offset:{j*1024} lds", f"C{c}")
                if j == 0: a(f"s_add_u32 s{sC}, s{sC}, 1\ns_and_b32 s{sC}, s{sC}, 7")
            ops.append(f)
        return ops
    def x_ops(c):
        ops = []
        for pc in range(4):
            def f(pc=pc):
                if pc == 0:
                    a(f"s_lshl_b32 s{sTx}, s{sCx}, 7\ns_add_u32 m0, s{sLA}, {(c%3)*16384}\ns_add_u32 s{sTx}, s{sTx}, s{sXB}")
                a(f"buffer_load_dwordx4 v{vXo+pc}, {X}, s{sTx} offen offset:{pc*1024} lds", f"C{c}")
                if pc == 0: a(f"s_add_u32 s{sCx}, s{sCx}, 1\ns_and_b32 s{sCx}, s{sCx}, 7")
            ops.append(f)
        return ops
    DQ = []; QT = []
    for c in range(8):
        first = (w_ops(c), x_ops(c)) if c < 2 else (x_ops(c), w_ops(c))
        for grp_ in first:
            isx = len(grp_) == 4
            lim = -1 if c < (3 if isx else 4) else (4 * (c - 3) if isx else 4 * (c - 3) + 2)
            DQ += [(lim, f) for f in grp_]
            QT += [f'C{c}'] * len(grp_)
    def issue(n, s_=-1):
        for _ in range(n):
            if DQ and DQ[0][0] <= s_: DQ.pop(0)[1]()
    for r in range(2):
        a(f"buffer_load_dwordx4 {vr(LX+4*r,4)}, v{vL16}, {X}, s{sCnt} offen offset:{1024*r}", "xrow")
    a(f"""
    s_getreg_b32 s{sXcc}, hwreg(HW_REG_XCC_ID, 0, 4)
    s_mov_b32 s{sB1}, 0x3f803f80
    s_mov_b32 s{sMask}, 0xffff0000
    s_mul_i32 s{sT3}, s{sW}, {2*SROW}
    s_add_u32 s{sT3}, s{sT3}, {STG}
    v_add_u32 v{vSw}, s{sT3}, v{vL16}
    v_bfe_u32 v{vT3}, v{vL}, 2, 2
    v_and_b32 v{vT}, 1, v{vL}
    v_lshl_add_u32 v{vT}, v{vT}, 2, v{vT3}
    v_mul_u32_u24 v{vT}, {SROW}, v{vT}
    v_and_b32 v{vT2}, 2, v{vL}
    v_lshl_add_u32 v{vT}, v{vT2}, 2, v{vT}
    v_lshrrev_b32 v{vT2}, 4, v{vL}
    v_lshl_add_u32 v{vT}, v{vT2}, 4, v{vT}
    s_lshl_b32 s{sT3}, s{sW}, 8
    s_add_u32 s{sT3}, s{sT3}, {STG}
    v_add_u32 v{vSr}, s{sT3}, v{vT}
    """)
    issue(7)
    a(f"""
    v_and_b32 v{vSa}, 31, v{vL}
    v_lshrrev_b32 v{vT2}, 5, v{vL}
    v_bfe_u32 v{vC2}, v{vL}, 1, 3
    v_xor_b32 v{vC2}, v{vC2}, v{vT2}
    v_lshl_add_u32 v{vC2}, v{vC2}, 4, s{sLA}
    v_lshl_add_u32 v{vC2}, v{vSa}, 7, v{vC2}
    v_bfe_u32 v{vT3}, v{vL}, 2, 2
    v_lshl_add_u32 v{vT}, v{vT2}, 3, v{vT3}
    v_mul_u32_u24 v{vT}, 192, v{vT}
    v_bfe_u32 v{vT2}, v{vL}, 4, 1
    v_lshl_add_u32 v{vT}, v{vT2}, 5, v{vT}
    v_and_b32 v{vT2}, 3, v{vL}
    v_lshl_add_u32 v{vT}, v{vT2}, 3, v{vT}
    v_add_u32 v{vT}, {LB0}, v{vT}
    """)
    for i in range(4):
        a(f"""
        s_add_u32 s{sT3}, s{sW}, {i}
        s_and_b32 s{sT3}, s{sT3}, 3
        s_lshl_b32 s{sCnt}, s{sT3}, 5
        s_mulk_i32 s{sT3}, 3072
        v_xor_b32 v{vXr+i}, s{sCnt}, v{vC2}
        v_add_u32 v{vWr+i}, s{sT3}, v{vT}
        """)
    issue(3)
    a(f"""
    v_lshrrev_b32 v{vT2}, 4, v{vL}
    """)
    srd(24, 256)
    srd(12, WS_SIZE)
    a(f"""
    v_lshrrev_b32 v{vT}, 2, v{vL}
    v_xor_b32 v{vT}, v{vT}, v{vT2}
    v_and_b32 v{vT}, 1, v{vT}
    v_add_u32 v{vT}, -1, v{vT}
    """)
    for k in range(4): a(f"v_and_b32 v{HALF+k}, s{sB1}, v{vT}")
    FILL = [u.strip() for u in f"""
    s_mov_b32 s18, {1376*1024}
    s_mov_b32 s19, 0x20000
    s_mov_b32 s22, {2048*1024}
    s_mov_b32 s23, 0x20000
    s_mov_b32 s28, s12
    s_mov_b32 s29, s13
    s_mov_b32 s30, {H_SIZE}
    s_mov_b32 s31, 0x20000
    s_mov_b32 s{sL2e}, {LOG2E:#x}
    v_lshlrev_b32 v{vSa}, 4, v{vSa}
    s_add_u32 s{sO}, s{sO}, {ST}
    v_and_b32 v{vIa}, 15, v{vL}
    v_lshlrev_b32 v{vIa}, 7, v{vIa}
    s_lshl_b32 s{sIa}, s{sRB}, 11
    s_add_u32 s{sIa}, s{sIa}, {ST}
    v_lshrrev_b32 v{vT}, 3, v{vL}
    v_lshlrev_b32 v{vT}, 10, v{vT}
    v_bfe_u32 v{vT2}, v{vL}, 4, 1
    v_lshlrev_b32 v{vT3}, 2, v{vT2}
    v_xor_b32 v{vT3}, v{vT3}, v{vL}
    v_and_b32 v{vT3}, 7, v{vT3}
    v_lshl_add_u32 v{vW2o}, v{vT3}, 4, v{vT}
    v_lshrrev_b32 v{vT}, 5, v{vL}
    v_bfe_u32 v{vT3}, v{vL}, 2, 2
    v_lshl_add_u32 v{vT}, v{vT}, 2, v{vT3}
    v_lshlrev_b32 v{vT}, 7, v{vT}
    v_lshl_add_u32 v{vT}, v{vT2}, 5, v{vT}
    v_bfe_u32 v{vT2}, v{vL}, 3, 1
    v_lshl_add_u32 v{vT}, v{vT2}, 6, v{vT}
    v_and_b32 v{vT2}, 3, v{vL}
    v_lshl_add_u32 v{vT}, v{vT2}, 3, v{vT}
    s_lshl_b32 s{sT3}, s{sW}, 5
    s_and_b32 s{sT3}, s{sT3}, 64
    v_xor_b32 v{vT}, s{sT3}, v{vT}
    v_xor_b32 v{vT2}, 64, v{vT}
    v_add_u32 v{vW2r}, s{sLA}, v{vT}
    v_add_u32 v{vW2r+1}, s{sLA}, v{vT2}
    v_add_u32 v{vW2r+2}, s{sLB}, v{vT}
    v_add_u32 v{vW2r+3}, s{sLB}, v{vT2}
    s_and_b32 s{sT3}, s{sP}, 1
    s_lshl1_add_u32 s{sRT}, s{sRB}, s{sT3}
    s_lshr_b32 s{sCG}, s{sM}, 1
    s_mul_i32 s{sW2}, s{sW}, {352*1024}
    s_lshl_b32 s{sT}, s{sCG}, 7
    s_add_u32 s{sW2}, s{sW2}, s{sT}
    s_mul_i32 s{sHL}, s{sRT}, {2*HROW}
    s_mul_i32 s{sT}, s{sW}, {22*1024}
    s_add_u32 s{sHL}, s{sHL}, s{sT}
    s_lshl_b32 s{sT3}, s{sW}, 8
    s_add_u32 s{sT3}, s{sT3}, {LB0}
    v_lshl_add_u32 v{vT2}, v{vL}, 2, s{sT3}
    v_lshl_add_u32 v{vT}, v{vL}, 2, s{sLB}
    s_lshl2_add_u32 s{sT3}, s{sRB}, s{sW}
    s_mul_i32 s{sT3}, s{sT3}, {HROW}
    s_mul_i32 s{sHS}, s{sM}, 6144
    s_add_u32 s{sHS}, s{sHS}, s{sT3}
    s_add_u32 s{sHS2}, s{sHS}, 4096
    s_cmp_ge_u32 s{sM}, 14 | s_cselect_b32 s{sHS2}, {H_SIZE}, s{sHS2}
    s_lshr_b32 s{sT3}, s{sW}, 1
    s_lshl1_add_u32 s{sT3}, s{sRB}, s{sT3}
    s_lshl4_add_u32 s{sT3}, s{sT3}, s{sM}
    s_and_b32 s{sFl}, s{sW}, 1
    s_lshl1_add_u32 s{sFl}, s{sT3}, s{sFl}
    s_lshl_b32 s{sFl}, s{sFl}, 3
    s_add_u32 s{sFl}, s{sFl}, {FH}
    s_cmp_eq_u32 s{sM}, 15 | s_cselect_b32 s{sHS}, {H_SIZE}, s{sHS} | s_cselect_b32 s{sFl}, {WS_SIZE}, s{sFl}
    """.strip().split("\n")]
    def fill_(n):
        for _ in range(n):
            if FILL: a(FILL.pop(0).replace(" | ", "\n"))

    fill_(int(OPT.get("nfill", 99)))
    issue(int(OPT.get("n0", 14)) - 10)
    a.wait(vm="xrow")
    stamp()

    vC = CSA; S = [252, 253]; vN = 254; sR = sMean
    def dpp_reduce(fill):
        for ctl in ("row_shr:1 row_mask:0xf bank_mask:0xf bound_ctrl:0", "row_shr:2 row_mask:0xf bank_mask:0xf bound_ctrl:0",
                    "row_shr:4 row_mask:0xf bank_mask:0xf bound_ctrl:0", "row_shr:8 row_mask:0xf bank_mask:0xf bound_ctrl:0",
                    "row_bcast:15 row_mask:0xa bank_mask:0xf", "row_bcast:31 row_mask:0xc bank_mask:0xf"):
            for r in range(2):
                a(f"v_add_f32_dpp v{S[r]}, v{S[r]}, v{S[r]} {ctl}")
            for _ in range(3):
                if fill: a(fill.pop(0))
        while fill: a(fill.pop(0))
    for k in range(4):
        for r in range(2):
            a(f"v_dot2_f32_bf16 v{S[r]}, v{LX+4*r+k}, s{sB1}, {'0' if k == 0 else 'v%d' % S[r]}")
    unpack = lambda: [t for r in range(2) for k in range(4) for t in
                      (f"v_lshlrev_b32 v{LF+8*r+2*k}, 16, v{LX+4*r+k}", f"v_and_b32 v{LF+8*r+2*k+1}, s{sMask}, v{LX+4*r+k}")]
    fill = unpack()
    for _ in range(3): a(fill.pop(0))
    dpp_reduce(fill)
    for r in range(2): a(f"v_mul_f32 v{S[r]}, 0x3b000000, v{S[r]}")
    for r in range(2): a(f"v_cvt_pk_bf16_f32 v{vN+r}, -v{S[r]}, -v{S[r]}")
    for r in range(2): a(f"v_readlane_b32 s{sMean+2*r}, v{S[r]}, 63")
    for r in range(2): a(f"v_readlane_b32 s{sNeg+2*r}, v{vN+r}, 63")
    for k in range(4):
        for r in range(2):
            a(f"v_pk_add_f32 {vr(vC+8*r+2*k,2)}, {vr(LF+8*r+2*k,2)}, {sr(sMean+2*r,2)} op_sel_hi:[1,0] neg_lo:[0,1] neg_hi:[0,1]")
    for r in range(2): a(f"s_and_b32 s{sNeg+2*r}, s{sNeg+2*r}, s{sMask}")
    for r in range(2): a(f"s_or_b32 s{sNeg+2*r+1}, s{sNeg+2*r}, s{sXcc}")
    for r in range(2):
        a(f"v_pk_mul_f32 {vr(vC+8*r,2)}, {vr(vC+8*r,2)}, {vr(vC+8*r,2)}")
    for k in range(1, 4):
        for r in range(2):
            a(f"v_pk_fma_f32 {vr(vC+8*r,2)}, {vr(vC+8*r+2*k,2)}, {vr(vC+8*r+2*k,2)}, {vr(vC+8*r,2)}")
    for r in range(2): a(f"v_add_f32 v{S[r]}, v{vC+8*r}, v{vC+8*r+1}")
    fill = [f"v_pk_add_f32 {vr(LF+8*r+2*k,2)}, {vr(LF+8*r+2*k,2)}, {sr(sNeg+2*r,2)} op_sel_hi:[1,0]" for k in range(4) for r in range(2)]
    fill += [f"v_cvt_pk_bf16_f32 v{LX+4*r+k}, v{LF+8*r+2*k}, v{LF+8*r+2*k+1}" for k in range(4) for r in range(2)]
    dpp_reduce(fill)
    issue(int(OPT.get('n1', 0)))
    def rnd():
        for r in range(2): a(f"v_cvt_pk_bf16_f32 v{S[r]}, v{S[r]}, v{S[r]}")
        for r in range(2): a(f"v_lshlrev_b32 v{S[r]}, 16, v{S[r]}")
    for r in range(2): a(f"v_mul_f32 v{S[r]}, 0x3b000000, v{S[r]}")
    rnd()
    for r in range(2): a(f"v_add_f32 v{S[r]}, 0x3727c5ac, v{S[r]}")
    rnd()
    for r in range(2): a(f"v_sqrt_f32 v{S[r]}, v{S[r]}")
    rnd()
    for r in range(2): a(f"v_rcp_f32 v{S[r]}, v{S[r]}")
    for t in unpack(): a(t)
    for r in range(2): a(f"v_readlane_b32 s{sR+2*r}, v{S[r]}, 63")
    a(f"s_load_dwordx2 {sr(sTag,2)}, s[24:25], 0")
    for r in range(2):
        for k in range(4):
            a(f"v_pk_mul_f32 {vr(LF+8*r+2*k,2)}, {vr(LF+8*r+2*k,2)}, {sr(sR+2*r,2)} op_sel_hi:[1,0]")
        for k in range(4):
            a(f"v_cvt_pk_bf16_f32 v{LX+4*r+k}, v{LF+8*r+2*k}, v{LF+8*r+2*k+1}")
        a(f"ds_write_b128 v{vSw}, {vr(LX+4*r,4)} offset:{SROW*r}", "stg")
    a(f"""
    v_mov_b32 v{LG}, s{sNeg+1}
    v_mov_b32 v{LG+1}, s{sR}
    v_writelane_b32 v{LG}, s{sNeg+3}, 1
    v_writelane_b32 v{LG+1}, s{sR+2}, 1
    s_mul_i32 s{sXn}, s{sP}, {GS}
    s_lshl_b32 s{sT3}, s{sW}, 12
    s_add_u32 s{sXn}, s{sXn}, s{sT3}
    s_add_u32 s{sXn}, s{sXn}, {XNP}
    s_lshl2_add_u32 s{sSt}, s{sP}, s{sW}
    s_lshl_b32 s{sSt}, s{sSt}, 5
    s_add_u32 s{sSt}, s{sSt}, {ST}
    """)
    issue(int(OPT.get('n2', 7)))
    a.wait(lg=0)
    stamp()

    GROUPS = [("A", 2, 4), ("A", 0, 4), ("B", 1, 3), ("A", 1, 4), ("B", 0, 3), ("B", 2, 3), ("B", 3, 3)]
    LOC = []
    for rg, sl, n in GROUPS:
        for k in range(n):
            LOC.append((rg, sl * (16384 if rg == "A" else 12288) + k * 1024))
    PL2 = list(range(4, 24))
    ploc = lambda p: p if p < 24 else PL2[p - 24]
    SHARED['LOC'] = LOC
    pn = [0]
    def p_next():
        p = pn[0]; pn[0] += 1
        rg, off = LOC[ploc(p)]
        a(f"s_add_u32 m0, s{sLA if rg == 'A' else sLB}, {off}")
        a(f"s_add_u32 s{sT3}, s{sW2}, {8192*p}")
        a(f"buffer_load_dwordx4 v{vW2o}, {W2}, s{sT3} offen lds", f"P{p}")

    wb = lambda s_: WF + 12 * (s_ % 3)
    def tr_pair(s_, ft):
        c, i = divmod(s_, 4)
        for e in range(2):
            a(f"ds_read_b64_tr_b16 {vr(wb(s_)+4*ft+2*e,2)}, v{vWr+i} offset:{(c&3)*12288+e*768+ft*64}", f"wf{s_}")
    def rd_x(c, i):
        a(f"ds_read_b128 {vr(XF+16*(c&1)+4*i,4)}, v{vXr+i} offset:{(c%3)*16384}", f"xf{c}_{i}")
    def open_chunk(c):
        if "cs" in OPT and c in (3, 5): stamp(True)
        a.wait(vm=f"C{c}")
        if c == 0 or ("cs" in OPT and c in (3, 5)): stamp(True)
        a("s_barrier")
        if "cs" in OPT and c: stamp(True)

    open_chunk(0)
    for i in range(4): rd_x(0, i)
    for ft in range(3): tr_pair(0, ft)
    for k in range(4):
        a(f"ds_read_b64_tr_b16 {vr(LF+4*k,2)}, v{vSr} offset:{64*k}", "tr")
    for ft in range(3): tr_pair(1, ft)
    a(f"s_cmp_eq_u32 s{sTag}, 0\ns_cbranch_scc1 G_tagslow\nG_tagok:")
    for k in range(5): a(f"v_mov_b32 v{LF+4*k+2}, s{sTag}\nv_mov_b32 v{LF+4*k+3}, s{sTag+1}")
    a(f"s_mov_b64 exec, 3\nbuffer_store_dwordx4 {vr(LG,4)}, v{vL16}, {WS}, s{sSt} offen sc1\ns_mov_b64 exec, -1")
    XSL = [(0, 1), (0, 2), (1, 0), (1, 2)]
    PS = 99
    def bg_op(c, i, ft):
        s_ = 4 * c + i
        if DQ: issue(1, s_)
        elif s_ >= PS and ft != 1:
            lim = 0 if s_ < 20 else 4 if s_ < 24 else 8 if s_ < 26 else 11 if s_ < 28 else 15 if s_ < 30 else 18 if s_ < 31 else 24
            if pn[0] < lim: p_next()
    def split(dst, src, tmp):
        return [f"v_cvt_pk_bf16_f32 v{tmp}, v{src}, v{src}", f"v_lshlrev_b32 v{tmp}, 16, v{tmp}",
                f"v_sub_f32 v{tmp}, v{src}, v{tmp}", f"v_cvt_pk_bf16_f32 v{dst}, v{src}, v{tmp}"]
    for c in range(8):
        a.comment(f"---- GEMM1 chunk {c}")
        for i in range(4):
            s_ = 4 * c + i
            if i == 2 and c < 7:
                issue(int(OPT.get('flush', 0)), s_ - 1)
                assert not any(t == f'C{c+1}' for t in QT[len(QT)-len(DQ):])
                open_chunk(c + 1)
            a.wait(lg=(f"xf{c}_3", f"wf{s_}"))
            if s_ == 28:
                assert "csw" not in a.lg
                a("s_barrier")
            if s_ == 31: a("s_barrier")
            for ft in range(3):
                cs = i == 0 or c >= 7
                if cs and s_ == 31:
                    a(f"v_mfma_f32_16x16x32_bf16 {vr(CSA+12+4*ft,4)}, {vr(HALF,4)}, {vr(wb(s_)+4*ft,4)}, {vr(CSA+12+4*ft,4)}")
            for ft in range(3):
                cc = "0" if s_ == 0 else vr(ACC1+16*ft, 16)
                a(f"v_mfma_f32_32x32x16_bf16 {vr(ACC1+16*ft,16)}, {vr(wb(s_)+4*ft,4)}, {vr(XF+16*(c&1)+4*i,4)}, {cc}")
                if i == 2 and c < 7:
                    if ft == 0: rd_x(c + 1, 0)
                    rd_x(c + 1, ft + 1)
                if s_ + 2 < 32: tr_pair(s_ + 2, ft)
                if (s_, ft) in XSL:
                    a.wait(lg="tr")
                    k = XSL.index((s_, ft))
                    a(f"buffer_store_dwordx4 {vr(LF+4*k,4)}, v{vL16}, {WS}, s{sXn} offen offset:{1024*k} sc1", "xn")
                else: bg_op(c, i, ft)
                if (i == 0 or c >= 7) and s_ != 31:
                    d = CSA + 4 * ft + (12 if c >= 7 else 0)
                    a(f"v_mfma_f32_16x16x32_bf16 {vr(d,4)}, {vr(HALF,4)}, {vr(wb(s_)+4*ft,4)}, {'0' if s_ in (0, 28) else vr(d,4)}")
                if s_ == 25:
                    for t in split(vCs + ft, CSA + 4 * ft, CSA + 4 * ft + 1): a(t)
                if s_ == 25:
                    for k in range(2):
                        a(f"ds_write2st64_b32 v{vT2}, v{vCs+ft}, v{vCs+ft} offset0:{24*k+4*ft} offset1:{24*k+12+4*ft}", "csw")
                if s_ == 23:
                    for k in range(4): a(f"v_mov_b32 v{CSF+4*ft+k}, 0")
                if s_ == 28:
                    a("s_mov_b32 exec_hi, 0")
                    for k in range(2):
                        a(f"ds_read2st64_b32 {vr(CSF+4*ft+2*k,2)}, v{vT} offset0:{4*ft+2*k} offset1:{4*ft+2*k+1}", "csf")
                    a("s_mov_b32 exec_hi, -1")
                if s_ == 29 and ft == 2:
                    a.wait(vm="st", lg="csf")
                    a(f"""
                    s_mov_b32 s{sCnt}, 0
                    G_stchk:
                    v_cmp_ne_u64 vcc, {sr(sTag,2)}, {vr(vSt+2,2)}
                    v_cmp_ne_u64 s[88:89], {sr(sTag,2)}, {vr(vId+2,2)}
                    v_and_b32 v{vId+1}, 0xffff, v{vId}
                    s_or_b64 vcc, vcc, s[88:89]
                    s_cbranch_vccnz G_stslow
                    G_stok:
                    """)
                if s_ == 30 and ft == 0:
                    a(f"""
                    v_cmp_ne_u32 s[90:91], s{sXcc}, v{vId+1}
                    v_lshrrev_b32 v{vNeg+1}, 16, v{vSt}
                    v_bfi_b32 v{vNeg}, s{sMask}, v{vSt}, v{vNeg+1}
                    v_bfi_b32 v{vNeg+2}, s{sMask}, v{vSt}, v{vNeg+1}
                    """)
                if s_ == 30 and ft == 1:
                    a(f"""
                    v_bfi_b32 v{vNeg+3}, s{sMask}, v{vSt}, v{vNeg+1}
                    v_bfi_b32 v{vNeg+1}, s{sMask}, v{vSt}, v{vNeg+1}
                    v_mul_f32 v{vC2}, s{sL2e}, v{vSt+1}
                    s_or_b32 s{sFar}, s90, {1 if 'forcefar' in OPT else 's91'}
                    v_mov_b32 v{vNon}, s{sTag}
                    v_mov_b32 v{vNon+1}, s{sTag+1}
                    """)
                if s_ == 31:
                    sp = split(CSF + 4 * ft, CSA + 12 + 4 * ft, CSA + 13 + 4 * ft)
                    for t in sp[:3]: a(t)
                    a(f"s_mov_b32 exec_lo, 0\n{sp[3]}\ns_mov_b32 exec_lo, -1")
            if s_ == 23:
                assert not FILL
                a(f"buffer_load_dwordx4 {vr(vSt,4)}, v{vSa}, {WS}, s{sO} offen sc1", "st")
                a(f"buffer_load_dwordx4 {vr(vId,4)}, v{vIa}, {WS}, s{sIa} offen sc1", "st")
    assert not DQ
    stamp()
    for ft in range(3):
        a(f"v_mfma_f32_32x32x16_bf16 {vr(ACC1+16*ft,16)}, {vr(CSF+4*ft,4)}, {vr(vNeg,4)}, {vr(ACC1+16*ft,16)}")
    E1, OB = 208, 224
    def tr_w2(step, tag):
        base = STASH + 8 * (step % 12)
        for j in range(2):
            for e in range(2):
                rg, off = LOC[ploc(2 * step + e)]
                a(f"ds_read_b64_tr_b16 {vr(base+4*j+2*e,2)}, v{vW2r+(0 if rg=='A' else 2)+j} offset:{off}", tag)
    pn[0] = 24
    B9, B10 = int(OPT.get("b9", 1)), int(OPT.get("b10", 6))
    for ft in range(3):
        for j in range(2):
            A0 = ACC1 + 16 * ft + 8 * j
            T0 = E1 + 8 * j
            for k in range(8): a(f"v_mul_f32 v{A0+k}, v{vC2}, v{A0+k}")
            for k in range(8): a(f"v_exp_f32_e64 v{T0+k}, -v{A0+k}")
            if pn[0] < 24: p_next()
            for k in range(8): a(f"v_fma_f32 v{T0+k}, v{T0+k}, s{sL2e}, s{sL2e}")
            for k in range(8): a(f"v_rcp_f32 v{T0+k}, v{T0+k}")
            if pn[0] < 24: p_next()
            for k in range(8): a(f"v_mul_f32 v{A0+k}, v{A0+k}, v{T0+k}")
            for k in range(0, 8, 2): a(f"v_cvt_pk_bf16_f32 v{OB+8*ft+4*j+k//2}, v{A0+k}, v{A0+k+1}")
            a(f"buffer_store_dwordx4 {vr(OB+8*ft+4*j,4)}, v{vL16}, {HS}, s{sHS if ft < 2 else sHS2} offen offset:{1024*((2*ft+j)&3)} {OPT.get('hnt', '')}", "hs")
    stamp()
    a("s_barrier")
    for k in range(12): tr_w2(k, "S")
    vH, vF, vXg, vO, vY, vXl, vR, vP, vYl = 2, 4, 5, 6, 7, 8, 13, 10, 9
    a(f"""
    s_lshl_b32 s{sT}, s{sW}, 3
    s_lshr_b32 s{sT2}, 0x160e0600, s{sT}
    s_and_b32 s{sT2}, s{sT2}, 0xff
    s_lshr_b32 s{sT}, 0x1d150f07, s{sT}
    s_and_b32 s{sT}, s{sT}, 0xff
    v_max_u32 v{vF}, s{sT2}, v{vL}
    v_min_u32 v{vF}, s{sT}, v{vF}
    v_lshlrev_b32 v{vF}, 3, v{vF}
    s_and_b32 s{sT}, s{sW}, 1
    s_mul_i32 s{sT2}, s{sT}, {HROW}
    v_add_u32 v{vH}, s{sT2}, v{vL16}
    s_sub_u32 s{sT2}, {HROW}, s{sT2}
    v_add_u32 v{vH+1}, s{sT2}, v{vL16}
    s_mov_b32 s{sCnt}, 0
    """)
    a.wait(lg=0)
    NPD = int(OPT.get("npd", 4))
    for _ in range(NPD): p_next()
    a(f"s_cmp_lg_u32 s{sFar}, 0\ns_cbranch_scc1 G_far")
    a.wait(vm="hs")
    stamp()
    a(f"s_mov_b64 exec, 1\nbuffer_store_dwordx2 {vr(vNon,2)}, off, {WS}, s{sFl}\nG_pub:\ns_mov_b64 exec, -1")
    a(f"s_lshl_b32 s{sRet}, s{sRT}, 8\ns_add_u32 s{sRet}, s{sRet}, {FH}")
    PI = int(OPT.get("pi", 38))
    def p_upto(n):
        while pn[0] < n:
            if pn[0] == PI: a(f"buffer_load_dwordx2 {vr(vP,2)}, v{vF}, {WS}, s{sRet} offen sc1", "poll")
            p_next()
    p_upto(44)
    if PI >= 44: a(f"buffer_load_dwordx2 {vr(vP,2)}, v{vF}, {WS}, s{sRet} offen sc1", "poll")
    stamp()
    a.wait(vm="poll")
    a(f"G_hchk:\nv_cmp_ne_u64 vcc, {sr(sTag,2)}, {vr(vP,2)}\ns_add_u32 s{sCnt}, s{sCnt}, 1\ns_cbranch_vccnz G_hslow\nG_hok:")
    stamp()
    if STAMPS: a(f"s_lshl_b32 s{sCnt}, s{sCnt}, 16\ns_add_u32 s97, s97, s{sCnt}")
    HS_ = [(i, 1) for i in range(12)] + [(i, j) for i in range(12, 22) for j in (1, 0)] + [(i, 0) for i in range(12)]
    HR, WR = int(OPT.get("hr", 10)), 232
    grp = [None]
    def h_load(n):
        i, j = HS_[n]
        if i // 4 != grp[0]:
            grp[0] = i // 4; a(f"s_add_u32 s{sTx}, s{sHL}, {4096*(i//4)}")
        a(f"buffer_load_dwordx4 {vr(HB+4*(n%HR),4)}, v{vH+j}, {HS}, s{sTx} offen offset:{1024*(i%4)} {OPT.get('hlf', 'sc1').replace('_', ' ')}", f"h{n}")
    for n in range(HR - 1): h_load(n)
    a(f"""
    s_lshl1_add_u32 s{sT2}, s{sRT}, s{sT}
    s_lshr_b32 s{sT}, s{sW}, 1
    s_lshl1_add_u32 s{sCnt}, s{sCG}, s{sT}
    s_lshl_b32 s{sO}, s{sT2}, 15
    s_lshl_b32 s{sT}, s{sCnt}, 6
    s_add_u32 s{sO}, s{sO}, s{sT}
    s_mul_i32 s{sY}, s{sCnt}, {32*GC}
    s_lshl_b32 s{sT}, s{sT2}, 7
    s_add_u32 s{sY}, s{sY}, s{sT}
    s_add_u32 s{sY}, s{sY}, {Y2}
    v_and_b32 v{vT}, 31, v{vL}
    v_lshrrev_b32 v{vT2}, 5, v{vL}
    v_lshlrev_b32 v{vO}, 10, v{vT}
    v_lshl_add_u32 v{vO}, v{vT2}, 4, v{vO}
    v_lshl_add_u32 v{vXl}, v{vT}, 6, s{sLA}
    v_lshl_add_u32 v{vXl}, v{vT2}, 4, v{vXl}
    v_lshlrev_b32 v{vYl}, 3, v{vT2}
    v_sub_u32 v{vF}, v{vT}, v{vYl}
    v_bfe_u32 v{vT}, v{vL}, 2, 2
    v_add_u32 v{vYl}, v{vYl}, v{vT}
    v_lshl_add_u32 v{vYl}, v{vYl}, 7, s{sLA}
    v_bfe_u32 v{vT}, v{vL}, 4, 1
    v_lshl_add_u32 v{vYl}, v{vT}, 6, v{vYl}
    v_and_b32 v{vT}, 3, v{vL}
    v_lshl_add_u32 v{vYl}, v{vT}, 4, v{vYl}
    v_lshrrev_b32 v{vY}, 3, v{vL}
    v_mul_u32_u24 v{vY}, {GC}, v{vY}
    v_and_b32 v{vT}, 7, v{vL}
    v_lshl_add_u32 v{vY}, v{vT}, 4, v{vY}
    v_add_u32 v{vP}, s{sLA}, v{vL16}
    v_lshrrev_b32 v{vXg}, 2, v{vL}
    v_lshlrev_b32 v{vXg}, 10, v{vXg}
    v_and_b32 v{vT}, 3, v{vL}
    v_lshl_add_u32 v{vXg}, v{vT}, 4, v{vXg}
    v_add_u32 v{vR}, s{sLB}, v{vL16}
    """)
    for k in range(1, 4):
        a(f"s_xor_b32 s{sT}, s{sW}, {k}\ns_mulk_i32 s{sT}, 3072\ns_add_u32 s{sT}, s{sT}, {LB0}\nv_add_u32 v{vR+k}, s{sT}, v{vL16}")
    YO = 32768
    YT, YF, XFr, IDN = 232, 240, 248, 24
    XR = 24
    if "touch" in OPT:
        a(f"v_and_b32 v{vT}, 31, v{vL}\nv_mul_u32_u24 v{vT}, {GC}, v{vT}")
        a(f"buffer_load_dword v12, v{vT}, {WS}, s{sY} offen sc1", "yt")
    a(f"v_and_b32 v{vT}, 1, v{vF}\nv_lshlrev_b32 v{vT}, 4, v{vT}\nv_lshlrev_b32 v{vT}, v{vT}, v{vW2o}" if False else
      f"v_and_b32 v{vT}, 1, v{vF}\nv_lshlrev_b32 v{vT}, 4, v{vT}\nv_mov_b32 v11, 0x3f80\nv_lshlrev_b32 v11, v{vT}, v11\nv_ashrrev_i32 v{vF}, 1, v{vF}")
    for k in range(8):
        a(f"v_cmp_eq_u32 s[{88+2*(k&1)}:{89+2*(k&1)}], {8*(k>>2)+(k&3)}, v{vF}")
        if k: a(f"v_cndmask_b32 v{IDN+k-1}, 0, v11, s[{88+2*((k-1)&1)}:{89+2*((k-1)&1)}]")
    a(f"v_cndmask_b32 v{IDN+7}, 0, v11, s[90:91]")
    def y_loads(emit):
        emit(f"s_add_u32 m0, s{sLA}, {YO}")
        for k in range(4):
            emit(f"s_add_u32 s{sT2}, s{sY}, {8*k*GC-1024*k}")
            emit(f"buffer_load_dwordx4 v{vY}, {WS}, s{sT2} offen offset:{1024*k} sc1 lds")
    def y_reads(emit):
        for k in range(4): emit(f"ds_read_b64 {vr(YT+2*k,2)}, v{vP} offset:{YO+1024*k+8}")
        for k in range(4): emit(f"ds_read_b64_tr_b16 {vr(YF+2*k,2)}, v{vYl} offset:{YO+2048*(k>>1)+512*(k&1)}")
    wreg = lambda i: STASH + 8 * i if i < 12 else WR + 8 * (i % 3)
    def w_reads(i, half):
        j = half
        for e in range(2):
            rg, off = LOC[ploc(2 * i + e)]
            a(f"ds_read_b64_tr_b16 {vr(wreg(i)+4*j+2*e,2)}, v{vW2r+(0 if rg=='A' else 2)+j} offset:{off}", f"r{i}")
    started = set()
    def mm(n, jd):
        i, j = HS_[n]; k = 2 * jd + j
        ac = ACC2 + 16 * k
        a(f"v_mfma_f32_32x32x16_bf16 {vr(ac,16)}, {vr(wreg(i)+4*jd,4)}, {vr(HB+4*(n%HR),4)}, {vr(ac,16) if k in started else '0'}")
        started.add(k)
    roff = lambda k, q: (((k - 1) * 4 + q) // 3) * 12288 + (((k - 1) * 4 + q) % 3) * 1024
    def r_write(k, q): a(f"ds_write_b128 v{vR}, {vr(ACC2+16*k+4*q,4)} offset:{roff(k,q)}", "rw")
    def r_read(k, q): a(f"ds_read_b128 {vr(ACC2+16*k+4*q,4)}, v{vR+k} offset:{roff(k,q)}", f"rr{k}")
    YS = int(OPT.get("ys", 34))
    NT = 4
    side = []
    def run_side(c):
        for _ in range(c):
            if side:
                t = side.pop(0)
                if callable(t): t()
                else: a(t)
    for n in range(44 - NT):
        i, j = HS_[n]
        a.wait(vm=f"h{n}", lg=(f"r{i}" if i >= 12 else 0 if n == 0 else None))
        if n == 0 or ("g2" in OPT and n in (12, 24, 32, 36)): stamp(True)
        for jd in range(2):
            mm(n, jd)
            if jd == 0 and n + HR - 1 < 44: h_load(n + HR - 1)
            if n in (8, 10): w_reads(12 + (n - 8) // 2, jd)
            if 12 <= n < 28 and j == 1: w_reads(i + 2, jd)
            if jd == 1 and n == YS:
                y_loads(lambda t: a(t, "yr"))
            if jd == 1 and n == 30:
                a(f"s_mov_b32 m0, s{sLA}\ns_add_u32 s{sT2}, s{sO}, {16384-1024}")
                a(f"buffer_load_dwordx4 v{vXg}, {X}, s{sO} offen lds", "xr")
                a(f"buffer_load_dwordx4 v{vXg}, {X}, s{sT2} offen offset:1024 lds", "xr")
            g = 2 * (n - 32) + jd
            if 0 <= g < 12 and g % 3 != 2:
                w = g - g // 3; r_write(1 if w < 4 else 3, w & 3)
            if g == 12:
                a.wait(vm="xr")
                for q in range(2): a(f"ds_read_b128 {vr(XFr+4*q,4)}, v{vXl} offset:{32*q}", "xl")
            if g == 14:
                a.wait(lg="rw")
                a("s_barrier")
                for q in range(4): r_read(1, q)
            if g == 15:
                for q in range(4): r_read(3, q)
    if "ts" in OPT: stamp()
    side = [lambda: a.wait(lg="rr3")] + [f"v_add_f32 v{ACC2+16+q}, v{ACC2+16+q}, v{ACC2+48+q}" for q in range(16)]
    for q, n in enumerate(range(44 - NT, 44)):
        a.wait(vm=f"h{n}")
        mm(n, 1)
        if q >= 2: run_side(6)
    tail = [lambda n=n: mm(n, 0) for n in range(44 - NT, 44)]
    for src in (XFr, YF):
        for q in range(2):
            tail.append(lambda src=src, q=q: a(f"v_mfma_f32_32x32x16_bf16 {vr(ACC2,16)}, {vr(IDN+4*q,4)}, {vr(src+4*q,4)}, {vr(ACC2,16)}"))
    for q, t in enumerate(tail):
        t()
        if q == 0: run_side(99)
        if 1 <= q <= 4: r_write(2, q - 1)
        if q == 4:
            a.wait(vm="yr")
            y_reads(lambda t: a(t, "yl"))
        if q == 5:
            a.wait(lg="rw")
            a("s_barrier")
            for q2 in range(4): r_read(2, q2)
            a.wait(lg="yl")
            a(f"s_mov_b32 s{sCnt}, 0\nG_ychk:")
            a(f"v_cmp_ne_u64 vcc, {sr(sTag,2)}, {vr(YT,2)}")
            for q2 in range(1, 4): a(f"v_cmp_ne_u64 s[{86+2*q2}:{87+2*q2}], {sr(sTag,2)}, {vr(YT+2*q2,2)}")
            for q2 in range(1, 4): a(f"s_or_b64 vcc, vcc, s[{86+2*q2}:{87+2*q2}]")
            a("s_cbranch_vccnz G_yslow\nG_yok:")
    stamp()
    a.wait(lg="rr2")
    for q in range(16): a(f"v_add_f32 v{ACC2+16+q}, v{ACC2+16+q}, v{ACC2+32+q}")
    for k in range(8):
        a(f"v_pk_add_f32 {vr(ACC2+2*k,2)}, {vr(ACC2+2*k,2)}, {vr(ACC2+16+2*k,2)}")
    for k in range(8):
        a(f"v_cvt_pk_bf16_f32 v{XR+k}, v{ACC2+2*k}, v{ACC2+2*k+1}")
    for q in range(2):
        a(f"v_permlane32_swap_b32 v{XR+4*q}, v{XR+4*q+2}\nv_permlane32_swap_b32 v{XR+4*q+1}, v{XR+4*q+3}")
        a(f"buffer_store_dwordx4 {vr(XR+4*q,4)}, v{vO}, {OUT}, s{sO} offen offset:{32*q} {OPT.get('osf', '').replace('_', ' ')}")
    stamp()
    if STAMPS:
        a("s_waitcnt vmcnt(0)"); stamp()
    if "padev" in OPT:
        a(f"G_pad2:\ns_memrealtime s[98:99]\ns_waitcnt lgkmcnt(0)\ns_sub_u32 s96, s98, s86\ns_cmp_lt_u32 s96, 3000\ns_cbranch_scc1 G_pad2")
    if "padto" in OPT:
        a(f"G_pad:\ns_memrealtime s[98:99]\ns_waitcnt lgkmcnt(0)\ns_sub_u32 s96, s98, s{sTag}\ns_cmp_lt_u32 s96, {OPT['padto']}\ns_cbranch_scc1 G_pad")
    if "dbg" in OPT:
        n = nstamp[0]
        a(f"s_memrealtime s[98:99]\ns_waitcnt lgkmcnt(0)\ns_lshl2_add_u32 s96, s2, s{sW}\ns_cmp_lg_u32 s96, {4*int(OPT['dbg'])}\ns_cbranch_scc1 G_nodbg\ns_mov_b64 exec, 1")
        for i in range(1, n):
            a(f"s_sub_u32 s96, s{60+2*i}, s60\nv_mov_b32 v{vT}, s96\nbuffer_store_dword v{vT}, off, {DBG}, 0 offset:{4+4*i}")
        a(f"s_sub_u32 s96, s98, s{sTag}\nv_mov_b32 v{vT}, s96\nbuffer_store_dword v{vT}, off, {DBG}, 0 offset:60")
        a("G_nodbg:")
    stamp_flush(WS, f"s{sW}", vT, 256)
    a("s_endpgm")
    tag_slow("G", sTag, 24, [64, 192], vNon, sCnt)
    a.raw(f"""G_stslow:
{retry_mark(4)}  s_add_u32 s{sCnt}, s{sCnt}, 1
  s_cmp_ge_u32 s{sCnt}, {SPIN}
  s_cbranch_scc1 G_stok
  buffer_load_dwordx4 {vr(vSt,4)}, v{vSa}, {WS}, s{sO} offen sc1
  buffer_load_dwordx4 {vr(vId,4)}, v{vIa}, {WS}, s{sIa} offen sc1
  s_waitcnt vmcnt(0)
  s_branch G_stchk
G_hslow:
  s_cmp_ge_u32 s{sCnt}, {SPIN}
  s_cbranch_scc1 G_hok
  buffer_load_dwordx2 {vr(vP,2)}, v{vF}, {WS}, s{sRet} offen sc1
  s_waitcnt vmcnt(0)
  s_branch G_hchk
G_yslow:
{retry_mark(8)}  s_add_u32 s{sCnt}, s{sCnt}, 1
  s_cmp_ge_u32 s{sCnt}, {1 if "nossm" in OPT else SPIN}
  s_cbranch_scc1 G_yok""")
    y_loads(lambda t: a.raw("  " + t))
    a.raw("  s_waitcnt vmcnt(0)")
    y_reads(lambda t: a.raw("  " + t))
    a.raw("  s_waitcnt lgkmcnt(0)\n  s_branch G_ychk")
    a.hist = []
    a("G_far:\ns_waitcnt vmcnt(0)")
    for k in range(6):
        a(f"buffer_store_dwordx4 {vr(OB+4*k,4)}, v{vL16}, {HS}, s{sHS if k < 4 else sHS2} offen offset:{1024*(k&3)} sc1")
    a(f"s_waitcnt vmcnt(0)\ns_mov_b64 exec, 1\nbuffer_store_dwordx2 {vr(vNon,2)}, off, {WS}, s{sFl} sc1\ns_branch G_pub")
    a.vm = []; a.lg = []

def ssm_role():
    DBG, WS = "s[8:11]", "s[12:15]"
    sQ, sW, sE, sPar, sT, sT2, sCnt, sB1, sMask = 3, 32, 5, 6, 7, 34, 35, 40, 41
    sLdt, sD, sTag, sU, sXcc = 42, 43, 36, 38, 4
    sMean, sNeg = 44, 48
    vL, LX, LF, vC, LG = 1, 2, 10, 30, 26
    vPar = 44
    vT, vT2, vT3, vT4 = 54, 55, 56, 57
    vNon, vL16, vTab = 52, 60, 61
    SB = 98304
    CB0, UB0, USZ, K0A, FLG, TAB, TSZ, SROW = SB, SB + 33280, 4576, SB + 42432, SB + 42448, SB + 49152, 4096, 1056
    a.hist = []; a.vm = []; a.lg = []
    a(f"""
    s_load_dwordx16 s[16:31], s[0:1], 0
    s_load_dwordx2 s[8:9], s[0:1], 104
    s_load_dwordx2 s[52:53], s[0:1], 64
    s_load_dwordx2 s[92:93], s[0:1], 88
    s_load_dwordx2 s[12:13], s[0:1], 112
    s_memrealtime {sr(sTag,2)}
    s_setprio 3
    s_sub_u32 s{sW}, s{sW}, 4
    v_and_b32 v{vL}, 63, v0
    v_and_b32 v{vT}, 255, v0
    s_lshl_b32 s{sT}, s{sQ}, 9
    v_lshl_add_u32 v{vT3}, v{vT}, 1, s{sT}
    s_lshl2_add_u32 s{sT2}, s{sQ}, s{sW}
    s_lshl_b32 s{sT2}, s{sT2}, 11
    v_lshlrev_b32 v{vL16}, 4, v{vL}
    v_lshl_add_u32 v{vT4}, v{vL}, 6, s{sT2}
    s_lshl_b32 s{sT}, s{sQ}, 2
    """)
    srd(8, 256)
    a("s_waitcnt lgkmcnt(0)")
    if STAMPS: a(f"s_mov_b32 s100, s{sTag}\ns_mov_b32 s97, 0")
    stamp()
    a(f"""
    s_or_b32 s{sTag}, s{sTag}, 1
    v_mov_b32 v{vNon}, s{sTag}
    v_mov_b32 v{vNon+1}, s{sTag+1}
    buffer_store_dwordx2 {vr(vNon,2)}, v{vT4}, {DBG}, 0 offen sc1
    """)
    for k in range(6):
        a(f"global_load_ushort v{vPar+k}, v{vT3}, s[{18+2*k}:{19+2*k}]", "par")
    a(f"s_load_dword s{sLdt}, s[30:31], s{sT}\ns_load_dword s{sD}, s[52:53], s{sT}\ns_setprio 0\ns_branch L_ssm")
    keep = (list(a.vm), nstamp[0])
    yield
    a.hist = []; a.lg = []; a.vm = keep[0]; nstamp[0] = keep[1]
    srd(12, WS_SIZE)
    vSw, vSr = 62, 63
    vOA, vOG, vPb = 50, 51, 59
    a(f"""
    s_lshr_b32 s{sE}, s{sW}, 1
    s_and_b32 s{sPar}, s{sW}, 1
    s_mov_b32 s{sMask}, 0xffff0000
    s_mul_i32 s{sT2}, s{sE}, {USZ}
    s_add_u32 s{sT2}, s{sT2}, {UB0}
    v_lshl_add_u32 v{vT}, v{vL}, 3, s{sT2}
    v_mov_b32 v{vT3}, 0
    v_mov_b32 v{vT4}, 0
    ds_write_b64 v{vT}, {vr(vT3,2)}
    s_lshl2_add_u32 s{sT2}, s{sW}, {FLG}
    v_mov_b32 v58, s{sT2}
    ds_write_b32 v58, v{vT3}
    ds_write_b32 v58, v{vT3} offset:16
    s_lshl_b32 s{sT2}, s{sW}, 12
    s_add_u32 s{sT2}, s{sT2}, {TAB}
    v_add_u32 v{vTab}, s{sT2}, v{vL16}
    v_lshrrev_b32 v{vT}, 4, v{vL}
    v_lshl_add_u32 v{vPb}, v{vT}, 6, s{sT2}
    v_and_b32 v{vT}, 15, v{vL}
    v_lshlrev_b32 v{vOG}, 3, v{vT}
    v_lshlrev_b32 v{vT2}, 2, v{vT}
    v_add_u32 v{vT2}, {512-36}, v{vT2}
    v_cmp_lt_u32 vcc, 8, v{vT}
    v_add_u32 v{vT3}, {1024-96}, v{vOG}
    v_add_u32 v{vT4}, {1536-112}, v{vOG}
    v_cndmask_b32 v{vOA}, v{vT}, v{vT2}, vcc
    v_cmp_lt_u32 vcc, 11, v{vT}
    v_cmp_lt_u32 s[56:57], 13, v{vT}
    v_cvt_f32_u32 v{vOG}, v{vOG}
    v_cndmask_b32 v{vOA}, v{vOA}, v{vT3}, vcc
    v_cndmask_b32 v{vOA}, v{vOA}, v{vT4}, s[56:57]
    v_cvt_f32_u32 v{vOA}, v{vOA}
    """)
    def k_mfma(s_):
        F = 152 + 16 * (s_ & 1)
        for hh in range(2):
            for gt in range(2):
                d = 200 + 8 * hh + 4 * gt
                a(f"v_mfma_f32_16x16x32_bf16 {vr(d,4)}, {vr(F+4*hh,4)}, {vr(F+8+4*gt,4)}, {'0' if s_ == 0 else vr(d,4)}")
    UG = int(OPT.get("ug", 99))
    vUg, vUw, vU, sG = 30, 31, 232, 54
    def u_addr():
        a(f"""
        v_lshrrev_b32 v{vT3}, 2, v{vL}
        v_bfe_u32 v{vT4}, v{vL}, 1, 1
        v_and_b32 v{vT2}, 1, v{vL}
        v_mul_u32_u24 v{vUg}, {GS}, v{vT3}
        v_lshl_add_u32 v{vUg}, v{vT4}, 6, v{vUg}
        v_lshl_add_u32 v{vUg}, v{vT2}, 4, v{vUg}
        v_mul_u32_u24 v{vUw}, {USZ}, v{vT2}
        v_lshl_add_u32 v{vUw}, v{vT3}, 4, v{vUw}
        v_lshl_add_u32 v{vUw}, v{vT4}, 3, v{vUw}
        s_lshl_b32 s{sT}, s{sW}, 10
        s_add_u32 s{sT}, s{sT}, {UB0+480}
        v_add_u32 v{vUw}, s{sT}, v{vUw}
        s_mul_i32 s{sG}, s{sW}, {64*GS}
        s_lshr_b32 s{sT}, s{sQ}, 1
        s_lshl_b32 s{sT}, s{sT}, 7
        s_add_u32 s{sG}, s{sG}, s{sT}
        s_and_b32 s{sT}, s{sQ}, 1
        s_lshl_b32 s{sT}, s{sT}, 5
        s_add_u32 s{sG}, s{sG}, s{sT}
        s_add_u32 s{sG}, s{sG}, {XNP}
        """)
    def u_loads(emit, ks=range(4)):
        emit("s_setprio 3")
        for k in ks:
            emit(f"s_add_u32 s{sG+1}, s{sG}, {k*16*GS}")
            emit(f"buffer_load_dwordx4 {vr(vU+4*k,4)}, v{vUg}, {WS}, s{sG+1} offen sc1")
        emit("s_setprio 0")
    u_addr()
    W2 = "s[92:95]"
    vW2o, vTp, sW2, sLA, sLB, sTp = 62, 63, 16, 17, 18, 19
    srd(92, 1376 * 1024)
    a(f"""
    v_lshrrev_b32 v{vT}, 3, v{vL}
    v_lshlrev_b32 v{vT}, 10, v{vT}
    v_bfe_u32 v{vT2}, v{vL}, 4, 1
    v_lshlrev_b32 v{vT3}, 2, v{vT2}
    v_xor_b32 v{vT3}, v{vT3}, v{vL}
    v_and_b32 v{vT3}, 7, v{vT3}
    v_lshl_add_u32 v{vW2o}, v{vT3}, 4, v{vT}
    v_min_u32 v{vTp}, 43, v{vL}
    v_lshlrev_b32 v{vTp}, 7, v{vTp}
    s_mul_i32 s{sW2}, s{sW}, {352*1024}
    s_and_b32 s{sTp}, s{sQ}, 31
    s_mulk_i32 s{sTp}, 5632
    s_add_u32 s{sTp}, s{sTp}, s{sW2}
    s_bfe_u32 s{sT}, s{sQ}, 0x30001
    s_lshl_b32 s{sT}, s{sT}, 7
    s_add_u32 s{sW2}, s{sW2}, s{sT}
    s_lshl_b32 s{sLA}, s{sW}, 12
    s_mul_i32 s{sLB}, s{sW}, 3072
    s_add_u32 s{sLB}, s{sLB}, 49152
    """)
    vXw, vXr_, vK, vZ, vAa, vBa, vUa, vBp, vPr, vK0, vCb = 32, 33, 34, 35, 36, 37, 38, 39, 40, 41, 42
    a(f"""
    v_lshrrev_b32 v{vT2}, 4, v{vL}
    v_and_b32 v{vT3}, 15, v{vL}
    s_lshl_b32 s{sT2}, s{sW}, 12
    s_add_u32 s{sT2}, s{sT2}, {TAB}
    v_lshl_add_u32 v{vXw}, v{vT3}, 4, s{sT2}
    v_lshl_add_u32 v{vXw}, v{vT2}, 10, v{vXw}
    s_lshl_b32 s{sT}, s{sE}, 13
    s_add_u32 s{sT}, s{sT}, {TAB}
    v_add_u32 v{vXr_}, s{sT}, v{vL16}
    s_xor_b32 s{sT2}, s{sT2}, 4096
    v_add_u32 v{vPr}, s{sT2}, v{vL16}
    v_xor_b32 v27, 4, v58
    s_mul_i32 s{sT}, s{sE}, {USZ}
    s_add_u32 s{sT}, s{sT}, {UB0+256}
    s_lshl_b32 s{sT2}, s{sPar}, 8
    v_lshl_add_u32 v{vBa}, v{vT3}, 5, s{sT}
    v_lshl_add_u32 v{vUa}, v{vT2}, 3, v{vBa}
    v_lshlrev_b32 v{vT3}, 4, v{vT2}
    v_add_u32 v{vBa}, v{vT3}, v{vBa}
    v_subrev_u32 v{vBa}, s{sT2}, v{vBa}
    v_bfe_u32 v{vT2}, v{vL}, 2, 2
    v_sub_u32 v{vT4}, 0, v{vT2}
    v_and_b32 v{vT4}, 3, v{vT4}
    v_mul_u32_u24 v{vAa}, 4160, v{vT4}
    v_min_u32 v{vT2}, 1, v{vT2}
    v_lshlrev_b32 v{vT2}, 3, v{vT2}
    v_sub_u32 v{vAa}, v{vAa}, v{vT2}
    v_sub_u32 v{vAa}, v{vAa}, v{vT3}
    v_and_b32 v{vT2}, 3, v{vL}
    v_lshl_add_u32 v{vAa}, v{vT2}, 3, v{vAa}
    s_mul_i32 s{sT}, s{sE}, 16640
    s_add_u32 s{sT}, s{sT}, {CB0}
    v_mov_b32 v{vCb}, s{sT}
    s_add_u32 s{sT2}, s{sT2}, s{sT}
    s_add_u32 s{sT2}, s{sT2}, {32+32-8}
    v_add_u32 v{vAa}, s{sT2}, v{vAa}
    v_lshrrev_b32 v{vT3}, 2, v{vL}
    v_lshl_add_u32 v{vBp}, v{vT2}, 4, v{vT3}
    v_lshlrev_b32 v{vBp}, 2, v{vBp}
    s_lshl_b32 s{sT2}, s{sPar}, 11
    s_add_u32 s{sT2}, s{sT2}, s{sT}
    s_add_u32 s{sT2}, s{sT2}, 32
    v_add_u32 v{vK}, s{sT2}, v{vL16}
    v_bfe_u32 v{vZ}, v{vL}, 3, 2
    v_mul_u32_u24 v{vZ}, 4160, v{vZ}
    v_and_b32 v{vT4}, 7, v{vL}
    v_lshl_add_u32 v{vZ}, v{vT4}, 2, v{vZ}
    v_add_u32 v{vZ}, s{sT}, v{vZ}
    s_lshl2_add_u32 s{sT}, s{sE}, {K0A}
    v_mov_b32 v{vK0}, s{sT}
    v_and_b32 v{vT4}, 1, v{vL}
    v_cmp_eq_u32 s[58:59], 1, v{vT4}
    v_cmp_le_u32 s[56:57], 32, v{vL}
    """)
    def piece(p):
        rg, off = SHARED['LOC'][p]
        a(f"s_add_u32 m0, s{sLA if rg == 'A' else sLB}, {off}\ns_add_u32 s44, s{sW2}, {8192*p}")
        a(f"buffer_load_dwordx4 v{vW2o}, {W2}, s44 offen lds", "P")
    pn = [0]
    PE = int(OPT.get("pe", 0))
    def pieces(n):
        while pn[0] < n: piece(pn[0]); pn[0] += 1
    def touch(half):
        a(f"s_add_u32 s44, s{sTp}, {half*176*1024}")
        a(f"buffer_load_dword v29, v{vTp}, {W2}, s44 offen", "tp")
    TP0, TP1 = int(OPT.get("tp0", 6)), int(OPT.get("tp1", 8))
    PR, PB, FR, KT, KA = 64, 72, 152, 200, 216
    a("s_waitcnt lgkmcnt(0)")
    a.lg = []
    BP = int(OPT.get("bp", 260))
    NKB = int(OPT.get("nkb", 8))
    a.metro = ([int(OPT.get("bb0", 800)), int(OPT.get("b01", 250))] + [int(OPT.get("bq", 400))] * 3 + [BP] * 3 + [BP // 2, 3 * BP // 4])[:NKB]
    a.cost = 0
    uq = list(range(4))
    def on_bar(left):
        nb = NKB - 1 - left
        if nb in (0, 2, 5): stamp()
        if nb == TP0: touch(0)
        if nb == TP1: touch(1)
        if nb >= 6: pieces(min(PE, {6: 4, 7: 11}.get(nb, 15)))
        if nb >= UG:
            for _ in range(int(OPT.get("un", 2))):
                if uq: u_loads(lambda t: a(t, "u"), [uq.pop(0)])
    a.on_bar = on_bar
    a(f"""
    s_lshl_b32 s{sT}, s{sLdt}, 16
    s_and_b32 s{sT2}, s{sLdt}, s{sMask}
    s_cmp_eq_u32 s{sE}, 0
    s_cselect_b32 s{sT}, s{sT}, s{sT2}
    v_mov_b32 v{vT}, {LOG2E:#x}
    v_mul_f32 v{vT}, s{sT}, v{vT}
    v_exp_f32 v{vT}, v{vT}
    """)
    a.wait(vm="par")
    stamp()
    for k in range(6): a(f"v_lshlrev_b32 v{vPar+k}, 16, v{vPar+k}")
    TM = 136
    a(f"""
    v_cvt_pk_bf16_f32 v{vT}, v{vT}, v{vT}
    v_lshlrev_b32 v{vT}, 16, v{vT}
    v_mul_f32 v{PR}, v{vPar}, v{vT}
    v_mul_f32 v{PR+1}, v{vPar+1}, v{vT}
    v_mul_f32 v{vPar+2}, v{vPar+2}, v{vT}
    v_mul_f32 v{vPar+3}, v{vPar+3}, v{vT}
    v_mul_f32 v{PR}, {LOG2E:#x}, v{PR}
    v_mul_f32 v{PR+1}, 0.15915494, v{PR+1}
    v_rndne_f32 v{vT}, v{PR+1}
    v_sub_f32 v{PR+1}, v{PR+1}, v{vT}
    """)
    cmul(PR + 2, vPar + 4, vPar + 2)
    for i, l in enumerate((128, 256)):
        a(f"v_mul_f32 v{TM+4*i}, {fl(l)}, v{PR}\nv_mul_f32 v{TM+4*i+1}, {fl(l)}, v{PR+1}")
    for i in range(2): a(f"v_fract_f32 v{TM+4*i+1}, v{TM+4*i+1}\nv_exp_f32 v{TM+4*i}, v{TM+4*i}")
    for i in range(2): a(f"v_cos_f32 v{TM+4*i+2}, v{TM+4*i+1}\nv_sin_f32 v{TM+4*i+3}, v{TM+4*i+1}")
    a(f"ds_write_b128 v{vTab}, {vr(PR,4)}", "pw")
    a(f"""
    v_mul_f32 v{TM+2}, v{TM+2}, v{TM}
    v_mul_f32 v{TM+3}, v{TM+3}, v{TM}
    v_mul_f32 v{PR+6}, v{TM+6}, v{TM+4}
    v_mul_f32_e64 v{PR+7}, -v{TM+7}, v{TM+4}
    """)
    cmul(PR + 4, PR + 2, TM + 2)
    a(f"ds_write_b128 v{vTab}, {vr(PR+4,4)} offset:1024", "pw")
    def p_reads(s_):
        for j in range(4):
            for k in range(2):
                a(f"ds_read_b128 {vr(PB+32*(s_&1)+8*j+4*k,4)}, v{vPb} offset:{256*s_+16*j+1024*k}", f"pb{s_}")
    p_reads(0)
    for s_ in range(4):
        if s_ < 3: p_reads(s_ + 1)
        a.wait(lg=f"pb{s_}")
        if s_ == 3: a(f"s_load_dwordx2 {sr(sTag,2)}, s[8:9], 128")
        F = FR + 16 * (s_ & 1)
        for jp in range(2):
            js = (2 * jp, 2 * jp + 1)
            P = lambda j: PB + 32 * (s_ & 1) + 8 * j
            T = lambda j, w_: TM + 8 * (j & 1) + 4 * w_
            for j in js:
                for w_, o in enumerate((vOA, vOG)):
                    a(f"v_mul_f32 v{T(j,w_)}, v{P(j)}, v{o}\nv_mul_f32 v{T(j,w_)+1}, v{P(j)+1}, v{o}")
            for j in js:
                a(f"v_fract_f32 v{T(j,0)+1}, v{T(j,0)+1}")
                for w_ in range(2): a(f"v_exp_f32 v{T(j,w_)}, v{T(j,w_)}")
            for j in js:
                for w_ in range(2):
                    a(f"v_cos_f32 v{T(j,w_)+2}, v{T(j,w_)+1}\nv_sin_f32 v{T(j,w_)+3}, v{T(j,w_)+1}")
            for j in js:
                a(f"v_mul_f32 v{T(j,0)+2}, v{T(j,0)+2}, v{T(j,0)}\nv_mul_f32_e64 v{T(j,0)+3}, -v{T(j,0)+3}, v{T(j,0)}")
                a(f"v_mul_f32 v{T(j,1)+2}, v{T(j,1)+2}, v{T(j,1)}\nv_mul_f32 v{T(j,1)+3}, v{T(j,1)+3}, v{T(j,1)}")
            for j in js:
                a(f"v_cvt_pk_bf16_f32 v{F+j}, v{T(j,0)+2}, v{T(j,0)+3}")
                cmul(T(j, 0), T(j, 0) + 2, P(j) + 6)
                cmul(T(j, 1), T(j, 1) + 2, P(j) + 2)
                a(f"v_cvt_pk_bf16_f32 v{F+4+j}, v{T(j,0)}, v{T(j,0)+1}")
                cmul(T(j, 0) + 2, T(j, 1) + 2, P(j) + 4)
                a(f"v_cvt_pk_bf16_f32 v{F+8+j}, v{T(j,1)}, v{T(j,1)+1}")
                a(f"v_cvt_pk_bf16_f32 v{F+12+j}, v{T(j,0)+2}, v{T(j,0)+3}")
            if jp == 0 and s_ > 0: k_mfma(s_ - 1)
    k_mfma(3)
    sys.stderr.write(f"metronome left {a.metro} cost {a.cost}\n")
    while a.metro: a.tick()
    a.metro = None
    stamp()
    a(f"s_setprio {OPT.get('xprio', 0)}")
    for t in range(4): a(f"ds_write_b128 v{vXw}, {vr(KT+4*t,4)} offset:{256*t}")
    if NKB == 10: a("ds_write_b32 v58, v58 offset:16")
    a(f"s_waitcnt lgkmcnt(0)\ns_cmp_eq_u32 s{sTag}, 0\ns_cbranch_scc1 S_tagslow\nS_tagok:")
    stamp()
    if NKB < 10:
        a("s_barrier")
        pieces(min(PE, {6: 4, 7: 11}.get(NKB, 15)))
        if TP1 == NKB: a(f"s_add_u32 s44, s{sTp}, {176*1024}\nbuffer_load_dword v29, v{vTp}, {W2}, s44 offen")
    else:
        a("""
        S_xw:
        ds_read_b32 v28, v27 offset:16
        s_waitcnt lgkmcnt(0)
        v_readfirstlane_b32 s44, v28
        s_cmp_eq_u32 s44, 0
        s_cbranch_scc1 S_xw
        """)
    stamp()
    NREST = max(0, 10 - NKB - 2)
    a(f"s_cmp_lg_u32 s{sPar}, 0\ns_cbranch_scc1 S_par1")
    KP = 64
    PK = 88
    K = lambda i: KA + i
    cnt = [0]
    CBAR = [int(x) for x in OPT.get('cbar', '2,5,6,7').split(',')]
    def packs(run, k):
        for cp in range(4):
            for j in range(4): a(f"v_cvt_pk_bf16_f32 v{PK+16*run+4*cp+j}, v{k[cp+2*j]}, v{k[cp+2*j+1]}")
            if cnt[0] in CBAR[:NREST]: a("s_barrier")
            cnt[0] += 1
            a(f"ds_write_b128 v{vK}, {vr(PK+16*run+4*cp,4)} offset:{4160*cp+1024*run}")
    hist0 = list(a.hist)
    for q in range(3):
        a(f"ds_read_b128 {vr(KA+4*q,4)}, v{vXr_} offset:{1024*q}\nds_read_b128 {vr(KP+4*q,4)}, v{vXr_} offset:{TSZ+1024*q}")
    a(f"""
    v_mov_b32 v{vT4}, 0
    ds_write_b32 v{vZ}, v{vT4}
    s_waitcnt lgkmcnt(1)
    """)
    for j in range(12): a(f"v_add_f32 v{KA+j}, v{KA+j}, v{KP+j}")
    a(f"""
    v_cndmask_b32 v{K(1)}, v{K(1)}, v{K(0)}, s[56:57]
    v_cndmask_b32 v{K(3)}, v{K(3)}, v{K(4)}, s[56:57]
    v_cndmask_b32 v{K(5)}, v{K(5)}, v{K(4)}, s[56:57]
    v_cndmask_b32 v{K(7)}, v{K(7)}, v{K(8)}, s[56:57]
    v_mov_b32 v{K(12)}, v{K(8)}
    v_mov_b32 v{K(13)}, v{K(8)}
    s_mov_b64 exec, 1
    ds_write_b32 v{vK0}, v{K(0)}
    v_mov_b32 v{K(0)}, 0
    s_mov_b64 exec, -1
    v_mov_b32_dpp v{K(12)}, v{K(1)} wave_shl:1 row_mask:0xf bank_mask:0xf
    v_mov_b32_dpp v{K(13)}, v{K(2)} wave_shl:1 row_mask:0xf bank_mask:0xf
    """)
    packs(1, [K(9)] * 3 + [K(10)] * 3 + [K(11)] * 5)
    packs(0, [K(i) for i in range(9)] + [K(12), K(13)])
    a(f"""
    s_mov_b64 exec, 1
    ds_write_b32 v{vCb}, v{PK} offset:{2*4160+28}
    ds_write_b32 v{vCb}, v{PK+4} offset:{3*4160+28}
    s_mov_b64 exec, -1
    s_branch S_parj
    S_par1:
    """)
    a.hist = hist0; cnt[0] = 0
    a(f"ds_read_b128 {vr(KA+12,4)}, v{vXr_} offset:3072\nds_read_b128 {vr(KP,4)}, v{vXr_} offset:{TSZ+3072}\ns_waitcnt lgkmcnt(0)")
    for j in range(4): a(f"v_add_f32 v{KA+12+j}, v{KA+12+j}, v{KP+j}")
    a(f"v_cndmask_b32 v{K(0)}, v{K(12)}, v{K(13)}, s[58:59]\nv_cndmask_b32 v{K(1)}, v{K(14)}, v{K(15)}, s[58:59]")
    packs(0, [K(12)] * 4 + [K(0)] + [K(13)] * 6)
    packs(1, [K(14)] * 4 + [K(1)] + [K(15)] * 6)
    a("S_parj:")
    a.lg = []
    a(f"""
    s_lshl_b32 s{sT}, s{sD}, 16
    s_and_b32 s{sT2}, s{sD}, s{sMask}
    s_cmp_eq_u32 s{sE}, 0
    s_cselect_b32 s{sD}, s{sT}, s{sT2}
    s_lshl1_add_u32 s{sT}, s{sQ}, s{sE}
    s_mul_i32 s{sT}, s{sT}, {GC}
    s_add_u32 s{sT}, s{sT}, {Y2}
    s_add_u32 s{sT2}, s{sT}, 4096
    s_mov_b32 s{sCnt}, 0
    """)
    AS, BS, YA, OV, UU, KD = [64, 128], [96, 160], 192, 10, 2, 26
    for k in range(4): a(f"v_mov_b32 v{OV+4*k+2}, s{sTag}\nv_mov_b32 v{OV+4*k+3}, s{sTag+1}")
    stamp()
    a("s_barrier")
    while uq: u_loads(lambda t: a(t, "u"), [uq.pop(0)])
    pieces(24)
    a.wait(vm="u")
    a("S_uchk:")
    a(f"v_cmp_ne_u64 vcc, {sr(sTag,2)}, {vr(vU+2,2)}")
    for k in range(1, 4): a(f"v_cmp_ne_u64 s[{42+2*k}:{43+2*k}], {sr(sTag,2)}, {vr(vU+4*k+2,2)}")
    for k in range(1, 4): a(f"s_or_b64 vcc, vcc, s[{42+2*k}:{43+2*k}]")
    a(f"s_cbranch_vccnz S_uslow\nS_uok:\ns_mov_b32 s{sCnt}, 0")
    stamp()
    for k in range(4): a(f"ds_write_b64 v{vUw}, {vr(vU+4*k,2)} offset:{256*k}")
    a(f"s_waitcnt vmcnt(0) lgkmcnt(0)\ns_setprio {OPT.get('cprio', 1)}\ns_barrier")
    a.vm = []
    a.lg = []
    stamp()
    def reads(rho):
        s_ = rho & 1; L = []
        for j in range(8):
            L.append((f"ds_read_b128 {vr(BS[s_]+4*j,4)}, v{vBa} offset:{512*j+64*(3-rho)}", f"f{rho}_{j}"))
            L.append((f"ds_read_b64_tr_b16 {vr(AS[s_]+4*j,2)}, v{vAa} offset:{64*(8*j+rho)+8}", f"f{rho}_{j}"))
            L.append((f"ds_read_b64_tr_b16 {vr(AS[s_]+4*j+2,2)}, v{vAa} offset:{64*(8*j+rho)}", f"f{rho}_{j}"))
        return L
    for t, tag in reads(0): a(t, tag)
    first = [True] * 8
    def cm(rho, p, q):
        a.wait(lg=f"f{rho}_{max(p,q)}")
        ct = p + q; s_ = rho & 1
        a(f"v_mfma_f32_16x16x32_bf16 {vr(YA+4*ct,4)}, {vr(AS[s_]+4*p,4)}, {vr(BS[s_]+4*q,4)}, {'0' if first[ct] else vr(YA+4*ct,4)}")
        first[ct] = False
    for rho in range(3):
        if rho == int(OPT.get("cp3", 2)): a("s_setprio 3")
        nxt = reads(rho + 1)
        for n, (p, q) in enumerate(sorted([(p, q) for p in range(8) for q in range(8) if p + q <= 7], key=lambda x: max(x))):
            cm(rho, p, q)
            if n >= 8 and nxt:
                t, tag = nxt.pop(0); a(t, tag)
        assert not nxt
    a(f"s_cmp_lg_u32 s{sPar}, 0\ns_cbranch_scc1 S_conv1")
    keep = (list(a.hist), list(a.lg), nstamp[0])
    ZB, PB_ = 64, 80
    for par, (KEEP, SEND) in enumerate((((0, 3, 4, 7), (1, 2, 5, 6)), ((1, 2, 5, 6), (0, 3, 4, 7)))):
        if par: a("S_conv1:")
        a.hist, a.lg, nstamp[0] = list(keep[0]), list(keep[1]), keep[2]
        side = [lambda: a(f"ds_read_b32 v{KD}, v{vK0}", "uu")]
        side += [lambda k=k, ct=ct: a(f"ds_read_b64 {vr(UU+2*k,2)}, v{vUa} offset:{480-256+512*ct}", "uu") for k, ct in enumerate(KEEP)]
        side += [None] * 5
        side += [lambda: (a.wait(lg="uu"), a(f"v_add_f32 v{KD}, s{sD}, v{KD}"))]
        side += [lambda j=j: a(f"v_lshlrev_b32 v{ZB+2*j}, 16, v{UU+j}\nv_and_b32 v{ZB+2*j+1}, s{sMask}, v{UU+j}") for j in range(8)]
        order = [(p, ct - p) for ct in SEND + KEEP for p in range(ct + 1)]
        ends = {}
        for n, (p, q) in enumerate(order): ends[p + q] = n
        wq = list(SEND)
        for n, (p, q) in enumerate(order):
            cm(3, p, q)
            if wq and n >= ends[wq[0]] + 5:
                ct = wq.pop(0); a(f"ds_write_b128 v{vTab}, {vr(YA+4*ct,4)} offset:{1024*SEND.index(ct)}", "sw")
                if not wq: a(f"ds_write_b32 v58, v58", "sw")
            elif side:
                t = side.pop(0)
                if t: t()
            if n == 31:
                assert not wq and not side
                a("ds_read_b32 v28, v27", "pr")
                for k in range(4): a(f"ds_read_b128 {vr(PB_+4*k,4)}, v{vPr} offset:{1024*k}", "pr")
        stamp()
        a.wait(lg=0)
        a(f"""
        v_cmp_eq_u32 vcc, 0, v28
        s_cbranch_vccz S_pok{par}
        S_pw{par}:
        ds_read_b32 v28, v27
        """)
        for k in range(4): a(f"ds_read_b128 {vr(PB_+4*k,4)}, v{vPr} offset:{1024*k}")
        a(f"""
        s_waitcnt lgkmcnt(0)
        v_cmp_eq_u32 vcc, 0, v28
        s_cbranch_vccnz S_pw{par}
        S_pok{par}:
        """)
        a.lg = []
        for j in range(16): a(f"v_fmac_f32 v{PB_+j}, v{KD}, v{ZB+j}")
        a("s_setprio 3")
        for k, ct in enumerate(KEEP):
            for j in range(4): a(f"v_add_f32 v{PB_+4*k+j}, v{PB_+4*k+j}, v{YA+4*ct+j}")
            for j in range(2): a(f"v_cvt_pk_bf16_f32 v{UU+2*k+j}, v{PB_+4*k+2*j}, v{PB_+4*k+2*j+1}")
            for j in range(2): a(f"ds_bpermute_b32 v{OV+4*k+j}, v{vBp}, v{UU+2*k+j}", f"bp{k}")
        for k, ct in enumerate(KEEP):
            a.wait(lg=f"bp{k}")
            a(f"buffer_store_dwordx4 {vr(OV+4*k,4)}, v{vL16}, {WS}, s{sT if ct < 4 else sT2} offen offset:{1024*(ct&3)} sc1")
        if par == 0: a("s_branch S_done")
    a("S_done:")
    stamp()
    if STAMPS:
        a("s_waitcnt vmcnt(0)"); stamp()
    if "wb" in OPT:
        a(f"s_lshr_b32 s{sT}, s2, 3\ns_or_b32 s{sT}, s{sT}, s{sW}\ns_cmp_lg_u32 s{sT}, 0\ns_cbranch_scc1 S_nowb\nbuffer_wbl2 sc1\nS_nowb:")
    stamp_flush(WS, f"s{sW}", vT)
    a("s_endpgm")
    tag_slow("S", sTag, 8, [192], vNon, sCnt)
    a.raw(f"""S_uslow:
{retry_mark(4)}  s_add_u32 s{sCnt}, s{sCnt}, 1
  s_cmp_ge_u32 s{sCnt}, {SPIN}
  s_cbranch_scc1 S_uok
  s_sleep 4""")
    u_loads(lambda t: a.raw("  " + t))
    a.raw("  s_waitcnt vmcnt(0)\n  s_branch S_uchk")

hdr = open("cdna_kernels/" + NAME + ".s.ref").read().split("\n")
top = [l for l in hdr if l.startswith(";") and "@launch" not in l][:16]
a.raw("\n".join(top))
a.raw("; @launch grid=(256,1,1) block=(512,1,1) lds=163840")
a.raw(f""".amdgcn_target "amdgcn-amd-amdhsa--gfx950"
.text
.globl {NAME}_kernel
.p2align 8
.type {NAME}_kernel,@function
{NAME}_kernel:""")
stamp()
NST[0] = 14
a(f"""
v_lshrrev_b32 v1, 6, v0
s_cmp_ge_u32 s2, 256
s_cbranch_scc1 L_exit
v_readfirstlane_b32 s32, v1
s_and_b32 s3, s2, 7
s_lshl_b32 s3, s3, 5
s_lshr_b32 s96, s2, 3
s_add_u32 s3, s3, s96
s_cmp_lt_u32 s32, 4
s_cbranch_scc1 L_gemm
""")
if "nocpf" not in OPT:
    a(f"""
    s_getpc_b64 s[94:95]
    s_lshl_b32 s96, s96, 10
    v_and_b32 v255, 7, v0
    v_lshl_add_u32 v255, v255, 7, s96
    v_min_u32 v255, L_exit-{NAME}_kernel-128, v255
    global_load_dword v254, v255, s[94:95]
    """)
EV[1] = False
ssm = ssm_role()
next(ssm)
EV[1] = True
a("L_gemm:")
a.hist = []; a.vm = []; a.lg = []
if STAMPS: nstamp[0] = 1
gemm_role()
a.raw(".p2align 6")
a("L_ssm:")
NST[0] = 16
EV[1] = False
for _ in ssm: pass
a("L_exit:\ns_endpgm")
a.raw(f""".section .rodata,"a"
.p2align 6
.amdhsa_kernel {NAME}_kernel
  .amdhsa_next_free_vgpr 256
  .amdhsa_next_free_sgpr 102
  .amdhsa_accum_offset 256
  .amdhsa_group_segment_fixed_size 0
  .amdhsa_kernarg_size 120
  .amdhsa_user_sgpr_count 2
  .amdhsa_user_sgpr_kernarg_segment_ptr 1
  .amdhsa_system_sgpr_workgroup_id_x 1
.end_amdhsa_kernel""")
sys.stdout.write(a.text())
sys.stderr.write(f"nops inserted: {a.nops}\n")
```

```python
import sys, struct
from asmlib import Asm, vr, sr

NAME = "parallel_sum__ssm_conv_s4__dense_activation_silu__prompt"
OPT = {x.split("=")[0][2:]: (x.split("=")[1] if "=" in x else "1") for x in sys.argv[1:] if x.startswith("--")}
STAMPS = "stamps" in OPT
SPIN = int(OPT.get("spin", 4000))
PLF = OPT.get("plf", "sc1").replace("_", " ")
FSF = OPT.get("fsf", "sc1").replace("_", " ")
M1, M2 = OPT.get("m1", "81"), OPT.get("m2", "81")
LOCAL = M1 == "81" and M2 == "81" and "nolocal" not in OPT
HSF = "" if LOCAL else "sc1"

HROW = 88 * 1024
H_SIZE = 64 * HROW
ST = 0x580000
FH = 0x590000
GS = 18432
GC = 9216
XNP = 0x600000
XS = 9216
FX = 0x5A0000
FG = 0x5B0000
Y2 = 0xA80000
WS_SIZE = 0x1000000
STAMP_OFF = 0xF80000
LOG2E = 0x3fb8aa3b
fl = lambda x: "0x%08x" % struct.unpack("<I", struct.pack("<f", x))[0]

a = Asm()
SHARED = {}
nstamp = [0]
EV = [0, True]
NST = [16]
def stamp(force=False):
    if "padev" in OPT and EV[1]:
        if EV[0] == int(OPT["padev"]): a("s_memrealtime s[86:87]")
        EV[0] += 1
    if STAMPS and nstamp[0] < NST[0] and (force or ("cs" not in OPT and "g2" not in OPT and "ss" not in OPT) or nstamp[0] in (0, 13) or ("g2" in OPT and nstamp[0] >= 7)):
        i = nstamp[0]; nstamp[0] += 1
        a(f"s_memtime s[{60+2*i}:{61+2*i}]")
def stamp_flush(wsrd, wave_s, vt, row=0):
    if not STAMPS: return
    n = nstamp[0]
    a("s_memrealtime s[98:99]")
    a("s_waitcnt lgkmcnt(0)")
    a(f"s_lshl_b32 s96, s2, 2\ns_add_u32 s96, s96, {wave_s}\ns_lshl_b32 s96, s96, 7\ns_add_u32 s96, s96, {STAMP_OFF+row*512}")
    a("s_mov_b64 exec, 1")
    for i in range(n):
        a(f"v_mov_b32 v{vt}, s{60+2*i}")
        a(f"buffer_store_dword v{vt}, off, {wsrd}, s96 offset:{4*i}")
    a(f"v_mov_b32 v{vt}, s97\nbuffer_store_dword v{vt}, off, {wsrd}, s96 offset:116")
    a(f"v_mov_b32 v{vt}, s100\nbuffer_store_dword v{vt}, off, {wsrd}, s96 offset:120")
    a(f"v_mov_b32 v{vt}, s98\nbuffer_store_dword v{vt}, off, {wsrd}, s96 offset:124")
    nstamp[0] = 0
def retry_mark(bit):
    return f"  s_add_u32 s97, s97, {1 << bit}\n" if STAMPS else ""

def srd(base, size):
    a(f"s_mov_b32 s{base+2}, {size}\ns_mov_b32 s{base+3}, 0x20000")

def cmul(d, x, y):
    a(f"v_mul_f32 v{d}, v{x+1}, v{y+1}")
    a(f"v_mul_f32 v{d+1}, v{x+1}, v{y}")
    a(f"v_fma_f32 v{d}, v{x}, v{y}, -v{d}")
    a(f"v_fmac_f32 v{d+1}, v{x}, v{y+1}")

def tag_slow(pfx, sTag, dbg, offs, vt, sCnt):
    a.raw(f"{pfx}_tagslow:")
    a.raw(retry_mark(0).rstrip("\n"))
    for o in offs:
        a.raw(f"  s_load_dwordx2 {sr(sTag,2)}, s[{dbg}:{dbg+1}], {o}\n  s_waitcnt lgkmcnt(0)\n  s_cmp_lg_u32 s{sTag}, 0\n  s_cbranch_scc1 {pfx}_tagok")
    a.raw(f"""  s_mov_b32 s{sCnt}, 0
{pfx}_tagloop:
  buffer_load_dwordx2 {vr(vt,2)}, off, s[{dbg}:{dbg+3}], 0 sc1
  s_add_u32 s{sCnt}, s{sCnt}, 1
  s_waitcnt vmcnt(0)
  v_readfirstlane_b32 s{sTag}, v{vt}
  v_readfirstlane_b32 s{sTag+1}, v{vt+1}
  s_nop 3
  s_cmp_lg_u32 s{sTag}, 0
  s_cbranch_scc1 {pfx}_tagok
  s_cmp_lt_u32 s{sCnt}, {SPIN}
  s_cbranch_scc1 {pfx}_tagloop
  s_branch {pfx}_tagok""")

def gemm_role():
    X, W1, WS, W2, OUT, DBG, HS = "s[4:7]", "s[8:11]", "s[12:15]", "s[16:19]", "s[20:23]", "s[24:27]", "s[28:31]"
    sP = 3
    sW, sRB, sM, sXB, sWB, sC, sTx, sT, sLA, sLB, sW2, sHS, sHL = range(32, 45)
    sT2, sT3, sL2e, sCnt, sO, sTag, sFl, sRT = 45, 46, 47, 48, 49, 50, 52, 53
    sB1, sMask, sCG, sXcc, sFar, sHS2, sIa = 54, 55, 56, 57, 58, 59, 101
    sY, sRet = sFl, sFar
    sMean, sNeg = 88, 92
    sXn, sSt, sCx = 89, 90, 96
    SROW, STG = 1056, 98304
    vL = 1
    vXo, vWo, vXr, vWr, vW2o, vW2r, vL16 = 2, 6, 9, 13, 17, 18, 22
    vT, vNon, vCs, vT2, vC2, vSa = 23, 24, 26, 29, 30, 31
    vSt, vNeg = 32, 36
    HALF, vSw, vSr, vIa, vT3 = 88, 92, 93, 94, 95
    ACC1, WF, CSA, XF, CSF = 40, 96, 144, 192, 168
    LX, LF, LG, vId = 224, 232, 248, 252
    ACC2, STASH, HB, HD = 32, 96, 192, 8
    LB0 = 49152
    FARAWAY = 0x40000000
    a(f"""
    s_load_dwordx2 s[4:5], s[0:1], 0
    s_load_dwordx2 s[8:9], s[0:1], 80
    s_load_dwordx2 s[24:25], s[0:1], 104
    s_load_dwordx2 s[12:13], s[0:1], 112
    s_load_dwordx2 s[16:17], s[0:1], 88
    s_load_dwordx2 s[20:21], s[0:1], 96
    v_and_b32 v{vL}, 63, v0
    s_lshr_b32 s{sRB}, s{sP}, 4
    s_and_b32 s{sM}, s{sP}, 15
    s_and_b32 s{sC}, s{sP}, 7
    s_mov_b32 s{sCx}, s{sC}
    v_lshlrev_b32 v{vL16}, 4, v{vL}
    s_lshl2_add_u32 s{sCnt}, s{sP}, s{sW}
    s_lshl_b32 s{sCnt}, s{sCnt}, 11
    s_setprio 2
    """)
    if STAMPS: a("s_memrealtime s[98:99]")
    srd(4, 2048 * 1024); srd(8, 512 * 2752)
    a(f"""
    v_lshrrev_b32 v{vT}, 3, v{vL}
    v_lshlrev_b32 v{vT}, 10, v{vT}
    v_lshrrev_b32 v{vT2}, 4, v{vL}
    v_xor_b32 v{vT2}, v{vT2}, v{vL}
    v_and_b32 v{vT2}, 7, v{vT2}
    v_lshl_add_u32 v{vXo}, v{vT2}, 4, v{vT}
    v_xor_b32 v{vXo+1}, 64, v{vXo}
    v_add_u32 v{vXo+2}, {2*7168}, v{vXo}
    v_add_u32 v{vXo+3}, {3*7168}, v{vXo+1}
    v_add_u32 v{vXo+1}, 7168, v{vXo+1}
    s_movk_i32 s{sT}, 5462
    s_movk_i32 s{sT2}, {2752-192}
    v_mul_u32_u24 v{vT}, s{sT}, v{vL}
    """)
    for j in range(3):
        if j: a(f"v_add_u32 v{vT}, {64*5462}, v{vT}")
        a(f"v_lshrrev_b32 v{vT2}, 16, v{vT}\nv_mad_u32_u24 v{vWo+j}, v{vT2}, s{sT2}, v{vL16}")
    a(f"""
    s_lshl2_add_u32 s{sXB}, s{sRB}, s{sW}
    s_lshl_b32 s{sXB}, s{sXB}, 15
    s_mul_i32 s{sWB}, s{sM}, 192
    s_mul_i32 s{sT}, s{sW}, {16*2752}
    s_add_u32 s{sWB}, s{sWB}, s{sT}
    s_lshr_b32 s{sO}, s{sXB}, 6
    s_cmp_eq_u32 s{sM}, 15             ; the 16th workgroup of a row block has no GEMM1 tile: its tile loads go out of range
    s_cselect_b32 s{sXB}, {FARAWAY}, s{sXB}
    s_cselect_b32 s{sWB}, {FARAWAY}, s{sWB}
    s_lshl_b32 s{sLA}, s{sW}, 12
    s_mul_i32 s{sLB}, s{sW}, 3072
    s_add_u32 s{sLB}, s{sLB}, {LB0}
    s_waitcnt lgkmcnt(0)
    """)
    if STAMPS: a("s_mov_b32 s100, s98\ns_mov_b32 s97, 0")
    stamp()

    def w_ops(c):
        ops = []
        for j in range(3):
            def f(j=j):
                if j == 0:
                    a(f"s_mul_i32 s{sT2}, s{sC}, {64*2752}\ns_add_u32 m0, s{sLB}, {(c&3)*12288}\ns_add_u32 s{sT2}, s{sT2}, s{sWB}")
                a(f"buffer_load_dwordx4 v{vWo+j}, {W1}, s{sT2} offen offset:{j*1024} {OPT.get('w1f', '')} lds", f"C{c}")
                if j == 0: a(f"s_add_u32 s{sC}, s{sC}, 1\ns_and_b32 s{sC}, s{sC}, 7")
            ops.append(f)
        return ops
    def x_ops(c):
        ops = []
        for pc in range(4):
            def f(pc=pc):
                if pc == 0:
                    a(f"s_lshl_b32 s{sTx}, s{sCx}, 7\ns_add_u32 m0, s{sLA}, {(c%3)*16384}\ns_add_u32 s{sTx}, s{sTx}, s{sXB}")
                a(f"buffer_load_dwordx4 v{vXo+pc}, {X}, s{sTx} offen offset:{pc*1024} lds", f"C{c}")
                if pc == 0: a(f"s_add_u32 s{sCx}, s{sCx}, 1\ns_and_b32 s{sCx}, s{sCx}, 7")
            ops.append(f)
        return ops
    DQ = []; QT = []; QK = []
    for c in range(8):
        first = (w_ops(c), x_ops(c)) if c < 2 else (x_ops(c), w_ops(c))
        for grp_ in first:
            isx = len(grp_) == 4
            lim = -1 if c < (3 if isx else 4) else (max(1, 4 * (c - 3)) if isx else 4 * (c - 3) + 2)
            DQ += [(lim, f) for f in grp_]
            QT += [f'C{c}'] * len(grp_)
            QK += [('x' if isx else 'w') + str(c)] * len(grp_)
    def issue(n, s_=-1):
        for _ in range(n):
            if DQ and DQ[0][0] <= s_: DQ.pop(0)[1]()
    for r in range(2):
        a(f"buffer_load_dwordx4 {vr(LX+4*r,4)}, v{vL16}, {X}, s{sCnt} offen offset:{1024*r}", "xrow")
    a(f"""
    s_getreg_b32 s{sXcc}, hwreg(HW_REG_XCC_ID, 0, 4)
    s_mov_b32 s{sB1}, 0x3f803f80
    s_mov_b32 s{sMask}, 0xffff0000
    s_mul_i32 s{sT3}, s{sW}, {2*SROW}
    s_add_u32 s{sT3}, s{sT3}, {STG}
    v_add_u32 v{vSw}, s{sT3}, v{vL16}
    v_bfe_u32 v{vT3}, v{vL}, 2, 2
    v_and_b32 v{vT}, 1, v{vL}
    v_lshl_add_u32 v{vT}, v{vT}, 2, v{vT3}
    v_mul_u32_u24 v{vT}, {SROW}, v{vT}
    v_and_b32 v{vT2}, 2, v{vL}
    v_lshl_add_u32 v{vT}, v{vT2}, 2, v{vT}
    v_lshrrev_b32 v{vT2}, 4, v{vL}
    v_lshl_add_u32 v{vT}, v{vT2}, 4, v{vT}
    s_lshl_b32 s{sT3}, s{sW}, 8
    s_add_u32 s{sT3}, s{sT3}, {STG}
    v_add_u32 v{vSr}, s{sT3}, v{vT}
    """)
    issue(7)
    a(f"""
    v_and_b32 v{vSa}, 31, v{vL}
    v_lshrrev_b32 v{vT2}, 5, v{vL}
    v_bfe_u32 v{vC2}, v{vL}, 1, 3
    v_xor_b32 v{vC2}, v{vC2}, v{vT2}
    v_lshl_add_u32 v{vC2}, v{vC2}, 4, s{sLA}
    v_lshl_add_u32 v{vC2}, v{vSa}, 7, v{vC2}
    v_bfe_u32 v{vT3}, v{vL}, 2, 2
    v_lshl_add_u32 v{vT}, v{vT2}, 3, v{vT3}
    v_mul_u32_u24 v{vT}, 192, v{vT}
    v_bfe_u32 v{vT2}, v{vL}, 4, 1
    v_lshl_add_u32 v{vT}, v{vT2}, 5, v{vT}
    v_and_b32 v{vT2}, 3, v{vL}
    v_lshl_add_u32 v{vT}, v{vT2}, 3, v{vT}
    v_add_u32 v{vT}, {LB0}, v{vT}
    """)
    for i in range(4):
        a(f"""
        s_add_u32 s{sT3}, s{sW}, {i}
        s_and_b32 s{sT3}, s{sT3}, 3
        s_lshl_b32 s{sCnt}, s{sT3}, 5
        s_mulk_i32 s{sT3}, 3072
        v_xor_b32 v{vXr+i}, s{sCnt}, v{vC2}
        v_add_u32 v{vWr+i}, s{sT3}, v{vT}
        """)
    issue(3)
    a(f"""
    v_lshrrev_b32 v{vT2}, 4, v{vL}
    """)
    srd(24, 256)
    srd(12, WS_SIZE)
    a(f"""
    v_lshrrev_b32 v{vT}, 2, v{vL}
    v_xor_b32 v{vT}, v{vT}, v{vT2}
    v_and_b32 v{vT}, 1, v{vT}
    v_add_u32 v{vT}, -1, v{vT}
    """)
    for k in range(4): a(f"v_and_b32 v{HALF+k}, s{sB1}, v{vT}")
    FILL = [u.strip() for u in f"""
    s_mov_b32 s18, {1376*1024}
    s_mov_b32 s19, 0x20000
    s_mov_b32 s22, {2048*1024}
    s_mov_b32 s23, 0x20000
    s_mov_b32 s28, s12
    s_mov_b32 s29, s13
    s_mov_b32 s30, {H_SIZE}
    s_mov_b32 s31, 0x20000
    s_mov_b32 s{sL2e}, {LOG2E:#x}
    v_lshlrev_b32 v{vSa}, 4, v{vSa}
    s_add_u32 s{sO}, s{sO}, {ST}
    v_and_b32 v{vIa}, 15, v{vL}
    v_lshlrev_b32 v{vIa}, 7, v{vIa}
    s_lshl_b32 s{sIa}, s{sRB}, 11
    s_add_u32 s{sIa}, s{sIa}, {ST}
    v_lshrrev_b32 v{vT}, 3, v{vL}
    v_lshlrev_b32 v{vT}, 10, v{vT}
    v_bfe_u32 v{vT2}, v{vL}, 4, 1
    v_lshlrev_b32 v{vT3}, 2, v{vT2}
    v_xor_b32 v{vT3}, v{vT3}, v{vL}
    v_and_b32 v{vT3}, 7, v{vT3}
    v_lshl_add_u32 v{vW2o}, v{vT3}, 4, v{vT}
    v_lshrrev_b32 v{vT}, 5, v{vL}
    v_bfe_u32 v{vT3}, v{vL}, 2, 2
    v_lshl_add_u32 v{vT}, v{vT}, 2, v{vT3}
    v_lshlrev_b32 v{vT}, 7, v{vT}
    v_lshl_add_u32 v{vT}, v{vT2}, 5, v{vT}
    v_bfe_u32 v{vT2}, v{vL}, 3, 1
    v_lshl_add_u32 v{vT}, v{vT2}, 6, v{vT}
    v_and_b32 v{vT2}, 3, v{vL}
    v_lshl_add_u32 v{vT}, v{vT2}, 3, v{vT}
    s_lshl_b32 s{sT3}, s{sW}, 5
    s_and_b32 s{sT3}, s{sT3}, 64
    v_xor_b32 v{vT}, s{sT3}, v{vT}
    v_xor_b32 v{vT2}, 64, v{vT}
    v_add_u32 v{vW2r}, s{sLA}, v{vT}
    v_add_u32 v{vW2r+1}, s{sLA}, v{vT2}
    v_add_u32 v{vW2r+2}, s{sLB}, v{vT}
    v_add_u32 v{vW2r+3}, s{sLB}, v{vT2}
    s_and_b32 s{sT3}, s{sP}, 1
    s_lshl1_add_u32 s{sRT}, s{sRB}, s{sT3}
    s_lshr_b32 s{sCG}, s{sM}, 1
    s_mul_i32 s{sW2}, s{sW}, {352*1024}
    s_lshl_b32 s{sT}, s{sCG}, 7
    s_add_u32 s{sW2}, s{sW2}, s{sT}
    s_mul_i32 s{sHL}, s{sRT}, {2*HROW}
    s_mul_i32 s{sT}, s{sW}, {22*1024}
    s_add_u32 s{sHL}, s{sHL}, s{sT}
    s_lshl_b32 s{sT3}, s{sW}, 8
    s_add_u32 s{sT3}, s{sT3}, {LB0}
    v_lshl_add_u32 v{vT2}, v{vL}, 2, s{sT3}
    v_lshl_add_u32 v{vT}, v{vL}, 2, s{sLB}
    s_lshl2_add_u32 s{sT3}, s{sRB}, s{sW}
    s_mul_i32 s{sT3}, s{sT3}, {HROW}
    s_mul_i32 s{sHS}, s{sM}, 6144
    s_add_u32 s{sHS}, s{sHS}, s{sT3}
    s_add_u32 s{sHS2}, s{sHS}, 4096
    s_cmp_ge_u32 s{sM}, 14 | s_cselect_b32 s{sHS2}, {H_SIZE}, s{sHS2}
    s_lshr_b32 s{sT3}, s{sW}, 1
    s_lshl1_add_u32 s{sT3}, s{sRB}, s{sT3}
    s_lshl4_add_u32 s{sT3}, s{sT3}, s{sM}
    s_and_b32 s{sFl}, s{sW}, 1
    s_lshl1_add_u32 s{sFl}, s{sT3}, s{sFl}
    s_lshl_b32 s{sFl}, s{sFl}, 3
    s_add_u32 s{sFl}, s{sFl}, {FH}
    s_cmp_eq_u32 s{sM}, 15 | s_cselect_b32 s{sHS}, {H_SIZE}, s{sHS} | s_cselect_b32 s{sFl}, {WS_SIZE}, s{sFl}
    """.strip().split("\n")]
    def fill_(n):
        for _ in range(n):
            if FILL: a(FILL.pop(0).replace(" | ", "\n"))

    fill_(int(OPT.get("nfill", 0)))
    keepq = [(q, t) for q, t, k in zip(DQ, QT[len(QT)-len(DQ):], QK[len(QK)-len(DQ):]) if k not in ("x1", "x2", "w2", "w3")]
    DQ[:] = [q for q, _ in keepq]; QT[:] = [t for _, t in keepq]
    a(f"s_add_u32 s{sC}, s{sC}, 2\ns_and_b32 s{sC}, s{sC}, 7\ns_add_u32 s{sCx}, s{sCx}, 2\ns_and_b32 s{sCx}, s{sCx}, 7")
    a.wait(vm="xrow")
    stamp()

    vC = CSA; S = [252, 253]; vN = 254; sR = sMean
    def dpp_reduce(fill):
        for ctl in ("row_shr:1 row_mask:0xf bank_mask:0xf bound_ctrl:0", "row_shr:2 row_mask:0xf bank_mask:0xf bound_ctrl:0",
                    "row_shr:4 row_mask:0xf bank_mask:0xf bound_ctrl:0", "row_shr:8 row_mask:0xf bank_mask:0xf bound_ctrl:0",
                    "row_bcast:15 row_mask:0xa bank_mask:0xf", "row_bcast:31 row_mask:0xc bank_mask:0xf"):
            for r in range(2):
                a(f"v_add_f32_dpp v{S[r]}, v{S[r]}, v{S[r]} {ctl}")
            for _ in range(3):
                if fill: a(fill.pop(0))
        while fill: a(fill.pop(0))
    for k in range(4):
        for r in range(2):
            a(f"v_dot2_f32_bf16 v{S[r]}, v{LX+4*r+k}, s{sB1}, {'0' if k == 0 else 'v%d' % S[r]}")
    unpack = lambda: [t for r in range(2) for k in range(4) for t in
                      (f"v_lshlrev_b32 v{LF+8*r+2*k}, 16, v{LX+4*r+k}", f"v_and_b32 v{LF+8*r+2*k+1}, s{sMask}, v{LX+4*r+k}")]
    fill = unpack()
    for _ in range(3): a(fill.pop(0))
    dpp_reduce(fill)
    for r in range(2): a(f"v_mul_f32 v{S[r]}, 0x3b000000, v{S[r]}")
    for r in range(2): a(f"v_cvt_pk_bf16_f32 v{vN+r}, -v{S[r]}, -v{S[r]}")
    for r in range(2): a(f"v_readlane_b32 s{sMean+2*r}, v{S[r]}, 63")
    for r in range(2): a(f"v_readlane_b32 s{sNeg+2*r}, v{vN+r}, 63")
    for k in range(4):
        for r in range(2):
            a(f"v_pk_add_f32 {vr(vC+8*r+2*k,2)}, {vr(LF+8*r+2*k,2)}, {sr(sMean+2*r,2)} op_sel_hi:[1,0] neg_lo:[0,1] neg_hi:[0,1]")
    for r in range(2): a(f"s_and_b32 s{sNeg+2*r}, s{sNeg+2*r}, s{sMask}")
    for r in range(2): a(f"s_or_b32 s{sNeg+2*r+1}, s{sNeg+2*r}, s{sXcc}")
    for r in range(2):
        a(f"v_pk_mul_f32 {vr(vC+8*r,2)}, {vr(vC+8*r,2)}, {vr(vC+8*r,2)}")
    for k in range(1, 4):
        for r in range(2):
            a(f"v_pk_fma_f32 {vr(vC+8*r,2)}, {vr(vC+8*r+2*k,2)}, {vr(vC+8*r+2*k,2)}, {vr(vC+8*r,2)}")
    for r in range(2): a(f"v_add_f32 v{S[r]}, v{vC+8*r}, v{vC+8*r+1}")
    fill = [f"v_pk_add_f32 {vr(LF+8*r+2*k,2)}, {vr(LF+8*r+2*k,2)}, {sr(sNeg+2*r,2)} op_sel_hi:[1,0]" for k in range(4) for r in range(2)]
    fill += [f"v_cvt_pk_bf16_f32 v{LX+4*r+k}, v{LF+8*r+2*k}, v{LF+8*r+2*k+1}" for k in range(4) for r in range(2)]
    dpp_reduce(fill)
    issue(int(OPT.get('n1', 0)))
    def rnd():
        for r in range(2): a(f"v_cvt_pk_bf16_f32 v{S[r]}, v{S[r]}, v{S[r]}")
        for r in range(2): a(f"v_lshlrev_b32 v{S[r]}, 16, v{S[r]}")
    for r in range(2): a(f"v_mul_f32 v{S[r]}, 0x3b000000, v{S[r]}")
    rnd()
    for r in range(2): a(f"v_add_f32 v{S[r]}, 0x3727c5ac, v{S[r]}")
    rnd()
    for r in range(2): a(f"v_sqrt_f32 v{S[r]}, v{S[r]}")
    rnd()
    for r in range(2): a(f"v_rcp_f32 v{S[r]}, v{S[r]}")
    for t in unpack(): a(t)
    for r in range(2): a(f"v_readlane_b32 s{sR+2*r}, v{S[r]}, 63")
    a(f"s_load_dwordx2 {sr(sTag,2)}, s[24:25], 0")
    for r in range(2):
        for k in range(4):
            a(f"v_pk_mul_f32 {vr(LF+8*r+2*k,2)}, {vr(LF+8*r+2*k,2)}, {sr(sR+2*r,2)} op_sel_hi:[1,0]")
        for k in range(4):
            a(f"v_cvt_pk_bf16_f32 v{LX+4*r+k}, v{LF+8*r+2*k}, v{LF+8*r+2*k+1}")
        a(f"ds_write_b128 v{vSw}, {vr(LX+4*r,4)} offset:{SROW*r}", "stg")
    a(f"""
    v_mov_b32 v{LG}, s{sNeg+1}
    v_mov_b32 v{LG+1}, s{sR}
    v_writelane_b32 v{LG}, s{sNeg+3}, 1
    v_writelane_b32 v{LG+1}, s{sR+2}, 1
    s_mul_i32 s{sXn}, s{sP}, {GS}
    s_lshl_b32 s{sT3}, s{sW}, 12
    s_add_u32 s{sXn}, s{sXn}, s{sT3}
    s_add_u32 s{sXn}, s{sXn}, {XNP}
    s_lshl2_add_u32 s{sSt}, s{sP}, s{sW}
    s_lshl_b32 s{sSt}, s{sSt}, 5
    s_add_u32 s{sSt}, s{sSt}, {ST}
    """)
    issue(int(OPT.get('n2', 7)))
    a.wait(lg=0)
    stamp()

    GROUPS = [("A", 2, 4), ("A", 0, 4), ("B", 1, 3), ("A", 1, 4), ("B", 0, 3), ("B", 2, 3), ("B", 3, 3)]
    LOC = []
    for rg, sl, n in GROUPS:
        for k in range(n):
            LOC.append((rg, sl * (16384 if rg == "A" else 12288) + k * 1024))
    PL2 = list(range(4, 24))
    ploc = lambda p: p if p < 24 else PL2[p - 24]
    SHARED['LOC'] = LOC
    pn = [0]
    def p_next():
        p = pn[0]; pn[0] += 1
        rg, off = LOC[ploc(p)]
        a(f"s_add_u32 m0, s{sLA if rg == 'A' else sLB}, {off}")
        a(f"s_add_u32 s{sT3}, s{sW2}, {8192*p}")
        a(f"buffer_load_dwordx4 v{vW2o}, {W2}, s{sT3} offen lds", f"P{p}")

    wb = lambda s_: WF + 12 * (s_ % 3)
    def tr_pair(s_, ft):
        c, i = divmod(s_, 4)
        for e in range(2):
            a(f"ds_read_b64_tr_b16 {vr(wb(s_)+4*ft+2*e,2)}, v{vWr+i} offset:{(c&3)*12288+e*768+ft*64}", f"wf{s_}")
    def rd_x(c, i):
        a(f"ds_read_b128 {vr(XF+16*(c&1)+4*i,4)}, v{vXr+i} offset:{(c%3)*16384}", f"xf{c}_{i}")
    def open_chunk(c):
        if "cs" in OPT and c in (3, 5): stamp(True)
        a.wait(vm=f"C{c}")
        if (c == 0 and "ss" not in OPT) or ("cs" in OPT and c in (3, 5)): stamp(True)
        a("s_barrier")
        if "cs" in OPT and c: stamp(True)

    open_chunk(0)
    rd_x(0, 0)
    for ft in range(3): tr_pair(0, ft)
    for i in range(1, 4): rd_x(0, i)
    for ft in range(3): tr_pair(1, ft)
    a(f"s_cmp_eq_u32 s{sTag}, 0\ns_cbranch_scc1 G_tagslow\nG_tagok:")
    for k in range(5): a(f"v_mov_b32 v{LF+4*k+2}, s{sTag}\nv_mov_b32 v{LF+4*k+3}, s{sTag+1}")
    XSL = {"a": [(0, 1), (0, 2), (1, 0), (1, 2), (2, 1)], "b": [(3, 0), (3, 1), (3, 2), (7, 0), (7, 1)], "c": [(1, 0), (1, 2), (3, 0), (3, 2), (5, 1)]}[OPT.get("xsl", "b")]
    PS = 99
    def bg_op(c, i, ft):
        s_ = 4 * c + i
        if DQ: issue(1, s_)
        elif s_ >= PS and ft != 1:
            lim = 0 if s_ < 20 else 4 if s_ < 24 else 8 if s_ < 26 else 11 if s_ < 28 else 15 if s_ < 30 else 18 if s_ < 31 else 24
            if pn[0] < lim: p_next()
    def split(dst, src, tmp):
        return [f"v_cvt_pk_bf16_f32 v{tmp}, v{src}, v{src}", f"v_lshlrev_b32 v{tmp}, 16, v{tmp}",
                f"v_sub_f32 v{tmp}, v{src}, v{tmp}", f"v_cvt_pk_bf16_f32 v{dst}, v{src}, v{tmp}"]
    for c in range(8):
        a.comment(f"---- GEMM1 chunk {c}")
        for i in range(4):
            s_ = 4 * c + i
            if i == 2 and c < 7:
                issue(int(OPT.get('flush', 0)), s_ - 1)
                assert not any(t == f'C{c+1}' for t in QT[len(QT)-len(DQ):])
                open_chunk(c + 1)
            a.wait(lg=(f"xf{c}_{3 if s_ else 0}", f"wf{s_}"))
            if "ss" in OPT and int(OPT["ss"]) <= s_ < int(OPT["ss"]) + 12: stamp(True)
            if s_ == 28:
                assert "csw" not in a.lg
                a("s_barrier")
            if s_ == 31: a("s_barrier")
            for ft in range(3):
                cs = i == 0 or c >= 7
                if cs and s_ == 31:
                    a(f"v_mfma_f32_16x16x32_bf16 {vr(CSA+12+4*ft,4)}, {vr(HALF,4)}, {vr(wb(s_)+4*ft,4)}, {vr(CSA+12+4*ft,4)}")
            for ft in range(3):
                cc = "0" if s_ == 0 else vr(ACC1+16*ft, 16)
                a(f"v_mfma_f32_32x32x16_bf16 {vr(ACC1+16*ft,16)}, {vr(wb(s_)+4*ft,4)}, {vr(XF+16*(c&1)+4*i,4)}, {cc}")
                if i == 2 and c < 7:
                    if ft == 0: rd_x(c + 1, 0)
                    rd_x(c + 1, ft + 1)
                if s_ + 2 < 32: tr_pair(s_ + 2, ft)
                if (s_, ft) == (0, 0):
                    for k in range(4): a(f"ds_read_b64_tr_b16 {vr(LF+4*k,2)}, v{vSr} offset:{64*k}", "tr")
                if (s_, ft) in XSL:
                    a.wait(lg="tr")
                    k = XSL.index((s_, ft))
                    if k < 4: a(f"buffer_store_dwordx4 {vr(LF+4*k,4)}, v{vL16}, {WS}, s{sXn} offen offset:{1024*k} sc1", "xn")
                    else: a(f"s_mov_b64 exec, 3\nbuffer_store_dwordx4 {vr(LG,4)}, v{vL16}, {WS}, s{sSt} offen sc1\ns_mov_b64 exec, -1")
                else:
                    bg_op(c, i, ft)
                    if i == 3 or (i == 1 and ft): fill_(4)
                if (i == 0 or c >= 7) and s_ != 31:
                    d = CSA + 4 * ft + (12 if c >= 7 else 0)
                    a(f"v_mfma_f32_16x16x32_bf16 {vr(d,4)}, {vr(HALF,4)}, {vr(wb(s_)+4*ft,4)}, {'0' if s_ in (0, 28) else vr(d,4)}")
                if s_ == 25:
                    for t in split(vCs + ft, CSA + 4 * ft, CSA + 4 * ft + 1): a(t)
                if s_ == 25:
                    for k in range(2):
                        a(f"ds_write2st64_b32 v{vT2}, v{vCs+ft}, v{vCs+ft} offset0:{24*k+4*ft} offset1:{24*k+12+4*ft}", "csw")
                if s_ == 23:
                    for k in range(4): a(f"v_mov_b32 v{CSF+4*ft+k}, 0")
                if s_ == 28:
                    a("s_mov_b32 exec_hi, 0")
                    for k in range(2):
                        a(f"ds_read2st64_b32 {vr(CSF+4*ft+2*k,2)}, v{vT} offset0:{4*ft+2*k} offset1:{4*ft+2*k+1}", "csf")
                    a("s_mov_b32 exec_hi, -1")
                if s_ == 29 and ft == 2:
                    a.wait(vm="st", lg="csf")
                    a(f"""
                    s_mov_b32 s{sCnt}, 0
                    G_stchk:
                    v_cmp_ne_u64 vcc, {sr(sTag,2)}, {vr(vSt+2,2)}
                    v_cmp_ne_u64 s[88:89], {sr(sTag,2)}, {vr(vId+2,2)}
                    v_and_b32 v{vId+1}, 0xffff, v{vId}
                    s_or_b64 vcc, vcc, s[88:89]
                    s_cbranch_vccnz G_stslow
                    G_stok:
                    """)
                if s_ == 30 and ft == 0:
                    a(f"""
                    v_cmp_ne_u32 s[90:91], s{sXcc}, v{vId+1}
                    v_lshrrev_b32 v{vNeg+1}, 16, v{vSt}
                    v_bfi_b32 v{vNeg}, s{sMask}, v{vSt}, v{vNeg+1}
                    v_bfi_b32 v{vNeg+2}, s{sMask}, v{vSt}, v{vNeg+1}
                    """)
                if s_ == 30 and ft == 1:
                    a(f"""
                    v_bfi_b32 v{vNeg+3}, s{sMask}, v{vSt}, v{vNeg+1}
                    v_bfi_b32 v{vNeg+1}, s{sMask}, v{vSt}, v{vNeg+1}
                    v_mul_f32 v{vC2}, s{sL2e}, v{vSt+1}
                    s_or_b32 s{sFar}, s90, {1 if 'forcefar' in OPT else 's91'}
                    v_mov_b32 v{vNon}, s{sTag}
                    v_mov_b32 v{vNon+1}, s{sTag+1}
                    """)
                if s_ == 31:
                    sp = split(CSF + 4 * ft, CSA + 12 + 4 * ft, CSA + 13 + 4 * ft)
                    for t in sp[:3]: a(t)
                    a(f"s_mov_b32 exec_lo, 0\n{sp[3]}\ns_mov_b32 exec_lo, -1")
            if s_ == 23:
                assert not FILL
                a(f"buffer_load_dwordx4 {vr(vSt,4)}, v{vSa}, {WS}, s{sO} offen sc1", "st")
                a(f"buffer_load_dwordx4 {vr(vId,4)}, v{vIa}, {WS}, s{sIa} offen sc1", "st")
    assert not DQ
    stamp()
    for ft in range(3):
        a(f"v_mfma_f32_32x32x16_bf16 {vr(ACC1+16*ft,16)}, {vr(CSF+4*ft,4)}, {vr(vNeg,4)}, {vr(ACC1+16*ft,16)}")
    E1, OB = 208, 224
    def tr_w2(step, tag):
        base = STASH + 8 * (step % 12)
        for j in range(2):
            for e in range(2):
                rg, off = LOC[ploc(2 * step + e)]
                a(f"ds_read_b64_tr_b16 {vr(base+4*j+2*e,2)}, v{vW2r+(0 if rg=='A' else 2)+j} offset:{off}", tag)
    pn[0] = 24
    B9, B10 = int(OPT.get("b9", 1)), int(OPT.get("b10", 6))
    for ft in range(3):
        for j in range(2):
            A0 = ACC1 + 16 * ft + 8 * j
            T0 = E1 + 8 * j
            for k in range(8): a(f"v_mul_f32 v{A0+k}, v{vC2}, v{A0+k}")
            for k in range(8): a(f"v_exp_f32_e64 v{T0+k}, -v{A0+k}")
            if pn[0] < 24: p_next()
            for k in range(8): a(f"v_fma_f32 v{T0+k}, v{T0+k}, s{sL2e}, s{sL2e}")
            for k in range(8): a(f"v_rcp_f32 v{T0+k}, v{T0+k}")
            if pn[0] < 24: p_next()
            for k in range(8): a(f"v_mul_f32 v{A0+k}, v{A0+k}, v{T0+k}")
            for k in range(0, 8, 2): a(f"v_cvt_pk_bf16_f32 v{OB+8*ft+4*j+k//2}, v{A0+k}, v{A0+k+1}")
            a(f"buffer_store_dwordx4 {vr(OB+8*ft+4*j,4)}, v{vL16}, {HS}, s{sHS if ft < 2 else sHS2} offen offset:{1024*((2*ft+j)&3)} {OPT.get('hnt', 'nt')}", "hs")
    stamp()
    vH, vF, vXg, vO, vY, vXl, vR, vP, vYl = 2, 4, 5, 6, 7, 8, 13, 10, 9
    a(f"""
    s_lshl_b32 s{sT}, s{sW}, 3
    s_lshr_b32 s{sT2}, 0x160e0600, s{sT}
    s_and_b32 s{sT2}, s{sT2}, 0xff
    s_lshr_b32 s{sT}, 0x1d150f07, s{sT}
    s_and_b32 s{sT}, s{sT}, 0xff
    v_max_u32 v{vF}, s{sT2}, v{vL}
    v_min_u32 v{vF}, s{sT}, v{vF}
    v_lshlrev_b32 v{vF}, 3, v{vF}
    s_and_b32 s{sT}, s{sW}, 1
    s_mul_i32 s{sT2}, s{sT}, {HROW}
    v_add_u32 v{vH}, s{sT2}, v{vL16}
    s_sub_u32 s{sT2}, {HROW}, s{sT2}
    v_add_u32 v{vH+1}, s{sT2}, v{vL16}
    s_mov_b32 s{sCnt}, 0
    """)
    a(f"s_cmp_lg_u32 s{sFar}, 0\ns_cbranch_scc1 G_far")
    a.wait(vm="hs")
    stamp()
    a(f"s_mov_b64 exec, 1\nbuffer_store_dwordx2 {vr(vNon,2)}, off, {WS}, s{sFl}\nG_pub:\ns_mov_b64 exec, -1")
    a(f"s_lshl_b32 s{sRet}, s{sRT}, 8\ns_add_u32 s{sRet}, s{sRet}, {FH}")
    a("s_barrier")
    PK_ = int(OPT.get("pk", 4))
    order = list(range(2, 12)) + [0, 1]
    for n_, k in enumerate(order):
        if n_ == PK_: a(f"buffer_load_dwordx2 {vr(vP,2)}, v{vF}, {WS}, s{sRet} offen sc1", "poll")
        tr_w2(k, f"S{k}")
    def p2():
        a.wait(lg=f"S{ploc(pn[0])//2}")
        p_next()
    for _ in range(int(OPT.get("np0", 4))): p2()
    stamp()
    a.wait(vm="poll")
    a(f"G_hchk:\nv_cmp_ne_u64 vcc, {sr(sTag,2)}, {vr(vP,2)}\ns_add_u32 s{sCnt}, s{sCnt}, 1\ns_cbranch_vccnz G_hslow\nG_hok:")
    stamp()
    if STAMPS: a(f"s_lshl_b32 s{sCnt}, s{sCnt}, 16\ns_add_u32 s97, s97, s{sCnt}")
    HS_ = [(i, 1) for i in range(12)] + [(i, j) for i in range(12, 22) for j in (1, 0)] + [(i, 0) for i in range(12)]
    HR, WR = int(OPT.get("hr", 10)), 232
    grp = [None]
    def h_load(n):
        i, j = HS_[n]
        if i // 4 != grp[0]:
            grp[0] = i // 4; a(f"s_add_u32 s{sTx}, s{sHL}, {4096*(i//4)}")
        a(f"buffer_load_dwordx4 {vr(HB+4*(n%HR),4)}, v{vH+j}, {HS}, s{sTx} offen offset:{1024*(i%4)} {OPT.get('hlf', 'sc1').replace('_', ' ')}", f"h{n}")
    for n in range(HR - 1): h_load(n)
    a(f"""
    s_lshl1_add_u32 s{sT2}, s{sRT}, s{sT}
    s_lshr_b32 s{sT}, s{sW}, 1
    s_lshl1_add_u32 s{sCnt}, s{sCG}, s{sT}
    s_lshl_b32 s{sO}, s{sT2}, 15
    s_lshl_b32 s{sT}, s{sCnt}, 6
    s_add_u32 s{sO}, s{sO}, s{sT}
    s_mul_i32 s{sY}, s{sCnt}, {32*GC}
    s_lshl_b32 s{sT}, s{sT2}, 7
    s_add_u32 s{sY}, s{sY}, s{sT}
    s_add_u32 s{sY}, s{sY}, {Y2}
    v_and_b32 v{vT}, 31, v{vL}
    v_lshrrev_b32 v{vT2}, 5, v{vL}
    v_lshlrev_b32 v{vO}, 10, v{vT}
    v_lshl_add_u32 v{vO}, v{vT2}, 4, v{vO}
    v_lshl_add_u32 v{vXl}, v{vT}, 6, s{sLA}
    v_lshl_add_u32 v{vXl}, v{vT2}, 4, v{vXl}
    v_lshlrev_b32 v{vYl}, 3, v{vT2}
    v_sub_u32 v{vF}, v{vT}, v{vYl}
    v_bfe_u32 v{vT}, v{vL}, 2, 2
    v_add_u32 v{vYl}, v{vYl}, v{vT}
    v_lshl_add_u32 v{vYl}, v{vYl}, 7, s{sLA}
    v_bfe_u32 v{vT}, v{vL}, 4, 1
    v_lshl_add_u32 v{vYl}, v{vT}, 6, v{vYl}
    v_and_b32 v{vT}, 3, v{vL}
    v_lshl_add_u32 v{vYl}, v{vT}, 4, v{vYl}
    v_lshrrev_b32 v{vY}, 3, v{vL}
    v_mul_u32_u24 v{vY}, {GC}, v{vY}
    v_and_b32 v{vT}, 7, v{vL}
    v_lshl_add_u32 v{vY}, v{vT}, 4, v{vY}
    v_add_u32 v{vP}, s{sLA}, v{vL16}
    v_lshrrev_b32 v{vXg}, 2, v{vL}
    v_lshlrev_b32 v{vXg}, 10, v{vXg}
    v_and_b32 v{vT}, 3, v{vL}
    v_lshl_add_u32 v{vXg}, v{vT}, 4, v{vXg}
    v_add_u32 v{vR}, s{sLB}, v{vL16}
    """)
    for k in range(1, 4):
        a(f"s_xor_b32 s{sT}, s{sW}, {k}\ns_mulk_i32 s{sT}, 3072\ns_add_u32 s{sT}, s{sT}, {LB0}\nv_add_u32 v{vR+k}, s{sT}, v{vL16}")
    YO = 32768
    YT, YF, XFr, IDN = 232, 240, 248, 24
    XR = 24
    if "touch" in OPT:
        a(f"v_and_b32 v{vT}, 31, v{vL}\nv_mul_u32_u24 v{vT}, {GC}, v{vT}")
        a(f"buffer_load_dword v12, v{vT}, {WS}, s{sY} offen sc1", "yt")
    a(f"v_and_b32 v{vT}, 1, v{vF}\nv_lshlrev_b32 v{vT}, 4, v{vT}\nv_lshlrev_b32 v{vT}, v{vT}, v{vW2o}" if False else
      f"v_and_b32 v{vT}, 1, v{vF}\nv_lshlrev_b32 v{vT}, 4, v{vT}\nv_mov_b32 v11, 0x3f80\nv_lshlrev_b32 v11, v{vT}, v11\nv_ashrrev_i32 v{vF}, 1, v{vF}")
    for k in range(8):
        a(f"v_cmp_eq_u32 s[{88+2*(k&1)}:{89+2*(k&1)}], {8*(k>>2)+(k&3)}, v{vF}")
        if k: a(f"v_cndmask_b32 v{IDN+k-1}, 0, v11, s[{88+2*((k-1)&1)}:{89+2*((k-1)&1)}]")
    a(f"v_cndmask_b32 v{IDN+7}, 0, v11, s[90:91]")
    def y_loads(emit):
        emit(f"s_add_u32 m0, s{sLA}, {YO}")
        for k in range(4):
            emit(f"s_add_u32 s{sT2}, s{sY}, {8*k*GC-1024*k}")
            emit(f"buffer_load_dwordx4 v{vY}, {WS}, s{sT2} offen offset:{1024*k} sc1 lds")
    def y_reads(emit):
        for k in range(4): emit(f"ds_read_b64 {vr(YT+2*k,2)}, v{vP} offset:{YO+1024*k+8}")
        for k in range(4): emit(f"ds_read_b64_tr_b16 {vr(YF+2*k,2)}, v{vYl} offset:{YO+2048*(k>>1)+512*(k&1)}")
    wreg = lambda i: STASH + 8 * i if i < 12 else WR + 8 * (i % 3)
    def w_reads(i, half):
        j = half
        assert pn[0] > 2 * i + 1
        a.wait(vm=f"P{2*i+1}")
        for e in range(2):
            rg, off = LOC[ploc(2 * i + e)]
            a(f"ds_read_b64_tr_b16 {vr(wreg(i)+4*j+2*e,2)}, v{vW2r+(0 if rg=='A' else 2)+j} offset:{off}", f"r{i}")
    started = set()
    def mm(n, jd):
        i, j = HS_[n]; k = 2 * jd + j
        ac = ACC2 + 16 * k
        a(f"v_mfma_f32_32x32x16_bf16 {vr(ac,16)}, {vr(wreg(i)+4*jd,4)}, {vr(HB+4*(n%HR),4)}, {vr(ac,16) if k in started else '0'}")
        started.add(k)
    roff = lambda k, q: (((k - 1) * 4 + q) // 3) * 12288 + (((k - 1) * 4 + q) % 3) * 1024
    def r_write(k, q): a(f"ds_write_b128 v{vR}, {vr(ACC2+16*k+4*q,4)} offset:{roff(k,q)}", "rw")
    def r_read(k, q): a(f"ds_read_b128 {vr(ACC2+16*k+4*q,4)}, v{vR+k} offset:{roff(k,q)}", f"rr{k}")
    YS = int(OPT.get("ys", 34))
    NT = 4
    PR_ = int(OPT.get('pr', 1))
    side = []
    def run_side(c):
        for _ in range(c):
            if side:
                t = side.pop(0)
                if callable(t): t()
                else: a(t)
    for n in range(44 - NT):
        i, j = HS_[n]
        a.wait(vm=f"h{n}", lg=(f"r{i}" if i >= 12 else 0 if n == 0 else None))
        if n == 0 or ("g2" in OPT and n in (12, 24, 32, 36)): stamp(True)
        for jd in range(2):
            mm(n, jd)
            if jd == 0 and n + HR - 1 < 44: h_load(n + HR - 1)
            if pn[0] < 44 and (jd == 1 or n % PR_ == 0): p2()
            if n in (8, 10): w_reads(12 + (n - 8) // 2, jd)
            if 12 <= n < 28 and j == 1: w_reads(i + 2, jd)
            if jd == 1 and n == YS:
                y_loads(lambda t: a(t, "yr"))
            if jd == 1 and n == 30:
                a(f"s_mov_b32 m0, s{sLA}\ns_add_u32 s{sT2}, s{sO}, {16384-1024}")
                a(f"buffer_load_dwordx4 v{vXg}, {X}, s{sO} offen lds", "xr")
                a(f"buffer_load_dwordx4 v{vXg}, {X}, s{sT2} offen offset:1024 lds", "xr")
            g = 2 * (n - 32) + jd
            if 0 <= g < 12 and g % 3 != 2:
                w = g - g // 3; r_write(1 if w < 4 else 3, w & 3)
            if g == 12:
                a.wait(vm="xr")
                for q in range(2): a(f"ds_read_b128 {vr(XFr+4*q,4)}, v{vXl} offset:{32*q}", "xl")
            if g == 14:
                a.wait(lg="rw")
                a("s_barrier")
                for q in range(4): r_read(1, q)
            if g == 15:
                for q in range(4): r_read(3, q)
    if "ts" in OPT: stamp()
    side = [lambda: a.wait(lg="rr3")] + [f"v_add_f32 v{ACC2+16+q}, v{ACC2+16+q}, v{ACC2+48+q}" for q in range(16)]
    for q, n in enumerate(range(44 - NT, 44)):
        a.wait(vm=f"h{n}")
        mm(n, 1)
        if q >= 2: run_side(6)
    tail = [lambda n=n: mm(n, 0) for n in range(44 - NT, 44)]
    for src in (XFr, YF):
        for q in range(2):
            tail.append(lambda src=src, q=q: a(f"v_mfma_f32_32x32x16_bf16 {vr(ACC2,16)}, {vr(IDN+4*q,4)}, {vr(src+4*q,4)}, {vr(ACC2,16)}"))
    for q, t in enumerate(tail):
        t()
        if q == 0: run_side(99)
        if 1 <= q <= 4: r_write(2, q - 1)
        if q == 4:
            a.wait(vm="yr")
            y_reads(lambda t: a(t, "yl"))
        if q == 5:
            a.wait(lg="rw")
            a("s_barrier")
            for q2 in range(4): r_read(2, q2)
            a.wait(lg="yl")
            a(f"s_mov_b32 s{sCnt}, 0\nG_ychk:")
            a(f"v_cmp_ne_u64 vcc, {sr(sTag,2)}, {vr(YT,2)}")
            for q2 in range(1, 4): a(f"v_cmp_ne_u64 s[{86+2*q2}:{87+2*q2}], {sr(sTag,2)}, {vr(YT+2*q2,2)}")
            for q2 in range(1, 4): a(f"s_or_b64 vcc, vcc, s[{86+2*q2}:{87+2*q2}]")
            a("s_cbranch_vccnz G_yslow\nG_yok:")
    stamp()
    a.wait(lg="rr2")
    for q in range(16): a(f"v_add_f32 v{ACC2+16+q}, v{ACC2+16+q}, v{ACC2+32+q}")
    for k in range(8):
        a(f"v_pk_add_f32 {vr(ACC2+2*k,2)}, {vr(ACC2+2*k,2)}, {vr(ACC2+16+2*k,2)}")
    for k in range(8):
        a(f"v_cvt_pk_bf16_f32 v{XR+k}, v{ACC2+2*k}, v{ACC2+2*k+1}")
    for q in range(2):
        a(f"v_permlane32_swap_b32 v{XR+4*q}, v{XR+4*q+2}\nv_permlane32_swap_b32 v{XR+4*q+1}, v{XR+4*q+3}")
        a(f"buffer_store_dwordx4 {vr(XR+4*q,4)}, v{vO}, {OUT}, s{sO} offen offset:{32*q} {OPT.get('osf', '').replace('_', ' ')}")
    stamp()
    if STAMPS:
        a("s_waitcnt vmcnt(0)"); stamp()
    if "padev" in OPT:
        a(f"G_pad2:\ns_memrealtime s[98:99]\ns_waitcnt lgkmcnt(0)\ns_sub_u32 s96, s98, s86\ns_cmp_lt_u32 s96, 3000\ns_cbranch_scc1 G_pad2")
    if "padto" in OPT:
        a(f"G_pad:\ns_memrealtime s[98:99]\ns_waitcnt lgkmcnt(0)\ns_sub_u32 s96, s98, s{sTag}\ns_cmp_lt_u32 s96, {OPT['padto']}\ns_cbranch_scc1 G_pad")
    if "dbg" in OPT:
        n = nstamp[0]
        a(f"s_memrealtime s[98:99]\ns_waitcnt lgkmcnt(0)\ns_lshl2_add_u32 s96, s2, s{sW}\ns_cmp_lg_u32 s96, {4*int(OPT['dbg'])}\ns_cbranch_scc1 G_nodbg\ns_mov_b64 exec, 1")
        for i in range(1, n):
            a(f"s_sub_u32 s96, s{60+2*i}, s60\nv_mov_b32 v{vT}, s96\nbuffer_store_dword v{vT}, off, {DBG}, 0 offset:{4+4*i}")
        a(f"s_sub_u32 s96, s98, s{sTag}\nv_mov_b32 v{vT}, s96\nbuffer_store_dword v{vT}, off, {DBG}, 0 offset:60")
        a("G_nodbg:")
    stamp_flush(WS, f"s{sW}", vT, 256)
    a("s_endpgm")
    tag_slow("G", sTag, 24, [64, 192], vNon, sCnt)
    a.raw(f"""G_stslow:
{retry_mark(4)}  s_add_u32 s{sCnt}, s{sCnt}, 1
  s_cmp_ge_u32 s{sCnt}, {SPIN}
  s_cbranch_scc1 G_stok
  buffer_load_dwordx4 {vr(vSt,4)}, v{vSa}, {WS}, s{sO} offen sc1
  buffer_load_dwordx4 {vr(vId,4)}, v{vIa}, {WS}, s{sIa} offen sc1
  s_waitcnt vmcnt(0)
  s_branch G_stchk
G_hslow:
  s_cmp_ge_u32 s{sCnt}, {SPIN}
  s_cbranch_scc1 G_hok
  buffer_load_dwordx2 {vr(vP,2)}, v{vF}, {WS}, s{sRet} offen sc1
  s_waitcnt vmcnt(0)
  s_branch G_hchk
G_yslow:
{retry_mark(8)}  s_add_u32 s{sCnt}, s{sCnt}, 1
  s_cmp_ge_u32 s{sCnt}, {1 if "nossm" in OPT else SPIN}
  s_cbranch_scc1 G_yok""")
    y_loads(lambda t: a.raw("  " + t))
    a.raw("  s_waitcnt vmcnt(0)")
    y_reads(lambda t: a.raw("  " + t))
    a.raw("  s_waitcnt lgkmcnt(0)\n  s_branch G_ychk")
    a.hist = []
    a("G_far:\ns_waitcnt vmcnt(0)")
    for k in range(6):
        a(f"buffer_store_dwordx4 {vr(OB+4*k,4)}, v{vL16}, {HS}, s{sHS if k < 4 else sHS2} offen offset:{1024*(k&3)} sc1")
    a(f"s_waitcnt vmcnt(0)\ns_mov_b64 exec, 1\nbuffer_store_dwordx2 {vr(vNon,2)}, off, {WS}, s{sFl} sc1\ns_branch G_pub")
    a.vm = []; a.lg = []

def ssm_role():
    DBG, WS = "s[8:11]", "s[12:15]"
    sQ, sW, sE, sPar, sT, sT2, sCnt, sB1, sMask = 3, 32, 5, 6, 7, 34, 35, 40, 41
    sLdt, sD, sTag, sU, sXcc = 42, 43, 36, 38, 4
    sMean, sNeg = 44, 48
    vL, LX, LF, vC, LG = 1, 2, 10, 30, 26
    vPar = 44
    vT, vT2, vT3, vT4 = 54, 55, 56, 57
    vNon, vL16, vTab = 52, 60, 61
    SB = 98304
    CB0, UB0, USZ, K0A, FLG, TAB, TSZ, SROW = SB, SB + 33280, 4576, SB + 42432, SB + 42448, SB + 49152, 4096, 1056
    a.hist = []; a.vm = []; a.lg = []
    a(f"""
    s_load_dwordx16 s[16:31], s[0:1], 0
    s_load_dwordx2 s[8:9], s[0:1], 104
    s_load_dwordx2 s[52:53], s[0:1], 64
    s_load_dwordx2 s[92:93], s[0:1], 88
    s_load_dwordx2 s[88:89], s[0:1], 80
    s_load_dwordx2 s[12:13], s[0:1], 112
    s_memrealtime {sr(sTag,2)}
    s_setprio 3
    s_sub_u32 s{sW}, s{sW}, 4
    v_and_b32 v{vL}, 63, v0
    v_and_b32 v{vT}, 255, v0
    s_lshl_b32 s{sT}, s{sQ}, 9
    v_lshl_add_u32 v{vT3}, v{vT}, 1, s{sT}
    s_lshl2_add_u32 s{sT2}, s{sQ}, s{sW}
    s_lshl_b32 s{sT2}, s{sT2}, 11
    v_lshlrev_b32 v{vL16}, 4, v{vL}
    v_lshl_add_u32 v{vT4}, v{vL}, 6, s{sT2}
    s_lshl_b32 s{sT}, s{sQ}, 2
    """)
    srd(8, 256)
    a("s_waitcnt lgkmcnt(0)")
    if STAMPS: a(f"s_mov_b32 s100, s{sTag}\ns_mov_b32 s97, 0")
    stamp()
    a(f"""
    s_or_b32 s{sTag}, s{sTag}, 1
    v_mov_b32 v{vNon}, s{sTag}
    v_mov_b32 v{vNon+1}, s{sTag+1}
    buffer_store_dwordx2 {vr(vNon,2)}, v{vT4}, {DBG}, 0 offen sc1
    """)
    for k in range(6):
        a(f"global_load_ushort v{vPar+k}, v{vT3}, s[{18+2*k}:{19+2*k}]", "par")
    a(f"s_load_dword s{sLdt}, s[30:31], s{sT}\ns_load_dword s{sD}, s[52:53], s{sT}\ns_setprio 0\ns_branch L_ssm")
    keep = (list(a.vm), nstamp[0])
    yield
    a.hist = []; a.lg = []; a.vm = keep[0]; nstamp[0] = keep[1]
    X, W1 = "s[16:19]", "s[88:91]"
    vXo, vWo = 2, 6
    sLA, sLB, sXB, sWB, sC, sCx, sTx, sTw = 20, 21, 22, 23, 24, 25, 26, 27
    srd(16, 2048 * 1024); srd(88, 512 * 2752)
    a(f"""
    v_lshrrev_b32 v{vT}, 3, v{vL}
    v_lshlrev_b32 v{vT}, 10, v{vT}
    v_lshrrev_b32 v{vT2}, 4, v{vL}
    v_xor_b32 v{vT2}, v{vT2}, v{vL}
    v_and_b32 v{vT2}, 7, v{vT2}
    v_lshl_add_u32 v{vXo}, v{vT2}, 4, v{vT}
    v_xor_b32 v{vXo+1}, 64, v{vXo}
    v_add_u32 v{vXo+2}, {2*7168}, v{vXo}
    v_add_u32 v{vXo+3}, {3*7168}, v{vXo+1}
    v_add_u32 v{vXo+1}, 7168, v{vXo+1}
    s_movk_i32 s{sTx}, 5462
    s_movk_i32 s{sTw}, {2752-192}
    v_mul_u32_u24 v{vT}, s{sTx}, v{vL}
    """)
    for j in range(3):
        if j: a(f"v_add_u32 v{vT}, {64*5462}, v{vT}")
        a(f"v_lshrrev_b32 v{vT2}, 16, v{vT}\nv_mad_u32_u24 v{vWo+j}, v{vT2}, s{sTw}, v{vL16}")
    a(f"""
    s_lshr_b32 s{sXB}, s{sQ}, 4
    s_lshl2_add_u32 s{sXB}, s{sXB}, s{sW}
    s_lshl_b32 s{sXB}, s{sXB}, 15
    s_and_b32 s{sC}, s{sQ}, 15
    s_mul_i32 s{sWB}, s{sC}, 192
    s_mul_i32 s{sTx}, s{sW}, {16*2752}
    s_add_u32 s{sWB}, s{sWB}, s{sTx}
    s_cmp_eq_u32 s{sC}, 15
    s_cselect_b32 s{sXB}, 0x40000000, s{sXB}
    s_cselect_b32 s{sWB}, 0x40000000, s{sWB}
    s_add_u32 s{sCx}, s{sQ}, 1
    s_and_b32 s{sCx}, s{sCx}, 7
    s_add_u32 s{sC}, s{sQ}, 2
    s_and_b32 s{sC}, s{sC}, 7
    s_lshl_b32 s{sLA}, s{sW}, 12
    s_mul_i32 s{sLB}, s{sW}, 3072
    s_add_u32 s{sLB}, s{sLB}, 49152
    """)
    def w_ops(c):
        ops = []
        for j in range(3):
            def f(j=j):
                if j == 0:
                    a(f"s_mul_i32 s{sTw}, s{sC}, {64*2752}\ns_add_u32 m0, s{sLB}, {(c&3)*12288}\ns_add_u32 s{sTw}, s{sTw}, s{sWB}")
                a(f"buffer_load_dwordx4 v{vWo+j}, {W1}, s{sTw} offen offset:{j*1024} lds", f"C{c}")
                if j == 0: a(f"s_add_u32 s{sC}, s{sC}, 1\ns_and_b32 s{sC}, s{sC}, 7")
            ops.append(f)
        return ops
    def x_ops(c):
        ops = []
        for pc in range(4):
            def f(pc=pc):
                if pc == 0:
                    a(f"s_lshl_b32 s{sTx}, s{sCx}, 7\ns_add_u32 m0, s{sLA}, {(c%3)*16384}\ns_add_u32 s{sTx}, s{sTx}, s{sXB}")
                a(f"buffer_load_dwordx4 v{vXo+pc}, {X}, s{sTx} offen offset:{pc*1024} lds", f"C{c}")
                if pc == 0: a(f"s_add_u32 s{sCx}, s{sCx}, 1\ns_and_b32 s{sCx}, s{sCx}, 7")
            ops.append(f)
        return ops
    DQ = x_ops(1) + w_ops(2) + x_ops(2) + w_ops(3)
    def dma(n=1):
        for _ in range(n):
            if DQ: DQ.pop(0)()
    dma(int(OPT.get("n0", 2)))
    srd(12, WS_SIZE)
    vOA, vOG, vPb = 50, 51, 59
    a(f"""
    s_lshr_b32 s{sE}, s{sW}, 1
    s_and_b32 s{sPar}, s{sW}, 1
    s_mov_b32 s{sMask}, 0xffff0000
    s_mul_i32 s{sT2}, s{sE}, {USZ}
    s_add_u32 s{sT2}, s{sT2}, {UB0}
    v_lshl_add_u32 v{vT}, v{vL}, 3, s{sT2}
    v_mov_b32 v{vT3}, 0
    v_mov_b32 v{vT4}, 0
    ds_write_b64 v{vT}, {vr(vT3,2)}
    s_lshl2_add_u32 s{sT2}, s{sW}, {FLG}
    v_mov_b32 v58, s{sT2}
    ds_write_b32 v58, v{vT3}
    ds_write_b32 v58, v{vT3} offset:16
    s_lshl_b32 s{sT2}, s{sW}, 12
    s_add_u32 s{sT2}, s{sT2}, {TAB}
    v_add_u32 v{vTab}, s{sT2}, v{vL16}
    v_lshrrev_b32 v{vT}, 4, v{vL}
    v_lshl_add_u32 v{vPb}, v{vT}, 6, s{sT2}
    v_and_b32 v{vT}, 15, v{vL}
    v_lshlrev_b32 v{vOG}, 3, v{vT}
    v_lshlrev_b32 v{vT2}, 2, v{vT}
    v_add_u32 v{vT2}, {512-36}, v{vT2}
    v_cmp_lt_u32 vcc, 8, v{vT}
    v_add_u32 v{vT3}, {1024-96}, v{vOG}
    v_add_u32 v{vT4}, {1536-112}, v{vOG}
    v_cndmask_b32 v{vOA}, v{vT}, v{vT2}, vcc
    v_cmp_lt_u32 vcc, 11, v{vT}
    v_cmp_lt_u32 s[56:57], 13, v{vT}
    v_cvt_f32_u32 v{vOG}, v{vOG}
    v_cndmask_b32 v{vOA}, v{vOA}, v{vT3}, vcc
    v_cndmask_b32 v{vOA}, v{vOA}, v{vT4}, s[56:57]
    v_cvt_f32_u32 v{vOA}, v{vOA}
    """)
    def k_mfma(s_):
        F = 152 + 16 * (s_ & 1)
        for hh in range(2):
            for gt in range(2):
                d = 200 + 8 * hh + 4 * gt
                a(f"v_mfma_f32_16x16x32_bf16 {vr(d,4)}, {vr(F+4*hh,4)}, {vr(F+8+4*gt,4)}, {'0' if s_ == 0 else vr(d,4)}")
    UG = int(OPT.get("ug", 99))
    SP = OPT.get("sprio", 0)
    vUg, vUw, vU, sG = 30, 31, 232, 54
    def u_addr():
        a(f"""
        v_lshrrev_b32 v{vT3}, 2, v{vL}
        v_bfe_u32 v{vT4}, v{vL}, 1, 1
        v_and_b32 v{vT2}, 1, v{vL}
        v_mul_u32_u24 v{vUg}, {GS}, v{vT3}
        v_lshl_add_u32 v{vUg}, v{vT4}, 6, v{vUg}
        v_lshl_add_u32 v{vUg}, v{vT2}, 4, v{vUg}
        v_mul_u32_u24 v{vUw}, {USZ}, v{vT2}
        v_lshl_add_u32 v{vUw}, v{vT3}, 4, v{vUw}
        v_lshl_add_u32 v{vUw}, v{vT4}, 3, v{vUw}
        s_lshl_b32 s{sT}, s{sW}, 10
        s_add_u32 s{sT}, s{sT}, {UB0+480}
        v_add_u32 v{vUw}, s{sT}, v{vUw}
        s_mul_i32 s{sG}, s{sW}, {64*GS}
        s_lshr_b32 s{sT}, s{sQ}, 1
        s_lshl_b32 s{sT}, s{sT}, 7
        s_add_u32 s{sG}, s{sG}, s{sT}
        s_and_b32 s{sT}, s{sQ}, 1
        s_lshl_b32 s{sT}, s{sT}, 5
        s_add_u32 s{sG}, s{sG}, s{sT}
        s_add_u32 s{sG}, s{sG}, {XNP}
        """)
    def u_loads(emit, ks=range(4)):
        emit("s_setprio 3")
        for k in ks:
            emit(f"s_add_u32 s{sG+1}, s{sG}, {k*16*GS}")
            emit(f"buffer_load_dwordx4 {vr(vU+4*k,4)}, v{vUg}, {WS}, s{sG+1} offen sc1 {OPT.get('uf', '')}")
        emit(f"s_setprio {SP}")
    u_addr()
    W2 = "s[92:95]"
    vW2o, vTp, sW2, sTp = 62, 63, 28, 29
    srd(92, 1376 * 1024)
    a(f"""
    v_lshrrev_b32 v{vT}, 3, v{vL}
    v_lshlrev_b32 v{vT}, 10, v{vT}
    v_bfe_u32 v{vT2}, v{vL}, 4, 1
    v_lshlrev_b32 v{vT3}, 2, v{vT2}
    v_xor_b32 v{vT3}, v{vT3}, v{vL}
    v_and_b32 v{vT3}, 7, v{vT3}
    v_lshl_add_u32 v{vW2o}, v{vT3}, 4, v{vT}
    v_min_u32 v{vTp}, 43, v{vL}
    v_lshlrev_b32 v{vTp}, 7, v{vTp}
    s_mul_i32 s{sW2}, s{sW}, {352*1024}
    s_and_b32 s{sTp}, s{sQ}, 31
    s_mulk_i32 s{sTp}, 5632
    s_add_u32 s{sTp}, s{sTp}, s{sW2}
    s_bfe_u32 s{sT}, s{sQ}, 0x30001
    s_lshl_b32 s{sT}, s{sT}, 7
    s_add_u32 s{sW2}, s{sW2}, s{sT}
    """)
    vXw, vXr_, vK, vZ, vAa, vBa, vUa, vBp, vPr, vK0, vCb = 32, 33, 34, 35, 36, 37, 38, 39, 40, 41, 42
    a(f"""
    v_lshrrev_b32 v{vT2}, 4, v{vL}
    v_and_b32 v{vT3}, 15, v{vL}
    s_lshl_b32 s{sT2}, s{sW}, 12
    s_add_u32 s{sT2}, s{sT2}, {TAB}
    v_lshl_add_u32 v{vXw}, v{vT3}, 4, s{sT2}
    v_lshl_add_u32 v{vXw}, v{vT2}, 10, v{vXw}
    s_lshl_b32 s{sT}, s{sE}, 13
    s_add_u32 s{sT}, s{sT}, {TAB}
    v_add_u32 v{vXr_}, s{sT}, v{vL16}
    s_xor_b32 s{sT2}, s{sT2}, 4096
    v_add_u32 v{vPr}, s{sT2}, v{vL16}
    v_xor_b32 v27, 4, v58
    s_mul_i32 s{sT}, s{sE}, {USZ}
    s_add_u32 s{sT}, s{sT}, {UB0+256}
    s_lshl_b32 s{sT2}, s{sPar}, 8
    v_lshl_add_u32 v{vBa}, v{vT3}, 5, s{sT}
    v_lshl_add_u32 v{vUa}, v{vT2}, 3, v{vBa}
    v_lshlrev_b32 v{vT3}, 4, v{vT2}
    v_add_u32 v{vBa}, v{vT3}, v{vBa}
    v_subrev_u32 v{vBa}, s{sT2}, v{vBa}
    v_bfe_u32 v{vT2}, v{vL}, 2, 2
    v_sub_u32 v{vT4}, 0, v{vT2}
    v_and_b32 v{vT4}, 3, v{vT4}
    v_mul_u32_u24 v{vAa}, 4160, v{vT4}
    v_min_u32 v{vT2}, 1, v{vT2}
    v_lshlrev_b32 v{vT2}, 3, v{vT2}
    v_sub_u32 v{vAa}, v{vAa}, v{vT2}
    v_sub_u32 v{vAa}, v{vAa}, v{vT3}
    v_and_b32 v{vT2}, 3, v{vL}
    v_lshl_add_u32 v{vAa}, v{vT2}, 3, v{vAa}
    s_mul_i32 s{sT}, s{sE}, 16640
    s_add_u32 s{sT}, s{sT}, {CB0}
    v_mov_b32 v{vCb}, s{sT}
    s_add_u32 s{sT2}, s{sT2}, s{sT}
    s_add_u32 s{sT2}, s{sT2}, {32+32-8}
    v_add_u32 v{vAa}, s{sT2}, v{vAa}
    v_lshrrev_b32 v{vT3}, 2, v{vL}
    v_lshl_add_u32 v{vBp}, v{vT2}, 4, v{vT3}
    v_lshlrev_b32 v{vBp}, 2, v{vBp}
    s_lshl_b32 s{sT2}, s{sPar}, 11
    s_add_u32 s{sT2}, s{sT2}, s{sT}
    s_add_u32 s{sT2}, s{sT2}, 32
    v_add_u32 v{vK}, s{sT2}, v{vL16}
    v_bfe_u32 v{vZ}, v{vL}, 3, 2
    v_mul_u32_u24 v{vZ}, 4160, v{vZ}
    v_and_b32 v{vT4}, 7, v{vL}
    v_lshl_add_u32 v{vZ}, v{vT4}, 2, v{vZ}
    v_add_u32 v{vZ}, s{sT}, v{vZ}
    s_lshl2_add_u32 s{sT}, s{sE}, {K0A}
    v_mov_b32 v{vK0}, s{sT}
    v_and_b32 v{vT4}, 1, v{vL}
    v_cmp_eq_u32 s[58:59], 1, v{vT4}
    v_cmp_le_u32 s[56:57], 32, v{vL}
    """)
    def piece(p):
        rg, off = SHARED['LOC'][p]
        a(f"s_add_u32 m0, s{sLA if rg == 'A' else sLB}, {off}\ns_add_u32 s44, s{sW2}, {8192*p}")
        a(f"buffer_load_dwordx4 v{vW2o}, {W2}, s44 offen lds", "P")
    pn = [0]
    PE = int(OPT.get("pe", 0))
    def pieces(n):
        while pn[0] < n: piece(pn[0]); pn[0] += 1
    def touch(half):
        a(f"s_add_u32 s44, s{sTp}, {half*176*1024}")
        a(f"buffer_load_dword v29, v{vTp}, {W2}, s44 offen", "tp")
    TP0, TP1 = int(OPT.get("tp0", 6)), int(OPT.get("tp1", 8))
    PR, PB, FR, KT, KA = 64, 72, 152, 200, 216
    a("s_waitcnt lgkmcnt(0)")
    a.lg = []
    assert int(OPT.get("nkb", 8)) in (7, 8)
    BP = int(OPT.get("bp", 340))
    NKB = int(OPT.get("nkb", 8))
    a.metro = ([int(OPT.get("bb0", 600)), int(OPT.get("b01", 250))] + [int(OPT.get("bq", 440))] * 3 + [BP] * 3 + [BP // 2, 3 * BP // 4])[:NKB]
    a.cost = 0
    uq = list(range(4))
    def on_bar(left):
        nb = NKB - 1 - left
        if nb in (0, 2, 5): stamp()
        if nb == 0: a(f"s_setprio {SP}")
        if nb == TP0: touch(0)
        if nb == TP1: touch(1)
        if nb >= 6: pieces(min(PE, {6: 4, 7: 11}.get(nb, 15)))
        if nb >= UG:
            for _ in range(int(OPT.get("un", 2))):
                if uq: u_loads(lambda t: a(t, "u"), [uq.pop(0)])
    a.on_bar = on_bar
    def pre_bar(left):
        nb = NKB - 1 - left
        if nb >= int(OPT.get("dfl", 1)): dma(99)
        a.wait(vm=f"C{nb}")
    a.pre_bar = pre_bar
    a.on_gap = dma
    a.gap_len = int(OPT.get("dg", 48))
    a(f"""
    s_lshl_b32 s{sT}, s{sLdt}, 16
    s_and_b32 s{sT2}, s{sLdt}, s{sMask}
    s_cmp_eq_u32 s{sE}, 0
    s_cselect_b32 s{sT}, s{sT}, s{sT2}
    v_mov_b32 v{vT}, {LOG2E:#x}
    v_mul_f32 v{vT}, s{sT}, v{vT}
    v_exp_f32 v{vT}, v{vT}
    """)
    a.wait(vm="par")
    stamp()
    for k in range(6): a(f"v_lshlrev_b32 v{vPar+k}, 16, v{vPar+k}")
    TM = 136
    a(f"""
    v_cvt_pk_bf16_f32 v{vT}, v{vT}, v{vT}
    v_lshlrev_b32 v{vT}, 16, v{vT}
    v_mul_f32 v{PR}, v{vPar}, v{vT}
    v_mul_f32 v{PR+1}, v{vPar+1}, v{vT}
    v_mul_f32 v{vPar+2}, v{vPar+2}, v{vT}
    v_mul_f32 v{vPar+3}, v{vPar+3}, v{vT}
    v_mul_f32 v{PR}, {LOG2E:#x}, v{PR}
    v_mul_f32 v{PR+1}, 0.15915494, v{PR+1}
    v_rndne_f32 v{vT}, v{PR+1}
    v_sub_f32 v{PR+1}, v{PR+1}, v{vT}
    """)
    cmul(PR + 2, vPar + 4, vPar + 2)
    for i, l in enumerate((128, 256)):
        a(f"v_mul_f32 v{TM+4*i}, {fl(l)}, v{PR}\nv_mul_f32 v{TM+4*i+1}, {fl(l)}, v{PR+1}")
    for i in range(2): a(f"v_fract_f32 v{TM+4*i+1}, v{TM+4*i+1}\nv_exp_f32 v{TM+4*i}, v{TM+4*i}")
    for i in range(2): a(f"v_cos_f32 v{TM+4*i+2}, v{TM+4*i+1}\nv_sin_f32 v{TM+4*i+3}, v{TM+4*i+1}")
    a(f"ds_write_b128 v{vTab}, {vr(PR,4)}", "pw")
    a(f"""
    v_mul_f32 v{TM+2}, v{TM+2}, v{TM}
    v_mul_f32 v{TM+3}, v{TM+3}, v{TM}
    v_mul_f32 v{PR+6}, v{TM+6}, v{TM+4}
    v_mul_f32_e64 v{PR+7}, -v{TM+7}, v{TM+4}
    """)
    cmul(PR + 4, PR + 2, TM + 2)
    a(f"ds_write_b128 v{vTab}, {vr(PR+4,4)} offset:1024", "pw")
    def p_reads(s_):
        for j in range(4):
            for k in range(2):
                a(f"ds_read_b128 {vr(PB+32*(s_&1)+8*j+4*k,4)}, v{vPb} offset:{256*s_+16*j+1024*k}", f"pb{s_}")
    p_reads(0)
    for s_ in range(4):
        if s_ < 3: p_reads(s_ + 1)
        a.wait(lg=f"pb{s_}")
        if s_ == 3: a(f"s_load_dwordx2 {sr(sTag,2)}, s[8:9], 128")
        F = FR + 16 * (s_ & 1)
        for jp in range(2):
            js = (2 * jp, 2 * jp + 1)
            P = lambda j: PB + 32 * (s_ & 1) + 8 * j
            T = lambda j, w_: TM + 8 * (j & 1) + 4 * w_
            for j in js:
                for w_, o in enumerate((vOA, vOG)):
                    a(f"v_mul_f32 v{T(j,w_)}, v{P(j)}, v{o}\nv_mul_f32 v{T(j,w_)+1}, v{P(j)+1}, v{o}")
            for j in js:
                a(f"v_fract_f32 v{T(j,0)+1}, v{T(j,0)+1}")
                for w_ in range(2): a(f"v_exp_f32 v{T(j,w_)}, v{T(j,w_)}")
            for j in js:
                for w_ in range(2):
                    a(f"v_cos_f32 v{T(j,w_)+2}, v{T(j,w_)+1}\nv_sin_f32 v{T(j,w_)+3}, v{T(j,w_)+1}")
            for j in js:
                a(f"v_mul_f32 v{T(j,0)+2}, v{T(j,0)+2}, v{T(j,0)}\nv_mul_f32_e64 v{T(j,0)+3}, -v{T(j,0)+3}, v{T(j,0)}")
                a(f"v_mul_f32 v{T(j,1)+2}, v{T(j,1)+2}, v{T(j,1)}\nv_mul_f32 v{T(j,1)+3}, v{T(j,1)+3}, v{T(j,1)}")
            for j in js:
                a(f"v_cvt_pk_bf16_f32 v{F+j}, v{T(j,0)+2}, v{T(j,0)+3}")
                cmul(T(j, 0), T(j, 0) + 2, P(j) + 6)
                cmul(T(j, 1), T(j, 1) + 2, P(j) + 2)
                a(f"v_cvt_pk_bf16_f32 v{F+4+j}, v{T(j,0)}, v{T(j,0)+1}")
                cmul(T(j, 0) + 2, T(j, 1) + 2, P(j) + 4)
                a(f"v_cvt_pk_bf16_f32 v{F+8+j}, v{T(j,1)}, v{T(j,1)+1}")
                a(f"v_cvt_pk_bf16_f32 v{F+12+j}, v{T(j,0)+2}, v{T(j,0)+3}")
            if jp == 0 and s_ > 0: k_mfma(s_ - 1)
    k_mfma(3)
    sys.stderr.write(f"metronome left {a.metro} cost {a.cost}\n")
    while a.metro: a.tick()
    a.metro = None
    stamp()
    a(f"s_setprio {OPT.get('xprio', 0)}")
    for t in range(4): a(f"ds_write_b128 v{vXw}, {vr(KT+4*t,4)} offset:{256*t}")
    if NKB == 10: a("ds_write_b32 v58, v58 offset:16")
    a(f"s_waitcnt lgkmcnt(0)\ns_cmp_eq_u32 s{sTag}, 0\ns_cbranch_scc1 S_tagslow\nS_tagok:")
    stamp()
    if NKB < 10:
        a("s_barrier")
        pieces(min(PE, {6: 4, 7: 11}.get(NKB, 15)))
        if TP1 == NKB: a(f"s_add_u32 s44, s{sTp}, {176*1024}\nbuffer_load_dword v29, v{vTp}, {W2}, s44 offen")
    else:
        a("""
        S_xw:
        ds_read_b32 v28, v27 offset:16
        s_waitcnt lgkmcnt(0)
        v_readfirstlane_b32 s44, v28
        s_cmp_eq_u32 s44, 0
        s_cbranch_scc1 S_xw
        """)
    stamp()
    NREST = max(0, 10 - NKB - 2)
    a(f"s_cmp_lg_u32 s{sPar}, 0\ns_cbranch_scc1 S_par1")
    KP = 64
    PK = 88
    K = lambda i: KA + i
    cnt = [0]
    CBAR = [int(x) for x in OPT.get('cbar', '2,5,6,7').split(',')]
    def packs(run, k):
        for cp in range(4):
            for j in range(4): a(f"v_cvt_pk_bf16_f32 v{PK+16*run+4*cp+j}, v{k[cp+2*j]}, v{k[cp+2*j+1]}")
            if cnt[0] in CBAR[:NREST]: a("s_barrier")
            cnt[0] += 1
            a(f"ds_write_b128 v{vK}, {vr(PK+16*run+4*cp,4)} offset:{4160*cp+1024*run}")
    hist0 = list(a.hist)
    for q in range(3):
        a(f"ds_read_b128 {vr(KA+4*q,4)}, v{vXr_} offset:{1024*q}\nds_read_b128 {vr(KP+4*q,4)}, v{vXr_} offset:{TSZ+1024*q}")
    a(f"""
    v_mov_b32 v{vT4}, 0
    ds_write_b32 v{vZ}, v{vT4}
    s_waitcnt lgkmcnt(1)
    """)
    for j in range(12): a(f"v_add_f32 v{KA+j}, v{KA+j}, v{KP+j}")
    a(f"""
    v_cndmask_b32 v{K(1)}, v{K(1)}, v{K(0)}, s[56:57]
    v_cndmask_b32 v{K(3)}, v{K(3)}, v{K(4)}, s[56:57]
    v_cndmask_b32 v{K(5)}, v{K(5)}, v{K(4)}, s[56:57]
    v_cndmask_b32 v{K(7)}, v{K(7)}, v{K(8)}, s[56:57]
    v_mov_b32 v{K(12)}, v{K(8)}
    v_mov_b32 v{K(13)}, v{K(8)}
    s_mov_b64 exec, 1
    ds_write_b32 v{vK0}, v{K(0)}
    v_mov_b32 v{K(0)}, 0
    s_mov_b64 exec, -1
    v_mov_b32_dpp v{K(12)}, v{K(1)} wave_shl:1 row_mask:0xf bank_mask:0xf
    v_mov_b32_dpp v{K(13)}, v{K(2)} wave_shl:1 row_mask:0xf bank_mask:0xf
    """)
    packs(1, [K(9)] * 3 + [K(10)] * 3 + [K(11)] * 5)
    packs(0, [K(i) for i in range(9)] + [K(12), K(13)])
    a(f"""
    s_mov_b64 exec, 1
    ds_write_b32 v{vCb}, v{PK} offset:{2*4160+28}
    ds_write_b32 v{vCb}, v{PK+4} offset:{3*4160+28}
    s_mov_b64 exec, -1
    s_branch S_parj
    S_par1:
    """)
    a.hist = hist0; cnt[0] = 0
    a(f"ds_read_b128 {vr(KA+12,4)}, v{vXr_} offset:3072\nds_read_b128 {vr(KP,4)}, v{vXr_} offset:{TSZ+3072}\ns_waitcnt lgkmcnt(0)")
    for j in range(4): a(f"v_add_f32 v{KA+12+j}, v{KA+12+j}, v{KP+j}")
    a(f"v_cndmask_b32 v{K(0)}, v{K(12)}, v{K(13)}, s[58:59]\nv_cndmask_b32 v{K(1)}, v{K(14)}, v{K(15)}, s[58:59]")
    packs(0, [K(12)] * 4 + [K(0)] + [K(13)] * 6)
    packs(1, [K(14)] * 4 + [K(1)] + [K(15)] * 6)
    a("S_parj:")
    a.lg = []
    a(f"""
    s_lshl_b32 s{sT}, s{sD}, 16
    s_and_b32 s{sT2}, s{sD}, s{sMask}
    s_cmp_eq_u32 s{sE}, 0
    s_cselect_b32 s{sD}, s{sT}, s{sT2}
    s_lshl1_add_u32 s{sT}, s{sQ}, s{sE}
    s_mul_i32 s{sT}, s{sT}, {GC}
    s_add_u32 s{sT}, s{sT}, {Y2}
    s_add_u32 s{sT2}, s{sT}, 4096
    s_mov_b32 s{sCnt}, 0
    """)
    AS, BS, YA, OV, UU, KD = [64, 128], [96, 160], 192, 10, 2, 26
    for k in range(4): a(f"v_mov_b32 v{OV+4*k+2}, s{sTag}\nv_mov_b32 v{OV+4*k+3}, s{sTag+1}")
    stamp()
    CE = "ce" in OPT
    if not CE:
        a("s_barrier")
        while uq: u_loads(lambda t: a(t, "u"), [uq.pop(0)])
        pieces(24)
    assert not uq
    a.wait(vm="u")
    a("S_uchk:")
    a(f"v_cmp_ne_u64 vcc, {sr(sTag,2)}, {vr(vU+2,2)}")
    for k in range(1, 4): a(f"v_cmp_ne_u64 s[{42+2*k}:{43+2*k}], {sr(sTag,2)}, {vr(vU+4*k+2,2)}")
    for k in range(1, 4): a(f"s_or_b64 vcc, vcc, s[{42+2*k}:{43+2*k}]")
    a(f"s_cbranch_vccnz S_uslow\nS_uok:\ns_mov_b32 s{sCnt}, 0")
    stamp()
    for k in range(4): a(f"ds_write_b64 v{vUw}, {vr(vU+4*k,2)} offset:{256*k}")
    a(f"s_waitcnt vmcnt(0) lgkmcnt(0)\ns_setprio {OPT.get('cprio', 1)}\ns_barrier")
    a.vm = []
    a.lg = []
    if CE: pieces(int(OPT.get("npre", 8)))
    PG, CBI = int(OPT.get("pg", 3)), int(OPT.get("cbi", 90))
    stamp()
    def reads(rho):
        s_ = rho & 1; L = []
        for j in range(8):
            L.append((f"ds_read_b128 {vr(BS[s_]+4*j,4)}, v{vBa} offset:{512*j+64*(3-rho)}", f"f{rho}_{j}"))
            L.append((f"ds_read_b64_tr_b16 {vr(AS[s_]+4*j,2)}, v{vAa} offset:{64*(8*j+rho)+8}", f"f{rho}_{j}"))
            L.append((f"ds_read_b64_tr_b16 {vr(AS[s_]+4*j+2,2)}, v{vAa} offset:{64*(8*j+rho)}", f"f{rho}_{j}"))
        return L
    for t, tag in reads(0): a(t, tag)
    first = [True] * 8
    def cm(rho, p, q):
        a.wait(lg=f"f{rho}_{max(p,q)}")
        ct = p + q; s_ = rho & 1
        a(f"v_mfma_f32_16x16x32_bf16 {vr(YA+4*ct,4)}, {vr(AS[s_]+4*p,4)}, {vr(BS[s_]+4*q,4)}, {'0' if first[ct] else vr(YA+4*ct,4)}")
        first[ct] = False
    for rho in range(3):
        if rho == int(OPT.get("cp3", 1)): a("s_setprio 3")
        nxt = reads(rho + 1)
        for n, (p, q) in enumerate(sorted([(p, q) for p in range(8) for q in range(8) if p + q <= 7], key=lambda x: max(x))):
            cm(rho, p, q)
            if n >= 8 and nxt:
                t, tag = nxt.pop(0); a(t, tag)
            if CE:
                g = 36 * rho + n
                if g % PG == 0 and pn[0] < 24: pieces(pn[0] + 1)
                if g == CBI:
                    assert pn[0] == 24
                    a.wait(vm=0)
                    a("s_barrier")
        assert not nxt
    a(f"s_cmp_lg_u32 s{sPar}, 0\ns_cbranch_scc1 S_conv1")
    keep = (list(a.hist), list(a.lg), nstamp[0])
    ZB, PB_ = 64, 80
    for par, (KEEP, SEND) in enumerate((((0, 3, 4, 7), (1, 2, 5, 6)), ((1, 2, 5, 6), (0, 3, 4, 7)))):
        if par: a("S_conv1:")
        a.hist, a.lg, nstamp[0] = list(keep[0]), list(keep[1]), keep[2]
        side = [lambda: a(f"ds_read_b32 v{KD}, v{vK0}", "uu")]
        side += [lambda k=k, ct=ct: a(f"ds_read_b64 {vr(UU+2*k,2)}, v{vUa} offset:{480-256+512*ct}", "uu") for k, ct in enumerate(KEEP)]
        side += [None] * 5
        side += [lambda: (a.wait(lg="uu"), a(f"v_add_f32 v{KD}, s{sD}, v{KD}"))]
        side += [lambda j=j: a(f"v_lshlrev_b32 v{ZB+2*j}, 16, v{UU+j}\nv_and_b32 v{ZB+2*j+1}, s{sMask}, v{UU+j}") for j in range(8)]
        order = [(p, ct - p) for ct in SEND + KEEP for p in range(ct + 1)]
        ends = {}
        for n, (p, q) in enumerate(order): ends[p + q] = n
        wq = list(SEND)
        for n, (p, q) in enumerate(order):
            cm(3, p, q)
            if wq and n >= ends[wq[0]] + 5:
                ct = wq.pop(0); a(f"ds_write_b128 v{vTab}, {vr(YA+4*ct,4)} offset:{1024*SEND.index(ct)}", "sw")
                if not wq: a(f"ds_write_b32 v58, v58", "sw")
            elif side:
                t = side.pop(0)
                if t: t()
            if n == 31:
                assert not wq and not side
                a("ds_read_b32 v28, v27", "pr")
                for k in range(4): a(f"ds_read_b128 {vr(PB_+4*k,4)}, v{vPr} offset:{1024*k}", "pr")
        stamp()
        a.wait(lg=0)
        a(f"""
        v_cmp_eq_u32 vcc, 0, v28
        s_cbranch_vccz S_pok{par}
        S_pw{par}:
        ds_read_b32 v28, v27
        """)
        for k in range(4): a(f"ds_read_b128 {vr(PB_+4*k,4)}, v{vPr} offset:{1024*k}")
        a(f"""
        s_waitcnt lgkmcnt(0)
        v_cmp_eq_u32 vcc, 0, v28
        s_cbranch_vccnz S_pw{par}
        S_pok{par}:
        """)
        a.lg = []
        for j in range(16): a(f"v_fmac_f32 v{PB_+j}, v{KD}, v{ZB+j}")
        a("s_setprio 3")
        for k, ct in enumerate(KEEP):
            for j in range(4): a(f"v_add_f32 v{PB_+4*k+j}, v{PB_+4*k+j}, v{YA+4*ct+j}")
            for j in range(2): a(f"v_cvt_pk_bf16_f32 v{UU+2*k+j}, v{PB_+4*k+2*j}, v{PB_+4*k+2*j+1}")
            for j in range(2): a(f"ds_bpermute_b32 v{OV+4*k+j}, v{vBp}, v{UU+2*k+j}", f"bp{k}")
        for k, ct in enumerate(KEEP):
            a.wait(lg=f"bp{k}")
            a(f"buffer_store_dwordx4 {vr(OV+4*k,4)}, v{vL16}, {WS}, s{sT if ct < 4 else sT2} offen offset:{1024*(ct&3)} sc1")
        if par == 0: a("s_branch S_done")
    a("S_done:")
    stamp()
    if STAMPS:
        a("s_waitcnt vmcnt(0)"); stamp()
    if "wb" in OPT:
        a(f"s_lshr_b32 s{sT}, s2, 3\ns_or_b32 s{sT}, s{sT}, s{sW}\ns_cmp_lg_u32 s{sT}, 0\ns_cbranch_scc1 S_nowb\nbuffer_wbl2 sc1\nS_nowb:")
    stamp_flush(WS, f"s{sW}", vT)
    a("s_endpgm")
    tag_slow("S", sTag, 8, [192], vNon, sCnt)
    a.raw(f"""S_uslow:
{retry_mark(4)}  s_add_u32 s{sCnt}, s{sCnt}, 1
  s_cmp_ge_u32 s{sCnt}, {SPIN}
  s_cbranch_scc1 S_uok
  s_sleep 4""")
    u_loads(lambda t: a.raw("  " + t))
    a.raw("  s_waitcnt vmcnt(0)\n  s_branch S_uchk")

hdr = open("cdna_kernels/" + NAME + ".s.ref").read().split("\n")
top = [l for l in hdr if l.startswith(";") and "@launch" not in l][:16]
a.raw("\n".join(top))
a.raw("; @launch grid=(256,1,1) block=(512,1,1) lds=163840")
a.raw(f""".amdgcn_target "amdgcn-amd-amdhsa--gfx950"
.text
.globl {NAME}_kernel
.p2align 8
.type {NAME}_kernel,@function
{NAME}_kernel:""")
stamp()
NST[0] = 14
a(f"""
v_lshrrev_b32 v1, 6, v0
s_cmp_ge_u32 s2, 256
s_cbranch_scc1 L_exit
v_readfirstlane_b32 s32, v1
s_and_b32 s3, s2, 7
s_lshl_b32 s3, s3, 5
s_lshr_b32 s96, s2, 3
s_add_u32 s3, s3, s96
s_cmp_lt_u32 s32, 4
s_cbranch_scc1 L_gemm
""")
if "nocpf" not in OPT:
    a(f"""
    s_getpc_b64 s[94:95]
    s_lshl_b32 s96, s96, 10
    v_and_b32 v255, 7, v0
    v_lshl_add_u32 v255, v255, 7, s96
    v_min_u32 v255, L_exit-{NAME}_kernel-128, v255
    global_load_dword v254, v255, s[94:95]
    """)
EV[1] = False
ssm = ssm_role()
next(ssm)
EV[1] = True
a("L_gemm:")
a.hist = []; a.vm = []; a.lg = []
if STAMPS: nstamp[0] = 1
gemm_role()
a.raw(".p2align 6")
a("L_ssm:")
NST[0] = 14
EV[1] = False
for _ in ssm: pass
a("L_exit:\ns_endpgm")
a.raw(f""".section .rodata,"a"
.p2align 6
.amdhsa_kernel {NAME}_kernel
  .amdhsa_next_free_vgpr 256
  .amdhsa_next_free_sgpr 102
  .amdhsa_accum_offset 256
  .amdhsa_group_segment_fixed_size 0
  .amdhsa_kernarg_size 120
  .amdhsa_user_sgpr_count 2
  .amdhsa_user_sgpr_kernarg_segment_ptr 1
  .amdhsa_system_sgpr_workgroup_id_x 1
.end_amdhsa_kernel""")
sys.stdout.write(a.text())
sys.stderr.write(f"nops inserted: {a.nops}\n")
```

```python
import sys, struct
from asmlib import Asm, vr, sr

NAME = "parallel_sum__ssm_conv_s4__dense_activation_silu__prompt"
OPT = {x.split("=")[0][2:]: (x.split("=")[1] if "=" in x else "1") for x in sys.argv[1:] if x.startswith("--")}
STAMPS = "stamps" in OPT
SPIN = int(OPT.get("spin", 4000))
PLF = OPT.get("plf", "sc1").replace("_", " ")
FSF = OPT.get("fsf", "sc1").replace("_", " ")
M1, M2 = OPT.get("m1", "81"), OPT.get("m2", "81")
LOCAL = M1 == "81" and M2 == "81" and "nolocal" not in OPT
HSF = "" if LOCAL else "sc1"

HROW = 88 * 1024
H_SIZE = 64 * HROW
ST = 0x580000
FH = 0x590000
GS = 18432
GC = 9216
XNP = 0x600000
XS = 9216
FX = 0x5A0000
FG = 0x5B0000
Y2 = 0xA80000
WS_SIZE = 0x1000000
STAMP_OFF = 0xF80000
LOG2E = 0x3fb8aa3b
fl = lambda x: "0x%08x" % struct.unpack("<I", struct.pack("<f", x))[0]

a = Asm()
SHARED = {}
nstamp = [0]
EV = [0, True]
NST = [16]
def stamp(force=False):
    if "padev" in OPT and EV[1]:
        if EV[0] == int(OPT["padev"]): a("s_memrealtime s[86:87]")
        EV[0] += 1
    if STAMPS and nstamp[0] < NST[0] and (force or ("cs" not in OPT and "g2" not in OPT and "ss" not in OPT) or nstamp[0] in (0, 13) or ("g2" in OPT and nstamp[0] >= 7)):
        i = nstamp[0]; nstamp[0] += 1
        a(f"s_memtime s[{60+2*i}:{61+2*i}]")
def stamp_flush(wsrd, wave_s, vt, row=0):
    if not STAMPS: return
    n = nstamp[0]
    a("s_memrealtime s[98:99]")
    a("s_waitcnt lgkmcnt(0)")
    a(f"s_lshl_b32 s96, s2, 2\ns_add_u32 s96, s96, {wave_s}\ns_lshl_b32 s96, s96, 7\ns_add_u32 s96, s96, {STAMP_OFF+row*512}")
    a("s_mov_b64 exec, 1")
    for i in range(n):
        a(f"v_mov_b32 v{vt}, s{60+2*i}")
        a(f"buffer_store_dword v{vt}, off, {wsrd}, s96 offset:{4*i}")
    a(f"v_mov_b32 v{vt}, s97\nbuffer_store_dword v{vt}, off, {wsrd}, s96 offset:116")
    a(f"v_mov_b32 v{vt}, s100\nbuffer_store_dword v{vt}, off, {wsrd}, s96 offset:120")
    a(f"v_mov_b32 v{vt}, s98\nbuffer_store_dword v{vt}, off, {wsrd}, s96 offset:124")
    nstamp[0] = 0
def retry_mark(bit):
    return f"  s_add_u32 s97, s97, {1 << bit}\n" if STAMPS else ""

def srd(base, size):
    a(f"s_mov_b32 s{base+2}, {size}\ns_mov_b32 s{base+3}, 0x20000")

def cmul(d, x, y):
    a(f"v_mul_f32 v{d}, v{x+1}, v{y+1}")
    a(f"v_mul_f32 v{d+1}, v{x+1}, v{y}")
    a(f"v_fma_f32 v{d}, v{x}, v{y}, -v{d}")
    a(f"v_fmac_f32 v{d+1}, v{x}, v{y+1}")

def tag_slow(pfx, sTag, dbg, offs, vt, sCnt):
    a.raw(f"{pfx}_tagslow:")
    a.raw(retry_mark(0).rstrip("\n"))
    for o in offs:
        a.raw(f"  s_load_dwordx2 {sr(sTag,2)}, s[{dbg}:{dbg+1}], {o}\n  s_waitcnt lgkmcnt(0)\n  s_cmp_lg_u32 s{sTag}, 0\n  s_cbranch_scc1 {pfx}_tagok")
    a.raw(f"""  s_mov_b32 s{sCnt}, 0
{pfx}_tagloop:
  buffer_load_dwordx2 {vr(vt,2)}, off, s[{dbg}:{dbg+3}], 0 sc1
  s_add_u32 s{sCnt}, s{sCnt}, 1
  s_waitcnt vmcnt(0)
  v_readfirstlane_b32 s{sTag}, v{vt}
  v_readfirstlane_b32 s{sTag+1}, v{vt+1}
  s_nop 3
  s_cmp_lg_u32 s{sTag}, 0
  s_cbranch_scc1 {pfx}_tagok
  s_cmp_lt_u32 s{sCnt}, {SPIN}
  s_cbranch_scc1 {pfx}_tagloop
  s_branch {pfx}_tagok""")

def gemm_role():
    X, W1, WS, W2, OUT, DBG, HS = "s[4:7]", "s[8:11]", "s[12:15]", "s[16:19]", "s[20:23]", "s[24:27]", "s[28:31]"
    sP = 3
    sW, sRB, sM, sXB, sWB, sC, sTx, sT, sLA, sLB, sW2, sHS, sHL = range(32, 45)
    sT2, sT3, sL2e, sCnt, sO, sTag, sFl, sRT = 45, 46, 47, 48, 49, 50, 52, 53
    sB1, sMask, sCG, sXcc, sFar, sHS2, sIa = 54, 55, 56, 57, 58, 59, 101
    sY, sRet = sFl, sFar
    sMean, sNeg = 88, 92
    sXn, sSt, sCx = 89, 90, 96
    SROW, STG = 1056, 98304
    vL = 1
    vXo, vWo, vXr, vWr, vW2o, vW2r, vL16 = 2, 6, 9, 13, 17, 18, 22
    vT, vNon, vCs, vT2, vC2, vSa = 23, 24, 26, 29, 30, 31
    vSt, vNeg = 32, 36
    HALF, vSw, vSr, vIa, vT3 = 88, 92, 93, 94, 95
    ACC1, WF, CSA, XF, CSF = 40, 96, 144, 192, 168
    LX, LF, LG, vId = 224, 232, 248, 252
    ACC2, STASH, HB, HD = 32, 96, 192, 8
    LB0 = 49152
    FARAWAY = 0x40000000
    a(f"""
    s_load_dwordx2 s[4:5], s[0:1], 0
    s_load_dwordx2 s[8:9], s[0:1], 80
    s_load_dwordx2 s[24:25], s[0:1], 104
    s_load_dwordx2 s[12:13], s[0:1], 112
    s_load_dwordx2 s[16:17], s[0:1], 88
    s_load_dwordx2 s[20:21], s[0:1], 96
    v_and_b32 v{vL}, 63, v0
    s_lshr_b32 s{sRB}, s{sP}, 4
    s_and_b32 s{sM}, s{sP}, 15
    s_and_b32 s{sC}, s{sP}, 7
    s_mov_b32 s{sCx}, s{sC}
    v_lshlrev_b32 v{vL16}, 4, v{vL}
    s_lshl2_add_u32 s{sCnt}, s{sP}, s{sW}
    s_lshl_b32 s{sCnt}, s{sCnt}, 11
    s_setprio 2
    """)
    if STAMPS: a("s_memrealtime s[98:99]")
    srd(4, 2048 * 1024); srd(8, 512 * 2752)
    a(f"""
    v_lshrrev_b32 v{vT}, 3, v{vL}
    v_lshlrev_b32 v{vT}, 10, v{vT}
    v_lshrrev_b32 v{vT2}, 4, v{vL}
    v_xor_b32 v{vT2}, v{vT2}, v{vL}
    v_and_b32 v{vT2}, 7, v{vT2}
    v_lshl_add_u32 v{vXo}, v{vT2}, 4, v{vT}
    v_xor_b32 v{vXo+1}, 64, v{vXo}
    v_add_u32 v{vXo+2}, {2*7168}, v{vXo}
    v_add_u32 v{vXo+3}, {3*7168}, v{vXo+1}
    v_add_u32 v{vXo+1}, 7168, v{vXo+1}
    s_movk_i32 s{sT}, 5462
    s_movk_i32 s{sT2}, {2752-192}
    v_mul_u32_u24 v{vT}, s{sT}, v{vL}
    """)
    for j in range(3):
        if j: a(f"v_add_u32 v{vT}, {64*5462}, v{vT}")
        a(f"v_lshrrev_b32 v{vT2}, 16, v{vT}\nv_mad_u32_u24 v{vWo+j}, v{vT2}, s{sT2}, v{vL16}")
    a(f"""
    s_lshl2_add_u32 s{sXB}, s{sRB}, s{sW}
    s_lshl_b32 s{sXB}, s{sXB}, 15
    s_mul_i32 s{sWB}, s{sM}, 192
    s_mul_i32 s{sT}, s{sW}, {16*2752}
    s_add_u32 s{sWB}, s{sWB}, s{sT}
    s_lshr_b32 s{sO}, s{sXB}, 6
    s_cmp_eq_u32 s{sM}, 15             ; the 16th workgroup of a row block has no GEMM1 tile: its tile loads go out of range
    s_cselect_b32 s{sXB}, {FARAWAY}, s{sXB}
    s_cselect_b32 s{sWB}, {FARAWAY}, s{sWB}
    s_lshl_b32 s{sLA}, s{sW}, 12
    s_mul_i32 s{sLB}, s{sW}, 3072
    s_add_u32 s{sLB}, s{sLB}, {LB0}
    s_waitcnt lgkmcnt(0)
    """)
    if STAMPS: a("s_mov_b32 s100, s98\ns_mov_b32 s97, 0")
    stamp()

    def w_ops(c):
        ops = []
        for j in range(3):
            def f(j=j):
                if j == 0:
                    a(f"s_mul_i32 s{sT2}, s{sC}, {64*2752}\ns_add_u32 m0, s{sLB}, {(c&3)*12288}\ns_add_u32 s{sT2}, s{sT2}, s{sWB}")
                a(f"buffer_load_dwordx4 v{vWo+j}, {W1}, s{sT2} offen offset:{j*1024} {OPT.get('w1f', '')} lds", f"C{c}")
                if j == 0: a(f"s_add_u32 s{sC}, s{sC}, 1\ns_and_b32 s{sC}, s{sC}, 7")
            ops.append(f)
        return ops
    def x_ops(c):
        ops = []
        for pc in range(4):
            def f(pc=pc):
                if pc == 0:
                    a(f"s_lshl_b32 s{sTx}, s{sCx}, 7\ns_add_u32 m0, s{sLA}, {(c%3)*16384}\ns_add_u32 s{sTx}, s{sTx}, s{sXB}")
                a(f"buffer_load_dwordx4 v{vXo+pc}, {X}, s{sTx} offen offset:{pc*1024} lds", f"C{c}")
                if pc == 0: a(f"s_add_u32 s{sCx}, s{sCx}, 1\ns_and_b32 s{sCx}, s{sCx}, 7")
            ops.append(f)
        return ops
    DQ = []; QT = []
    for c in range(8):
        first = (w_ops(c), x_ops(c)) if c < 2 else (x_ops(c), w_ops(c))
        for grp_ in first:
            isx = len(grp_) == 4
            lim = -1 if c < (3 if isx else 4) else (max(1, 4 * (c - 3)) if isx else 4 * (c - 3) + 2)
            DQ += [(lim, f) for f in grp_]
            QT += [f'C{c}'] * len(grp_)
    def issue(n, s_=-1):
        for _ in range(n):
            if DQ and DQ[0][0] <= s_: DQ.pop(0)[1]()
    for r in range(2):
        a(f"buffer_load_dwordx4 {vr(LX+4*r,4)}, v{vL16}, {X}, s{sCnt} offen offset:{1024*r}", "xrow")
    a(f"""
    s_getreg_b32 s{sXcc}, hwreg(HW_REG_XCC_ID, 0, 4)
    s_mov_b32 s{sB1}, 0x3f803f80
    s_mov_b32 s{sMask}, 0xffff0000
    s_mul_i32 s{sT3}, s{sW}, {2*SROW}
    s_add_u32 s{sT3}, s{sT3}, {STG}
    v_add_u32 v{vSw}, s{sT3}, v{vL16}
    v_bfe_u32 v{vT3}, v{vL}, 2, 2
    v_and_b32 v{vT}, 1, v{vL}
    v_lshl_add_u32 v{vT}, v{vT}, 2, v{vT3}
    v_mul_u32_u24 v{vT}, {SROW}, v{vT}
    v_and_b32 v{vT2}, 2, v{vL}
    v_lshl_add_u32 v{vT}, v{vT2}, 2, v{vT}
    v_lshrrev_b32 v{vT2}, 4, v{vL}
    v_lshl_add_u32 v{vT}, v{vT2}, 4, v{vT}
    s_lshl_b32 s{sT3}, s{sW}, 8
    s_add_u32 s{sT3}, s{sT3}, {STG}
    v_add_u32 v{vSr}, s{sT3}, v{vT}
    """)
    issue(7)
    a(f"""
    v_and_b32 v{vSa}, 31, v{vL}
    v_lshrrev_b32 v{vT2}, 5, v{vL}
    v_bfe_u32 v{vC2}, v{vL}, 1, 3
    v_xor_b32 v{vC2}, v{vC2}, v{vT2}
    v_lshl_add_u32 v{vC2}, v{vC2}, 4, s{sLA}
    v_lshl_add_u32 v{vC2}, v{vSa}, 7, v{vC2}
    v_bfe_u32 v{vT3}, v{vL}, 2, 2
    v_lshl_add_u32 v{vT}, v{vT2}, 3, v{vT3}
    v_mul_u32_u24 v{vT}, 192, v{vT}
    v_bfe_u32 v{vT2}, v{vL}, 4, 1
    v_lshl_add_u32 v{vT}, v{vT2}, 5, v{vT}
    v_and_b32 v{vT2}, 3, v{vL}
    v_lshl_add_u32 v{vT}, v{vT2}, 3, v{vT}
    v_add_u32 v{vT}, {LB0}, v{vT}
    """)
    for i in range(4):
        a(f"""
        s_add_u32 s{sT3}, s{sW}, {i}
        s_and_b32 s{sT3}, s{sT3}, 3
        s_lshl_b32 s{sCnt}, s{sT3}, 5
        s_mulk_i32 s{sT3}, 3072
        v_xor_b32 v{vXr+i}, s{sCnt}, v{vC2}
        v_add_u32 v{vWr+i}, s{sT3}, v{vT}
        """)
    issue(3)
    a(f"""
    v_lshrrev_b32 v{vT2}, 4, v{vL}
    """)
    srd(24, 256)
    srd(12, WS_SIZE)
    a(f"""
    v_lshrrev_b32 v{vT}, 2, v{vL}
    v_xor_b32 v{vT}, v{vT}, v{vT2}
    v_and_b32 v{vT}, 1, v{vT}
    v_add_u32 v{vT}, -1, v{vT}
    """)
    for k in range(4): a(f"v_and_b32 v{HALF+k}, s{sB1}, v{vT}")
    FILL = [u.strip() for u in f"""
    s_mov_b32 s18, {1376*1024}
    s_mov_b32 s19, 0x20000
    s_mov_b32 s22, {2048*1024}
    s_mov_b32 s23, 0x20000
    s_mov_b32 s28, s12
    s_mov_b32 s29, s13
    s_mov_b32 s30, {H_SIZE}
    s_mov_b32 s31, 0x20000
    s_mov_b32 s{sL2e}, {LOG2E:#x}
    v_lshlrev_b32 v{vSa}, 4, v{vSa}
    s_add_u32 s{sO}, s{sO}, {ST}
    v_and_b32 v{vIa}, 15, v{vL}
    v_lshlrev_b32 v{vIa}, 7, v{vIa}
    s_lshl_b32 s{sIa}, s{sRB}, 11
    s_add_u32 s{sIa}, s{sIa}, {ST}
    v_lshrrev_b32 v{vT}, 3, v{vL}
    v_lshlrev_b32 v{vT}, 10, v{vT}
    v_bfe_u32 v{vT2}, v{vL}, 4, 1
    v_lshlrev_b32 v{vT3}, 2, v{vT2}
    v_xor_b32 v{vT3}, v{vT3}, v{vL}
    v_and_b32 v{vT3}, 7, v{vT3}
    v_lshl_add_u32 v{vW2o}, v{vT3}, 4, v{vT}
    v_lshrrev_b32 v{vT}, 5, v{vL}
    v_bfe_u32 v{vT3}, v{vL}, 2, 2
    v_lshl_add_u32 v{vT}, v{vT}, 2, v{vT3}
    v_lshlrev_b32 v{vT}, 7, v{vT}
    v_lshl_add_u32 v{vT}, v{vT2}, 5, v{vT}
    v_bfe_u32 v{vT2}, v{vL}, 3, 1
    v_lshl_add_u32 v{vT}, v{vT2}, 6, v{vT}
    v_and_b32 v{vT2}, 3, v{vL}
    v_lshl_add_u32 v{vT}, v{vT2}, 3, v{vT}
    s_lshl_b32 s{sT3}, s{sW}, 5
    s_and_b32 s{sT3}, s{sT3}, 64
    v_xor_b32 v{vT}, s{sT3}, v{vT}
    v_xor_b32 v{vT2}, 64, v{vT}
    v_add_u32 v{vW2r}, s{sLA}, v{vT}
    v_add_u32 v{vW2r+1}, s{sLA}, v{vT2}
    v_add_u32 v{vW2r+2}, s{sLB}, v{vT}
    v_add_u32 v{vW2r+3}, s{sLB}, v{vT2}
    s_and_b32 s{sT3}, s{sP}, 1
    s_lshl1_add_u32 s{sRT}, s{sRB}, s{sT3}
    s_lshr_b32 s{sCG}, s{sM}, 1
    s_mul_i32 s{sW2}, s{sW}, {352*1024}
    s_lshl_b32 s{sT}, s{sCG}, 7
    s_add_u32 s{sW2}, s{sW2}, s{sT}
    s_mul_i32 s{sHL}, s{sRT}, {2*HROW}
    s_mul_i32 s{sT}, s{sW}, {22*1024}
    s_add_u32 s{sHL}, s{sHL}, s{sT}
    s_lshl_b32 s{sT3}, s{sW}, 8
    s_add_u32 s{sT3}, s{sT3}, {LB0}
    v_lshl_add_u32 v{vT2}, v{vL}, 2, s{sT3}
    v_lshl_add_u32 v{vT}, v{vL}, 2, s{sLB}
    s_lshl2_add_u32 s{sT3}, s{sRB}, s{sW}
    s_mul_i32 s{sT3}, s{sT3}, {HROW}
    s_mul_i32 s{sHS}, s{sM}, 6144
    s_add_u32 s{sHS}, s{sHS}, s{sT3}
    s_add_u32 s{sHS2}, s{sHS}, 4096
    s_cmp_ge_u32 s{sM}, 14 | s_cselect_b32 s{sHS2}, {H_SIZE}, s{sHS2}
    s_lshr_b32 s{sT3}, s{sW}, 1
    s_lshl1_add_u32 s{sT3}, s{sRB}, s{sT3}
    s_lshl4_add_u32 s{sT3}, s{sT3}, s{sM}
    s_and_b32 s{sFl}, s{sW}, 1
    s_lshl1_add_u32 s{sFl}, s{sT3}, s{sFl}
    s_lshl_b32 s{sFl}, s{sFl}, 3
    s_add_u32 s{sFl}, s{sFl}, {FH}
    s_cmp_eq_u32 s{sM}, 15 | s_cselect_b32 s{sHS}, {H_SIZE}, s{sHS} | s_cselect_b32 s{sFl}, {WS_SIZE}, s{sFl}
    """.strip().split("\n")]
    def fill_(n):
        for _ in range(n):
            if FILL: a(FILL.pop(0).replace(" | ", "\n"))

    fill_(int(OPT.get("nfill", 99)))
    issue(int(OPT.get("n0", 14)) - 10)
    a.wait(vm="xrow")
    stamp()

    vC = CSA; S = [252, 253]; vN = 254; sR = sMean
    def dpp_reduce(fill):
        for ctl in ("row_shr:1 row_mask:0xf bank_mask:0xf bound_ctrl:0", "row_shr:2 row_mask:0xf bank_mask:0xf bound_ctrl:0",
                    "row_shr:4 row_mask:0xf bank_mask:0xf bound_ctrl:0", "row_shr:8 row_mask:0xf bank_mask:0xf bound_ctrl:0",
                    "row_bcast:15 row_mask:0xa bank_mask:0xf", "row_bcast:31 row_mask:0xc bank_mask:0xf"):
            for r in range(2):
                a(f"v_add_f32_dpp v{S[r]}, v{S[r]}, v{S[r]} {ctl}")
            for _ in range(3):
                if fill: a(fill.pop(0))
        while fill: a(fill.pop(0))
    for k in range(4):
        for r in range(2):
            a(f"v_dot2_f32_bf16 v{S[r]}, v{LX+4*r+k}, s{sB1}, {'0' if k == 0 else 'v%d' % S[r]}")
    unpack = lambda: [t for r in range(2) for k in range(4) for t in
                      (f"v_lshlrev_b32 v{LF+8*r+2*k}, 16, v{LX+4*r+k}", f"v_and_b32 v{LF+8*r+2*k+1}, s{sMask}, v{LX+4*r+k}")]
    fill = unpack()
    for _ in range(3): a(fill.pop(0))
    dpp_reduce(fill)
    for r in range(2): a(f"v_mul_f32 v{S[r]}, 0x3b000000, v{S[r]}")
    for r in range(2): a(f"v_cvt_pk_bf16_f32 v{vN+r}, -v{S[r]}, -v{S[r]}")
    for r in range(2): a(f"v_readlane_b32 s{sMean+2*r}, v{S[r]}, 63")
    for r in range(2): a(f"v_readlane_b32 s{sNeg+2*r}, v{vN+r}, 63")
    for k in range(4):
        for r in range(2):
            a(f"v_pk_add_f32 {vr(vC+8*r+2*k,2)}, {vr(LF+8*r+2*k,2)}, {sr(sMean+2*r,2)} op_sel_hi:[1,0] neg_lo:[0,1] neg_hi:[0,1]")
    for r in range(2): a(f"s_and_b32 s{sNeg+2*r}, s{sNeg+2*r}, s{sMask}")
    for r in range(2): a(f"s_or_b32 s{sNeg+2*r+1}, s{sNeg+2*r}, s{sXcc}")
    for r in range(2):
        a(f"v_pk_mul_f32 {vr(vC+8*r,2)}, {vr(vC+8*r,2)}, {vr(vC+8*r,2)}")
    for k in range(1, 4):
        for r in range(2):
            a(f"v_pk_fma_f32 {vr(vC+8*r,2)}, {vr(vC+8*r+2*k,2)}, {vr(vC+8*r+2*k,2)}, {vr(vC+8*r,2)}")
    for r in range(2): a(f"v_add_f32 v{S[r]}, v{vC+8*r}, v{vC+8*r+1}")
    fill = [f"v_pk_add_f32 {vr(LF+8*r+2*k,2)}, {vr(LF+8*r+2*k,2)}, {sr(sNeg+2*r,2)} op_sel_hi:[1,0]" for k in range(4) for r in range(2)]
    fill += [f"v_cvt_pk_bf16_f32 v{LX+4*r+k}, v{LF+8*r+2*k}, v{LF+8*r+2*k+1}" for k in range(4) for r in range(2)]
    dpp_reduce(fill)
    issue(int(OPT.get('n1', 0)))
    def rnd():
        for r in range(2): a(f"v_cvt_pk_bf16_f32 v{S[r]}, v{S[r]}, v{S[r]}")
        for r in range(2): a(f"v_lshlrev_b32 v{S[r]}, 16, v{S[r]}")
    for r in range(2): a(f"v_mul_f32 v{S[r]}, 0x3b000000, v{S[r]}")
    rnd()
    for r in range(2): a(f"v_add_f32 v{S[r]}, 0x3727c5ac, v{S[r]}")
    rnd()
    for r in range(2): a(f"v_sqrt_f32 v{S[r]}, v{S[r]}")
    rnd()
    for r in range(2): a(f"v_rcp_f32 v{S[r]}, v{S[r]}")
    for t in unpack(): a(t)
    for r in range(2): a(f"v_readlane_b32 s{sR+2*r}, v{S[r]}, 63")
    a(f"s_load_dwordx2 {sr(sTag,2)}, s[24:25], 0")
    for r in range(2):
        for k in range(4):
            a(f"v_pk_mul_f32 {vr(LF+8*r+2*k,2)}, {vr(LF+8*r+2*k,2)}, {sr(sR+2*r,2)} op_sel_hi:[1,0]")
        for k in range(4):
            a(f"v_cvt_pk_bf16_f32 v{LX+4*r+k}, v{LF+8*r+2*k}, v{LF+8*r+2*k+1}")
        a(f"ds_write_b128 v{vSw}, {vr(LX+4*r,4)} offset:{SROW*r}", "stg")
    a(f"""
    v_mov_b32 v{LG}, s{sNeg+1}
    v_mov_b32 v{LG+1}, s{sR}
    v_writelane_b32 v{LG}, s{sNeg+3}, 1
    v_writelane_b32 v{LG+1}, s{sR+2}, 1
    s_mul_i32 s{sXn}, s{sP}, {GS}
    s_lshl_b32 s{sT3}, s{sW}, 12
    s_add_u32 s{sXn}, s{sXn}, s{sT3}
    s_add_u32 s{sXn}, s{sXn}, {XNP}
    s_lshl2_add_u32 s{sSt}, s{sP}, s{sW}
    s_lshl_b32 s{sSt}, s{sSt}, 5
    s_add_u32 s{sSt}, s{sSt}, {ST}
    """)
    issue(int(OPT.get('n2', 7)))
    a.wait(lg=0)
    stamp()

    GROUPS = [("A", 2, 4), ("A", 0, 4), ("B", 1, 3), ("A", 1, 4), ("B", 0, 3), ("B", 2, 3), ("B", 3, 3)]
    LOC = []
    for rg, sl, n in GROUPS:
        for k in range(n):
            LOC.append((rg, sl * (16384 if rg == "A" else 12288) + k * 1024))
    PL2 = list(range(4, 24))
    ploc = lambda p: p if p < 24 else PL2[p - 24]
    SHARED['LOC'] = LOC
    pn = [0]
    def p_next():
        p = pn[0]; pn[0] += 1
        rg, off = LOC[ploc(p)]
        a(f"s_add_u32 m0, s{sLA if rg == 'A' else sLB}, {off}")
        a(f"s_add_u32 s{sT3}, s{sW2}, {8192*p}")
        a(f"buffer_load_dwordx4 v{vW2o}, {W2}, s{sT3} offen lds", f"P{p}")

    wb = lambda s_: WF + 12 * (s_ % 3)
    def tr_pair(s_, ft):
        c, i = divmod(s_, 4)
        for e in range(2):
            a(f"ds_read_b64_tr_b16 {vr(wb(s_)+4*ft+2*e,2)}, v{vWr+i} offset:{(c&3)*12288+e*768+ft*64}", f"wf{s_}")
    def rd_x(c, i):
        a(f"ds_read_b128 {vr(XF+16*(c&1)+4*i,4)}, v{vXr+i} offset:{(c%3)*16384}", f"xf{c}_{i}")
    def open_chunk(c):
        if "cs" in OPT and c in (3, 5): stamp(True)
        a.wait(vm=f"C{c}")
        if (c == 0 and "ss" not in OPT) or ("cs" in OPT and c in (3, 5)): stamp(True)
        a("s_barrier")
        if "cs" in OPT and c: stamp(True)

    open_chunk(0)
    rd_x(0, 0)
    for ft in range(3): tr_pair(0, ft)
    for i in range(1, 4): rd_x(0, i)
    for ft in range(3): tr_pair(1, ft)
    a(f"s_cmp_eq_u32 s{sTag}, 0\ns_cbranch_scc1 G_tagslow\nG_tagok:")
    for k in range(5): a(f"v_mov_b32 v{LF+4*k+2}, s{sTag}\nv_mov_b32 v{LF+4*k+3}, s{sTag+1}")
    XSL = {"a": [(0, 1), (0, 2), (1, 0), (1, 2), (2, 1)], "b": [(3, 0), (3, 1), (3, 2), (7, 0), (7, 1)], "c": [(1, 0), (1, 2), (3, 0), (3, 2), (5, 1)]}[OPT.get("xsl", "b")]
    PS = 99
    def bg_op(c, i, ft):
        s_ = 4 * c + i
        if DQ: issue(1, s_)
        elif s_ >= PS and ft != 1:
            lim = 0 if s_ < 20 else 4 if s_ < 24 else 8 if s_ < 26 else 11 if s_ < 28 else 15 if s_ < 30 else 18 if s_ < 31 else 24
            if pn[0] < lim: p_next()
    def split(dst, src, tmp):
        return [f"v_cvt_pk_bf16_f32 v{tmp}, v{src}, v{src}", f"v_lshlrev_b32 v{tmp}, 16, v{tmp}",
                f"v_sub_f32 v{tmp}, v{src}, v{tmp}", f"v_cvt_pk_bf16_f32 v{dst}, v{src}, v{tmp}"]
    for c in range(8):
        a.comment(f"---- GEMM1 chunk {c}")
        for i in range(4):
            s_ = 4 * c + i
            if i == 2 and c < 7:
                issue(int(OPT.get('flush', 0)), s_ - 1)
                assert not any(t == f'C{c+1}' for t in QT[len(QT)-len(DQ):])
                open_chunk(c + 1)
            a.wait(lg=(f"xf{c}_{3 if s_ else 0}", f"wf{s_}"))
            if "ss" in OPT and int(OPT["ss"]) <= s_ < int(OPT["ss"]) + 12: stamp(True)
            if s_ == 28:
                assert "csw" not in a.lg
                a("s_barrier")
            if s_ == 31: a("s_barrier")
            for ft in range(3):
                cs = i == 0 or c >= 7
                if cs and s_ == 31:
                    a(f"v_mfma_f32_16x16x32_bf16 {vr(CSA+12+4*ft,4)}, {vr(HALF,4)}, {vr(wb(s_)+4*ft,4)}, {vr(CSA+12+4*ft,4)}")
            for ft in range(3):
                cc = "0" if s_ == 0 else vr(ACC1+16*ft, 16)
                a(f"v_mfma_f32_32x32x16_bf16 {vr(ACC1+16*ft,16)}, {vr(wb(s_)+4*ft,4)}, {vr(XF+16*(c&1)+4*i,4)}, {cc}")
                if i == 2 and c < 7:
                    if ft == 0: rd_x(c + 1, 0)
                    rd_x(c + 1, ft + 1)
                if s_ + 2 < 32: tr_pair(s_ + 2, ft)
                if (s_, ft) == (0, 0):
                    for k in range(4): a(f"ds_read_b64_tr_b16 {vr(LF+4*k,2)}, v{vSr} offset:{64*k}", "tr")
                if (s_, ft) in XSL:
                    a.wait(lg="tr")
                    k = XSL.index((s_, ft))
                    if k < 4: a(f"buffer_store_dwordx4 {vr(LF+4*k,4)}, v{vL16}, {WS}, s{sXn} offen offset:{1024*k} sc1", "xn")
                    else: a(f"s_mov_b64 exec, 3\nbuffer_store_dwordx4 {vr(LG,4)}, v{vL16}, {WS}, s{sSt} offen sc1\ns_mov_b64 exec, -1")
                else: bg_op(c, i, ft)
                if (i == 0 or c >= 7) and s_ != 31:
                    d = CSA + 4 * ft + (12 if c >= 7 else 0)
                    a(f"v_mfma_f32_16x16x32_bf16 {vr(d,4)}, {vr(HALF,4)}, {vr(wb(s_)+4*ft,4)}, {'0' if s_ in (0, 28) else vr(d,4)}")
                if s_ == 25:
                    for t in split(vCs + ft, CSA + 4 * ft, CSA + 4 * ft + 1): a(t)
                if s_ == 25:
                    for k in range(2):
                        a(f"ds_write2st64_b32 v{vT2}, v{vCs+ft}, v{vCs+ft} offset0:{24*k+4*ft} offset1:{24*k+12+4*ft}", "csw")
                if s_ == 23:
                    for k in range(4): a(f"v_mov_b32 v{CSF+4*ft+k}, 0")
                if s_ == 28:
                    a("s_mov_b32 exec_hi, 0")
                    for k in range(2):
                        a(f"ds_read2st64_b32 {vr(CSF+4*ft+2*k,2)}, v{vT} offset0:{4*ft+2*k} offset1:{4*ft+2*k+1}", "csf")
                    a("s_mov_b32 exec_hi, -1")
                if s_ == 29 and ft == 2:
                    a.wait(vm="st", lg="csf")
                    a(f"""
                    s_mov_b32 s{sCnt}, 0
                    G_stchk:
                    v_cmp_ne_u64 vcc, {sr(sTag,2)}, {vr(vSt+2,2)}
                    v_cmp_ne_u64 s[88:89], {sr(sTag,2)}, {vr(vId+2,2)}
                    v_and_b32 v{vId+1}, 0xffff, v{vId}
                    s_or_b64 vcc, vcc, s[88:89]
                    s_cbranch_vccnz G_stslow
                    G_stok:
                    """)
                if s_ == 30 and ft == 0:
                    a(f"""
                    v_cmp_ne_u32 s[90:91], s{sXcc}, v{vId+1}
                    v_lshrrev_b32 v{vNeg+1}, 16, v{vSt}
                    v_bfi_b32 v{vNeg}, s{sMask}, v{vSt}, v{vNeg+1}
                    v_bfi_b32 v{vNeg+2}, s{sMask}, v{vSt}, v{vNeg+1}
                    """)
                if s_ == 30 and ft == 1:
                    a(f"""
                    v_bfi_b32 v{vNeg+3}, s{sMask}, v{vSt}, v{vNeg+1}
                    v_bfi_b32 v{vNeg+1}, s{sMask}, v{vSt}, v{vNeg+1}
                    v_mul_f32 v{vC2}, s{sL2e}, v{vSt+1}
                    s_or_b32 s{sFar}, s90, {1 if 'forcefar' in OPT else 's91'}
                    v_mov_b32 v{vNon}, s{sTag}
                    v_mov_b32 v{vNon+1}, s{sTag+1}
                    """)
                if s_ == 31:
                    sp = split(CSF + 4 * ft, CSA + 12 + 4 * ft, CSA + 13 + 4 * ft)
                    for t in sp[:3]: a(t)
                    a(f"s_mov_b32 exec_lo, 0\n{sp[3]}\ns_mov_b32 exec_lo, -1")
            if s_ == 23:
                assert not FILL
                a(f"buffer_load_dwordx4 {vr(vSt,4)}, v{vSa}, {WS}, s{sO} offen sc1", "st")
                a(f"buffer_load_dwordx4 {vr(vId,4)}, v{vIa}, {WS}, s{sIa} offen sc1", "st")
    assert not DQ
    stamp()
    for ft in range(3):
        a(f"v_mfma_f32_32x32x16_bf16 {vr(ACC1+16*ft,16)}, {vr(CSF+4*ft,4)}, {vr(vNeg,4)}, {vr(ACC1+16*ft,16)}")
    E1, OB = 208, 224
    def tr_w2(step, tag):
        base = STASH + 8 * (step % 12)
        for j in range(2):
            for e in range(2):
                rg, off = LOC[ploc(2 * step + e)]
                a(f"ds_read_b64_tr_b16 {vr(base+4*j+2*e,2)}, v{vW2r+(0 if rg=='A' else 2)+j} offset:{off}", tag)
    pn[0] = 24
    B9, B10 = int(OPT.get("b9", 1)), int(OPT.get("b10", 6))
    for ft in range(3):
        for j in range(2):
            A0 = ACC1 + 16 * ft + 8 * j
            T0 = E1 + 8 * j
            for k in range(8): a(f"v_mul_f32 v{A0+k}, v{vC2}, v{A0+k}")
            for k in range(8): a(f"v_exp_f32_e64 v{T0+k}, -v{A0+k}")
            if pn[0] < 24: p_next()
            for k in range(8): a(f"v_fma_f32 v{T0+k}, v{T0+k}, s{sL2e}, s{sL2e}")
            for k in range(8): a(f"v_rcp_f32 v{T0+k}, v{T0+k}")
            if pn[0] < 24: p_next()
            for k in range(8): a(f"v_mul_f32 v{A0+k}, v{A0+k}, v{T0+k}")
            for k in range(0, 8, 2): a(f"v_cvt_pk_bf16_f32 v{OB+8*ft+4*j+k//2}, v{A0+k}, v{A0+k+1}")
            a(f"buffer_store_dwordx4 {vr(OB+8*ft+4*j,4)}, v{vL16}, {HS}, s{sHS if ft < 2 else sHS2} offen offset:{1024*((2*ft+j)&3)} {OPT.get('hnt', 'nt')}", "hs")
    stamp()
    vH, vF, vXg, vO, vY, vXl, vR, vP, vYl = 2, 4, 5, 6, 7, 8, 13, 10, 9
    a(f"""
    s_lshl_b32 s{sT}, s{sW}, 3
    s_lshr_b32 s{sT2}, 0x160e0600, s{sT}
    s_and_b32 s{sT2}, s{sT2}, 0xff
    s_lshr_b32 s{sT}, 0x1d150f07, s{sT}
    s_and_b32 s{sT}, s{sT}, 0xff
    v_max_u32 v{vF}, s{sT2}, v{vL}
    v_min_u32 v{vF}, s{sT}, v{vF}
    v_lshlrev_b32 v{vF}, 3, v{vF}
    s_and_b32 s{sT}, s{sW}, 1
    s_mul_i32 s{sT2}, s{sT}, {HROW}
    v_add_u32 v{vH}, s{sT2}, v{vL16}
    s_sub_u32 s{sT2}, {HROW}, s{sT2}
    v_add_u32 v{vH+1}, s{sT2}, v{vL16}
    s_mov_b32 s{sCnt}, 0
    """)
    a(f"s_cmp_lg_u32 s{sFar}, 0\ns_cbranch_scc1 G_far")
    a.wait(vm="hs")
    stamp()
    a(f"s_mov_b64 exec, 1\nbuffer_store_dwordx2 {vr(vNon,2)}, off, {WS}, s{sFl}\nG_pub:\ns_mov_b64 exec, -1")
    a(f"s_lshl_b32 s{sRet}, s{sRT}, 8\ns_add_u32 s{sRet}, s{sRet}, {FH}")
    a("s_barrier")
    PK_ = int(OPT.get("pk", 4))
    order = list(range(2, 12)) + [0, 1]
    for n_, k in enumerate(order):
        if n_ == PK_: a(f"buffer_load_dwordx2 {vr(vP,2)}, v{vF}, {WS}, s{sRet} offen sc1", "poll")
        tr_w2(k, f"S{k}")
    def p2():
        a.wait(lg=f"S{ploc(pn[0])//2}")
        p_next()
    for _ in range(int(OPT.get("np0", 4))): p2()
    stamp()
    a.wait(vm="poll")
    a(f"G_hchk:\nv_cmp_ne_u64 vcc, {sr(sTag,2)}, {vr(vP,2)}\ns_add_u32 s{sCnt}, s{sCnt}, 1\ns_cbranch_vccnz G_hslow\nG_hok:")
    stamp()
    if STAMPS: a(f"s_lshl_b32 s{sCnt}, s{sCnt}, 16\ns_add_u32 s97, s97, s{sCnt}")
    HS_ = [(i, 1) for i in range(12)] + [(i, j) for i in range(12, 22) for j in (1, 0)] + [(i, 0) for i in range(12)]
    HR, WR = int(OPT.get("hr", 10)), 232
    grp = [None]
    def h_load(n):
        i, j = HS_[n]
        if i // 4 != grp[0]:
            grp[0] = i // 4; a(f"s_add_u32 s{sTx}, s{sHL}, {4096*(i//4)}")
        a(f"buffer_load_dwordx4 {vr(HB+4*(n%HR),4)}, v{vH+j}, {HS}, s{sTx} offen offset:{1024*(i%4)} {OPT.get('hlf', 'sc1').replace('_', ' ')}", f"h{n}")
    for n in range(HR - 1): h_load(n)
    a(f"""
    s_lshl1_add_u32 s{sT2}, s{sRT}, s{sT}
    s_lshr_b32 s{sT}, s{sW}, 1
    s_lshl1_add_u32 s{sCnt}, s{sCG}, s{sT}
    s_lshl_b32 s{sO}, s{sT2}, 15
    s_lshl_b32 s{sT}, s{sCnt}, 6
    s_add_u32 s{sO}, s{sO}, s{sT}
    s_mul_i32 s{sY}, s{sCnt}, {32*GC}
    s_lshl_b32 s{sT}, s{sT2}, 7
    s_add_u32 s{sY}, s{sY}, s{sT}
    s_add_u32 s{sY}, s{sY}, {Y2}
    v_and_b32 v{vT}, 31, v{vL}
    v_lshrrev_b32 v{vT2}, 5, v{vL}
    v_lshlrev_b32 v{vO}, 10, v{vT}
    v_lshl_add_u32 v{vO}, v{vT2}, 4, v{vO}
    v_lshl_add_u32 v{vXl}, v{vT}, 6, s{sLA}
    v_lshl_add_u32 v{vXl}, v{vT2}, 4, v{vXl}
    v_lshlrev_b32 v{vYl}, 3, v{vT2}
    v_sub_u32 v{vF}, v{vT}, v{vYl}
    v_bfe_u32 v{vT}, v{vL}, 2, 2
    v_add_u32 v{vYl}, v{vYl}, v{vT}
    v_lshl_add_u32 v{vYl}, v{vYl}, 7, s{sLA}
    v_bfe_u32 v{vT}, v{vL}, 4, 1
    v_lshl_add_u32 v{vYl}, v{vT}, 6, v{vYl}
    v_and_b32 v{vT}, 3, v{vL}
    v_lshl_add_u32 v{vYl}, v{vT}, 4, v{vYl}
    v_lshrrev_b32 v{vY}, 3, v{vL}
    v_mul_u32_u24 v{vY}, {GC}, v{vY}
    v_and_b32 v{vT}, 7, v{vL}
    v_lshl_add_u32 v{vY}, v{vT}, 4, v{vY}
    v_add_u32 v{vP}, s{sLA}, v{vL16}
    v_lshrrev_b32 v{vXg}, 2, v{vL}
    v_lshlrev_b32 v{vXg}, 10, v{vXg}
    v_and_b32 v{vT}, 3, v{vL}
    v_lshl_add_u32 v{vXg}, v{vT}, 4, v{vXg}
    v_add_u32 v{vR}, s{sLB}, v{vL16}
    """)
    for k in range(1, 4):
        a(f"s_xor_b32 s{sT}, s{sW}, {k}\ns_mulk_i32 s{sT}, 3072\ns_add_u32 s{sT}, s{sT}, {LB0}\nv_add_u32 v{vR+k}, s{sT}, v{vL16}")
    YO = 32768
    YT, YF, XFr, IDN = 232, 240, 248, 24
    XR = 24
    if "touch" in OPT:
        a(f"v_and_b32 v{vT}, 31, v{vL}\nv_mul_u32_u24 v{vT}, {GC}, v{vT}")
        a(f"buffer_load_dword v12, v{vT}, {WS}, s{sY} offen sc1", "yt")
    a(f"v_and_b32 v{vT}, 1, v{vF}\nv_lshlrev_b32 v{vT}, 4, v{vT}\nv_lshlrev_b32 v{vT}, v{vT}, v{vW2o}" if False else
      f"v_and_b32 v{vT}, 1, v{vF}\nv_lshlrev_b32 v{vT}, 4, v{vT}\nv_mov_b32 v11, 0x3f80\nv_lshlrev_b32 v11, v{vT}, v11\nv_ashrrev_i32 v{vF}, 1, v{vF}")
    for k in range(8):
        a(f"v_cmp_eq_u32 s[{88+2*(k&1)}:{89+2*(k&1)}], {8*(k>>2)+(k&3)}, v{vF}")
        if k: a(f"v_cndmask_b32 v{IDN+k-1}, 0, v11, s[{88+2*((k-1)&1)}:{89+2*((k-1)&1)}]")
    a(f"v_cndmask_b32 v{IDN+7}, 0, v11, s[90:91]")
    def y_loads(emit):
        emit(f"s_add_u32 m0, s{sLA}, {YO}")
        for k in range(4):
            emit(f"s_add_u32 s{sT2}, s{sY}, {8*k*GC-1024*k}")
            emit(f"buffer_load_dwordx4 v{vY}, {WS}, s{sT2} offen offset:{1024*k} sc1 lds")
    def y_reads(emit):
        for k in range(4): emit(f"ds_read_b64 {vr(YT+2*k,2)}, v{vP} offset:{YO+1024*k+8}")
        for k in range(4): emit(f"ds_read_b64_tr_b16 {vr(YF+2*k,2)}, v{vYl} offset:{YO+2048*(k>>1)+512*(k&1)}")
    wreg = lambda i: STASH + 8 * i if i < 12 else WR + 8 * (i % 3)
    def w_reads(i, half):
        j = half
        assert pn[0] > 2 * i + 1
        a.wait(vm=f"P{2*i+1}")
        for e in range(2):
            rg, off = LOC[ploc(2 * i + e)]
            a(f"ds_read_b64_tr_b16 {vr(wreg(i)+4*j+2*e,2)}, v{vW2r+(0 if rg=='A' else 2)+j} offset:{off}", f"r{i}")
    started = set()
    def mm(n, jd):
        i, j = HS_[n]; k = 2 * jd + j
        ac = ACC2 + 16 * k
        a(f"v_mfma_f32_32x32x16_bf16 {vr(ac,16)}, {vr(wreg(i)+4*jd,4)}, {vr(HB+4*(n%HR),4)}, {vr(ac,16) if k in started else '0'}")
        started.add(k)
    roff = lambda k, q: (((k - 1) * 4 + q) // 3) * 12288 + (((k - 1) * 4 + q) % 3) * 1024
    def r_write(k, q): a(f"ds_write_b128 v{vR}, {vr(ACC2+16*k+4*q,4)} offset:{roff(k,q)}", "rw")
    def r_read(k, q): a(f"ds_read_b128 {vr(ACC2+16*k+4*q,4)}, v{vR+k} offset:{roff(k,q)}", f"rr{k}")
    YS = int(OPT.get("ys", 34))
    NT = 4
    PR_ = int(OPT.get('pr', 1))
    side = []
    def run_side(c):
        for _ in range(c):
            if side:
                t = side.pop(0)
                if callable(t): t()
                else: a(t)
    for n in range(44 - NT):
        i, j = HS_[n]
        a.wait(vm=f"h{n}", lg=(f"r{i}" if i >= 12 else 0 if n == 0 else None))
        if n == 0 or ("g2" in OPT and n in (12, 24, 32, 36)): stamp(True)
        for jd in range(2):
            mm(n, jd)
            if jd == 0 and n + HR - 1 < 44: h_load(n + HR - 1)
            if pn[0] < 44 and (jd == 1 or n % PR_ == 0): p2()
            if n in (8, 10): w_reads(12 + (n - 8) // 2, jd)
            if 12 <= n < 28 and j == 1: w_reads(i + 2, jd)
            if jd == 1 and n == YS:
                y_loads(lambda t: a(t, "yr"))
            if jd == 1 and n == 30:
                a(f"s_mov_b32 m0, s{sLA}\ns_add_u32 s{sT2}, s{sO}, {16384-1024}")
                a(f"buffer_load_dwordx4 v{vXg}, {X}, s{sO} offen lds", "xr")
                a(f"buffer_load_dwordx4 v{vXg}, {X}, s{sT2} offen offset:1024 lds", "xr")
            g = 2 * (n - 32) + jd
            if 0 <= g < 12 and g % 3 != 2:
                w = g - g // 3; r_write(1 if w < 4 else 3, w & 3)
            if g == 12:
                a.wait(vm="xr")
                for q in range(2): a(f"ds_read_b128 {vr(XFr+4*q,4)}, v{vXl} offset:{32*q}", "xl")
            if g == 14:
                a.wait(lg="rw")
                a("s_barrier")
                for q in range(4): r_read(1, q)
            if g == 15:
                for q in range(4): r_read(3, q)
    if "ts" in OPT: stamp()
    side = [lambda: a.wait(lg="rr3")] + [f"v_add_f32 v{ACC2+16+q}, v{ACC2+16+q}, v{ACC2+48+q}" for q in range(16)]
    for q, n in enumerate(range(44 - NT, 44)):
        a.wait(vm=f"h{n}")
        mm(n, 1)
        if q >= 2: run_side(6)
    tail = [lambda n=n: mm(n, 0) for n in range(44 - NT, 44)]
    for src in (XFr, YF):
        for q in range(2):
            tail.append(lambda src=src, q=q: a(f"v_mfma_f32_32x32x16_bf16 {vr(ACC2,16)}, {vr(IDN+4*q,4)}, {vr(src+4*q,4)}, {vr(ACC2,16)}"))
    for q, t in enumerate(tail):
        t()
        if q == 0: run_side(99)
        if 1 <= q <= 4: r_write(2, q - 1)
        if q == 4:
            a.wait(vm="yr")
            y_reads(lambda t: a(t, "yl"))
        if q == 5:
            a.wait(lg="rw")
            a("s_barrier")
            for q2 in range(4): r_read(2, q2)
            a.wait(lg="yl")
            a(f"s_mov_b32 s{sCnt}, 0\nG_ychk:")
            a(f"v_cmp_ne_u64 vcc, {sr(sTag,2)}, {vr(YT,2)}")
            for q2 in range(1, 4): a(f"v_cmp_ne_u64 s[{86+2*q2}:{87+2*q2}], {sr(sTag,2)}, {vr(YT+2*q2,2)}")
            for q2 in range(1, 4): a(f"s_or_b64 vcc, vcc, s[{86+2*q2}:{87+2*q2}]")
            a("s_cbranch_vccnz G_yslow\nG_yok:")
    stamp()
    a.wait(lg="rr2")
    for q in range(16): a(f"v_add_f32 v{ACC2+16+q}, v{ACC2+16+q}, v{ACC2+32+q}")
    for k in range(8):
        a(f"v_pk_add_f32 {vr(ACC2+2*k,2)}, {vr(ACC2+2*k,2)}, {vr(ACC2+16+2*k,2)}")
    for k in range(8):
        a(f"v_cvt_pk_bf16_f32 v{XR+k}, v{ACC2+2*k}, v{ACC2+2*k+1}")
    for q in range(2):
        a(f"v_permlane32_swap_b32 v{XR+4*q}, v{XR+4*q+2}\nv_permlane32_swap_b32 v{XR+4*q+1}, v{XR+4*q+3}")
        a(f"buffer_store_dwordx4 {vr(XR+4*q,4)}, v{vO}, {OUT}, s{sO} offen offset:{32*q} {OPT.get('osf', '').replace('_', ' ')}")
    stamp()
    if STAMPS:
        a("s_waitcnt vmcnt(0)"); stamp()
    if "padev" in OPT:
        a(f"G_pad2:\ns_memrealtime s[98:99]\ns_waitcnt lgkmcnt(0)\ns_sub_u32 s96, s98, s86\ns_cmp_lt_u32 s96, 3000\ns_cbranch_scc1 G_pad2")
    if "padto" in OPT:
        a(f"G_pad:\ns_memrealtime s[98:99]\ns_waitcnt lgkmcnt(0)\ns_sub_u32 s96, s98, s{sTag}\ns_cmp_lt_u32 s96, {OPT['padto']}\ns_cbranch_scc1 G_pad")
    if "dbg" in OPT:
        n = nstamp[0]
        a(f"s_memrealtime s[98:99]\ns_waitcnt lgkmcnt(0)\ns_lshl2_add_u32 s96, s2, s{sW}\ns_cmp_lg_u32 s96, {4*int(OPT['dbg'])}\ns_cbranch_scc1 G_nodbg\ns_mov_b64 exec, 1")
        for i in range(1, n):
            a(f"s_sub_u32 s96, s{60+2*i}, s60\nv_mov_b32 v{vT}, s96\nbuffer_store_dword v{vT}, off, {DBG}, 0 offset:{4+4*i}")
        a(f"s_sub_u32 s96, s98, s{sTag}\nv_mov_b32 v{vT}, s96\nbuffer_store_dword v{vT}, off, {DBG}, 0 offset:60")
        a("G_nodbg:")
    stamp_flush(WS, f"s{sW}", vT, 256)
    a("s_endpgm")
    tag_slow("G", sTag, 24, [64, 192], vNon, sCnt)
    a.raw(f"""G_stslow:
{retry_mark(4)}  s_add_u32 s{sCnt}, s{sCnt}, 1
  s_cmp_ge_u32 s{sCnt}, {SPIN}
  s_cbranch_scc1 G_stok
  buffer_load_dwordx4 {vr(vSt,4)}, v{vSa}, {WS}, s{sO} offen sc1
  buffer_load_dwordx4 {vr(vId,4)}, v{vIa}, {WS}, s{sIa} offen sc1
  s_waitcnt vmcnt(0)
  s_branch G_stchk
G_hslow:
  s_cmp_ge_u32 s{sCnt}, {SPIN}
  s_cbranch_scc1 G_hok
  buffer_load_dwordx2 {vr(vP,2)}, v{vF}, {WS}, s{sRet} offen sc1
  s_waitcnt vmcnt(0)
  s_branch G_hchk
G_yslow:
{retry_mark(8)}  s_add_u32 s{sCnt}, s{sCnt}, 1
  s_cmp_ge_u32 s{sCnt}, {1 if "nossm" in OPT else SPIN}
  s_cbranch_scc1 G_yok""")
    y_loads(lambda t: a.raw("  " + t))
    a.raw("  s_waitcnt vmcnt(0)")
    y_reads(lambda t: a.raw("  " + t))
    a.raw("  s_waitcnt lgkmcnt(0)\n  s_branch G_ychk")
    a.hist = []
    a("G_far:\ns_waitcnt vmcnt(0)")
    for k in range(6):
        a(f"buffer_store_dwordx4 {vr(OB+4*k,4)}, v{vL16}, {HS}, s{sHS if k < 4 else sHS2} offen offset:{1024*(k&3)} sc1")
    a(f"s_waitcnt vmcnt(0)\ns_mov_b64 exec, 1\nbuffer_store_dwordx2 {vr(vNon,2)}, off, {WS}, s{sFl} sc1\ns_branch G_pub")
    a.vm = []; a.lg = []

def ssm_role():
    DBG, WS = "s[8:11]", "s[12:15]"
    sQ, sW, sE, sPar, sT, sT2, sCnt, sB1, sMask = 3, 32, 5, 6, 7, 34, 35, 40, 41
    sLdt, sD, sTag, sU, sXcc = 42, 43, 36, 38, 4
    sMean, sNeg = 44, 48
    vL, LX, LF, vC, LG = 1, 2, 10, 30, 26
    vPar = 44
    vT, vT2, vT3, vT4 = 54, 55, 56, 57
    vNon, vL16, vTab = 52, 60, 61
    SB = 98304
    CB0, UB0, USZ, K0A, FLG, TAB, TSZ, SROW = SB, SB + 33280, 4576, SB + 42432, SB + 42448, SB + 49152, 4096, 1056
    a.hist = []; a.vm = []; a.lg = []
    a(f"""
    s_load_dwordx16 s[16:31], s[0:1], 0
    s_load_dwordx2 s[8:9], s[0:1], 104
    s_load_dwordx2 s[52:53], s[0:1], 64
    s_load_dwordx2 s[92:93], s[0:1], 88
    s_load_dwordx2 s[12:13], s[0:1], 112
    s_memrealtime {sr(sTag,2)}
    s_setprio 3
    s_sub_u32 s{sW}, s{sW}, 4
    v_and_b32 v{vL}, 63, v0
    v_and_b32 v{vT}, 255, v0
    s_lshl_b32 s{sT}, s{sQ}, 9
    v_lshl_add_u32 v{vT3}, v{vT}, 1, s{sT}
    s_lshl2_add_u32 s{sT2}, s{sQ}, s{sW}
    s_lshl_b32 s{sT2}, s{sT2}, 11
    v_lshlrev_b32 v{vL16}, 4, v{vL}
    v_lshl_add_u32 v{vT4}, v{vL}, 6, s{sT2}
    s_lshl_b32 s{sT}, s{sQ}, 2
    """)
    srd(8, 256)
    a("s_waitcnt lgkmcnt(0)")
    if STAMPS: a(f"s_mov_b32 s100, s{sTag}\ns_mov_b32 s97, 0")
    stamp()
    a(f"""
    s_or_b32 s{sTag}, s{sTag}, 1
    v_mov_b32 v{vNon}, s{sTag}
    v_mov_b32 v{vNon+1}, s{sTag+1}
    buffer_store_dwordx2 {vr(vNon,2)}, v{vT4}, {DBG}, 0 offen sc1
    """)
    for k in range(6):
        a(f"global_load_ushort v{vPar+k}, v{vT3}, s[{18+2*k}:{19+2*k}]", "par")
    a(f"s_load_dword s{sLdt}, s[30:31], s{sT}\ns_load_dword s{sD}, s[52:53], s{sT}\ns_setprio 0\ns_branch L_ssm")
    keep = (list(a.vm), nstamp[0])
    yield
    a.hist = []; a.lg = []; a.vm = keep[0]; nstamp[0] = keep[1]
    srd(12, WS_SIZE)
    vSw, vSr = 62, 63
    vOA, vOG, vPb = 50, 51, 59
    a(f"""
    s_lshr_b32 s{sE}, s{sW}, 1
    s_and_b32 s{sPar}, s{sW}, 1
    s_mov_b32 s{sMask}, 0xffff0000
    s_mul_i32 s{sT2}, s{sE}, {USZ}
    s_add_u32 s{sT2}, s{sT2}, {UB0}
    v_lshl_add_u32 v{vT}, v{vL}, 3, s{sT2}
    v_mov_b32 v{vT3}, 0
    v_mov_b32 v{vT4}, 0
    ds_write_b64 v{vT}, {vr(vT3,2)}
    s_lshl2_add_u32 s{sT2}, s{sW}, {FLG}
    v_mov_b32 v58, s{sT2}
    ds_write_b32 v58, v{vT3}
    ds_write_b32 v58, v{vT3} offset:16
    s_lshl_b32 s{sT2}, s{sW}, 12
    s_add_u32 s{sT2}, s{sT2}, {TAB}
    v_add_u32 v{vTab}, s{sT2}, v{vL16}
    v_lshrrev_b32 v{vT}, 4, v{vL}
    v_lshl_add_u32 v{vPb}, v{vT}, 6, s{sT2}
    v_and_b32 v{vT}, 15, v{vL}
    v_lshlrev_b32 v{vOG}, 3, v{vT}
    v_lshlrev_b32 v{vT2}, 2, v{vT}
    v_add_u32 v{vT2}, {512-36}, v{vT2}
    v_cmp_lt_u32 vcc, 8, v{vT}
    v_add_u32 v{vT3}, {1024-96}, v{vOG}
    v_add_u32 v{vT4}, {1536-112}, v{vOG}
    v_cndmask_b32 v{vOA}, v{vT}, v{vT2}, vcc
    v_cmp_lt_u32 vcc, 11, v{vT}
    v_cmp_lt_u32 s[56:57], 13, v{vT}
    v_cvt_f32_u32 v{vOG}, v{vOG}
    v_cndmask_b32 v{vOA}, v{vOA}, v{vT3}, vcc
    v_cndmask_b32 v{vOA}, v{vOA}, v{vT4}, s[56:57]
    v_cvt_f32_u32 v{vOA}, v{vOA}
    """)
    def k_mfma(s_):
        F = 152 + 16 * (s_ & 1)
        for hh in range(2):
            for gt in range(2):
                d = 200 + 8 * hh + 4 * gt
                a(f"v_mfma_f32_16x16x32_bf16 {vr(d,4)}, {vr(F+4*hh,4)}, {vr(F+8+4*gt,4)}, {'0' if s_ == 0 else vr(d,4)}")
    UG = int(OPT.get("ug", 99))
    SP = OPT.get("sprio", 0)
    vUg, vUw, vU, sG = 30, 31, 232, 54
    def u_addr():
        a(f"""
        v_lshrrev_b32 v{vT3}, 2, v{vL}
        v_bfe_u32 v{vT4}, v{vL}, 1, 1
        v_and_b32 v{vT2}, 1, v{vL}
        v_mul_u32_u24 v{vUg}, {GS}, v{vT3}
        v_lshl_add_u32 v{vUg}, v{vT4}, 6, v{vUg}
        v_lshl_add_u32 v{vUg}, v{vT2}, 4, v{vUg}
        v_mul_u32_u24 v{vUw}, {USZ}, v{vT2}
        v_lshl_add_u32 v{vUw}, v{vT3}, 4, v{vUw}
        v_lshl_add_u32 v{vUw}, v{vT4}, 3, v{vUw}
        s_lshl_b32 s{sT}, s{sW}, 10
        s_add_u32 s{sT}, s{sT}, {UB0+480}
        v_add_u32 v{vUw}, s{sT}, v{vUw}
        s_mul_i32 s{sG}, s{sW}, {64*GS}
        s_lshr_b32 s{sT}, s{sQ}, 1
        s_lshl_b32 s{sT}, s{sT}, 7
        s_add_u32 s{sG}, s{sG}, s{sT}
        s_and_b32 s{sT}, s{sQ}, 1
        s_lshl_b32 s{sT}, s{sT}, 5
        s_add_u32 s{sG}, s{sG}, s{sT}
        s_add_u32 s{sG}, s{sG}, {XNP}
        """)
    def u_loads(emit, ks=range(4)):
        emit("s_setprio 3")
        for k in ks:
            emit(f"s_add_u32 s{sG+1}, s{sG}, {k*16*GS}")
            emit(f"buffer_load_dwordx4 {vr(vU+4*k,4)}, v{vUg}, {WS}, s{sG+1} offen sc1 {OPT.get('uf', '')}")
        emit(f"s_setprio {SP}")
    u_addr()
    W2 = "s[92:95]"
    vW2o, vTp, sW2, sLA, sLB, sTp = 62, 63, 16, 17, 18, 19
    srd(92, 1376 * 1024)
    a(f"""
    v_lshrrev_b32 v{vT}, 3, v{vL}
    v_lshlrev_b32 v{vT}, 10, v{vT}
    v_bfe_u32 v{vT2}, v{vL}, 4, 1
    v_lshlrev_b32 v{vT3}, 2, v{vT2}
    v_xor_b32 v{vT3}, v{vT3}, v{vL}
    v_and_b32 v{vT3}, 7, v{vT3}
    v_lshl_add_u32 v{vW2o}, v{vT3}, 4, v{vT}
    v_min_u32 v{vTp}, 43, v{vL}
    v_lshlrev_b32 v{vTp}, 7, v{vTp}
    s_mul_i32 s{sW2}, s{sW}, {352*1024}
    s_and_b32 s{sTp}, s{sQ}, 31
    s_mulk_i32 s{sTp}, 5632
    s_add_u32 s{sTp}, s{sTp}, s{sW2}
    s_bfe_u32 s{sT}, s{sQ}, 0x30001
    s_lshl_b32 s{sT}, s{sT}, 7
    s_add_u32 s{sW2}, s{sW2}, s{sT}
    s_lshl_b32 s{sLA}, s{sW}, 12
    s_mul_i32 s{sLB}, s{sW}, 3072
    s_add_u32 s{sLB}, s{sLB}, 49152
    """)
    vXw, vXr_, vK, vZ, vAa, vBa, vUa, vBp, vPr, vK0, vCb = 32, 33, 34, 35, 36, 37, 38, 39, 40, 41, 42
    a(f"""
    v_lshrrev_b32 v{vT2}, 4, v{vL}
    v_and_b32 v{vT3}, 15, v{vL}
    s_lshl_b32 s{sT2}, s{sW}, 12
    s_add_u32 s{sT2}, s{sT2}, {TAB}
    v_lshl_add_u32 v{vXw}, v{vT3}, 4, s{sT2}
    v_lshl_add_u32 v{vXw}, v{vT2}, 10, v{vXw}
    s_lshl_b32 s{sT}, s{sE}, 13
    s_add_u32 s{sT}, s{sT}, {TAB}
    v_add_u32 v{vXr_}, s{sT}, v{vL16}
    s_xor_b32 s{sT2}, s{sT2}, 4096
    v_add_u32 v{vPr}, s{sT2}, v{vL16}
    v_xor_b32 v27, 4, v58
    s_mul_i32 s{sT}, s{sE}, {USZ}
    s_add_u32 s{sT}, s{sT}, {UB0+256}
    s_lshl_b32 s{sT2}, s{sPar}, 8
    v_lshl_add_u32 v{vBa}, v{vT3}, 5, s{sT}
    v_lshl_add_u32 v{vUa}, v{vT2}, 3, v{vBa}
    v_lshlrev_b32 v{vT3}, 4, v{vT2}
    v_add_u32 v{vBa}, v{vT3}, v{vBa}
    v_subrev_u32 v{vBa}, s{sT2}, v{vBa}
    v_bfe_u32 v{vT2}, v{vL}, 2, 2
    v_sub_u32 v{vT4}, 0, v{vT2}
    v_and_b32 v{vT4}, 3, v{vT4}
    v_mul_u32_u24 v{vAa}, 4160, v{vT4}
    v_min_u32 v{vT2}, 1, v{vT2}
    v_lshlrev_b32 v{vT2}, 3, v{vT2}
    v_sub_u32 v{vAa}, v{vAa}, v{vT2}
    v_sub_u32 v{vAa}, v{vAa}, v{vT3}
    v_and_b32 v{vT2}, 3, v{vL}
    v_lshl_add_u32 v{vAa}, v{vT2}, 3, v{vAa}
    s_mul_i32 s{sT}, s{sE}, 16640
    s_add_u32 s{sT}, s{sT}, {CB0}
    v_mov_b32 v{vCb}, s{sT}
    s_add_u32 s{sT2}, s{sT2}, s{sT}
    s_add_u32 s{sT2}, s{sT2}, {32+32-8}
    v_add_u32 v{vAa}, s{sT2}, v{vAa}
    v_lshrrev_b32 v{vT3}, 2, v{vL}
    v_lshl_add_u32 v{vBp}, v{vT2}, 4, v{vT3}
    v_lshlrev_b32 v{vBp}, 2, v{vBp}
    s_lshl_b32 s{sT2}, s{sPar}, 11
    s_add_u32 s{sT2}, s{sT2}, s{sT}
    s_add_u32 s{sT2}, s{sT2}, 32
    v_add_u32 v{vK}, s{sT2}, v{vL16}
    v_bfe_u32 v{vZ}, v{vL}, 3, 2
    v_mul_u32_u24 v{vZ}, 4160, v{vZ}
    v_and_b32 v{vT4}, 7, v{vL}
    v_lshl_add_u32 v{vZ}, v{vT4}, 2, v{vZ}
    v_add_u32 v{vZ}, s{sT}, v{vZ}
    s_lshl2_add_u32 s{sT}, s{sE}, {K0A}
    v_mov_b32 v{vK0}, s{sT}
    v_and_b32 v{vT4}, 1, v{vL}
    v_cmp_eq_u32 s[58:59], 1, v{vT4}
    v_cmp_le_u32 s[56:57], 32, v{vL}
    """)
    def piece(p):
        rg, off = SHARED['LOC'][p]
        a(f"s_add_u32 m0, s{sLA if rg == 'A' else sLB}, {off}\ns_add_u32 s44, s{sW2}, {8192*p}")
        a(f"buffer_load_dwordx4 v{vW2o}, {W2}, s44 offen lds", "P")
    pn = [0]
    PE = int(OPT.get("pe", 0))
    def pieces(n):
        while pn[0] < n: piece(pn[0]); pn[0] += 1
    def touch(half):
        a(f"s_add_u32 s44, s{sTp}, {half*176*1024}")
        a(f"buffer_load_dword v29, v{vTp}, {W2}, s44 offen", "tp")
    TP0, TP1 = int(OPT.get("tp0", 6)), int(OPT.get("tp1", 8))
    PR, PB, FR, KT, KA = 64, 72, 152, 200, 216
    a("s_waitcnt lgkmcnt(0)")
    a.lg = []
    BP = int(OPT.get("bp", 260))
    NKB = int(OPT.get("nkb", 8))
    a.metro = ([int(OPT.get("bb0", 800)), int(OPT.get("b01", 250))] + [int(OPT.get("bq", 400))] * 3 + [BP] * 3 + [BP // 2, 3 * BP // 4])[:NKB]
    a.cost = 0
    uq = list(range(4))
    def on_bar(left):
        nb = NKB - 1 - left
        if nb in (0, 2, 5): stamp()
        if nb == 0: a(f"s_setprio {SP}")
        if nb == TP0: touch(0)
        if nb == TP1: touch(1)
        if nb >= 6: pieces(min(PE, {6: 4, 7: 11}.get(nb, 15)))
        if nb >= UG:
            for _ in range(int(OPT.get("un", 2))):
                if uq: u_loads(lambda t: a(t, "u"), [uq.pop(0)])
    a.on_bar = on_bar
    a(f"""
    s_lshl_b32 s{sT}, s{sLdt}, 16
    s_and_b32 s{sT2}, s{sLdt}, s{sMask}
    s_cmp_eq_u32 s{sE}, 0
    s_cselect_b32 s{sT}, s{sT}, s{sT2}
    v_mov_b32 v{vT}, {LOG2E:#x}
    v_mul_f32 v{vT}, s{sT}, v{vT}
    v_exp_f32 v{vT}, v{vT}
    """)
    a.wait(vm="par")
    stamp()
    for k in range(6): a(f"v_lshlrev_b32 v{vPar+k}, 16, v{vPar+k}")
    TM = 136
    a(f"""
    v_cvt_pk_bf16_f32 v{vT}, v{vT}, v{vT}
    v_lshlrev_b32 v{vT}, 16, v{vT}
    v_mul_f32 v{PR}, v{vPar}, v{vT}
    v_mul_f32 v{PR+1}, v{vPar+1}, v{vT}
    v_mul_f32 v{vPar+2}, v{vPar+2}, v{vT}
    v_mul_f32 v{vPar+3}, v{vPar+3}, v{vT}
    v_mul_f32 v{PR}, {LOG2E:#x}, v{PR}
    v_mul_f32 v{PR+1}, 0.15915494, v{PR+1}
    v_rndne_f32 v{vT}, v{PR+1}
    v_sub_f32 v{PR+1}, v{PR+1}, v{vT}
    """)
    cmul(PR + 2, vPar + 4, vPar + 2)
    for i, l in enumerate((128, 256)):
        a(f"v_mul_f32 v{TM+4*i}, {fl(l)}, v{PR}\nv_mul_f32 v{TM+4*i+1}, {fl(l)}, v{PR+1}")
    for i in range(2): a(f"v_fract_f32 v{TM+4*i+1}, v{TM+4*i+1}\nv_exp_f32 v{TM+4*i}, v{TM+4*i}")
    for i in range(2): a(f"v_cos_f32 v{TM+4*i+2}, v{TM+4*i+1}\nv_sin_f32 v{TM+4*i+3}, v{TM+4*i+1}")
    a(f"ds_write_b128 v{vTab}, {vr(PR,4)}", "pw")
    a(f"""
    v_mul_f32 v{TM+2}, v{TM+2}, v{TM}
    v_mul_f32 v{TM+3}, v{TM+3}, v{TM}
    v_mul_f32 v{PR+6}, v{TM+6}, v{TM+4}
    v_mul_f32_e64 v{PR+7}, -v{TM+7}, v{TM+4}
    """)
    cmul(PR + 4, PR + 2, TM + 2)
    a(f"ds_write_b128 v{vTab}, {vr(PR+4,4)} offset:1024", "pw")
    def p_reads(s_):
        for j in range(4):
            for k in range(2):
                a(f"ds_read_b128 {vr(PB+32*(s_&1)+8*j+4*k,4)}, v{vPb} offset:{256*s_+16*j+1024*k}", f"pb{s_}")
    p_reads(0)
    for s_ in range(4):
        if s_ < 3: p_reads(s_ + 1)
        a.wait(lg=f"pb{s_}")
        if s_ == 3: a(f"s_load_dwordx2 {sr(sTag,2)}, s[8:9], 128")
        F = FR + 16 * (s_ & 1)
        for jp in range(2):
            js = (2 * jp, 2 * jp + 1)
            P = lambda j: PB + 32 * (s_ & 1) + 8 * j
            T = lambda j, w_: TM + 8 * (j & 1) + 4 * w_
            for j in js:
                for w_, o in enumerate((vOA, vOG)):
                    a(f"v_mul_f32 v{T(j,w_)}, v{P(j)}, v{o}\nv_mul_f32 v{T(j,w_)+1}, v{P(j)+1}, v{o}")
            for j in js:
                a(f"v_fract_f32 v{T(j,0)+1}, v{T(j,0)+1}")
                for w_ in range(2): a(f"v_exp_f32 v{T(j,w_)}, v{T(j,w_)}")
            for j in js:
                for w_ in range(2):
                    a(f"v_cos_f32 v{T(j,w_)+2}, v{T(j,w_)+1}\nv_sin_f32 v{T(j,w_)+3}, v{T(j,w_)+1}")
            for j in js:
                a(f"v_mul_f32 v{T(j,0)+2}, v{T(j,0)+2}, v{T(j,0)}\nv_mul_f32_e64 v{T(j,0)+3}, -v{T(j,0)+3}, v{T(j,0)}")
                a(f"v_mul_f32 v{T(j,1)+2}, v{T(j,1)+2}, v{T(j,1)}\nv_mul_f32 v{T(j,1)+3}, v{T(j,1)+3}, v{T(j,1)}")
            for j in js:
                a(f"v_cvt_pk_bf16_f32 v{F+j}, v{T(j,0)+2}, v{T(j,0)+3}")
                cmul(T(j, 0), T(j, 0) + 2, P(j) + 6)
                cmul(T(j, 1), T(j, 1) + 2, P(j) + 2)
                a(f"v_cvt_pk_bf16_f32 v{F+4+j}, v{T(j,0)}, v{T(j,0)+1}")
                cmul(T(j, 0) + 2, T(j, 1) + 2, P(j) + 4)
                a(f"v_cvt_pk_bf16_f32 v{F+8+j}, v{T(j,1)}, v{T(j,1)+1}")
                a(f"v_cvt_pk_bf16_f32 v{F+12+j}, v{T(j,0)+2}, v{T(j,0)+3}")
            if jp == 0 and s_ > 0: k_mfma(s_ - 1)
    k_mfma(3)
    sys.stderr.write(f"metronome left {a.metro} cost {a.cost}\n")
    while a.metro: a.tick()
    a.metro = None
    stamp()
    a(f"s_setprio {OPT.get('xprio', 0)}")
    for t in range(4): a(f"ds_write_b128 v{vXw}, {vr(KT+4*t,4)} offset:{256*t}")
    if NKB == 10: a("ds_write_b32 v58, v58 offset:16")
    a(f"s_waitcnt lgkmcnt(0)\ns_cmp_eq_u32 s{sTag}, 0\ns_cbranch_scc1 S_tagslow\nS_tagok:")
    stamp()
    if NKB < 10:
        a("s_barrier")
        pieces(min(PE, {6: 4, 7: 11}.get(NKB, 15)))
        if TP1 == NKB: a(f"s_add_u32 s44, s{sTp}, {176*1024}\nbuffer_load_dword v29, v{vTp}, {W2}, s44 offen")
    else:
        a("""
        S_xw:
        ds_read_b32 v28, v27 offset:16
        s_waitcnt lgkmcnt(0)
        v_readfirstlane_b32 s44, v28
        s_cmp_eq_u32 s44, 0
        s_cbranch_scc1 S_xw
        """)
    stamp()
    NREST = max(0, 10 - NKB - 2)
    a(f"s_cmp_lg_u32 s{sPar}, 0\ns_cbranch_scc1 S_par1")
    KP = 64
    PK = 88
    K = lambda i: KA + i
    cnt = [0]
    CBAR = [int(x) for x in OPT.get('cbar', '2,5,6,7').split(',')]
    def packs(run, k):
        for cp in range(4):
            for j in range(4): a(f"v_cvt_pk_bf16_f32 v{PK+16*run+4*cp+j}, v{k[cp+2*j]}, v{k[cp+2*j+1]}")
            if cnt[0] in CBAR[:NREST]: a("s_barrier")
            cnt[0] += 1
            a(f"ds_write_b128 v{vK}, {vr(PK+16*run+4*cp,4)} offset:{4160*cp+1024*run}")
    hist0 = list(a.hist)
    for q in range(3):
        a(f"ds_read_b128 {vr(KA+4*q,4)}, v{vXr_} offset:{1024*q}\nds_read_b128 {vr(KP+4*q,4)}, v{vXr_} offset:{TSZ+1024*q}")
    a(f"""
    v_mov_b32 v{vT4}, 0
    ds_write_b32 v{vZ}, v{vT4}
    s_waitcnt lgkmcnt(1)
    """)
    for j in range(12): a(f"v_add_f32 v{KA+j}, v{KA+j}, v{KP+j}")
    a(f"""
    v_cndmask_b32 v{K(1)}, v{K(1)}, v{K(0)}, s[56:57]
    v_cndmask_b32 v{K(3)}, v{K(3)}, v{K(4)}, s[56:57]
    v_cndmask_b32 v{K(5)}, v{K(5)}, v{K(4)}, s[56:57]
    v_cndmask_b32 v{K(7)}, v{K(7)}, v{K(8)}, s[56:57]
    v_mov_b32 v{K(12)}, v{K(8)}
    v_mov_b32 v{K(13)}, v{K(8)}
    s_mov_b64 exec, 1
    ds_write_b32 v{vK0}, v{K(0)}
    v_mov_b32 v{K(0)}, 0
    s_mov_b64 exec, -1
    v_mov_b32_dpp v{K(12)}, v{K(1)} wave_shl:1 row_mask:0xf bank_mask:0xf
    v_mov_b32_dpp v{K(13)}, v{K(2)} wave_shl:1 row_mask:0xf bank_mask:0xf
    """)
    packs(1, [K(9)] * 3 + [K(10)] * 3 + [K(11)] * 5)
    packs(0, [K(i) for i in range(9)] + [K(12), K(13)])
    a(f"""
    s_mov_b64 exec, 1
    ds_write_b32 v{vCb}, v{PK} offset:{2*4160+28}
    ds_write_b32 v{vCb}, v{PK+4} offset:{3*4160+28}
    s_mov_b64 exec, -1
    s_branch S_parj
    S_par1:
    """)
    a.hist = hist0; cnt[0] = 0
    a(f"ds_read_b128 {vr(KA+12,4)}, v{vXr_} offset:3072\nds_read_b128 {vr(KP,4)}, v{vXr_} offset:{TSZ+3072}\ns_waitcnt lgkmcnt(0)")
    for j in range(4): a(f"v_add_f32 v{KA+12+j}, v{KA+12+j}, v{KP+j}")
    a(f"v_cndmask_b32 v{K(0)}, v{K(12)}, v{K(13)}, s[58:59]\nv_cndmask_b32 v{K(1)}, v{K(14)}, v{K(15)}, s[58:59]")
    packs(0, [K(12)] * 4 + [K(0)] + [K(13)] * 6)
    packs(1, [K(14)] * 4 + [K(1)] + [K(15)] * 6)
    a("S_parj:")
    a.lg = []
    a(f"""
    s_lshl_b32 s{sT}, s{sD}, 16
    s_and_b32 s{sT2}, s{sD}, s{sMask}
    s_cmp_eq_u32 s{sE}, 0
    s_cselect_b32 s{sD}, s{sT}, s{sT2}
    s_lshl1_add_u32 s{sT}, s{sQ}, s{sE}
    s_mul_i32 s{sT}, s{sT}, {GC}
    s_add_u32 s{sT}, s{sT}, {Y2}
    s_add_u32 s{sT2}, s{sT}, 4096
    s_mov_b32 s{sCnt}, 0
    """)
    AS, BS, YA, OV, UU, KD = [64, 128], [96, 160], 192, 10, 2, 26
    for k in range(4): a(f"v_mov_b32 v{OV+4*k+2}, s{sTag}\nv_mov_b32 v{OV+4*k+3}, s{sTag+1}")
    stamp()
    CE = "ce" in OPT
    if not CE:
        a("s_barrier")
        while uq: u_loads(lambda t: a(t, "u"), [uq.pop(0)])
        pieces(24)
    assert not uq
    a.wait(vm="u")
    a("S_uchk:")
    a(f"v_cmp_ne_u64 vcc, {sr(sTag,2)}, {vr(vU+2,2)}")
    for k in range(1, 4): a(f"v_cmp_ne_u64 s[{42+2*k}:{43+2*k}], {sr(sTag,2)}, {vr(vU+4*k+2,2)}")
    for k in range(1, 4): a(f"s_or_b64 vcc, vcc, s[{42+2*k}:{43+2*k}]")
    a(f"s_cbranch_vccnz S_uslow\nS_uok:\ns_mov_b32 s{sCnt}, 0")
    stamp()
    for k in range(4): a(f"ds_write_b64 v{vUw}, {vr(vU+4*k,2)} offset:{256*k}")
    a(f"s_waitcnt vmcnt(0) lgkmcnt(0)\ns_setprio {OPT.get('cprio', 1)}\ns_barrier")
    a.vm = []
    a.lg = []
    if CE: pieces(int(OPT.get("npre", 8)))
    PG, CBI = int(OPT.get("pg", 3)), int(OPT.get("cbi", 90))
    stamp()
    def reads(rho):
        s_ = rho & 1; L = []
        for j in range(8):
            L.append((f"ds_read_b128 {vr(BS[s_]+4*j,4)}, v{vBa} offset:{512*j+64*(3-rho)}", f"f{rho}_{j}"))
            L.append((f"ds_read_b64_tr_b16 {vr(AS[s_]+4*j,2)}, v{vAa} offset:{64*(8*j+rho)+8}", f"f{rho}_{j}"))
            L.append((f"ds_read_b64_tr_b16 {vr(AS[s_]+4*j+2,2)}, v{vAa} offset:{64*(8*j+rho)}", f"f{rho}_{j}"))
        return L
    for t, tag in reads(0): a(t, tag)
    first = [True] * 8
    def cm(rho, p, q):
        a.wait(lg=f"f{rho}_{max(p,q)}")
        ct = p + q; s_ = rho & 1
        a(f"v_mfma_f32_16x16x32_bf16 {vr(YA+4*ct,4)}, {vr(AS[s_]+4*p,4)}, {vr(BS[s_]+4*q,4)}, {'0' if first[ct] else vr(YA+4*ct,4)}")
        first[ct] = False
    for rho in range(3):
        if rho == int(OPT.get("cp3", 1)): a("s_setprio 3")
        nxt = reads(rho + 1)
        for n, (p, q) in enumerate(sorted([(p, q) for p in range(8) for q in range(8) if p + q <= 7], key=lambda x: max(x))):
            cm(rho, p, q)
            if n >= 8 and nxt:
                t, tag = nxt.pop(0); a(t, tag)
            if CE:
                g = 36 * rho + n
                if g % PG == 0 and pn[0] < 24: pieces(pn[0] + 1)
                if g == CBI:
                    assert pn[0] == 24
                    a.wait(vm=0)
                    a("s_barrier")
        assert not nxt
    a(f"s_cmp_lg_u32 s{sPar}, 0\ns_cbranch_scc1 S_conv1")
    keep = (list(a.hist), list(a.lg), nstamp[0])
    ZB, PB_ = 64, 80
    for par, (KEEP, SEND) in enumerate((((0, 3, 4, 7), (1, 2, 5, 6)), ((1, 2, 5, 6), (0, 3, 4, 7)))):
        if par: a("S_conv1:")
        a.hist, a.lg, nstamp[0] = list(keep[0]), list(keep[1]), keep[2]
        side = [lambda: a(f"ds_read_b32 v{KD}, v{vK0}", "uu")]
        side += [lambda k=k, ct=ct: a(f"ds_read_b64 {vr(UU+2*k,2)}, v{vUa} offset:{480-256+512*ct}", "uu") for k, ct in enumerate(KEEP)]
        side += [None] * 5
        side += [lambda: (a.wait(lg="uu"), a(f"v_add_f32 v{KD}, s{sD}, v{KD}"))]
        side += [lambda j=j: a(f"v_lshlrev_b32 v{ZB+2*j}, 16, v{UU+j}\nv_and_b32 v{ZB+2*j+1}, s{sMask}, v{UU+j}") for j in range(8)]
        order = [(p, ct - p) for ct in SEND + KEEP for p in range(ct + 1)]
        ends = {}
        for n, (p, q) in enumerate(order): ends[p + q] = n
        wq = list(SEND)
        for n, (p, q) in enumerate(order):
            cm(3, p, q)
            if wq and n >= ends[wq[0]] + 5:
                ct = wq.pop(0); a(f"ds_write_b128 v{vTab}, {vr(YA+4*ct,4)} offset:{1024*SEND.index(ct)}", "sw")
                if not wq: a(f"ds_write_b32 v58, v58", "sw")
            elif side:
                t = side.pop(0)
                if t: t()
            if n == 31:
                assert not wq and not side
                a("ds_read_b32 v28, v27", "pr")
                for k in range(4): a(f"ds_read_b128 {vr(PB_+4*k,4)}, v{vPr} offset:{1024*k}", "pr")
        stamp()
        a.wait(lg=0)
        a(f"""
        v_cmp_eq_u32 vcc, 0, v28
        s_cbranch_vccz S_pok{par}
        S_pw{par}:
        ds_read_b32 v28, v27
        """)
        for k in range(4): a(f"ds_read_b128 {vr(PB_+4*k,4)}, v{vPr} offset:{1024*k}")
        a(f"""
        s_waitcnt lgkmcnt(0)
        v_cmp_eq_u32 vcc, 0, v28
        s_cbranch_vccnz S_pw{par}
        S_pok{par}:
        """)
        a.lg = []
        for j in range(16): a(f"v_fmac_f32 v{PB_+j}, v{KD}, v{ZB+j}")
        a("s_setprio 3")
        for k, ct in enumerate(KEEP):
            for j in range(4): a(f"v_add_f32 v{PB_+4*k+j}, v{PB_+4*k+j}, v{YA+4*ct+j}")
            for j in range(2): a(f"v_cvt_pk_bf16_f32 v{UU+2*k+j}, v{PB_+4*k+2*j}, v{PB_+4*k+2*j+1}")
            for j in range(2): a(f"ds_bpermute_b32 v{OV+4*k+j}, v{vBp}, v{UU+2*k+j}", f"bp{k}")
        for k, ct in enumerate(KEEP):
            a.wait(lg=f"bp{k}")
            a(f"buffer_store_dwordx4 {vr(OV+4*k,4)}, v{vL16}, {WS}, s{sT if ct < 4 else sT2} offen offset:{1024*(ct&3)} sc1")
        if par == 0: a("s_branch S_done")
    a("S_done:")
    stamp()
    if STAMPS:
        a("s_waitcnt vmcnt(0)"); stamp()
    if "wb" in OPT:
        a(f"s_lshr_b32 s{sT}, s2, 3\ns_or_b32 s{sT}, s{sT}, s{sW}\ns_cmp_lg_u32 s{sT}, 0\ns_cbranch_scc1 S_nowb\nbuffer_wbl2 sc1\nS_nowb:")
    stamp_flush(WS, f"s{sW}", vT)
    a("s_endpgm")
    tag_slow("S", sTag, 8, [192], vNon, sCnt)
    a.raw(f"""S_uslow:
{retry_mark(4)}  s_add_u32 s{sCnt}, s{sCnt}, 1
  s_cmp_ge_u32 s{sCnt}, {SPIN}
  s_cbranch_scc1 S_uok
  s_sleep 4""")
    u_loads(lambda t: a.raw("  " + t))
    a.raw("  s_waitcnt vmcnt(0)\n  s_branch S_uchk")

hdr = open("cdna_kernels/" + NAME + ".s.ref").read().split("\n")
top = [l for l in hdr if l.startswith(";") and "@launch" not in l][:16]
a.raw("\n".join(top))
a.raw("; @launch grid=(256,1,1) block=(512,1,1) lds=163840")
a.raw(f""".amdgcn_target "amdgcn-amd-amdhsa--gfx950"
.text
.globl {NAME}_kernel
.p2align 8
.type {NAME}_kernel,@function
{NAME}_kernel:""")
stamp()
NST[0] = 14
a(f"""
v_lshrrev_b32 v1, 6, v0
s_cmp_ge_u32 s2, 256
s_cbranch_scc1 L_exit
v_readfirstlane_b32 s32, v1
s_and_b32 s3, s2, 7
s_lshl_b32 s3, s3, 5
s_lshr_b32 s96, s2, 3
s_add_u32 s3, s3, s96
s_cmp_lt_u32 s32, 4
s_cbranch_scc1 L_gemm
""")
if "nocpf" not in OPT:
    a(f"""
    s_getpc_b64 s[94:95]
    s_lshl_b32 s96, s96, 10
    v_and_b32 v255, 7, v0
    v_lshl_add_u32 v255, v255, 7, s96
    v_min_u32 v255, L_exit-{NAME}_kernel-128, v255
    global_load_dword v254, v255, s[94:95]
    """)
EV[1] = False
ssm = ssm_role()
next(ssm)
EV[1] = True
a("L_gemm:")
a.hist = []; a.vm = []; a.lg = []
if STAMPS: nstamp[0] = 1
gemm_role()
a.raw(".p2align 6")
a("L_ssm:")
NST[0] = 16
EV[1] = False
for _ in ssm: pass
a("L_exit:\ns_endpgm")
a.raw(f""".section .rodata,"a"
.p2align 6
.amdhsa_kernel {NAME}_kernel
  .amdhsa_next_free_vgpr 256
  .amdhsa_next_free_sgpr 102
  .amdhsa_accum_offset 256
  .amdhsa_group_segment_fixed_size 0
  .amdhsa_kernarg_size 120
  .amdhsa_user_sgpr_count 2
  .amdhsa_user_sgpr_kernarg_segment_ptr 1
  .amdhsa_system_sgpr_workgroup_id_x 1
.end_amdhsa_kernel""")
sys.stdout.write(a.text())
sys.stderr.write(f"nops inserted: {a.nops}\n")
```

```python
import sys, struct
from asmlib import Asm, vr, sr

NAME = "parallel_sum__ssm_conv_s4__dense_activation_silu__prompt"
OPT = {x.split("=")[0][2:]: (x.split("=")[1] if "=" in x else "1") for x in sys.argv[1:] if x.startswith("--")}
STAMPS = "stamps" in OPT
SPIN = int(OPT.get("spin", 4000))
PLF = OPT.get("plf", "sc1").replace("_", " ")
FSF = OPT.get("fsf", "sc1").replace("_", " ")
M1, M2 = OPT.get("m1", "81"), OPT.get("m2", "81")
LOCAL = M1 == "81" and M2 == "81" and "nolocal" not in OPT
HSF = "" if LOCAL else "sc1"

HROW = 88 * 1024
H_SIZE = 64 * HROW
ST = 0x580000
FH = 0x590000
GS = 18432
GC = 9216
XNP = 0x600000
XS = 9216
FX = 0x5A0000
FG = 0x5B0000
Y2 = 0xA80000
WS_SIZE = 0x1000000
STAMP_OFF = 0xF80000
LOG2E = 0x3fb8aa3b
fl = lambda x: "0x%08x" % struct.unpack("<I", struct.pack("<f", x))[0]

a = Asm()
SHARED = {}
nstamp = [0]
EV = [0, True]
NST = [16]
def stamp(force=False):
    if "padev" in OPT and EV[1]:
        if EV[0] == int(OPT["padev"]): a("s_memrealtime s[86:87]")
        EV[0] += 1
    if STAMPS and nstamp[0] < NST[0] and (force or ("cs" not in OPT and "g2" not in OPT) or nstamp[0] in (0, 13) or ("g2" in OPT and nstamp[0] >= 7)):
        i = nstamp[0]; nstamp[0] += 1
        a(f"s_memtime s[{60+2*i}:{61+2*i}]")
def stamp_flush(wsrd, wave_s, vt, row=0):
    if not STAMPS: return
    n = nstamp[0]
    a("s_memrealtime s[98:99]")
    a("s_waitcnt lgkmcnt(0)")
    a(f"s_lshl_b32 s96, s2, 2\ns_add_u32 s96, s96, {wave_s}\ns_lshl_b32 s96, s96, 7\ns_add_u32 s96, s96, {STAMP_OFF+row*512}")
    a("s_mov_b64 exec, 1")
    for i in range(n):
        a(f"v_mov_b32 v{vt}, s{60+2*i}")
        a(f"buffer_store_dword v{vt}, off, {wsrd}, s96 offset:{4*i}")
    a(f"v_mov_b32 v{vt}, s97\nbuffer_store_dword v{vt}, off, {wsrd}, s96 offset:116")
    a(f"v_mov_b32 v{vt}, s100\nbuffer_store_dword v{vt}, off, {wsrd}, s96 offset:120")
    a(f"v_mov_b32 v{vt}, s98\nbuffer_store_dword v{vt}, off, {wsrd}, s96 offset:124")
    nstamp[0] = 0
def retry_mark(bit):
    return f"  s_add_u32 s97, s97, {1 << bit}\n" if STAMPS else ""

def srd(base, size):
    a(f"s_mov_b32 s{base+2}, {size}\ns_mov_b32 s{base+3}, 0x20000")

def cmul(d, x, y):
    a(f"v_mul_f32 v{d}, v{x+1}, v{y+1}")
    a(f"v_mul_f32 v{d+1}, v{x+1}, v{y}")
    a(f"v_fma_f32 v{d}, v{x}, v{y}, -v{d}")
    a(f"v_fmac_f32 v{d+1}, v{x}, v{y+1}")

def tag_slow(pfx, sTag, dbg, offs, vt, sCnt):
    a.raw(f"{pfx}_tagslow:")
    a.raw(retry_mark(0).rstrip("\n"))
    for o in offs:
        a.raw(f"  s_load_dwordx2 {sr(sTag,2)}, s[{dbg}:{dbg+1}], {o}\n  s_waitcnt lgkmcnt(0)\n  s_cmp_lg_u32 s{sTag}, 0\n  s_cbranch_scc1 {pfx}_tagok")
    a.raw(f"""  s_mov_b32 s{sCnt}, 0
{pfx}_tagloop:
  buffer_load_dwordx2 {vr(vt,2)}, off, s[{dbg}:{dbg+3}], 0 sc1
  s_add_u32 s{sCnt}, s{sCnt}, 1
  s_waitcnt vmcnt(0)
  v_readfirstlane_b32 s{sTag}, v{vt}
  v_readfirstlane_b32 s{sTag+1}, v{vt+1}
  s_nop 3
  s_cmp_lg_u32 s{sTag}, 0
  s_cbranch_scc1 {pfx}_tagok
  s_cmp_lt_u32 s{sCnt}, {SPIN}
  s_cbranch_scc1 {pfx}_tagloop
  s_branch {pfx}_tagok""")

def gemm_role():
    X, W1, WS, W2, OUT, DBG, HS = "s[4:7]", "s[8:11]", "s[12:15]", "s[16:19]", "s[20:23]", "s[24:27]", "s[28:31]"
    sP = 3
    sW, sRB, sM, sXB, sWB, sC, sTx, sT, sLA, sLB, sW2, sHS, sHL = range(32, 45)
    sT2, sT3, sL2e, sCnt, sO, sTag, sFl, sRT = 45, 46, 47, 48, 49, 50, 52, 53
    sB1, sMask, sCG, sXcc, sFar, sHS2, sIa = 54, 55, 56, 57, 58, 59, 101
    sY, sRet = sFl, sFar
    sMean, sNeg = 88, 92
    sXn, sSt, sCx = 89, 90, 96
    SROW, STG = 1056, 98304
    vL = 1
    vXo, vWo, vXr, vWr, vW2o, vW2r, vL16 = 2, 6, 9, 13, 17, 18, 22
    vT, vNon, vCs, vT2, vC2, vSa = 23, 24, 26, 29, 30, 31
    vSt, vNeg = 32, 36
    HALF, vSw, vSr, vIa, vT3 = 88, 92, 93, 94, 95
    ACC1, WF, CSA, XF, CSF = 40, 96, 144, 192, 168
    LX, LF, LG, vId = 224, 232, 248, 252
    ACC2, STASH, HB, HD = 32, 96, 192, 8
    LB0 = 49152
    FARAWAY = 0x40000000
    a(f"""
    s_load_dwordx2 s[4:5], s[0:1], 0
    s_load_dwordx2 s[8:9], s[0:1], 80
    s_load_dwordx2 s[24:25], s[0:1], 104
    s_load_dwordx2 s[12:13], s[0:1], 112
    s_load_dwordx2 s[16:17], s[0:1], 88
    s_load_dwordx2 s[20:21], s[0:1], 96
    v_and_b32 v{vL}, 63, v0
    s_lshr_b32 s{sRB}, s{sP}, 4
    s_and_b32 s{sM}, s{sP}, 15
    s_and_b32 s{sC}, s{sP}, 7
    s_mov_b32 s{sCx}, s{sC}
    v_lshlrev_b32 v{vL16}, 4, v{vL}
    s_lshl2_add_u32 s{sCnt}, s{sP}, s{sW}
    s_lshl_b32 s{sCnt}, s{sCnt}, 11
    s_setprio 2
    """)
    if STAMPS: a("s_memrealtime s[98:99]")
    srd(4, 2048 * 1024); srd(8, 512 * 2752)
    a(f"""
    v_lshrrev_b32 v{vT}, 3, v{vL}
    v_lshlrev_b32 v{vT}, 10, v{vT}
    v_lshrrev_b32 v{vT2}, 4, v{vL}
    v_xor_b32 v{vT2}, v{vT2}, v{vL}
    v_and_b32 v{vT2}, 7, v{vT2}
    v_lshl_add_u32 v{vXo}, v{vT2}, 4, v{vT}
    v_xor_b32 v{vXo+1}, 64, v{vXo}
    v_add_u32 v{vXo+2}, {2*7168}, v{vXo}
    v_add_u32 v{vXo+3}, {3*7168}, v{vXo+1}
    v_add_u32 v{vXo+1}, 7168, v{vXo+1}
    s_movk_i32 s{sT}, 5462
    s_movk_i32 s{sT2}, {2752-192}
    v_mul_u32_u24 v{vT}, s{sT}, v{vL}
    """)
    for j in range(3):
        if j: a(f"v_add_u32 v{vT}, {64*5462}, v{vT}")
        a(f"v_lshrrev_b32 v{vT2}, 16, v{vT}\nv_mad_u32_u24 v{vWo+j}, v{vT2}, s{sT2}, v{vL16}")
    a(f"""
    s_lshl2_add_u32 s{sXB}, s{sRB}, s{sW}
    s_lshl_b32 s{sXB}, s{sXB}, 15
    s_mul_i32 s{sWB}, s{sM}, 192
    s_mul_i32 s{sT}, s{sW}, {16*2752}
    s_add_u32 s{sWB}, s{sWB}, s{sT}
    s_lshr_b32 s{sO}, s{sXB}, 6
    s_cmp_eq_u32 s{sM}, 15             ; the 16th workgroup of a row block has no GEMM1 tile: its tile loads go out of range
    s_cselect_b32 s{sXB}, {FARAWAY}, s{sXB}
    s_cselect_b32 s{sWB}, {FARAWAY}, s{sWB}
    s_lshl_b32 s{sLA}, s{sW}, 12
    s_mul_i32 s{sLB}, s{sW}, 3072
    s_add_u32 s{sLB}, s{sLB}, {LB0}
    s_waitcnt lgkmcnt(0)
    """)
    if STAMPS: a("s_mov_b32 s100, s98\ns_mov_b32 s97, 0")
    stamp()

    def w_ops(c):
        ops = []
        for j in range(3):
            def f(j=j):
                if j == 0:
                    a(f"s_mul_i32 s{sT2}, s{sC}, {64*2752}\ns_add_u32 m0, s{sLB}, {(c&3)*12288}\ns_add_u32 s{sT2}, s{sT2}, s{sWB}")
                a(f"buffer_load_dwordx4 v{vWo+j}, {W1}, s{sT2} offen offset:{j*1024} {OPT.get('w1f', '')} lds", f"C{c}")
                if j == 0: a(f"s_add_u32 s{sC}, s{sC}, 1\ns_and_b32 s{sC}, s{sC}, 7")
            ops.append(f)
        return ops
    def x_ops(c):
        ops = []
        for pc in range(4):
            def f(pc=pc):
                if pc == 0:
                    a(f"s_lshl_b32 s{sTx}, s{sCx}, 7\ns_add_u32 m0, s{sLA}, {(c%3)*16384}\ns_add_u32 s{sTx}, s{sTx}, s{sXB}")
                a(f"buffer_load_dwordx4 v{vXo+pc}, {X}, s{sTx} offen offset:{pc*1024} lds", f"C{c}")
                if pc == 0: a(f"s_add_u32 s{sCx}, s{sCx}, 1\ns_and_b32 s{sCx}, s{sCx}, 7")
            ops.append(f)
        return ops
    DQ = []; QT = []
    for c in range(8):
        first = (w_ops(c), x_ops(c)) if c < 2 else (x_ops(c), w_ops(c))
        for grp_ in first:
            isx = len(grp_) == 4
            lim = -1 if c < (3 if isx else 4) else (4 * (c - 3) if isx else 4 * (c - 3) + 2)
            DQ += [(lim, f) for f in grp_]
            QT += [f'C{c}'] * len(grp_)
    def issue(n, s_=-1):
        for _ in range(n):
            if DQ and DQ[0][0] <= s_: DQ.pop(0)[1]()
    for r in range(2):
        a(f"buffer_load_dwordx4 {vr(LX+4*r,4)}, v{vL16}, {X}, s{sCnt} offen offset:{1024*r}", "xrow")
    a(f"""
    s_getreg_b32 s{sXcc}, hwreg(HW_REG_XCC_ID, 0, 4)
    s_mov_b32 s{sB1}, 0x3f803f80
    s_mov_b32 s{sMask}, 0xffff0000
    s_mul_i32 s{sT3}, s{sW}, {2*SROW}
    s_add_u32 s{sT3}, s{sT3}, {STG}
    v_add_u32 v{vSw}, s{sT3}, v{vL16}
    v_bfe_u32 v{vT3}, v{vL}, 2, 2
    v_and_b32 v{vT}, 1, v{vL}
    v_lshl_add_u32 v{vT}, v{vT}, 2, v{vT3}
    v_mul_u32_u24 v{vT}, {SROW}, v{vT}
    v_and_b32 v{vT2}, 2, v{vL}
    v_lshl_add_u32 v{vT}, v{vT2}, 2, v{vT}
    v_lshrrev_b32 v{vT2}, 4, v{vL}
    v_lshl_add_u32 v{vT}, v{vT2}, 4, v{vT}
    s_lshl_b32 s{sT3}, s{sW}, 8
    s_add_u32 s{sT3}, s{sT3}, {STG}
    v_add_u32 v{vSr}, s{sT3}, v{vT}
    """)
    issue(7)
    a(f"""
    v_and_b32 v{vSa}, 31, v{vL}
    v_lshrrev_b32 v{vT2}, 5, v{vL}
    v_bfe_u32 v{vC2}, v{vL}, 1, 3
    v_xor_b32 v{vC2}, v{vC2}, v{vT2}
    v_lshl_add_u32 v{vC2}, v{vC2}, 4, s{sLA}
    v_lshl_add_u32 v{vC2}, v{vSa}, 7, v{vC2}
    v_bfe_u32 v{vT3}, v{vL}, 2, 2
    v_lshl_add_u32 v{vT}, v{vT2}, 3, v{vT3}
    v_mul_u32_u24 v{vT}, 192, v{vT}
    v_bfe_u32 v{vT2}, v{vL}, 4, 1
    v_lshl_add_u32 v{vT}, v{vT2}, 5, v{vT}
    v_and_b32 v{vT2}, 3, v{vL}
    v_lshl_add_u32 v{vT}, v{vT2}, 3, v{vT}
    v_add_u32 v{vT}, {LB0}, v{vT}
    """)
    for i in range(4):
        a(f"""
        s_add_u32 s{sT3}, s{sW}, {i}
        s_and_b32 s{sT3}, s{sT3}, 3
        s_lshl_b32 s{sCnt}, s{sT3}, 5
        s_mulk_i32 s{sT3}, 3072
        v_xor_b32 v{vXr+i}, s{sCnt}, v{vC2}
        v_add_u32 v{vWr+i}, s{sT3}, v{vT}
        """)
    issue(3)
    a(f"""
    v_lshrrev_b32 v{vT2}, 4, v{vL}
    """)
    srd(24, 256)
    srd(12, WS_SIZE)
    a(f"""
    v_lshrrev_b32 v{vT}, 2, v{vL}
    v_xor_b32 v{vT}, v{vT}, v{vT2}
    v_and_b32 v{vT}, 1, v{vT}
    v_add_u32 v{vT}, -1, v{vT}
    """)
    for k in range(4): a(f"v_and_b32 v{HALF+k}, s{sB1}, v{vT}")
    FILL = [u.strip() for u in f"""
    s_mov_b32 s18, {1376*1024}
    s_mov_b32 s19, 0x20000
    s_mov_b32 s22, {2048*1024}
    s_mov_b32 s23, 0x20000
    s_mov_b32 s28, s12
    s_mov_b32 s29, s13
    s_mov_b32 s30, {H_SIZE}
    s_mov_b32 s31, 0x20000
    s_mov_b32 s{sL2e}, {LOG2E:#x}
    v_lshlrev_b32 v{vSa}, 4, v{vSa}
    s_add_u32 s{sO}, s{sO}, {ST}
    v_and_b32 v{vIa}, 15, v{vL}
    v_lshlrev_b32 v{vIa}, 7, v{vIa}
    s_lshl_b32 s{sIa}, s{sRB}, 11
    s_add_u32 s{sIa}, s{sIa}, {ST}
    v_lshrrev_b32 v{vT}, 3, v{vL}
    v_lshlrev_b32 v{vT}, 10, v{vT}
    v_bfe_u32 v{vT2}, v{vL}, 4, 1
    v_lshlrev_b32 v{vT3}, 2, v{vT2}
    v_xor_b32 v{vT3}, v{vT3}, v{vL}
    v_and_b32 v{vT3}, 7, v{vT3}
    v_lshl_add_u32 v{vW2o}, v{vT3}, 4, v{vT}
    v_lshrrev_b32 v{vT}, 5, v{vL}
    v_bfe_u32 v{vT3}, v{vL}, 2, 2
    v_lshl_add_u32 v{vT}, v{vT}, 2, v{vT3}
    v_lshlrev_b32 v{vT}, 7, v{vT}
    v_lshl_add_u32 v{vT}, v{vT2}, 5, v{vT}
    v_bfe_u32 v{vT2}, v{vL}, 3, 1
    v_lshl_add_u32 v{vT}, v{vT2}, 6, v{vT}
    v_and_b32 v{vT2}, 3, v{vL}
    v_lshl_add_u32 v{vT}, v{vT2}, 3, v{vT}
    s_lshl_b32 s{sT3}, s{sW}, 5
    s_and_b32 s{sT3}, s{sT3}, 64
    v_xor_b32 v{vT}, s{sT3}, v{vT}
    v_xor_b32 v{vT2}, 64, v{vT}
    v_add_u32 v{vW2r}, s{sLA}, v{vT}
    v_add_u32 v{vW2r+1}, s{sLA}, v{vT2}
    v_add_u32 v{vW2r+2}, s{sLB}, v{vT}
    v_add_u32 v{vW2r+3}, s{sLB}, v{vT2}
    s_and_b32 s{sT3}, s{sP}, 1
    s_lshl1_add_u32 s{sRT}, s{sRB}, s{sT3}
    s_lshr_b32 s{sCG}, s{sM}, 1
    s_mul_i32 s{sW2}, s{sW}, {352*1024}
    s_lshl_b32 s{sT}, s{sCG}, 7
    s_add_u32 s{sW2}, s{sW2}, s{sT}
    s_mul_i32 s{sHL}, s{sRT}, {2*HROW}
    s_mul_i32 s{sT}, s{sW}, {22*1024}
    s_add_u32 s{sHL}, s{sHL}, s{sT}
    s_lshl_b32 s{sT3}, s{sW}, 8
    s_add_u32 s{sT3}, s{sT3}, {LB0}
    v_lshl_add_u32 v{vT2}, v{vL}, 2, s{sT3}
    v_lshl_add_u32 v{vT}, v{vL}, 2, s{sLB}
    s_lshl2_add_u32 s{sT3}, s{sRB}, s{sW}
    s_mul_i32 s{sT3}, s{sT3}, {HROW}
    s_mul_i32 s{sHS}, s{sM}, 6144
    s_add_u32 s{sHS}, s{sHS}, s{sT3}
    s_add_u32 s{sHS2}, s{sHS}, 4096
    s_cmp_ge_u32 s{sM}, 14 | s_cselect_b32 s{sHS2}, {H_SIZE}, s{sHS2}
    s_lshr_b32 s{sT3}, s{sW}, 1
    s_lshl1_add_u32 s{sT3}, s{sRB}, s{sT3}
    s_lshl4_add_u32 s{sT3}, s{sT3}, s{sM}
    s_and_b32 s{sFl}, s{sW}, 1
    s_lshl1_add_u32 s{sFl}, s{sT3}, s{sFl}
    s_lshl_b32 s{sFl}, s{sFl}, 3
    s_add_u32 s{sFl}, s{sFl}, {FH}
    s_cmp_eq_u32 s{sM}, 15 | s_cselect_b32 s{sHS}, {H_SIZE}, s{sHS} | s_cselect_b32 s{sFl}, {WS_SIZE}, s{sFl}
    """.strip().split("\n")]
    def fill_(n):
        for _ in range(n):
            if FILL: a(FILL.pop(0).replace(" | ", "\n"))

    fill_(int(OPT.get("nfill", 99)))
    issue(int(OPT.get("n0", 14)) - 10)
    a.wait(vm="xrow")
    stamp()

    vC = CSA; S = [252, 253]; vN = 254; sR = sMean
    def dpp_reduce(fill):
        for ctl in ("row_shr:1 row_mask:0xf bank_mask:0xf bound_ctrl:0", "row_shr:2 row_mask:0xf bank_mask:0xf bound_ctrl:0",
                    "row_shr:4 row_mask:0xf bank_mask:0xf bound_ctrl:0", "row_shr:8 row_mask:0xf bank_mask:0xf bound_ctrl:0",
                    "row_bcast:15 row_mask:0xa bank_mask:0xf", "row_bcast:31 row_mask:0xc bank_mask:0xf"):
            for r in range(2):
                a(f"v_add_f32_dpp v{S[r]}, v{S[r]}, v{S[r]} {ctl}")
            for _ in range(3):
                if fill: a(fill.pop(0))
        while fill: a(fill.pop(0))
    for k in range(4):
        for r in range(2):
            a(f"v_dot2_f32_bf16 v{S[r]}, v{LX+4*r+k}, s{sB1}, {'0' if k == 0 else 'v%d' % S[r]}")
    unpack = lambda: [t for r in range(2) for k in range(4) for t in
                      (f"v_lshlrev_b32 v{LF+8*r+2*k}, 16, v{LX+4*r+k}", f"v_and_b32 v{LF+8*r+2*k+1}, s{sMask}, v{LX+4*r+k}")]
    fill = unpack()
    for _ in range(3): a(fill.pop(0))
    dpp_reduce(fill)
    for r in range(2): a(f"v_mul_f32 v{S[r]}, 0x3b000000, v{S[r]}")
    for r in range(2): a(f"v_cvt_pk_bf16_f32 v{vN+r}, -v{S[r]}, -v{S[r]}")
    for r in range(2): a(f"v_readlane_b32 s{sMean+2*r}, v{S[r]}, 63")
    for r in range(2): a(f"v_readlane_b32 s{sNeg+2*r}, v{vN+r}, 63")
    for k in range(4):
        for r in range(2):
            a(f"v_pk_add_f32 {vr(vC+8*r+2*k,2)}, {vr(LF+8*r+2*k,2)}, {sr(sMean+2*r,2)} op_sel_hi:[1,0] neg_lo:[0,1] neg_hi:[0,1]")
    for r in range(2): a(f"s_and_b32 s{sNeg+2*r}, s{sNeg+2*r}, s{sMask}")
    for r in range(2): a(f"s_or_b32 s{sNeg+2*r+1}, s{sNeg+2*r}, s{sXcc}")
    for r in range(2):
        a(f"v_pk_mul_f32 {vr(vC+8*r,2)}, {vr(vC+8*r,2)}, {vr(vC+8*r,2)}")
    for k in range(1, 4):
        for r in range(2):
            a(f"v_pk_fma_f32 {vr(vC+8*r,2)}, {vr(vC+8*r+2*k,2)}, {vr(vC+8*r+2*k,2)}, {vr(vC+8*r,2)}")
    for r in range(2): a(f"v_add_f32 v{S[r]}, v{vC+8*r}, v{vC+8*r+1}")
    fill = [f"v_pk_add_f32 {vr(LF+8*r+2*k,2)}, {vr(LF+8*r+2*k,2)}, {sr(sNeg+2*r,2)} op_sel_hi:[1,0]" for k in range(4) for r in range(2)]
    fill += [f"v_cvt_pk_bf16_f32 v{LX+4*r+k}, v{LF+8*r+2*k}, v{LF+8*r+2*k+1}" for k in range(4) for r in range(2)]
    dpp_reduce(fill)
    issue(int(OPT.get('n1', 0)))
    def rnd():
        for r in range(2): a(f"v_cvt_pk_bf16_f32 v{S[r]}, v{S[r]}, v{S[r]}")
        for r in range(2): a(f"v_lshlrev_b32 v{S[r]}, 16, v{S[r]}")
    for r in range(2): a(f"v_mul_f32 v{S[r]}, 0x3b000000, v{S[r]}")
    rnd()
    for r in range(2): a(f"v_add_f32 v{S[r]}, 0x3727c5ac, v{S[r]}")
    rnd()
    for r in range(2): a(f"v_sqrt_f32 v{S[r]}, v{S[r]}")
    rnd()
    for r in range(2): a(f"v_rcp_f32 v{S[r]}, v{S[r]}")
    for t in unpack(): a(t)
    for r in range(2): a(f"v_readlane_b32 s{sR+2*r}, v{S[r]}, 63")
    a(f"s_load_dwordx2 {sr(sTag,2)}, s[24:25], 0")
    for r in range(2):
        for k in range(4):
            a(f"v_pk_mul_f32 {vr(LF+8*r+2*k,2)}, {vr(LF+8*r+2*k,2)}, {sr(sR+2*r,2)} op_sel_hi:[1,0]")
        for k in range(4):
            a(f"v_cvt_pk_bf16_f32 v{LX+4*r+k}, v{LF+8*r+2*k}, v{LF+8*r+2*k+1}")
        a(f"ds_write_b128 v{vSw}, {vr(LX+4*r,4)} offset:{SROW*r}", "stg")
    a(f"""
    v_mov_b32 v{LG}, s{sNeg+1}
    v_mov_b32 v{LG+1}, s{sR}
    v_writelane_b32 v{LG}, s{sNeg+3}, 1
    v_writelane_b32 v{LG+1}, s{sR+2}, 1
    s_mul_i32 s{sXn}, s{sP}, {GS}
    s_lshl_b32 s{sT3}, s{sW}, 12
    s_add_u32 s{sXn}, s{sXn}, s{sT3}
    s_add_u32 s{sXn}, s{sXn}, {XNP}
    s_lshl2_add_u32 s{sSt}, s{sP}, s{sW}
    s_lshl_b32 s{sSt}, s{sSt}, 5
    s_add_u32 s{sSt}, s{sSt}, {ST}
    """)
    issue(int(OPT.get('n2', 7)))
    a.wait(lg=0)
    stamp()

    GROUPS = [("A", 2, 4), ("A", 0, 4), ("B", 1, 3), ("A", 1, 4), ("B", 0, 3), ("B", 2, 3), ("B", 3, 3)]
    LOC = []
    for rg, sl, n in GROUPS:
        for k in range(n):
            LOC.append((rg, sl * (16384 if rg == "A" else 12288) + k * 1024))
    PL2 = list(range(4, 24))
    ploc = lambda p: p if p < 24 else PL2[p - 24]
    SHARED['LOC'] = LOC
    pn = [0]
    def p_next():
        p = pn[0]; pn[0] += 1
        rg, off = LOC[ploc(p)]
        a(f"s_add_u32 m0, s{sLA if rg == 'A' else sLB}, {off}")
        a(f"s_add_u32 s{sT3}, s{sW2}, {8192*p}")
        a(f"buffer_load_dwordx4 v{vW2o}, {W2}, s{sT3} offen lds", f"P{p}")

    wb = lambda s_: WF + 12 * (s_ % 3)
    def tr_pair(s_, ft):
        c, i = divmod(s_, 4)
        for e in range(2):
            a(f"ds_read_b64_tr_b16 {vr(wb(s_)+4*ft+2*e,2)}, v{vWr+i} offset:{(c&3)*12288+e*768+ft*64}", f"wf{s_}")
    def rd_x(c, i):
        a(f"ds_read_b128 {vr(XF+16*(c&1)+4*i,4)}, v{vXr+i} offset:{(c%3)*16384}", f"xf{c}_{i}")
    def open_chunk(c):
        if "cs" in OPT and c in (3, 5): stamp(True)
        a.wait(vm=f"C{c}")
        if c == 0 or ("cs" in OPT and c in (3, 5)): stamp(True)
        a("s_barrier")
        if "cs" in OPT and c: stamp(True)

    open_chunk(0)
    for i in range(4): rd_x(0, i)
    for ft in range(3): tr_pair(0, ft)
    for k in range(4):
        a(f"ds_read_b64_tr_b16 {vr(LF+4*k,2)}, v{vSr} offset:{64*k}", "tr")
    for ft in range(3): tr_pair(1, ft)
    a(f"s_cmp_eq_u32 s{sTag}, 0\ns_cbranch_scc1 G_tagslow\nG_tagok:")
    for k in range(5): a(f"v_mov_b32 v{LF+4*k+2}, s{sTag}\nv_mov_b32 v{LF+4*k+3}, s{sTag+1}")
    a(f"s_mov_b64 exec, 3\nbuffer_store_dwordx4 {vr(LG,4)}, v{vL16}, {WS}, s{sSt} offen sc1\ns_mov_b64 exec, -1")
    XSL = [(0, 1), (0, 2), (1, 0), (1, 2)]
    PS = 99
    def bg_op(c, i, ft):
        s_ = 4 * c + i
        if DQ: issue(1, s_)
        elif s_ >= PS and ft != 1:
            lim = 0 if s_ < 20 else 4 if s_ < 24 else 8 if s_ < 26 else 11 if s_ < 28 else 15 if s_ < 30 else 18 if s_ < 31 else 24
            if pn[0] < lim: p_next()
    def split(dst, src, tmp):
        return [f"v_cvt_pk_bf16_f32 v{tmp}, v{src}, v{src}", f"v_lshlrev_b32 v{tmp}, 16, v{tmp}",
                f"v_sub_f32 v{tmp}, v{src}, v{tmp}", f"v_cvt_pk_bf16_f32 v{dst}, v{src}, v{tmp}"]
    for c in range(8):
        a.comment(f"---- GEMM1 chunk {c}")
        for i in range(4):
            s_ = 4 * c + i
            if i == 2 and c < 7:
                issue(int(OPT.get('flush', 0)), s_ - 1)
                assert not any(t == f'C{c+1}' for t in QT[len(QT)-len(DQ):])
                open_chunk(c + 1)
            a.wait(lg=(f"xf{c}_3", f"wf{s_}"))
            if s_ == 28:
                assert "csw" not in a.lg
                a("s_barrier")
            if s_ == 31: a("s_barrier")
            for ft in range(3):
                cs = i == 0 or c >= 7
                if cs and s_ == 31:
                    a(f"v_mfma_f32_16x16x32_bf16 {vr(CSA+12+4*ft,4)}, {vr(HALF,4)}, {vr(wb(s_)+4*ft,4)}, {vr(CSA+12+4*ft,4)}")
            for ft in range(3):
                cc = "0" if s_ == 0 else vr(ACC1+16*ft, 16)
                a(f"v_mfma_f32_32x32x16_bf16 {vr(ACC1+16*ft,16)}, {vr(wb(s_)+4*ft,4)}, {vr(XF+16*(c&1)+4*i,4)}, {cc}")
                if i == 2 and c < 7:
                    if ft == 0: rd_x(c + 1, 0)
                    rd_x(c + 1, ft + 1)
                if s_ + 2 < 32: tr_pair(s_ + 2, ft)
                if (s_, ft) in XSL:
                    a.wait(lg="tr")
                    k = XSL.index((s_, ft))
                    a(f"buffer_store_dwordx4 {vr(LF+4*k,4)}, v{vL16}, {WS}, s{sXn} offen offset:{1024*k} sc1", "xn")
                else: bg_op(c, i, ft)
                if (i == 0 or c >= 7) and s_ != 31:
                    d = CSA + 4 * ft + (12 if c >= 7 else 0)
                    a(f"v_mfma_f32_16x16x32_bf16 {vr(d,4)}, {vr(HALF,4)}, {vr(wb(s_)+4*ft,4)}, {'0' if s_ in (0, 28) else vr(d,4)}")
                if s_ == 25:
                    for t in split(vCs + ft, CSA + 4 * ft, CSA + 4 * ft + 1): a(t)
                if s_ == 25:
                    for k in range(2):
                        a(f"ds_write2st64_b32 v{vT2}, v{vCs+ft}, v{vCs+ft} offset0:{24*k+4*ft} offset1:{24*k+12+4*ft}", "csw")
                if s_ == 23:
                    for k in range(4): a(f"v_mov_b32 v{CSF+4*ft+k}, 0")
                if s_ == 28:
                    a("s_mov_b32 exec_hi, 0")
                    for k in range(2):
                        a(f"ds_read2st64_b32 {vr(CSF+4*ft+2*k,2)}, v{vT} offset0:{4*ft+2*k} offset1:{4*ft+2*k+1}", "csf")
                    a("s_mov_b32 exec_hi, -1")
                if s_ == 29 and ft == 2:
                    a.wait(vm="st", lg="csf")
                    a(f"""
                    s_mov_b32 s{sCnt}, 0
                    G_stchk:
                    v_cmp_ne_u64 vcc, {sr(sTag,2)}, {vr(vSt+2,2)}
                    v_cmp_ne_u64 s[88:89], {sr(sTag,2)}, {vr(vId+2,2)}
                    v_and_b32 v{vId+1}, 0xffff, v{vId}
                    s_or_b64 vcc, vcc, s[88:89]
                    s_cbranch_vccnz G_stslow
                    G_stok:
                    """)
                if s_ == 30 and ft == 0:
                    a(f"""
                    v_cmp_ne_u32 s[90:91], s{sXcc}, v{vId+1}
                    v_lshrrev_b32 v{vNeg+1}, 16, v{vSt}
                    v_bfi_b32 v{vNeg}, s{sMask}, v{vSt}, v{vNeg+1}
                    v_bfi_b32 v{vNeg+2}, s{sMask}, v{vSt}, v{vNeg+1}
                    """)
                if s_ == 30 and ft == 1:
                    a(f"""
                    v_bfi_b32 v{vNeg+3}, s{sMask}, v{vSt}, v{vNeg+1}
                    v_bfi_b32 v{vNeg+1}, s{sMask}, v{vSt}, v{vNeg+1}
                    v_mul_f32 v{vC2}, s{sL2e}, v{vSt+1}
                    s_or_b32 s{sFar}, s90, {1 if 'forcefar' in OPT else 's91'}
                    v_mov_b32 v{vNon}, s{sTag}
                    v_mov_b32 v{vNon+1}, s{sTag+1}
                    """)
                if s_ == 31:
                    sp = split(CSF + 4 * ft, CSA + 12 + 4 * ft, CSA + 13 + 4 * ft)
                    for t in sp[:3]: a(t)
                    a(f"s_mov_b32 exec_lo, 0\n{sp[3]}\ns_mov_b32 exec_lo, -1")
            if s_ == 23:
                assert not FILL
                a(f"buffer_load_dwordx4 {vr(vSt,4)}, v{vSa}, {WS}, s{sO} offen sc1", "st")
                a(f"buffer_load_dwordx4 {vr(vId,4)}, v{vIa}, {WS}, s{sIa} offen sc1", "st")
    assert not DQ
    stamp()
    for ft in range(3):
        a(f"v_mfma_f32_32x32x16_bf16 {vr(ACC1+16*ft,16)}, {vr(CSF+4*ft,4)}, {vr(vNeg,4)}, {vr(ACC1+16*ft,16)}")
    E1, OB = 208, 224
    def tr_w2(step, tag):
        base = STASH + 8 * (step % 12)
        for j in range(2):
            for e in range(2):
                rg, off = LOC[ploc(2 * step + e)]
                a(f"ds_read_b64_tr_b16 {vr(base+4*j+2*e,2)}, v{vW2r+(0 if rg=='A' else 2)+j} offset:{off}", tag)
    pn[0] = 24
    B9, B10 = int(OPT.get("b9", 1)), int(OPT.get("b10", 6))
    for ft in range(3):
        for j in range(2):
            A0 = ACC1 + 16 * ft + 8 * j
            T0 = E1 + 8 * j
            for k in range(8): a(f"v_mul_f32 v{A0+k}, v{vC2}, v{A0+k}")
            for k in range(8): a(f"v_exp_f32_e64 v{T0+k}, -v{A0+k}")
            if pn[0] < 24: p_next()
            for k in range(8): a(f"v_fma_f32 v{T0+k}, v{T0+k}, s{sL2e}, s{sL2e}")
            for k in range(8): a(f"v_rcp_f32 v{T0+k}, v{T0+k}")
            if pn[0] < 24: p_next()
            for k in range(8): a(f"v_mul_f32 v{A0+k}, v{A0+k}, v{T0+k}")
            for k in range(0, 8, 2): a(f"v_cvt_pk_bf16_f32 v{OB+8*ft+4*j+k//2}, v{A0+k}, v{A0+k+1}")
            a(f"buffer_store_dwordx4 {vr(OB+8*ft+4*j,4)}, v{vL16}, {HS}, s{sHS if ft < 2 else sHS2} offen offset:{1024*((2*ft+j)&3)} {OPT.get('hnt', 'nt')}", "hs")
    stamp()
    a("s_barrier")
    for k in range(12): tr_w2(k, "S")
    vH, vF, vXg, vO, vY, vXl, vR, vP, vYl = 2, 4, 5, 6, 7, 8, 13, 10, 9
    a(f"""
    s_lshl_b32 s{sT}, s{sW}, 3
    s_lshr_b32 s{sT2}, 0x160e0600, s{sT}
    s_and_b32 s{sT2}, s{sT2}, 0xff
    s_lshr_b32 s{sT}, 0x1d150f07, s{sT}
    s_and_b32 s{sT}, s{sT}, 0xff
    v_max_u32 v{vF}, s{sT2}, v{vL}
    v_min_u32 v{vF}, s{sT}, v{vF}
    v_lshlrev_b32 v{vF}, 3, v{vF}
    s_and_b32 s{sT}, s{sW}, 1
    s_mul_i32 s{sT2}, s{sT}, {HROW}
    v_add_u32 v{vH}, s{sT2}, v{vL16}
    s_sub_u32 s{sT2}, {HROW}, s{sT2}
    v_add_u32 v{vH+1}, s{sT2}, v{vL16}
    s_mov_b32 s{sCnt}, 0
    """)
    a.wait(lg=0)
    NPD = int(OPT.get("npd", 4))
    for _ in range(NPD): p_next()
    a(f"s_cmp_lg_u32 s{sFar}, 0\ns_cbranch_scc1 G_far")
    a.wait(vm="hs")
    stamp()
    a(f"s_mov_b64 exec, 1\nbuffer_store_dwordx2 {vr(vNon,2)}, off, {WS}, s{sFl}\nG_pub:\ns_mov_b64 exec, -1")
    a(f"s_lshl_b32 s{sRet}, s{sRT}, 8\ns_add_u32 s{sRet}, s{sRet}, {FH}")
    PI = int(OPT.get("pi", 38))
    def p_upto(n):
        while pn[0] < n:
            if pn[0] == PI: a(f"buffer_load_dwordx2 {vr(vP,2)}, v{vF}, {WS}, s{sRet} offen sc1", "poll")
            p_next()
    p_upto(44)
    if PI >= 44: a(f"buffer_load_dwordx2 {vr(vP,2)}, v{vF}, {WS}, s{sRet} offen sc1", "poll")
    stamp()
    a.wait(vm="poll")
    a(f"G_hchk:\nv_cmp_ne_u64 vcc, {sr(sTag,2)}, {vr(vP,2)}\ns_add_u32 s{sCnt}, s{sCnt}, 1\ns_cbranch_vccnz G_hslow\nG_hok:")
    stamp()
    if STAMPS: a(f"s_lshl_b32 s{sCnt}, s{sCnt}, 16\ns_add_u32 s97, s97, s{sCnt}")
    HS_ = [(i, 1) for i in range(12)] + [(i, j) for i in range(12, 22) for j in (1, 0)] + [(i, 0) for i in range(12)]
    HR, WR = int(OPT.get("hr", 10)), 232
    grp = [None]
    def h_load(n):
        i, j = HS_[n]
        if i // 4 != grp[0]:
            grp[0] = i // 4; a(f"s_add_u32 s{sTx}, s{sHL}, {4096*(i//4)}")
        a(f"buffer_load_dwordx4 {vr(HB+4*(n%HR),4)}, v{vH+j}, {HS}, s{sTx} offen offset:{1024*(i%4)} {OPT.get('hlf', 'sc1').replace('_', ' ')}", f"h{n}")
    for n in range(HR - 1): h_load(n)
    a(f"""
    s_lshl1_add_u32 s{sT2}, s{sRT}, s{sT}
    s_lshr_b32 s{sT}, s{sW}, 1
    s_lshl1_add_u32 s{sCnt}, s{sCG}, s{sT}
    s_lshl_b32 s{sO}, s{sT2}, 15
    s_lshl_b32 s{sT}, s{sCnt}, 6
    s_add_u32 s{sO}, s{sO}, s{sT}
    s_mul_i32 s{sY}, s{sCnt}, {32*GC}
    s_lshl_b32 s{sT}, s{sT2}, 7
    s_add_u32 s{sY}, s{sY}, s{sT}
    s_add_u32 s{sY}, s{sY}, {Y2}
    v_and_b32 v{vT}, 31, v{vL}
    v_lshrrev_b32 v{vT2}, 5, v{vL}
    v_lshlrev_b32 v{vO}, 10, v{vT}
    v_lshl_add_u32 v{vO}, v{vT2}, 4, v{vO}
    v_lshl_add_u32 v{vXl}, v{vT}, 6, s{sLA}
    v_lshl_add_u32 v{vXl}, v{vT2}, 4, v{vXl}
    v_lshlrev_b32 v{vYl}, 3, v{vT2}
    v_sub_u32 v{vF}, v{vT}, v{vYl}
    v_bfe_u32 v{vT}, v{vL}, 2, 2
    v_add_u32 v{vYl}, v{vYl}, v{vT}
    v_lshl_add_u32 v{vYl}, v{vYl}, 7, s{sLA}
    v_bfe_u32 v{vT}, v{vL}, 4, 1
    v_lshl_add_u32 v{vYl}, v{vT}, 6, v{vYl}
    v_and_b32 v{vT}, 3, v{vL}
    v_lshl_add_u32 v{vYl}, v{vT}, 4, v{vYl}
    v_lshrrev_b32 v{vY}, 3, v{vL}
    v_mul_u32_u24 v{vY}, {GC}, v{vY}
    v_and_b32 v{vT}, 7, v{vL}
    v_lshl_add_u32 v{vY}, v{vT}, 4, v{vY}
    v_add_u32 v{vP}, s{sLA}, v{vL16}
    v_lshrrev_b32 v{vXg}, 2, v{vL}
    v_lshlrev_b32 v{vXg}, 10, v{vXg}
    v_and_b32 v{vT}, 3, v{vL}
    v_lshl_add_u32 v{vXg}, v{vT}, 4, v{vXg}
    v_add_u32 v{vR}, s{sLB}, v{vL16}
    """)
    for k in range(1, 4):
        a(f"s_xor_b32 s{sT}, s{sW}, {k}\ns_mulk_i32 s{sT}, 3072\ns_add_u32 s{sT}, s{sT}, {LB0}\nv_add_u32 v{vR+k}, s{sT}, v{vL16}")
    YO = 32768
    YT, YF, XFr, IDN = 232, 240, 248, 24
    XR = 24
    if "touch" in OPT:
        a(f"v_and_b32 v{vT}, 31, v{vL}\nv_mul_u32_u24 v{vT}, {GC}, v{vT}")
        a(f"buffer_load_dword v12, v{vT}, {WS}, s{sY} offen sc1", "yt")
    a(f"v_and_b32 v{vT}, 1, v{vF}\nv_lshlrev_b32 v{vT}, 4, v{vT}\nv_lshlrev_b32 v{vT}, v{vT}, v{vW2o}" if False else
      f"v_and_b32 v{vT}, 1, v{vF}\nv_lshlrev_b32 v{vT}, 4, v{vT}\nv_mov_b32 v11, 0x3f80\nv_lshlrev_b32 v11, v{vT}, v11\nv_ashrrev_i32 v{vF}, 1, v{vF}")
    for k in range(8):
        a(f"v_cmp_eq_u32 s[{88+2*(k&1)}:{89+2*(k&1)}], {8*(k>>2)+(k&3)}, v{vF}")
        if k: a(f"v_cndmask_b32 v{IDN+k-1}, 0, v11, s[{88+2*((k-1)&1)}:{89+2*((k-1)&1)}]")
    a(f"v_cndmask_b32 v{IDN+7}, 0, v11, s[90:91]")
    def y_loads(emit):
        emit(f"s_add_u32 m0, s{sLA}, {YO}")
        for k in range(4):
            emit(f"s_add_u32 s{sT2}, s{sY}, {8*k*GC-1024*k}")
            emit(f"buffer_load_dwordx4 v{vY}, {WS}, s{sT2} offen offset:{1024*k} sc1 lds")
    def y_reads(emit):
        for k in range(4): emit(f"ds_read_b64 {vr(YT+2*k,2)}, v{vP} offset:{YO+1024*k+8}")
        for k in range(4): emit(f"ds_read_b64_tr_b16 {vr(YF+2*k,2)}, v{vYl} offset:{YO+2048*(k>>1)+512*(k&1)}")
    wreg = lambda i: STASH + 8 * i if i < 12 else WR + 8 * (i % 3)
    def w_reads(i, half):
        j = half
        for e in range(2):
            rg, off = LOC[ploc(2 * i + e)]
            a(f"ds_read_b64_tr_b16 {vr(wreg(i)+4*j+2*e,2)}, v{vW2r+(0 if rg=='A' else 2)+j} offset:{off}", f"r{i}")
    started = set()
    def mm(n, jd):
        i, j = HS_[n]; k = 2 * jd + j
        ac = ACC2 + 16 * k
        a(f"v_mfma_f32_32x32x16_bf16 {vr(ac,16)}, {vr(wreg(i)+4*jd,4)}, {vr(HB+4*(n%HR),4)}, {vr(ac,16) if k in started else '0'}")
        started.add(k)
    roff = lambda k, q: (((k - 1) * 4 + q) // 3) * 12288 + (((k - 1) * 4 + q) % 3) * 1024
    def r_write(k, q): a(f"ds_write_b128 v{vR}, {vr(ACC2+16*k+4*q,4)} offset:{roff(k,q)}", "rw")
    def r_read(k, q): a(f"ds_read_b128 {vr(ACC2+16*k+4*q,4)}, v{vR+k} offset:{roff(k,q)}", f"rr{k}")
    YS = int(OPT.get("ys", 34))
    NT = 4
    side = []
    def run_side(c):
        for _ in range(c):
            if side:
                t = side.pop(0)
                if callable(t): t()
                else: a(t)
    for n in range(44 - NT):
        i, j = HS_[n]
        a.wait(vm=f"h{n}", lg=(f"r{i}" if i >= 12 else 0 if n == 0 else None))
        if n == 0 or ("g2" in OPT and n in (12, 24, 32, 36)): stamp(True)
        for jd in range(2):
            mm(n, jd)
            if jd == 0 and n + HR - 1 < 44: h_load(n + HR - 1)
            if n in (8, 10): w_reads(12 + (n - 8) // 2, jd)
            if 12 <= n < 28 and j == 1: w_reads(i + 2, jd)
            if jd == 1 and n == YS:
                y_loads(lambda t: a(t, "yr"))
            if jd == 1 and n == 30:
                a(f"s_mov_b32 m0, s{sLA}\ns_add_u32 s{sT2}, s{sO}, {16384-1024}")
                a(f"buffer_load_dwordx4 v{vXg}, {X}, s{sO} offen lds", "xr")
                a(f"buffer_load_dwordx4 v{vXg}, {X}, s{sT2} offen offset:1024 lds", "xr")
            g = 2 * (n - 32) + jd
            if 0 <= g < 12 and g % 3 != 2:
                w = g - g // 3; r_write(1 if w < 4 else 3, w & 3)
            if g == 12:
                a.wait(vm="xr")
                for q in range(2): a(f"ds_read_b128 {vr(XFr+4*q,4)}, v{vXl} offset:{32*q}", "xl")
            if g == 14:
                a.wait(lg="rw")
                a("s_barrier")
                for q in range(4): r_read(1, q)
            if g == 15:
                for q in range(4): r_read(3, q)
    if "ts" in OPT: stamp()
    side = [lambda: a.wait(lg="rr3")] + [f"v_add_f32 v{ACC2+16+q}, v{ACC2+16+q}, v{ACC2+48+q}" for q in range(16)]
    for q, n in enumerate(range(44 - NT, 44)):
        a.wait(vm=f"h{n}")
        mm(n, 1)
        if q >= 2: run_side(6)
    tail = [lambda n=n: mm(n, 0) for n in range(44 - NT, 44)]
    for src in (XFr, YF):
        for q in range(2):
            tail.append(lambda src=src, q=q: a(f"v_mfma_f32_32x32x16_bf16 {vr(ACC2,16)}, {vr(IDN+4*q,4)}, {vr(src+4*q,4)}, {vr(ACC2,16)}"))
    for q, t in enumerate(tail):
        t()
        if q == 0: run_side(99)
        if 1 <= q <= 4: r_write(2, q - 1)
        if q == 4:
            a.wait(vm="yr")
            y_reads(lambda t: a(t, "yl"))
        if q == 5:
            a.wait(lg="rw")
            a("s_barrier")
            for q2 in range(4): r_read(2, q2)
            a.wait(lg="yl")
            a(f"s_mov_b32 s{sCnt}, 0\nG_ychk:")
            a(f"v_cmp_ne_u64 vcc, {sr(sTag,2)}, {vr(YT,2)}")
            for q2 in range(1, 4): a(f"v_cmp_ne_u64 s[{86+2*q2}:{87+2*q2}], {sr(sTag,2)}, {vr(YT+2*q2,2)}")
            for q2 in range(1, 4): a(f"s_or_b64 vcc, vcc, s[{86+2*q2}:{87+2*q2}]")
            a("s_cbranch_vccnz G_yslow\nG_yok:")
    stamp()
    a.wait(lg="rr2")
    for q in range(16): a(f"v_add_f32 v{ACC2+16+q}, v{ACC2+16+q}, v{ACC2+32+q}")
    for k in range(8):
        a(f"v_pk_add_f32 {vr(ACC2+2*k,2)}, {vr(ACC2+2*k,2)}, {vr(ACC2+16+2*k,2)}")
    for k in range(8):
        a(f"v_cvt_pk_bf16_f32 v{XR+k}, v{ACC2+2*k}, v{ACC2+2*k+1}")
    for q in range(2):
        a(f"v_permlane32_swap_b32 v{XR+4*q}, v{XR+4*q+2}\nv_permlane32_swap_b32 v{XR+4*q+1}, v{XR+4*q+3}")
        a(f"buffer_store_dwordx4 {vr(XR+4*q,4)}, v{vO}, {OUT}, s{sO} offen offset:{32*q} {OPT.get('osf', '').replace('_', ' ')}")
    stamp()
    if STAMPS:
        a("s_waitcnt vmcnt(0)"); stamp()
    if "padev" in OPT:
        a(f"G_pad2:\ns_memrealtime s[98:99]\ns_waitcnt lgkmcnt(0)\ns_sub_u32 s96, s98, s86\ns_cmp_lt_u32 s96, 3000\ns_cbranch_scc1 G_pad2")
    if "padto" in OPT:
        a(f"G_pad:\ns_memrealtime s[98:99]\ns_waitcnt lgkmcnt(0)\ns_sub_u32 s96, s98, s{sTag}\ns_cmp_lt_u32 s96, {OPT['padto']}\ns_cbranch_scc1 G_pad")
    if "dbg" in OPT:
        n = nstamp[0]
        a(f"s_memrealtime s[98:99]\ns_waitcnt lgkmcnt(0)\ns_lshl2_add_u32 s96, s2, s{sW}\ns_cmp_lg_u32 s96, {4*int(OPT['dbg'])}\ns_cbranch_scc1 G_nodbg\ns_mov_b64 exec, 1")
        for i in range(1, n):
            a(f"s_sub_u32 s96, s{60+2*i}, s60\nv_mov_b32 v{vT}, s96\nbuffer_store_dword v{vT}, off, {DBG}, 0 offset:{4+4*i}")
        a(f"s_sub_u32 s96, s98, s{sTag}\nv_mov_b32 v{vT}, s96\nbuffer_store_dword v{vT}, off, {DBG}, 0 offset:60")
        a("G_nodbg:")
    stamp_flush(WS, f"s{sW}", vT, 256)
    a("s_endpgm")
    tag_slow("G", sTag, 24, [64, 192], vNon, sCnt)
    a.raw(f"""G_stslow:
{retry_mark(4)}  s_add_u32 s{sCnt}, s{sCnt}, 1
  s_cmp_ge_u32 s{sCnt}, {SPIN}
  s_cbranch_scc1 G_stok
  buffer_load_dwordx4 {vr(vSt,4)}, v{vSa}, {WS}, s{sO} offen sc1
  buffer_load_dwordx4 {vr(vId,4)}, v{vIa}, {WS}, s{sIa} offen sc1
  s_waitcnt vmcnt(0)
  s_branch G_stchk
G_hslow:
  s_cmp_ge_u32 s{sCnt}, {SPIN}
  s_cbranch_scc1 G_hok
  buffer_load_dwordx2 {vr(vP,2)}, v{vF}, {WS}, s{sRet} offen sc1
  s_waitcnt vmcnt(0)
  s_branch G_hchk
G_yslow:
{retry_mark(8)}  s_add_u32 s{sCnt}, s{sCnt}, 1
  s_cmp_ge_u32 s{sCnt}, {1 if "nossm" in OPT else SPIN}
  s_cbranch_scc1 G_yok""")
    y_loads(lambda t: a.raw("  " + t))
    a.raw("  s_waitcnt vmcnt(0)")
    y_reads(lambda t: a.raw("  " + t))
    a.raw("  s_waitcnt lgkmcnt(0)\n  s_branch G_ychk")
    a.hist = []
    a("G_far:\ns_waitcnt vmcnt(0)")
    for k in range(6):
        a(f"buffer_store_dwordx4 {vr(OB+4*k,4)}, v{vL16}, {HS}, s{sHS if k < 4 else sHS2} offen offset:{1024*(k&3)} sc1")
    a(f"s_waitcnt vmcnt(0)\ns_mov_b64 exec, 1\nbuffer_store_dwordx2 {vr(vNon,2)}, off, {WS}, s{sFl} sc1\ns_branch G_pub")
    a.vm = []; a.lg = []

def ssm_role():
    DBG, WS = "s[8:11]", "s[12:15]"
    sQ, sW, sE, sPar, sT, sT2, sCnt, sB1, sMask = 3, 32, 5, 6, 7, 34, 35, 40, 41
    sLdt, sD, sTag, sU, sXcc = 42, 43, 36, 38, 4
    sMean, sNeg = 44, 48
    vL, LX, LF, vC, LG = 1, 2, 10, 30, 26
    vPar = 44
    vT, vT2, vT3, vT4 = 54, 55, 56, 57
    vNon, vL16, vTab = 52, 60, 61
    SB = 98304
    CB0, UB0, USZ, K0A, FLG, TAB, TSZ, SROW = SB, SB + 33280, 4576, SB + 42432, SB + 42448, SB + 49152, 4096, 1056
    a.hist = []; a.vm = []; a.lg = []
    a(f"""
    s_load_dwordx16 s[16:31], s[0:1], 0
    s_load_dwordx2 s[8:9], s[0:1], 104
    s_load_dwordx2 s[52:53], s[0:1], 64
    s_load_dwordx2 s[92:93], s[0:1], 88
    s_load_dwordx2 s[12:13], s[0:1], 112
    s_memrealtime {sr(sTag,2)}
    s_setprio 3
    s_sub_u32 s{sW}, s{sW}, 4
    v_and_b32 v{vL}, 63, v0
    v_and_b32 v{vT}, 255, v0
    s_lshl_b32 s{sT}, s{sQ}, 9
    v_lshl_add_u32 v{vT3}, v{vT}, 1, s{sT}
    s_lshl2_add_u32 s{sT2}, s{sQ}, s{sW}
    s_lshl_b32 s{sT2}, s{sT2}, 11
    v_lshlrev_b32 v{vL16}, 4, v{vL}
    v_lshl_add_u32 v{vT4}, v{vL}, 6, s{sT2}
    s_lshl_b32 s{sT}, s{sQ}, 2
    """)
    srd(8, 256)
    a("s_waitcnt lgkmcnt(0)")
    if STAMPS: a(f"s_mov_b32 s100, s{sTag}\ns_mov_b32 s97, 0")
    stamp()
    a(f"""
    s_or_b32 s{sTag}, s{sTag}, 1
    v_mov_b32 v{vNon}, s{sTag}
    v_mov_b32 v{vNon+1}, s{sTag+1}
    buffer_store_dwordx2 {vr(vNon,2)}, v{vT4}, {DBG}, 0 offen sc1
    """)
    for k in range(6):
        a(f"global_load_ushort v{vPar+k}, v{vT3}, s[{18+2*k}:{19+2*k}]", "par")
    a(f"s_load_dword s{sLdt}, s[30:31], s{sT}\ns_load_dword s{sD}, s[52:53], s{sT}\ns_setprio 0\ns_branch L_ssm")
    keep = (list(a.vm), nstamp[0])
    yield
    a.hist = []; a.lg = []; a.vm = keep[0]; nstamp[0] = keep[1]
    srd(12, WS_SIZE)
    vSw, vSr = 62, 63
    vOA, vOG, vPb = 50, 51, 59
    a(f"""
    s_lshr_b32 s{sE}, s{sW}, 1
    s_and_b32 s{sPar}, s{sW}, 1
    s_mov_b32 s{sMask}, 0xffff0000
    s_mul_i32 s{sT2}, s{sE}, {USZ}
    s_add_u32 s{sT2}, s{sT2}, {UB0}
    v_lshl_add_u32 v{vT}, v{vL}, 3, s{sT2}
    v_mov_b32 v{vT3}, 0
    v_mov_b32 v{vT4}, 0
    ds_write_b64 v{vT}, {vr(vT3,2)}
    s_lshl2_add_u32 s{sT2}, s{sW}, {FLG}
    v_mov_b32 v58, s{sT2}
    ds_write_b32 v58, v{vT3}
    ds_write_b32 v58, v{vT3} offset:16
    s_lshl_b32 s{sT2}, s{sW}, 12
    s_add_u32 s{sT2}, s{sT2}, {TAB}
    v_add_u32 v{vTab}, s{sT2}, v{vL16}
    v_lshrrev_b32 v{vT}, 4, v{vL}
    v_lshl_add_u32 v{vPb}, v{vT}, 6, s{sT2}
    v_and_b32 v{vT}, 15, v{vL}
    v_lshlrev_b32 v{vOG}, 3, v{vT}
    v_lshlrev_b32 v{vT2}, 2, v{vT}
    v_add_u32 v{vT2}, {512-36}, v{vT2}
    v_cmp_lt_u32 vcc, 8, v{vT}
    v_add_u32 v{vT3}, {1024-96}, v{vOG}
    v_add_u32 v{vT4}, {1536-112}, v{vOG}
    v_cndmask_b32 v{vOA}, v{vT}, v{vT2}, vcc
    v_cmp_lt_u32 vcc, 11, v{vT}
    v_cmp_lt_u32 s[56:57], 13, v{vT}
    v_cvt_f32_u32 v{vOG}, v{vOG}
    v_cndmask_b32 v{vOA}, v{vOA}, v{vT3}, vcc
    v_cndmask_b32 v{vOA}, v{vOA}, v{vT4}, s[56:57]
    v_cvt_f32_u32 v{vOA}, v{vOA}
    """)
    def k_mfma(s_):
        F = 152 + 16 * (s_ & 1)
        for hh in range(2):
            for gt in range(2):
                d = 200 + 8 * hh + 4 * gt
                a(f"v_mfma_f32_16x16x32_bf16 {vr(d,4)}, {vr(F+4*hh,4)}, {vr(F+8+4*gt,4)}, {'0' if s_ == 0 else vr(d,4)}")
    UG = int(OPT.get("ug", 99))
    vUg, vUw, vU, sG = 30, 31, 232, 54
    def u_addr():
        a(f"""
        v_lshrrev_b32 v{vT3}, 2, v{vL}
        v_bfe_u32 v{vT4}, v{vL}, 1, 1
        v_and_b32 v{vT2}, 1, v{vL}
        v_mul_u32_u24 v{vUg}, {GS}, v{vT3}
        v_lshl_add_u32 v{vUg}, v{vT4}, 6, v{vUg}
        v_lshl_add_u32 v{vUg}, v{vT2}, 4, v{vUg}
        v_mul_u32_u24 v{vUw}, {USZ}, v{vT2}
        v_lshl_add_u32 v{vUw}, v{vT3}, 4, v{vUw}
        v_lshl_add_u32 v{vUw}, v{vT4}, 3, v{vUw}
        s_lshl_b32 s{sT}, s{sW}, 10
        s_add_u32 s{sT}, s{sT}, {UB0+480}
        v_add_u32 v{vUw}, s{sT}, v{vUw}
        s_mul_i32 s{sG}, s{sW}, {64*GS}
        s_lshr_b32 s{sT}, s{sQ}, 1
        s_lshl_b32 s{sT}, s{sT}, 7
        s_add_u32 s{sG}, s{sG}, s{sT}
        s_and_b32 s{sT}, s{sQ}, 1
        s_lshl_b32 s{sT}, s{sT}, 5
        s_add_u32 s{sG}, s{sG}, s{sT}
        s_add_u32 s{sG}, s{sG}, {XNP}
        """)
    def u_loads(emit, ks=range(4)):
        emit("s_setprio 3")
        for k in ks:
            emit(f"s_add_u32 s{sG+1}, s{sG}, {k*16*GS}")
            emit(f"buffer_load_dwordx4 {vr(vU+4*k,4)}, v{vUg}, {WS}, s{sG+1} offen sc1 {OPT.get('uf', '')}")
        emit("s_setprio 0")
    u_addr()
    W2 = "s[92:95]"
    vW2o, vTp, sW2, sLA, sLB, sTp = 62, 63, 16, 17, 18, 19
    srd(92, 1376 * 1024)
    a(f"""
    v_lshrrev_b32 v{vT}, 3, v{vL}
    v_lshlrev_b32 v{vT}, 10, v{vT}
    v_bfe_u32 v{vT2}, v{vL}, 4, 1
    v_lshlrev_b32 v{vT3}, 2, v{vT2}
    v_xor_b32 v{vT3}, v{vT3}, v{vL}
    v_and_b32 v{vT3}, 7, v{vT3}
    v_lshl_add_u32 v{vW2o}, v{vT3}, 4, v{vT}
    v_min_u32 v{vTp}, 43, v{vL}
    v_lshlrev_b32 v{vTp}, 7, v{vTp}
    s_mul_i32 s{sW2}, s{sW}, {352*1024}
    s_and_b32 s{sTp}, s{sQ}, 31
    s_mulk_i32 s{sTp}, 5632
    s_add_u32 s{sTp}, s{sTp}, s{sW2}
    s_bfe_u32 s{sT}, s{sQ}, 0x30001
    s_lshl_b32 s{sT}, s{sT}, 7
    s_add_u32 s{sW2}, s{sW2}, s{sT}
    s_lshl_b32 s{sLA}, s{sW}, 12
    s_mul_i32 s{sLB}, s{sW}, 3072
    s_add_u32 s{sLB}, s{sLB}, 49152
    """)
    vXw, vXr_, vK, vZ, vAa, vBa, vUa, vBp, vPr, vK0, vCb = 32, 33, 34, 35, 36, 37, 38, 39, 40, 41, 42
    a(f"""
    v_lshrrev_b32 v{vT2}, 4, v{vL}
    v_and_b32 v{vT3}, 15, v{vL}
    s_lshl_b32 s{sT2}, s{sW}, 12
    s_add_u32 s{sT2}, s{sT2}, {TAB}
    v_lshl_add_u32 v{vXw}, v{vT3}, 4, s{sT2}
    v_lshl_add_u32 v{vXw}, v{vT2}, 10, v{vXw}
    s_lshl_b32 s{sT}, s{sE}, 13
    s_add_u32 s{sT}, s{sT}, {TAB}
    v_add_u32 v{vXr_}, s{sT}, v{vL16}
    s_xor_b32 s{sT2}, s{sT2}, 4096
    v_add_u32 v{vPr}, s{sT2}, v{vL16}
    v_xor_b32 v27, 4, v58
    s_mul_i32 s{sT}, s{sE}, {USZ}
    s_add_u32 s{sT}, s{sT}, {UB0+256}
    s_lshl_b32 s{sT2}, s{sPar}, 8
    v_lshl_add_u32 v{vBa}, v{vT3}, 5, s{sT}
    v_lshl_add_u32 v{vUa}, v{vT2}, 3, v{vBa}
    v_lshlrev_b32 v{vT3}, 4, v{vT2}
    v_add_u32 v{vBa}, v{vT3}, v{vBa}
    v_subrev_u32 v{vBa}, s{sT2}, v{vBa}
    v_bfe_u32 v{vT2}, v{vL}, 2, 2
    v_sub_u32 v{vT4}, 0, v{vT2}
    v_and_b32 v{vT4}, 3, v{vT4}
    v_mul_u32_u24 v{vAa}, 4160, v{vT4}
    v_min_u32 v{vT2}, 1, v{vT2}
    v_lshlrev_b32 v{vT2}, 3, v{vT2}
    v_sub_u32 v{vAa}, v{vAa}, v{vT2}
    v_sub_u32 v{vAa}, v{vAa}, v{vT3}
    v_and_b32 v{vT2}, 3, v{vL}
    v_lshl_add_u32 v{vAa}, v{vT2}, 3, v{vAa}
    s_mul_i32 s{sT}, s{sE}, 16640
    s_add_u32 s{sT}, s{sT}, {CB0}
    v_mov_b32 v{vCb}, s{sT}
    s_add_u32 s{sT2}, s{sT2}, s{sT}
    s_add_u32 s{sT2}, s{sT2}, {32+32-8}
    v_add_u32 v{vAa}, s{sT2}, v{vAa}
    v_lshrrev_b32 v{vT3}, 2, v{vL}
    v_lshl_add_u32 v{vBp}, v{vT2}, 4, v{vT3}
    v_lshlrev_b32 v{vBp}, 2, v{vBp}
    s_lshl_b32 s{sT2}, s{sPar}, 11
    s_add_u32 s{sT2}, s{sT2}, s{sT}
    s_add_u32 s{sT2}, s{sT2}, 32
    v_add_u32 v{vK}, s{sT2}, v{vL16}
    v_bfe_u32 v{vZ}, v{vL}, 3, 2
    v_mul_u32_u24 v{vZ}, 4160, v{vZ}
    v_and_b32 v{vT4}, 7, v{vL}
    v_lshl_add_u32 v{vZ}, v{vT4}, 2, v{vZ}
    v_add_u32 v{vZ}, s{sT}, v{vZ}
    s_lshl2_add_u32 s{sT}, s{sE}, {K0A}
    v_mov_b32 v{vK0}, s{sT}
    v_and_b32 v{vT4}, 1, v{vL}
    v_cmp_eq_u32 s[58:59], 1, v{vT4}
    v_cmp_le_u32 s[56:57], 32, v{vL}
    """)
    def piece(p):
        rg, off = SHARED['LOC'][p]
        a(f"s_add_u32 m0, s{sLA if rg == 'A' else sLB}, {off}\ns_add_u32 s44, s{sW2}, {8192*p}")
        a(f"buffer_load_dwordx4 v{vW2o}, {W2}, s44 offen lds", "P")
    pn = [0]
    PE = int(OPT.get("pe", 0))
    def pieces(n):
        while pn[0] < n: piece(pn[0]); pn[0] += 1
    def touch(half):
        a(f"s_add_u32 s44, s{sTp}, {half*176*1024}")
        a(f"buffer_load_dword v29, v{vTp}, {W2}, s44 offen", "tp")
    TP0, TP1 = int(OPT.get("tp0", 6)), int(OPT.get("tp1", 8))
    PR, PB, FR, KT, KA = 64, 72, 152, 200, 216
    a("s_waitcnt lgkmcnt(0)")
    a.lg = []
    BP = int(OPT.get("bp", 260))
    NKB = int(OPT.get("nkb", 8))
    a.metro = ([int(OPT.get("bb0", 800)), int(OPT.get("b01", 250))] + [int(OPT.get("bq", 400))] * 3 + [BP] * 3 + [BP // 2, 3 * BP // 4])[:NKB]
    a.cost = 0
    uq = list(range(4))
    def on_bar(left):
        nb = NKB - 1 - left
        if nb in (0, 2, 5): stamp()
        if nb == TP0: touch(0)
        if nb == TP1: touch(1)
        if nb >= 6: pieces(min(PE, {6: 4, 7: 11}.get(nb, 15)))
        if nb >= UG:
            for _ in range(int(OPT.get("un", 2))):
                if uq: u_loads(lambda t: a(t, "u"), [uq.pop(0)])
    a.on_bar = on_bar
    a(f"""
    s_lshl_b32 s{sT}, s{sLdt}, 16
    s_and_b32 s{sT2}, s{sLdt}, s{sMask}
    s_cmp_eq_u32 s{sE}, 0
    s_cselect_b32 s{sT}, s{sT}, s{sT2}
    v_mov_b32 v{vT}, {LOG2E:#x}
    v_mul_f32 v{vT}, s{sT}, v{vT}
    v_exp_f32 v{vT}, v{vT}
    """)
    a.wait(vm="par")
    stamp()
    for k in range(6): a(f"v_lshlrev_b32 v{vPar+k}, 16, v{vPar+k}")
    TM = 136
    a(f"""
    v_cvt_pk_bf16_f32 v{vT}, v{vT}, v{vT}
    v_lshlrev_b32 v{vT}, 16, v{vT}
    v_mul_f32 v{PR}, v{vPar}, v{vT}
    v_mul_f32 v{PR+1}, v{vPar+1}, v{vT}
    v_mul_f32 v{vPar+2}, v{vPar+2}, v{vT}
    v_mul_f32 v{vPar+3}, v{vPar+3}, v{vT}
    v_mul_f32 v{PR}, {LOG2E:#x}, v{PR}
    v_mul_f32 v{PR+1}, 0.15915494, v{PR+1}
    v_rndne_f32 v{vT}, v{PR+1}
    v_sub_f32 v{PR+1}, v{PR+1}, v{vT}
    """)
    cmul(PR + 2, vPar + 4, vPar + 2)
    for i, l in enumerate((128, 256)):
        a(f"v_mul_f32 v{TM+4*i}, {fl(l)}, v{PR}\nv_mul_f32 v{TM+4*i+1}, {fl(l)}, v{PR+1}")
    for i in range(2): a(f"v_fract_f32 v{TM+4*i+1}, v{TM+4*i+1}\nv_exp_f32 v{TM+4*i}, v{TM+4*i}")
    for i in range(2): a(f"v_cos_f32 v{TM+4*i+2}, v{TM+4*i+1}\nv_sin_f32 v{TM+4*i+3}, v{TM+4*i+1}")
    a(f"ds_write_b128 v{vTab}, {vr(PR,4)}", "pw")
    a(f"""
    v_mul_f32 v{TM+2}, v{TM+2}, v{TM}
    v_mul_f32 v{TM+3}, v{TM+3}, v{TM}
    v_mul_f32 v{PR+6}, v{TM+6}, v{TM+4}
    v_mul_f32_e64 v{PR+7}, -v{TM+7}, v{TM+4}
    """)
    cmul(PR + 4, PR + 2, TM + 2)
    a(f"ds_write_b128 v{vTab}, {vr(PR+4,4)} offset:1024", "pw")
    def p_reads(s_):
        for j in range(4):
            for k in range(2):
                a(f"ds_read_b128 {vr(PB+32*(s_&1)+8*j+4*k,4)}, v{vPb} offset:{256*s_+16*j+1024*k}", f"pb{s_}")
    p_reads(0)
    for s_ in range(4):
        if s_ < 3: p_reads(s_ + 1)
        a.wait(lg=f"pb{s_}")
        if s_ == 3: a(f"s_load_dwordx2 {sr(sTag,2)}, s[8:9], 128")
        F = FR + 16 * (s_ & 1)
        for jp in range(2):
            js = (2 * jp, 2 * jp + 1)
            P = lambda j: PB + 32 * (s_ & 1) + 8 * j
            T = lambda j, w_: TM + 8 * (j & 1) + 4 * w_
            for j in js:
                for w_, o in enumerate((vOA, vOG)):
                    a(f"v_mul_f32 v{T(j,w_)}, v{P(j)}, v{o}\nv_mul_f32 v{T(j,w_)+1}, v{P(j)+1}, v{o}")
            for j in js:
                a(f"v_fract_f32 v{T(j,0)+1}, v{T(j,0)+1}")
                for w_ in range(2): a(f"v_exp_f32 v{T(j,w_)}, v{T(j,w_)}")
            for j in js:
                for w_ in range(2):
                    a(f"v_cos_f32 v{T(j,w_)+2}, v{T(j,w_)+1}\nv_sin_f32 v{T(j,w_)+3}, v{T(j,w_)+1}")
            for j in js:
                a(f"v_mul_f32 v{T(j,0)+2}, v{T(j,0)+2}, v{T(j,0)}\nv_mul_f32_e64 v{T(j,0)+3}, -v{T(j,0)+3}, v{T(j,0)}")
                a(f"v_mul_f32 v{T(j,1)+2}, v{T(j,1)+2}, v{T(j,1)}\nv_mul_f32 v{T(j,1)+3}, v{T(j,1)+3}, v{T(j,1)}")
            for j in js:
                a(f"v_cvt_pk_bf16_f32 v{F+j}, v{T(j,0)+2}, v{T(j,0)+3}")
                cmul(T(j, 0), T(j, 0) + 2, P(j) + 6)
                cmul(T(j, 1), T(j, 1) + 2, P(j) + 2)
                a(f"v_cvt_pk_bf16_f32 v{F+4+j}, v{T(j,0)}, v{T(j,0)+1}")
                cmul(T(j, 0) + 2, T(j, 1) + 2, P(j) + 4)
                a(f"v_cvt_pk_bf16_f32 v{F+8+j}, v{T(j,1)}, v{T(j,1)+1}")
                a(f"v_cvt_pk_bf16_f32 v{F+12+j}, v{T(j,0)+2}, v{T(j,0)+3}")
            if jp == 0 and s_ > 0: k_mfma(s_ - 1)
    k_mfma(3)
    sys.stderr.write(f"metronome left {a.metro} cost {a.cost}\n")
    while a.metro: a.tick()
    a.metro = None
    stamp()
    a(f"s_setprio {OPT.get('xprio', 0)}")
    for t in range(4): a(f"ds_write_b128 v{vXw}, {vr(KT+4*t,4)} offset:{256*t}")
    if NKB == 10: a("ds_write_b32 v58, v58 offset:16")
    a(f"s_waitcnt lgkmcnt(0)\ns_cmp_eq_u32 s{sTag}, 0\ns_cbranch_scc1 S_tagslow\nS_tagok:")
    stamp()
    if NKB < 10:
        a("s_barrier")
        pieces(min(PE, {6: 4, 7: 11}.get(NKB, 15)))
        if TP1 == NKB: a(f"s_add_u32 s44, s{sTp}, {176*1024}\nbuffer_load_dword v29, v{vTp}, {W2}, s44 offen")
    else:
        a("""
        S_xw:
        ds_read_b32 v28, v27 offset:16
        s_waitcnt lgkmcnt(0)
        v_readfirstlane_b32 s44, v28
        s_cmp_eq_u32 s44, 0
        s_cbranch_scc1 S_xw
        """)
    stamp()
    NREST = max(0, 10 - NKB - 2)
    a(f"s_cmp_lg_u32 s{sPar}, 0\ns_cbranch_scc1 S_par1")
    KP = 64
    PK = 88
    K = lambda i: KA + i
    cnt = [0]
    CBAR = [int(x) for x in OPT.get('cbar', '2,5,6,7').split(',')]
    def packs(run, k):
        for cp in range(4):
            for j in range(4): a(f"v_cvt_pk_bf16_f32 v{PK+16*run+4*cp+j}, v{k[cp+2*j]}, v{k[cp+2*j+1]}")
            if cnt[0] in CBAR[:NREST]: a("s_barrier")
            cnt[0] += 1
            a(f"ds_write_b128 v{vK}, {vr(PK+16*run+4*cp,4)} offset:{4160*cp+1024*run}")
    hist0 = list(a.hist)
    for q in range(3):
        a(f"ds_read_b128 {vr(KA+4*q,4)}, v{vXr_} offset:{1024*q}\nds_read_b128 {vr(KP+4*q,4)}, v{vXr_} offset:{TSZ+1024*q}")
    a(f"""
    v_mov_b32 v{vT4}, 0
    ds_write_b32 v{vZ}, v{vT4}
    s_waitcnt lgkmcnt(1)
    """)
    for j in range(12): a(f"v_add_f32 v{KA+j}, v{KA+j}, v{KP+j}")
    a(f"""
    v_cndmask_b32 v{K(1)}, v{K(1)}, v{K(0)}, s[56:57]
    v_cndmask_b32 v{K(3)}, v{K(3)}, v{K(4)}, s[56:57]
    v_cndmask_b32 v{K(5)}, v{K(5)}, v{K(4)}, s[56:57]
    v_cndmask_b32 v{K(7)}, v{K(7)}, v{K(8)}, s[56:57]
    v_mov_b32 v{K(12)}, v{K(8)}
    v_mov_b32 v{K(13)}, v{K(8)}
    s_mov_b64 exec, 1
    ds_write_b32 v{vK0}, v{K(0)}
    v_mov_b32 v{K(0)}, 0
    s_mov_b64 exec, -1
    v_mov_b32_dpp v{K(12)}, v{K(1)} wave_shl:1 row_mask:0xf bank_mask:0xf
    v_mov_b32_dpp v{K(13)}, v{K(2)} wave_shl:1 row_mask:0xf bank_mask:0xf
    """)
    packs(1, [K(9)] * 3 + [K(10)] * 3 + [K(11)] * 5)
    packs(0, [K(i) for i in range(9)] + [K(12), K(13)])
    a(f"""
    s_mov_b64 exec, 1
    ds_write_b32 v{vCb}, v{PK} offset:{2*4160+28}
    ds_write_b32 v{vCb}, v{PK+4} offset:{3*4160+28}
    s_mov_b64 exec, -1
    s_branch S_parj
    S_par1:
    """)
    a.hist = hist0; cnt[0] = 0
    a(f"ds_read_b128 {vr(KA+12,4)}, v{vXr_} offset:3072\nds_read_b128 {vr(KP,4)}, v{vXr_} offset:{TSZ+3072}\ns_waitcnt lgkmcnt(0)")
    for j in range(4): a(f"v_add_f32 v{KA+12+j}, v{KA+12+j}, v{KP+j}")
    a(f"v_cndmask_b32 v{K(0)}, v{K(12)}, v{K(13)}, s[58:59]\nv_cndmask_b32 v{K(1)}, v{K(14)}, v{K(15)}, s[58:59]")
    packs(0, [K(12)] * 4 + [K(0)] + [K(13)] * 6)
    packs(1, [K(14)] * 4 + [K(1)] + [K(15)] * 6)
    a("S_parj:")
    a.lg = []
    a(f"""
    s_lshl_b32 s{sT}, s{sD}, 16
    s_and_b32 s{sT2}, s{sD}, s{sMask}
    s_cmp_eq_u32 s{sE}, 0
    s_cselect_b32 s{sD}, s{sT}, s{sT2}
    s_lshl1_add_u32 s{sT}, s{sQ}, s{sE}
    s_mul_i32 s{sT}, s{sT}, {GC}
    s_add_u32 s{sT}, s{sT}, {Y2}
    s_add_u32 s{sT2}, s{sT}, 4096
    s_mov_b32 s{sCnt}, 0
    """)
    AS, BS, YA, OV, UU, KD = [64, 128], [96, 160], 192, 10, 2, 26
    for k in range(4): a(f"v_mov_b32 v{OV+4*k+2}, s{sTag}\nv_mov_b32 v{OV+4*k+3}, s{sTag+1}")
    stamp()
    CE = "ce" in OPT
    if not CE:
        a("s_barrier")
        while uq: u_loads(lambda t: a(t, "u"), [uq.pop(0)])
        pieces(24)
    assert not uq
    a.wait(vm="u")
    a("S_uchk:")
    a(f"v_cmp_ne_u64 vcc, {sr(sTag,2)}, {vr(vU+2,2)}")
    for k in range(1, 4): a(f"v_cmp_ne_u64 s[{42+2*k}:{43+2*k}], {sr(sTag,2)}, {vr(vU+4*k+2,2)}")
    for k in range(1, 4): a(f"s_or_b64 vcc, vcc, s[{42+2*k}:{43+2*k}]")
    a(f"s_cbranch_vccnz S_uslow\nS_uok:\ns_mov_b32 s{sCnt}, 0")
    stamp()
    for k in range(4): a(f"ds_write_b64 v{vUw}, {vr(vU+4*k,2)} offset:{256*k}")
    a(f"s_waitcnt vmcnt(0) lgkmcnt(0)\ns_setprio {OPT.get('cprio', 1)}\ns_barrier")
    a.vm = []
    a.lg = []
    if CE: pieces(int(OPT.get("npre", 8)))
    PG, CBI = int(OPT.get("pg", 3)), int(OPT.get("cbi", 90))
    stamp()
    def reads(rho):
        s_ = rho & 1; L = []
        for j in range(8):
            L.append((f"ds_read_b128 {vr(BS[s_]+4*j,4)}, v{vBa} offset:{512*j+64*(3-rho)}", f"f{rho}_{j}"))
            L.append((f"ds_read_b64_tr_b16 {vr(AS[s_]+4*j,2)}, v{vAa} offset:{64*(8*j+rho)+8}", f"f{rho}_{j}"))
            L.append((f"ds_read_b64_tr_b16 {vr(AS[s_]+4*j+2,2)}, v{vAa} offset:{64*(8*j+rho)}", f"f{rho}_{j}"))
        return L
    for t, tag in reads(0): a(t, tag)
    first = [True] * 8
    def cm(rho, p, q):
        a.wait(lg=f"f{rho}_{max(p,q)}")
        ct = p + q; s_ = rho & 1
        a(f"v_mfma_f32_16x16x32_bf16 {vr(YA+4*ct,4)}, {vr(AS[s_]+4*p,4)}, {vr(BS[s_]+4*q,4)}, {'0' if first[ct] else vr(YA+4*ct,4)}")
        first[ct] = False
    for rho in range(3):
        if rho == int(OPT.get("cp3", 1)): a("s_setprio 3")
        nxt = reads(rho + 1)
        for n, (p, q) in enumerate(sorted([(p, q) for p in range(8) for q in range(8) if p + q <= 7], key=lambda x: max(x))):
            cm(rho, p, q)
            if n >= 8 and nxt:
                t, tag = nxt.pop(0); a(t, tag)
            if CE:
                g = 36 * rho + n
                if g % PG == 0 and pn[0] < 24: pieces(pn[0] + 1)
                if g == CBI:
                    assert pn[0] == 24
                    a.wait(vm=0)
                    a("s_barrier")
        assert not nxt
    a(f"s_cmp_lg_u32 s{sPar}, 0\ns_cbranch_scc1 S_conv1")
    keep = (list(a.hist), list(a.lg), nstamp[0])
    ZB, PB_ = 64, 80
    for par, (KEEP, SEND) in enumerate((((0, 3, 4, 7), (1, 2, 5, 6)), ((1, 2, 5, 6), (0, 3, 4, 7)))):
        if par: a("S_conv1:")
        a.hist, a.lg, nstamp[0] = list(keep[0]), list(keep[1]), keep[2]
        side = [lambda: a(f"ds_read_b32 v{KD}, v{vK0}", "uu")]
        side += [lambda k=k, ct=ct: a(f"ds_read_b64 {vr(UU+2*k,2)}, v{vUa} offset:{480-256+512*ct}", "uu") for k, ct in enumerate(KEEP)]
        side += [None] * 5
        side += [lambda: (a.wait(lg="uu"), a(f"v_add_f32 v{KD}, s{sD}, v{KD}"))]
        side += [lambda j=j: a(f"v_lshlrev_b32 v{ZB+2*j}, 16, v{UU+j}\nv_and_b32 v{ZB+2*j+1}, s{sMask}, v{UU+j}") for j in range(8)]
        order = [(p, ct - p) for ct in SEND + KEEP for p in range(ct + 1)]
        ends = {}
        for n, (p, q) in enumerate(order): ends[p + q] = n
        wq = list(SEND)
        for n, (p, q) in enumerate(order):
            cm(3, p, q)
            if wq and n >= ends[wq[0]] + 5:
                ct = wq.pop(0); a(f"ds_write_b128 v{vTab}, {vr(YA+4*ct,4)} offset:{1024*SEND.index(ct)}", "sw")
                if not wq: a(f"ds_write_b32 v58, v58", "sw")
            elif side:
                t = side.pop(0)
                if t: t()
            if n == 31:
                assert not wq and not side
                a("ds_read_b32 v28, v27", "pr")
                for k in range(4): a(f"ds_read_b128 {vr(PB_+4*k,4)}, v{vPr} offset:{1024*k}", "pr")
        stamp()
        a.wait(lg=0)
        a(f"""
        v_cmp_eq_u32 vcc, 0, v28
        s_cbranch_vccz S_pok{par}
        S_pw{par}:
        ds_read_b32 v28, v27
        """)
        for k in range(4): a(f"ds_read_b128 {vr(PB_+4*k,4)}, v{vPr} offset:{1024*k}")
        a(f"""
        s_waitcnt lgkmcnt(0)
        v_cmp_eq_u32 vcc, 0, v28
        s_cbranch_vccnz S_pw{par}
        S_pok{par}:
        """)
        a.lg = []
        for j in range(16): a(f"v_fmac_f32 v{PB_+j}, v{KD}, v{ZB+j}")
        a("s_setprio 3")
        for k, ct in enumerate(KEEP):
            for j in range(4): a(f"v_add_f32 v{PB_+4*k+j}, v{PB_+4*k+j}, v{YA+4*ct+j}")
            for j in range(2): a(f"v_cvt_pk_bf16_f32 v{UU+2*k+j}, v{PB_+4*k+2*j}, v{PB_+4*k+2*j+1}")
            for j in range(2): a(f"ds_bpermute_b32 v{OV+4*k+j}, v{vBp}, v{UU+2*k+j}", f"bp{k}")
        for k, ct in enumerate(KEEP):
            a.wait(lg=f"bp{k}")
            a(f"buffer_store_dwordx4 {vr(OV+4*k,4)}, v{vL16}, {WS}, s{sT if ct < 4 else sT2} offen offset:{1024*(ct&3)} sc1")
        if par == 0: a("s_branch S_done")
    a("S_done:")
    stamp()
    if STAMPS:
        a("s_waitcnt vmcnt(0)"); stamp()
    if "wb" in OPT:
        a(f"s_lshr_b32 s{sT}, s2, 3\ns_or_b32 s{sT}, s{sT}, s{sW}\ns_cmp_lg_u32 s{sT}, 0\ns_cbranch_scc1 S_nowb\nbuffer_wbl2 sc1\nS_nowb:")
    stamp_flush(WS, f"s{sW}", vT)
    a("s_endpgm")
    tag_slow("S", sTag, 8, [192], vNon, sCnt)
    a.raw(f"""S_uslow:
{retry_mark(4)}  s_add_u32 s{sCnt}, s{sCnt}, 1
  s_cmp_ge_u32 s{sCnt}, {SPIN}
  s_cbranch_scc1 S_uok
  s_sleep 4""")
    u_loads(lambda t: a.raw("  " + t))
    a.raw("  s_waitcnt vmcnt(0)\n  s_branch S_uchk")

hdr = open("cdna_kernels/" + NAME + ".s.ref").read().split("\n")
top = [l for l in hdr if l.startswith(";") and "@launch" not in l][:16]
a.raw("\n".join(top))
a.raw("; @launch grid=(256,1,1) block=(512,1,1) lds=163840")
a.raw(f""".amdgcn_target "amdgcn-amd-amdhsa--gfx950"
.text
.globl {NAME}_kernel
.p2align 8
.type {NAME}_kernel,@function
{NAME}_kernel:""")
stamp()
NST[0] = 14
a(f"""
v_lshrrev_b32 v1, 6, v0
s_cmp_ge_u32 s2, 256
s_cbranch_scc1 L_exit
v_readfirstlane_b32 s32, v1
s_and_b32 s3, s2, 7
s_lshl_b32 s3, s3, 5
s_lshr_b32 s96, s2, 3
s_add_u32 s3, s3, s96
s_cmp_lt_u32 s32, 4
s_cbranch_scc1 L_gemm
""")
if "nocpf" not in OPT:
    a(f"""
    s_getpc_b64 s[94:95]
    s_lshl_b32 s96, s96, 10
    v_and_b32 v255, 7, v0
    v_lshl_add_u32 v255, v255, 7, s96
    v_min_u32 v255, L_exit-{NAME}_kernel-128, v255
    global_load_dword v254, v255, s[94:95]
    """)
EV[1] = False
ssm = ssm_role()
next(ssm)
EV[1] = True
a("L_gemm:")
a.hist = []; a.vm = []; a.lg = []
if STAMPS: nstamp[0] = 1
gemm_role()
a.raw(".p2align 6")
a("L_ssm:")
NST[0] = 16
EV[1] = False
for _ in ssm: pass
a("L_exit:\ns_endpgm")
a.raw(f""".section .rodata,"a"
.p2align 6
.amdhsa_kernel {NAME}_kernel
  .amdhsa_next_free_vgpr 256
  .amdhsa_next_free_sgpr 102
  .amdhsa_accum_offset 256
  .amdhsa_group_segment_fixed_size 0
  .amdhsa_kernarg_size 120
  .amdhsa_user_sgpr_count 2
  .amdhsa_user_sgpr_kernarg_segment_ptr 1
  .amdhsa_system_sgpr_workgroup_id_x 1
.end_amdhsa_kernel""")
sys.stdout.write(a.text())
sys.stderr.write(f"nops inserted: {a.nops}\n")
```

```python
import sys, struct
from asmlib import Asm, vr, sr

NAME = "parallel_sum__ssm_conv_s4__dense_activation_silu__prompt"
OPT = {x.split("=")[0][2:]: (x.split("=")[1] if "=" in x else "1") for x in sys.argv[1:] if x.startswith("--")}
OPT.setdefault("ol", "nt")
STAMPS = "stamps" in OPT
SPIN = int(OPT.get("spin", 4000))
PLF = OPT.get("plf", "sc1").replace("_", " ")
FSF = OPT.get("fsf", "sc1").replace("_", " ")
M1, M2 = OPT.get("m1", "81"), OPT.get("m2", "81")
LOCAL = M1 == "81" and M2 == "81" and "nolocal" not in OPT
HSF = "" if LOCAL else "sc1"

HROW = 88 * 1024
H_SIZE = 64 * HROW
ST = 0x580000
FH = 0x590000
GS = 18432
GC = 9216
XNP = 0x600000
XS = 9216
FX = 0x5A0000
FG = 0x5B0000
Y2 = 0xA80000
WS_SIZE = 0x1000000
STAMP_OFF = 0xF80000
LOG2E = 0x3fb8aa3b
fl = lambda x: "0x%08x" % struct.unpack("<I", struct.pack("<f", x))[0]

a = Asm()
SHARED = {}
nstamp = [0]
EV = [0, True]
NST = [16]
def stamp(force=False):
    if "padev" in OPT and EV[1]:
        if EV[0] == int(OPT["padev"]): a("s_memrealtime s[86:87]")
        EV[0] += 1
    if STAMPS and nstamp[0] < NST[0] and (force or ("cs" not in OPT and "g2" not in OPT and "ss" not in OPT) or nstamp[0] in (0, 13) or ("g2" in OPT and nstamp[0] >= 7)):
        i = nstamp[0]; nstamp[0] += 1
        a(f"s_memtime s[{60+2*i}:{61+2*i}]")
def stamp_flush(wsrd, wave_s, vt, row=0):
    if not STAMPS: return
    n = nstamp[0]
    a("s_memrealtime s[98:99]")
    a("s_waitcnt lgkmcnt(0)")
    a(f"s_lshl_b32 s96, s2, 2\ns_add_u32 s96, s96, {wave_s}\ns_lshl_b32 s96, s96, 7\ns_add_u32 s96, s96, {STAMP_OFF+row*512}")
    a("s_mov_b64 exec, 1")
    for i in range(n):
        a(f"v_mov_b32 v{vt}, s{60+2*i}")
        a(f"buffer_store_dword v{vt}, off, {wsrd}, s96 offset:{4*i}")
    a(f"v_mov_b32 v{vt}, s97\nbuffer_store_dword v{vt}, off, {wsrd}, s96 offset:116")
    a(f"v_mov_b32 v{vt}, s100\nbuffer_store_dword v{vt}, off, {wsrd}, s96 offset:120")
    a(f"v_mov_b32 v{vt}, s98\nbuffer_store_dword v{vt}, off, {wsrd}, s96 offset:124")
    nstamp[0] = 0
def retry_mark(bit):
    return f"  s_add_u32 s97, s97, {1 << bit}\n" if STAMPS else ""

def srd(base, size):
    a(f"s_mov_b32 s{base+2}, {size}\ns_mov_b32 s{base+3}, 0x20000")

def cmul(d, x, y):
    a(f"v_mul_f32 v{d}, v{x+1}, v{y+1}")
    a(f"v_mul_f32 v{d+1}, v{x+1}, v{y}")
    a(f"v_fma_f32 v{d}, v{x}, v{y}, -v{d}")
    a(f"v_fmac_f32 v{d+1}, v{x}, v{y+1}")

def tag_slow(pfx, sTag, dbg, offs, vt, sCnt):
    a.raw(f"{pfx}_tagslow:")
    if STAMPS: a.raw(retry_mark(0).rstrip("\n"))
    for o in offs:
        a.raw(f"  s_load_dwordx2 {sr(sTag,2)}, s[{dbg}:{dbg+1}], {o}\n  s_waitcnt lgkmcnt(0)\n  s_cmp_lg_u32 s{sTag}, 0\n  s_cbranch_scc1 {pfx}_tagok")
    a.raw(f"""  s_mov_b32 s{sCnt}, 0
{pfx}_tagloop:
  buffer_load_dwordx2 {vr(vt,2)}, off, s[{dbg}:{dbg+3}], 0 sc1
  s_add_u32 s{sCnt}, s{sCnt}, 1
  s_waitcnt vmcnt(0)
  v_readfirstlane_b32 s{sTag}, v{vt}
  v_readfirstlane_b32 s{sTag+1}, v{vt+1}
  s_nop 3
  s_cmp_lg_u32 s{sTag}, 0
  s_cbranch_scc1 {pfx}_tagok
  s_cmp_lt_u32 s{sCnt}, {SPIN}
  s_cbranch_scc1 {pfx}_tagloop
  s_branch {pfx}_tagok""")

def gemm_role():
    X, W1, WS, W2, OUT, DBG, HS = "s[4:7]", "s[8:11]", "s[12:15]", "s[16:19]", "s[20:23]", "s[24:27]", "s[28:31]"
    sP = 3
    sW, sRB, sM, sXB, sWB, sC, sTx, sT, sLA, sLB, sW2, sHS, sHL = range(32, 45)
    sT2, sT3, sL2e, sCnt, sO, sTag, sFl, sRT = 45, 46, 47, 48, 49, 50, 52, 53
    sB1, sMask, sCG, sXcc, sFar, sHS2, sIa = 54, 55, 56, 57, 58, 59, 101
    sY, sRet = sFl, sFar
    sMean, sNeg = 88, 92
    sXn, sSt, sCx = 89, 90, 96
    SROW, STG = 1056, 98304
    vL = 1
    vXo, vWo, vXr, vWr, vW2o, vW2r, vL16 = 2, 6, 9, 13, 17, 18, 22
    vT, vNon, vCs, vT2, vC2, vSa = 23, 24, 26, 29, 30, 31
    vSt, vNeg = 32, 36
    HALF, vSw, vSr, vIa, vT3 = 88, 92, 93, 94, 95
    ACC1, WF, CSA, XF, CSF = 40, 96, 144, 192, 168
    LX, LF, LG, vId = 224, 232, 248, 252
    ACC2, STASH, HB, HD = 32, 96, 192, 8
    LB0 = 49152
    FARAWAY = 0x40000000
    a(f"""
    s_load_dwordx2 s[4:5], s[0:1], 0
    s_load_dwordx2 s[8:9], s[0:1], 80
    s_load_dwordx2 s[24:25], s[0:1], 104
    s_load_dwordx2 s[12:13], s[0:1], 112
    s_load_dwordx2 s[16:17], s[0:1], 88
    s_load_dwordx2 s[20:21], s[0:1], 96
    v_and_b32 v{vL}, 63, v0
    s_lshr_b32 s{sRB}, s{sP}, 4
    s_and_b32 s{sM}, s{sP}, 15
    s_and_b32 s{sC}, s{sP}, 7
    s_mov_b32 s{sCx}, s{sC}
    v_lshlrev_b32 v{vL16}, 4, v{vL}
    s_lshl2_add_u32 s{sCnt}, s{sP}, s{sW}
    s_lshl_b32 s{sCnt}, s{sCnt}, 11
    s_setprio 2
    """)
    if STAMPS: a("s_memrealtime s[98:99]")
    srd(4, 2048 * 1024); srd(8, 512 * 2752)
    a(f"""
    v_lshrrev_b32 v{vT}, 3, v{vL}
    v_lshlrev_b32 v{vT}, 10, v{vT}
    v_lshrrev_b32 v{vT2}, 4, v{vL}
    v_xor_b32 v{vT2}, v{vT2}, v{vL}
    v_and_b32 v{vT2}, 7, v{vT2}
    v_lshl_add_u32 v{vXo}, v{vT2}, 4, v{vT}
    v_xor_b32 v{vXo+1}, 64, v{vXo}
    v_add_u32 v{vXo+2}, {2*7168}, v{vXo}
    v_add_u32 v{vXo+3}, {3*7168}, v{vXo+1}
    v_add_u32 v{vXo+1}, 7168, v{vXo+1}
    s_movk_i32 s{sT}, 5462
    s_movk_i32 s{sT2}, {2752-192}
    v_mul_u32_u24 v{vT}, s{sT}, v{vL}
    """)
    for j in range(3):
        if j: a(f"v_add_u32 v{vT}, {64*5462}, v{vT}")
        a(f"v_lshrrev_b32 v{vT2}, 16, v{vT}\nv_mad_u32_u24 v{vWo+j}, v{vT2}, s{sT2}, v{vL16}")
    a(f"""
    s_lshl2_add_u32 s{sXB}, s{sRB}, s{sW}
    s_lshl_b32 s{sXB}, s{sXB}, 15
    s_mul_i32 s{sWB}, s{sM}, 192
    s_mul_i32 s{sT}, s{sW}, {16*2752}
    s_add_u32 s{sWB}, s{sWB}, s{sT}
    s_lshr_b32 s{sO}, s{sXB}, 6
    s_cmp_eq_u32 s{sM}, 15             ; the 16th workgroup of a row block has no GEMM1 tile: its tile loads go out of range
    s_cselect_b32 s{sXB}, {FARAWAY}, s{sXB}
    s_cselect_b32 s{sWB}, {FARAWAY}, s{sWB}
    s_lshl_b32 s{sLA}, s{sW}, 12
    s_mul_i32 s{sLB}, s{sW}, 3072
    s_add_u32 s{sLB}, s{sLB}, {LB0}
    s_waitcnt lgkmcnt(0)
    """)
    if STAMPS: a("s_mov_b32 s100, s98\ns_mov_b32 s97, 0")
    stamp()

    def w_ops(c):
        ops = []
        for j in range(3):
            def f(j=j):
                if j == 0:
                    a(f"s_mul_i32 s{sT2}, s{sC}, {64*2752}\ns_add_u32 m0, s{sLB}, {(c&3)*12288}\ns_add_u32 s{sT2}, s{sT2}, s{sWB}")
                a(f"buffer_load_dwordx4 v{vWo+j}, {W1}, s{sT2} offen offset:{j*1024} {OPT.get('w1f', '')} lds", f"C{c}")
                if j == 0: a(f"s_add_u32 s{sC}, s{sC}, 1\ns_and_b32 s{sC}, s{sC}, 7")
            ops.append(f)
        return ops
    def x_ops(c):
        ops = []
        for pc in range(4):
            def f(pc=pc):
                if pc == 0:
                    a(f"s_lshl_b32 s{sTx}, s{sCx}, 7\ns_add_u32 m0, s{sLA}, {(c%3)*16384}\ns_add_u32 s{sTx}, s{sTx}, s{sXB}")
                a(f"buffer_load_dwordx4 v{vXo+pc}, {X}, s{sTx} offen offset:{pc*1024} lds", f"C{c}")
                if pc == 0: a(f"s_add_u32 s{sCx}, s{sCx}, 1\ns_and_b32 s{sCx}, s{sCx}, 7")
            ops.append(f)
        return ops
    DQ = []; QT = []; QK = []
    for c in range(8):
        first = (w_ops(c), x_ops(c)) if c < 2 else (x_ops(c), w_ops(c))
        for grp_ in first:
            isx = len(grp_) == 4
            lim = -1 if c < (3 if isx else 4) else (max(1, 4 * (c - 3)) if isx else 4 * (c - 3) + 2)
            DQ += [(lim, f) for f in grp_]
            QT += [f'C{c}'] * len(grp_)
            QK += [('x' if isx else 'w') + str(c)] * len(grp_)
    def issue(n, s_=-1):
        for _ in range(n):
            if DQ and DQ[0][0] <= s_: DQ.pop(0)[1]()
    for r in range(2):
        a(f"buffer_load_dwordx4 {vr(LX+4*r,4)}, v{vL16}, {X}, s{sCnt} offen offset:{1024*r}", "xrow")
    a(f"""
    s_getreg_b32 s{sXcc}, hwreg(HW_REG_XCC_ID, 0, 4)
    s_mov_b32 s{sB1}, 0x3f803f80
    s_mov_b32 s{sMask}, 0xffff0000
    s_mul_i32 s{sT3}, s{sW}, {2*SROW}
    s_add_u32 s{sT3}, s{sT3}, {STG}
    v_add_u32 v{vSw}, s{sT3}, v{vL16}
    v_bfe_u32 v{vT3}, v{vL}, 2, 2
    v_and_b32 v{vT}, 1, v{vL}
    v_lshl_add_u32 v{vT}, v{vT}, 2, v{vT3}
    v_mul_u32_u24 v{vT}, {SROW}, v{vT}
    v_and_b32 v{vT2}, 2, v{vL}
    v_lshl_add_u32 v{vT}, v{vT2}, 2, v{vT}
    v_lshrrev_b32 v{vT2}, 4, v{vL}
    v_lshl_add_u32 v{vT}, v{vT2}, 4, v{vT}
    s_lshl_b32 s{sT3}, s{sW}, 8
    s_add_u32 s{sT3}, s{sT3}, {STG}
    v_add_u32 v{vSr}, s{sT3}, v{vT}
    """)
    issue(7)
    a(f"""
    v_and_b32 v{vSa}, 31, v{vL}
    v_lshrrev_b32 v{vT2}, 5, v{vL}
    v_bfe_u32 v{vC2}, v{vL}, 1, 3
    v_xor_b32 v{vC2}, v{vC2}, v{vT2}
    v_lshl_add_u32 v{vC2}, v{vC2}, 4, s{sLA}
    v_lshl_add_u32 v{vC2}, v{vSa}, 7, v{vC2}
    v_bfe_u32 v{vT3}, v{vL}, 2, 2
    v_lshl_add_u32 v{vT}, v{vT2}, 3, v{vT3}
    v_mul_u32_u24 v{vT}, 192, v{vT}
    v_bfe_u32 v{vT2}, v{vL}, 4, 1
    v_lshl_add_u32 v{vT}, v{vT2}, 5, v{vT}
    v_and_b32 v{vT2}, 3, v{vL}
    v_lshl_add_u32 v{vT}, v{vT2}, 3, v{vT}
    v_add_u32 v{vT}, {LB0}, v{vT}
    """)
    for i in range(4):
        a(f"""
        s_add_u32 s{sT3}, s{sW}, {i}
        s_and_b32 s{sT3}, s{sT3}, 3
        s_lshl_b32 s{sCnt}, s{sT3}, 5
        s_mulk_i32 s{sT3}, 3072
        v_xor_b32 v{vXr+i}, s{sCnt}, v{vC2}
        v_add_u32 v{vWr+i}, s{sT3}, v{vT}
        """)
    issue(3)
    a(f"""
    v_lshrrev_b32 v{vT2}, 4, v{vL}
    """)
    srd(24, 256)
    srd(12, WS_SIZE)
    a(f"""
    v_lshrrev_b32 v{vT}, 2, v{vL}
    v_xor_b32 v{vT}, v{vT}, v{vT2}
    v_and_b32 v{vT}, 1, v{vT}
    v_add_u32 v{vT}, -1, v{vT}
    """)
    for k in range(4): a(f"v_and_b32 v{HALF+k}, s{sB1}, v{vT}")
    FILL = [u.strip() for u in f"""
    s_mov_b32 s18, {1376*1024}
    s_mov_b32 s19, 0x20000
    s_mov_b32 s22, {2048*1024}
    s_mov_b32 s23, 0x20000
    s_mov_b32 s28, s12
    s_mov_b32 s29, s13
    s_mov_b32 s30, {H_SIZE}
    s_mov_b32 s31, 0x20000
    s_mov_b32 s{sL2e}, {LOG2E:#x}
    v_lshlrev_b32 v{vSa}, 4, v{vSa}
    s_add_u32 s{sO}, s{sO}, {ST}
    v_and_b32 v{vIa}, 15, v{vL}
    v_lshlrev_b32 v{vIa}, 7, v{vIa}
    s_lshl_b32 s{sIa}, s{sRB}, 11
    s_add_u32 s{sIa}, s{sIa}, {ST}
    v_lshrrev_b32 v{vT}, 3, v{vL}
    v_lshlrev_b32 v{vT}, 10, v{vT}
    v_bfe_u32 v{vT2}, v{vL}, 4, 1
    v_lshlrev_b32 v{vT3}, 2, v{vT2}
    v_xor_b32 v{vT3}, v{vT3}, v{vL}
    v_and_b32 v{vT3}, 7, v{vT3}
    v_lshl_add_u32 v{vW2o}, v{vT3}, 4, v{vT}
    v_lshrrev_b32 v{vT}, 5, v{vL}
    v_bfe_u32 v{vT3}, v{vL}, 2, 2
    v_lshl_add_u32 v{vT}, v{vT}, 2, v{vT3}
    v_lshlrev_b32 v{vT}, 7, v{vT}
    v_lshl_add_u32 v{vT}, v{vT2}, 5, v{vT}
    v_bfe_u32 v{vT2}, v{vL}, 3, 1
    v_lshl_add_u32 v{vT}, v{vT2}, 6, v{vT}
    v_and_b32 v{vT2}, 3, v{vL}
    v_lshl_add_u32 v{vT}, v{vT2}, 3, v{vT}
    s_lshl_b32 s{sT3}, s{sW}, 5
    s_and_b32 s{sT3}, s{sT3}, 64
    v_xor_b32 v{vT}, s{sT3}, v{vT}
    v_xor_b32 v{vT2}, 64, v{vT}
    v_add_u32 v{vW2r}, s{sLA}, v{vT}
    v_add_u32 v{vW2r+1}, s{sLA}, v{vT2}
    v_add_u32 v{vW2r+2}, s{sLB}, v{vT}
    v_add_u32 v{vW2r+3}, s{sLB}, v{vT2}
    s_and_b32 s{sT3}, s{sP}, 1
    s_lshl1_add_u32 s{sRT}, s{sRB}, s{sT3}
    s_lshr_b32 s{sCG}, s{sM}, 1
    s_mul_i32 s{sW2}, s{sW}, {352*1024}
    s_lshl_b32 s{sT}, s{sCG}, 7
    s_add_u32 s{sW2}, s{sW2}, s{sT}
    s_mul_i32 s{sHL}, s{sRT}, {2*HROW}
    s_mul_i32 s{sT}, s{sW}, {22*1024}
    s_add_u32 s{sHL}, s{sHL}, s{sT}
    s_lshl_b32 s{sT3}, s{sW}, 8
    s_add_u32 s{sT3}, s{sT3}, {LB0}
    v_lshl_add_u32 v{vT2}, v{vL}, 2, s{sT3}
    v_lshl_add_u32 v{vT}, v{vL}, 2, s{sLB}
    s_lshl2_add_u32 s{sT3}, s{sRB}, s{sW}
    s_mul_i32 s{sT3}, s{sT3}, {HROW}
    s_mul_i32 s{sHS}, s{sM}, 6144
    s_add_u32 s{sHS}, s{sHS}, s{sT3}
    s_add_u32 s{sHS2}, s{sHS}, 4096
    s_cmp_ge_u32 s{sM}, 14 | s_cselect_b32 s{sHS2}, {H_SIZE}, s{sHS2}
    s_lshr_b32 s{sT3}, s{sW}, 1
    s_lshl1_add_u32 s{sT3}, s{sRB}, s{sT3}
    s_lshl4_add_u32 s{sT3}, s{sT3}, s{sM}
    s_and_b32 s{sFl}, s{sW}, 1
    s_lshl1_add_u32 s{sFl}, s{sT3}, s{sFl}
    s_lshl_b32 s{sFl}, s{sFl}, 3
    s_add_u32 s{sFl}, s{sFl}, {FH}
    s_cmp_eq_u32 s{sM}, 15 | s_cselect_b32 s{sHS}, {H_SIZE}, s{sHS} | s_cselect_b32 s{sFl}, {WS_SIZE}, s{sFl}
    """.strip().split("\n")]
    def fill_(n):
        for _ in range(n):
            if FILL: a(FILL.pop(0).replace(" | ", "\n"))

    fill_(int(OPT.get("nfill", 0)))
    keepq = [(q, t) for q, t, k in zip(DQ, QT[len(QT)-len(DQ):], QK[len(QK)-len(DQ):]) if k not in ("x1", "x2", "w2", "w3")]
    DQ[:] = [q for q, _ in keepq]; QT[:] = [t for _, t in keepq]
    a(f"s_add_u32 s{sC}, s{sC}, 2\ns_and_b32 s{sC}, s{sC}, 7\ns_add_u32 s{sCx}, s{sCx}, 2\ns_and_b32 s{sCx}, s{sCx}, 7")
    a.wait(vm="xrow")
    stamp()

    vC = CSA; S = [252, 253]; vN = 254; sR = sMean
    def dpp_reduce(fill):
        for ctl in ("row_shr:1 row_mask:0xf bank_mask:0xf bound_ctrl:0", "row_shr:2 row_mask:0xf bank_mask:0xf bound_ctrl:0",
                    "row_shr:4 row_mask:0xf bank_mask:0xf bound_ctrl:0", "row_shr:8 row_mask:0xf bank_mask:0xf bound_ctrl:0",
                    "row_bcast:15 row_mask:0xa bank_mask:0xf", "row_bcast:31 row_mask:0xc bank_mask:0xf"):
            for r in range(2):
                a(f"v_add_f32_dpp v{S[r]}, v{S[r]}, v{S[r]} {ctl}")
            for _ in range(3):
                if fill: a(fill.pop(0))
        while fill: a(fill.pop(0))
    for k in range(4):
        for r in range(2):
            a(f"v_dot2_f32_bf16 v{S[r]}, v{LX+4*r+k}, s{sB1}, {'0' if k == 0 else 'v%d' % S[r]}")
    unpack = lambda: [t for r in range(2) for k in range(4) for t in
                      (f"v_lshlrev_b32 v{LF+8*r+2*k}, 16, v{LX+4*r+k}", f"v_and_b32 v{LF+8*r+2*k+1}, s{sMask}, v{LX+4*r+k}")]
    fill = unpack()
    for _ in range(3): a(fill.pop(0))
    dpp_reduce(fill)
    for r in range(2): a(f"v_mul_f32 v{S[r]}, 0x3b000000, v{S[r]}")
    for r in range(2): a(f"v_cvt_pk_bf16_f32 v{vN+r}, -v{S[r]}, -v{S[r]}")
    for r in range(2): a(f"v_readlane_b32 s{sMean+2*r}, v{S[r]}, 63")
    for r in range(2): a(f"v_readlane_b32 s{sNeg+2*r}, v{vN+r}, 63")
    for k in range(4):
        for r in range(2):
            a(f"v_pk_add_f32 {vr(vC+8*r+2*k,2)}, {vr(LF+8*r+2*k,2)}, {sr(sMean+2*r,2)} op_sel_hi:[1,0] neg_lo:[0,1] neg_hi:[0,1]")
    for r in range(2): a(f"s_and_b32 s{sNeg+2*r}, s{sNeg+2*r}, s{sMask}")
    for r in range(2): a(f"s_or_b32 s{sNeg+2*r+1}, s{sNeg+2*r}, s{sXcc}")
    for r in range(2):
        a(f"v_pk_mul_f32 {vr(vC+8*r,2)}, {vr(vC+8*r,2)}, {vr(vC+8*r,2)}")
    for k in range(1, 4):
        for r in range(2):
            a(f"v_pk_fma_f32 {vr(vC+8*r,2)}, {vr(vC+8*r+2*k,2)}, {vr(vC+8*r+2*k,2)}, {vr(vC+8*r,2)}")
    for r in range(2): a(f"v_add_f32 v{S[r]}, v{vC+8*r}, v{vC+8*r+1}")
    fill = [f"v_pk_add_f32 {vr(LF+8*r+2*k,2)}, {vr(LF+8*r+2*k,2)}, {sr(sNeg+2*r,2)} op_sel_hi:[1,0]" for k in range(4) for r in range(2)]
    fill += [f"v_cvt_pk_bf16_f32 v{LX+4*r+k}, v{LF+8*r+2*k}, v{LF+8*r+2*k+1}" for k in range(4) for r in range(2)]
    dpp_reduce(fill)
    issue(int(OPT.get('n1', 0)))
    def rnd():
        for r in range(2): a(f"v_cvt_pk_bf16_f32 v{S[r]}, v{S[r]}, v{S[r]}")
        for r in range(2): a(f"v_lshlrev_b32 v{S[r]}, 16, v{S[r]}")
    for r in range(2): a(f"v_mul_f32 v{S[r]}, 0x3b000000, v{S[r]}")
    rnd()
    for r in range(2): a(f"v_add_f32 v{S[r]}, 0x3727c5ac, v{S[r]}")
    rnd()
    for r in range(2): a(f"v_sqrt_f32 v{S[r]}, v{S[r]}")
    rnd()
    for r in range(2): a(f"v_rcp_f32 v{S[r]}, v{S[r]}")
    for t in unpack(): a(t)
    for r in range(2): a(f"v_readlane_b32 s{sR+2*r}, v{S[r]}, 63")
    a(f"s_load_dwordx2 {sr(sTag,2)}, s[24:25], 0")
    for r in range(2):
        for k in range(4):
            a(f"v_pk_mul_f32 {vr(LF+8*r+2*k,2)}, {vr(LF+8*r+2*k,2)}, {sr(sR+2*r,2)} op_sel_hi:[1,0]")
        for k in range(4):
            a(f"v_cvt_pk_bf16_f32 v{LX+4*r+k}, v{LF+8*r+2*k}, v{LF+8*r+2*k+1}")
        a(f"ds_write_b128 v{vSw}, {vr(LX+4*r,4)} offset:{SROW*r}", "stg")
    a(f"""
    v_mov_b32 v{LG}, s{sNeg+1}
    v_mov_b32 v{LG+1}, s{sR}
    v_writelane_b32 v{LG}, s{sNeg+3}, 1
    v_writelane_b32 v{LG+1}, s{sR+2}, 1
    s_mul_i32 s{sXn}, s{sP}, {GS}
    s_lshl_b32 s{sT3}, s{sW}, 12
    s_add_u32 s{sXn}, s{sXn}, s{sT3}
    s_add_u32 s{sXn}, s{sXn}, {XNP}
    s_lshl2_add_u32 s{sSt}, s{sP}, s{sW}
    s_lshl_b32 s{sSt}, s{sSt}, 5
    s_add_u32 s{sSt}, s{sSt}, {ST}
    """)
    issue(int(OPT.get('n2', 7)))
    a.wait(lg=0)
    stamp()

    GROUPS = [("A", 2, 4), ("A", 0, 4), ("B", 1, 3), ("A", 1, 4), ("B", 0, 3), ("B", 2, 3), ("B", 3, 3)]
    LOC = []
    for rg, sl, n in GROUPS:
        for k in range(n):
            LOC.append((rg, sl * (16384 if rg == "A" else 12288) + k * 1024))
    PL2 = list(range(4, 24))
    ploc = lambda p: p if p < 24 else PL2[p - 24]
    SHARED['LOC'] = LOC
    pn = [0]
    def p_next():
        p = pn[0]; pn[0] += 1
        rg, off = LOC[ploc(p)]
        a(f"s_add_u32 m0, s{sLA if rg == 'A' else sLB}, {off}")
        a(f"s_add_u32 s{sT3}, s{sW2}, {8192*p}")
        a(f"buffer_load_dwordx4 v{vW2o}, {W2}, s{sT3} offen lds", f"P{p}")

    wb = lambda s_: WF + 12 * (s_ % 3)
    def tr_pair(s_, ft):
        c, i = divmod(s_, 4)
        for e in range(2):
            a(f"ds_read_b64_tr_b16 {vr(wb(s_)+4*ft+2*e,2)}, v{vWr+i} offset:{(c&3)*12288+e*768+ft*64}", f"wf{s_}")
    def rd_x(c, i):
        a(f"ds_read_b128 {vr(XF+16*(c&1)+4*i,4)}, v{vXr+i} offset:{(c%3)*16384}", f"xf{c}_{i}")
    def open_chunk(c):
        if "cs" in OPT and c in (3, 5): stamp(True)
        a.wait(vm=f"C{c}")
        if (c == 0 and "ss" not in OPT) or ("cs" in OPT and c in (3, 5)): stamp(True)
        a("s_barrier")
        if "cs" in OPT and c: stamp(True)

    open_chunk(0)
    rd_x(0, 0)
    for ft in range(3): tr_pair(0, ft)
    for i in range(1, 4): rd_x(0, i)
    for ft in range(3): tr_pair(1, ft)
    a(f"s_cmp_eq_u32 s{sTag}, 0\ns_cbranch_scc1 G_tagslow\nG_tagok:")
    for k in range(5): a(f"v_mov_b32 v{LF+4*k+2}, s{sTag}\nv_mov_b32 v{LF+4*k+3}, s{sTag+1}")
    XSL = {"a": [(0, 1), (0, 2), (1, 0), (1, 2), (2, 1)], "b": [(3, 0), (3, 1), (3, 2), (7, 0), (7, 1)], "c": [(1, 0), (1, 2), (3, 0), (3, 2), (5, 1)]}[OPT.get("xsl", "b")]
    GP = 'gp' in OPT
    PS = int(OPT.get('ps', 22)) if GP else 99
    def bg_op(c, i, ft):
        s_ = 4 * c + i
        if DQ: issue(1, s_)
        elif s_ >= PS and ft != 1:
            lim = 0 if s_ < 20 else 4 if s_ < 24 else 8 if s_ < 26 else 11 if s_ < 28 else 15 if s_ < 30 else 18 if s_ < 31 else 24
            if pn[0] < lim:
                assert not FILL
                p_next()
    def split(dst, src, tmp):
        return [f"v_cvt_pk_bf16_f32 v{tmp}, v{src}, v{src}", f"v_lshlrev_b32 v{tmp}, 16, v{tmp}",
                f"v_sub_f32 v{tmp}, v{src}, v{tmp}", f"v_cvt_pk_bf16_f32 v{dst}, v{src}, v{tmp}"]
    for c in range(8):
        a.comment(f"---- GEMM1 chunk {c}")
        for i in range(4):
            s_ = 4 * c + i
            if i == 2 and c < 7:
                issue(int(OPT.get('flush', 0)), s_ - 1)
                assert not any(t == f'C{c+1}' for t in QT[len(QT)-len(DQ):])
                open_chunk(c + 1)
            a.wait(lg=(f"xf{c}_{3 if s_ else 0}", f"wf{s_}"))
            if "ss" in OPT and int(OPT["ss"]) <= s_ < int(OPT["ss"]) + 12: stamp(True)
            if s_ == 28:
                assert "csw" not in a.lg
                a("s_barrier")
            if s_ == 31: a("s_barrier")
            for ft in range(3):
                cs = i == 0 or c >= 7
                if cs and s_ == 31:
                    a(f"v_mfma_f32_16x16x32_bf16 {vr(CSA+12+4*ft,4)}, {vr(HALF,4)}, {vr(wb(s_)+4*ft,4)}, {vr(CSA+12+4*ft,4)}")
            for ft in range(3):
                cc = "0" if s_ == 0 else vr(ACC1+16*ft, 16)
                a(f"v_mfma_f32_32x32x16_bf16 {vr(ACC1+16*ft,16)}, {vr(wb(s_)+4*ft,4)}, {vr(XF+16*(c&1)+4*i,4)}, {cc}")
                if i == 2 and c < 7:
                    if ft == 0: rd_x(c + 1, 0)
                    rd_x(c + 1, ft + 1)
                if s_ + 2 < 32: tr_pair(s_ + 2, ft)
                if (s_, ft) == (0, 0):
                    for k in range(4): a(f"ds_read_b64_tr_b16 {vr(LF+4*k,2)}, v{vSr} offset:{64*k}", "tr")
                if (s_, ft) in XSL:
                    a.wait(lg="tr")
                    k = XSL.index((s_, ft))
                    if k < 4: a(f"buffer_store_dwordx4 {vr(LF+4*k,4)}, v{vL16}, {WS}, s{sXn} offen offset:{1024*k} sc1", "xn")
                    else: a(f"s_mov_b64 exec, 3\nbuffer_store_dwordx4 {vr(LG,4)}, v{vL16}, {WS}, s{sSt} offen sc1\ns_mov_b64 exec, -1")
                else:
                    bg_op(c, i, ft)
                    if i == 3 or (i == 1 and ft): fill_(4)
                if (i == 0 or c >= 7) and s_ != 31:
                    d = CSA + 4 * ft + (12 if c >= 7 else 0)
                    a(f"v_mfma_f32_16x16x32_bf16 {vr(d,4)}, {vr(HALF,4)}, {vr(wb(s_)+4*ft,4)}, {'0' if s_ in (0, 28) else vr(d,4)}")
                if s_ == 25:
                    for t in split(vCs + ft, CSA + 4 * ft, CSA + 4 * ft + 1): a(t)
                if s_ == 25:
                    for k in range(2):
                        a(f"ds_write2st64_b32 v{vT2}, v{vCs+ft}, v{vCs+ft} offset0:{24*k+4*ft} offset1:{24*k+12+4*ft}", "csw")
                if s_ == 23:
                    for k in range(4): a(f"v_mov_b32 v{CSF+4*ft+k}, 0")
                if s_ == 28:
                    a("s_mov_b32 exec_hi, 0")
                    for k in range(2):
                        a(f"ds_read2st64_b32 {vr(CSF+4*ft+2*k,2)}, v{vT} offset0:{4*ft+2*k} offset1:{4*ft+2*k+1}", "csf")
                    a("s_mov_b32 exec_hi, -1")
                if s_ == 29 and ft == 2:
                    a.wait(vm="st", lg="csf")
                    a(f"""
                    s_mov_b32 s{sCnt}, 0
                    G_stchk:
                    v_cmp_ne_u64 vcc, {sr(sTag,2)}, {vr(vSt+2,2)}
                    v_cmp_ne_u64 s[88:89], {sr(sTag,2)}, {vr(vId+2,2)}
                    v_and_b32 v{vId+1}, 0xffff, v{vId}
                    s_or_b64 vcc, vcc, s[88:89]
                    s_cbranch_vccnz G_stslow
                    G_stok:
                    """)
                if s_ == 30 and ft == 0:
                    a(f"""
                    v_cmp_ne_u32 s[90:91], s{sXcc}, v{vId+1}
                    v_lshrrev_b32 v{vNeg+1}, 16, v{vSt}
                    v_bfi_b32 v{vNeg}, s{sMask}, v{vSt}, v{vNeg+1}
                    v_bfi_b32 v{vNeg+2}, s{sMask}, v{vSt}, v{vNeg+1}
                    """)
                if s_ == 30 and ft == 1:
                    a(f"""
                    v_bfi_b32 v{vNeg+3}, s{sMask}, v{vSt}, v{vNeg+1}
                    v_bfi_b32 v{vNeg+1}, s{sMask}, v{vSt}, v{vNeg+1}
                    v_mul_f32 v{vC2}, s{sL2e}, v{vSt+1}
                    s_or_b32 s{sFar}, s90, {1 if 'forcefar' in OPT else 's91'}
                    v_mov_b32 v{vNon}, s{sTag}
                    v_mov_b32 v{vNon+1}, s{sTag+1}
                    """)
                if s_ == 31:
                    sp = split(CSF + 4 * ft, CSA + 12 + 4 * ft, CSA + 13 + 4 * ft)
                    for t in sp[:3]: a(t)
                    a(f"s_mov_b32 exec_lo, 0\n{sp[3]}\ns_mov_b32 exec_lo, -1")
            if s_ == 23:
                assert not FILL
                a(f"buffer_load_dwordx4 {vr(vSt,4)}, v{vSa}, {WS}, s{sO} offen sc1", "st")
                a(f"buffer_load_dwordx4 {vr(vId,4)}, v{vIa}, {WS}, s{sIa} offen sc1", "st")
    assert not DQ
    stamp()
    for ft in range(3):
        a(f"v_mfma_f32_32x32x16_bf16 {vr(ACC1+16*ft,16)}, {vr(CSF+4*ft,4)}, {vr(vNeg,4)}, {vr(ACC1+16*ft,16)}")
    E1, OB = 208, 224
    def tr_w2(step, tag):
        base = STASH + 8 * (step % 12)
        for j in range(2):
            for e in range(2):
                rg, off = LOC[ploc(2 * step + e)]
                a(f"ds_read_b64_tr_b16 {vr(base+4*j+2*e,2)}, v{vW2r+(0 if rg=='A' else 2)+j} offset:{off}", tag)
    if not GP: pn[0] = 24
    for _ in range(3):
        if pn[0] < 24: p_next()
    GB = int(OPT.get("gb", 0))
    B9, B10 = int(OPT.get("b9", 1)), int(OPT.get("b10", 6))
    for ft in range(3):
        for j in range(2):
            A0 = ACC1 + 16 * ft + 8 * j
            T0 = E1 + 8 * j
            for k in range(8): a(f"v_mul_f32 v{A0+k}, v{vC2}, v{A0+k}")
            for k in range(8): a(f"v_exp_f32_e64 v{T0+k}, -v{A0+k}")
            if pn[0] < 24: p_next()
            for k in range(8): a(f"v_fma_f32 v{T0+k}, v{T0+k}, s{sL2e}, s{sL2e}")
            for k in range(8): a(f"v_rcp_f32 v{T0+k}, v{T0+k}")
            if pn[0] < 24: p_next()
            for k in range(8): a(f"v_mul_f32 v{A0+k}, v{A0+k}, v{T0+k}")
            for k in range(0, 8, 2): a(f"v_cvt_pk_bf16_f32 v{OB+8*ft+4*j+k//2}, v{A0+k}, v{A0+k+1}")
            a(f"buffer_store_dwordx4 {vr(OB+8*ft+4*j,4)}, v{vL16}, {HS}, s{sHS if ft < 2 else sHS2} offen offset:{1024*((2*ft+j)&3)} {OPT.get('hnt', 'nt') if str(2*ft+j) in OPT.get('hn', '012345') else ''}", "hs")
            if GP and 2 * ft + j == GB: a("s_barrier")
    stamp()
    vH, vF, vXg, vO, vY, vXl, vR, vP, vYl = 2, 4, 5, 6, 7, 8, 13, 10, 9
    a(f"""
    s_lshl_b32 s{sT}, s{sW}, 3
    s_lshr_b32 s{sT2}, 0x160e0600, s{sT}
    s_and_b32 s{sT2}, s{sT2}, 0xff
    s_lshr_b32 s{sT}, 0x1d150f07, s{sT}
    s_and_b32 s{sT}, s{sT}, 0xff
    v_max_u32 v{vF}, s{sT2}, v{vL}
    v_min_u32 v{vF}, s{sT}, v{vF}
    v_lshlrev_b32 v{vF}, 3, v{vF}
    s_and_b32 s{sT}, s{sW}, 1
    s_mul_i32 s{sT2}, s{sT}, {HROW}
    v_add_u32 v{vH}, s{sT2}, v{vL16}
    s_sub_u32 s{sT2}, {HROW}, s{sT2}
    v_add_u32 v{vH+1}, s{sT2}, v{vL16}
    s_mov_b32 s{sCnt}, 0
    s_lshr_b32 s{sXn}, s{sCG}, 2
    s_mul_i32 s{sXn}, s{sXn}, {HROW}
    s_and_b32 s{sT2}, s{sCG}, 3
    s_mulk_i32 s{sT2}, 5632
    s_add_u32 s{sXn}, s{sXn}, s{sT2}
    s_add_u32 s{sXn}, s{sXn}, s{sHL}
    s_movk_i32 s{sC}, 144
    v_min_u32 v{vSw}, 47, v{vL}
    v_lshlrev_b32 v{vSw}, 7, v{vSw}
    v_min_u32 v12, 43, v{vL}
    v_lshlrev_b32 v12, 7, v12
    """)
    a(f"s_cmp_lg_u32 s{sFar}, 0\ns_cbranch_scc1 G_far")
    a.wait(vm="hs")
    stamp()
    a(f"s_mov_b64 exec, 1\nbuffer_store_dwordx2 {vr(vNon,2)}, off, {WS}, s{sFl}\nG_pub:\ns_mov_b64 exec, -1")
    if "pt" in OPT:
        a(f"buffer_load_dword v{vT3}, v{vSw}, {HS}, s{sHS} offen {OPT['pt'].replace('1', '') if OPT['pt'] != 'sc1' else 'sc1'}", "pt")
    a(f"s_lshl_b32 s{sRet}, s{sRT}, 8\ns_add_u32 s{sRet}, s{sRet}, {FH}")
    if not GP: a("s_barrier")
    assert pn[0] == 24 and not any(str(t).startswith("P") for t in a.vm)
    PK_ = int(OPT.get("pk", 11))
    order = list(range(2, 12)) + [0, 1]
    for n_, k in enumerate(order):
        if n_ == PK_: a(f"buffer_load_dwordx2 {vr(vP,2)}, v{vF}, {WS}, s{sRet} offen sc1", "poll")
        tr_w2(k, f"S{k}")
    def p2():
        a.wait(lg=f"S{ploc(pn[0])//2}")
        p_next()
    for _ in range(int(OPT.get("np0", 12))): p2()
    stamp()
    a.wait(vm="poll")
    a(f"G_hchk:\nv_cmp_ne_u64 vcc, {sr(sTag,2)}, {vr(vP,2)}\ns_add_u32 s{sCnt}, s{sCnt}, 1\ns_cbranch_vccnz G_hslow\nG_hok:")
    stamp()
    if STAMPS: a(f"s_lshl_b32 s{sCnt}, s{sCnt}, 16\ns_add_u32 s97, s97, s{sCnt}")
    HS_ = [(i, 1) for i in range(12)] + [(i, j) for i in range(12, 22) for j in (1, 0)] + [(i, 0) for i in range(12)]
    HR, WR = int(OPT.get("hr", 10)), 232
    grp = [None]
    def h_load(n):
        i, j = HS_[n]
        if i // 4 != grp[0]:
            grp[0] = i // 4; a(f"s_add_u32 s{sTx}, s{sHL}, {4096*(i//4)}")
        a(f"buffer_load_dwordx4 {vr(HB+4*(n%HR),4)}, v{vH+j}, {HS}, s{sTx} offen offset:{1024*(i%4)} {OPT.get('hlf', 'sc1').replace('_', ' ')}", f"h{n}")
    HT = int(OPT.get("ht", 0))
    for n in range(HR - 1):
        if n == HT: a(f"buffer_load_dword v12, v12, {HS}, s{sXn} offen sc1", "ht")
        if n == int(OPT.get("hp", 0)):
            for _ in range(int(OPT.get("np1", 99))):
                if pn[0] < 44: p2()
        h_load(n)
    a(f"""
    s_lshl1_add_u32 s{sT2}, s{sRT}, s{sT}
    s_lshr_b32 s{sT}, s{sW}, 1
    s_lshl1_add_u32 s{sCnt}, s{sCG}, s{sT}    ; own 32-column block
    s_lshl_b32 s{sO}, s{sT2}, 15
    s_lshl_b32 s{sT}, s{sCnt}, 6
    s_add_u32 s{sO}, s{sO}, s{sT}
    s_mul_i32 s{sY}, s{sCnt}, {32*GC}
    s_lshl_b32 s{sT}, s{sT2}, 7
    s_add_u32 s{sY}, s{sY}, s{sT}
    s_add_u32 s{sY}, s{sY}, {Y2}
    v_and_b32 v{vT}, 31, v{vL}
    v_lshrrev_b32 v{vT2}, 5, v{vL}
    v_lshlrev_b32 v{vO}, 10, v{vT}
    v_lshl_add_u32 v{vO}, v{vT2}, 4, v{vO}
    v_lshl_add_u32 v{vXl}, v{vT}, 6, s{sLA}
    v_lshl_add_u32 v{vXl}, v{vT2}, 4, v{vXl}
    v_lshlrev_b32 v{vYl}, 3, v{vT2}
    v_sub_u32 v{vF}, v{vT}, v{vYl}
    v_bfe_u32 v{vT}, v{vL}, 2, 2
    v_add_u32 v{vYl}, v{vYl}, v{vT}
    v_lshl_add_u32 v{vYl}, v{vYl}, 7, s{sLA}
    v_bfe_u32 v{vT}, v{vL}, 4, 1
    v_lshl_add_u32 v{vYl}, v{vT}, 6, v{vYl}
    v_and_b32 v{vT}, 3, v{vL}
    v_lshl_add_u32 v{vYl}, v{vT}, 4, v{vYl}
    v_lshrrev_b32 v{vY}, 3, v{vL}
    v_mul_u32_u24 v{vY}, {GC}, v{vY}
    v_and_b32 v{vT}, 7, v{vL}
    v_lshl_add_u32 v{vY}, v{vT}, 4, v{vY}
    v_add_u32 v{vP}, s{sLA}, v{vL16}
    v_lshrrev_b32 v{vXg}, 2, v{vL}
    v_lshlrev_b32 v{vXg}, 10, v{vXg}
    v_and_b32 v{vT}, 3, v{vL}
    v_lshl_add_u32 v{vXg}, v{vT}, 4, v{vXg}
    v_add_u32 v{vR}, s{sLB}, v{vL16}
    """)
    for k in range(1, 4):
        a(f"s_xor_b32 s{sT}, s{sW}, {k}\ns_mulk_i32 s{sT}, 3072\ns_add_u32 s{sT}, s{sT}, {LB0}\nv_add_u32 v{vR+k}, s{sT}, v{vL16}")
    YO = 32768
    YT, YF, XFr, IDN = 232, 240, 248, 24
    XR = 24
    if "touch" in OPT:
        a(f"v_and_b32 v{vT}, 31, v{vL}\nv_mul_u32_u24 v{vT}, {GC}, v{vT}")
        a(f"buffer_load_dword v12, v{vT}, {WS}, s{sY} offen sc1", "yt")
    a(f"v_and_b32 v{vT}, 1, v{vF}\nv_lshlrev_b32 v{vT}, 4, v{vT}\nv_lshlrev_b32 v{vT}, v{vT}, v{vW2o}" if False else
      f"v_and_b32 v{vT}, 1, v{vF}\nv_lshlrev_b32 v{vT}, 4, v{vT}\nv_mov_b32 v11, 0x3f80\nv_lshlrev_b32 v11, v{vT}, v11\nv_ashrrev_i32 v{vF}, 1, v{vF}")
    for k in range(8):
        a(f"v_cmp_eq_u32 s[{88+2*(k&1)}:{89+2*(k&1)}], {8*(k>>2)+(k&3)}, v{vF}")
        if k: a(f"v_cndmask_b32 v{IDN+k-1}, 0, v11, s[{88+2*((k-1)&1)}:{89+2*((k-1)&1)}]")
    a(f"v_cndmask_b32 v{IDN+7}, 0, v11, s[90:91]")
    def y_loads(emit):
        emit(f"s_add_u32 m0, s{sLA}, {YO}")
        for k in range(4):
            emit(f"s_add_u32 s{sT2}, s{sY}, {8*k*GC-1024*k}")
            emit(f"buffer_load_dwordx4 v{vY}, {WS}, s{sT2} offen offset:{1024*k} sc1 lds")
    def y_reads(emit):
        for k in range(4): emit(f"ds_read_b64 {vr(YT+2*k,2)}, v{vP} offset:{YO+1024*k+8}")
        for k in range(4): emit(f"ds_read_b64_tr_b16 {vr(YF+2*k,2)}, v{vYl} offset:{YO+2048*(k>>1)+512*(k&1)}")
    wreg = lambda i: STASH + 8 * i if i < 12 else WR + 8 * (i % 3)
    def w_reads(i, half):
        j = half
        assert pn[0] > 2 * i + 1
        a.wait(vm=f"P{2*i+1}")
        for e in range(2):
            rg, off = LOC[ploc(2 * i + e)]
            a(f"ds_read_b64_tr_b16 {vr(wreg(i)+4*j+2*e,2)}, v{vW2r+(0 if rg=='A' else 2)+j} offset:{off}", f"r{i}")
    started = set()
    def mm(n, jd):
        i, j = HS_[n]; k = 2 * jd + j
        ac = ACC2 + 16 * k
        a(f"v_mfma_f32_32x32x16_bf16 {vr(ac,16)}, {vr(wreg(i)+4*jd,4)}, {vr(HB+4*(n%HR),4)}, {vr(ac,16) if k in started else '0'}")
        started.add(k)
    roff = lambda k, q: (((k - 1) * 4 + q) // 3) * 12288 + (((k - 1) * 4 + q) % 3) * 1024
    def r_write(k, q): a(f"ds_write_b128 v{vR}, {vr(ACC2+16*k+4*q,4)} offset:{roff(k,q)}", "rw")
    def r_read(k, q): a(f"ds_read_b128 {vr(ACC2+16*k+4*q,4)}, v{vR+k} offset:{roff(k,q)}", f"rr{k}")
    YS = int(OPT.get("ys", 34))
    NT = 4
    PR_ = int(OPT.get('pr', 1))
    side = []
    def run_side(c):
        for _ in range(c):
            if side:
                t = side.pop(0)
                if callable(t): t()
                else: a(t)
    for n in range(44 - NT):
        i, j = HS_[n]
        a.wait(vm=f"h{n}", lg=(f"r{i}" if i >= 12 else 0 if n == 0 else None))
        if n == 0 or ("g2" in OPT and n in (12, 24, 32, 36)): stamp(True)
        for jd in range(2):
            mm(n, jd)
            if jd == 0 and n + HR - 1 < 44: h_load(n + HR - 1)
            if pn[0] < 44 and (jd == 1 or n % PR_ == 0): p2()
            if n in (8, 10): w_reads(12 + (n - 8) // 2, jd)
            if 12 <= n < 28 and j == 1: w_reads(i + 2, jd)
            if jd == 1 and n == YS:
                y_loads(lambda t: a(t, "yr"))
            if jd == 1 and n == 30:
                a(f"s_mov_b32 m0, s{sLA}\ns_add_u32 s{sT2}, s{sO}, {16384-1024}")
                a(f"buffer_load_dwordx4 v{vXg}, {X}, s{sO} offen lds", "xr")
                a(f"buffer_load_dwordx4 v{vXg}, {X}, s{sT2} offen offset:1024 lds", "xr")
            g = 2 * (n - 32) + jd
            if 0 <= g < 12 and g % 3 != 2:
                w = g - g // 3; r_write(1 if w < 4 else 3, w & 3)
            if g == 8 and "ol" in OPT:
                a(f"""
                s_and_b32 s{sT}, s{sW}, 1
                s_mulk_i32 s{sT}, {32*144}
                s_lshr_b32 s{sT2}, s{sW}, 1
                s_lshl_b32 s{sT2}, s{sT2}, 6
                s_add_u32 s{sT}, s{sT}, s{sT2}
                s_add_u32 s{sT}, s{sT}, 98304
                v_and_b32 v{vT}, 31, v{vL}
                v_mul_u32_u24 v{vH}, 144, v{vT}
                """)
            if g == 11 and "ol" in OPT:
                a(f"""
                v_lshrrev_b32 v{vT}, 5, v{vL}
                v_lshl_add_u32 v{vH}, v{vT}, 4, v{vH}
                v_add_u32 v{vH}, s{sT}, v{vH}
                v_lshrrev_b32 v{vT}, 3, v{vL}
                v_and_b32 v{vF}, 7, v{vL}
                v_lshlrev_b32 v{vF}, 4, v{vF}
                v_mad_u32_u24 v{vH+1}, v{vT}, s{sC}, v{vF}
                v_lshl_add_u32 v{vF}, v{vT}, 10, v{vF}
                """)
            if g == 13 and "ol" in OPT:
                a(f"""
                s_mul_i32 s{sT}, s{sW}, {16*144}
                s_add_u32 s{sT}, s{sT}, 98304
                v_add_u32 v{vH+1}, s{sT}, v{vH+1}
                s_lshl2_add_u32 s{sXB}, s{sRT}, s{sW}
                s_lshl_b32 s{sXB}, s{sXB}, 14
                s_lshl_b32 s{sT}, s{sCG}, 7
                s_add_u32 s{sXB}, s{sXB}, s{sT}
                s_add_u32 s{sXB+1}, s{sXB}, 8192
                """)
            if g == 12:
                a.wait(vm="xr")
                for q in range(2): a(f"ds_read_b128 {vr(XFr+4*q,4)}, v{vXl} offset:{32*q}", "xl")
            if g == 14:
                a.wait(lg="rw")
                a("s_barrier")
                for q in range(4): r_read(1, q)
            if g == 15:
                for q in range(4): r_read(3, q)
    if "ts" in OPT: stamp()
    side = [lambda: a.wait(lg="rr3")] + [f"v_add_f32 v{ACC2+16+q}, v{ACC2+16+q}, v{ACC2+48+q}" for q in range(16)]
    for q, n in enumerate(range(44 - NT, 44)):
        a.wait(vm=f"h{n}")
        mm(n, 1)
        if q >= 2: run_side(6)
    tail = [lambda n=n: mm(n, 0) for n in range(44 - NT, 44)]
    for src in (XFr, YF):
        for q in range(2):
            tail.append(lambda src=src, q=q: a(f"v_mfma_f32_32x32x16_bf16 {vr(ACC2,16)}, {vr(IDN+4*q,4)}, {vr(src+4*q,4)}, {vr(ACC2,16)}"))
    for q, t in enumerate(tail):
        t()
        if q == 0: run_side(99)
        if 1 <= q <= 4: r_write(2, q - 1)
        if q == 4:
            a.wait(vm="yr")
            y_reads(lambda t: a(t, "yl"))
        if q == 5:
            a.wait(lg="rw")
            a("s_barrier")
            for q2 in range(4): r_read(2, q2)
            a.wait(lg="yl")
            a(f"s_mov_b32 s{sCnt}, 0\nG_ychk:")
            a(f"v_cmp_ne_u64 vcc, {sr(sTag,2)}, {vr(YT,2)}")
            for q2 in range(1, 4): a(f"v_cmp_ne_u64 s[{86+2*q2}:{87+2*q2}], {sr(sTag,2)}, {vr(YT+2*q2,2)}")
            for q2 in range(1, 4): a(f"s_or_b64 vcc, vcc, s[{86+2*q2}:{87+2*q2}]")
            a("s_cbranch_vccnz G_yslow\nG_yok:")
    stamp()
    a.wait(lg="rr2")
    for q in range(16): a(f"v_add_f32 v{ACC2+16+q}, v{ACC2+16+q}, v{ACC2+32+q}")
    for k in range(8):
        a(f"v_pk_add_f32 {vr(ACC2+2*k,2)}, {vr(ACC2+2*k,2)}, {vr(ACC2+16+2*k,2)}")
    for k in range(8):
        a(f"v_cvt_pk_bf16_f32 v{XR+k}, v{ACC2+2*k}, v{ACC2+2*k+1}")
    if "ol" not in OPT:
        for q in range(2):
            a(f"v_permlane32_swap_b32 v{XR+4*q}, v{XR+4*q+2}\nv_permlane32_swap_b32 v{XR+4*q+1}, v{XR+4*q+3}")
            a(f"buffer_store_dwordx4 {vr(XR+4*q,4)}, v{vO}, {OUT}, s{sO} offen offset:{32*q} {OPT.get('osf', '').replace('_', ' ')}")
    else:
        for q in range(2):
            a(f"v_permlane32_swap_b32 v{XR+4*q}, v{XR+4*q+2}\nv_permlane32_swap_b32 v{XR+4*q+1}, v{XR+4*q+3}")
            a(f"ds_write_b128 v{vH}, {vr(XR+4*q,4)} offset:{32*q}")
        a("s_waitcnt lgkmcnt(0)\ns_barrier")
        for q in range(2): a(f"ds_read_b128 {vr(ACC2+4*q,4)}, v{vH+1} offset:{8*144*q}", f"o{q}")
        for q in range(2):
            a.wait(lg=f"o{q}")
            a(f"buffer_store_dwordx4 {vr(ACC2+4*q,4)}, v{vF}, {OUT}, s{sXB+q} offen {OPT['ol'].replace('_', ' ').replace('1', '') if OPT['ol'] != 'sc1' else 'sc1'}")
    stamp()
    if STAMPS:
        a("s_waitcnt vmcnt(0)"); stamp()
    if "padev" in OPT:
        a(f"G_pad2:\ns_memrealtime s[98:99]\ns_waitcnt lgkmcnt(0)\ns_sub_u32 s96, s98, s86\ns_cmp_lt_u32 s96, 3000\ns_cbranch_scc1 G_pad2")
    if "padto" in OPT:
        a(f"G_pad:\ns_memrealtime s[98:99]\ns_waitcnt lgkmcnt(0)\ns_sub_u32 s96, s98, s{sTag}\ns_cmp_lt_u32 s96, {OPT['padto']}\ns_cbranch_scc1 G_pad")
    if "dbg" in OPT:
        n = nstamp[0]
        a(f"s_memrealtime s[98:99]\ns_waitcnt lgkmcnt(0)\ns_lshl2_add_u32 s96, s2, s{sW}\ns_cmp_lg_u32 s96, {4*int(OPT['dbg'])}\ns_cbranch_scc1 G_nodbg\ns_mov_b64 exec, 1")
        for i in range(1, n):
            a(f"s_sub_u32 s96, s{60+2*i}, s60\nv_mov_b32 v{vT}, s96\nbuffer_store_dword v{vT}, off, {DBG}, 0 offset:{4+4*i}")
        a(f"s_sub_u32 s96, s98, s{sTag}\nv_mov_b32 v{vT}, s96\nbuffer_store_dword v{vT}, off, {DBG}, 0 offset:60")
        a("G_nodbg:")
    stamp_flush(WS, f"s{sW}", vT, 256)
    a("s_endpgm")
    tag_slow("G", sTag, 24, [64, 192], vNon, sCnt)
    a.raw(f"""G_stslow:
{retry_mark(4)}  s_add_u32 s{sCnt}, s{sCnt}, 1
  s_cmp_ge_u32 s{sCnt}, {SPIN}
  s_cbranch_scc1 G_stok
  buffer_load_dwordx4 {vr(vSt,4)}, v{vSa}, {WS}, s{sO} offen sc1
  buffer_load_dwordx4 {vr(vId,4)}, v{vIa}, {WS}, s{sIa} offen sc1
  s_waitcnt vmcnt(0)
  s_branch G_stchk
G_hslow:
  s_cmp_ge_u32 s{sCnt}, {SPIN}
  s_cbranch_scc1 G_hok
  buffer_load_dwordx2 {vr(vP,2)}, v{vF}, {WS}, s{sRet} offen sc1
  s_waitcnt vmcnt(0)
  s_branch G_hchk
G_yslow:
{retry_mark(8)}  s_add_u32 s{sCnt}, s{sCnt}, 1
  s_cmp_ge_u32 s{sCnt}, {1 if "nossm" in OPT else SPIN}
  s_cbranch_scc1 G_yok""")
    y_loads(lambda t: a.raw("  " + t))
    a.raw("  s_waitcnt vmcnt(0)")
    y_reads(lambda t: a.raw("  " + t))
    a.raw("  s_waitcnt lgkmcnt(0)\n  s_branch G_ychk")
    a.hist = []
    a("G_far:\ns_waitcnt vmcnt(0)")
    for k in range(6):
        a(f"buffer_store_dwordx4 {vr(OB+4*k,4)}, v{vL16}, {HS}, s{sHS if k < 4 else sHS2} offen offset:{1024*(k&3)} sc1")
    a(f"s_waitcnt vmcnt(0)\ns_mov_b64 exec, 1\nbuffer_store_dwordx2 {vr(vNon,2)}, off, {WS}, s{sFl} sc1\ns_branch G_pub")
    a.vm = []; a.lg = []

def ssm_role():
    DBG, WS = "s[8:11]", "s[12:15]"
    sQ, sW, sE, sPar, sT, sT2, sCnt, sB1, sMask = 3, 32, 5, 6, 7, 34, 35, 40, 41
    sLdt, sD, sTag, sU, sXcc = 42, 43, 36, 38, 4
    sMean, sNeg = 44, 48
    vL, LX, LF, vC, LG = 1, 2, 10, 30, 26
    vPar = 44
    vT, vT2, vT3, vT4 = 54, 55, 56, 57
    vNon, vL16, vTab = 52, 60, 61
    SB = 98304
    CB0, UB0, USZ, K0A, FLG, TAB, TSZ, SROW = SB, SB + 33280, 4576, SB + 42432, SB + 42448, SB + 49152, 4096, 1056
    a.hist = []; a.vm = []; a.lg = []
    a(f"""
    s_load_dwordx16 s[16:31], s[0:1], 0
    s_load_dwordx2 s[8:9], s[0:1], 104
    s_load_dwordx2 s[52:53], s[0:1], 64
    s_load_dwordx2 s[92:93], s[0:1], 88
    s_load_dwordx2 s[88:89], s[0:1], 80
    s_load_dwordx2 s[12:13], s[0:1], 112
    s_memrealtime {sr(sTag,2)}
    s_setprio 3
    s_sub_u32 s{sW}, s{sW}, 4
    v_and_b32 v{vL}, 63, v0
    v_and_b32 v{vT}, 255, v0
    s_lshl_b32 s{sT}, s{sQ}, 9
    v_lshl_add_u32 v{vT3}, v{vT}, 1, s{sT}
    s_lshl2_add_u32 s{sT2}, s{sQ}, s{sW}
    s_lshl_b32 s{sT2}, s{sT2}, 11
    v_lshlrev_b32 v{vL16}, 4, v{vL}
    v_lshl_add_u32 v{vT4}, v{vL}, 6, s{sT2}
    s_lshl_b32 s{sT}, s{sQ}, 2
    """)
    srd(8, 256)
    a("s_waitcnt lgkmcnt(0)")
    if STAMPS: a(f"s_mov_b32 s100, s{sTag}\ns_mov_b32 s97, 0")
    stamp()
    a(f"""
    s_or_b32 s{sTag}, s{sTag}, 1
    v_mov_b32 v{vNon}, s{sTag}
    v_mov_b32 v{vNon+1}, s{sTag+1}
    buffer_store_dwordx2 {vr(vNon,2)}, v{vT4}, {DBG}, 0 offen sc1
    """)
    for k in range(6):
        a(f"global_load_ushort v{vPar+k}, v{vT3}, s[{18+2*k}:{19+2*k}]", "par")
    a(f"s_load_dword s{sLdt}, s[30:31], s{sT}\ns_load_dword s{sD}, s[52:53], s{sT}\ns_setprio 0\ns_branch L_ssm")
    keep = (list(a.vm), nstamp[0])
    yield
    a.hist = []; a.lg = []; a.vm = keep[0]; nstamp[0] = keep[1]
    X, W1 = "s[16:19]", "s[88:91]"
    vXo, vWo = 2, 6
    sLA, sLB, sXB, sWB, sC, sCx, sTx, sTw = 20, 21, 22, 23, 24, 25, 26, 27
    srd(16, 2048 * 1024); srd(88, 512 * 2752)
    a(f"""
    v_lshrrev_b32 v{vT}, 3, v{vL}
    v_lshlrev_b32 v{vT}, 10, v{vT}
    v_lshrrev_b32 v{vT2}, 4, v{vL}
    v_xor_b32 v{vT2}, v{vT2}, v{vL}
    v_and_b32 v{vT2}, 7, v{vT2}
    v_lshl_add_u32 v{vXo}, v{vT2}, 4, v{vT}
    v_xor_b32 v{vXo+1}, 64, v{vXo}
    v_add_u32 v{vXo+2}, {2*7168}, v{vXo}
    v_add_u32 v{vXo+3}, {3*7168}, v{vXo+1}
    v_add_u32 v{vXo+1}, 7168, v{vXo+1}
    s_movk_i32 s{sTx}, 5462
    s_movk_i32 s{sTw}, {2752-192}
    v_mul_u32_u24 v{vT}, s{sTx}, v{vL}
    """)
    for j in range(3):
        if j: a(f"v_add_u32 v{vT}, {64*5462}, v{vT}")
        a(f"v_lshrrev_b32 v{vT2}, 16, v{vT}\nv_mad_u32_u24 v{vWo+j}, v{vT2}, s{sTw}, v{vL16}")
    a(f"""
    s_lshr_b32 s{sXB}, s{sQ}, 4
    s_lshl2_add_u32 s{sXB}, s{sXB}, s{sW}
    s_lshl_b32 s{sXB}, s{sXB}, 15
    s_and_b32 s{sC}, s{sQ}, 15
    s_mul_i32 s{sWB}, s{sC}, 192
    s_mul_i32 s{sTx}, s{sW}, {16*2752}
    s_add_u32 s{sWB}, s{sWB}, s{sTx}
    s_cmp_eq_u32 s{sC}, 15
    s_cselect_b32 s{sXB}, 0x40000000, s{sXB}
    s_cselect_b32 s{sWB}, 0x40000000, s{sWB}
    s_add_u32 s{sCx}, s{sQ}, 1
    s_and_b32 s{sCx}, s{sCx}, 7
    s_add_u32 s{sC}, s{sQ}, 2
    s_and_b32 s{sC}, s{sC}, 7
    s_lshl_b32 s{sLA}, s{sW}, 12
    s_mul_i32 s{sLB}, s{sW}, 3072
    s_add_u32 s{sLB}, s{sLB}, 49152
    """)
    def w_ops(c):
        ops = []
        for j in range(3):
            def f(j=j):
                if j == 0:
                    a(f"s_mul_i32 s{sTw}, s{sC}, {64*2752}\ns_add_u32 m0, s{sLB}, {(c&3)*12288}\ns_add_u32 s{sTw}, s{sTw}, s{sWB}")
                a(f"buffer_load_dwordx4 v{vWo+j}, {W1}, s{sTw} offen offset:{j*1024} lds", f"C{c}")
                if j == 0: a(f"s_add_u32 s{sC}, s{sC}, 1\ns_and_b32 s{sC}, s{sC}, 7")
            ops.append(f)
        return ops
    def x_ops(c):
        ops = []
        for pc in range(4):
            def f(pc=pc):
                if pc == 0:
                    a(f"s_lshl_b32 s{sTx}, s{sCx}, 7\ns_add_u32 m0, s{sLA}, {(c%3)*16384}\ns_add_u32 s{sTx}, s{sTx}, s{sXB}")
                a(f"buffer_load_dwordx4 v{vXo+pc}, {X}, s{sTx} offen offset:{pc*1024} lds", f"C{c}")
                if pc == 0: a(f"s_add_u32 s{sCx}, s{sCx}, 1\ns_and_b32 s{sCx}, s{sCx}, 7")
            ops.append(f)
        return ops
    DQ = x_ops(1) + w_ops(2) + x_ops(2) + w_ops(3)
    def dma(n=1):
        for _ in range(n):
            if DQ: DQ.pop(0)()
    dma(int(OPT.get("n0", 0)))
    srd(12, WS_SIZE)
    vOA, vOG, vPb = 50, 51, 59
    a(f"""
    s_lshr_b32 s{sE}, s{sW}, 1
    s_and_b32 s{sPar}, s{sW}, 1
    s_mov_b32 s{sMask}, 0xffff0000
    s_mul_i32 s{sT2}, s{sE}, {USZ}
    s_add_u32 s{sT2}, s{sT2}, {UB0}
    v_lshl_add_u32 v{vT}, v{vL}, 3, s{sT2}
    v_mov_b32 v{vT3}, 0
    v_mov_b32 v{vT4}, 0
    ds_write_b64 v{vT}, {vr(vT3,2)}
    s_lshl2_add_u32 s{sT2}, s{sW}, {FLG}
    v_mov_b32 v58, s{sT2}
    ds_write_b32 v58, v{vT3}
    ds_write_b32 v58, v{vT3} offset:16
    s_lshl_b32 s{sT2}, s{sW}, 12
    s_add_u32 s{sT2}, s{sT2}, {TAB}
    v_add_u32 v{vTab}, s{sT2}, v{vL16}
    v_lshrrev_b32 v{vT}, 4, v{vL}
    v_lshl_add_u32 v{vPb}, v{vT}, 6, s{sT2}
    v_and_b32 v{vT}, 15, v{vL}
    v_lshlrev_b32 v{vOG}, 3, v{vT}
    v_lshlrev_b32 v{vT2}, 2, v{vT}
    v_add_u32 v{vT2}, {512-36}, v{vT2}
    v_cmp_lt_u32 vcc, 8, v{vT}
    v_add_u32 v{vT3}, {1024-96}, v{vOG}
    v_add_u32 v{vT4}, {1536-112}, v{vOG}
    v_cndmask_b32 v{vOA}, v{vT}, v{vT2}, vcc
    v_cmp_lt_u32 vcc, 11, v{vT}
    v_cmp_lt_u32 s[56:57], 13, v{vT}
    v_cvt_f32_u32 v{vOG}, v{vOG}
    v_cndmask_b32 v{vOA}, v{vOA}, v{vT3}, vcc
    v_cndmask_b32 v{vOA}, v{vOA}, v{vT4}, s[56:57]
    v_cvt_f32_u32 v{vOA}, v{vOA}
    """)
    def k_mfma(s_):
        F = 152 + 16 * (s_ & 1)
        for hh in range(2):
            for gt in range(2):
                d = 200 + 8 * hh + 4 * gt
                a(f"v_mfma_f32_16x16x32_bf16 {vr(d,4)}, {vr(F+4*hh,4)}, {vr(F+8+4*gt,4)}, {'0' if s_ == 0 else vr(d,4)}")
    UG = int(OPT.get("ug", 7))
    SP = OPT.get("sprio", 0)
    vUg, vUw, vU, sG = 30, 31, 232, 54
    def u_addr():
        a(f"""
        v_lshrrev_b32 v{vT3}, 2, v{vL}
        v_bfe_u32 v{vT4}, v{vL}, 1, 1
        v_and_b32 v{vT2}, 1, v{vL}
        v_mul_u32_u24 v{vUg}, {GS}, v{vT3}
        v_lshl_add_u32 v{vUg}, v{vT4}, 6, v{vUg}
        v_lshl_add_u32 v{vUg}, v{vT2}, 4, v{vUg}
        v_mul_u32_u24 v{vUw}, {USZ}, v{vT2}
        v_lshl_add_u32 v{vUw}, v{vT3}, 4, v{vUw}
        v_lshl_add_u32 v{vUw}, v{vT4}, 3, v{vUw}
        s_lshl_b32 s{sT}, s{sW}, 10
        s_add_u32 s{sT}, s{sT}, {UB0+480}
        v_add_u32 v{vUw}, s{sT}, v{vUw}
        s_mul_i32 s{sG}, s{sW}, {64*GS}
        s_lshr_b32 s{sT}, s{sQ}, 1
        s_lshl_b32 s{sT}, s{sT}, 7
        s_add_u32 s{sG}, s{sG}, s{sT}
        s_and_b32 s{sT}, s{sQ}, 1
        s_lshl_b32 s{sT}, s{sT}, 5
        s_add_u32 s{sG}, s{sG}, s{sT}
        s_add_u32 s{sG}, s{sG}, {XNP}
        """)
    def u_loads(emit, ks=range(4)):
        emit("s_setprio 3")
        for k in ks:
            emit(f"s_add_u32 s{sG+1}, s{sG}, {k*16*GS}")
            emit(f"buffer_load_dwordx4 {vr(vU+4*k,4)}, v{vUg}, {WS}, s{sG+1} offen sc1 {OPT.get('uf', '')}")
        emit(f"s_setprio {SP}")
    W2 = "s[92:95]"
    vW2o, vTp, sW2, sTp = 62, 63, 28, 29
    vXw, vXr_, vK, vZ, vAa, vBa, vUa, vBp, vPr, vK0, vCb = 32, 33, 34, 35, 36, 37, 38, 39, 40, 41, 42
    def late_addr():
        u_addr()
        srd(92, 1376 * 1024)
        a(f"""
        v_lshrrev_b32 v{vT}, 3, v{vL}
        v_lshlrev_b32 v{vT}, 10, v{vT}
        v_bfe_u32 v{vT2}, v{vL}, 4, 1
        v_lshlrev_b32 v{vT3}, 2, v{vT2}
        v_xor_b32 v{vT3}, v{vT3}, v{vL}
        v_and_b32 v{vT3}, 7, v{vT3}
        v_lshl_add_u32 v{vW2o}, v{vT3}, 4, v{vT}
        v_min_u32 v{vTp}, 47, v{vL}
        v_lshlrev_b32 v{vTp}, 7, v{vTp}
        s_mul_i32 s{sW2}, s{sW}, {352*1024}
        s_and_b32 s{sTp}, s{sQ}, 31
        s_mul_i32 s30, s{sTp}, 5120
        s_mulk_i32 s{sTp}, 6144
        s_add_u32 s{sTp}, s{sTp}, s{sW2}
        s_add_u32 s30, s30, s{sW2}
        s_add_u32 s30, s30, {192*1024}
        s_bfe_u32 s{sT}, s{sQ}, 0x30001
        s_lshl_b32 s{sT}, s{sT}, 7
        s_add_u32 s{sW2}, s{sW2}, s{sT}
        """)
        a(f"""
        v_lshrrev_b32 v{vT2}, 4, v{vL}
        v_and_b32 v{vT3}, 15, v{vL}
        s_lshl_b32 s{sT2}, s{sW}, 12
        s_add_u32 s{sT2}, s{sT2}, {TAB}
        v_lshl_add_u32 v{vXw}, v{vT3}, 4, s{sT2}
        v_lshl_add_u32 v{vXw}, v{vT2}, 10, v{vXw}
        s_lshl_b32 s{sT}, s{sE}, 13
        s_add_u32 s{sT}, s{sT}, {TAB}
        v_add_u32 v{vXr_}, s{sT}, v{vL16}
        s_xor_b32 s{sT2}, s{sT2}, 4096
        v_add_u32 v{vPr}, s{sT2}, v{vL16}
        v_xor_b32 v27, 4, v58
        s_mul_i32 s{sT}, s{sE}, {USZ}
        s_add_u32 s{sT}, s{sT}, {UB0+256}
        s_lshl_b32 s{sT2}, s{sPar}, 8
        v_lshl_add_u32 v{vBa}, v{vT3}, 5, s{sT}
        v_lshl_add_u32 v{vUa}, v{vT2}, 3, v{vBa}
        v_lshlrev_b32 v{vT3}, 4, v{vT2}
        v_add_u32 v{vBa}, v{vT3}, v{vBa}
        v_subrev_u32 v{vBa}, s{sT2}, v{vBa}
        v_bfe_u32 v{vT2}, v{vL}, 2, 2
        v_sub_u32 v{vT4}, 0, v{vT2}
        v_and_b32 v{vT4}, 3, v{vT4}
        v_mul_u32_u24 v{vAa}, 4160, v{vT4}
        v_min_u32 v{vT2}, 1, v{vT2}
        v_lshlrev_b32 v{vT2}, 3, v{vT2}
        v_sub_u32 v{vAa}, v{vAa}, v{vT2}
        v_sub_u32 v{vAa}, v{vAa}, v{vT3}
        v_and_b32 v{vT2}, 3, v{vL}
        v_lshl_add_u32 v{vAa}, v{vT2}, 3, v{vAa}
        s_mul_i32 s{sT}, s{sE}, 16640
        s_add_u32 s{sT}, s{sT}, {CB0}
        v_mov_b32 v{vCb}, s{sT}
        s_add_u32 s{sT2}, s{sT2}, s{sT}
        s_add_u32 s{sT2}, s{sT2}, {32+32-8}
        v_add_u32 v{vAa}, s{sT2}, v{vAa}
        v_lshrrev_b32 v{vT3}, 2, v{vL}
        v_lshl_add_u32 v{vBp}, v{vT2}, 4, v{vT3}
        v_lshlrev_b32 v{vBp}, 2, v{vBp}
        s_lshl_b32 s{sT2}, s{sPar}, 11
        s_add_u32 s{sT2}, s{sT2}, s{sT}
        s_add_u32 s{sT2}, s{sT2}, 32
        v_add_u32 v{vK}, s{sT2}, v{vL16}
        v_bfe_u32 v{vZ}, v{vL}, 3, 2
        v_mul_u32_u24 v{vZ}, 4160, v{vZ}
        v_and_b32 v{vT4}, 7, v{vL}
        v_lshl_add_u32 v{vZ}, v{vT4}, 2, v{vZ}
        v_add_u32 v{vZ}, s{sT}, v{vZ}
        s_lshl2_add_u32 s{sT}, s{sE}, {K0A}
        v_mov_b32 v{vK0}, s{sT}
        v_and_b32 v{vT4}, 1, v{vL}
        v_cmp_eq_u32 s[58:59], 1, v{vT4}
        v_cmp_le_u32 s[56:57], 32, v{vL}
        """)
    if "la0" in OPT: late_addr()
    def piece(p):
        rg, off = SHARED['LOC'][p]
        a(f"s_add_u32 m0, s{sLA if rg == 'A' else sLB}, {off}\ns_add_u32 s44, s{sW2}, {8192*p}")
        a(f"buffer_load_dwordx4 v{vW2o}, {W2}, s44 offen lds", "P")
    pn = [0]
    PE = int(OPT.get("pe", 0))
    def pieces(n):
        while pn[0] < n: piece(pn[0]); pn[0] += 1
    def touch(half):
        if half: a(f"v_min_u32 v{vTp}, {39*128}, v{vTp}")
        a(f"buffer_load_dword v29, v{vTp}, {W2}, s{sTp+half} offen", "tp")
    TP0, TP1 = int(OPT.get("tp0", 6)), int(OPT.get("tp1", 8))
    PR, PB, FR, KT, KA = 64, 72, 152, 200, 216
    a("s_waitcnt lgkmcnt(0)")
    a.lg = []
    assert int(OPT.get("nkb", 8)) in (7, 8)
    BP = int(OPT.get("bp", 360))
    NKB = int(OPT.get("nkb", 8))
    a.metro = ([int(OPT.get("bb0", 850)), int(OPT.get("b01", 350))] + [int(OPT.get("bq", 440))] * 3 + [BP] * 3 + [BP // 2, 3 * BP // 4])[:NKB]
    a.cost = 0
    uq = list(range(4))
    def on_bar(left):
        nb = NKB - 1 - left
        if nb in (0, 2, 5): stamp()
        if nb == 0: a(f"s_setprio {SP}")
        if nb == TP0: touch(0)
        if nb == TP1: touch(1)
        if nb >= 6: pieces(min(PE, {6: 4, 7: 11}.get(nb, 15)))
        if nb >= UG:
            for _ in range(int(OPT.get("un", 4))):
                if uq: u_loads(lambda t: a(t, "u"), [uq.pop(0)])
    a.on_bar = on_bar
    def pre_bar(left):
        nb = NKB - 1 - left
        if nb >= int(OPT.get("dfl", 1)): dma(99)
        a.wait(vm=f"C{nb}")
    a.pre_bar = pre_bar
    if 'la0' in OPT: a.on_gap = dma
    a.gap_len = int(OPT.get("dg", 32))
    a(f"""
    s_lshl_b32 s{sT}, s{sLdt}, 16
    s_and_b32 s{sT2}, s{sLdt}, s{sMask}
    s_cmp_eq_u32 s{sE}, 0
    s_cselect_b32 s{sT}, s{sT}, s{sT2}
    v_mov_b32 v{vT}, {LOG2E:#x}
    v_mul_f32 v{vT}, s{sT}, v{vT}
    v_exp_f32 v{vT}, v{vT}
    """)
    a.wait(vm="par")
    stamp()
    for k in range(6): a(f"v_lshlrev_b32 v{vPar+k}, 16, v{vPar+k}")
    TM = 136
    a(f"""
    v_cvt_pk_bf16_f32 v{vT}, v{vT}, v{vT}
    v_lshlrev_b32 v{vT}, 16, v{vT}
    v_mul_f32 v{PR}, v{vPar}, v{vT}
    v_mul_f32 v{PR+1}, v{vPar+1}, v{vT}
    v_mul_f32 v{vPar+2}, v{vPar+2}, v{vT}
    v_mul_f32 v{vPar+3}, v{vPar+3}, v{vT}
    v_mul_f32 v{PR}, {LOG2E:#x}, v{PR}
    v_mul_f32 v{PR+1}, 0.15915494, v{PR+1}
    v_rndne_f32 v{vT}, v{PR+1}
    v_sub_f32 v{PR+1}, v{PR+1}, v{vT}
    """)
    cmul(PR + 2, vPar + 4, vPar + 2)
    for i, l in enumerate((128, 256)):
        a(f"v_mul_f32 v{TM+4*i}, {fl(l)}, v{PR}\nv_mul_f32 v{TM+4*i+1}, {fl(l)}, v{PR+1}")
    for i in range(2): a(f"v_fract_f32 v{TM+4*i+1}, v{TM+4*i+1}\nv_exp_f32 v{TM+4*i}, v{TM+4*i}")
    for i in range(2): a(f"v_cos_f32 v{TM+4*i+2}, v{TM+4*i+1}\nv_sin_f32 v{TM+4*i+3}, v{TM+4*i+1}")
    a(f"ds_write_b128 v{vTab}, {vr(PR,4)}", "pw")
    a(f"""
    v_mul_f32 v{TM+2}, v{TM+2}, v{TM}
    v_mul_f32 v{TM+3}, v{TM+3}, v{TM}
    v_mul_f32 v{PR+6}, v{TM+6}, v{TM+4}
    v_mul_f32_e64 v{PR+7}, -v{TM+7}, v{TM+4}
    """)
    cmul(PR + 4, PR + 2, TM + 2)
    a(f"ds_write_b128 v{vTab}, {vr(PR+4,4)} offset:1024", "pw")
    def p_reads(s_):
        for j in range(4):
            for k in range(2):
                a(f"ds_read_b128 {vr(PB+32*(s_&1)+8*j+4*k,4)}, v{vPb} offset:{256*s_+16*j+1024*k}", f"pb{s_}")
    p_reads(0)
    a.on_gap = dma
    if "la0" not in OPT: late_addr()
    for s_ in range(4):
        if s_ < 3: p_reads(s_ + 1)
        a.wait(lg=f"pb{s_}")
        if s_ == 3: a(f"s_load_dwordx2 {sr(sTag,2)}, s[8:9], 128")
        F = FR + 16 * (s_ & 1)
        for jp in range(2):
            js = (2 * jp, 2 * jp + 1)
            P = lambda j: PB + 32 * (s_ & 1) + 8 * j
            T = lambda j, w_: TM + 8 * (j & 1) + 4 * w_
            for j in js:
                for w_, o in enumerate((vOA, vOG)):
                    a(f"v_mul_f32 v{T(j,w_)}, v{P(j)}, v{o}\nv_mul_f32 v{T(j,w_)+1}, v{P(j)+1}, v{o}")
            for j in js:
                a(f"v_fract_f32 v{T(j,0)+1}, v{T(j,0)+1}")
                for w_ in range(2): a(f"v_exp_f32 v{T(j,w_)}, v{T(j,w_)}")
            for j in js:
                for w_ in range(2):
                    a(f"v_cos_f32 v{T(j,w_)+2}, v{T(j,w_)+1}\nv_sin_f32 v{T(j,w_)+3}, v{T(j,w_)+1}")
            for j in js:
                a(f"v_mul_f32 v{T(j,0)+2}, v{T(j,0)+2}, v{T(j,0)}\nv_mul_f32_e64 v{T(j,0)+3}, -v{T(j,0)+3}, v{T(j,0)}")
                a(f"v_mul_f32 v{T(j,1)+2}, v{T(j,1)+2}, v{T(j,1)}\nv_mul_f32 v{T(j,1)+3}, v{T(j,1)+3}, v{T(j,1)}")
            for j in js:
                a(f"v_cvt_pk_bf16_f32 v{F+j}, v{T(j,0)+2}, v{T(j,0)+3}")
                cmul(T(j, 0), T(j, 0) + 2, P(j) + 6)
                cmul(T(j, 1), T(j, 1) + 2, P(j) + 2)
                a(f"v_cvt_pk_bf16_f32 v{F+4+j}, v{T(j,0)}, v{T(j,0)+1}")
                cmul(T(j, 0) + 2, T(j, 1) + 2, P(j) + 4)
                a(f"v_cvt_pk_bf16_f32 v{F+8+j}, v{T(j,1)}, v{T(j,1)+1}")
                a(f"v_cvt_pk_bf16_f32 v{F+12+j}, v{T(j,0)+2}, v{T(j,0)+3}")
            if jp == 0 and s_ > 0: k_mfma(s_ - 1)
    k_mfma(3)
    sys.stderr.write(f"metronome left {a.metro} cost {a.cost}\n")
    SW = int(OPT.get("sw", 0))
    while a.metro: a.tick()
    a.metro = None
    stamp()
    a(f"s_setprio {OPT.get('xprio', 0)}")
    for t in range(4): a(f"ds_write_b128 v{vXw}, {vr(KT+4*t,4)} offset:{256*t}")
    if NKB == 10: a("ds_write_b32 v58, v58 offset:16")
    a(f"s_waitcnt lgkmcnt(0)\ns_cmp_eq_u32 s{sTag}, 0\ns_cbranch_scc1 S_tagslow\nS_tagok:")
    stamp()
    if NKB < 10:
        a("s_barrier")
        pieces(min(PE, {6: 4, 7: 11}.get(NKB, 15)))
        if TP1 == NKB: touch(1)
        if SW:
            assert NKB == 8
            pieces(SW)
            a(f"s_barrier\ns_setprio {OPT.get('xp2', 3)}")
    else:
        a("""
        S_xw:
        ds_read_b32 v28, v27 offset:16
        s_waitcnt lgkmcnt(0)
        v_readfirstlane_b32 s44, v28
        s_cmp_eq_u32 s44, 0
        s_cbranch_scc1 S_xw
        """)
    stamp()
    NREST = max(0, 10 - NKB - 2)
    a(f"s_cmp_lg_u32 s{sPar}, 0\ns_cbranch_scc1 S_par1")
    KP = 64
    PK = 88
    K = lambda i: KA + i
    cnt = [0]
    CBAR = [int(x) for x in OPT.get('cbar', '2,5,6,7').split(',')]
    def packs(run, k):
        for cp in range(4):
            for j in range(4): a(f"v_cvt_pk_bf16_f32 v{PK+16*run+4*cp+j}, v{k[cp+2*j]}, v{k[cp+2*j+1]}")
            if cnt[0] in CBAR[:NREST]: a("s_barrier")
            cnt[0] += 1
            a(f"ds_write_b128 v{vK}, {vr(PK+16*run+4*cp,4)} offset:{4160*cp+1024*run}")
            if SW: pieces(min(24, pn[0] + int(OPT.get("swi", 2))))
    hist0 = list(a.hist); pn0 = pn[0]; vm0 = list(a.vm)
    for q in range(3):
        a(f"ds_read_b128 {vr(KA+4*q,4)}, v{vXr_} offset:{1024*q}\nds_read_b128 {vr(KP+4*q,4)}, v{vXr_} offset:{TSZ+1024*q}")
    a(f"""
    v_mov_b32 v{vT4}, 0
    ds_write_b32 v{vZ}, v{vT4}
    s_waitcnt lgkmcnt(1)
    """)
    for j in range(12): a(f"v_add_f32 v{KA+j}, v{KA+j}, v{KP+j}")
    a(f"""
    v_cndmask_b32 v{K(1)}, v{K(1)}, v{K(0)}, s[56:57]
    v_cndmask_b32 v{K(3)}, v{K(3)}, v{K(4)}, s[56:57]
    v_cndmask_b32 v{K(5)}, v{K(5)}, v{K(4)}, s[56:57]
    v_cndmask_b32 v{K(7)}, v{K(7)}, v{K(8)}, s[56:57]
    v_mov_b32 v{K(12)}, v{K(8)}
    v_mov_b32 v{K(13)}, v{K(8)}
    s_mov_b64 exec, 1
    ds_write_b32 v{vK0}, v{K(0)}
    v_mov_b32 v{K(0)}, 0
    s_mov_b64 exec, -1
    v_mov_b32_dpp v{K(12)}, v{K(1)} wave_shl:1 row_mask:0xf bank_mask:0xf
    v_mov_b32_dpp v{K(13)}, v{K(2)} wave_shl:1 row_mask:0xf bank_mask:0xf
    """)
    packs(1, [K(9)] * 3 + [K(10)] * 3 + [K(11)] * 5)
    packs(0, [K(i) for i in range(9)] + [K(12), K(13)])
    a(f"""
    s_mov_b64 exec, 1
    ds_write_b32 v{vCb}, v{PK} offset:{2*4160+28}
    ds_write_b32 v{vCb}, v{PK+4} offset:{3*4160+28}
    s_mov_b64 exec, -1
    s_branch S_parj
    S_par1:
    """)
    a.hist = hist0; cnt[0] = 0; pn[0] = pn0; a.vm = vm0
    a(f"ds_read_b128 {vr(KA+12,4)}, v{vXr_} offset:3072\nds_read_b128 {vr(KP,4)}, v{vXr_} offset:{TSZ+3072}\ns_waitcnt lgkmcnt(0)")
    for j in range(4): a(f"v_add_f32 v{KA+12+j}, v{KA+12+j}, v{KP+j}")
    a(f"v_cndmask_b32 v{K(0)}, v{K(12)}, v{K(13)}, s[58:59]\nv_cndmask_b32 v{K(1)}, v{K(14)}, v{K(15)}, s[58:59]")
    packs(0, [K(12)] * 4 + [K(0)] + [K(13)] * 6)
    packs(1, [K(14)] * 4 + [K(1)] + [K(15)] * 6)
    a("S_parj:")
    a.lg = []
    a(f"""
    s_lshl_b32 s{sT}, s{sD}, 16
    s_and_b32 s{sT2}, s{sD}, s{sMask}
    s_cmp_eq_u32 s{sE}, 0
    s_cselect_b32 s{sD}, s{sT}, s{sT2}
    s_lshl1_add_u32 s{sT}, s{sQ}, s{sE}
    s_mul_i32 s{sT}, s{sT}, {GC}
    s_add_u32 s{sT}, s{sT}, {Y2}
    s_add_u32 s{sT2}, s{sT}, 4096
    s_mov_b32 s{sCnt}, 0
    """)
    AS, BS, YA, OV, UU, KD = [64, 128], [96, 160], 192, 10, 2, 26
    for k in range(4): a(f"v_mov_b32 v{OV+4*k+2}, s{sTag}\nv_mov_b32 v{OV+4*k+3}, s{sTag+1}")
    stamp()
    CE = "ce" in OPT
    if not CE:
        if not SW: a("s_barrier")
        while uq: u_loads(lambda t: a(t, "u"), [uq.pop(0)])
        if TP1 == 9: touch(1)
        if TP1 > 9: pieces(TP1); touch(1)
        if "gp" not in OPT: pieces(24)
    assert not uq
    a.wait(vm="u")
    a("S_uchk:")
    a(f"v_cmp_ne_u64 vcc, {sr(sTag,2)}, {vr(vU+2,2)}")
    for k in range(1, 4): a(f"v_cmp_ne_u64 s[{42+2*k}:{43+2*k}], {sr(sTag,2)}, {vr(vU+4*k+2,2)}")
    for k in range(1, 4): a(f"s_or_b64 vcc, vcc, s[{42+2*k}:{43+2*k}]")
    a(f"s_cbranch_vccnz S_uslow\nS_uok:\ns_mov_b32 s{sCnt}, 0")
    stamp()
    for k in range(4): a(f"ds_write_b64 v{vUw}, {vr(vU+4*k,2)} offset:{256*k}")
    a.wait(vm="P", lg=0)
    a(f"s_setprio {OPT.get('cprio', 1)}\ns_barrier")
    a.lg = []
    if CE: pieces(int(OPT.get("npre", 8)))
    PG, CBI = int(OPT.get("pg", 3)), int(OPT.get("cbi", 90))
    stamp()
    def reads(rho):
        s_ = rho & 1; L = []
        for j in range(8):
            L.append((f"ds_read_b128 {vr(BS[s_]+4*j,4)}, v{vBa} offset:{512*j+64*(3-rho)}", f"f{rho}_{j}"))
            L.append((f"ds_read_b64_tr_b16 {vr(AS[s_]+4*j,2)}, v{vAa} offset:{64*(8*j+rho)+8}", f"f{rho}_{j}"))
            L.append((f"ds_read_b64_tr_b16 {vr(AS[s_]+4*j+2,2)}, v{vAa} offset:{64*(8*j+rho)}", f"f{rho}_{j}"))
        return L
    for t, tag in reads(0): a(t, tag)
    first = [True] * 8
    def cm(rho, p, q):
        a.wait(lg=f"f{rho}_{max(p,q)}")
        ct = p + q; s_ = rho & 1
        a(f"v_mfma_f32_16x16x32_bf16 {vr(YA+4*ct,4)}, {vr(AS[s_]+4*p,4)}, {vr(BS[s_]+4*q,4)}, {'0' if first[ct] else vr(YA+4*ct,4)}")
        first[ct] = False
    for rho in range(3):
        if rho == int(OPT.get("cp3", 0)): a("s_setprio 3")
        nxt = reads(rho + 1)
        for n, (p, q) in enumerate(sorted([(p, q) for p in range(8) for q in range(8) if p + q <= 7], key=lambda x: max(x))):
            cm(rho, p, q)
            if n >= (int(OPT.get('cn0', 8)) if rho == 0 else int(OPT.get('cn', 8))) and nxt:
                t, tag = nxt.pop(0); a(t, tag)
            if n == 35 and 'cw' in OPT: a.wait(lg=0)
            if CE:
                g = 36 * rho + n
                if g % PG == 0 and pn[0] < 24: pieces(pn[0] + 1)
                if g == CBI:
                    assert pn[0] == 24
                    a.wait(vm=0)
                    a("s_barrier")
        assert not nxt
    a(f"s_cmp_lg_u32 s{sPar}, 0\ns_cbranch_scc1 S_conv1")
    keep = (list(a.hist), list(a.lg), nstamp[0])
    ZB, PB_ = 64, 80
    for par, (KEEP, SEND) in enumerate((((0, 3, 4, 7), (1, 2, 5, 6)), ((1, 2, 5, 6), (0, 3, 4, 7)))):
        if par: a("S_conv1:")
        a.hist, a.lg, nstamp[0] = list(keep[0]), list(keep[1]), keep[2]
        side = [lambda: a(f"ds_read_b32 v{KD}, v{vK0}", "uu")]
        side += [lambda k=k, ct=ct: a(f"ds_read_b64 {vr(UU+2*k,2)}, v{vUa} offset:{480-256+512*ct}", "uu") for k, ct in enumerate(KEEP)]
        side += [None] * 5
        side += [lambda: (a.wait(lg="uu"), a(f"v_add_f32 v{KD}, s{sD}, v{KD}"))]
        side += [lambda j=j: a(f"v_lshlrev_b32 v{ZB+2*j}, 16, v{UU+j}\nv_and_b32 v{ZB+2*j+1}, s{sMask}, v{UU+j}") for j in range(8)]
        order = [(p, ct - p) for ct in SEND + KEEP for p in range(ct + 1)]
        ends = {}
        for n, (p, q) in enumerate(order): ends[p + q] = n
        wq = list(SEND)
        for n, (p, q) in enumerate(order):
            cm(3, p, q)
            if wq and n >= ends[wq[0]] + 5:
                ct = wq.pop(0); a(f"ds_write_b128 v{vTab}, {vr(YA+4*ct,4)} offset:{1024*SEND.index(ct)}", "sw")
                if not wq: a(f"ds_write_b32 v58, v58", "sw")
            elif side:
                t = side.pop(0)
                if t: t()
            if n == 31:
                assert not wq and not side
                a("ds_read_b32 v28, v27", "pr")
                for k in range(4): a(f"ds_read_b128 {vr(PB_+4*k,4)}, v{vPr} offset:{1024*k}", "pr")
        stamp()
        a.wait(lg=0)
        a(f"""
        v_cmp_eq_u32 vcc, 0, v28
        s_cbranch_vccz S_pok{par}
        S_pw{par}:
        ds_read_b32 v28, v27
        """)
        for k in range(4): a(f"ds_read_b128 {vr(PB_+4*k,4)}, v{vPr} offset:{1024*k}")
        a(f"""
        s_waitcnt lgkmcnt(0)
        v_cmp_eq_u32 vcc, 0, v28
        s_cbranch_vccnz S_pw{par}
        S_pok{par}:
        """)
        a.lg = []
        for j in range(16): a(f"v_fmac_f32 v{PB_+j}, v{KD}, v{ZB+j}")
        a("s_setprio 3")
        for k, ct in enumerate(KEEP):
            for j in range(4): a(f"v_add_f32 v{PB_+4*k+j}, v{PB_+4*k+j}, v{YA+4*ct+j}")
            for j in range(2): a(f"v_cvt_pk_bf16_f32 v{UU+2*k+j}, v{PB_+4*k+2*j}, v{PB_+4*k+2*j+1}")
            for j in range(2): a(f"ds_bpermute_b32 v{OV+4*k+j}, v{vBp}, v{UU+2*k+j}", f"bp{k}")
        for k, ct in enumerate(KEEP):
            a.wait(lg=f"bp{k}")
            a(f"buffer_store_dwordx4 {vr(OV+4*k,4)}, v{vL16}, {WS}, s{sT if ct < 4 else sT2} offen offset:{1024*(ct&3)} sc1")
        if par == 0: a("s_branch S_done")
    a("S_done:")
    stamp()
    if STAMPS:
        a("s_waitcnt vmcnt(0)"); stamp()
    if "wb" in OPT:
        a(f"s_lshr_b32 s{sT}, s2, 3\ns_or_b32 s{sT}, s{sT}, s{sW}\ns_cmp_lg_u32 s{sT}, 0\ns_cbranch_scc1 S_nowb\nbuffer_wbl2 sc1\nS_nowb:")
    stamp_flush(WS, f"s{sW}", vT)
    a("s_endpgm")
    tag_slow("S", sTag, 8, [192], vNon, sCnt)
    a.raw(f"""S_uslow:
{retry_mark(4)}  s_add_u32 s{sCnt}, s{sCnt}, 1
  s_cmp_ge_u32 s{sCnt}, {SPIN}
  s_cbranch_scc1 S_uok
  s_sleep 4""")
    u_loads(lambda t: a.raw("  " + t))
    a.raw("  s_waitcnt vmcnt(0)\n  s_branch S_uchk")

hdr = open("cdna_kernels/" + NAME + ".s.ref").read().split("\n")
top = [l for l in hdr if l.startswith(";") and "@launch" not in l][:16]
a.raw("\n".join(top))
a.raw("; @launch grid=(256,1,1) block=(512,1,1) lds=163840")
a.raw(""";
; out = x + conv(K, LN(x)) + LN(x)*Dskip + silu(LN(x) w1) w2, one launch, one 512-thread workgroup per CU.
; removed by a rank-1 MFMA with the column sums of w1, the scale in the SiLU epilogue), then a 64x64 tile of h*w2 with K
; (tap index rounded to bf16 as in the reference), its causal convolution as Toeplitz MFMAs, and part of the tile loads.
; (a clock value read once and published in d_debug); xn, the row statistics and the conv result are written through
; (sc1) and read with sc1.  h stays in the die's L2 only after the 16 workgroups of a row block have seen that they all
; report the same XCC id, otherwise it is written through as well.  Every wait on another workgroup is bounded.""")
a.raw(f""".amdgcn_target "amdgcn-amd-amdhsa--gfx950"
.text
.globl {NAME}_kernel
.p2align 8
.type {NAME}_kernel,@function
{NAME}_kernel:""")
stamp()
NST[0] = 14
a(f"""
v_lshrrev_b32 v1, 6, v0
s_cmp_ge_u32 s2, 256
s_cbranch_scc1 L_exit
v_readfirstlane_b32 s32, v1
s_and_b32 s3, s2, 7
s_lshl_b32 s3, s3, 5
s_lshr_b32 s96, s2, 3
s_add_u32 s3, s3, s96
s_cmp_lt_u32 s32, 4
s_cbranch_scc1 L_gemm
""")
if "nocpf" not in OPT:
    a(f"""
    s_getpc_b64 s[94:95]
    s_lshl_b32 s96, s96, 10
    v_and_b32 v255, 7, v0
    v_lshl_add_u32 v255, v255, 7, s96
    v_min_u32 v255, L_exit-{NAME}_kernel-128, v255
    global_load_dword v254, v255, s[94:95]
    """)
EV[1] = False
ssm = ssm_role()
next(ssm)
EV[1] = True
a("L_gemm:")
a.hist = []; a.vm = []; a.lg = []
if STAMPS: nstamp[0] = 1
gemm_role()
a.raw(".p2align 6")
a("L_ssm:")
NST[0] = 14
EV[1] = False
for _ in ssm: pass
a("L_exit:\ns_endpgm")
a.raw(f""".section .rodata,"a"
.p2align 6
.amdhsa_kernel {NAME}_kernel
  .amdhsa_next_free_vgpr 256
  .amdhsa_next_free_sgpr 102
  .amdhsa_accum_offset 256
  .amdhsa_group_segment_fixed_size 0
  .amdhsa_kernarg_size 120
  .amdhsa_user_sgpr_count 2
  .amdhsa_user_sgpr_kernarg_segment_ptr 1
  .amdhsa_system_sgpr_workgroup_id_x 1
.end_amdhsa_kernel""")
sys.stdout.write(a.text())
sys.stderr.write(f"nops inserted: {a.nops}\n")
```

```python
import sys, struct
from asmlib import Asm, vr, sr

NAME = "parallel_sum__ssm_conv_s4__dense_activation_silu__prompt"
OPT = {x.split("=")[0][2:]: (x.split("=")[1] if "=" in x else "1") for x in sys.argv[1:] if x.startswith("--")}
OPT.setdefault("ol", "nt")
STAMPS = "stamps" in OPT
SPIN = int(OPT.get("spin", 4000))
PLF = OPT.get("plf", "sc1").replace("_", " ")
FSF = OPT.get("fsf", "sc1").replace("_", " ")
M1, M2 = OPT.get("m1", "81"), OPT.get("m2", "81")
LOCAL = M1 == "81" and M2 == "81" and "nolocal" not in OPT
HSF = "" if LOCAL else "sc1"

HROW = 88 * 1024
H_SIZE = 64 * HROW
ST = 0x580000
FH = 0x590000
GS = 18432
GC = 9216
XNP = 0x600000
XS = 9216
FX = 0x5A0000
FG = 0x5B0000
Y2 = 0xA80000
WS_SIZE = 0x1000000
STAMP_OFF = 0xF80000
LOG2E = 0x3fb8aa3b
fl = lambda x: "0x%08x" % struct.unpack("<I", struct.pack("<f", x))[0]

a = Asm()
SHARED = {}
nstamp = [0]
EV = [0, True]
NST = [16]
def stamp(force=False):
    if "padev" in OPT and EV[1]:
        if EV[0] == int(OPT["padev"]): a("s_memrealtime s[86:87]")
        EV[0] += 1
    if STAMPS and nstamp[0] < NST[0] and (force or ("cs" not in OPT and "g2" not in OPT and "ss" not in OPT) or nstamp[0] in (0, 13) or ("g2" in OPT and nstamp[0] >= 7)):
        i = nstamp[0]; nstamp[0] += 1
        a(f"s_memtime s[{60+2*i}:{61+2*i}]")
def stamp_flush(wsrd, wave_s, vt, row=0):
    if not STAMPS: return
    n = nstamp[0]
    a("s_memrealtime s[98:99]")
    a("s_waitcnt lgkmcnt(0)")
    a(f"s_lshl_b32 s96, s2, 2\ns_add_u32 s96, s96, {wave_s}\ns_lshl_b32 s96, s96, 7\ns_add_u32 s96, s96, {STAMP_OFF+row*512}")
    a("s_mov_b64 exec, 1")
    for i in range(n):
        a(f"v_mov_b32 v{vt}, s{60+2*i}")
        a(f"buffer_store_dword v{vt}, off, {wsrd}, s96 offset:{4*i}")
    a(f"v_mov_b32 v{vt}, s97\nbuffer_store_dword v{vt}, off, {wsrd}, s96 offset:116")
    a(f"v_mov_b32 v{vt}, s100\nbuffer_store_dword v{vt}, off, {wsrd}, s96 offset:120")
    a(f"v_mov_b32 v{vt}, s98\nbuffer_store_dword v{vt}, off, {wsrd}, s96 offset:124")
    nstamp[0] = 0
def retry_mark(bit):
    return f"  s_add_u32 s97, s97, {1 << bit}\n" if STAMPS else ""

def srd(base, size):
    a(f"s_mov_b32 s{base+2}, {size}\ns_mov_b32 s{base+3}, 0x20000")

def cmul(d, x, y):
    a(f"v_mul_f32 v{d}, v{x+1}, v{y+1}")
    a(f"v_mul_f32 v{d+1}, v{x+1}, v{y}")
    a(f"v_fma_f32 v{d}, v{x}, v{y}, -v{d}")
    a(f"v_fmac_f32 v{d+1}, v{x}, v{y+1}")

def tag_slow(pfx, sTag, dbg, offs, vt, sCnt):
    a.raw(f"{pfx}_tagslow:")
    if STAMPS: a.raw(retry_mark(0).rstrip("\n"))
    for o in offs:
        a.raw(f"  s_load_dwordx2 {sr(sTag,2)}, s[{dbg}:{dbg+1}], {o}\n  s_waitcnt lgkmcnt(0)\n  s_cmp_lg_u32 s{sTag}, 0\n  s_cbranch_scc1 {pfx}_tagok")
    a.raw(f"""  s_mov_b32 s{sCnt}, 0
{pfx}_tagloop:
  buffer_load_dwordx2 {vr(vt,2)}, off, s[{dbg}:{dbg+3}], 0 sc1
  s_add_u32 s{sCnt}, s{sCnt}, 1
  s_waitcnt vmcnt(0)
  v_readfirstlane_b32 s{sTag}, v{vt}
  v_readfirstlane_b32 s{sTag+1}, v{vt+1}
  s_nop 3
  s_cmp_lg_u32 s{sTag}, 0
  s_cbranch_scc1 {pfx}_tagok
  s_cmp_lt_u32 s{sCnt}, {SPIN}
  s_cbranch_scc1 {pfx}_tagloop
  s_branch {pfx}_tagok""")

def gemm_role():
    X, W1, WS, W2, OUT, DBG, HS = "s[4:7]", "s[8:11]", "s[12:15]", "s[16:19]", "s[20:23]", "s[24:27]", "s[28:31]"
    sP = 3
    sW, sRB, sM, sXB, sWB, sC, sTx, sT, sLA, sLB, sW2, sHS, sHL = range(32, 45)
    sT2, sT3, sL2e, sCnt, sO, sTag, sFl, sRT = 45, 46, 47, 48, 49, 50, 52, 53
    sB1, sMask, sCG, sXcc, sFar, sHS2, sIa = 54, 55, 56, 57, 58, 59, 101
    sY, sRet = sFl, sFar
    sMean, sNeg = 88, 92
    sXn, sSt, sCx = 89, 90, 96
    SROW, STG = 1056, 98304
    vL = 1
    vXo, vWo, vXr, vWr, vW2o, vW2r, vL16 = 2, 6, 9, 13, 17, 18, 22
    vT, vNon, vCs, vT2, vC2, vSa = 23, 24, 26, 29, 30, 31
    vSt, vNeg = 32, 36
    HALF, vSw, vSr, vIa, vT3 = 88, 92, 93, 94, 95
    ACC1, WF, CSA, XF, CSF = 40, 96, 144, 192, 168
    LX, LF, LG, vId = 224, 232, 248, 252
    ACC2, STASH, HB, HD = 32, 96, 192, 8
    LB0 = 49152
    FARAWAY = 0x40000000
    a(f"""
    s_load_dwordx2 s[4:5], s[0:1], 0
    s_load_dwordx2 s[8:9], s[0:1], 80
    s_load_dwordx2 s[24:25], s[0:1], 104
    s_load_dwordx2 s[12:13], s[0:1], 112
    s_load_dwordx2 s[16:17], s[0:1], 88
    s_load_dwordx2 s[20:21], s[0:1], 96
    v_and_b32 v{vL}, 63, v0
    s_lshr_b32 s{sRB}, s{sP}, 4
    s_and_b32 s{sM}, s{sP}, 15
    s_and_b32 s{sC}, s{sP}, 7
    s_mov_b32 s{sCx}, s{sC}
    v_lshlrev_b32 v{vL16}, 4, v{vL}
    s_lshl2_add_u32 s{sCnt}, s{sP}, s{sW}
    s_lshl_b32 s{sCnt}, s{sCnt}, 11
    s_setprio 2
    """)
    if STAMPS: a("s_memrealtime s[98:99]")
    srd(4, 2048 * 1024); srd(8, 512 * 2752)
    a(f"""
    v_lshrrev_b32 v{vT}, 3, v{vL}
    v_lshlrev_b32 v{vT}, 10, v{vT}
    v_lshrrev_b32 v{vT2}, 4, v{vL}
    v_xor_b32 v{vT2}, v{vT2}, v{vL}
    v_and_b32 v{vT2}, 7, v{vT2}
    v_lshl_add_u32 v{vXo}, v{vT2}, 4, v{vT}
    v_xor_b32 v{vXo+1}, 64, v{vXo}
    v_add_u32 v{vXo+2}, {2*7168}, v{vXo}
    v_add_u32 v{vXo+3}, {3*7168}, v{vXo+1}
    v_add_u32 v{vXo+1}, 7168, v{vXo+1}
    s_movk_i32 s{sT}, 5462
    s_movk_i32 s{sT2}, {2752-192}
    v_mul_u32_u24 v{vT}, s{sT}, v{vL}
    """)
    for j in range(3):
        if j: a(f"v_add_u32 v{vT}, {64*5462}, v{vT}")
        a(f"v_lshrrev_b32 v{vT2}, 16, v{vT}\nv_mad_u32_u24 v{vWo+j}, v{vT2}, s{sT2}, v{vL16}")
    a(f"""
    s_lshl2_add_u32 s{sXB}, s{sRB}, s{sW}
    s_lshl_b32 s{sXB}, s{sXB}, 15
    s_mul_i32 s{sWB}, s{sM}, 192
    s_mul_i32 s{sT}, s{sW}, {16*2752}
    s_add_u32 s{sWB}, s{sWB}, s{sT}
    s_lshr_b32 s{sO}, s{sXB}, 6
    s_cmp_eq_u32 s{sM}, 15             ; the 16th workgroup of a row block has no GEMM1 tile: its tile loads go out of range
    s_cselect_b32 s{sXB}, {FARAWAY}, s{sXB}
    s_cselect_b32 s{sWB}, {FARAWAY}, s{sWB}
    s_lshl_b32 s{sLA}, s{sW}, 12
    s_mul_i32 s{sLB}, s{sW}, 3072
    s_add_u32 s{sLB}, s{sLB}, {LB0}
    s_waitcnt lgkmcnt(0)
    """)
    if STAMPS: a("s_mov_b32 s100, s98\ns_mov_b32 s97, 0")
    stamp()

    def w_ops(c):
        ops = []
        for j in range(3):
            def f(j=j):
                if j == 0:
                    a(f"s_mul_i32 s{sT2}, s{sC}, {64*2752}\ns_add_u32 m0, s{sLB}, {(c&3)*12288}\ns_add_u32 s{sT2}, s{sT2}, s{sWB}")
                a(f"buffer_load_dwordx4 v{vWo+j}, {W1}, s{sT2} offen offset:{j*1024} {OPT.get('w1f', '')} lds", f"C{c}")
                if j == 0: a(f"s_add_u32 s{sC}, s{sC}, 1\ns_and_b32 s{sC}, s{sC}, 7")
            ops.append(f)
        return ops
    def x_ops(c):
        ops = []
        for pc in range(4):
            def f(pc=pc):
                if pc == 0:
                    a(f"s_lshl_b32 s{sTx}, s{sCx}, 7\ns_add_u32 m0, s{sLA}, {(c%3)*16384}\ns_add_u32 s{sTx}, s{sTx}, s{sXB}")
                a(f"buffer_load_dwordx4 v{vXo+pc}, {X}, s{sTx} offen offset:{pc*1024} lds", f"C{c}")
                if pc == 0: a(f"s_add_u32 s{sCx}, s{sCx}, 1\ns_and_b32 s{sCx}, s{sCx}, 7")
            ops.append(f)
        return ops
    DQ = []; QT = []; QK = []
    for c in range(8):
        first = (w_ops(c), x_ops(c)) if c < 2 else (x_ops(c), w_ops(c))
        for grp_ in first:
            isx = len(grp_) == 4
            lim = -1 if c < (3 if isx else 4) else (max(1, 4 * (c - 3)) if isx else 4 * (c - 3) + 2)
            DQ += [(lim, f) for f in grp_]
            QT += [f'C{c}'] * len(grp_)
            QK += [('x' if isx else 'w') + str(c)] * len(grp_)
    def issue(n, s_=-1):
        for _ in range(n):
            if DQ and DQ[0][0] <= s_: DQ.pop(0)[1]()
    for r in range(2):
        a(f"buffer_load_dwordx4 {vr(LX+4*r,4)}, v{vL16}, {X}, s{sCnt} offen offset:{1024*r}", "xrow")
    a(f"""
    s_getreg_b32 s{sXcc}, hwreg(HW_REG_XCC_ID, 0, 4)
    s_mov_b32 s{sB1}, 0x3f803f80
    s_mov_b32 s{sMask}, 0xffff0000
    s_mul_i32 s{sT3}, s{sW}, {2*SROW}
    s_add_u32 s{sT3}, s{sT3}, {STG}
    v_add_u32 v{vSw}, s{sT3}, v{vL16}
    v_bfe_u32 v{vT3}, v{vL}, 2, 2
    v_and_b32 v{vT}, 1, v{vL}
    v_lshl_add_u32 v{vT}, v{vT}, 2, v{vT3}
    v_mul_u32_u24 v{vT}, {SROW}, v{vT}
    v_and_b32 v{vT2}, 2, v{vL}
    v_lshl_add_u32 v{vT}, v{vT2}, 2, v{vT}
    v_lshrrev_b32 v{vT2}, 4, v{vL}
    v_lshl_add_u32 v{vT}, v{vT2}, 4, v{vT}
    s_lshl_b32 s{sT3}, s{sW}, 8
    s_add_u32 s{sT3}, s{sT3}, {STG}
    v_add_u32 v{vSr}, s{sT3}, v{vT}
    """)
    issue(7)
    a(f"""
    v_and_b32 v{vSa}, 31, v{vL}
    v_lshrrev_b32 v{vT2}, 5, v{vL}
    v_bfe_u32 v{vC2}, v{vL}, 1, 3
    v_xor_b32 v{vC2}, v{vC2}, v{vT2}
    v_lshl_add_u32 v{vC2}, v{vC2}, 4, s{sLA}
    v_lshl_add_u32 v{vC2}, v{vSa}, 7, v{vC2}
    v_bfe_u32 v{vT3}, v{vL}, 2, 2
    v_lshl_add_u32 v{vT}, v{vT2}, 3, v{vT3}
    v_mul_u32_u24 v{vT}, 192, v{vT}
    v_bfe_u32 v{vT2}, v{vL}, 4, 1
    v_lshl_add_u32 v{vT}, v{vT2}, 5, v{vT}
    v_and_b32 v{vT2}, 3, v{vL}
    v_lshl_add_u32 v{vT}, v{vT2}, 3, v{vT}
    v_add_u32 v{vT}, {LB0}, v{vT}
    """)
    for i in range(4):
        a(f"""
        s_add_u32 s{sT3}, s{sW}, {i}
        s_and_b32 s{sT3}, s{sT3}, 3
        s_lshl_b32 s{sCnt}, s{sT3}, 5
        s_mulk_i32 s{sT3}, 3072
        v_xor_b32 v{vXr+i}, s{sCnt}, v{vC2}
        v_add_u32 v{vWr+i}, s{sT3}, v{vT}
        """)
    issue(3)
    a(f"""
    v_lshrrev_b32 v{vT2}, 4, v{vL}
    """)
    srd(24, 256)
    srd(12, WS_SIZE)
    a(f"""
    v_lshrrev_b32 v{vT}, 2, v{vL}
    v_xor_b32 v{vT}, v{vT}, v{vT2}
    v_and_b32 v{vT}, 1, v{vT}
    v_add_u32 v{vT}, -1, v{vT}
    """)
    for k in range(4): a(f"v_and_b32 v{HALF+k}, s{sB1}, v{vT}")
    FILL = [u.strip() for u in f"""
    s_mov_b32 s18, {1376*1024}
    s_mov_b32 s19, 0x20000
    s_mov_b32 s22, {2048*1024}
    s_mov_b32 s23, 0x20000
    s_mov_b32 s28, s12
    s_mov_b32 s29, s13
    s_mov_b32 s30, {H_SIZE}
    s_mov_b32 s31, 0x20000
    s_mov_b32 s{sL2e}, {LOG2E:#x}
    v_lshlrev_b32 v{vSa}, 4, v{vSa}
    s_add_u32 s{sO}, s{sO}, {ST}
    v_and_b32 v{vIa}, 15, v{vL}
    v_lshlrev_b32 v{vIa}, 7, v{vIa}
    s_lshl_b32 s{sIa}, s{sRB}, 11
    s_add_u32 s{sIa}, s{sIa}, {ST}
    v_lshrrev_b32 v{vT}, 3, v{vL}
    v_lshlrev_b32 v{vT}, 10, v{vT}
    v_bfe_u32 v{vT2}, v{vL}, 4, 1
    v_lshlrev_b32 v{vT3}, 2, v{vT2}
    v_xor_b32 v{vT3}, v{vT3}, v{vL}
    v_and_b32 v{vT3}, 7, v{vT3}
    v_lshl_add_u32 v{vW2o}, v{vT3}, 4, v{vT}
    v_lshrrev_b32 v{vT}, 5, v{vL}
    v_bfe_u32 v{vT3}, v{vL}, 2, 2
    v_lshl_add_u32 v{vT}, v{vT}, 2, v{vT3}
    v_lshlrev_b32 v{vT}, 7, v{vT}
    v_lshl_add_u32 v{vT}, v{vT2}, 5, v{vT}
    v_bfe_u32 v{vT2}, v{vL}, 3, 1
    v_lshl_add_u32 v{vT}, v{vT2}, 6, v{vT}
    v_and_b32 v{vT2}, 3, v{vL}
    v_lshl_add_u32 v{vT}, v{vT2}, 3, v{vT}
    s_lshl_b32 s{sT3}, s{sW}, 5
    s_and_b32 s{sT3}, s{sT3}, 64
    v_xor_b32 v{vT}, s{sT3}, v{vT}
    v_xor_b32 v{vT2}, 64, v{vT}
    v_add_u32 v{vW2r}, s{sLA}, v{vT}
    v_add_u32 v{vW2r+1}, s{sLA}, v{vT2}
    v_add_u32 v{vW2r+2}, s{sLB}, v{vT}
    v_add_u32 v{vW2r+3}, s{sLB}, v{vT2}
    s_and_b32 s{sT3}, s{sP}, 1
    s_lshl1_add_u32 s{sRT}, s{sRB}, s{sT3}
    s_lshr_b32 s{sCG}, s{sM}, 1
    s_mul_i32 s{sW2}, s{sW}, {352*1024}
    s_lshl_b32 s{sT}, s{sCG}, 7
    s_add_u32 s{sW2}, s{sW2}, s{sT}
    s_mul_i32 s{sHL}, s{sRT}, {2*HROW}
    s_mul_i32 s{sT}, s{sW}, {22*1024}
    s_add_u32 s{sHL}, s{sHL}, s{sT}
    s_lshl_b32 s{sT3}, s{sW}, 8
    s_add_u32 s{sT3}, s{sT3}, {LB0}
    v_lshl_add_u32 v{vT2}, v{vL}, 2, s{sT3}
    v_lshl_add_u32 v{vT}, v{vL}, 2, s{sLB}
    s_lshl2_add_u32 s{sT3}, s{sRB}, s{sW}
    s_mul_i32 s{sT3}, s{sT3}, {HROW}
    s_mul_i32 s{sHS}, s{sM}, 6144
    s_add_u32 s{sHS}, s{sHS}, s{sT3}
    s_add_u32 s{sHS2}, s{sHS}, 4096
    s_cmp_ge_u32 s{sM}, 14 | s_cselect_b32 s{sHS2}, {H_SIZE}, s{sHS2}
    s_lshr_b32 s{sT3}, s{sW}, 1
    s_lshl1_add_u32 s{sT3}, s{sRB}, s{sT3}
    s_lshl4_add_u32 s{sT3}, s{sT3}, s{sM}
    s_and_b32 s{sFl}, s{sW}, 1
    s_lshl1_add_u32 s{sFl}, s{sT3}, s{sFl}
    s_lshl_b32 s{sFl}, s{sFl}, 3
    s_add_u32 s{sFl}, s{sFl}, {FH}
    s_cmp_eq_u32 s{sM}, 15 | s_cselect_b32 s{sHS}, {H_SIZE}, s{sHS} | s_cselect_b32 s{sFl}, {WS_SIZE}, s{sFl}
    """.strip().split("\n")]
    def fill_(n):
        for _ in range(n):
            if FILL: a(FILL.pop(0).replace(" | ", "\n"))

    fill_(int(OPT.get("nfill", 0)))
    keepq = [(q, t) for q, t, k in zip(DQ, QT[len(QT)-len(DQ):], QK[len(QK)-len(DQ):]) if k not in ("x1", "x2", "w2", "w3")]
    DQ[:] = [q for q, _ in keepq]; QT[:] = [t for _, t in keepq]
    a(f"s_add_u32 s{sC}, s{sC}, 2\ns_and_b32 s{sC}, s{sC}, 7\ns_add_u32 s{sCx}, s{sCx}, 2\ns_and_b32 s{sCx}, s{sCx}, 7")
    a.wait(vm="xrow")
    stamp()

    vC = CSA; S = [252, 253]; vN = 254; sR = sMean
    def dpp_reduce(fill):
        for ctl in ("row_shr:1 row_mask:0xf bank_mask:0xf bound_ctrl:0", "row_shr:2 row_mask:0xf bank_mask:0xf bound_ctrl:0",
                    "row_shr:4 row_mask:0xf bank_mask:0xf bound_ctrl:0", "row_shr:8 row_mask:0xf bank_mask:0xf bound_ctrl:0",
                    "row_bcast:15 row_mask:0xa bank_mask:0xf", "row_bcast:31 row_mask:0xc bank_mask:0xf"):
            for r in range(2):
                a(f"v_add_f32_dpp v{S[r]}, v{S[r]}, v{S[r]} {ctl}")
            for _ in range(3):
                if fill: a(fill.pop(0))
        while fill: a(fill.pop(0))
    for k in range(4):
        for r in range(2):
            a(f"v_dot2_f32_bf16 v{S[r]}, v{LX+4*r+k}, s{sB1}, {'0' if k == 0 else 'v%d' % S[r]}")
    unpack = lambda: [t for r in range(2) for k in range(4) for t in
                      (f"v_lshlrev_b32 v{LF+8*r+2*k}, 16, v{LX+4*r+k}", f"v_and_b32 v{LF+8*r+2*k+1}, s{sMask}, v{LX+4*r+k}")]
    fill = unpack()
    for _ in range(3): a(fill.pop(0))
    dpp_reduce(fill)
    for r in range(2): a(f"v_mul_f32 v{S[r]}, 0x3b000000, v{S[r]}")
    for r in range(2): a(f"v_cvt_pk_bf16_f32 v{vN+r}, -v{S[r]}, -v{S[r]}")
    for r in range(2): a(f"v_readlane_b32 s{sMean+2*r}, v{S[r]}, 63")
    for r in range(2): a(f"v_readlane_b32 s{sNeg+2*r}, v{vN+r}, 63")
    for k in range(4):
        for r in range(2):
            a(f"v_pk_add_f32 {vr(vC+8*r+2*k,2)}, {vr(LF+8*r+2*k,2)}, {sr(sMean+2*r,2)} op_sel_hi:[1,0] neg_lo:[0,1] neg_hi:[0,1]")
    for r in range(2): a(f"s_and_b32 s{sNeg+2*r}, s{sNeg+2*r}, s{sMask}")
    for r in range(2): a(f"s_or_b32 s{sNeg+2*r+1}, s{sNeg+2*r}, s{sXcc}")
    for r in range(2):
        a(f"v_pk_mul_f32 {vr(vC+8*r,2)}, {vr(vC+8*r,2)}, {vr(vC+8*r,2)}")
    for k in range(1, 4):
        for r in range(2):
            a(f"v_pk_fma_f32 {vr(vC+8*r,2)}, {vr(vC+8*r+2*k,2)}, {vr(vC+8*r+2*k,2)}, {vr(vC+8*r,2)}")
    for r in range(2): a(f"v_add_f32 v{S[r]}, v{vC+8*r}, v{vC+8*r+1}")
    fill = [f"v_pk_add_f32 {vr(LF+8*r+2*k,2)}, {vr(LF+8*r+2*k,2)}, {sr(sNeg+2*r,2)} op_sel_hi:[1,0]" for k in range(4) for r in range(2)]
    fill += [f"v_cvt_pk_bf16_f32 v{LX+4*r+k}, v{LF+8*r+2*k}, v{LF+8*r+2*k+1}" for k in range(4) for r in range(2)]
    dpp_reduce(fill)
    issue(int(OPT.get('n1', 0)))
    def rnd():
        for r in range(2): a(f"v_cvt_pk_bf16_f32 v{S[r]}, v{S[r]}, v{S[r]}")
        for r in range(2): a(f"v_lshlrev_b32 v{S[r]}, 16, v{S[r]}")
    for r in range(2): a(f"v_mul_f32 v{S[r]}, 0x3b000000, v{S[r]}")
    rnd()
    for r in range(2): a(f"v_add_f32 v{S[r]}, 0x3727c5ac, v{S[r]}")
    rnd()
    for r in range(2): a(f"v_sqrt_f32 v{S[r]}, v{S[r]}")
    rnd()
    for r in range(2): a(f"v_rcp_f32 v{S[r]}, v{S[r]}")
    for t in unpack(): a(t)
    for r in range(2): a(f"v_readlane_b32 s{sR+2*r}, v{S[r]}, 63")
    a(f"s_load_dwordx2 {sr(sTag,2)}, s[24:25], 0")
    for r in range(2):
        for k in range(4):
            a(f"v_pk_mul_f32 {vr(LF+8*r+2*k,2)}, {vr(LF+8*r+2*k,2)}, {sr(sR+2*r,2)} op_sel_hi:[1,0]")
        for k in range(4):
            a(f"v_cvt_pk_bf16_f32 v{LX+4*r+k}, v{LF+8*r+2*k}, v{LF+8*r+2*k+1}")
        a(f"ds_write_b128 v{vSw}, {vr(LX+4*r,4)} offset:{SROW*r}", "stg")
    a(f"""
    v_mov_b32 v{LG}, s{sNeg+1}
    v_mov_b32 v{LG+1}, s{sR}
    v_writelane_b32 v{LG}, s{sNeg+3}, 1
    v_writelane_b32 v{LG+1}, s{sR+2}, 1
    s_mul_i32 s{sXn}, s{sP}, {GS}
    s_lshl_b32 s{sT3}, s{sW}, 12
    s_add_u32 s{sXn}, s{sXn}, s{sT3}
    s_add_u32 s{sXn}, s{sXn}, {XNP}
    s_lshl2_add_u32 s{sSt}, s{sP}, s{sW}
    s_lshl_b32 s{sSt}, s{sSt}, 5
    s_add_u32 s{sSt}, s{sSt}, {ST}
    """)
    issue(int(OPT.get('n2', 7)))
    a.wait(lg=0)
    stamp()

    GROUPS = [("A", 2, 4), ("A", 0, 4), ("B", 1, 3), ("A", 1, 4), ("B", 0, 3), ("B", 2, 3), ("B", 3, 3)]
    LOC = []
    for rg, sl, n in GROUPS:
        for k in range(n):
            LOC.append((rg, sl * (16384 if rg == "A" else 12288) + k * 1024))
    PL2 = list(range(4, 24))
    ploc = lambda p: p if p < 24 else PL2[p - 24]
    SHARED['LOC'] = LOC
    pn = [0]
    def p_next():
        p = pn[0]; pn[0] += 1
        rg, off = LOC[ploc(p)]
        a(f"s_add_u32 m0, s{sLA if rg == 'A' else sLB}, {off}")
        a(f"s_add_u32 s{sT3}, s{sW2}, {8192*p}")
        a(f"buffer_load_dwordx4 v{vW2o}, {W2}, s{sT3} offen lds", f"P{p}")

    wb = lambda s_: WF + 12 * (s_ % 3)
    def tr_pair(s_, ft):
        c, i = divmod(s_, 4)
        for e in range(2):
            a(f"ds_read_b64_tr_b16 {vr(wb(s_)+4*ft+2*e,2)}, v{vWr+i} offset:{(c&3)*12288+e*768+ft*64}", f"wf{s_}")
    def rd_x(c, i):
        a(f"ds_read_b128 {vr(XF+16*(c&1)+4*i,4)}, v{vXr+i} offset:{(c%3)*16384}", f"xf{c}_{i}")
    def open_chunk(c):
        if "cs" in OPT and c in (3, 5): stamp(True)
        a.wait(vm=f"C{c}")
        if (c == 0 and "ss" not in OPT) or ("cs" in OPT and c in (3, 5)): stamp(True)
        a("s_barrier")
        if "cs" in OPT and c: stamp(True)

    open_chunk(0)
    rd_x(0, 0)
    for ft in range(3): tr_pair(0, ft)
    for i in range(1, 4): rd_x(0, i)
    for ft in range(3): tr_pair(1, ft)
    a(f"s_cmp_eq_u32 s{sTag}, 0\ns_cbranch_scc1 G_tagslow\nG_tagok:")
    for k in range(5): a(f"v_mov_b32 v{LF+4*k+2}, s{sTag}\nv_mov_b32 v{LF+4*k+3}, s{sTag+1}")
    XSL = {"a": [(0, 1), (0, 2), (1, 0), (1, 2), (2, 1)], "b": [(3, 0), (3, 1), (3, 2), (7, 0), (7, 1)], "c": [(1, 0), (1, 2), (3, 0), (3, 2), (5, 1)]}[OPT.get("xsl", "b")]
    GP = 'gp' in OPT
    PS = int(OPT.get('ps', 22)) if GP else 99
    def bg_op(c, i, ft):
        s_ = 4 * c + i
        if DQ: issue(1, s_)
        elif s_ >= PS and ft != 1:
            lim = 0 if s_ < 20 else 4 if s_ < 24 else 8 if s_ < 26 else 11 if s_ < 28 else 15 if s_ < 30 else 18 if s_ < 31 else 24
            if pn[0] < lim:
                assert not FILL
                p_next()
    def split(dst, src, tmp):
        return [f"v_cvt_pk_bf16_f32 v{tmp}, v{src}, v{src}", f"v_lshlrev_b32 v{tmp}, 16, v{tmp}",
                f"v_sub_f32 v{tmp}, v{src}, v{tmp}", f"v_cvt_pk_bf16_f32 v{dst}, v{src}, v{tmp}"]
    for c in range(8):
        a.comment(f"---- GEMM1 chunk {c}")
        for i in range(4):
            s_ = 4 * c + i
            if i == 2 and c < 7:
                issue(int(OPT.get('flush', 0)), s_ - 1)
                assert not any(t == f'C{c+1}' for t in QT[len(QT)-len(DQ):])
                open_chunk(c + 1)
            a.wait(lg=(f"xf{c}_{3 if s_ else 0}", f"wf{s_}"))
            if "ss" in OPT and int(OPT["ss"]) <= s_ < int(OPT["ss"]) + 12: stamp(True)
            if s_ == 28:
                assert "csw" not in a.lg
                a("s_barrier")
            if s_ == 31: a("s_barrier")
            for ft in range(3):
                cs = i == 0 or c >= 7
                if cs and s_ == 31:
                    a(f"v_mfma_f32_16x16x32_bf16 {vr(CSA+12+4*ft,4)}, {vr(HALF,4)}, {vr(wb(s_)+4*ft,4)}, {vr(CSA+12+4*ft,4)}")
            for ft in range(3):
                cc = "0" if s_ == 0 else vr(ACC1+16*ft, 16)
                a(f"v_mfma_f32_32x32x16_bf16 {vr(ACC1+16*ft,16)}, {vr(wb(s_)+4*ft,4)}, {vr(XF+16*(c&1)+4*i,4)}, {cc}")
                if i == 2 and c < 7:
                    if ft == 0: rd_x(c + 1, 0)
                    rd_x(c + 1, ft + 1)
                if s_ + 2 < 32: tr_pair(s_ + 2, ft)
                if (s_, ft) == (0, 0):
                    for k in range(4): a(f"ds_read_b64_tr_b16 {vr(LF+4*k,2)}, v{vSr} offset:{64*k}", "tr")
                if (s_, ft) in XSL:
                    a.wait(lg="tr")
                    k = XSL.index((s_, ft))
                    if k < 4: a(f"buffer_store_dwordx4 {vr(LF+4*k,4)}, v{vL16}, {WS}, s{sXn} offen offset:{1024*k} sc1", "xn")
                    else: a(f"s_mov_b64 exec, 3\nbuffer_store_dwordx4 {vr(LG,4)}, v{vL16}, {WS}, s{sSt} offen sc1\ns_mov_b64 exec, -1")
                else:
                    bg_op(c, i, ft)
                    if i == 3 or (i == 1 and ft): fill_(4)
                if (i == 0 or c >= 7) and s_ != 31:
                    d = CSA + 4 * ft + (12 if c >= 7 else 0)
                    a(f"v_mfma_f32_16x16x32_bf16 {vr(d,4)}, {vr(HALF,4)}, {vr(wb(s_)+4*ft,4)}, {'0' if s_ in (0, 28) else vr(d,4)}")
                if s_ == 25:
                    for t in split(vCs + ft, CSA + 4 * ft, CSA + 4 * ft + 1): a(t)
                if s_ == 25:
                    for k in range(2):
                        a(f"ds_write2st64_b32 v{vT2}, v{vCs+ft}, v{vCs+ft} offset0:{24*k+4*ft} offset1:{24*k+12+4*ft}", "csw")
                if s_ == 23:
                    for k in range(4): a(f"v_mov_b32 v{CSF+4*ft+k}, 0")
                if s_ == 28:
                    a("s_mov_b32 exec_hi, 0")
                    for k in range(2):
                        a(f"ds_read2st64_b32 {vr(CSF+4*ft+2*k,2)}, v{vT} offset0:{4*ft+2*k} offset1:{4*ft+2*k+1}", "csf")
                    a("s_mov_b32 exec_hi, -1")
                if s_ == 29 and ft == 2:
                    a.wait(vm="st", lg="csf")
                    a(f"""
                    s_mov_b32 s{sCnt}, 0
                    G_stchk:
                    v_cmp_ne_u64 vcc, {sr(sTag,2)}, {vr(vSt+2,2)}
                    v_cmp_ne_u64 s[88:89], {sr(sTag,2)}, {vr(vId+2,2)}
                    v_and_b32 v{vId+1}, 0xffff, v{vId}
                    s_or_b64 vcc, vcc, s[88:89]
                    s_cbranch_vccnz G_stslow
                    G_stok:
                    """)
                if s_ == 30 and ft == 0:
                    a(f"""
                    v_cmp_ne_u32 s[90:91], s{sXcc}, v{vId+1}
                    v_lshrrev_b32 v{vNeg+1}, 16, v{vSt}
                    v_bfi_b32 v{vNeg}, s{sMask}, v{vSt}, v{vNeg+1}
                    v_bfi_b32 v{vNeg+2}, s{sMask}, v{vSt}, v{vNeg+1}
                    """)
                if s_ == 30 and ft == 1:
                    a(f"""
                    v_bfi_b32 v{vNeg+3}, s{sMask}, v{vSt}, v{vNeg+1}
                    v_bfi_b32 v{vNeg+1}, s{sMask}, v{vSt}, v{vNeg+1}
                    v_mul_f32 v{vC2}, s{sL2e}, v{vSt+1}
                    s_or_b32 s{sFar}, s90, {1 if 'forcefar' in OPT else 's91'}
                    v_mov_b32 v{vNon}, s{sTag}
                    v_mov_b32 v{vNon+1}, s{sTag+1}
                    """)
                if s_ == 31:
                    sp = split(CSF + 4 * ft, CSA + 12 + 4 * ft, CSA + 13 + 4 * ft)
                    for t in sp[:3]: a(t)
                    a(f"s_mov_b32 exec_lo, 0\n{sp[3]}\ns_mov_b32 exec_lo, -1")
            if s_ == 23:
                assert not FILL
                a(f"buffer_load_dwordx4 {vr(vSt,4)}, v{vSa}, {WS}, s{sO} offen sc1", "st")
                a(f"buffer_load_dwordx4 {vr(vId,4)}, v{vIa}, {WS}, s{sIa} offen sc1", "st")
    assert not DQ
    stamp()
    for ft in range(3):
        a(f"v_mfma_f32_32x32x16_bf16 {vr(ACC1+16*ft,16)}, {vr(CSF+4*ft,4)}, {vr(vNeg,4)}, {vr(ACC1+16*ft,16)}")
    E1, OB = 208, 224
    def tr_w2(step, tag):
        base = STASH + 8 * (step % 12)
        for j in range(2):
            for e in range(2):
                rg, off = LOC[ploc(2 * step + e)]
                a(f"ds_read_b64_tr_b16 {vr(base+4*j+2*e,2)}, v{vW2r+(0 if rg=='A' else 2)+j} offset:{off}", tag)
    if not GP: pn[0] = 24
    for _ in range(3):
        if pn[0] < 24: p_next()
    GB = int(OPT.get("gb", 0))
    B9, B10 = int(OPT.get("b9", 1)), int(OPT.get("b10", 6))
    for ft in range(3):
        for j in range(2):
            A0 = ACC1 + 16 * ft + 8 * j
            T0 = E1 + 8 * j
            for k in range(8): a(f"v_mul_f32 v{A0+k}, v{vC2}, v{A0+k}")
            for k in range(8): a(f"v_exp_f32_e64 v{T0+k}, -v{A0+k}")
            if pn[0] < 24: p_next()
            for k in range(8): a(f"v_fma_f32 v{T0+k}, v{T0+k}, s{sL2e}, s{sL2e}")
            for k in range(8): a(f"v_rcp_f32 v{T0+k}, v{T0+k}")
            if pn[0] < 24: p_next()
            for k in range(8): a(f"v_mul_f32 v{A0+k}, v{A0+k}, v{T0+k}")
            for k in range(0, 8, 2): a(f"v_cvt_pk_bf16_f32 v{OB+8*ft+4*j+k//2}, v{A0+k}, v{A0+k+1}")
            a(f"buffer_store_dwordx4 {vr(OB+8*ft+4*j,4)}, v{vL16}, {HS}, s{sHS if ft < 2 else sHS2} offen offset:{1024*((2*ft+j)&3)} {OPT.get('hnt', 'nt') if str(2*ft+j) in OPT.get('hn', '012345') else ''}", "hs")
            if GP and 2 * ft + j == GB: a("s_barrier")
    stamp()
    vH, vF, vXg, vO, vY, vXl, vR, vP, vYl = 2, 4, 5, 6, 7, 8, 13, 10, 9
    a(f"""
    s_lshl_b32 s{sT}, s{sW}, 3
    s_lshr_b32 s{sT2}, 0x160e0600, s{sT}
    s_and_b32 s{sT2}, s{sT2}, 0xff
    s_lshr_b32 s{sT}, 0x1d150f07, s{sT}
    s_and_b32 s{sT}, s{sT}, 0xff
    v_max_u32 v{vF}, s{sT2}, v{vL}
    v_min_u32 v{vF}, s{sT}, v{vF}
    v_lshlrev_b32 v{vF}, 3, v{vF}
    s_and_b32 s{sT}, s{sW}, 1
    s_mul_i32 s{sT2}, s{sT}, {HROW}
    v_add_u32 v{vH}, s{sT2}, v{vL16}
    s_sub_u32 s{sT2}, {HROW}, s{sT2}
    v_add_u32 v{vH+1}, s{sT2}, v{vL16}
    s_mov_b32 s{sCnt}, 0
    s_lshr_b32 s{sXn}, s{sCG}, 2
    s_mul_i32 s{sXn}, s{sXn}, {HROW}
    s_and_b32 s{sT2}, s{sCG}, 3
    s_mulk_i32 s{sT2}, 5632
    s_add_u32 s{sXn}, s{sXn}, s{sT2}
    s_add_u32 s{sXn}, s{sXn}, s{sHL}
    s_movk_i32 s{sC}, 144
    v_min_u32 v{vSw}, 47, v{vL}
    v_lshlrev_b32 v{vSw}, 7, v{vSw}
    v_min_u32 v12, 43, v{vL}
    v_lshlrev_b32 v12, 7, v12
    """)
    a(f"s_cmp_lg_u32 s{sFar}, 0\ns_cbranch_scc1 G_far")
    a.wait(vm="hs")
    stamp()
    a(f"s_mov_b64 exec, 1\nbuffer_store_dwordx2 {vr(vNon,2)}, off, {WS}, s{sFl}\nG_pub:\ns_mov_b64 exec, -1")
    if "pt" in OPT:
        a(f"buffer_load_dword v{vT3}, v{vSw}, {HS}, s{sHS} offen {OPT['pt'].replace('1', '') if OPT['pt'] != 'sc1' else 'sc1'}", "pt")
    a(f"s_lshl_b32 s{sRet}, s{sRT}, 8\ns_add_u32 s{sRet}, s{sRet}, {FH}")
    if not GP: a("s_barrier")
    assert pn[0] == 24 and not any(str(t).startswith("P") for t in a.vm)
    PK_ = int(OPT.get("pk", 11))
    order = list(range(2, 12)) + [0, 1]
    for n_, k in enumerate(order):
        if n_ == PK_: a(f"buffer_load_dwordx2 {vr(vP,2)}, v{vF}, {WS}, s{sRet} offen sc1", "poll")
        tr_w2(k, f"S{k}")
    def p2():
        a.wait(lg=f"S{ploc(pn[0])//2}")
        p_next()
    for _ in range(int(OPT.get("np0", 12))): p2()
    stamp()
    a.wait(vm="poll")
    a(f"G_hchk:\nv_cmp_ne_u64 vcc, {sr(sTag,2)}, {vr(vP,2)}\ns_add_u32 s{sCnt}, s{sCnt}, 1\ns_cbranch_vccnz G_hslow\nG_hok:")
    stamp()
    if STAMPS: a(f"s_lshl_b32 s{sCnt}, s{sCnt}, 16\ns_add_u32 s97, s97, s{sCnt}")
    HS_ = [(i, 1) for i in range(12)] + [(i, j) for i in range(12, 22) for j in (1, 0)] + [(i, 0) for i in range(12)]
    HR, WR = int(OPT.get("hr", 10)), 232
    grp = [None]
    def h_load(n):
        i, j = HS_[n]
        if i // 4 != grp[0]:
            grp[0] = i // 4; a(f"s_add_u32 s{sTx}, s{sHL}, {4096*(i//4)}")
        a(f"buffer_load_dwordx4 {vr(HB+4*(n%HR),4)}, v{vH+j}, {HS}, s{sTx} offen offset:{1024*(i%4)} {OPT.get('hlf', 'sc1').replace('_', ' ')}", f"h{n}")
    HT = int(OPT.get("ht", 0))
    for n in range(HR - 1):
        if n == HT: a(f"buffer_load_dword v12, v12, {HS}, s{sXn} offen sc1", "ht")
        if n == int(OPT.get("hp", 0)):
            for _ in range(int(OPT.get("np1", 99))):
                if pn[0] < 44: p2()
        h_load(n)
    a(f"""
    s_lshl1_add_u32 s{sT2}, s{sRT}, s{sT}
    s_lshr_b32 s{sT}, s{sW}, 1
    s_lshl1_add_u32 s{sCnt}, s{sCG}, s{sT}    ; own 32-column block
    s_lshl_b32 s{sO}, s{sT2}, 15
    s_lshl_b32 s{sT}, s{sCnt}, 6
    s_add_u32 s{sO}, s{sO}, s{sT}
    s_mul_i32 s{sY}, s{sCnt}, {32*GC}
    s_lshl_b32 s{sT}, s{sT2}, 7
    s_add_u32 s{sY}, s{sY}, s{sT}
    s_add_u32 s{sY}, s{sY}, {Y2}
    v_and_b32 v{vT}, 31, v{vL}
    v_lshrrev_b32 v{vT2}, 5, v{vL}
    v_lshlrev_b32 v{vO}, 10, v{vT}
    v_lshl_add_u32 v{vO}, v{vT2}, 4, v{vO}
    v_lshl_add_u32 v{vXl}, v{vT}, 6, s{sLA}
    v_lshl_add_u32 v{vXl}, v{vT2}, 4, v{vXl}
    v_lshlrev_b32 v{vYl}, 3, v{vT2}
    v_sub_u32 v{vF}, v{vT}, v{vYl}
    v_bfe_u32 v{vT}, v{vL}, 2, 2
    v_add_u32 v{vYl}, v{vYl}, v{vT}
    v_lshl_add_u32 v{vYl}, v{vYl}, 7, s{sLA}
    v_bfe_u32 v{vT}, v{vL}, 4, 1
    v_lshl_add_u32 v{vYl}, v{vT}, 6, v{vYl}
    v_and_b32 v{vT}, 3, v{vL}
    v_lshl_add_u32 v{vYl}, v{vT}, 4, v{vYl}
    v_lshrrev_b32 v{vY}, 3, v{vL}
    v_mul_u32_u24 v{vY}, {GC}, v{vY}
    v_and_b32 v{vT}, 7, v{vL}
    v_lshl_add_u32 v{vY}, v{vT}, 4, v{vY}
    v_add_u32 v{vP}, s{sLA}, v{vL16}
    v_lshrrev_b32 v{vXg}, 2, v{vL}
    v_lshlrev_b32 v{vXg}, 10, v{vXg}
    v_and_b32 v{vT}, 3, v{vL}
    v_lshl_add_u32 v{vXg}, v{vT}, 4, v{vXg}
    v_add_u32 v{vR}, s{sLB}, v{vL16}
    """)
    for k in range(1, 4):
        a(f"s_xor_b32 s{sT}, s{sW}, {k}\ns_mulk_i32 s{sT}, 3072\ns_add_u32 s{sT}, s{sT}, {LB0}\nv_add_u32 v{vR+k}, s{sT}, v{vL16}")
    YO = 32768
    YT, YF, XFr, IDN = 232, 240, 248, 24
    XR = 24
    if "touch" in OPT:
        a(f"v_and_b32 v{vT}, 31, v{vL}\nv_mul_u32_u24 v{vT}, {GC}, v{vT}")
        a(f"buffer_load_dword v12, v{vT}, {WS}, s{sY} offen sc1", "yt")
    a(f"v_and_b32 v{vT}, 1, v{vF}\nv_lshlrev_b32 v{vT}, 4, v{vT}\nv_lshlrev_b32 v{vT}, v{vT}, v{vW2o}" if False else
      f"v_and_b32 v{vT}, 1, v{vF}\nv_lshlrev_b32 v{vT}, 4, v{vT}\nv_mov_b32 v11, 0x3f80\nv_lshlrev_b32 v11, v{vT}, v11\nv_ashrrev_i32 v{vF}, 1, v{vF}")
    for k in range(8):
        a(f"v_cmp_eq_u32 s[{88+2*(k&1)}:{89+2*(k&1)}], {8*(k>>2)+(k&3)}, v{vF}")
        if k: a(f"v_cndmask_b32 v{IDN+k-1}, 0, v11, s[{88+2*((k-1)&1)}:{89+2*((k-1)&1)}]")
    a(f"v_cndmask_b32 v{IDN+7}, 0, v11, s[90:91]")
    def y_loads(emit):
        emit(f"s_add_u32 m0, s{sLA}, {YO}")
        for k in range(4):
            emit(f"s_add_u32 s{sT2}, s{sY}, {8*k*GC-1024*k}")
            emit(f"buffer_load_dwordx4 v{vY}, {WS}, s{sT2} offen offset:{1024*k} sc1 lds")
    def y_reads(emit):
        for k in range(4): emit(f"ds_read_b64 {vr(YT+2*k,2)}, v{vP} offset:{YO+1024*k+8}")
        for k in range(4): emit(f"ds_read_b64_tr_b16 {vr(YF+2*k,2)}, v{vYl} offset:{YO+2048*(k>>1)+512*(k&1)}")
    wreg = lambda i: STASH + 8 * i if i < 12 else WR + 8 * (i % 3)
    def w_reads(i, half):
        j = half
        assert pn[0] > 2 * i + 1
        a.wait(vm=f"P{2*i+1}")
        for e in range(2):
            rg, off = LOC[ploc(2 * i + e)]
            a(f"ds_read_b64_tr_b16 {vr(wreg(i)+4*j+2*e,2)}, v{vW2r+(0 if rg=='A' else 2)+j} offset:{off}", f"r{i}")
    started = set()
    def mm(n, jd):
        i, j = HS_[n]; k = 2 * jd + j
        ac = ACC2 + 16 * k
        a(f"v_mfma_f32_32x32x16_bf16 {vr(ac,16)}, {vr(wreg(i)+4*jd,4)}, {vr(HB+4*(n%HR),4)}, {vr(ac,16) if k in started else '0'}")
        started.add(k)
    roff = lambda k, q: (((k - 1) * 4 + q) // 3) * 12288 + (((k - 1) * 4 + q) % 3) * 1024
    def r_write(k, q): a(f"ds_write_b128 v{vR}, {vr(ACC2+16*k+4*q,4)} offset:{roff(k,q)}", "rw")
    def r_read(k, q): a(f"ds_read_b128 {vr(ACC2+16*k+4*q,4)}, v{vR+k} offset:{roff(k,q)}", f"rr{k}")
    YS = int(OPT.get("ys", 34))
    NT = 4
    PR_ = int(OPT.get('pr', 1))
    side = []
    def run_side(c):
        for _ in range(c):
            if side:
                t = side.pop(0)
                if callable(t): t()
                else: a(t)
    for n in range(44 - NT):
        i, j = HS_[n]
        a.wait(vm=f"h{n}", lg=(f"r{i}" if i >= 12 else 0 if n == 0 else None))
        if n == 0 or ("g2" in OPT and n in (12, 24, 32, 36)): stamp(True)
        for jd in range(2):
            mm(n, jd)
            if jd == 0 and n + HR - 1 < 44: h_load(n + HR - 1)
            if pn[0] < 44 and (jd == 1 or n % PR_ == 0): p2()
            if n in (8, 10): w_reads(12 + (n - 8) // 2, jd)
            if 12 <= n < 28 and j == 1: w_reads(i + 2, jd)
            if jd == 1 and n == YS:
                y_loads(lambda t: a(t, "yr"))
            if jd == 1 and n == 30:
                a(f"s_mov_b32 m0, s{sLA}\ns_add_u32 s{sT2}, s{sO}, {16384-1024}")
                a(f"buffer_load_dwordx4 v{vXg}, {X}, s{sO} offen lds", "xr")
                a(f"buffer_load_dwordx4 v{vXg}, {X}, s{sT2} offen offset:1024 lds", "xr")
            g = 2 * (n - 32) + jd
            if 0 <= g < 12 and g % 3 != 2:
                w = g - g // 3; r_write(1 if w < 4 else 3, w & 3)
            if g == 8 and "ol" in OPT:
                a(f"""
                s_and_b32 s{sT}, s{sW}, 1
                s_mulk_i32 s{sT}, {32*144}
                s_lshr_b32 s{sT2}, s{sW}, 1
                s_lshl_b32 s{sT2}, s{sT2}, 6
                s_add_u32 s{sT}, s{sT}, s{sT2}
                s_add_u32 s{sT}, s{sT}, 98304
                v_and_b32 v{vT}, 31, v{vL}
                v_mul_u32_u24 v{vH}, 144, v{vT}
                """)
            if g == 11 and "ol" in OPT:
                a(f"""
                v_lshrrev_b32 v{vT}, 5, v{vL}
                v_lshl_add_u32 v{vH}, v{vT}, 4, v{vH}
                v_add_u32 v{vH}, s{sT}, v{vH}
                v_lshrrev_b32 v{vT}, 3, v{vL}
                v_and_b32 v{vF}, 7, v{vL}
                v_lshlrev_b32 v{vF}, 4, v{vF}
                v_mad_u32_u24 v{vH+1}, v{vT}, s{sC}, v{vF}
                v_lshl_add_u32 v{vF}, v{vT}, 10, v{vF}
                """)
            if g == 13 and "ol" in OPT:
                a(f"""
                s_mul_i32 s{sT}, s{sW}, {16*144}
                s_add_u32 s{sT}, s{sT}, 98304
                v_add_u32 v{vH+1}, s{sT}, v{vH+1}
                s_lshl2_add_u32 s{sXB}, s{sRT}, s{sW}
                s_lshl_b32 s{sXB}, s{sXB}, 14
                s_lshl_b32 s{sT}, s{sCG}, 7
                s_add_u32 s{sXB}, s{sXB}, s{sT}
                s_add_u32 s{sXB+1}, s{sXB}, 8192
                """)
            if g == 12:
                a.wait(vm="xr")
                for q in range(2): a(f"ds_read_b128 {vr(XFr+4*q,4)}, v{vXl} offset:{32*q}", "xl")
            if g == 14:
                a.wait(lg="rw")
                a("s_barrier")
                for q in range(4): r_read(1, q)
            if g == 15:
                for q in range(4): r_read(3, q)
    if "ts" in OPT: stamp()
    side = [lambda: a.wait(lg="rr3")] + [f"v_add_f32 v{ACC2+16+q}, v{ACC2+16+q}, v{ACC2+48+q}" for q in range(16)]
    for q, n in enumerate(range(44 - NT, 44)):
        a.wait(vm=f"h{n}")
        mm(n, 1)
        if q >= 2: run_side(6)
    tail = [lambda n=n: mm(n, 0) for n in range(44 - NT, 44)]
    for src in (XFr, YF):
        for q in range(2):
            tail.append(lambda src=src, q=q: a(f"v_mfma_f32_32x32x16_bf16 {vr(ACC2,16)}, {vr(IDN+4*q,4)}, {vr(src+4*q,4)}, {vr(ACC2,16)}"))
    for q, t in enumerate(tail):
        t()
        if q == 0: run_side(99)
        if 1 <= q <= 4: r_write(2, q - 1)
        if q == 4:
            a.wait(vm="yr")
            y_reads(lambda t: a(t, "yl"))
        if q == 5:
            a.wait(lg="rw")
            a("s_barrier")
            for q2 in range(4): r_read(2, q2)
            a.wait(lg="yl")
            a(f"s_mov_b32 s{sCnt}, 0\nG_ychk:")
            a(f"v_cmp_ne_u64 vcc, {sr(sTag,2)}, {vr(YT,2)}")
            for q2 in range(1, 4): a(f"v_cmp_ne_u64 s[{86+2*q2}:{87+2*q2}], {sr(sTag,2)}, {vr(YT+2*q2,2)}")
            for q2 in range(1, 4): a(f"s_or_b64 vcc, vcc, s[{86+2*q2}:{87+2*q2}]")
            a("s_cbranch_vccnz G_yslow\nG_yok:")
    stamp()
    a.wait(lg="rr2")
    for q in range(16): a(f"v_add_f32 v{ACC2+16+q}, v{ACC2+16+q}, v{ACC2+32+q}")
    for k in range(8):
        a(f"v_pk_add_f32 {vr(ACC2+2*k,2)}, {vr(ACC2+2*k,2)}, {vr(ACC2+16+2*k,2)}")
    for k in range(8):
        a(f"v_cvt_pk_bf16_f32 v{XR+k}, v{ACC2+2*k}, v{ACC2+2*k+1}")
    if "ol" not in OPT:
        for q in range(2):
            a(f"v_permlane32_swap_b32 v{XR+4*q}, v{XR+4*q+2}\nv_permlane32_swap_b32 v{XR+4*q+1}, v{XR+4*q+3}")
            a(f"buffer_store_dwordx4 {vr(XR+4*q,4)}, v{vO}, {OUT}, s{sO} offen offset:{32*q} {OPT.get('osf', '').replace('_', ' ')}")
    else:
        for q in range(2):
            a(f"v_permlane32_swap_b32 v{XR+4*q}, v{XR+4*q+2}\nv_permlane32_swap_b32 v{XR+4*q+1}, v{XR+4*q+3}")
            a(f"ds_write_b128 v{vH}, {vr(XR+4*q,4)} offset:{32*q}")
        a("s_waitcnt lgkmcnt(0)\ns_barrier")
        for q in range(2): a(f"ds_read_b128 {vr(ACC2+4*q,4)}, v{vH+1} offset:{8*144*q}", f"o{q}")
        for q in range(2):
            a.wait(lg=f"o{q}")
            a(f"buffer_store_dwordx4 {vr(ACC2+4*q,4)}, v{vF}, {OUT}, s{sXB+q} offen {OPT['ol'].replace('_', ' ').replace('1', '') if OPT['ol'] != 'sc1' else 'sc1'}")
    stamp()
    if STAMPS:
        a("s_waitcnt vmcnt(0)"); stamp()
    if "padev" in OPT:
        a(f"G_pad2:\ns_memrealtime s[98:99]\ns_waitcnt lgkmcnt(0)\ns_sub_u32 s96, s98, s86\ns_cmp_lt_u32 s96, 3000\ns_cbranch_scc1 G_pad2")
    if "padto" in OPT:
        a(f"G_pad:\ns_memrealtime s[98:99]\ns_waitcnt lgkmcnt(0)\ns_sub_u32 s96, s98, s{sTag}\ns_cmp_lt_u32 s96, {OPT['padto']}\ns_cbranch_scc1 G_pad")
    if "dbg" in OPT:
        n = nstamp[0]
        a(f"s_memrealtime s[98:99]\ns_waitcnt lgkmcnt(0)\ns_lshl2_add_u32 s96, s2, s{sW}\ns_cmp_lg_u32 s96, {4*int(OPT['dbg'])}\ns_cbranch_scc1 G_nodbg\ns_mov_b64 exec, 1")
        for i in range(1, n):
            a(f"s_sub_u32 s96, s{60+2*i}, s60\nv_mov_b32 v{vT}, s96\nbuffer_store_dword v{vT}, off, {DBG}, 0 offset:{4+4*i}")
        a(f"s_sub_u32 s96, s98, s{sTag}\nv_mov_b32 v{vT}, s96\nbuffer_store_dword v{vT}, off, {DBG}, 0 offset:60")
        a("G_nodbg:")
    stamp_flush(WS, f"s{sW}", vT, 256)
    a("s_endpgm")
    tag_slow("G", sTag, 24, [64, 192], vNon, sCnt)
    a.raw(f"""G_stslow:
{retry_mark(4)}  s_add_u32 s{sCnt}, s{sCnt}, 1
  s_cmp_ge_u32 s{sCnt}, {SPIN}
  s_cbranch_scc1 G_stok
  buffer_load_dwordx4 {vr(vSt,4)}, v{vSa}, {WS}, s{sO} offen sc1
  buffer_load_dwordx4 {vr(vId,4)}, v{vIa}, {WS}, s{sIa} offen sc1
  s_waitcnt vmcnt(0)
  s_branch G_stchk
G_hslow:
  s_cmp_ge_u32 s{sCnt}, {SPIN}
  s_cbranch_scc1 G_hok
  buffer_load_dwordx2 {vr(vP,2)}, v{vF}, {WS}, s{sRet} offen sc1
  s_waitcnt vmcnt(0)
  s_branch G_hchk
G_yslow:
{retry_mark(8)}  s_add_u32 s{sCnt}, s{sCnt}, 1
  s_cmp_ge_u32 s{sCnt}, {1 if "nossm" in OPT else SPIN}
  s_cbranch_scc1 G_yok""")
    y_loads(lambda t: a.raw("  " + t))
    a.raw("  s_waitcnt vmcnt(0)")
    y_reads(lambda t: a.raw("  " + t))
    a.raw("  s_waitcnt lgkmcnt(0)\n  s_branch G_ychk")
    a.hist = []
    a("G_far:\ns_waitcnt vmcnt(0)")
    for k in range(6):
        a(f"buffer_store_dwordx4 {vr(OB+4*k,4)}, v{vL16}, {HS}, s{sHS if k < 4 else sHS2} offen offset:{1024*(k&3)} sc1")
    a(f"s_waitcnt vmcnt(0)\ns_mov_b64 exec, 1\nbuffer_store_dwordx2 {vr(vNon,2)}, off, {WS}, s{sFl} sc1\ns_branch G_pub")
    a.vm = []; a.lg = []

def ssm_role():
    DBG, WS = "s[8:11]", "s[12:15]"
    sQ, sW, sE, sPar, sT, sT2, sCnt, sB1, sMask = 3, 32, 5, 6, 7, 34, 35, 40, 41
    sLdt, sD, sTag, sU, sXcc = 42, 43, 36, 38, 4
    sMean, sNeg = 44, 48
    vL, LX, LF, vC, LG = 1, 2, 10, 30, 26
    vPar = 44
    vT, vT2, vT3, vT4 = 54, 55, 56, 57
    vNon, vL16, vTab = 52, 60, 61
    SB = 98304
    CB0, UB0, USZ, K0A, FLG, TAB, TSZ, SROW = SB, SB + 33280, 4576, SB + 42432, SB + 42448, SB + 49152, 4096, 1056
    a.hist = []; a.vm = []; a.lg = []
    a(f"""
    s_load_dwordx16 s[16:31], s[0:1], 0
    s_load_dwordx2 s[8:9], s[0:1], 104
    s_load_dwordx2 s[52:53], s[0:1], 64
    s_load_dwordx2 s[92:93], s[0:1], 88
    s_load_dwordx2 s[88:89], s[0:1], 80
    s_load_dwordx2 s[12:13], s[0:1], 112
    s_memrealtime {sr(sTag,2)}
    s_setprio 3
    s_sub_u32 s{sW}, s{sW}, 4
    v_and_b32 v{vL}, 63, v0
    v_and_b32 v{vT}, 255, v0
    s_lshl_b32 s{sT}, s{sQ}, 9
    v_lshl_add_u32 v{vT3}, v{vT}, 1, s{sT}
    s_lshl2_add_u32 s{sT2}, s{sQ}, s{sW}
    s_lshl_b32 s{sT2}, s{sT2}, 11
    v_lshlrev_b32 v{vL16}, 4, v{vL}
    v_lshl_add_u32 v{vT4}, v{vL}, 6, s{sT2}
    s_lshl_b32 s{sT}, s{sQ}, 2
    """)
    srd(8, 256)
    a("s_waitcnt lgkmcnt(0)")
    if STAMPS: a(f"s_mov_b32 s100, s{sTag}\ns_mov_b32 s97, 0")
    stamp()
    a(f"""
    s_or_b32 s{sTag}, s{sTag}, 1
    v_mov_b32 v{vNon}, s{sTag}
    v_mov_b32 v{vNon+1}, s{sTag+1}
    buffer_store_dwordx2 {vr(vNon,2)}, v{vT4}, {DBG}, 0 offen sc1
    """)
    for k in range(6):
        a(f"global_load_ushort v{vPar+k}, v{vT3}, s[{18+2*k}:{19+2*k}]", "par")
    a(f"s_load_dword s{sLdt}, s[30:31], s{sT}\ns_load_dword s{sD}, s[52:53], s{sT}\ns_setprio 0\ns_branch L_ssm")
    keep = (list(a.vm), nstamp[0])
    yield
    a.hist = []; a.lg = []; a.vm = keep[0]; nstamp[0] = keep[1]
    X, W1 = "s[16:19]", "s[88:91]"
    vXo, vWo = 2, 6
    sLA, sLB, sXB, sWB, sC, sCx, sTx, sTw = 20, 21, 22, 23, 24, 25, 26, 27
    srd(16, 2048 * 1024); srd(88, 512 * 2752)
    a(f"""
    v_lshrrev_b32 v{vT}, 3, v{vL}
    v_lshlrev_b32 v{vT}, 10, v{vT}
    v_lshrrev_b32 v{vT2}, 4, v{vL}
    v_xor_b32 v{vT2}, v{vT2}, v{vL}
    v_and_b32 v{vT2}, 7, v{vT2}
    v_lshl_add_u32 v{vXo}, v{vT2}, 4, v{vT}
    v_xor_b32 v{vXo+1}, 64, v{vXo}
    v_add_u32 v{vXo+2}, {2*7168}, v{vXo}
    v_add_u32 v{vXo+3}, {3*7168}, v{vXo+1}
    v_add_u32 v{vXo+1}, 7168, v{vXo+1}
    s_movk_i32 s{sTx}, 5462
    s_movk_i32 s{sTw}, {2752-192}
    v_mul_u32_u24 v{vT}, s{sTx}, v{vL}
    """)
    for j in range(3):
        if j: a(f"v_add_u32 v{vT}, {64*5462}, v{vT}")
        a(f"v_lshrrev_b32 v{vT2}, 16, v{vT}\nv_mad_u32_u24 v{vWo+j}, v{vT2}, s{sTw}, v{vL16}")
    a(f"""
    s_lshr_b32 s{sXB}, s{sQ}, 4
    s_lshl2_add_u32 s{sXB}, s{sXB}, s{sW}
    s_lshl_b32 s{sXB}, s{sXB}, 15
    s_and_b32 s{sC}, s{sQ}, 15
    s_mul_i32 s{sWB}, s{sC}, 192
    s_mul_i32 s{sTx}, s{sW}, {16*2752}
    s_add_u32 s{sWB}, s{sWB}, s{sTx}
    s_cmp_eq_u32 s{sC}, 15
    s_cselect_b32 s{sXB}, 0x40000000, s{sXB}
    s_cselect_b32 s{sWB}, 0x40000000, s{sWB}
    s_add_u32 s{sCx}, s{sQ}, 1
    s_and_b32 s{sCx}, s{sCx}, 7
    s_add_u32 s{sC}, s{sQ}, 2
    s_and_b32 s{sC}, s{sC}, 7
    s_lshl_b32 s{sLA}, s{sW}, 12
    s_mul_i32 s{sLB}, s{sW}, 3072
    s_add_u32 s{sLB}, s{sLB}, 49152
    """)
    def w_ops(c):
        ops = []
        for j in range(3):
            def f(j=j):
                if j == 0:
                    a(f"s_mul_i32 s{sTw}, s{sC}, {64*2752}\ns_add_u32 m0, s{sLB}, {(c&3)*12288}\ns_add_u32 s{sTw}, s{sTw}, s{sWB}")
                a(f"buffer_load_dwordx4 v{vWo+j}, {W1}, s{sTw} offen offset:{j*1024} lds", f"C{c}")
                if j == 0: a(f"s_add_u32 s{sC}, s{sC}, 1\ns_and_b32 s{sC}, s{sC}, 7")
            ops.append(f)
        return ops
    def x_ops(c):
        ops = []
        for pc in range(4):
            def f(pc=pc):
                if pc == 0:
                    a(f"s_lshl_b32 s{sTx}, s{sCx}, 7\ns_add_u32 m0, s{sLA}, {(c%3)*16384}\ns_add_u32 s{sTx}, s{sTx}, s{sXB}")
                a(f"buffer_load_dwordx4 v{vXo+pc}, {X}, s{sTx} offen offset:{pc*1024} lds", f"C{c}")
                if pc == 0: a(f"s_add_u32 s{sCx}, s{sCx}, 1\ns_and_b32 s{sCx}, s{sCx}, 7")
            ops.append(f)
        return ops
    DQ = x_ops(1) + w_ops(2) + x_ops(2) + w_ops(3)
    def dma(n=1):
        for _ in range(n):
            if DQ: DQ.pop(0)()
    dma(int(OPT.get("n0", 0)))
    srd(12, WS_SIZE)
    vOA, vOG, vPb = 50, 51, 59
    a(f"""
    s_lshr_b32 s{sE}, s{sW}, 1
    s_and_b32 s{sPar}, s{sW}, 1
    s_mov_b32 s{sMask}, 0xffff0000
    s_mul_i32 s{sT2}, s{sE}, {USZ}
    s_add_u32 s{sT2}, s{sT2}, {UB0}
    v_lshl_add_u32 v{vT}, v{vL}, 3, s{sT2}
    v_mov_b32 v{vT3}, 0
    v_mov_b32 v{vT4}, 0
    ds_write_b64 v{vT}, {vr(vT3,2)}
    s_lshl2_add_u32 s{sT2}, s{sW}, {FLG}
    v_mov_b32 v58, s{sT2}
    ds_write_b32 v58, v{vT3}
    ds_write_b32 v58, v{vT3} offset:16
    s_lshl_b32 s{sT2}, s{sW}, 12
    s_add_u32 s{sT2}, s{sT2}, {TAB}
    v_add_u32 v{vTab}, s{sT2}, v{vL16}
    v_lshrrev_b32 v{vT}, 4, v{vL}
    v_lshl_add_u32 v{vPb}, v{vT}, 6, s{sT2}
    v_and_b32 v{vT}, 15, v{vL}
    v_lshlrev_b32 v{vOG}, 3, v{vT}
    v_lshlrev_b32 v{vT2}, 2, v{vT}
    v_add_u32 v{vT2}, {512-36}, v{vT2}
    v_cmp_lt_u32 vcc, 8, v{vT}
    v_add_u32 v{vT3}, {1024-96}, v{vOG}
    v_add_u32 v{vT4}, {1536-112}, v{vOG}
    v_cndmask_b32 v{vOA}, v{vT}, v{vT2}, vcc
    v_cmp_lt_u32 vcc, 11, v{vT}
    v_cmp_lt_u32 s[56:57], 13, v{vT}
    v_cvt_f32_u32 v{vOG}, v{vOG}
    v_cndmask_b32 v{vOA}, v{vOA}, v{vT3}, vcc
    v_cndmask_b32 v{vOA}, v{vOA}, v{vT4}, s[56:57]
    v_cvt_f32_u32 v{vOA}, v{vOA}
    """)
    def k_mfma(s_):
        F = 152 + 16 * (s_ & 1)
        for hh in range(2):
            for gt in range(2):
                d = 200 + 8 * hh + 4 * gt
                a(f"v_mfma_f32_16x16x32_bf16 {vr(d,4)}, {vr(F+4*hh,4)}, {vr(F+8+4*gt,4)}, {'0' if s_ == 0 else vr(d,4)}")
    UG = int(OPT.get("ug", 7))
    SP = OPT.get("sprio", 0)
    vUg, vUw, vU, sG = 30, 31, 232, 54
    def u_addr():
        a(f"""
        v_lshrrev_b32 v{vT3}, 2, v{vL}
        v_bfe_u32 v{vT4}, v{vL}, 1, 1
        v_and_b32 v{vT2}, 1, v{vL}
        v_mul_u32_u24 v{vUg}, {GS}, v{vT3}
        v_lshl_add_u32 v{vUg}, v{vT4}, 6, v{vUg}
        v_lshl_add_u32 v{vUg}, v{vT2}, 4, v{vUg}
        v_mul_u32_u24 v{vUw}, {USZ}, v{vT2}
        v_lshl_add_u32 v{vUw}, v{vT3}, 4, v{vUw}
        v_lshl_add_u32 v{vUw}, v{vT4}, 3, v{vUw}
        s_lshl_b32 s{sT}, s{sW}, 10
        s_add_u32 s{sT}, s{sT}, {UB0+480}
        v_add_u32 v{vUw}, s{sT}, v{vUw}
        s_mul_i32 s{sG}, s{sW}, {64*GS}
        s_lshr_b32 s{sT}, s{sQ}, 1
        s_lshl_b32 s{sT}, s{sT}, 7
        s_add_u32 s{sG}, s{sG}, s{sT}
        s_and_b32 s{sT}, s{sQ}, 1
        s_lshl_b32 s{sT}, s{sT}, 5
        s_add_u32 s{sG}, s{sG}, s{sT}
        s_add_u32 s{sG}, s{sG}, {XNP}
        """)
    def u_loads(emit, ks=range(4)):
        emit("s_setprio 3")
        for k in ks:
            emit(f"s_add_u32 s{sG+1}, s{sG}, {k*16*GS}")
            emit(f"buffer_load_dwordx4 {vr(vU+4*k,4)}, v{vUg}, {WS}, s{sG+1} offen sc1 {OPT.get('uf', '')}")
        emit(f"s_setprio {SP}")
    W2 = "s[92:95]"
    vW2o, vTp, sW2, sTp = 62, 63, 28, 29
    vXw, vXr_, vK, vZ, vAa, vBa, vUa, vBp, vPr, vK0, vCb = 32, 33, 34, 35, 36, 37, 38, 39, 40, 41, 42
    def late_addr():
        u_addr()
        srd(92, 1376 * 1024)
        a(f"""
        v_lshrrev_b32 v{vT}, 3, v{vL}
        v_lshlrev_b32 v{vT}, 10, v{vT}
        v_bfe_u32 v{vT2}, v{vL}, 4, 1
        v_lshlrev_b32 v{vT3}, 2, v{vT2}
        v_xor_b32 v{vT3}, v{vT3}, v{vL}
        v_and_b32 v{vT3}, 7, v{vT3}
        v_lshl_add_u32 v{vW2o}, v{vT3}, 4, v{vT}
        v_min_u32 v{vTp}, 47, v{vL}
        v_lshlrev_b32 v{vTp}, 7, v{vTp}
        s_mul_i32 s{sW2}, s{sW}, {352*1024}
        s_and_b32 s{sTp}, s{sQ}, 31
        s_mul_i32 s30, s{sTp}, 5120
        s_mulk_i32 s{sTp}, 6144
        s_add_u32 s{sTp}, s{sTp}, s{sW2}
        s_add_u32 s30, s30, s{sW2}
        s_add_u32 s30, s30, {192*1024}
        s_bfe_u32 s{sT}, s{sQ}, 0x30001
        s_lshl_b32 s{sT}, s{sT}, 7
        s_add_u32 s{sW2}, s{sW2}, s{sT}
        """)
        a(f"""
        v_lshrrev_b32 v{vT2}, 4, v{vL}
        v_and_b32 v{vT3}, 15, v{vL}
        s_lshl_b32 s{sT2}, s{sW}, 12
        s_add_u32 s{sT2}, s{sT2}, {TAB}
        v_lshl_add_u32 v{vXw}, v{vT3}, 4, s{sT2}
        v_lshl_add_u32 v{vXw}, v{vT2}, 10, v{vXw}
        s_lshl_b32 s{sT}, s{sE}, 13
        s_add_u32 s{sT}, s{sT}, {TAB}
        v_add_u32 v{vXr_}, s{sT}, v{vL16}
        s_xor_b32 s{sT2}, s{sT2}, 4096
        v_add_u32 v{vPr}, s{sT2}, v{vL16}
        v_xor_b32 v27, 4, v58
        s_mul_i32 s{sT}, s{sE}, {USZ}
        s_add_u32 s{sT}, s{sT}, {UB0+256}
        s_lshl_b32 s{sT2}, s{sPar}, 8
        v_lshl_add_u32 v{vBa}, v{vT3}, 5, s{sT}
        v_lshl_add_u32 v{vUa}, v{vT2}, 3, v{vBa}
        v_lshlrev_b32 v{vT3}, 4, v{vT2}
        v_add_u32 v{vBa}, v{vT3}, v{vBa}
        v_subrev_u32 v{vBa}, s{sT2}, v{vBa}
        v_bfe_u32 v{vT2}, v{vL}, 2, 2
        v_sub_u32 v{vT4}, 0, v{vT2}
        v_and_b32 v{vT4}, 3, v{vT4}
        v_mul_u32_u24 v{vAa}, 4160, v{vT4}
        v_min_u32 v{vT2}, 1, v{vT2}
        v_lshlrev_b32 v{vT2}, 3, v{vT2}
        v_sub_u32 v{vAa}, v{vAa}, v{vT2}
        v_sub_u32 v{vAa}, v{vAa}, v{vT3}
        v_and_b32 v{vT2}, 3, v{vL}
        v_lshl_add_u32 v{vAa}, v{vT2}, 3, v{vAa}
        s_mul_i32 s{sT}, s{sE}, 16640
        s_add_u32 s{sT}, s{sT}, {CB0}
        v_mov_b32 v{vCb}, s{sT}
        s_add_u32 s{sT2}, s{sT2}, s{sT}
        s_add_u32 s{sT2}, s{sT2}, {32+32-8}
        v_add_u32 v{vAa}, s{sT2}, v{vAa}
        v_lshrrev_b32 v{vT3}, 2, v{vL}
        v_lshl_add_u32 v{vBp}, v{vT2}, 4, v{vT3}
        v_lshlrev_b32 v{vBp}, 2, v{vBp}
        s_lshl_b32 s{sT2}, s{sPar}, 11
        s_add_u32 s{sT2}, s{sT2}, s{sT}
        s_add_u32 s{sT2}, s{sT2}, 32
        v_add_u32 v{vK}, s{sT2}, v{vL16}
        v_bfe_u32 v{vZ}, v{vL}, 3, 2
        v_mul_u32_u24 v{vZ}, 4160, v{vZ}
        v_and_b32 v{vT4}, 7, v{vL}
        v_lshl_add_u32 v{vZ}, v{vT4}, 2, v{vZ}
        v_add_u32 v{vZ}, s{sT}, v{vZ}
        s_lshl2_add_u32 s{sT}, s{sE}, {K0A}
        v_mov_b32 v{vK0}, s{sT}
        v_and_b32 v{vT4}, 1, v{vL}
        v_cmp_eq_u32 s[58:59], 1, v{vT4}
        v_cmp_le_u32 s[56:57], 32, v{vL}
        """)
    if "la0" in OPT: late_addr()
    def piece(p):
        rg, off = SHARED['LOC'][p]
        a(f"s_add_u32 m0, s{sLA if rg == 'A' else sLB}, {off}\ns_add_u32 s44, s{sW2}, {8192*p}")
        a(f"buffer_load_dwordx4 v{vW2o}, {W2}, s44 offen lds", "P")
        if "dum" in OPT:
            if p == 0 and OPT["dum"] == "z":
                for r in range(152, 184): a(f"v_mov_b32 v{r}, 0")
            if p == 0 and OPT["dum"] == "r":
                for r in range(120, 152): a(f"v_mov_b32 v{r}, 0")
            for k in range(2):
                a(f"v_mfma_f32_32x32x16_bf16 v[{184+16*k}:{199+16*k}], v[{152+4*((2*p+k)%8)}:{155+4*((2*p+k)%8)}], v[{152+4*((2*p+k+3)%8)}:{155+4*((2*p+k+3)%8)}], v[{184+16*k}:{199+16*k}]")
    pn = [0]
    PE = int(OPT.get("pe", 0))
    def pieces(n):
        while pn[0] < n: piece(pn[0]); pn[0] += 1
    def touch(half):
        if half: a(f"v_min_u32 v{vTp}, {39*128}, v{vTp}")
        a(f"buffer_load_dword v29, v{vTp}, {W2}, s{sTp+half} offen", "tp")
    TP0, TP1 = int(OPT.get("tp0", 6)), int(OPT.get("tp1", 8))
    PR, PB, FR, KT, KA = 64, 72, 152, 200, 216
    a("s_waitcnt lgkmcnt(0)")
    a.lg = []
    assert int(OPT.get("nkb", 8)) in (7, 8)
    BP = int(OPT.get("bp", 360))
    NKB = int(OPT.get("nkb", 8))
    a.metro = ([int(OPT.get("bb0", 850)), int(OPT.get("b01", 350))] + [int(OPT.get("bq", 440))] * 3 + [BP] * 3 + [BP // 2, 3 * BP // 4])[:NKB]
    a.cost = 0
    uq = list(range(4))
    def on_bar(left):
        nb = NKB - 1 - left
        if nb in (0, 2, 5): stamp()
        if nb == 0: a(f"s_setprio {SP}")
        if nb == TP0: touch(0)
        if nb == TP1: touch(1)
        if nb >= 6: pieces(min(PE, {6: 4, 7: 11}.get(nb, 15)))
        if nb >= UG:
            for _ in range(int(OPT.get("un", 4))):
                if uq: u_loads(lambda t: a(t, "u"), [uq.pop(0)])
    a.on_bar = on_bar
    def pre_bar(left):
        nb = NKB - 1 - left
        if nb >= int(OPT.get("dfl", 1)): dma(99)
        a.wait(vm=f"C{nb}")
    a.pre_bar = pre_bar
    if 'la0' in OPT: a.on_gap = dma
    a.gap_len = int(OPT.get("dg", 32))
    a(f"""
    s_lshl_b32 s{sT}, s{sLdt}, 16
    s_and_b32 s{sT2}, s{sLdt}, s{sMask}
    s_cmp_eq_u32 s{sE}, 0
    s_cselect_b32 s{sT}, s{sT}, s{sT2}
    v_mov_b32 v{vT}, {LOG2E:#x}
    v_mul_f32 v{vT}, s{sT}, v{vT}
    v_exp_f32 v{vT}, v{vT}
    """)
    a.wait(vm="par")
    stamp()
    for k in range(6): a(f"v_lshlrev_b32 v{vPar+k}, 16, v{vPar+k}")
    TM = 136
    a(f"""
    v_cvt_pk_bf16_f32 v{vT}, v{vT}, v{vT}
    v_lshlrev_b32 v{vT}, 16, v{vT}
    v_mul_f32 v{PR}, v{vPar}, v{vT}
    v_mul_f32 v{PR+1}, v{vPar+1}, v{vT}
    v_mul_f32 v{vPar+2}, v{vPar+2}, v{vT}
    v_mul_f32 v{vPar+3}, v{vPar+3}, v{vT}
    v_mul_f32 v{PR}, {LOG2E:#x}, v{PR}
    v_mul_f32 v{PR+1}, 0.15915494, v{PR+1}
    v_rndne_f32 v{vT}, v{PR+1}
    v_sub_f32 v{PR+1}, v{PR+1}, v{vT}
    """)
    cmul(PR + 2, vPar + 4, vPar + 2)
    for i, l in enumerate((128, 256)):
        a(f"v_mul_f32 v{TM+4*i}, {fl(l)}, v{PR}\nv_mul_f32 v{TM+4*i+1}, {fl(l)}, v{PR+1}")
    for i in range(2): a(f"v_fract_f32 v{TM+4*i+1}, v{TM+4*i+1}\nv_exp_f32 v{TM+4*i}, v{TM+4*i}")
    for i in range(2): a(f"v_cos_f32 v{TM+4*i+2}, v{TM+4*i+1}\nv_sin_f32 v{TM+4*i+3}, v{TM+4*i+1}")
    a(f"ds_write_b128 v{vTab}, {vr(PR,4)}", "pw")
    a(f"""
    v_mul_f32 v{TM+2}, v{TM+2}, v{TM}
    v_mul_f32 v{TM+3}, v{TM+3}, v{TM}
    v_mul_f32 v{PR+6}, v{TM+6}, v{TM+4}
    v_mul_f32_e64 v{PR+7}, -v{TM+7}, v{TM+4}
    """)
    cmul(PR + 4, PR + 2, TM + 2)
    a(f"ds_write_b128 v{vTab}, {vr(PR+4,4)} offset:1024", "pw")
    def p_reads(s_):
        for j in range(4):
            for k in range(2):
                a(f"ds_read_b128 {vr(PB+32*(s_&1)+8*j+4*k,4)}, v{vPb} offset:{256*s_+16*j+1024*k}", f"pb{s_}")
    p_reads(0)
    a.on_gap = dma
    if "la0" not in OPT: late_addr()
    for s_ in range(4):
        if s_ < 3: p_reads(s_ + 1)
        a.wait(lg=f"pb{s_}")
        if s_ == 3: a(f"s_load_dwordx2 {sr(sTag,2)}, s[8:9], 128")
        F = FR + 16 * (s_ & 1)
        for jp in range(2):
            js = (2 * jp, 2 * jp + 1)
            P = lambda j: PB + 32 * (s_ & 1) + 8 * j
            T = lambda j, w_: TM + 8 * (j & 1) + 4 * w_
            for j in js:
                for w_, o in enumerate((vOA, vOG)):
                    a(f"v_mul_f32 v{T(j,w_)}, v{P(j)}, v{o}\nv_mul_f32 v{T(j,w_)+1}, v{P(j)+1}, v{o}")
            for j in js:
                a(f"v_fract_f32 v{T(j,0)+1}, v{T(j,0)+1}")
                for w_ in range(2): a(f"v_exp_f32 v{T(j,w_)}, v{T(j,w_)}")
            for j in js:
                for w_ in range(2):
                    a(f"v_cos_f32 v{T(j,w_)+2}, v{T(j,w_)+1}\nv_sin_f32 v{T(j,w_)+3}, v{T(j,w_)+1}")
            for j in js:
                a(f"v_mul_f32 v{T(j,0)+2}, v{T(j,0)+2}, v{T(j,0)}\nv_mul_f32_e64 v{T(j,0)+3}, -v{T(j,0)+3}, v{T(j,0)}")
                a(f"v_mul_f32 v{T(j,1)+2}, v{T(j,1)+2}, v{T(j,1)}\nv_mul_f32 v{T(j,1)+3}, v{T(j,1)+3}, v{T(j,1)}")
            for j in js:
                a(f"v_cvt_pk_bf16_f32 v{F+j}, v{T(j,0)+2}, v{T(j,0)+3}")
                cmul(T(j, 0), T(j, 0) + 2, P(j) + 6)
                cmul(T(j, 1), T(j, 1) + 2, P(j) + 2)
                a(f"v_cvt_pk_bf16_f32 v{F+4+j}, v{T(j,0)}, v{T(j,0)+1}")
                cmul(T(j, 0) + 2, T(j, 1) + 2, P(j) + 4)
                a(f"v_cvt_pk_bf16_f32 v{F+8+j}, v{T(j,1)}, v{T(j,1)+1}")
                a(f"v_cvt_pk_bf16_f32 v{F+12+j}, v{T(j,0)+2}, v{T(j,0)+3}")
            if jp == 0 and s_ > 0: k_mfma(s_ - 1)
    k_mfma(3)
    sys.stderr.write(f"metronome left {a.metro} cost {a.cost}\n")
    SW = int(OPT.get("sw", 0))
    while a.metro: a.tick()
    a.metro = None
    stamp()
    a(f"s_setprio {OPT.get('xprio', 0)}")
    for t in range(4): a(f"ds_write_b128 v{vXw}, {vr(KT+4*t,4)} offset:{256*t}")
    if NKB == 10: a("ds_write_b32 v58, v58 offset:16")
    a(f"s_waitcnt lgkmcnt(0)\ns_cmp_eq_u32 s{sTag}, 0\ns_cbranch_scc1 S_tagslow\nS_tagok:")
    stamp()
    if NKB < 10:
        a("s_barrier")
        pieces(min(PE, {6: 4, 7: 11}.get(NKB, 15)))
        if TP1 == NKB: touch(1)
        if SW:
            assert NKB == 8
            pieces(SW)
            a(f"s_barrier\ns_setprio {OPT.get('xp2', 3)}")
    else:
        a("""
        S_xw:
        ds_read_b32 v28, v27 offset:16
        s_waitcnt lgkmcnt(0)
        v_readfirstlane_b32 s44, v28
        s_cmp_eq_u32 s44, 0
        s_cbranch_scc1 S_xw
        """)
    stamp()
    NREST = max(0, 10 - NKB - 2)
    a(f"s_cmp_lg_u32 s{sPar}, 0\ns_cbranch_scc1 S_par1")
    KP = 64
    PK = 88
    K = lambda i: KA + i
    cnt = [0]
    CBAR = [int(x) for x in OPT.get('cbar', '2,5,6,7').split(',')]
    def packs(run, k):
        for cp in range(4):
            for j in range(4): a(f"v_cvt_pk_bf16_f32 v{PK+16*run+4*cp+j}, v{k[cp+2*j]}, v{k[cp+2*j+1]}")
            if cnt[0] in CBAR[:NREST]: a("s_barrier")
            cnt[0] += 1
            a(f"ds_write_b128 v{vK}, {vr(PK+16*run+4*cp,4)} offset:{4160*cp+1024*run}")
            if SW: pieces(min(24, pn[0] + int(OPT.get("swi", 2))))
    hist0 = list(a.hist); pn0 = pn[0]; vm0 = list(a.vm)
    for q in range(3):
        a(f"ds_read_b128 {vr(KA+4*q,4)}, v{vXr_} offset:{1024*q}\nds_read_b128 {vr(KP+4*q,4)}, v{vXr_} offset:{TSZ+1024*q}")
    a(f"""
    v_mov_b32 v{vT4}, 0
    ds_write_b32 v{vZ}, v{vT4}
    s_waitcnt lgkmcnt(1)
    """)
    for j in range(12): a(f"v_add_f32 v{KA+j}, v{KA+j}, v{KP+j}")
    a(f"""
    v_cndmask_b32 v{K(1)}, v{K(1)}, v{K(0)}, s[56:57]
    v_cndmask_b32 v{K(3)}, v{K(3)}, v{K(4)}, s[56:57]
    v_cndmask_b32 v{K(5)}, v{K(5)}, v{K(4)}, s[56:57]
    v_cndmask_b32 v{K(7)}, v{K(7)}, v{K(8)}, s[56:57]
    v_mov_b32 v{K(12)}, v{K(8)}
    v_mov_b32 v{K(13)}, v{K(8)}
    s_mov_b64 exec, 1
    ds_write_b32 v{vK0}, v{K(0)}
    v_mov_b32 v{K(0)}, 0
    s_mov_b64 exec, -1
    v_mov_b32_dpp v{K(12)}, v{K(1)} wave_shl:1 row_mask:0xf bank_mask:0xf
    v_mov_b32_dpp v{K(13)}, v{K(2)} wave_shl:1 row_mask:0xf bank_mask:0xf
    """)
    packs(1, [K(9)] * 3 + [K(10)] * 3 + [K(11)] * 5)
    packs(0, [K(i) for i in range(9)] + [K(12), K(13)])
    a(f"""
    s_mov_b64 exec, 1
    ds_write_b32 v{vCb}, v{PK} offset:{2*4160+28}
    ds_write_b32 v{vCb}, v{PK+4} offset:{3*4160+28}
    s_mov_b64 exec, -1
    s_branch S_parj
    S_par1:
    """)
    a.hist = hist0; cnt[0] = 0; pn[0] = pn0; a.vm = vm0
    a(f"ds_read_b128 {vr(KA+12,4)}, v{vXr_} offset:3072\nds_read_b128 {vr(KP,4)}, v{vXr_} offset:{TSZ+3072}\ns_waitcnt lgkmcnt(0)")
    for j in range(4): a(f"v_add_f32 v{KA+12+j}, v{KA+12+j}, v{KP+j}")
    a(f"v_cndmask_b32 v{K(0)}, v{K(12)}, v{K(13)}, s[58:59]\nv_cndmask_b32 v{K(1)}, v{K(14)}, v{K(15)}, s[58:59]")
    packs(0, [K(12)] * 4 + [K(0)] + [K(13)] * 6)
    packs(1, [K(14)] * 4 + [K(1)] + [K(15)] * 6)
    a("S_parj:")
    a.lg = []
    a(f"""
    s_lshl_b32 s{sT}, s{sD}, 16
    s_and_b32 s{sT2}, s{sD}, s{sMask}
    s_cmp_eq_u32 s{sE}, 0
    s_cselect_b32 s{sD}, s{sT}, s{sT2}
    s_lshl1_add_u32 s{sT}, s{sQ}, s{sE}
    s_mul_i32 s{sT}, s{sT}, {GC}
    s_add_u32 s{sT}, s{sT}, {Y2}
    s_add_u32 s{sT2}, s{sT}, 4096
    s_mov_b32 s{sCnt}, 0
    """)
    AS, BS, YA, OV, UU, KD = [64, 128], [96, 160], 192, 10, 2, 26
    for k in range(4): a(f"v_mov_b32 v{OV+4*k+2}, s{sTag}\nv_mov_b32 v{OV+4*k+3}, s{sTag+1}")
    stamp()
    CE = "ce" in OPT
    if not CE:
        if not SW: a("s_barrier")
        while uq: u_loads(lambda t: a(t, "u"), [uq.pop(0)])
        if TP1 == 9: touch(1)
        if TP1 > 9: pieces(TP1); touch(1)
        if "gp" not in OPT: pieces(24)
    assert not uq
    a.wait(vm="u")
    a("S_uchk:")
    a(f"v_cmp_ne_u64 vcc, {sr(sTag,2)}, {vr(vU+2,2)}")
    for k in range(1, 4): a(f"v_cmp_ne_u64 s[{42+2*k}:{43+2*k}], {sr(sTag,2)}, {vr(vU+4*k+2,2)}")
    for k in range(1, 4): a(f"s_or_b64 vcc, vcc, s[{42+2*k}:{43+2*k}]")
    a(f"s_cbranch_vccnz S_uslow\nS_uok:\ns_mov_b32 s{sCnt}, 0")
    stamp()
    for k in range(4): a(f"ds_write_b64 v{vUw}, {vr(vU+4*k,2)} offset:{256*k}")
    a.wait(vm="P", lg=0)
    a(f"s_setprio {OPT.get('cprio', 1)}\ns_barrier")
    a.lg = []
    if CE: pieces(int(OPT.get("npre", 8)))
    PG, CBI = int(OPT.get("pg", 3)), int(OPT.get("cbi", 90))
    stamp()
    def reads(rho):
        s_ = rho & 1; L = []
        for j in range(8):
            L.append((f"ds_read_b128 {vr(BS[s_]+4*j,4)}, v{vBa} offset:{512*j+64*(3-rho)}", f"f{rho}_{j}"))
            L.append((f"ds_read_b64_tr_b16 {vr(AS[s_]+4*j,2)}, v{vAa} offset:{64*(8*j+rho)+8}", f"f{rho}_{j}"))
            L.append((f"ds_read_b64_tr_b16 {vr(AS[s_]+4*j+2,2)}, v{vAa} offset:{64*(8*j+rho)}", f"f{rho}_{j}"))
        return L
    for t, tag in reads(0): a(t, tag)
    first = [True] * 8
    def cm(rho, p, q):
        a.wait(lg=f"f{rho}_{max(p,q)}")
        ct = p + q; s_ = rho & 1
        a(f"v_mfma_f32_16x16x32_bf16 {vr(YA+4*ct,4)}, {vr(AS[s_]+4*p,4)}, {vr(BS[s_]+4*q,4)}, {'0' if first[ct] else vr(YA+4*ct,4)}")
        first[ct] = False
    for rho in range(3):
        if rho == int(OPT.get("cp3", 0)): a("s_setprio 3")
        nxt = reads(rho + 1)
        for n, (p, q) in enumerate(sorted([(p, q) for p in range(8) for q in range(8) if p + q <= 7], key=lambda x: max(x))):
            cm(rho, p, q)
            if n >= (int(OPT.get('cn0', 8)) if rho == 0 else int(OPT.get('cn', 8))) and nxt:
                t, tag = nxt.pop(0); a(t, tag)
            if n == 35 and 'cw' in OPT: a.wait(lg=0)
            if CE:
                g = 36 * rho + n
                if g % PG == 0 and pn[0] < 24: pieces(pn[0] + 1)
                if g == CBI:
                    assert pn[0] == 24
                    a.wait(vm=0)
                    a("s_barrier")
        assert not nxt
    a(f"s_cmp_lg_u32 s{sPar}, 0\ns_cbranch_scc1 S_conv1")
    keep = (list(a.hist), list(a.lg), nstamp[0])
    ZB, PB_ = 64, 80
    for par, (KEEP, SEND) in enumerate((((0, 3, 4, 7), (1, 2, 5, 6)), ((1, 2, 5, 6), (0, 3, 4, 7)))):
        if par: a("S_conv1:")
        a.hist, a.lg, nstamp[0] = list(keep[0]), list(keep[1]), keep[2]
        side = [lambda: a(f"ds_read_b32 v{KD}, v{vK0}", "uu")]
        side += [lambda k=k, ct=ct: a(f"ds_read_b64 {vr(UU+2*k,2)}, v{vUa} offset:{480-256+512*ct}", "uu") for k, ct in enumerate(KEEP)]
        side += [None] * 5
        side += [lambda: (a.wait(lg="uu"), a(f"v_add_f32 v{KD}, s{sD}, v{KD}"))]
        side += [lambda j=j: a(f"v_lshlrev_b32 v{ZB+2*j}, 16, v{UU+j}\nv_and_b32 v{ZB+2*j+1}, s{sMask}, v{UU+j}") for j in range(8)]
        order = [(p, ct - p) for ct in SEND + KEEP for p in range(ct + 1)]
        ends = {}
        for n, (p, q) in enumerate(order): ends[p + q] = n
        wq = list(SEND)
        for n, (p, q) in enumerate(order):
            cm(3, p, q)
            if wq and n >= ends[wq[0]] + 5:
                ct = wq.pop(0); a(f"ds_write_b128 v{vTab}, {vr(YA+4*ct,4)} offset:{1024*SEND.index(ct)}", "sw")
                if not wq: a(f"ds_write_b32 v58, v58", "sw")
            elif side:
                t = side.pop(0)
                if t: t()
            if n == 31:
                assert not wq and not side
                a("ds_read_b32 v28, v27", "pr")
                for k in range(4): a(f"ds_read_b128 {vr(PB_+4*k,4)}, v{vPr} offset:{1024*k}", "pr")
        stamp()
        a.wait(lg=0)
        a(f"""
        v_cmp_eq_u32 vcc, 0, v28
        s_cbranch_vccz S_pok{par}
        S_pw{par}:
        ds_read_b32 v28, v27
        """)
        for k in range(4): a(f"ds_read_b128 {vr(PB_+4*k,4)}, v{vPr} offset:{1024*k}")
        a(f"""
        s_waitcnt lgkmcnt(0)
        v_cmp_eq_u32 vcc, 0, v28
        s_cbranch_vccnz S_pw{par}
        S_pok{par}:
        """)
        a.lg = []
        for j in range(16): a(f"v_fmac_f32 v{PB_+j}, v{KD}, v{ZB+j}")
        a("s_setprio 3")
        for k, ct in enumerate(KEEP):
            for j in range(4): a(f"v_add_f32 v{PB_+4*k+j}, v{PB_+4*k+j}, v{YA+4*ct+j}")
            for j in range(2): a(f"v_cvt_pk_bf16_f32 v{UU+2*k+j}, v{PB_+4*k+2*j}, v{PB_+4*k+2*j+1}")
            for j in range(2): a(f"ds_bpermute_b32 v{OV+4*k+j}, v{vBp}, v{UU+2*k+j}", f"bp{k}")
        for k, ct in enumerate(KEEP):
            a.wait(lg=f"bp{k}")
            a(f"buffer_store_dwordx4 {vr(OV+4*k,4)}, v{vL16}, {WS}, s{sT if ct < 4 else sT2} offen offset:{1024*(ct&3)} sc1")
        if par == 0: a("s_branch S_done")
    a("S_done:")
    stamp()
    if STAMPS:
        a("s_waitcnt vmcnt(0)"); stamp()
    if "wb" in OPT:
        a(f"s_lshr_b32 s{sT}, s2, 3\ns_or_b32 s{sT}, s{sT}, s{sW}\ns_cmp_lg_u32 s{sT}, 0\ns_cbranch_scc1 S_nowb\nbuffer_wbl2 sc1\nS_nowb:")
    stamp_flush(WS, f"s{sW}", vT)
    a("s_endpgm")
    tag_slow("S", sTag, 8, [192], vNon, sCnt)
    a.raw(f"""S_uslow:
{retry_mark(4)}  s_add_u32 s{sCnt}, s{sCnt}, 1
  s_cmp_ge_u32 s{sCnt}, {SPIN}
  s_cbranch_scc1 S_uok
  s_sleep 4""")
    u_loads(lambda t: a.raw("  " + t))
    a.raw("  s_waitcnt vmcnt(0)\n  s_branch S_uchk")

hdr = open("cdna_kernels/" + NAME + ".s.ref").read().split("\n")
top = [l for l in hdr if l.startswith(";") and "@launch" not in l][:16]
a.raw("\n".join(top))
a.raw("; @launch grid=(256,1,1) block=(512,1,1) lds=163840")
a.raw(""";
; out = x + conv(K, LN(x)) + LN(x)*Dskip + silu(LN(x) w1) w2, one launch, one 512-thread workgroup per CU.
; removed by a rank-1 MFMA with the column sums of w1, the scale in the SiLU epilogue), then a 64x64 tile of h*w2 with K
; (tap index rounded to bf16 as in the reference), its causal convolution as Toeplitz MFMAs, and part of the tile loads.
; (a clock value read once and published in d_debug); xn, the row statistics and the conv result are written through
; (sc1) and read with sc1.  h stays in the die's L2 only after the 16 workgroups of a row block have seen that they all
; report the same XCC id, otherwise it is written through as well.  Every wait on another workgroup is bounded.""")
a.raw(f""".amdgcn_target "amdgcn-amd-amdhsa--gfx950"
.text
.globl {NAME}_kernel
.p2align 8
.type {NAME}_kernel,@function
{NAME}_kernel:""")
stamp()
NST[0] = 14
a(f"""
v_lshrrev_b32 v1, 6, v0
s_cmp_ge_u32 s2, 256
s_cbranch_scc1 L_exit
v_readfirstlane_b32 s32, v1
s_and_b32 s3, s2, 7
s_lshl_b32 s3, s3, 5
s_lshr_b32 s96, s2, 3
s_add_u32 s3, s3, s96
s_cmp_lt_u32 s32, 4
s_cbranch_scc1 L_gemm
""")
if "nocpf" not in OPT:
    a(f"""
    s_getpc_b64 s[94:95]
    s_lshl_b32 s96, s96, 10
    v_and_b32 v255, 7, v0
    v_lshl_add_u32 v255, v255, 7, s96
    v_min_u32 v255, L_exit-{NAME}_kernel-128, v255
    global_load_dword v254, v255, s[94:95]
    """)
EV[1] = False
ssm = ssm_role()
next(ssm)
EV[1] = True
a("L_gemm:")
a.hist = []; a.vm = []; a.lg = []
if STAMPS: nstamp[0] = 1
gemm_role()
a.raw(".p2align 6")
a("L_ssm:")
NST[0] = 14
EV[1] = False
for _ in ssm: pass
a("L_exit:\ns_endpgm")
a.raw(f""".section .rodata,"a"
.p2align 6
.amdhsa_kernel {NAME}_kernel
  .amdhsa_next_free_vgpr 256
  .amdhsa_next_free_sgpr 102
  .amdhsa_accum_offset 256
  .amdhsa_group_segment_fixed_size 0
  .amdhsa_kernarg_size 120
  .amdhsa_user_sgpr_count 2
  .amdhsa_user_sgpr_kernarg_segment_ptr 1
  .amdhsa_system_sgpr_workgroup_id_x 1
.end_amdhsa_kernel""")
sys.stdout.write(a.text())
sys.stderr.write(f"nops inserted: {a.nops}\n")
```

```python
import sys, struct
from asmlib import Asm, vr, sr

NAME = "parallel_sum__ssm_conv_s4__dense_activation_silu__prompt"
OPT = {x.split("=")[0][2:]: (x.split("=")[1] if "=" in x else "1") for x in sys.argv[1:] if x.startswith("--")}
OPT.setdefault("ol", "nt")
STAMPS = "stamps" in OPT
SPIN = int(OPT.get("spin", 100000))
PLF = OPT.get("plf", "sc1").replace("_", " ")
FSF = OPT.get("fsf", "sc1").replace("_", " ")
M1, M2 = OPT.get("m1", "81"), OPT.get("m2", "81")
LOCAL = M1 == "81" and M2 == "81" and "nolocal" not in OPT
HSF = "" if LOCAL else "sc1"

HROW = 88 * 1024
H_SIZE = 64 * HROW
ST = 0x580000
FH = 0x590000
GS = 18432
GC = 4608
FY = 0x5C0000
XNP = 0x600000
XS = 9216
FX = 0x5A0000
FG = 0x5B0000
Y2 = 0xA80000
WS_SIZE = 0x1000000
STAMP_OFF = 0xF80000
LOG2E = 0x3fb8aa3b
fl = lambda x: "0x%08x" % struct.unpack("<I", struct.pack("<f", x))[0]

a = Asm()
SHARED = {}
nstamp = [0]
EV = [0, True]
NST = [16]
def stamp(force=False):
    if "padev" in OPT and EV[1]:
        if EV[0] == int(OPT["padev"]): a("s_memrealtime s[86:87]")
        EV[0] += 1
    if STAMPS and nstamp[0] < NST[0] and (force or ("cs" not in OPT and "g2" not in OPT and "ss" not in OPT) or nstamp[0] in (0, 13) or ("g2" in OPT and nstamp[0] >= 7)):
        i = nstamp[0]; nstamp[0] += 1
        a(f"s_memtime s[{60+2*i}:{61+2*i}]")
def stamp_flush(wsrd, wave_s, vt, row=0):
    if not STAMPS: return
    n = nstamp[0]
    a("s_memrealtime s[98:99]")
    a("s_waitcnt lgkmcnt(0)")
    a(f"s_lshl_b32 s96, s2, 2\ns_add_u32 s96, s96, {wave_s}\ns_lshl_b32 s96, s96, 7\ns_add_u32 s96, s96, {STAMP_OFF+row*512}")
    a("s_mov_b64 exec, 1")
    for i in range(n):
        a(f"v_mov_b32 v{vt}, s{60+2*i}")
        a(f"buffer_store_dword v{vt}, off, {wsrd}, s96 offset:{4*i}")
    a(f"v_mov_b32 v{vt}, s97\nbuffer_store_dword v{vt}, off, {wsrd}, s96 offset:116")
    a(f"v_mov_b32 v{vt}, s100\nbuffer_store_dword v{vt}, off, {wsrd}, s96 offset:120")
    a(f"v_mov_b32 v{vt}, s98\nbuffer_store_dword v{vt}, off, {wsrd}, s96 offset:124")
    nstamp[0] = 0
def retry_mark(bit):
    return f"  s_add_u32 s97, s97, {1 << bit}\n" if STAMPS else ""

def srd(base, size):
    a(f"s_mov_b32 s{base+2}, {size}\ns_mov_b32 s{base+3}, 0x20000")

def cmul(d, x, y):
    a(f"v_mul_f32 v{d}, v{x+1}, v{y+1}")
    a(f"v_mul_f32 v{d+1}, v{x+1}, v{y}")
    a(f"v_fma_f32 v{d}, v{x}, v{y}, -v{d}")
    a(f"v_fmac_f32 v{d+1}, v{x}, v{y+1}")

def tag_slow(pfx, sTag, dbg, offs, vt, sCnt):
    a.raw(f"{pfx}_tagslow:")
    if STAMPS: a.raw(retry_mark(0).rstrip("\n"))
    for o in offs:
        a.raw(f"  s_load_dwordx2 {sr(sTag,2)}, s[{dbg}:{dbg+1}], {o}\n  s_waitcnt lgkmcnt(0)\n  s_cmp_lg_u32 s{sTag}, 0\n  s_cbranch_scc1 {pfx}_tagok")
    a.raw(f"""  s_mov_b32 s{sCnt}, 0
{pfx}_tagloop:
  buffer_load_dwordx2 {vr(vt,2)}, off, s[{dbg}:{dbg+3}], 0 sc1
  s_add_u32 s{sCnt}, s{sCnt}, 1
  s_waitcnt vmcnt(0)
  v_readfirstlane_b32 s{sTag}, v{vt}
  v_readfirstlane_b32 s{sTag+1}, v{vt+1}
  s_nop 3
  s_cmp_lg_u32 s{sTag}, 0
  s_cbranch_scc1 {pfx}_tagok
  s_cmp_lt_u32 s{sCnt}, {SPIN}
  s_cbranch_scc1 {pfx}_tagloop
  s_branch {pfx}_tagok""")

def gemm_role():
    X, W1, WS, W2, OUT, DBG, HS = "s[4:7]", "s[8:11]", "s[12:15]", "s[16:19]", "s[20:23]", "s[24:27]", "s[28:31]"
    sP = 3
    sW, sRB, sM, sXB, sWB, sC, sTx, sT, sLA, sLB, sW2, sHS, sHL = range(32, 45)
    sT2, sT3, sL2e, sCnt, sO, sTag, sFl, sRT = 45, 46, 47, 48, 49, 50, 52, 53
    sB1, sMask, sCG, sXcc, sFar, sHS2, sIa = 54, 55, 56, 57, 58, 59, 101
    sY, sRet = sFl, sFar
    sMean, sNeg = 88, 92
    sXn, sSt, sCx = 89, 90, 96
    SROW, STG = 1056, 98304
    vL = 1
    vXo, vWo, vXr, vWr, vW2o, vW2r, vL16 = 2, 6, 9, 13, 17, 18, 22
    vT, vNon, vCs, vT2, vC2, vSa = 23, 24, 26, 29, 30, 31
    vSt, vNeg = 32, 36
    HALF, vSw, vSr, vIa, vT3 = 88, 92, 93, 94, 95
    ACC1, WF, CSA, XF, CSF = 40, 96, 144, 192, 168
    LX, LF, LG, vId = 224, 232, 248, 252
    ACC2, STASH, HB, HD = 32, 96, 192, 8
    LB0 = 49152
    FARAWAY = 0x40000000
    IP = int(OPT.get('ip', 1))
    a(f"""
    s_load_dwordx2 s[4:5], s[0:1], 0
    s_load_dwordx2 s[8:9], s[0:1], 80
    s_load_dwordx2 s[24:25], s[0:1], 104
    s_load_dwordx2 s[12:13], s[0:1], 112
    s_load_dwordx2 s[16:17], s[0:1], 88
    s_load_dwordx2 s[20:21], s[0:1], 96
    v_and_b32 v{vL}, 63, v0
    s_lshr_b32 s{sRB}, s{sP}, 4
    s_and_b32 s{sM}, s{sP}, 15
    s_and_b32 s{sC}, s{sP}, 7
    s_mov_b32 s{sCx}, s{sC}
    v_lshlrev_b32 v{vL16}, 4, v{vL}
    s_lshl2_add_u32 s{sCnt}, s{sP}, s{sW}
    s_lshl_b32 s{sCnt}, s{sCnt}, 11
    s_setprio 2
    """)
    if STAMPS: a("s_memrealtime s[98:99]")
    srd(4, 2048 * 1024); srd(8, 512 * 2752)
    a(f"""
    v_lshrrev_b32 v{vT}, 3, v{vL}
    v_lshlrev_b32 v{vT}, 10, v{vT}
    v_lshrrev_b32 v{vT2}, 4, v{vL}
    v_xor_b32 v{vT2}, v{vT2}, v{vL}
    v_and_b32 v{vT2}, 7, v{vT2}
    v_lshl_add_u32 v{vXo}, v{vT2}, 4, v{vT}
    v_xor_b32 v{vXo+1}, 64, v{vXo}
    v_add_u32 v{vXo+2}, {2*7168}, v{vXo}
    v_add_u32 v{vXo+3}, {3*7168}, v{vXo+1}
    v_add_u32 v{vXo+1}, 7168, v{vXo+1}
    s_movk_i32 s{sT}, 5462
    s_movk_i32 s{sT2}, {2752-192}
    v_mul_u32_u24 v{vT}, s{sT}, v{vL}
    """)
    for j in range(3):
        if j: a(f"v_add_u32 v{vT}, {64*5462}, v{vT}")
        a(f"v_lshrrev_b32 v{vT2}, 16, v{vT}\nv_mad_u32_u24 v{vWo+j}, v{vT2}, s{sT2}, v{vL16}")
    a(f"""
    s_lshl2_add_u32 s{sXB}, s{sRB}, s{sW}
    s_lshl_b32 s{sXB}, s{sXB}, 15
    s_mul_i32 s{sWB}, s{sM}, 192
    s_mul_i32 s{sT}, s{sW}, {16*2752}
    s_add_u32 s{sWB}, s{sWB}, s{sT}
    s_lshr_b32 s{sO}, s{sXB}, 6
    s_and_b32 s{sW2}, s{sRB}, 1
    s_mul_i32 s{sHL}, s{sW2}, 1344
    s_add_u32 s{sHL}, s{sHL}, s{sT}
    s_mul_i32 s{sHS}, s{sW}, 11
    s_add_u32 s{sHS}, s{sHS}, s{sW2}
    s_lshl_b32 s{sHS}, s{sHS}, 15
    s_cmp_eq_u32 s{sM}, 15             ; the 16th workgroup of a row block has no GEMM1 tile: its tile loads go out of range
    s_cselect_b32 s{sXB}, {"s%d" % sHS if IP else FARAWAY}, s{sXB}
    s_cselect_b32 s{sWB}, {"s%d" % sHL if IP > 1 else FARAWAY}, s{sWB}
    s_lshl_b32 s{sLA}, s{sW}, 12
    s_mul_i32 s{sLB}, s{sW}, 3072
    s_add_u32 s{sLB}, s{sLB}, {LB0}
    s_waitcnt lgkmcnt(0)
    """)
    if STAMPS: a("s_mov_b32 s100, s98\ns_mov_b32 s97, 0")
    stamp()

    def w_ops(c):
        ops = []
        for j in range(3):
            def f(j=j):
                if j == 0:
                    a(f"s_mul_i32 s{sT2}, s{sC}, {64*2752}\ns_add_u32 m0, s{sLB}, {(c&3)*12288}\ns_add_u32 s{sT2}, s{sT2}, s{sWB}")
                a(f"buffer_load_dwordx4 v{vWo+j}, {W1}, s{sT2} offen offset:{j*1024} {OPT.get('w1f', '')} lds", f"C{c}")
                if j == 0: a(f"s_add_u32 s{sC}, s{sC}, 1\ns_and_b32 s{sC}, s{sC}, 7")
            ops.append(f)
        return ops
    def x_ops(c):
        ops = []
        for pc in range(4):
            def f(pc=pc):
                if pc == 0:
                    a(f"s_lshl_b32 s{sTx}, s{sCx}, 7\ns_add_u32 m0, s{sLA}, {(c%3)*16384}\ns_add_u32 s{sTx}, s{sTx}, s{sXB}")
                a(f"buffer_load_dwordx4 v{vXo+pc}, {X}, s{sTx} offen offset:{pc*1024} lds", f"C{c}")
                if pc == 0: a(f"s_add_u32 s{sCx}, s{sCx}, 1\ns_and_b32 s{sCx}, s{sCx}, 7")
            ops.append(f)
        return ops
    DQ = []; QT = []; QK = []
    for c in range(8):
        first = (w_ops(c), x_ops(c)) if c < 2 else (x_ops(c), w_ops(c))
        for grp_ in first:
            isx = len(grp_) == 4
            lim = -1 if c < (3 if isx else 4) else (max(1, 4 * (c - 3)) if isx else 4 * (c - 3) + 2)
            DQ += [(lim, f) for f in grp_]
            QT += [f'C{c}'] * len(grp_)
            QK += [('x' if isx else 'w') + str(c)] * len(grp_)
    def issue(n, s_=-1):
        for _ in range(n):
            if DQ and DQ[0][0] <= s_: DQ.pop(0)[1]()
    for r in range(2):
        a(f"buffer_load_dwordx4 {vr(LX+4*r,4)}, v{vL16}, {X}, s{sCnt} offen offset:{1024*r}", "xrow")
    if IP:
        a(f"s_mov_b64 s[98:99], s[4:5]\ns_cmp_eq_u32 s{sM}, 15\ns_cselect_b64 s[4:5], s[16:17], s[4:5]\ns_cselect_b64 s[8:9], s[16:17], s[8:9]")
    a(f"""
    s_getreg_b32 s{sXcc}, hwreg(HW_REG_XCC_ID, 0, 4)
    s_mov_b32 s{sB1}, 0x3f803f80
    s_mov_b32 s{sMask}, 0xffff0000
    s_mul_i32 s{sT3}, s{sW}, {2*SROW}
    s_add_u32 s{sT3}, s{sT3}, {STG}
    v_add_u32 v{vSw}, s{sT3}, v{vL16}
    v_bfe_u32 v{vT3}, v{vL}, 2, 2
    v_and_b32 v{vT}, 1, v{vL}
    v_lshl_add_u32 v{vT}, v{vT}, 2, v{vT3}
    v_mul_u32_u24 v{vT}, {SROW}, v{vT}
    v_and_b32 v{vT2}, 2, v{vL}
    v_lshl_add_u32 v{vT}, v{vT2}, 2, v{vT}
    v_lshrrev_b32 v{vT2}, 4, v{vL}
    v_lshl_add_u32 v{vT}, v{vT2}, 4, v{vT}
    s_lshl_b32 s{sT3}, s{sW}, 8
    s_add_u32 s{sT3}, s{sT3}, {STG}
    v_add_u32 v{vSr}, s{sT3}, v{vT}
    """)
    issue(7)
    a(f"""
    v_and_b32 v{vSa}, 31, v{vL}
    v_lshrrev_b32 v{vT2}, 5, v{vL}
    v_bfe_u32 v{vC2}, v{vL}, 1, 3
    v_xor_b32 v{vC2}, v{vC2}, v{vT2}
    v_lshl_add_u32 v{vC2}, v{vC2}, 4, s{sLA}
    v_lshl_add_u32 v{vC2}, v{vSa}, 7, v{vC2}
    v_bfe_u32 v{vT3}, v{vL}, 2, 2
    v_lshl_add_u32 v{vT}, v{vT2}, 3, v{vT3}
    v_mul_u32_u24 v{vT}, 192, v{vT}
    v_bfe_u32 v{vT2}, v{vL}, 4, 1
    v_lshl_add_u32 v{vT}, v{vT2}, 5, v{vT}
    v_and_b32 v{vT2}, 3, v{vL}
    v_lshl_add_u32 v{vT}, v{vT2}, 3, v{vT}
    v_add_u32 v{vT}, {LB0}, v{vT}
    """)
    for i in range(4):
        a(f"""
        s_add_u32 s{sT3}, s{sW}, {i}
        s_and_b32 s{sT3}, s{sT3}, 3
        s_lshl_b32 s{sCnt}, s{sT3}, 5
        s_mulk_i32 s{sT3}, 3072
        v_xor_b32 v{vXr+i}, s{sCnt}, v{vC2}
        v_add_u32 v{vWr+i}, s{sT3}, v{vT}
        """)
    issue(3)
    a(f"""
    v_lshrrev_b32 v{vT2}, 4, v{vL}
    """)
    srd(24, 256)
    srd(12, WS_SIZE)
    a(f"""
    v_lshrrev_b32 v{vT}, 2, v{vL}
    v_xor_b32 v{vT}, v{vT}, v{vT2}
    v_and_b32 v{vT}, 1, v{vT}
    v_add_u32 v{vT}, -1, v{vT}
    """)
    for k in range(4): a(f"v_and_b32 v{HALF+k}, s{sB1}, v{vT}")
    FILL = [u.strip() for u in f"""
    s_mov_b32 s18, {1376*1024}
    s_mov_b32 s19, 0x20000
    s_mov_b32 s22, {2048*1024}
    s_mov_b32 s23, 0x20000
    s_mov_b32 s28, s12
    s_mov_b32 s29, s13
    s_mov_b32 s30, {H_SIZE}
    s_mov_b32 s31, 0x20000
    s_mov_b32 s{sL2e}, {LOG2E:#x}
    v_lshlrev_b32 v{vSa}, 4, v{vSa}
    s_add_u32 s{sO}, s{sO}, {ST}
    v_and_b32 v{vIa}, 15, v{vL}
    v_lshlrev_b32 v{vIa}, 7, v{vIa}
    s_lshl_b32 s{sIa}, s{sRB}, 11
    s_add_u32 s{sIa}, s{sIa}, {ST}
    v_lshrrev_b32 v{vT}, 3, v{vL}
    v_lshlrev_b32 v{vT}, 10, v{vT}
    v_bfe_u32 v{vT2}, v{vL}, 4, 1
    v_lshlrev_b32 v{vT3}, 2, v{vT2}
    v_xor_b32 v{vT3}, v{vT3}, v{vL}
    v_and_b32 v{vT3}, 7, v{vT3}
    v_lshl_add_u32 v{vW2o}, v{vT3}, 4, v{vT}
    v_lshrrev_b32 v{vT}, 5, v{vL}
    v_bfe_u32 v{vT3}, v{vL}, 2, 2
    v_lshl_add_u32 v{vT}, v{vT}, 2, v{vT3}
    v_lshlrev_b32 v{vT}, 7, v{vT}
    v_lshl_add_u32 v{vT}, v{vT2}, 5, v{vT}
    v_bfe_u32 v{vT2}, v{vL}, 3, 1
    v_lshl_add_u32 v{vT}, v{vT2}, 6, v{vT}
    v_and_b32 v{vT2}, 3, v{vL}
    v_lshl_add_u32 v{vT}, v{vT2}, 3, v{vT}
    s_lshl_b32 s{sT3}, s{sW}, 5
    s_and_b32 s{sT3}, s{sT3}, 64
    v_xor_b32 v{vT}, s{sT3}, v{vT}
    v_xor_b32 v{vT2}, 64, v{vT}
    v_add_u32 v{vW2r}, s{sLA}, v{vT}
    v_add_u32 v{vW2r+1}, s{sLA}, v{vT2}
    v_add_u32 v{vW2r+2}, s{sLB}, v{vT}
    v_add_u32 v{vW2r+3}, s{sLB}, v{vT2}
    s_and_b32 s{sT3}, s{sP}, 1
    s_lshl1_add_u32 s{sRT}, s{sRB}, s{sT3}
    s_lshr_b32 s{sCG}, s{sM}, 1
    s_mul_i32 s{sW2}, s{sW}, {352*1024}
    s_lshl_b32 s{sT}, s{sCG}, 7
    s_add_u32 s{sW2}, s{sW2}, s{sT}
    s_mul_i32 s{sHL}, s{sRT}, {2*HROW}
    s_mul_i32 s{sT}, s{sW}, {22*1024}
    s_add_u32 s{sHL}, s{sHL}, s{sT}
    s_lshl_b32 s{sT3}, s{sW}, 8
    s_add_u32 s{sT3}, s{sT3}, {LB0}
    v_lshl_add_u32 v{vT2}, v{vL}, 2, s{sT3}
    v_lshl_add_u32 v{vT}, v{vL}, 2, s{sLB}
    s_lshl2_add_u32 s{sT3}, s{sRB}, s{sW}
    s_mul_i32 s{sT3}, s{sT3}, {HROW}
    s_mul_i32 s{sHS}, s{sM}, 6144
    s_add_u32 s{sHS}, s{sHS}, s{sT3}
    s_add_u32 s{sHS2}, s{sHS}, 4096
    s_cmp_ge_u32 s{sM}, 14 | s_cselect_b32 s{sHS2}, {H_SIZE}, s{sHS2}
    s_lshr_b32 s{sT3}, s{sW}, 1
    s_lshl1_add_u32 s{sT3}, s{sRB}, s{sT3}
    s_lshl4_add_u32 s{sT3}, s{sT3}, s{sM}
    s_and_b32 s{sFl}, s{sW}, 1
    s_lshl1_add_u32 s{sFl}, s{sT3}, s{sFl}
    s_lshl_b32 s{sFl}, s{sFl}, 3
    s_add_u32 s{sFl}, s{sFl}, {FH}
    s_cmp_eq_u32 s{sM}, 15 | s_cselect_b32 s{sHS}, {H_SIZE}, s{sHS} | s_cselect_b32 s{sFl}, {WS_SIZE}, s{sFl}
    """.strip().split("\n")]
    def fill_(n):
        for _ in range(n):
            if FILL: a(FILL.pop(0).replace(" | ", "\n"))

    fill_(int(OPT.get("nfill", 0)))
    keepq = [(q, t) for q, t, k in zip(DQ, QT[len(QT)-len(DQ):], QK[len(QK)-len(DQ):]) if k not in ("x1", "x2", "w2", "w3")]
    DQ[:] = [q for q, _ in keepq]; QT[:] = [t for _, t in keepq]
    a(f"s_add_u32 s{sC}, s{sC}, 2\ns_and_b32 s{sC}, s{sC}, 7\ns_add_u32 s{sCx}, s{sCx}, 2\ns_and_b32 s{sCx}, s{sCx}, 7")
    a.wait(vm="xrow")
    stamp()

    vC = CSA; S = [252, 253]; vN = 254; sR = sMean
    def dpp_reduce(fill):
        for ctl in ("row_shr:1 row_mask:0xf bank_mask:0xf bound_ctrl:0", "row_shr:2 row_mask:0xf bank_mask:0xf bound_ctrl:0",
                    "row_shr:4 row_mask:0xf bank_mask:0xf bound_ctrl:0", "row_shr:8 row_mask:0xf bank_mask:0xf bound_ctrl:0",
                    "row_bcast:15 row_mask:0xa bank_mask:0xf", "row_bcast:31 row_mask:0xc bank_mask:0xf"):
            for r in range(2):
                a(f"v_add_f32_dpp v{S[r]}, v{S[r]}, v{S[r]} {ctl}")
            for _ in range(3):
                if fill: a(fill.pop(0))
        while fill: a(fill.pop(0))
    for k in range(4):
        for r in range(2):
            a(f"v_dot2_f32_bf16 v{S[r]}, v{LX+4*r+k}, s{sB1}, {'0' if k == 0 else 'v%d' % S[r]}")
    unpack = lambda: [t for r in range(2) for k in range(4) for t in
                      (f"v_lshlrev_b32 v{LF+8*r+2*k}, 16, v{LX+4*r+k}", f"v_and_b32 v{LF+8*r+2*k+1}, s{sMask}, v{LX+4*r+k}")]
    fill = unpack()
    for _ in range(3): a(fill.pop(0))
    dpp_reduce(fill)
    for r in range(2): a(f"v_mul_f32 v{S[r]}, 0x3b000000, v{S[r]}")
    for r in range(2): a(f"v_cvt_pk_bf16_f32 v{vN+r}, -v{S[r]}, -v{S[r]}")
    for r in range(2): a(f"v_readlane_b32 s{sMean+2*r}, v{S[r]}, 63")
    for r in range(2): a(f"v_readlane_b32 s{sNeg+2*r}, v{vN+r}, 63")
    for k in range(4):
        for r in range(2):
            a(f"v_pk_add_f32 {vr(vC+8*r+2*k,2)}, {vr(LF+8*r+2*k,2)}, {sr(sMean+2*r,2)} op_sel_hi:[1,0] neg_lo:[0,1] neg_hi:[0,1]")
    for r in range(2): a(f"s_and_b32 s{sNeg+2*r}, s{sNeg+2*r}, s{sMask}")
    for r in range(2): a(f"s_or_b32 s{sNeg+2*r+1}, s{sNeg+2*r}, s{sXcc}")
    for r in range(2):
        a(f"v_pk_mul_f32 {vr(vC+8*r,2)}, {vr(vC+8*r,2)}, {vr(vC+8*r,2)}")
    for k in range(1, 4):
        for r in range(2):
            a(f"v_pk_fma_f32 {vr(vC+8*r,2)}, {vr(vC+8*r+2*k,2)}, {vr(vC+8*r+2*k,2)}, {vr(vC+8*r,2)}")
    for r in range(2): a(f"v_add_f32 v{S[r]}, v{vC+8*r}, v{vC+8*r+1}")
    fill = [f"v_pk_add_f32 {vr(LF+8*r+2*k,2)}, {vr(LF+8*r+2*k,2)}, {sr(sNeg+2*r,2)} op_sel_hi:[1,0]" for k in range(4) for r in range(2)]
    fill += [f"v_cvt_pk_bf16_f32 v{LX+4*r+k}, v{LF+8*r+2*k}, v{LF+8*r+2*k+1}" for k in range(4) for r in range(2)]
    dpp_reduce(fill)
    issue(int(OPT.get('n1', 0)))
    def rnd():
        for r in range(2): a(f"v_cvt_pk_bf16_f32 v{S[r]}, v{S[r]}, v{S[r]}")
        for r in range(2): a(f"v_lshlrev_b32 v{S[r]}, 16, v{S[r]}")
    for r in range(2): a(f"v_mul_f32 v{S[r]}, 0x3b000000, v{S[r]}")
    rnd()
    for r in range(2): a(f"v_add_f32 v{S[r]}, 0x3727c5ac, v{S[r]}")
    rnd()
    for r in range(2): a(f"v_sqrt_f32 v{S[r]}, v{S[r]}")
    rnd()
    for r in range(2): a(f"v_rcp_f32 v{S[r]}, v{S[r]}")
    for t in unpack(): a(t)
    for r in range(2): a(f"v_readlane_b32 s{sR+2*r}, v{S[r]}, 63")
    a(f"s_load_dwordx2 {sr(sTag,2)}, s[24:25], 0")
    for r in range(2):
        for k in range(4):
            a(f"v_pk_mul_f32 {vr(LF+8*r+2*k,2)}, {vr(LF+8*r+2*k,2)}, {sr(sR+2*r,2)} op_sel_hi:[1,0]")
        for k in range(4):
            a(f"v_cvt_pk_bf16_f32 v{LX+4*r+k}, v{LF+8*r+2*k}, v{LF+8*r+2*k+1}")
        a(f"ds_write_b128 v{vSw}, {vr(LX+4*r,4)} offset:{SROW*r}", "stg")
    a(f"""
    v_mov_b32 v{LG}, s{sNeg+1}
    v_mov_b32 v{LG+1}, s{sR}
    v_writelane_b32 v{LG}, s{sNeg+3}, 1
    v_writelane_b32 v{LG+1}, s{sR+2}, 1
    s_mul_i32 s{sXn}, s{sP}, {GS}
    s_lshl_b32 s{sT3}, s{sW}, 12
    s_add_u32 s{sXn}, s{sXn}, s{sT3}
    s_add_u32 s{sXn}, s{sXn}, {XNP}
    s_lshl2_add_u32 s{sSt}, s{sP}, s{sW}
    s_lshl_b32 s{sSt}, s{sSt}, 5
    s_add_u32 s{sSt}, s{sSt}, {ST}
    """)
    issue(int(OPT.get('n2', 7)))
    a.wait(lg=0)
    stamp()

    GROUPS = [("A", 2, 4), ("A", 0, 4), ("B", 1, 3), ("A", 1, 4), ("B", 0, 3), ("B", 2, 3), ("B", 3, 3)]
    LOC = []
    for rg, sl, n in GROUPS:
        for k in range(n):
            LOC.append((rg, sl * (16384 if rg == "A" else 12288) + k * 1024))
    PL2 = list(range(4, 24))
    ploc = lambda p: p if p < 24 else PL2[p - 24]
    SHARED['LOC'] = LOC
    pn = [0]
    def p_next():
        p = pn[0]; pn[0] += 1
        rg, off = LOC[ploc(p)]
        a(f"s_add_u32 m0, s{sLA if rg == 'A' else sLB}, {off}")
        a(f"s_add_u32 s{sT3}, s{sW2}, {8192*p}")
        a(f"buffer_load_dwordx4 v{vW2o}, {W2}, s{sT3} offen lds", f"P{p}")

    wb = lambda s_: WF + 12 * (s_ % 3)
    def tr_pair(s_, ft):
        c, i = divmod(s_, 4)
        for e in range(2):
            a(f"ds_read_b64_tr_b16 {vr(wb(s_)+4*ft+2*e,2)}, v{vWr+i} offset:{(c&3)*12288+e*768+ft*64}", f"wf{s_}")
    def rd_x(c, i):
        a(f"ds_read_b128 {vr(XF+16*(c&1)+4*i,4)}, v{vXr+i} offset:{(c%3)*16384}", f"xf{c}_{i}")
    def open_chunk(c):
        if "cs" in OPT and c in (3, 5): stamp(True)
        a.wait(vm=f"C{c}")
        if (c == 0 and "ss" not in OPT) or ("cs" in OPT and c in (3, 5)): stamp(True)
        a("s_barrier")
        if "cs" in OPT and c: stamp(True)

    open_chunk(0)
    rd_x(0, 0)
    for ft in range(3): tr_pair(0, ft)
    for i in range(1, 4): rd_x(0, i)
    for ft in range(3): tr_pair(1, ft)
    a(f"s_cmp_eq_u32 s{sTag}, 0\ns_cbranch_scc1 G_tagslow\nG_tagok:")
    for k in range(5): a(f"v_mov_b32 v{LF+4*k+2}, s{sTag}\nv_mov_b32 v{LF+4*k+3}, s{sTag+1}")
    XSL = {"a": [(0, 1), (0, 2), (1, 0), (1, 2), (2, 1)], "b": [(3, 0), (3, 1), (3, 2), (7, 0), (7, 1)], "c": [(1, 0), (1, 2), (3, 0), (3, 2), (5, 1)]}[OPT.get("xsl", "b")]
    GP = 'gp' in OPT
    PS = int(OPT.get('ps', 22)) if GP else 99
    def bg_op(c, i, ft):
        s_ = 4 * c + i
        if DQ: issue(1, s_)
        elif s_ >= PS and ft != 1:
            lim = 0 if s_ < 20 else 4 if s_ < 24 else 8 if s_ < 26 else 11 if s_ < 28 else 15 if s_ < 30 else 18 if s_ < 31 else 24
            if pn[0] < lim:
                assert not FILL
                p_next()
    def split(dst, src, tmp):
        return [f"v_cvt_pk_bf16_f32 v{tmp}, v{src}, v{src}", f"v_lshlrev_b32 v{tmp}, 16, v{tmp}",
                f"v_sub_f32 v{tmp}, v{src}, v{tmp}", f"v_cvt_pk_bf16_f32 v{dst}, v{src}, v{tmp}"]
    for c in range(8):
        a.comment(f"---- GEMM1 chunk {c}")
        for i in range(4):
            s_ = 4 * c + i
            if i == 2 and c < 7:
                issue(int(OPT.get('flush', 0)), s_ - 1)
                assert not any(t == f'C{c+1}' for t in QT[len(QT)-len(DQ):])
                open_chunk(c + 1)
            a.wait(lg=(f"xf{c}_{3 if s_ else 0}", f"wf{s_}"))
            if "ss" in OPT and int(OPT["ss"]) <= s_ < int(OPT["ss"]) + 12: stamp(True)
            if s_ == 28:
                assert "csw" not in a.lg
                a("s_barrier")
            if s_ == 31: a("s_barrier")
            for ft in range(3):
                cs = i == 0 or c >= 7
                if cs and s_ == 31:
                    a(f"v_mfma_f32_16x16x32_bf16 {vr(CSA+12+4*ft,4)}, {vr(HALF,4)}, {vr(wb(s_)+4*ft,4)}, {vr(CSA+12+4*ft,4)}")
            for ft in range(3):
                cc = "0" if s_ == 0 else vr(ACC1+16*ft, 16)
                a(f"v_mfma_f32_32x32x16_bf16 {vr(ACC1+16*ft,16)}, {vr(wb(s_)+4*ft,4)}, {vr(XF+16*(c&1)+4*i,4)}, {cc}")
                if i == 2 and c < 7:
                    if ft == 0: rd_x(c + 1, 0)
                    rd_x(c + 1, ft + 1)
                if s_ + 2 < 32: tr_pair(s_ + 2, ft)
                if (s_, ft) == (0, 0):
                    for k in range(4): a(f"ds_read_b64_tr_b16 {vr(LF+4*k,2)}, v{vSr} offset:{64*k}", "tr")
                if (s_, ft) in XSL:
                    a.wait(lg="tr")
                    k = XSL.index((s_, ft))
                    if k < 4: a(f"buffer_store_dwordx4 {vr(LF+4*k,4)}, v{vL16}, {WS}, s{sXn} offen offset:{1024*k} sc1", "xn")
                    else: a(f"s_mov_b64 exec, 3\nbuffer_store_dwordx4 {vr(LG,4)}, v{vL16}, {WS}, s{sSt} offen sc1\ns_mov_b64 exec, -1")
                else:
                    bg_op(c, i, ft)
                    if i == 3 or (i == 1 and ft): fill_(4)
                if (i == 0 or c >= 7) and s_ != 31:
                    d = CSA + 4 * ft + (12 if c >= 7 else 0)
                    a(f"v_mfma_f32_16x16x32_bf16 {vr(d,4)}, {vr(HALF,4)}, {vr(wb(s_)+4*ft,4)}, {'0' if s_ in (0, 28) else vr(d,4)}")
                if s_ == 25:
                    for t in split(vCs + ft, CSA + 4 * ft, CSA + 4 * ft + 1): a(t)
                if s_ == 25:
                    for k in range(2):
                        a(f"ds_write2st64_b32 v{vT2}, v{vCs+ft}, v{vCs+ft} offset0:{24*k+4*ft} offset1:{24*k+12+4*ft}", "csw")
                if s_ == 23:
                    for k in range(4): a(f"v_mov_b32 v{CSF+4*ft+k}, 0")
                if s_ == 28:
                    a("s_mov_b32 exec_hi, 0")
                    for k in range(2):
                        a(f"ds_read2st64_b32 {vr(CSF+4*ft+2*k,2)}, v{vT} offset0:{4*ft+2*k} offset1:{4*ft+2*k+1}", "csf")
                    a("s_mov_b32 exec_hi, -1")
                if s_ == 29 and ft == 2:
                    a.wait(vm="st", lg="csf")
                    a(f"""
                    s_mov_b32 s{sCnt}, 0
                    G_stchk:
                    v_cmp_ne_u64 vcc, {sr(sTag,2)}, {vr(vSt+2,2)}
                    v_cmp_ne_u64 s[88:89], {sr(sTag,2)}, {vr(vId+2,2)}
                    v_and_b32 v{vId+1}, 0xffff, v{vId}
                    s_or_b64 vcc, vcc, s[88:89]
                    s_cbranch_vccnz G_stslow
                    G_stok:
                    """)
                if s_ == 30 and ft == 0:
                    a(f"""
                    v_cmp_ne_u32 s[90:91], s{sXcc}, v{vId+1}
                    v_lshrrev_b32 v{vNeg+1}, 16, v{vSt}
                    v_bfi_b32 v{vNeg}, s{sMask}, v{vSt}, v{vNeg+1}
                    v_bfi_b32 v{vNeg+2}, s{sMask}, v{vSt}, v{vNeg+1}
                    """)
                if s_ == 30 and ft == 1:
                    a(f"""
                    v_bfi_b32 v{vNeg+3}, s{sMask}, v{vSt}, v{vNeg+1}
                    v_bfi_b32 v{vNeg+1}, s{sMask}, v{vSt}, v{vNeg+1}
                    v_mul_f32 v{vC2}, s{sL2e}, v{vSt+1}
                    s_or_b32 s{sFar}, s90, {1 if 'forcefar' in OPT else 's91'}
                    v_mov_b32 v{vNon}, s{sTag}
                    v_mov_b32 v{vNon+1}, s{sTag+1}
                    """)
                if s_ == 31:
                    sp = split(CSF + 4 * ft, CSA + 12 + 4 * ft, CSA + 13 + 4 * ft)
                    for t in sp[:3]: a(t)
                    a(f"s_mov_b32 exec_lo, 0\n{sp[3]}\ns_mov_b32 exec_lo, -1")
            if s_ == 23:
                assert not FILL
                a(f"buffer_load_dwordx4 {vr(vSt,4)}, v{vSa}, {WS}, s{sO} offen sc1", "st")
                a(f"buffer_load_dwordx4 {vr(vId,4)}, v{vIa}, {WS}, s{sIa} offen sc1", "st")
    assert not DQ
    stamp()
    for ft in range(3):
        a(f"v_mfma_f32_32x32x16_bf16 {vr(ACC1+16*ft,16)}, {vr(CSF+4*ft,4)}, {vr(vNeg,4)}, {vr(ACC1+16*ft,16)}")
    E1, OB = 208, 224
    def tr_w2(step, tag):
        base = STASH + 8 * (step % 12)
        for j in range(2):
            for e in range(2):
                rg, off = LOC[ploc(2 * step + e)]
                a(f"ds_read_b64_tr_b16 {vr(base+4*j+2*e,2)}, v{vW2r+(0 if rg=='A' else 2)+j} offset:{off}", tag)
    if not GP: pn[0] = 24
    for _ in range(3):
        if pn[0] < 24: p_next()
    GB = int(OPT.get("gb", 0))
    B9, B10 = int(OPT.get("b9", 1)), int(OPT.get("b10", 6))
    for ft in range(3):
        for j in range(2):
            A0 = ACC1 + 16 * ft + 8 * j
            T0 = E1 + 8 * j
            for k in range(8): a(f"v_mul_f32 v{A0+k}, v{vC2}, v{A0+k}")
            for k in range(8): a(f"v_exp_f32_e64 v{T0+k}, -v{A0+k}")
            if pn[0] < 24: p_next()
            for k in range(8): a(f"v_fma_f32 v{T0+k}, v{T0+k}, s{sL2e}, s{sL2e}")
            for k in range(8): a(f"v_rcp_f32 v{T0+k}, v{T0+k}")
            if pn[0] < 24: p_next()
            for k in range(8): a(f"v_mul_f32 v{A0+k}, v{A0+k}, v{T0+k}")
            for k in range(0, 8, 2): a(f"v_cvt_pk_bf16_f32 v{OB+8*ft+4*j+k//2}, v{A0+k}, v{A0+k+1}")
            a(f"buffer_store_dwordx4 {vr(OB+8*ft+4*j,4)}, v{vL16}, {HS}, s{sHS if ft < 2 else sHS2} offen offset:{1024*((2*ft+j)&3)} {OPT.get('hnt', 'nt') if str(2*ft+j) in OPT.get('hn', '012345') else ''}", "hs")
            if GP and 2 * ft + j == GB: a("s_barrier")
    stamp()
    if IP: a("s_mov_b64 s[4:5], s[98:99]")
    vH, vF, vXg, vO, vY, vXl, vR, vP, vYl = 2, 4, 5, 6, 7, 8, 13, 10, 9
    a(f"""
    s_lshl_b32 s{sT}, s{sW}, 3
    s_lshr_b32 s{sT2}, 0x160e0600, s{sT}
    s_and_b32 s{sT2}, s{sT2}, 0xff
    s_lshr_b32 s{sT}, 0x1d150f07, s{sT}
    s_and_b32 s{sT}, s{sT}, 0xff
    v_max_u32 v{vF}, s{sT2}, v{vL}
    v_min_u32 v{vF}, s{sT}, v{vF}
    v_lshlrev_b32 v{vF}, 3, v{vF}
    s_and_b32 s{sT}, s{sW}, 1
    s_mul_i32 s{sT2}, s{sT}, {HROW}
    v_add_u32 v{vH}, s{sT2}, v{vL16}
    s_sub_u32 s{sT2}, {HROW}, s{sT2}
    v_add_u32 v{vH+1}, s{sT2}, v{vL16}
    s_mov_b32 s{sCnt}, 0
    s_lshr_b32 s{sXn}, s{sCG}, 2
    s_mul_i32 s{sXn}, s{sXn}, {HROW}
    s_and_b32 s{sT2}, s{sCG}, 3
    s_mulk_i32 s{sT2}, 5632
    s_add_u32 s{sXn}, s{sXn}, s{sT2}
    s_add_u32 s{sXn}, s{sXn}, s{sHL}
    s_movk_i32 s{sC}, 144
    v_min_u32 v{vSw}, 47, v{vL}
    v_lshlrev_b32 v{vSw}, 7, v{vSw}
    v_min_u32 v12, 43, v{vL}
    v_lshlrev_b32 v12, 7, v12
    """)
    a(f"s_cmp_lg_u32 s{sFar}, 0\ns_cbranch_scc1 G_far")
    a.wait(vm="hs")
    stamp()
    a(f"s_mov_b64 exec, 1\nbuffer_store_dwordx2 {vr(vNon,2)}, off, {WS}, s{sFl}\nG_pub:\ns_mov_b64 exec, -1")
    if "pt" in OPT:
        a(f"buffer_load_dword v{vT3}, v{vSw}, {HS}, s{sHS} offen {OPT['pt'].replace('1', '') if OPT['pt'] != 'sc1' else 'sc1'}", "pt")
    a(f"s_lshl_b32 s{sRet}, s{sRT}, 8\ns_add_u32 s{sRet}, s{sRet}, {FH}")
    if not GP: a("s_barrier")
    assert pn[0] == 24 and not any(str(t).startswith("P") for t in a.vm)
    PK_ = int(OPT.get("pk", 11))
    order = list(range(2, 12)) + [0, 1]
    for n_, k in enumerate(order):
        if n_ == PK_: a(f"buffer_load_dwordx2 {vr(vP,2)}, v{vF}, {WS}, s{sRet} offen sc1", "poll")
        tr_w2(k, f"S{k}")
    def p2():
        a.wait(lg=f"S{ploc(pn[0])//2}")
        p_next()
    for _ in range(int(OPT.get("np0", 12))): p2()
    stamp()
    a.wait(vm="poll")
    a(f"G_hchk:\nv_cmp_ne_u64 vcc, {sr(sTag,2)}, {vr(vP,2)}\ns_add_u32 s{sCnt}, s{sCnt}, 1\ns_cbranch_vccnz G_hslow\nG_hok:")
    stamp()
    if STAMPS: a(f"s_lshl_b32 s{sCnt}, s{sCnt}, 16\ns_add_u32 s97, s97, s{sCnt}")
    HS_ = [(i, 1) for i in range(12)] + [(i, j) for i in range(12, 22) for j in (1, 0)] + [(i, 0) for i in range(12)]
    HR, WR = int(OPT.get("hr", 10)), 232
    grp = [None]
    def h_load(n):
        i, j = HS_[n]
        if i // 4 != grp[0]:
            grp[0] = i // 4; a(f"s_add_u32 s{sTx}, s{sHL}, {4096*(i//4)}")
        a(f"buffer_load_dwordx4 {vr(HB+4*(n%HR),4)}, v{vH+j}, {HS}, s{sTx} offen offset:{1024*(i%4)} {OPT.get('hlf', 'sc1').replace('_', ' ')}", f"h{n}")
    HT = int(OPT.get("ht", 0))
    for n in range(HR - 1):
        if n == HT: a(f"buffer_load_dword v12, v12, {HS}, s{sXn} offen sc1", "ht")
        if n == int(OPT.get("hp", 0)):
            for _ in range(int(OPT.get("np1", 99))):
                if pn[0] < 44: p2()
        h_load(n)
    a(f"""
    s_lshl1_add_u32 s{sT2}, s{sRT}, s{sT}
    s_lshr_b32 s{sT}, s{sW}, 1
    s_lshl1_add_u32 s{sCnt}, s{sCG}, s{sT}    ; own 32-column block
    s_lshl_b32 s{sO}, s{sT2}, 15
    s_lshl_b32 s{sT}, s{sCnt}, 6
    s_add_u32 s{sO}, s{sO}, s{sT}
    s_add_u32 s{sHS}, s{sT2}, 8
    s_bfe_u32 s{sHS}, s{sHS}, 0x10004
    s_lshl_b32 s{sT}, s{sCnt}, 6
    s_add_u32 s{sHS}, s{sHS}, s{sT}
    s_lshl_b32 s{sHS}, s{sHS}, 7
    s_add_u32 s{sHS}, s{sHS}, {FY}
    s_mul_i32 s{sY}, s{sCnt}, {32*GC}
    s_lshl_b32 s{sT}, s{sT2}, 6
    s_add_u32 s{sY}, s{sY}, s{sT}
    s_add_u32 s{sY}, s{sY}, {Y2}
    v_and_b32 v{vT}, 31, v{vL}
    v_lshrrev_b32 v{vT2}, 5, v{vL}
    v_lshlrev_b32 v{vO}, 10, v{vT}
    v_lshl_add_u32 v{vO}, v{vT2}, 4, v{vO}
    v_lshl_add_u32 v{vXl}, v{vT}, 6, s{sLA}
    v_lshl_add_u32 v{vXl}, v{vT2}, 4, v{vXl}
    v_lshlrev_b32 v{vYl}, 3, v{vT2}
    v_sub_u32 v{vF}, v{vT}, v{vYl}
    v_bfe_u32 v{vT}, v{vL}, 2, 2
    v_add_u32 v{vYl}, v{vYl}, v{vT}
    v_lshl_add_u32 v{vYl}, v{vYl}, 6, s{sLA}
    v_bfe_u32 v{vT}, v{vL}, 4, 1
    v_lshl_add_u32 v{vYl}, v{vT}, 5, v{vYl}
    v_and_b32 v{vT}, 3, v{vL}
    v_lshl_add_u32 v{vYl}, v{vT}, 3, v{vYl}
    v_lshrrev_b32 v{vY}, 2, v{vL}
    v_mul_u32_u24 v{vY}, {GC}, v{vY}
    v_lshl_add_u32 v{vY}, v{vT}, 4, v{vY}
    v_lshrrev_b32 v{vXg}, 2, v{vL}
    v_lshlrev_b32 v{vXg}, 10, v{vXg}
    v_and_b32 v{vT}, 3, v{vL}
    v_lshl_add_u32 v{vXg}, v{vT}, 4, v{vXg}
    v_add_u32 v{vR}, s{sLB}, v{vL16}
    """)
    for k in range(1, 4):
        a(f"s_xor_b32 s{sT}, s{sW}, {k}\ns_mulk_i32 s{sT}, 3072\ns_add_u32 s{sT}, s{sT}, {LB0}\nv_add_u32 v{vR+k}, s{sT}, v{vL16}")
    YO = 32768
    YT, YF, XFr, IDN = 232, 240, 248, 24
    XR = 24
    if "touch" in OPT:
        a(f"v_and_b32 v{vT}, 31, v{vL}\nv_mul_u32_u24 v{vT}, {GC}, v{vT}")
        a(f"buffer_load_dword v12, v{vT}, {WS}, s{sY} offen sc1", "yt")
    a(f"v_and_b32 v{vT}, 1, v{vF}\nv_lshlrev_b32 v{vT}, 4, v{vT}\nv_lshlrev_b32 v{vT}, v{vT}, v{vW2o}" if False else
      f"v_and_b32 v{vT}, 1, v{vF}\nv_lshlrev_b32 v{vT}, 4, v{vT}\nv_mov_b32 v11, 0x3f80\nv_lshlrev_b32 v11, v{vT}, v11\nv_ashrrev_i32 v{vF}, 1, v{vF}")
    for k in range(8):
        a(f"v_cmp_eq_u32 s[{88+2*(k&1)}:{89+2*(k&1)}], {8*(k>>2)+(k&3)}, v{vF}")
        if k: a(f"v_cndmask_b32 v{IDN+k-1}, 0, v11, s[{88+2*((k-1)&1)}:{89+2*((k-1)&1)}]")
    a(f"v_cndmask_b32 v{IDN+7}, 0, v11, s[90:91]")
    def y_poll(emit): emit(f"buffer_load_dwordx2 {vr(vP,2)}, v12, {WS}, s{sHS} offen sc1")
    def y_loads(emit):
        emit(f"s_add_u32 m0, s{sLA}, {YO}")
        for k in range(2):
            emit(f"s_add_u32 s{sT2}, s{sY}, {16*k*GC-1024*k}")
            emit(f"buffer_load_dwordx4 v{vY}, {WS}, s{sT2} offen offset:{1024*k} sc1 lds")
    def y_reads(emit):
        for k in range(4): emit(f"ds_read_b64_tr_b16 {vr(YF+2*k,2)}, v{vYl} offset:{YO+1024*(k>>1)+256*(k&1)}")
    YP = int(OPT.get("yp", 30))
    wreg = lambda i: STASH + 8 * i if i < 12 else WR + 8 * (i % 3)
    def w_reads(i, half):
        j = half
        assert pn[0] > 2 * i + 1
        a.wait(vm=f"P{2*i+1}")
        for e in range(2):
            rg, off = LOC[ploc(2 * i + e)]
            a(f"ds_read_b64_tr_b16 {vr(wreg(i)+4*j+2*e,2)}, v{vW2r+(0 if rg=='A' else 2)+j} offset:{off}", f"r{i}")
    started = set()
    def mm(n, jd):
        i, j = HS_[n]; k = 2 * jd + j
        ac = ACC2 + 16 * k
        a(f"v_mfma_f32_32x32x16_bf16 {vr(ac,16)}, {vr(wreg(i)+4*jd,4)}, {vr(HB+4*(n%HR),4)}, {vr(ac,16) if k in started else '0'}")
        started.add(k)
    roff = lambda k, q: (((k - 1) * 4 + q) // 3) * 12288 + (((k - 1) * 4 + q) % 3) * 1024
    def r_write(k, q): a(f"ds_write_b128 v{vR}, {vr(ACC2+16*k+4*q,4)} offset:{roff(k,q)}", "rw")
    def r_read(k, q): a(f"ds_read_b128 {vr(ACC2+16*k+4*q,4)}, v{vR+k} offset:{roff(k,q)}", f"rr{k}")
    YS = int(OPT.get("ys", 37))
    NT = 4
    PR_ = int(OPT.get('pr', 1))
    side = []
    def run_side(c):
        for _ in range(c):
            if side:
                t = side.pop(0)
                if callable(t): t()
                else: a(t)
    for n in range(44 - NT):
        i, j = HS_[n]
        a.wait(vm=f"h{n}", lg=(f"r{i}" if i >= 12 else 0 if n == 0 else None))
        if n == 0 or ("g2" in OPT and n in (12, 24, 32, 36)): stamp(True)
        for jd in range(2):
            mm(n, jd)
            if jd == 0 and n + HR - 1 < 44: h_load(n + HR - 1)
            if pn[0] < 44 and (jd == 1 or n % PR_ == 0): p2()
            if n in (8, 10): w_reads(12 + (n - 8) // 2, jd)
            if 12 <= n < 28 and j == 1: w_reads(i + 2, jd)
            if jd == 1 and n == 5: a(f"v_and_b32 v12, 31, v{vL}\nv_lshlrev_b32 v12, 8, v12")
            if jd == 1 and n == YP: y_poll(lambda t: a(t, "yf"))
            if jd == 1 and n == YS:
                a.wait(vm="yf")
                a(f"v_cmp_ne_u64 s[94:95], {sr(sTag,2)}, {vr(vP,2)}")
                y_loads(lambda t: a(t, "yr"))
            if jd == 1 and n == 30:
                a(f"s_mov_b32 m0, s{sLA}\ns_add_u32 s{sT2}, s{sO}, {16384-1024}")
                a(f"buffer_load_dwordx4 v{vXg}, {X}, s{sO} offen lds", "xr")
                a(f"buffer_load_dwordx4 v{vXg}, {X}, s{sT2} offen offset:1024 lds", "xr")
            g = 2 * (n - 32) + jd
            if 0 <= g < 12 and g % 3 != 2:
                w = g - g // 3; r_write(1 if w < 4 else 3, w & 3)
            if g == 8 and "ol" in OPT:
                a(f"""
                s_and_b32 s{sT}, s{sW}, 1
                s_mulk_i32 s{sT}, {32*144}
                s_lshr_b32 s{sT2}, s{sW}, 1
                s_lshl_b32 s{sT2}, s{sT2}, 6
                s_add_u32 s{sT}, s{sT}, s{sT2}
                s_add_u32 s{sT}, s{sT}, 98304
                v_and_b32 v{vT}, 31, v{vL}
                v_mul_u32_u24 v{vH}, 144, v{vT}
                """)
            if g == 11 and "ol" in OPT:
                a(f"""
                v_lshrrev_b32 v{vT}, 5, v{vL}
                v_lshl_add_u32 v{vH}, v{vT}, 4, v{vH}
                v_add_u32 v{vH}, s{sT}, v{vH}
                v_lshrrev_b32 v{vT}, 3, v{vL}
                v_and_b32 v{vF}, 7, v{vL}
                v_lshlrev_b32 v{vF}, 4, v{vF}
                v_mad_u32_u24 v{vH+1}, v{vT}, s{sC}, v{vF}
                v_lshl_add_u32 v{vF}, v{vT}, 10, v{vF}
                """)
            if g == 13 and "ol" in OPT:
                a(f"""
                s_mul_i32 s{sT}, s{sW}, {16*144}
                s_add_u32 s{sT}, s{sT}, 98304
                v_add_u32 v{vH+1}, s{sT}, v{vH+1}
                s_lshl2_add_u32 s{sXB}, s{sRT}, s{sW}
                s_lshl_b32 s{sXB}, s{sXB}, 14
                s_lshl_b32 s{sT}, s{sCG}, 7
                s_add_u32 s{sXB}, s{sXB}, s{sT}
                s_add_u32 s{sXB+1}, s{sXB}, 8192
                """)
            if g == 12:
                a.wait(vm="xr")
                for q in range(2): a(f"ds_read_b128 {vr(XFr+4*q,4)}, v{vXl} offset:{32*q}", "xl")
            if g == 14:
                a.wait(lg="rw")
                a("s_barrier")
                for q in range(4): r_read(1, q)
            if g == 15:
                for q in range(4): r_read(3, q)
    if "ts" in OPT: stamp()
    side = [lambda: a.wait(lg="rr3")] + [f"v_add_f32 v{ACC2+16+q}, v{ACC2+16+q}, v{ACC2+48+q}" for q in range(16)]
    for q, n in enumerate(range(44 - NT, 44)):
        a.wait(vm=f"h{n}")
        mm(n, 1)
        if q >= 2: run_side(6)
    tail = [lambda n=n: mm(n, 0) for n in range(44 - NT, 44)]
    for src in (XFr, YF):
        for q in range(2):
            tail.append(lambda src=src, q=q: a(f"v_mfma_f32_32x32x16_bf16 {vr(ACC2,16)}, {vr(IDN+4*q,4)}, {vr(src+4*q,4)}, {vr(ACC2,16)}"))
    for q, t in enumerate(tail):
        t()
        if q == 0: run_side(99)
        if 1 <= q <= 4: r_write(2, q - 1)
        if q == 4:
            a(f"s_cmp_lg_u64 s[94:95], 0\ns_cbranch_scc1 G_yslow\nG_yok:")
            a.wait(vm="yr")
            y_reads(lambda t: a(t, "yl"))
        if q == 5:
            a.wait(lg="rw")
            a("s_barrier")
            for q2 in range(4): r_read(2, q2)
            a.wait(lg="yl")
    stamp()
    a.wait(lg="rr2")
    for q in range(16): a(f"v_add_f32 v{ACC2+16+q}, v{ACC2+16+q}, v{ACC2+32+q}")
    for k in range(8):
        a(f"v_pk_add_f32 {vr(ACC2+2*k,2)}, {vr(ACC2+2*k,2)}, {vr(ACC2+16+2*k,2)}")
    for k in range(8):
        a(f"v_cvt_pk_bf16_f32 v{XR+k}, v{ACC2+2*k}, v{ACC2+2*k+1}")
    if "ol" not in OPT:
        for q in range(2):
            a(f"v_permlane32_swap_b32 v{XR+4*q}, v{XR+4*q+2}\nv_permlane32_swap_b32 v{XR+4*q+1}, v{XR+4*q+3}")
            a(f"buffer_store_dwordx4 {vr(XR+4*q,4)}, v{vO}, {OUT}, s{sO} offen offset:{32*q} {OPT.get('osf', '').replace('_', ' ')}")
    else:
        for q in range(2):
            a(f"v_permlane32_swap_b32 v{XR+4*q}, v{XR+4*q+2}\nv_permlane32_swap_b32 v{XR+4*q+1}, v{XR+4*q+3}")
            a(f"ds_write_b128 v{vH}, {vr(XR+4*q,4)} offset:{32*q}")
        a("s_waitcnt lgkmcnt(0)\ns_barrier")
        for q in range(2): a(f"ds_read_b128 {vr(ACC2+4*q,4)}, v{vH+1} offset:{8*144*q}", f"o{q}")
        for q in range(2):
            a.wait(lg=f"o{q}")
            a(f"buffer_store_dwordx4 {vr(ACC2+4*q,4)}, v{vF}, {OUT}, s{sXB+q} offen {OPT['ol'].replace('_', ' ').replace('1', '') if OPT['ol'] != 'sc1' else 'sc1'}")
    stamp()
    if STAMPS:
        a("s_waitcnt vmcnt(0)"); stamp()
    if "padev" in OPT:
        a(f"G_pad2:\ns_memrealtime s[98:99]\ns_waitcnt lgkmcnt(0)\ns_sub_u32 s96, s98, s86\ns_cmp_lt_u32 s96, 3000\ns_cbranch_scc1 G_pad2")
    if "padto" in OPT:
        a(f"G_pad:\ns_memrealtime s[98:99]\ns_waitcnt lgkmcnt(0)\ns_sub_u32 s96, s98, s{sTag}\ns_cmp_lt_u32 s96, {OPT['padto']}\ns_cbranch_scc1 G_pad")
    if "dbg" in OPT:
        n = nstamp[0]
        a(f"s_memrealtime s[98:99]\ns_waitcnt lgkmcnt(0)\ns_lshl2_add_u32 s96, s2, s{sW}\ns_cmp_lg_u32 s96, {4*int(OPT['dbg'])}\ns_cbranch_scc1 G_nodbg\ns_mov_b64 exec, 1")
        for i in range(1, n):
            a(f"s_sub_u32 s96, s{60+2*i}, s60\nv_mov_b32 v{vT}, s96\nbuffer_store_dword v{vT}, off, {DBG}, 0 offset:{4+4*i}")
        a(f"s_sub_u32 s96, s98, s{sTag}\nv_mov_b32 v{vT}, s96\nbuffer_store_dword v{vT}, off, {DBG}, 0 offset:60")
        a("G_nodbg:")
    stamp_flush(WS, f"s{sW}", vT, 256)
    a("s_endpgm")
    tag_slow("G", sTag, 24, [64, 192], vNon, sCnt)
    a.raw(f"""G_stslow:
{retry_mark(4)}  s_add_u32 s{sCnt}, s{sCnt}, 1
  s_cmp_ge_u32 s{sCnt}, {SPIN}
  s_cbranch_scc1 G_stok
  buffer_load_dwordx4 {vr(vSt,4)}, v{vSa}, {WS}, s{sO} offen sc1
  buffer_load_dwordx4 {vr(vId,4)}, v{vIa}, {WS}, s{sIa} offen sc1
  s_waitcnt vmcnt(0)
  s_branch G_stchk
G_hslow:
  s_cmp_ge_u32 s{sCnt}, {SPIN}
  s_cbranch_scc1 G_hok
  buffer_load_dwordx2 {vr(vP,2)}, v{vF}, {WS}, s{sRet} offen sc1
  s_waitcnt vmcnt(0)
  s_branch G_hchk
G_yslow:
  s_mov_b32 s{sCnt}, 0
G_yloop:
{retry_mark(8)}  buffer_load_dwordx2 {vr(vP,2)}, v12, {WS}, s{sHS} offen sc1
  s_add_u32 s{sCnt}, s{sCnt}, 1
  s_waitcnt vmcnt(0)
  v_cmp_ne_u64 vcc, {sr(sTag,2)}, {vr(vP,2)}
  s_cmp_lt_u32 s{sCnt}, {1 if "nossm" in OPT else SPIN}
  s_cselect_b64 vcc, vcc, 0
  s_cbranch_vccnz G_yloop""")
    y_loads(lambda t: a.raw("  " + t))
    a.raw("  s_waitcnt vmcnt(0)\n  s_branch G_yok")
    a.hist = []
    a("G_far:\ns_waitcnt vmcnt(0)")
    for k in range(6):
        a(f"buffer_store_dwordx4 {vr(OB+4*k,4)}, v{vL16}, {HS}, s{sHS if k < 4 else sHS2} offen offset:{1024*(k&3)} sc1")
    a(f"s_waitcnt vmcnt(0)\ns_mov_b64 exec, 1\nbuffer_store_dwordx2 {vr(vNon,2)}, off, {WS}, s{sFl} sc1\ns_branch G_pub")
    a.vm = []; a.lg = []

def ssm_role():
    DBG, WS = "s[8:11]", "s[12:15]"
    sQ, sW, sE, sPar, sT, sT2, sCnt, sB1, sMask = 3, 32, 5, 6, 7, 34, 35, 40, 41
    sLdt, sD, sTag, sU, sXcc = 42, 43, 36, 38, 4
    sMean, sNeg = 44, 48
    vL, LX, LF, vC, LG = 1, 2, 10, 30, 26
    vPar = 44
    vT, vT2, vT3, vT4 = 54, 55, 56, 57
    vNon, vL16, vTab = 52, 60, 61
    SB = 98304
    CB0, UB0, USZ, K0A, FLG, TAB, TSZ, SROW = SB, SB + 33280, 4576, SB + 42432, SB + 42448, SB + 49152, 4096, 1056
    a.hist = []; a.vm = []; a.lg = []
    a(f"""
    s_load_dwordx16 s[16:31], s[0:1], 0
    s_load_dwordx2 s[8:9], s[0:1], 104
    s_load_dwordx2 s[52:53], s[0:1], 64
    s_load_dwordx2 s[92:93], s[0:1], 88
    s_load_dwordx2 s[88:89], s[0:1], 80
    s_load_dwordx2 s[12:13], s[0:1], 112
    s_memrealtime {sr(sTag,2)}
    s_setprio 3
    s_sub_u32 s{sW}, s{sW}, 4
    v_and_b32 v{vL}, 63, v0
    v_and_b32 v{vT}, 255, v0
    s_lshl_b32 s{sT}, s{sQ}, 9
    v_lshl_add_u32 v{vT3}, v{vT}, 1, s{sT}
    s_lshl2_add_u32 s{sT2}, s{sQ}, s{sW}
    s_lshl_b32 s{sT2}, s{sT2}, 11
    v_lshlrev_b32 v{vL16}, 4, v{vL}
    v_lshl_add_u32 v{vT4}, v{vL}, 6, s{sT2}
    s_lshl_b32 s{sT}, s{sQ}, 2
    """)
    srd(8, 256)
    a("s_waitcnt lgkmcnt(0)")
    if STAMPS: a(f"s_mov_b32 s100, s{sTag}\ns_mov_b32 s97, 0")
    stamp()
    a(f"""
    s_or_b32 s{sTag}, s{sTag}, 1
    v_mov_b32 v{vNon}, s{sTag}
    v_mov_b32 v{vNon+1}, s{sTag+1}
    buffer_store_dwordx2 {vr(vNon,2)}, v{vT4}, {DBG}, 0 offen sc1
    """)
    for k in range(6):
        a(f"global_load_ushort v{vPar+k}, v{vT3}, s[{18+2*k}:{19+2*k}]", "par")
    a(f"s_load_dword s{sLdt}, s[30:31], s{sT}\ns_load_dword s{sD}, s[52:53], s{sT}\ns_setprio 0\ns_branch L_ssm")
    keep = (list(a.vm), nstamp[0])
    yield
    a.hist = []; a.lg = []; a.vm = keep[0]; nstamp[0] = keep[1]
    X, W1 = "s[16:19]", "s[88:91]"
    vXo, vWo = 2, 6
    sLA, sLB, sXB, sWB, sC, sCx, sTx, sTw = 20, 21, 22, 23, 24, 25, 26, 27
    srd(16, 2048 * 1024); srd(88, 512 * 2752)
    a(f"""
    v_lshrrev_b32 v{vT}, 3, v{vL}
    v_lshlrev_b32 v{vT}, 10, v{vT}
    v_lshrrev_b32 v{vT2}, 4, v{vL}
    v_xor_b32 v{vT2}, v{vT2}, v{vL}
    v_and_b32 v{vT2}, 7, v{vT2}
    v_lshl_add_u32 v{vXo}, v{vT2}, 4, v{vT}
    v_xor_b32 v{vXo+1}, 64, v{vXo}
    v_add_u32 v{vXo+2}, {2*7168}, v{vXo}
    v_add_u32 v{vXo+3}, {3*7168}, v{vXo+1}
    v_add_u32 v{vXo+1}, 7168, v{vXo+1}
    s_movk_i32 s{sTx}, 5462
    s_movk_i32 s{sTw}, {2752-192}
    v_mul_u32_u24 v{vT}, s{sTx}, v{vL}
    """)
    for j in range(3):
        if j: a(f"v_add_u32 v{vT}, {64*5462}, v{vT}")
        a(f"v_lshrrev_b32 v{vT2}, 16, v{vT}\nv_mad_u32_u24 v{vWo+j}, v{vT2}, s{sTw}, v{vL16}")
    a(f"""
    s_lshr_b32 s{sXB}, s{sQ}, 4
    s_lshl2_add_u32 s{sXB}, s{sXB}, s{sW}
    s_lshl_b32 s{sXB}, s{sXB}, 15
    s_and_b32 s{sC}, s{sQ}, 15
    s_mul_i32 s{sWB}, s{sC}, 192
    s_mul_i32 s{sTx}, s{sW}, {16*2752}
    s_add_u32 s{sWB}, s{sWB}, s{sTx}
    s_bfe_u32 s{sLA}, s{sQ}, 0x10004
    s_mul_i32 s{sLB}, s{sLA}, 1344
    s_add_u32 s{sLB}, s{sLB}, s{sTx}
    s_mul_i32 s{sCx}, s{sW}, 11
    s_add_u32 s{sCx}, s{sCx}, s{sLA}
    s_lshl_b32 s{sCx}, s{sCx}, 15
    s_cmp_eq_u32 s{sC}, 15
    s_cselect_b32 s{sXB}, {"s%d" % sCx if int(OPT.get('ip', 1)) else 0x40000000}, s{sXB}
    s_cselect_b32 s{sWB}, {"s%d" % sLB if int(OPT.get('ip', 1)) > 1 else 0x40000000}, s{sWB}
    s_cselect_b64 s[16:17], s[92:93], s[16:17]
    s_cselect_b64 s[88:89], s[92:93], s[88:89]
    s_add_u32 s{sCx}, s{sQ}, 1
    s_and_b32 s{sCx}, s{sCx}, 7
    s_add_u32 s{sC}, s{sQ}, 2
    s_and_b32 s{sC}, s{sC}, 7
    s_lshl_b32 s{sLA}, s{sW}, 12
    s_mul_i32 s{sLB}, s{sW}, 3072
    s_add_u32 s{sLB}, s{sLB}, 49152
    """)
    def w_ops(c):
        ops = []
        for j in range(3):
            def f(j=j):
                if j == 0:
                    a(f"s_mul_i32 s{sTw}, s{sC}, {64*2752}\ns_add_u32 m0, s{sLB}, {(c&3)*12288}\ns_add_u32 s{sTw}, s{sTw}, s{sWB}")
                a(f"buffer_load_dwordx4 v{vWo+j}, {W1}, s{sTw} offen offset:{j*1024} lds", f"C{c}")
                if j == 0: a(f"s_add_u32 s{sC}, s{sC}, 1\ns_and_b32 s{sC}, s{sC}, 7")
            ops.append(f)
        return ops
    def x_ops(c):
        ops = []
        for pc in range(4):
            def f(pc=pc):
                if pc == 0:
                    a(f"s_lshl_b32 s{sTx}, s{sCx}, 7\ns_add_u32 m0, s{sLA}, {(c%3)*16384}\ns_add_u32 s{sTx}, s{sTx}, s{sXB}")
                a(f"buffer_load_dwordx4 v{vXo+pc}, {X}, s{sTx} offen offset:{pc*1024} lds", f"C{c}")
                if pc == 0: a(f"s_add_u32 s{sCx}, s{sCx}, 1\ns_and_b32 s{sCx}, s{sCx}, 7")
            ops.append(f)
        return ops
    DQ = x_ops(1) + w_ops(2) + x_ops(2) + w_ops(3)
    def dma(n=1):
        for _ in range(n):
            if DQ: DQ.pop(0)()
    dma(int(OPT.get("n0", 0)))
    srd(12, WS_SIZE)
    vOA, vOG, vPb = 50, 51, 59
    a(f"""
    s_lshr_b32 s{sE}, s{sW}, 1
    s_and_b32 s{sPar}, s{sW}, 1
    s_mov_b32 s{sMask}, 0xffff0000
    s_mul_i32 s{sT2}, s{sE}, {USZ}
    s_add_u32 s{sT2}, s{sT2}, {UB0}
    v_lshl_add_u32 v{vT}, v{vL}, 3, s{sT2}
    v_mov_b32 v{vT3}, 0
    v_mov_b32 v{vT4}, 0
    ds_write_b64 v{vT}, {vr(vT3,2)}
    s_lshl2_add_u32 s{sT2}, s{sW}, {FLG}
    v_mov_b32 v58, s{sT2}
    ds_write_b32 v58, v{vT3}
    ds_write_b32 v58, v{vT3} offset:16
    s_lshl_b32 s{sT2}, s{sW}, 12
    s_add_u32 s{sT2}, s{sT2}, {TAB}
    v_add_u32 v{vTab}, s{sT2}, v{vL16}
    v_lshrrev_b32 v{vT}, 4, v{vL}
    v_lshl_add_u32 v{vPb}, v{vT}, 6, s{sT2}
    v_and_b32 v{vT}, 15, v{vL}
    v_lshlrev_b32 v{vOG}, 3, v{vT}
    v_lshlrev_b32 v{vT2}, 2, v{vT}
    v_add_u32 v{vT2}, {512-36}, v{vT2}
    v_cmp_lt_u32 vcc, 8, v{vT}
    v_add_u32 v{vT3}, {1024-96}, v{vOG}
    v_add_u32 v{vT4}, {1536-112}, v{vOG}
    v_cndmask_b32 v{vOA}, v{vT}, v{vT2}, vcc
    v_cmp_lt_u32 vcc, 11, v{vT}
    v_cmp_lt_u32 s[56:57], 13, v{vT}
    v_cvt_f32_u32 v{vOG}, v{vOG}
    v_cndmask_b32 v{vOA}, v{vOA}, v{vT3}, vcc
    v_cndmask_b32 v{vOA}, v{vOA}, v{vT4}, s[56:57]
    v_cvt_f32_u32 v{vOA}, v{vOA}
    """)
    def k_mfma(s_):
        F = 152 + 16 * (s_ & 1)
        for hh in range(2):
            for gt in range(2):
                d = 200 + 8 * hh + 4 * gt
                a(f"v_mfma_f32_16x16x32_bf16 {vr(d,4)}, {vr(F+4*hh,4)}, {vr(F+8+4*gt,4)}, {'0' if s_ == 0 else vr(d,4)}")
    UG = int(OPT.get("ug", 7))
    SP = OPT.get("sprio", 0)
    vUg, vUw, vU, sG = 30, 31, 232, 54
    def u_addr():
        a(f"""
        v_lshrrev_b32 v{vT3}, 2, v{vL}
        v_bfe_u32 v{vT4}, v{vL}, 1, 1
        v_and_b32 v{vT2}, 1, v{vL}
        v_mul_u32_u24 v{vUg}, {GS}, v{vT3}
        v_lshl_add_u32 v{vUg}, v{vT4}, 6, v{vUg}
        v_lshl_add_u32 v{vUg}, v{vT2}, 4, v{vUg}
        v_mul_u32_u24 v{vUw}, {USZ}, v{vT2}
        v_lshl_add_u32 v{vUw}, v{vT3}, 4, v{vUw}
        v_lshl_add_u32 v{vUw}, v{vT4}, 3, v{vUw}
        s_lshl_b32 s{sT}, s{sW}, 10
        s_add_u32 s{sT}, s{sT}, {UB0+480}
        v_add_u32 v{vUw}, s{sT}, v{vUw}
        s_mul_i32 s{sG}, s{sW}, {64*GS}
        s_lshr_b32 s{sT}, s{sQ}, 1
        s_lshl_b32 s{sT}, s{sT}, 7
        s_add_u32 s{sG}, s{sG}, s{sT}
        s_and_b32 s{sT}, s{sQ}, 1
        s_lshl_b32 s{sT}, s{sT}, 5
        s_add_u32 s{sG}, s{sG}, s{sT}
        s_add_u32 s{sG}, s{sG}, {XNP}
        """)
    def u_loads(emit, ks=range(4)):
        emit("s_setprio 3")
        for k in ks:
            emit(f"s_add_u32 s{sG+1}, s{sG}, {k*16*GS}")
            emit(f"buffer_load_dwordx4 {vr(vU+4*k,4)}, v{vUg}, {WS}, s{sG+1} offen sc1 {OPT.get('uf', '')}")
        emit(f"s_setprio {SP}")
    W2 = "s[92:95]"
    vW2o, vTp, sW2, sTp = 62, 63, 28, 29
    vXw, vXr_, vK, vZ, vAa, vBa, vUa, vBp, vPr, vK0, vCb = 32, 33, 34, 35, 36, 37, 38, 39, 40, 41, 42
    def late_addr():
        u_addr()
        srd(92, 1376 * 1024)
        a(f"""
        v_lshrrev_b32 v{vT}, 3, v{vL}
        v_lshlrev_b32 v{vT}, 10, v{vT}
        v_bfe_u32 v{vT2}, v{vL}, 4, 1
        v_lshlrev_b32 v{vT3}, 2, v{vT2}
        v_xor_b32 v{vT3}, v{vT3}, v{vL}
        v_and_b32 v{vT3}, 7, v{vT3}
        v_lshl_add_u32 v{vW2o}, v{vT3}, 4, v{vT}
        v_min_u32 v{vTp}, 47, v{vL}
        v_lshlrev_b32 v{vTp}, 7, v{vTp}
        s_mul_i32 s{sW2}, s{sW}, {352*1024}
        s_and_b32 s{sTp}, s{sQ}, 31
        s_mul_i32 s30, s{sTp}, 5120
        s_mulk_i32 s{sTp}, 6144
        s_add_u32 s{sTp}, s{sTp}, s{sW2}
        s_add_u32 s30, s30, s{sW2}
        s_add_u32 s30, s30, {192*1024}
        s_bfe_u32 s{sT}, s{sQ}, 0x30001
        s_lshl_b32 s{sT}, s{sT}, 7
        s_add_u32 s{sW2}, s{sW2}, s{sT}
        """)
        a(f"""
        v_lshrrev_b32 v{vT2}, 4, v{vL}
        v_and_b32 v{vT3}, 15, v{vL}
        s_lshl_b32 s{sT2}, s{sW}, 12
        s_add_u32 s{sT2}, s{sT2}, {TAB}
        v_lshl_add_u32 v{vXw}, v{vT3}, 4, s{sT2}
        v_lshl_add_u32 v{vXw}, v{vT2}, 10, v{vXw}
        s_lshl_b32 s{sT}, s{sE}, 13
        s_add_u32 s{sT}, s{sT}, {TAB}
        v_add_u32 v{vXr_}, s{sT}, v{vL16}
        s_xor_b32 s{sT2}, s{sT2}, 4096
        v_add_u32 v{vPr}, s{sT2}, v{vL16}
        v_xor_b32 v27, 4, v58
        s_mul_i32 s{sT}, s{sE}, {USZ}
        s_add_u32 s{sT}, s{sT}, {UB0+256}
        s_lshl_b32 s{sT2}, s{sPar}, 8
        v_lshl_add_u32 v{vBa}, v{vT3}, 5, s{sT}
        v_lshl_add_u32 v{vUa}, v{vT2}, 3, v{vBa}
        v_lshlrev_b32 v{vT3}, 4, v{vT2}
        v_add_u32 v{vBa}, v{vT3}, v{vBa}
        v_subrev_u32 v{vBa}, s{sT2}, v{vBa}
        v_bfe_u32 v{vT2}, v{vL}, 2, 2
        v_sub_u32 v{vT4}, 0, v{vT2}
        v_and_b32 v{vT4}, 3, v{vT4}
        v_mul_u32_u24 v{vAa}, 4160, v{vT4}
        v_min_u32 v{vT2}, 1, v{vT2}
        v_lshlrev_b32 v{vT2}, 3, v{vT2}
        v_sub_u32 v{vAa}, v{vAa}, v{vT2}
        v_sub_u32 v{vAa}, v{vAa}, v{vT3}
        v_and_b32 v{vT2}, 3, v{vL}
        v_lshl_add_u32 v{vAa}, v{vT2}, 3, v{vAa}
        s_mul_i32 s{sT}, s{sE}, 16640
        s_add_u32 s{sT}, s{sT}, {CB0}
        v_mov_b32 v{vCb}, s{sT}
        s_add_u32 s{sT2}, s{sT2}, s{sT}
        s_add_u32 s{sT2}, s{sT2}, {32+32-8}
        v_add_u32 v{vAa}, s{sT2}, v{vAa}
        s_lshl_b32 s{sT2}, s{sPar}, 11
        s_add_u32 s{sT2}, s{sT2}, s{sT}
        s_add_u32 s{sT2}, s{sT2}, 32
        v_add_u32 v{vK}, s{sT2}, v{vL16}
        v_and_b32 v{vT2}, 15, v{vL}
        v_lshl_add_u32 v{vBp}, v{vT2}, 5, s{sT2}
        v_lshrrev_b32 v{vT2}, 4, v{vL}
        v_lshl_add_u32 v{vBp}, v{vT2}, 3, v{vBp}
        v_bfe_u32 v{vZ}, v{vL}, 3, 2
        v_mul_u32_u24 v{vZ}, 4160, v{vZ}
        v_and_b32 v{vT4}, 7, v{vL}
        v_lshl_add_u32 v{vZ}, v{vT4}, 2, v{vZ}
        v_add_u32 v{vZ}, s{sT}, v{vZ}
        s_lshl2_add_u32 s{sT}, s{sE}, {K0A}
        v_mov_b32 v{vK0}, s{sT}
        v_and_b32 v{vT4}, 1, v{vL}
        v_cmp_eq_u32 s[58:59], 1, v{vT4}
        v_cmp_le_u32 s[56:57], 32, v{vL}
        """)
    if "la0" in OPT: late_addr()
    def piece(p):
        rg, off = SHARED['LOC'][p]
        a(f"s_add_u32 m0, s{sLA if rg == 'A' else sLB}, {off}\ns_add_u32 s44, s{sW2}, {8192*p}")
        a(f"buffer_load_dwordx4 v{vW2o}, {W2}, s44 offen lds", "P")
    pn = [0]
    PE = int(OPT.get("pe", 0))
    def pieces(n):
        while pn[0] < n: piece(pn[0]); pn[0] += 1
    def touch(half):
        if half: a(f"v_min_u32 v{vTp}, {39*128}, v{vTp}")
        a(f"buffer_load_dword v29, v{vTp}, {W2}, s{sTp+half} offen", "tp")
    TP0, TP1 = int(OPT.get("tp0", 6)), int(OPT.get("tp1", 8))
    PR, PB, FR, KT, KA = 64, 72, 152, 200, 216
    a("s_waitcnt lgkmcnt(0)")
    a.lg = []
    assert int(OPT.get("nkb", 8)) in (7, 8)
    BP = int(OPT.get("bp", 360))
    NKB = int(OPT.get("nkb", 8))
    a.metro = ([int(OPT.get("bb0", 850)), int(OPT.get("b01", 350))] + [int(OPT.get("bq", 440))] * 3 + [BP] * 3 + [BP // 2, 3 * BP // 4])[:NKB]
    a.cost = 0
    uq = list(range(4))
    def on_bar(left):
        nb = NKB - 1 - left
        if nb in (0, 2, 5): stamp()
        if nb == 0: a(f"s_setprio {SP}")
        if nb == TP0: touch(0)
        if nb == TP1: touch(1)
        if nb >= 6: pieces(min(PE, {6: 4, 7: 11}.get(nb, 15)))
        if nb >= UG:
            for _ in range(int(OPT.get("un", 4))):
                if uq: u_loads(lambda t: a(t, "u"), [uq.pop(0)])
    a.on_bar = on_bar
    def pre_bar(left):
        nb = NKB - 1 - left
        if nb >= int(OPT.get("dfl", 1)): dma(99)
        a.wait(vm=f"C{nb}")
    a.pre_bar = pre_bar
    if 'la0' in OPT: a.on_gap = dma
    a.gap_len = int(OPT.get("dg", 32))
    a(f"""
    s_lshl_b32 s{sT}, s{sLdt}, 16
    s_and_b32 s{sT2}, s{sLdt}, s{sMask}
    s_cmp_eq_u32 s{sE}, 0
    s_cselect_b32 s{sT}, s{sT}, s{sT2}
    v_mov_b32 v{vT}, {LOG2E:#x}
    v_mul_f32 v{vT}, s{sT}, v{vT}
    v_exp_f32 v{vT}, v{vT}
    """)
    a.wait(vm="par")
    stamp()
    for k in range(6): a(f"v_lshlrev_b32 v{vPar+k}, 16, v{vPar+k}")
    TM = 136
    a(f"""
    v_cvt_pk_bf16_f32 v{vT}, v{vT}, v{vT}
    v_lshlrev_b32 v{vT}, 16, v{vT}
    v_mul_f32 v{PR}, v{vPar}, v{vT}
    v_mul_f32 v{PR+1}, v{vPar+1}, v{vT}
    v_mul_f32 v{vPar+2}, v{vPar+2}, v{vT}
    v_mul_f32 v{vPar+3}, v{vPar+3}, v{vT}
    v_mul_f32 v{PR}, {LOG2E:#x}, v{PR}
    v_mul_f32 v{PR+1}, 0.15915494, v{PR+1}
    v_rndne_f32 v{vT}, v{PR+1}
    v_sub_f32 v{PR+1}, v{PR+1}, v{vT}
    """)
    cmul(PR + 2, vPar + 4, vPar + 2)
    for i, l in enumerate((128, 256)):
        a(f"v_mul_f32 v{TM+4*i}, {fl(l)}, v{PR}\nv_mul_f32 v{TM+4*i+1}, {fl(l)}, v{PR+1}")
    for i in range(2): a(f"v_fract_f32 v{TM+4*i+1}, v{TM+4*i+1}\nv_exp_f32 v{TM+4*i}, v{TM+4*i}")
    for i in range(2): a(f"v_cos_f32 v{TM+4*i+2}, v{TM+4*i+1}\nv_sin_f32 v{TM+4*i+3}, v{TM+4*i+1}")
    a(f"ds_write_b128 v{vTab}, {vr(PR,4)}", "pw")
    a(f"""
    v_mul_f32 v{TM+2}, v{TM+2}, v{TM}
    v_mul_f32 v{TM+3}, v{TM+3}, v{TM}
    v_mul_f32 v{PR+6}, v{TM+6}, v{TM+4}
    v_mul_f32_e64 v{PR+7}, -v{TM+7}, v{TM+4}
    """)
    cmul(PR + 4, PR + 2, TM + 2)
    a(f"ds_write_b128 v{vTab}, {vr(PR+4,4)} offset:1024", "pw")
    def p_reads(s_):
        for j in range(4):
            for k in range(2):
                a(f"ds_read_b128 {vr(PB+32*(s_&1)+8*j+4*k,4)}, v{vPb} offset:{256*s_+16*j+1024*k}", f"pb{s_}")
    p_reads(0)
    a.on_gap = dma
    if "la0" not in OPT: late_addr()
    for s_ in range(4):
        if s_ < 3: p_reads(s_ + 1)
        a.wait(lg=f"pb{s_}")
        if s_ == 3: a(f"s_load_dwordx2 {sr(sTag,2)}, s[8:9], 128")
        F = FR + 16 * (s_ & 1)
        for jp in range(2):
            js = (2 * jp, 2 * jp + 1)
            P = lambda j: PB + 32 * (s_ & 1) + 8 * j
            T = lambda j, w_: TM + 8 * (j & 1) + 4 * w_
            for j in js:
                for w_, o in enumerate((vOA, vOG)):
                    a(f"v_mul_f32 v{T(j,w_)}, v{P(j)}, v{o}\nv_mul_f32 v{T(j,w_)+1}, v{P(j)+1}, v{o}")
            for j in js:
                a(f"v_fract_f32 v{T(j,0)+1}, v{T(j,0)+1}")
                for w_ in range(2): a(f"v_exp_f32 v{T(j,w_)}, v{T(j,w_)}")
            for j in js:
                for w_ in range(2):
                    a(f"v_cos_f32 v{T(j,w_)+2}, v{T(j,w_)+1}\nv_sin_f32 v{T(j,w_)+3}, v{T(j,w_)+1}")
            for j in js:
                a(f"v_mul_f32 v{T(j,0)+2}, v{T(j,0)+2}, v{T(j,0)}\nv_mul_f32_e64 v{T(j,0)+3}, -v{T(j,0)+3}, v{T(j,0)}")
                a(f"v_mul_f32 v{T(j,1)+2}, v{T(j,1)+2}, v{T(j,1)}\nv_mul_f32 v{T(j,1)+3}, v{T(j,1)+3}, v{T(j,1)}")
            for j in js:
                a(f"v_cvt_pk_bf16_f32 v{F+j}, v{T(j,0)+2}, v{T(j,0)+3}")
                cmul(T(j, 0), T(j, 0) + 2, P(j) + 6)
                cmul(T(j, 1), T(j, 1) + 2, P(j) + 2)
                a(f"v_cvt_pk_bf16_f32 v{F+4+j}, v{T(j,0)}, v{T(j,0)+1}")
                cmul(T(j, 0) + 2, T(j, 1) + 2, P(j) + 4)
                a(f"v_cvt_pk_bf16_f32 v{F+8+j}, v{T(j,1)}, v{T(j,1)+1}")
                a(f"v_cvt_pk_bf16_f32 v{F+12+j}, v{T(j,0)+2}, v{T(j,0)+3}")
            if jp == 0 and s_ > 0: k_mfma(s_ - 1)
    k_mfma(3)
    sys.stderr.write(f"metronome left {a.metro} cost {a.cost}\n")
    SW = int(OPT.get("sw", 0))
    while a.metro: a.tick()
    a.metro = None
    stamp()
    a(f"s_setprio {OPT.get('xprio', 0)}")
    for t in range(4): a(f"ds_write_b128 v{vXw}, {vr(KT+4*t,4)} offset:{256*t}")
    if NKB == 10: a("ds_write_b32 v58, v58 offset:16")
    a(f"s_waitcnt lgkmcnt(0)\ns_cmp_eq_u32 s{sTag}, 0\ns_cbranch_scc1 S_tagslow\nS_tagok:")
    stamp()
    if NKB < 10:
        a("s_barrier")
        pieces(min(PE, {6: 4, 7: 11}.get(NKB, 15)))
        if TP1 == NKB: touch(1)
        if SW:
            assert NKB == 8
            pieces(SW)
            a(f"s_barrier\ns_setprio {OPT.get('xp2', 3)}")
    else:
        a("""
        S_xw:
        ds_read_b32 v28, v27 offset:16
        s_waitcnt lgkmcnt(0)
        v_readfirstlane_b32 s44, v28
        s_cmp_eq_u32 s44, 0
        s_cbranch_scc1 S_xw
        """)
    stamp()
    NREST = max(0, 10 - NKB - 2)
    a(f"s_cmp_lg_u32 s{sPar}, 0\ns_cbranch_scc1 S_par1")
    KP = 64
    PK = 88
    K = lambda i: KA + i
    cnt = [0]
    CBAR = [int(x) for x in OPT.get('cbar', '2,5,6,7').split(',')]
    def packs(run, k):
        for cp in range(4):
            for j in range(4): a(f"v_cvt_pk_bf16_f32 v{PK+16*run+4*cp+j}, v{k[cp+2*j]}, v{k[cp+2*j+1]}")
            if cnt[0] in CBAR[:NREST]: a("s_barrier")
            cnt[0] += 1
            a(f"ds_write_b128 v{vK}, {vr(PK+16*run+4*cp,4)} offset:{4160*cp+1024*run}")
            if SW: pieces(min(24, pn[0] + int(OPT.get("swi", 2))))
    hist0 = list(a.hist); pn0 = pn[0]; vm0 = list(a.vm)
    for q in range(3):
        a(f"ds_read_b128 {vr(KA+4*q,4)}, v{vXr_} offset:{1024*q}\nds_read_b128 {vr(KP+4*q,4)}, v{vXr_} offset:{TSZ+1024*q}")
    a(f"""
    v_mov_b32 v{vT4}, 0
    ds_write_b32 v{vZ}, v{vT4}
    s_waitcnt lgkmcnt(1)
    """)
    for j in range(12): a(f"v_add_f32 v{KA+j}, v{KA+j}, v{KP+j}")
    a(f"""
    v_cndmask_b32 v{K(1)}, v{K(1)}, v{K(0)}, s[56:57]
    v_cndmask_b32 v{K(3)}, v{K(3)}, v{K(4)}, s[56:57]
    v_cndmask_b32 v{K(5)}, v{K(5)}, v{K(4)}, s[56:57]
    v_cndmask_b32 v{K(7)}, v{K(7)}, v{K(8)}, s[56:57]
    v_mov_b32 v{K(12)}, v{K(8)}
    v_mov_b32 v{K(13)}, v{K(8)}
    s_mov_b64 exec, 1
    ds_write_b32 v{vK0}, v{K(0)}
    v_mov_b32 v{K(0)}, 0
    s_mov_b64 exec, -1
    v_mov_b32_dpp v{K(12)}, v{K(1)} wave_shl:1 row_mask:0xf bank_mask:0xf
    v_mov_b32_dpp v{K(13)}, v{K(2)} wave_shl:1 row_mask:0xf bank_mask:0xf
    """)
    packs(1, [K(9)] * 3 + [K(10)] * 3 + [K(11)] * 5)
    packs(0, [K(i) for i in range(9)] + [K(12), K(13)])
    a(f"""
    s_mov_b64 exec, 1
    ds_write_b32 v{vCb}, v{PK} offset:{2*4160+28}
    ds_write_b32 v{vCb}, v{PK+4} offset:{3*4160+28}
    s_mov_b64 exec, -1
    s_branch S_parj
    S_par1:
    """)
    a.hist = hist0; cnt[0] = 0; pn[0] = pn0; a.vm = vm0
    a(f"ds_read_b128 {vr(KA+12,4)}, v{vXr_} offset:3072\nds_read_b128 {vr(KP,4)}, v{vXr_} offset:{TSZ+3072}\ns_waitcnt lgkmcnt(0)")
    for j in range(4): a(f"v_add_f32 v{KA+12+j}, v{KA+12+j}, v{KP+j}")
    a(f"v_cndmask_b32 v{K(0)}, v{K(12)}, v{K(13)}, s[58:59]\nv_cndmask_b32 v{K(1)}, v{K(14)}, v{K(15)}, s[58:59]")
    packs(0, [K(12)] * 4 + [K(0)] + [K(13)] * 6)
    packs(1, [K(14)] * 4 + [K(1)] + [K(15)] * 6)
    a("S_parj:")
    a.lg = []
    a(f"""
    s_lshl_b32 s{sT}, s{sD}, 16
    s_and_b32 s{sT2}, s{sD}, s{sMask}
    s_cmp_eq_u32 s{sE}, 0
    s_cselect_b32 s{sD}, s{sT}, s{sT2}
    s_lshl1_add_u32 s{sT}, s{sQ}, s{sE}
    s_mul_i32 s{sT}, s{sT}, {GC}
    s_add_u32 s{sT}, s{sT}, {Y2}
    s_lshl_b32 s{sT2}, s{sPar}, 9
    s_add_u32 s{sT}, s{sT}, s{sT2}
    s_lshl_b32 s{sT2}, s{sPar}, 10
    s_sub_u32 s{sT2}, 1024, s{sT2}
    v_lshrrev_b32 v{vT}, 5, v{vL}
    v_mad_u32_u24 v{vT}, v{vT}, s{sT2}, v{vL16}
    s_lshl2_add_u32 s{sT2}, s{sQ}, s{sW}
    s_lshl_b32 s{sT2}, s{sT2}, 7
    s_add_u32 s{sT2}, s{sT2}, {FY}
    v_mov_b32 v{vT3}, s{sTag}
    v_mov_b32 v{vT4}, s{sTag+1}
    s_mov_b32 s{sCnt}, 0
    """)
    AS, BS, YA, OV, UU, KD = [64, 128], [96, 160], 192, 10, 2, 26
    stamp()
    CE = "ce" in OPT
    C2 = "c2" in OPT
    if not CE:
        if not SW: a("s_barrier")
        while uq: u_loads(lambda t: a(t, "u"), [uq.pop(0)])
        if TP1 == 9: touch(1)
        if TP1 > 9: pieces(TP1); touch(1)
        if "gp" not in OPT: pieces(int(OPT["c2"]) if C2 else 24)
    assert not uq
    a.wait(vm="u")
    a("S_uchk:")
    a(f"v_cmp_ne_u64 vcc, {sr(sTag,2)}, {vr(vU+2,2)}")
    for k in range(1, 4): a(f"v_cmp_ne_u64 s[{42+2*k}:{43+2*k}], {sr(sTag,2)}, {vr(vU+4*k+2,2)}")
    for k in range(1, 4): a(f"s_or_b64 vcc, vcc, s[{42+2*k}:{43+2*k}]")
    a(f"s_cbranch_vccnz S_uslow\nS_uok:\ns_mov_b32 s{sCnt}, 0")
    stamp()
    for k in range(4): a(f"ds_write_b64 v{vUw}, {vr(vU+4*k,2)} offset:{256*k}")
    if not C2:
        a.wait(vm="P", lg=0)
        a(f"s_setprio {OPT.get('cprio', 1)}\ns_barrier")
    else:
        a(f"""
        ds_write_b32 v58, v58 offset:16
        v_mov_b32 v{vT2}, {FLG}
        S_m4:
        ds_read_b128 v[44:47], v{vT2} offset:16
        s_waitcnt lgkmcnt(0)
        v_min_u32 v44, v44, v45
        v_min3_u32 v44, v44, v46, v47
        v_cmp_eq_u32 vcc, 0, v44
        s_cbranch_vccnz S_m4
        """)
        CE = True
    a.lg = []
    if CE and not C2: pieces(int(OPT.get("npre", 8)))
    PG, CBI = int(OPT.get("pg", 3)), int(OPT.get("cbi", 90))
    stamp()
    def reads(rho):
        s_ = rho & 1; L = []
        for j in range(8):
            L.append((f"ds_read_b128 {vr(BS[s_]+4*j,4)}, v{vBa} offset:{512*j+64*(3-rho)}", f"f{rho}_{j}"))
            L.append((f"ds_read_b64_tr_b16 {vr(AS[s_]+4*j,2)}, v{vAa} offset:{64*(8*j+rho)+8}", f"f{rho}_{j}"))
            L.append((f"ds_read_b64_tr_b16 {vr(AS[s_]+4*j+2,2)}, v{vAa} offset:{64*(8*j+rho)}", f"f{rho}_{j}"))
        return L
    for t, tag in reads(0): a(t, tag)
    first = [True] * 8
    def cm(rho, p, q):
        a.wait(lg=f"f{rho}_{max(p,q)}")
        ct = p + q; s_ = rho & 1
        a(f"v_mfma_f32_16x16x32_bf16 {vr(YA+4*ct,4)}, {vr(AS[s_]+4*p,4)}, {vr(BS[s_]+4*q,4)}, {'0' if first[ct] else vr(YA+4*ct,4)}")
        first[ct] = False
    for rho in range(3):
        if rho == int(OPT.get("cp3", 0)): a("s_setprio 3")
        nxt = reads(rho + 1)
        for n, (p, q) in enumerate(sorted([(p, q) for p in range(8) for q in range(8) if p + q <= 7], key=lambda x: max(x))):
            cm(rho, p, q)
            if n >= (int(OPT.get('cn0', 8)) if rho == 0 else int(OPT.get('cn', 8))) and nxt:
                t, tag = nxt.pop(0); a(t, tag)
            if n == 35 and 'cw' in OPT: a.wait(lg=0)
            if CE:
                g = 36 * rho + n
                if g % PG == 0 and pn[0] < 24: pieces(pn[0] + 1)
                if g == CBI:
                    assert pn[0] == 24
                    a.wait(vm=0)
                    a("s_barrier")
                if (C2 or "pd" in OPT) and g == CBI + int(OPT.get("pd", 12)): a("s_setprio 3")
        assert not nxt
    a(f"s_cmp_lg_u32 s{sPar}, 0\ns_cbranch_scc1 S_conv1")
    keep = (list(a.hist), list(a.lg), nstamp[0])
    ZB, PB_ = 64, 80
    for par, (KEEP, SEND) in enumerate((((0, 3, 4, 7), (1, 2, 5, 6)), ((1, 2, 5, 6), (0, 3, 4, 7)))):
        if par: a("S_conv1:")
        a.hist, a.lg, nstamp[0] = list(keep[0]), list(keep[1]), keep[2]
        side = [lambda: a(f"ds_read_b32 v{KD}, v{vK0}", "uu")]
        side += [lambda k=k, ct=ct: a(f"ds_read_b64 {vr(UU+2*k,2)}, v{vUa} offset:{480-256+512*ct}", "uu") for k, ct in enumerate(KEEP)]
        side += [None] * 5
        side += [lambda: (a.wait(lg="uu"), a(f"v_add_f32 v{KD}, s{sD}, v{KD}"))]
        side += [lambda j=j: a(f"v_lshlrev_b32 v{ZB+2*j}, 16, v{UU+j}\nv_and_b32 v{ZB+2*j+1}, s{sMask}, v{UU+j}") for j in range(8)]
        order = [(p, ct - p) for ct in SEND + KEEP for p in range(ct + 1)]
        ends = {}
        for n, (p, q) in enumerate(order): ends[p + q] = n
        wq = list(SEND)
        for n, (p, q) in enumerate(order):
            cm(3, p, q)
            if wq and n >= ends[wq[0]] + 5:
                ct = wq.pop(0); a(f"ds_write_b128 v{vTab}, {vr(YA+4*ct,4)} offset:{1024*SEND.index(ct)}", "sw")
                if not wq: a(f"ds_write_b32 v58, v58", "sw")
            elif side:
                t = side.pop(0)
                if t: t()
            if n == 31:
                assert not wq and not side
                a("ds_read_b32 v28, v27", "pr")
                for k in range(4): a(f"ds_read_b128 {vr(PB_+4*k,4)}, v{vPr} offset:{1024*k}", "pr")
        stamp()
        a.wait(lg=0)
        a(f"""
        v_cmp_eq_u32 vcc, 0, v28
        s_cbranch_vccz S_pok{par}
        S_pw{par}:
        ds_read_b32 v28, v27
        """)
        for k in range(4): a(f"ds_read_b128 {vr(PB_+4*k,4)}, v{vPr} offset:{1024*k}")
        a(f"""
        s_waitcnt lgkmcnt(0)
        v_cmp_eq_u32 vcc, 0, v28
        s_cbranch_vccnz S_pw{par}
        S_pok{par}:
        """)
        a.lg = []
        for j in range(16): a(f"v_fmac_f32 v{PB_+j}, v{KD}, v{ZB+j}")
        a("s_setprio 3")
        for k, ct in enumerate(KEEP):
            for j in range(4): a(f"v_add_f32 v{PB_+4*k+j}, v{PB_+4*k+j}, v{YA+4*ct+j}")
            for j in range(2): a(f"v_cvt_pk_bf16_f32 v{UU+2*k+j}, v{PB_+4*k+2*j}, v{PB_+4*k+2*j+1}")
            a(f"ds_write_b64 v{vBp}, {vr(UU+2*k,2)} offset:{512*k}")
            if k & 1: a(f"ds_read_b128 {vr(OV+2*(k-1),4)}, v{vK} offset:{512*(k-1)}", f"bp{k}")
        if par == 0: a("s_branch S_done")
    a("S_done:")
    for j in range(2):
        a.wait(lg=f"bp{2*j+1}")
        a(f"buffer_store_dwordx4 {vr(OV+4*j,4)}, v{vT}, {WS}, s{sT} offen offset:{2048*j} sc1")
    a(f"s_mov_b64 exec, 1\ns_waitcnt vmcnt(0)\nbuffer_store_dwordx2 {vr(vT3,2)}, off, {WS}, s{sT2} sc1")
    stamp()
    if STAMPS:
        a("s_waitcnt vmcnt(0)"); stamp()
    if "wb" in OPT:
        a(f"s_lshr_b32 s{sT}, s2, 3\ns_or_b32 s{sT}, s{sT}, s{sW}\ns_cmp_lg_u32 s{sT}, 0\ns_cbranch_scc1 S_nowb\nbuffer_wbl2 sc1\nS_nowb:")
    stamp_flush(WS, f"s{sW}", vT)
    a("s_endpgm")
    tag_slow("S", sTag, 8, [192], vNon, sCnt)
    a.raw(f"""S_uslow:
{retry_mark(4)}  s_add_u32 s{sCnt}, s{sCnt}, 1
  s_cmp_ge_u32 s{sCnt}, {SPIN}
  s_cbranch_scc1 S_uok
  s_sleep 4""")
    u_loads(lambda t: a.raw("  " + t))
    a.raw("  s_waitcnt vmcnt(0)\n  s_branch S_uchk")

hdr = open("cdna_kernels/" + NAME + ".s.ref").read().split("\n")
top = [l for l in hdr if l.startswith(";") and "@launch" not in l][:16]
a.raw("\n".join(top))
a.raw("; @launch grid=(256,1,1) block=(512,1,1) lds=163840")
a.raw(""";
; out = x + conv(K, LN(x)) + LN(x)*Dskip + silu(LN(x) w1) w2, one launch, one 512-thread workgroup per CU.
; removed by a rank-1 MFMA with the column sums of w1, the scale in the SiLU epilogue), then a 64x64 tile of h*w2 with K
; (tap index rounded to bf16 as in the reference), its causal convolution as Toeplitz MFMAs, and part of the tile loads.
; (a clock value read once and published in d_debug).  xn and the row statistics travel as tagged 16-byte granules, the
; conv result as plain data behind one flag line per producing wave; all of them are written through (sc1) and read with
; sc1.  h is left to the die's L2 only after the 16 workgroups of a row block have seen that they all report the same
; XCC id, otherwise it is written through as well.  Every wait on another workgroup is bounded.""")
a.raw(f""".amdgcn_target "amdgcn-amd-amdhsa--gfx950"
.text
.globl {NAME}_kernel
.p2align 8
.type {NAME}_kernel,@function
{NAME}_kernel:""")
stamp()
NST[0] = 14
a(f"""
v_lshrrev_b32 v1, 6, v0
s_cmp_ge_u32 s2, 256
s_cbranch_scc1 L_exit
v_readfirstlane_b32 s32, v1
s_and_b32 s3, s2, 7
s_lshl_b32 s3, s3, 5
s_lshr_b32 s96, s2, 3
s_add_u32 s3, s3, s96
s_cmp_lt_u32 s32, 4
s_cbranch_scc1 L_gemm
""")
if "nocpf" not in OPT:
    a(f"""
    s_getpc_b64 s[94:95]
    s_lshl_b32 s96, s96, 10
    v_and_b32 v255, 7, v0
    v_lshl_add_u32 v255, v255, 7, s96
    v_min_u32 v255, L_exit-{NAME}_kernel-128, v255
    global_load_dword v254, v255, s[94:95]
    """)
EV[1] = False
ssm = ssm_role()
next(ssm)
EV[1] = True
a("L_gemm:")
a.hist = []; a.vm = []; a.lg = []
if STAMPS: nstamp[0] = 1
gemm_role()
a.raw(".p2align 6")
a("L_ssm:")
NST[0] = 14
EV[1] = False
for _ in ssm: pass
a("L_exit:\ns_endpgm")
a.raw(f""".section .rodata,"a"
.p2align 6
.amdhsa_kernel {NAME}_kernel
  .amdhsa_next_free_vgpr 256
  .amdhsa_next_free_sgpr 102
  .amdhsa_accum_offset 256
  .amdhsa_group_segment_fixed_size 0
  .amdhsa_kernarg_size 120
  .amdhsa_user_sgpr_count 2
  .amdhsa_user_sgpr_kernarg_segment_ptr 1
  .amdhsa_system_sgpr_workgroup_id_x 1
.end_amdhsa_kernel""")
sys.stdout.write(a.text())
sys.stderr.write(f"nops inserted: {a.nops}\n")
```

```python
import sys, struct
from asmlib import Asm, vr, sr

NAME = "parallel_sum__ssm_conv_s4__dense_activation_silu__prompt"
OPT = {x.split("=")[0][2:]: (x.split("=")[1] if "=" in x else "1") for x in sys.argv[1:] if x.startswith("--")}
OPT.setdefault("ol", "nt")
STAMPS = "stamps" in OPT
SPIN = int(OPT.get("spin", 4000))
PLF = OPT.get("plf", "sc1").replace("_", " ")
FSF = OPT.get("fsf", "sc1").replace("_", " ")
M1, M2 = OPT.get("m1", "81"), OPT.get("m2", "81")
LOCAL = M1 == "81" and M2 == "81" and "nolocal" not in OPT
HSF = "" if LOCAL else "sc1"

HROW = 88 * 1024
H_SIZE = 64 * HROW
ST = 0x580000
FH = 0x590000
GS = 18432
GC = 4608
FY = 0x5C0000
XNP = 0x600000
XS = 9216
FX = 0x5A0000
FG = 0x5B0000
Y2 = 0xA80000
WS_SIZE = 0x1000000
STAMP_OFF = 0xF80000
LOG2E = 0x3fb8aa3b
fl = lambda x: "0x%08x" % struct.unpack("<I", struct.pack("<f", x))[0]

a = Asm()
SHARED = {}
nstamp = [0]
EV = [0, True]
NST = [16]
def stamp(force=False):
    if "padev" in OPT and EV[1]:
        if EV[0] == int(OPT["padev"]): a("s_memrealtime s[86:87]")
        EV[0] += 1
    if STAMPS and nstamp[0] < NST[0] and (force or ("cs" not in OPT and "g2" not in OPT and "ss" not in OPT) or nstamp[0] in (0, 13) or ("g2" in OPT and nstamp[0] >= 7)):
        i = nstamp[0]; nstamp[0] += 1
        a(f"s_memtime s[{60+2*i}:{61+2*i}]")
def stamp_flush(wsrd, wave_s, vt, row=0):
    if not STAMPS: return
    n = nstamp[0]
    a("s_memrealtime s[98:99]")
    a("s_waitcnt lgkmcnt(0)")
    a(f"s_lshl_b32 s96, s2, 2\ns_add_u32 s96, s96, {wave_s}\ns_lshl_b32 s96, s96, 7\ns_add_u32 s96, s96, {STAMP_OFF+row*512}")
    a("s_mov_b64 exec, 1")
    for i in range(n):
        a(f"v_mov_b32 v{vt}, s{60+2*i}")
        a(f"buffer_store_dword v{vt}, off, {wsrd}, s96 offset:{4*i}")
    a(f"v_mov_b32 v{vt}, s97\nbuffer_store_dword v{vt}, off, {wsrd}, s96 offset:116")
    a(f"v_mov_b32 v{vt}, s100\nbuffer_store_dword v{vt}, off, {wsrd}, s96 offset:120")
    a(f"v_mov_b32 v{vt}, s98\nbuffer_store_dword v{vt}, off, {wsrd}, s96 offset:124")
    nstamp[0] = 0
def retry_mark(bit):
    return f"  s_add_u32 s97, s97, {1 << bit}\n" if STAMPS else ""

def srd(base, size):
    a(f"s_mov_b32 s{base+2}, {size}\ns_mov_b32 s{base+3}, 0x20000")

def cmul(d, x, y):
    a(f"v_mul_f32 v{d}, v{x+1}, v{y+1}")
    a(f"v_mul_f32 v{d+1}, v{x+1}, v{y}")
    a(f"v_fma_f32 v{d}, v{x}, v{y}, -v{d}")
    a(f"v_fmac_f32 v{d+1}, v{x}, v{y+1}")

def tag_slow(pfx, sTag, dbg, offs, vt, sCnt):
    a.raw(f"{pfx}_tagslow:")
    if STAMPS: a.raw(retry_mark(0).rstrip("\n"))
    for o in offs:
        a.raw(f"  s_load_dwordx2 {sr(sTag,2)}, s[{dbg}:{dbg+1}], {o}\n  s_waitcnt lgkmcnt(0)\n  s_cmp_lg_u32 s{sTag}, 0\n  s_cbranch_scc1 {pfx}_tagok")
    a.raw(f"""  s_mov_b32 s{sCnt}, 0
{pfx}_tagloop:
  buffer_load_dwordx2 {vr(vt,2)}, off, s[{dbg}:{dbg+3}], 0 sc1
  s_add_u32 s{sCnt}, s{sCnt}, 1
  s_waitcnt vmcnt(0)
  v_readfirstlane_b32 s{sTag}, v{vt}
  v_readfirstlane_b32 s{sTag+1}, v{vt+1}
  s_nop 3
  s_cmp_lg_u32 s{sTag}, 0
  s_cbranch_scc1 {pfx}_tagok
  s_cmp_lt_u32 s{sCnt}, {SPIN}
  s_cbranch_scc1 {pfx}_tagloop
  s_branch {pfx}_tagok""")

def gemm_role():
    X, W1, WS, W2, OUT, DBG, HS = "s[4:7]", "s[8:11]", "s[12:15]", "s[16:19]", "s[20:23]", "s[24:27]", "s[28:31]"
    sP = 3
    sW, sRB, sM, sXB, sWB, sC, sTx, sT, sLA, sLB, sW2, sHS, sHL = range(32, 45)
    sT2, sT3, sL2e, sCnt, sO, sTag, sFl, sRT = 45, 46, 47, 48, 49, 50, 52, 53
    sB1, sMask, sCG, sXcc, sFar, sHS2, sIa = 54, 55, 56, 57, 58, 59, 101
    sY, sRet = sFl, sFar
    sMean, sNeg = 88, 92
    sXn, sSt, sCx = 89, 90, 96
    SROW, STG = 1056, 98304
    vL = 1
    vXo, vWo, vXr, vWr, vW2o, vW2r, vL16 = 2, 6, 9, 13, 17, 18, 22
    vT, vNon, vCs, vT2, vC2, vSa = 23, 24, 26, 29, 30, 31
    vSt, vNeg = 32, 36
    HALF, vSw, vSr, vIa, vT3 = 88, 92, 93, 94, 95
    ACC1, WF, CSA, XF, CSF = 40, 96, 144, 192, 168
    LX, LF, LG, vId = 224, 232, 248, 252
    ACC2, STASH, HB, HD = 32, 96, 192, 8
    LB0 = 49152
    FARAWAY = 0x40000000
    IP = int(OPT.get('ip', 1))
    a(f"""
    s_load_dwordx2 s[4:5], s[0:1], 0
    s_load_dwordx2 s[8:9], s[0:1], 80
    s_load_dwordx2 s[24:25], s[0:1], 104
    s_load_dwordx2 s[12:13], s[0:1], 112
    s_load_dwordx2 s[16:17], s[0:1], 88
    s_load_dwordx2 s[20:21], s[0:1], 96
    v_and_b32 v{vL}, 63, v0
    s_lshr_b32 s{sRB}, s{sP}, 4
    s_and_b32 s{sM}, s{sP}, 15
    s_and_b32 s{sC}, s{sP}, 7
    s_mov_b32 s{sCx}, s{sC}
    v_lshlrev_b32 v{vL16}, 4, v{vL}
    s_lshl2_add_u32 s{sCnt}, s{sP}, s{sW}
    s_lshl_b32 s{sCnt}, s{sCnt}, 11
    s_setprio 2
    """)
    if STAMPS: a("s_memrealtime s[98:99]")
    srd(4, 2048 * 1024); srd(8, 512 * 2752)
    a(f"""
    v_lshrrev_b32 v{vT}, 3, v{vL}
    v_lshlrev_b32 v{vT}, 10, v{vT}
    v_lshrrev_b32 v{vT2}, 4, v{vL}
    v_xor_b32 v{vT2}, v{vT2}, v{vL}
    v_and_b32 v{vT2}, 7, v{vT2}
    v_lshl_add_u32 v{vXo}, v{vT2}, 4, v{vT}
    v_xor_b32 v{vXo+1}, 64, v{vXo}
    v_add_u32 v{vXo+2}, {2*7168}, v{vXo}
    v_add_u32 v{vXo+3}, {3*7168}, v{vXo+1}
    v_add_u32 v{vXo+1}, 7168, v{vXo+1}
    s_movk_i32 s{sT}, 5462
    s_movk_i32 s{sT2}, {2752-192}
    v_mul_u32_u24 v{vT}, s{sT}, v{vL}
    """)
    for j in range(3):
        if j: a(f"v_add_u32 v{vT}, {64*5462}, v{vT}")
        a(f"v_lshrrev_b32 v{vT2}, 16, v{vT}\nv_mad_u32_u24 v{vWo+j}, v{vT2}, s{sT2}, v{vL16}")
    a(f"""
    s_lshl2_add_u32 s{sXB}, s{sRB}, s{sW}
    s_lshl_b32 s{sXB}, s{sXB}, 15
    s_mul_i32 s{sWB}, s{sM}, 192
    s_mul_i32 s{sT}, s{sW}, {16*2752}
    s_add_u32 s{sWB}, s{sWB}, s{sT}
    s_lshr_b32 s{sO}, s{sXB}, 6
    s_and_b32 s{sW2}, s{sRB}, 1
    s_mul_i32 s{sHL}, s{sW2}, 1344
    s_add_u32 s{sHL}, s{sHL}, s{sT}
    s_mul_i32 s{sHS}, s{sW}, 11
    s_add_u32 s{sHS}, s{sHS}, s{sW2}
    s_lshl_b32 s{sHS}, s{sHS}, 15
    s_cmp_eq_u32 s{sM}, 15             ; the 16th workgroup of a row block has no GEMM1 tile: its tile loads go out of range
    s_cselect_b32 s{sXB}, {"s%d" % sHS if IP else FARAWAY}, s{sXB}
    s_cselect_b32 s{sWB}, {"s%d" % sHL if IP > 1 else FARAWAY}, s{sWB}
    s_lshl_b32 s{sLA}, s{sW}, 12
    s_mul_i32 s{sLB}, s{sW}, 3072
    s_add_u32 s{sLB}, s{sLB}, {LB0}
    s_waitcnt lgkmcnt(0)
    """)
    if STAMPS: a("s_mov_b32 s100, s98\ns_mov_b32 s97, 0")
    stamp()

    def w_ops(c):
        ops = []
        for j in range(3):
            def f(j=j):
                if j == 0:
                    a(f"s_mul_i32 s{sT2}, s{sC}, {64*2752}\ns_add_u32 m0, s{sLB}, {(c&3)*12288}\ns_add_u32 s{sT2}, s{sT2}, s{sWB}")
                a(f"buffer_load_dwordx4 v{vWo+j}, {W1}, s{sT2} offen offset:{j*1024} {OPT.get('w1f', '')} lds", f"C{c}")
                if j == 0: a(f"s_add_u32 s{sC}, s{sC}, 1\ns_and_b32 s{sC}, s{sC}, 7")
            ops.append(f)
        return ops
    def x_ops(c):
        ops = []
        for pc in range(4):
            def f(pc=pc):
                if pc == 0:
                    a(f"s_lshl_b32 s{sTx}, s{sCx}, 7\ns_add_u32 m0, s{sLA}, {(c%3)*16384}\ns_add_u32 s{sTx}, s{sTx}, s{sXB}")
                a(f"buffer_load_dwordx4 v{vXo+pc}, {X}, s{sTx} offen offset:{pc*1024} lds", f"C{c}")
                if pc == 0: a(f"s_add_u32 s{sCx}, s{sCx}, 1\ns_and_b32 s{sCx}, s{sCx}, 7")
            ops.append(f)
        return ops
    DQ = []; QT = []; QK = []
    for c in range(8):
        first = (w_ops(c), x_ops(c)) if c < 2 else (x_ops(c), w_ops(c))
        for grp_ in first:
            isx = len(grp_) == 4
            lim = -1 if c < (3 if isx else 4) else (max(1, 4 * (c - 3)) if isx else 4 * (c - 3) + 2)
            DQ += [(lim, f) for f in grp_]
            QT += [f'C{c}'] * len(grp_)
            QK += [('x' if isx else 'w') + str(c)] * len(grp_)
    def issue(n, s_=-1):
        for _ in range(n):
            if DQ and DQ[0][0] <= s_: DQ.pop(0)[1]()
    for r in range(2):
        a(f"buffer_load_dwordx4 {vr(LX+4*r,4)}, v{vL16}, {X}, s{sCnt} offen offset:{1024*r}", "xrow")
    if IP:
        a(f"s_mov_b64 s[98:99], s[4:5]\ns_cmp_eq_u32 s{sM}, 15\ns_cselect_b64 s[4:5], s[16:17], s[4:5]\ns_cselect_b64 s[8:9], s[16:17], s[8:9]")
    a(f"""
    s_getreg_b32 s{sXcc}, hwreg(HW_REG_XCC_ID, 0, 4)
    s_mov_b32 s{sB1}, 0x3f803f80
    s_mov_b32 s{sMask}, 0xffff0000
    s_mul_i32 s{sT3}, s{sW}, {2*SROW}
    s_add_u32 s{sT3}, s{sT3}, {STG}
    v_add_u32 v{vSw}, s{sT3}, v{vL16}
    v_bfe_u32 v{vT3}, v{vL}, 2, 2
    v_and_b32 v{vT}, 1, v{vL}
    v_lshl_add_u32 v{vT}, v{vT}, 2, v{vT3}
    v_mul_u32_u24 v{vT}, {SROW}, v{vT}
    v_and_b32 v{vT2}, 2, v{vL}
    v_lshl_add_u32 v{vT}, v{vT2}, 2, v{vT}
    v_lshrrev_b32 v{vT2}, 4, v{vL}
    v_lshl_add_u32 v{vT}, v{vT2}, 4, v{vT}
    s_lshl_b32 s{sT3}, s{sW}, 8
    s_add_u32 s{sT3}, s{sT3}, {STG}
    v_add_u32 v{vSr}, s{sT3}, v{vT}
    """)
    issue(7)
    a(f"""
    v_and_b32 v{vSa}, 31, v{vL}
    v_lshrrev_b32 v{vT2}, 5, v{vL}
    v_bfe_u32 v{vC2}, v{vL}, 1, 3
    v_xor_b32 v{vC2}, v{vC2}, v{vT2}
    v_lshl_add_u32 v{vC2}, v{vC2}, 4, s{sLA}
    v_lshl_add_u32 v{vC2}, v{vSa}, 7, v{vC2}
    v_bfe_u32 v{vT3}, v{vL}, 2, 2
    v_lshl_add_u32 v{vT}, v{vT2}, 3, v{vT3}
    v_mul_u32_u24 v{vT}, 192, v{vT}
    v_bfe_u32 v{vT2}, v{vL}, 4, 1
    v_lshl_add_u32 v{vT}, v{vT2}, 5, v{vT}
    v_and_b32 v{vT2}, 3, v{vL}
    v_lshl_add_u32 v{vT}, v{vT2}, 3, v{vT}
    v_add_u32 v{vT}, {LB0}, v{vT}
    """)
    for i in range(4):
        a(f"""
        s_add_u32 s{sT3}, s{sW}, {i}
        s_and_b32 s{sT3}, s{sT3}, 3
        s_lshl_b32 s{sCnt}, s{sT3}, 5
        s_mulk_i32 s{sT3}, 3072
        v_xor_b32 v{vXr+i}, s{sCnt}, v{vC2}
        v_add_u32 v{vWr+i}, s{sT3}, v{vT}
        """)
    issue(3)
    a(f"""
    v_lshrrev_b32 v{vT2}, 4, v{vL}
    """)
    srd(24, 256)
    srd(12, WS_SIZE)
    a(f"""
    v_lshrrev_b32 v{vT}, 2, v{vL}
    v_xor_b32 v{vT}, v{vT}, v{vT2}
    v_and_b32 v{vT}, 1, v{vT}
    v_add_u32 v{vT}, -1, v{vT}
    """)
    for k in range(4): a(f"v_and_b32 v{HALF+k}, s{sB1}, v{vT}")
    FILL = [u.strip() for u in f"""
    s_mov_b32 s18, {1376*1024}
    s_mov_b32 s19, 0x20000
    s_mov_b32 s22, {2048*1024}
    s_mov_b32 s23, 0x20000
    s_mov_b32 s28, s12
    s_mov_b32 s29, s13
    s_mov_b32 s30, {H_SIZE}
    s_mov_b32 s31, 0x20000
    s_mov_b32 s{sL2e}, {LOG2E:#x}
    v_lshlrev_b32 v{vSa}, 4, v{vSa}
    s_add_u32 s{sO}, s{sO}, {ST}
    v_and_b32 v{vIa}, 15, v{vL}
    v_lshlrev_b32 v{vIa}, 7, v{vIa}
    s_lshl_b32 s{sIa}, s{sRB}, 11
    s_add_u32 s{sIa}, s{sIa}, {ST}
    v_lshrrev_b32 v{vT}, 3, v{vL}
    v_lshlrev_b32 v{vT}, 10, v{vT}
    v_bfe_u32 v{vT2}, v{vL}, 4, 1
    v_lshlrev_b32 v{vT3}, 2, v{vT2}
    v_xor_b32 v{vT3}, v{vT3}, v{vL}
    v_and_b32 v{vT3}, 7, v{vT3}
    v_lshl_add_u32 v{vW2o}, v{vT3}, 4, v{vT}
    v_lshrrev_b32 v{vT}, 5, v{vL}
    v_bfe_u32 v{vT3}, v{vL}, 2, 2
    v_lshl_add_u32 v{vT}, v{vT}, 2, v{vT3}
    v_lshlrev_b32 v{vT}, 7, v{vT}
    v_lshl_add_u32 v{vT}, v{vT2}, 5, v{vT}
    v_bfe_u32 v{vT2}, v{vL}, 3, 1
    v_lshl_add_u32 v{vT}, v{vT2}, 6, v{vT}
    v_and_b32 v{vT2}, 3, v{vL}
    v_lshl_add_u32 v{vT}, v{vT2}, 3, v{vT}
    s_lshl_b32 s{sT3}, s{sW}, 5
    s_and_b32 s{sT3}, s{sT3}, 64
    v_xor_b32 v{vT}, s{sT3}, v{vT}
    v_xor_b32 v{vT2}, 64, v{vT}
    v_add_u32 v{vW2r}, s{sLA}, v{vT}
    v_add_u32 v{vW2r+1}, s{sLA}, v{vT2}
    v_add_u32 v{vW2r+2}, s{sLB}, v{vT}
    v_add_u32 v{vW2r+3}, s{sLB}, v{vT2}
    s_and_b32 s{sT3}, s{sP}, 1
    s_lshl1_add_u32 s{sRT}, s{sRB}, s{sT3}
    s_lshr_b32 s{sCG}, s{sM}, 1
    s_mul_i32 s{sW2}, s{sW}, {352*1024}
    s_lshl_b32 s{sT}, s{sCG}, 7
    s_add_u32 s{sW2}, s{sW2}, s{sT}
    s_mul_i32 s{sHL}, s{sRT}, {2*HROW}
    s_mul_i32 s{sT}, s{sW}, {22*1024}
    s_add_u32 s{sHL}, s{sHL}, s{sT}
    s_lshl_b32 s{sT3}, s{sW}, 8
    s_add_u32 s{sT3}, s{sT3}, {LB0}
    v_lshl_add_u32 v{vT2}, v{vL}, 2, s{sT3}
    v_lshl_add_u32 v{vT}, v{vL}, 2, s{sLB}
    s_lshl2_add_u32 s{sT3}, s{sRB}, s{sW}
    s_mul_i32 s{sT3}, s{sT3}, {HROW}
    s_mul_i32 s{sHS}, s{sM}, 6144
    s_add_u32 s{sHS}, s{sHS}, s{sT3}
    s_add_u32 s{sHS2}, s{sHS}, 4096
    s_cmp_ge_u32 s{sM}, 14 | s_cselect_b32 s{sHS2}, {H_SIZE}, s{sHS2}
    s_lshr_b32 s{sT3}, s{sW}, 1
    s_lshl1_add_u32 s{sT3}, s{sRB}, s{sT3}
    s_lshl4_add_u32 s{sT3}, s{sT3}, s{sM}
    s_and_b32 s{sFl}, s{sW}, 1
    s_lshl1_add_u32 s{sFl}, s{sT3}, s{sFl}
    s_lshl_b32 s{sFl}, s{sFl}, 3
    s_add_u32 s{sFl}, s{sFl}, {FH}
    s_cmp_eq_u32 s{sM}, 15 | s_cselect_b32 s{sHS}, {H_SIZE}, s{sHS} | s_cselect_b32 s{sFl}, {WS_SIZE}, s{sFl}
    """.strip().split("\n")]
    def fill_(n):
        for _ in range(n):
            if FILL: a(FILL.pop(0).replace(" | ", "\n"))

    fill_(int(OPT.get("nfill", 0)))
    keepq = [(q, t) for q, t, k in zip(DQ, QT[len(QT)-len(DQ):], QK[len(QK)-len(DQ):]) if k not in ("x1", "x2", "w2", "w3")]
    DQ[:] = [q for q, _ in keepq]; QT[:] = [t for _, t in keepq]
    a(f"s_add_u32 s{sC}, s{sC}, 2\ns_and_b32 s{sC}, s{sC}, 7\ns_add_u32 s{sCx}, s{sCx}, 2\ns_and_b32 s{sCx}, s{sCx}, 7")
    a.wait(vm="xrow")
    stamp()

    vC = CSA; S = [252, 253]; vN = 254; sR = sMean
    def dpp_reduce(fill):
        for ctl in ("row_shr:1 row_mask:0xf bank_mask:0xf bound_ctrl:0", "row_shr:2 row_mask:0xf bank_mask:0xf bound_ctrl:0",
                    "row_shr:4 row_mask:0xf bank_mask:0xf bound_ctrl:0", "row_shr:8 row_mask:0xf bank_mask:0xf bound_ctrl:0",
                    "row_bcast:15 row_mask:0xa bank_mask:0xf", "row_bcast:31 row_mask:0xc bank_mask:0xf"):
            for r in range(2):
                a(f"v_add_f32_dpp v{S[r]}, v{S[r]}, v{S[r]} {ctl}")
            for _ in range(3):
                if fill: a(fill.pop(0))
        while fill: a(fill.pop(0))
    for k in range(4):
        for r in range(2):
            a(f"v_dot2_f32_bf16 v{S[r]}, v{LX+4*r+k}, s{sB1}, {'0' if k == 0 else 'v%d' % S[r]}")
    unpack = lambda: [t for r in range(2) for k in range(4) for t in
                      (f"v_lshlrev_b32 v{LF+8*r+2*k}, 16, v{LX+4*r+k}", f"v_and_b32 v{LF+8*r+2*k+1}, s{sMask}, v{LX+4*r+k}")]
    fill = unpack()
    for _ in range(3): a(fill.pop(0))
    dpp_reduce(fill)
    for r in range(2): a(f"v_mul_f32 v{S[r]}, 0x3b000000, v{S[r]}")
    for r in range(2): a(f"v_cvt_pk_bf16_f32 v{vN+r}, -v{S[r]}, -v{S[r]}")
    for r in range(2): a(f"v_readlane_b32 s{sMean+2*r}, v{S[r]}, 63")
    for r in range(2): a(f"v_readlane_b32 s{sNeg+2*r}, v{vN+r}, 63")
    for k in range(4):
        for r in range(2):
            a(f"v_pk_add_f32 {vr(vC+8*r+2*k,2)}, {vr(LF+8*r+2*k,2)}, {sr(sMean+2*r,2)} op_sel_hi:[1,0] neg_lo:[0,1] neg_hi:[0,1]")
    for r in range(2): a(f"s_and_b32 s{sNeg+2*r}, s{sNeg+2*r}, s{sMask}")
    for r in range(2): a(f"s_or_b32 s{sNeg+2*r+1}, s{sNeg+2*r}, s{sXcc}")
    for r in range(2):
        a(f"v_pk_mul_f32 {vr(vC+8*r,2)}, {vr(vC+8*r,2)}, {vr(vC+8*r,2)}")
    for k in range(1, 4):
        for r in range(2):
            a(f"v_pk_fma_f32 {vr(vC+8*r,2)}, {vr(vC+8*r+2*k,2)}, {vr(vC+8*r+2*k,2)}, {vr(vC+8*r,2)}")
    for r in range(2): a(f"v_add_f32 v{S[r]}, v{vC+8*r}, v{vC+8*r+1}")
    fill = [f"v_pk_add_f32 {vr(LF+8*r+2*k,2)}, {vr(LF+8*r+2*k,2)}, {sr(sNeg+2*r,2)} op_sel_hi:[1,0]" for k in range(4) for r in range(2)]
    fill += [f"v_cvt_pk_bf16_f32 v{LX+4*r+k}, v{LF+8*r+2*k}, v{LF+8*r+2*k+1}" for k in range(4) for r in range(2)]
    dpp_reduce(fill)
    issue(int(OPT.get('n1', 0)))
    def rnd():
        for r in range(2): a(f"v_cvt_pk_bf16_f32 v{S[r]}, v{S[r]}, v{S[r]}")
        for r in range(2): a(f"v_lshlrev_b32 v{S[r]}, 16, v{S[r]}")
    for r in range(2): a(f"v_mul_f32 v{S[r]}, 0x3b000000, v{S[r]}")
    rnd()
    for r in range(2): a(f"v_add_f32 v{S[r]}, 0x3727c5ac, v{S[r]}")
    rnd()
    for r in range(2): a(f"v_sqrt_f32 v{S[r]}, v{S[r]}")
    rnd()
    for r in range(2): a(f"v_rcp_f32 v{S[r]}, v{S[r]}")
    for t in unpack(): a(t)
    for r in range(2): a(f"v_readlane_b32 s{sR+2*r}, v{S[r]}, 63")
    a(f"s_load_dwordx2 {sr(sTag,2)}, s[24:25], 0")
    for r in range(2):
        for k in range(4):
            a(f"v_pk_mul_f32 {vr(LF+8*r+2*k,2)}, {vr(LF+8*r+2*k,2)}, {sr(sR+2*r,2)} op_sel_hi:[1,0]")
        for k in range(4):
            a(f"v_cvt_pk_bf16_f32 v{LX+4*r+k}, v{LF+8*r+2*k}, v{LF+8*r+2*k+1}")
        a(f"ds_write_b128 v{vSw}, {vr(LX+4*r,4)} offset:{SROW*r}", "stg")
    a(f"""
    v_mov_b32 v{LG}, s{sNeg+1}
    v_mov_b32 v{LG+1}, s{sR}
    v_writelane_b32 v{LG}, s{sNeg+3}, 1
    v_writelane_b32 v{LG+1}, s{sR+2}, 1
    s_mul_i32 s{sXn}, s{sP}, {GS}
    s_lshl_b32 s{sT3}, s{sW}, 12
    s_add_u32 s{sXn}, s{sXn}, s{sT3}
    s_add_u32 s{sXn}, s{sXn}, {XNP}
    s_lshl2_add_u32 s{sSt}, s{sP}, s{sW}
    s_lshl_b32 s{sSt}, s{sSt}, 5
    s_add_u32 s{sSt}, s{sSt}, {ST}
    """)
    issue(int(OPT.get('n2', 7)))
    a.wait(lg=0)
    stamp()

    GROUPS = [("A", 2, 4), ("A", 0, 4), ("B", 1, 3), ("A", 1, 4), ("B", 0, 3), ("B", 2, 3), ("B", 3, 3)]
    LOC = []
    for rg, sl, n in GROUPS:
        for k in range(n):
            LOC.append((rg, sl * (16384 if rg == "A" else 12288) + k * 1024))
    PL2 = list(range(4, 24))
    ploc = lambda p: p if p < 24 else PL2[p - 24]
    SHARED['LOC'] = LOC
    pn = [0]
    def p_next():
        p = pn[0]; pn[0] += 1
        rg, off = LOC[ploc(p)]
        a(f"s_add_u32 m0, s{sLA if rg == 'A' else sLB}, {off}")
        a(f"s_add_u32 s{sT3}, s{sW2}, {8192*p}")
        a(f"buffer_load_dwordx4 v{vW2o}, {W2}, s{sT3} offen lds", f"P{p}")

    wb = lambda s_: WF + 12 * (s_ % 3)
    def tr_pair(s_, ft):
        c, i = divmod(s_, 4)
        for e in range(2):
            a(f"ds_read_b64_tr_b16 {vr(wb(s_)+4*ft+2*e,2)}, v{vWr+i} offset:{(c&3)*12288+e*768+ft*64}", f"wf{s_}")
    def rd_x(c, i):
        a(f"ds_read_b128 {vr(XF+16*(c&1)+4*i,4)}, v{vXr+i} offset:{(c%3)*16384}", f"xf{c}_{i}")
    def open_chunk(c):
        if "cs" in OPT and c in (3, 5): stamp(True)
        a.wait(vm=f"C{c}")
        if (c == 0 and "ss" not in OPT) or ("cs" in OPT and c in (3, 5)): stamp(True)
        a("s_barrier")
        if "cs" in OPT and c: stamp(True)

    open_chunk(0)
    rd_x(0, 0)
    for ft in range(3): tr_pair(0, ft)
    for i in range(1, 4): rd_x(0, i)
    for ft in range(3): tr_pair(1, ft)
    a(f"s_cmp_eq_u32 s{sTag}, 0\ns_cbranch_scc1 G_tagslow\nG_tagok:")
    for k in range(5): a(f"v_mov_b32 v{LF+4*k+2}, s{sTag}\nv_mov_b32 v{LF+4*k+3}, s{sTag+1}")
    XSL = {"a": [(0, 1), (0, 2), (1, 0), (1, 2), (2, 1)], "b": [(3, 0), (3, 1), (3, 2), (7, 0), (7, 1)], "c": [(1, 0), (1, 2), (3, 0), (3, 2), (5, 1)]}[OPT.get("xsl", "b")]
    GP = 'gp' in OPT
    PS = int(OPT.get('ps', 22)) if GP else 99
    def bg_op(c, i, ft):
        s_ = 4 * c + i
        if DQ: issue(1, s_)
        elif s_ >= PS and ft != 1:
            lim = 0 if s_ < 20 else 4 if s_ < 24 else 8 if s_ < 26 else 11 if s_ < 28 else 15 if s_ < 30 else 18 if s_ < 31 else 24
            if pn[0] < lim:
                assert not FILL
                p_next()
    def split(dst, src, tmp):
        return [f"v_cvt_pk_bf16_f32 v{tmp}, v{src}, v{src}", f"v_lshlrev_b32 v{tmp}, 16, v{tmp}",
                f"v_sub_f32 v{tmp}, v{src}, v{tmp}", f"v_cvt_pk_bf16_f32 v{dst}, v{src}, v{tmp}"]
    for c in range(8):
        a.comment(f"---- GEMM1 chunk {c}")
        for i in range(4):
            s_ = 4 * c + i
            if i == 2 and c < 7:
                issue(int(OPT.get('flush', 0)), s_ - 1)
                assert not any(t == f'C{c+1}' for t in QT[len(QT)-len(DQ):])
                open_chunk(c + 1)
            a.wait(lg=(f"xf{c}_{3 if s_ else 0}", f"wf{s_}"))
            if "ss" in OPT and int(OPT["ss"]) <= s_ < int(OPT["ss"]) + 12: stamp(True)
            if s_ == 28:
                assert "csw" not in a.lg
                a("s_barrier")
            if s_ == 31: a("s_barrier")
            for ft in range(3):
                cs = i == 0 or c >= 7
                if cs and s_ == 31:
                    a(f"v_mfma_f32_16x16x32_bf16 {vr(CSA+12+4*ft,4)}, {vr(HALF,4)}, {vr(wb(s_)+4*ft,4)}, {vr(CSA+12+4*ft,4)}")
            for ft in range(3):
                cc = "0" if s_ == 0 else vr(ACC1+16*ft, 16)
                a(f"v_mfma_f32_32x32x16_bf16 {vr(ACC1+16*ft,16)}, {vr(wb(s_)+4*ft,4)}, {vr(XF+16*(c&1)+4*i,4)}, {cc}")
                if i == 2 and c < 7:
                    if ft == 0: rd_x(c + 1, 0)
                    rd_x(c + 1, ft + 1)
                if s_ + 2 < 32: tr_pair(s_ + 2, ft)
                if (s_, ft) == (0, 0):
                    for k in range(4): a(f"ds_read_b64_tr_b16 {vr(LF+4*k,2)}, v{vSr} offset:{64*k}", "tr")
                if (s_, ft) in XSL:
                    a.wait(lg="tr")
                    k = XSL.index((s_, ft))
                    if k < 4: a(f"buffer_store_dwordx4 {vr(LF+4*k,4)}, v{vL16}, {WS}, s{sXn} offen offset:{1024*k} sc1", "xn")
                    else: a(f"s_mov_b64 exec, 3\nbuffer_store_dwordx4 {vr(LG,4)}, v{vL16}, {WS}, s{sSt} offen sc1\ns_mov_b64 exec, -1")
                else:
                    bg_op(c, i, ft)
                    if i == 3 or (i == 1 and ft): fill_(4)
                if (i == 0 or c >= 7) and s_ != 31:
                    d = CSA + 4 * ft + (12 if c >= 7 else 0)
                    a(f"v_mfma_f32_16x16x32_bf16 {vr(d,4)}, {vr(HALF,4)}, {vr(wb(s_)+4*ft,4)}, {'0' if s_ in (0, 28) else vr(d,4)}")
                if s_ == 25:
                    for t in split(vCs + ft, CSA + 4 * ft, CSA + 4 * ft + 1): a(t)
                if s_ == 25:
                    for k in range(2):
                        a(f"ds_write2st64_b32 v{vT2}, v{vCs+ft}, v{vCs+ft} offset0:{24*k+4*ft} offset1:{24*k+12+4*ft}", "csw")
                if s_ == 23:
                    for k in range(4): a(f"v_mov_b32 v{CSF+4*ft+k}, 0")
                if s_ == 28:
                    a("s_mov_b32 exec_hi, 0")
                    for k in range(2):
                        a(f"ds_read2st64_b32 {vr(CSF+4*ft+2*k,2)}, v{vT} offset0:{4*ft+2*k} offset1:{4*ft+2*k+1}", "csf")
                    a("s_mov_b32 exec_hi, -1")
                if s_ == 29 and ft == 2:
                    a.wait(vm="st", lg="csf")
                    a(f"""
                    s_mov_b32 s{sCnt}, 0
                    G_stchk:
                    v_cmp_ne_u64 vcc, {sr(sTag,2)}, {vr(vSt+2,2)}
                    v_cmp_ne_u64 s[88:89], {sr(sTag,2)}, {vr(vId+2,2)}
                    v_and_b32 v{vId+1}, 0xffff, v{vId}
                    s_or_b64 vcc, vcc, s[88:89]
                    s_cbranch_vccnz G_stslow
                    G_stok:
                    """)
                if s_ == 30 and ft == 0:
                    a(f"""
                    v_cmp_ne_u32 s[90:91], s{sXcc}, v{vId+1}
                    v_lshrrev_b32 v{vNeg+1}, 16, v{vSt}
                    v_bfi_b32 v{vNeg}, s{sMask}, v{vSt}, v{vNeg+1}
                    v_bfi_b32 v{vNeg+2}, s{sMask}, v{vSt}, v{vNeg+1}
                    """)
                if s_ == 30 and ft == 1:
                    a(f"""
                    v_bfi_b32 v{vNeg+3}, s{sMask}, v{vSt}, v{vNeg+1}
                    v_bfi_b32 v{vNeg+1}, s{sMask}, v{vSt}, v{vNeg+1}
                    v_mul_f32 v{vC2}, s{sL2e}, v{vSt+1}
                    s_or_b32 s{sFar}, s90, {1 if 'forcefar' in OPT else 's91'}
                    v_mov_b32 v{vNon}, s{sTag}
                    v_mov_b32 v{vNon+1}, s{sTag+1}
                    """)
                if s_ == 31:
                    sp = split(CSF + 4 * ft, CSA + 12 + 4 * ft, CSA + 13 + 4 * ft)
                    for t in sp[:3]: a(t)
                    a(f"s_mov_b32 exec_lo, 0\n{sp[3]}\ns_mov_b32 exec_lo, -1")
            if s_ == 23:
                assert not FILL
                a(f"buffer_load_dwordx4 {vr(vSt,4)}, v{vSa}, {WS}, s{sO} offen sc1", "st")
                a(f"buffer_load_dwordx4 {vr(vId,4)}, v{vIa}, {WS}, s{sIa} offen sc1", "st")
    assert not DQ
    stamp()
    for ft in range(3):
        a(f"v_mfma_f32_32x32x16_bf16 {vr(ACC1+16*ft,16)}, {vr(CSF+4*ft,4)}, {vr(vNeg,4)}, {vr(ACC1+16*ft,16)}")
    E1, OB = 208, 224
    def tr_w2(step, tag):
        base = STASH + 8 * (step % 12)
        for j in range(2):
            for e in range(2):
                rg, off = LOC[ploc(2 * step + e)]
                a(f"ds_read_b64_tr_b16 {vr(base+4*j+2*e,2)}, v{vW2r+(0 if rg=='A' else 2)+j} offset:{off}", tag)
    if not GP: pn[0] = 24
    for _ in range(3):
        if pn[0] < 24: p_next()
    GB = int(OPT.get("gb", 0))
    B9, B10 = int(OPT.get("b9", 1)), int(OPT.get("b10", 6))
    for ft in range(3):
        for j in range(2):
            A0 = ACC1 + 16 * ft + 8 * j
            T0 = E1 + 8 * j
            for k in range(8): a(f"v_mul_f32 v{A0+k}, v{vC2}, v{A0+k}")
            for k in range(8): a(f"v_exp_f32_e64 v{T0+k}, -v{A0+k}")
            if pn[0] < 24: p_next()
            for k in range(8): a(f"v_fma_f32 v{T0+k}, v{T0+k}, s{sL2e}, s{sL2e}")
            for k in range(8): a(f"v_rcp_f32 v{T0+k}, v{T0+k}")
            if pn[0] < 24: p_next()
            for k in range(8): a(f"v_mul_f32 v{A0+k}, v{A0+k}, v{T0+k}")
            for k in range(0, 8, 2): a(f"v_cvt_pk_bf16_f32 v{OB+8*ft+4*j+k//2}, v{A0+k}, v{A0+k+1}")
            a(f"buffer_store_dwordx4 {vr(OB+8*ft+4*j,4)}, v{vL16}, {HS}, s{sHS if ft < 2 else sHS2} offen offset:{1024*((2*ft+j)&3)} {OPT.get('hnt', 'nt') if str(2*ft+j) in OPT.get('hn', '012345') else ''}", "hs")
            if GP and 2 * ft + j == GB: a("s_barrier")
    stamp()
    if IP: a("s_mov_b64 s[4:5], s[98:99]")
    vH, vF, vXg, vO, vY, vXl, vR, vP, vYl = 2, 4, 5, 6, 7, 8, 13, 10, 9
    a(f"""
    s_lshl_b32 s{sT}, s{sW}, 3
    s_lshr_b32 s{sT2}, 0x160e0600, s{sT}
    s_and_b32 s{sT2}, s{sT2}, 0xff
    s_lshr_b32 s{sT}, 0x1d150f07, s{sT}
    s_and_b32 s{sT}, s{sT}, 0xff
    v_max_u32 v{vF}, s{sT2}, v{vL}
    v_min_u32 v{vF}, s{sT}, v{vF}
    v_lshlrev_b32 v{vF}, 3, v{vF}
    s_and_b32 s{sT}, s{sW}, 1
    s_mul_i32 s{sT2}, s{sT}, {HROW}
    v_add_u32 v{vH}, s{sT2}, v{vL16}
    s_sub_u32 s{sT2}, {HROW}, s{sT2}
    v_add_u32 v{vH+1}, s{sT2}, v{vL16}
    s_mov_b32 s{sCnt}, 0
    s_lshr_b32 s{sXn}, s{sCG}, 2
    s_mul_i32 s{sXn}, s{sXn}, {HROW}
    s_and_b32 s{sT2}, s{sCG}, 3
    s_mulk_i32 s{sT2}, 5632
    s_add_u32 s{sXn}, s{sXn}, s{sT2}
    s_add_u32 s{sXn}, s{sXn}, s{sHL}
    s_movk_i32 s{sC}, 144
    v_min_u32 v{vSw}, 47, v{vL}
    v_lshlrev_b32 v{vSw}, 7, v{vSw}
    v_min_u32 v12, 43, v{vL}
    v_lshlrev_b32 v12, 7, v12
    """)
    a(f"s_cmp_lg_u32 s{sFar}, 0\ns_cbranch_scc1 G_far")
    a.wait(vm="hs")
    stamp()
    a(f"s_mov_b64 exec, 1\nbuffer_store_dwordx2 {vr(vNon,2)}, off, {WS}, s{sFl}\nG_pub:\ns_mov_b64 exec, -1")
    if "pt" in OPT:
        a(f"buffer_load_dword v{vT3}, v{vSw}, {HS}, s{sHS} offen {OPT['pt'].replace('1', '') if OPT['pt'] != 'sc1' else 'sc1'}", "pt")
    a(f"s_lshl_b32 s{sRet}, s{sRT}, 8\ns_add_u32 s{sRet}, s{sRet}, {FH}")
    if not GP: a("s_barrier")
    assert pn[0] == 24 and not any(str(t).startswith("P") for t in a.vm)
    PK_ = int(OPT.get("pk", 11))
    order = list(range(2, 12)) + [0, 1]
    for n_, k in enumerate(order):
        if n_ == PK_: a(f"buffer_load_dwordx2 {vr(vP,2)}, v{vF}, {WS}, s{sRet} offen sc1", "poll")
        tr_w2(k, f"S{k}")
    def p2():
        a.wait(lg=f"S{ploc(pn[0])//2}")
        p_next()
    for _ in range(int(OPT.get("np0", 12))): p2()
    stamp()
    a.wait(vm="poll")
    a(f"G_hchk:\nv_cmp_ne_u64 vcc, {sr(sTag,2)}, {vr(vP,2)}\ns_add_u32 s{sCnt}, s{sCnt}, 1\ns_cbranch_vccnz G_hslow\nG_hok:")
    stamp()
    if STAMPS: a(f"s_lshl_b32 s{sCnt}, s{sCnt}, 16\ns_add_u32 s97, s97, s{sCnt}")
    HS_ = [(i, 1) for i in range(12)] + [(i, j) for i in range(12, 22) for j in (1, 0)] + [(i, 0) for i in range(12)]
    HR, WR = int(OPT.get("hr", 10)), 232
    grp = [None]
    def h_load(n):
        i, j = HS_[n]
        if i // 4 != grp[0]:
            grp[0] = i // 4; a(f"s_add_u32 s{sTx}, s{sHL}, {4096*(i//4)}")
        a(f"buffer_load_dwordx4 {vr(HB+4*(n%HR),4)}, v{vH+j}, {HS}, s{sTx} offen offset:{1024*(i%4)} {OPT.get('hlf', 'sc1').replace('_', ' ')}", f"h{n}")
    HT = int(OPT.get("ht", 0))
    for n in range(HR - 1):
        if n == HT: a(f"buffer_load_dword v12, v12, {HS}, s{sXn} offen sc1", "ht")
        if n == int(OPT.get("hp", 0)):
            for _ in range(int(OPT.get("np1", 99))):
                if pn[0] < 44: p2()
        h_load(n)
    a(f"""
    s_lshl1_add_u32 s{sT2}, s{sRT}, s{sT}
    s_lshr_b32 s{sT}, s{sW}, 1
    s_lshl1_add_u32 s{sCnt}, s{sCG}, s{sT}    ; own 32-column block
    s_lshl_b32 s{sO}, s{sT2}, 15
    s_lshl_b32 s{sT}, s{sCnt}, 6
    s_add_u32 s{sO}, s{sO}, s{sT}
    s_add_u32 s{sHS}, s{sT2}, 8
    s_bfe_u32 s{sHS}, s{sHS}, 0x10004
    s_lshl_b32 s{sT}, s{sCnt}, 6
    s_add_u32 s{sHS}, s{sHS}, s{sT}
    s_lshl_b32 s{sHS}, s{sHS}, 7
    s_add_u32 s{sHS}, s{sHS}, {FY}
    s_mul_i32 s{sY}, s{sCnt}, {32*GC}
    s_lshl_b32 s{sT}, s{sT2}, 6
    s_add_u32 s{sY}, s{sY}, s{sT}
    s_add_u32 s{sY}, s{sY}, {Y2}
    v_and_b32 v{vT}, 31, v{vL}
    v_lshrrev_b32 v{vT2}, 5, v{vL}
    v_lshlrev_b32 v{vO}, 10, v{vT}
    v_lshl_add_u32 v{vO}, v{vT2}, 4, v{vO}
    v_lshl_add_u32 v{vXl}, v{vT}, 6, s{sLA}
    v_lshl_add_u32 v{vXl}, v{vT2}, 4, v{vXl}
    v_lshlrev_b32 v{vYl}, 3, v{vT2}
    v_sub_u32 v{vF}, v{vT}, v{vYl}
    v_bfe_u32 v{vT}, v{vL}, 2, 2
    v_add_u32 v{vYl}, v{vYl}, v{vT}
    v_lshl_add_u32 v{vYl}, v{vYl}, 6, s{sLA}
    v_bfe_u32 v{vT}, v{vL}, 4, 1
    v_lshl_add_u32 v{vYl}, v{vT}, 5, v{vYl}
    v_and_b32 v{vT}, 3, v{vL}
    v_lshl_add_u32 v{vYl}, v{vT}, 3, v{vYl}
    v_lshrrev_b32 v{vY}, 2, v{vL}
    v_mul_u32_u24 v{vY}, {GC}, v{vY}
    v_lshl_add_u32 v{vY}, v{vT}, 4, v{vY}
    v_lshrrev_b32 v{vXg}, 2, v{vL}
    v_lshlrev_b32 v{vXg}, 10, v{vXg}
    v_and_b32 v{vT}, 3, v{vL}
    v_lshl_add_u32 v{vXg}, v{vT}, 4, v{vXg}
    v_add_u32 v{vR}, s{sLB}, v{vL16}
    """)
    for k in range(1, 4):
        a(f"s_xor_b32 s{sT}, s{sW}, {k}\ns_mulk_i32 s{sT}, 3072\ns_add_u32 s{sT}, s{sT}, {LB0}\nv_add_u32 v{vR+k}, s{sT}, v{vL16}")
    YO = 32768
    YT, YF, XFr, IDN = 232, 240, 248, 24
    XR = 24
    if "touch" in OPT:
        a(f"v_and_b32 v{vT}, 31, v{vL}\nv_mul_u32_u24 v{vT}, {GC}, v{vT}")
        a(f"buffer_load_dword v12, v{vT}, {WS}, s{sY} offen sc1", "yt")
    a(f"v_and_b32 v{vT}, 1, v{vF}\nv_lshlrev_b32 v{vT}, 4, v{vT}\nv_lshlrev_b32 v{vT}, v{vT}, v{vW2o}" if False else
      f"v_and_b32 v{vT}, 1, v{vF}\nv_lshlrev_b32 v{vT}, 4, v{vT}\nv_mov_b32 v11, 0x3f80\nv_lshlrev_b32 v11, v{vT}, v11\nv_ashrrev_i32 v{vF}, 1, v{vF}")
    for k in range(8):
        a(f"v_cmp_eq_u32 s[{88+2*(k&1)}:{89+2*(k&1)}], {8*(k>>2)+(k&3)}, v{vF}")
        if k: a(f"v_cndmask_b32 v{IDN+k-1}, 0, v11, s[{88+2*((k-1)&1)}:{89+2*((k-1)&1)}]")
    a(f"v_cndmask_b32 v{IDN+7}, 0, v11, s[90:91]")
    def y_poll(emit): emit(f"buffer_load_dwordx2 {vr(vP,2)}, v12, {WS}, s{sHS} offen sc1")
    def y_loads(emit):
        emit(f"s_add_u32 m0, s{sLA}, {YO}")
        for k in range(2):
            emit(f"s_add_u32 s{sT2}, s{sY}, {16*k*GC-1024*k}")
            emit(f"buffer_load_dwordx4 v{vY}, {WS}, s{sT2} offen offset:{1024*k} sc1 lds")
    def y_reads(emit):
        for k in range(4): emit(f"ds_read_b64_tr_b16 {vr(YF+2*k,2)}, v{vYl} offset:{YO+1024*(k>>1)+256*(k&1)}")
    YP = int(OPT.get("yp", 30))
    wreg = lambda i: STASH + 8 * i if i < 12 else WR + 8 * (i % 3)
    def w_reads(i, half):
        j = half
        assert pn[0] > 2 * i + 1
        a.wait(vm=f"P{2*i+1}")
        for e in range(2):
            rg, off = LOC[ploc(2 * i + e)]
            a(f"ds_read_b64_tr_b16 {vr(wreg(i)+4*j+2*e,2)}, v{vW2r+(0 if rg=='A' else 2)+j} offset:{off}", f"r{i}")
    started = set()
    def mm(n, jd):
        i, j = HS_[n]; k = 2 * jd + j
        ac = ACC2 + 16 * k
        a(f"v_mfma_f32_32x32x16_bf16 {vr(ac,16)}, {vr(wreg(i)+4*jd,4)}, {vr(HB+4*(n%HR),4)}, {vr(ac,16) if k in started else '0'}")
        started.add(k)
    roff = lambda k, q: (((k - 1) * 4 + q) // 3) * 12288 + (((k - 1) * 4 + q) % 3) * 1024
    def r_write(k, q): a(f"ds_write_b128 v{vR}, {vr(ACC2+16*k+4*q,4)} offset:{roff(k,q)}", "rw")
    def r_read(k, q): a(f"ds_read_b128 {vr(ACC2+16*k+4*q,4)}, v{vR+k} offset:{roff(k,q)}", f"rr{k}")
    YS = int(OPT.get("ys", 37))
    NT = 4
    PR_ = int(OPT.get('pr', 1))
    side = []
    def run_side(c):
        for _ in range(c):
            if side:
                t = side.pop(0)
                if callable(t): t()
                else: a(t)
    for n in range(44 - NT):
        i, j = HS_[n]
        a.wait(vm=f"h{n}", lg=(f"r{i}" if i >= 12 else 0 if n == 0 else None))
        if n == 0 or ("g2" in OPT and n in (12, 24, 32, 36)): stamp(True)
        for jd in range(2):
            mm(n, jd)
            if jd == 0 and n + HR - 1 < 44: h_load(n + HR - 1)
            if pn[0] < 44 and (jd == 1 or n % PR_ == 0): p2()
            if n in (8, 10): w_reads(12 + (n - 8) // 2, jd)
            if 12 <= n < 28 and j == 1: w_reads(i + 2, jd)
            if jd == 1 and n == 5: a(f"v_and_b32 v12, 31, v{vL}\nv_lshlrev_b32 v12, 8, v12")
            if jd == 1 and n == YP: y_poll(lambda t: a(t, "yf"))
            if jd == 1 and n == YS:
                a.wait(vm="yf")
                a(f"v_cmp_ne_u64 s[94:95], {sr(sTag,2)}, {vr(vP,2)}")
                y_loads(lambda t: a(t, "yr"))
            if jd == 1 and n == 30:
                a(f"s_mov_b32 m0, s{sLA}\ns_add_u32 s{sT2}, s{sO}, {16384-1024}")
                a(f"buffer_load_dwordx4 v{vXg}, {X}, s{sO} offen lds", "xr")
                a(f"buffer_load_dwordx4 v{vXg}, {X}, s{sT2} offen offset:1024 lds", "xr")
            g = 2 * (n - 32) + jd
            if 0 <= g < 12 and g % 3 != 2:
                w = g - g // 3; r_write(1 if w < 4 else 3, w & 3)
            if g == 8 and "ol" in OPT:
                a(f"""
                s_and_b32 s{sT}, s{sW}, 1
                s_mulk_i32 s{sT}, {32*144}
                s_lshr_b32 s{sT2}, s{sW}, 1
                s_lshl_b32 s{sT2}, s{sT2}, 6
                s_add_u32 s{sT}, s{sT}, s{sT2}
                s_add_u32 s{sT}, s{sT}, 98304
                v_and_b32 v{vT}, 31, v{vL}
                v_mul_u32_u24 v{vH}, 144, v{vT}
                """)
            if g == 11 and "ol" in OPT:
                a(f"""
                v_lshrrev_b32 v{vT}, 5, v{vL}
                v_lshl_add_u32 v{vH}, v{vT}, 4, v{vH}
                v_add_u32 v{vH}, s{sT}, v{vH}
                v_lshrrev_b32 v{vT}, 3, v{vL}
                v_and_b32 v{vF}, 7, v{vL}
                v_lshlrev_b32 v{vF}, 4, v{vF}
                v_mad_u32_u24 v{vH+1}, v{vT}, s{sC}, v{vF}
                v_lshl_add_u32 v{vF}, v{vT}, 10, v{vF}
                """)
            if g == 13 and "ol" in OPT:
                a(f"""
                s_mul_i32 s{sT}, s{sW}, {16*144}
                s_add_u32 s{sT}, s{sT}, 98304
                v_add_u32 v{vH+1}, s{sT}, v{vH+1}
                s_lshl2_add_u32 s{sXB}, s{sRT}, s{sW}
                s_lshl_b32 s{sXB}, s{sXB}, 14
                s_lshl_b32 s{sT}, s{sCG}, 7
                s_add_u32 s{sXB}, s{sXB}, s{sT}
                s_add_u32 s{sXB+1}, s{sXB}, 8192
                """)
            if g == 12:
                a.wait(vm="xr")
                for q in range(2): a(f"ds_read_b128 {vr(XFr+4*q,4)}, v{vXl} offset:{32*q}", "xl")
            if g == 14:
                a.wait(lg="rw")
                a("s_barrier")
                for q in range(4): r_read(1, q)
            if g == 15:
                for q in range(4): r_read(3, q)
    if "ts" in OPT: stamp()
    side = [lambda: a.wait(lg="rr3")] + [f"v_add_f32 v{ACC2+16+q}, v{ACC2+16+q}, v{ACC2+48+q}" for q in range(16)]
    for q, n in enumerate(range(44 - NT, 44)):
        a.wait(vm=f"h{n}")
        mm(n, 1)
        if q >= 2: run_side(6)
    tail = [lambda n=n: mm(n, 0) for n in range(44 - NT, 44)]
    for src in (XFr, YF):
        for q in range(2):
            tail.append(lambda src=src, q=q: a(f"v_mfma_f32_32x32x16_bf16 {vr(ACC2,16)}, {vr(IDN+4*q,4)}, {vr(src+4*q,4)}, {vr(ACC2,16)}"))
    for q, t in enumerate(tail):
        t()
        if q == 0: run_side(99)
        if 1 <= q <= 4: r_write(2, q - 1)
        if q == 4:
            a(f"s_cmp_lg_u64 s[94:95], 0\ns_cbranch_scc1 G_yslow\nG_yok:")
            a.wait(vm="yr")
            y_reads(lambda t: a(t, "yl"))
        if q == 5:
            a.wait(lg="rw")
            a("s_barrier")
            for q2 in range(4): r_read(2, q2)
            a.wait(lg="yl")
    stamp()
    a.wait(lg="rr2")
    for q in range(16): a(f"v_add_f32 v{ACC2+16+q}, v{ACC2+16+q}, v{ACC2+32+q}")
    for k in range(8):
        a(f"v_pk_add_f32 {vr(ACC2+2*k,2)}, {vr(ACC2+2*k,2)}, {vr(ACC2+16+2*k,2)}")
    for k in range(8):
        a(f"v_cvt_pk_bf16_f32 v{XR+k}, v{ACC2+2*k}, v{ACC2+2*k+1}")
    if "ol" not in OPT:
        for q in range(2):
            a(f"v_permlane32_swap_b32 v{XR+4*q}, v{XR+4*q+2}\nv_permlane32_swap_b32 v{XR+4*q+1}, v{XR+4*q+3}")
            a(f"buffer_store_dwordx4 {vr(XR+4*q,4)}, v{vO}, {OUT}, s{sO} offen offset:{32*q} {OPT.get('osf', '').replace('_', ' ')}")
    else:
        for q in range(2):
            a(f"v_permlane32_swap_b32 v{XR+4*q}, v{XR+4*q+2}\nv_permlane32_swap_b32 v{XR+4*q+1}, v{XR+4*q+3}")
            a(f"ds_write_b128 v{vH}, {vr(XR+4*q,4)} offset:{32*q}")
        a("s_waitcnt lgkmcnt(0)\ns_barrier")
        for q in range(2): a(f"ds_read_b128 {vr(ACC2+4*q,4)}, v{vH+1} offset:{8*144*q}", f"o{q}")
        for q in range(2):
            a.wait(lg=f"o{q}")
            a(f"buffer_store_dwordx4 {vr(ACC2+4*q,4)}, v{vF}, {OUT}, s{sXB+q} offen {OPT['ol'].replace('_', ' ').replace('1', '') if OPT['ol'] != 'sc1' else 'sc1'}")
    stamp()
    if STAMPS:
        a("s_waitcnt vmcnt(0)"); stamp()
    if "padev" in OPT:
        a(f"G_pad2:\ns_memrealtime s[98:99]\ns_waitcnt lgkmcnt(0)\ns_sub_u32 s96, s98, s86\ns_cmp_lt_u32 s96, 3000\ns_cbranch_scc1 G_pad2")
    if "padto" in OPT:
        a(f"G_pad:\ns_memrealtime s[98:99]\ns_waitcnt lgkmcnt(0)\ns_sub_u32 s96, s98, s{sTag}\ns_cmp_lt_u32 s96, {OPT['padto']}\ns_cbranch_scc1 G_pad")
    if "dbg" in OPT:
        n = nstamp[0]
        a(f"s_memrealtime s[98:99]\ns_waitcnt lgkmcnt(0)\ns_lshl2_add_u32 s96, s2, s{sW}\ns_cmp_lg_u32 s96, {4*int(OPT['dbg'])}\ns_cbranch_scc1 G_nodbg\ns_mov_b64 exec, 1")
        for i in range(1, n):
            a(f"s_sub_u32 s96, s{60+2*i}, s60\nv_mov_b32 v{vT}, s96\nbuffer_store_dword v{vT}, off, {DBG}, 0 offset:{4+4*i}")
        a(f"s_sub_u32 s96, s98, s{sTag}\nv_mov_b32 v{vT}, s96\nbuffer_store_dword v{vT}, off, {DBG}, 0 offset:60")
        a("G_nodbg:")
    stamp_flush(WS, f"s{sW}", vT, 256)
    a("s_endpgm")
    tag_slow("G", sTag, 24, [64, 192], vNon, sCnt)
    a.raw(f"""G_stslow:
{retry_mark(4)}  s_add_u32 s{sCnt}, s{sCnt}, 1
  s_cmp_ge_u32 s{sCnt}, {SPIN}
  s_cbranch_scc1 G_stok
  buffer_load_dwordx4 {vr(vSt,4)}, v{vSa}, {WS}, s{sO} offen sc1
  buffer_load_dwordx4 {vr(vId,4)}, v{vIa}, {WS}, s{sIa} offen sc1
  s_waitcnt vmcnt(0)
  s_branch G_stchk
G_hslow:
  s_cmp_ge_u32 s{sCnt}, {SPIN}
  s_cbranch_scc1 G_hok
  buffer_load_dwordx2 {vr(vP,2)}, v{vF}, {WS}, s{sRet} offen sc1
  s_waitcnt vmcnt(0)
  s_branch G_hchk
G_yslow:
  s_mov_b32 s{sCnt}, 0
G_yloop:
{retry_mark(8)}  buffer_load_dwordx2 {vr(vP,2)}, v12, {WS}, s{sHS} offen sc1
  s_add_u32 s{sCnt}, s{sCnt}, 1
  s_waitcnt vmcnt(0)
  v_cmp_ne_u64 vcc, {sr(sTag,2)}, {vr(vP,2)}
  s_cmp_lt_u32 s{sCnt}, {1 if "nossm" in OPT else SPIN}
  s_cselect_b64 vcc, vcc, 0
  s_cbranch_vccnz G_yloop""")
    y_loads(lambda t: a.raw("  " + t))
    a.raw("  s_waitcnt vmcnt(0)\n  s_branch G_yok")
    a.hist = []
    a("G_far:\ns_waitcnt vmcnt(0)")
    for k in range(6):
        a(f"buffer_store_dwordx4 {vr(OB+4*k,4)}, v{vL16}, {HS}, s{sHS if k < 4 else sHS2} offen offset:{1024*(k&3)} sc1")
    a(f"s_waitcnt vmcnt(0)\ns_mov_b64 exec, 1\nbuffer_store_dwordx2 {vr(vNon,2)}, off, {WS}, s{sFl} sc1\ns_branch G_pub")
    a.vm = []; a.lg = []

def ssm_role():
    DBG, WS = "s[8:11]", "s[12:15]"
    sQ, sW, sE, sPar, sT, sT2, sCnt, sB1, sMask = 3, 32, 5, 6, 7, 34, 35, 40, 41
    sLdt, sD, sTag, sU, sXcc = 42, 43, 36, 38, 4
    sMean, sNeg = 44, 48
    vL, LX, LF, vC, LG = 1, 2, 10, 30, 26
    vPar = 44
    vT, vT2, vT3, vT4 = 54, 55, 56, 57
    vNon, vL16, vTab = 52, 60, 61
    SB = 98304
    CB0, UB0, USZ, K0A, FLG, TAB, TSZ, SROW = SB, SB + 33280, 4576, SB + 42432, SB + 42448, SB + 49152, 4096, 1056
    a.hist = []; a.vm = []; a.lg = []
    a(f"""
    s_load_dwordx16 s[16:31], s[0:1], 0
    s_load_dwordx2 s[8:9], s[0:1], 104
    s_load_dwordx2 s[52:53], s[0:1], 64
    s_load_dwordx2 s[92:93], s[0:1], 88
    s_load_dwordx2 s[88:89], s[0:1], 80
    s_load_dwordx2 s[12:13], s[0:1], 112
    s_memrealtime {sr(sTag,2)}
    s_setprio 3
    s_sub_u32 s{sW}, s{sW}, 4
    v_and_b32 v{vL}, 63, v0
    v_and_b32 v{vT}, 255, v0
    s_lshl_b32 s{sT}, s{sQ}, 9
    v_lshl_add_u32 v{vT3}, v{vT}, 1, s{sT}
    s_lshl2_add_u32 s{sT2}, s{sQ}, s{sW}
    s_lshl_b32 s{sT2}, s{sT2}, 11
    v_lshlrev_b32 v{vL16}, 4, v{vL}
    v_lshl_add_u32 v{vT4}, v{vL}, 6, s{sT2}
    s_lshl_b32 s{sT}, s{sQ}, 2
    """)
    srd(8, 256)
    a("s_waitcnt lgkmcnt(0)")
    if STAMPS: a(f"s_mov_b32 s100, s{sTag}\ns_mov_b32 s97, 0")
    stamp()
    a(f"""
    s_or_b32 s{sTag}, s{sTag}, 1
    v_mov_b32 v{vNon}, s{sTag}
    v_mov_b32 v{vNon+1}, s{sTag+1}
    buffer_store_dwordx2 {vr(vNon,2)}, v{vT4}, {DBG}, 0 offen sc1
    """)
    for k in range(6):
        a(f"global_load_ushort v{vPar+k}, v{vT3}, s[{18+2*k}:{19+2*k}]", "par")
    a(f"s_load_dword s{sLdt}, s[30:31], s{sT}\ns_load_dword s{sD}, s[52:53], s{sT}\ns_setprio 0\ns_branch L_ssm")
    keep = (list(a.vm), nstamp[0])
    yield
    a.hist = []; a.lg = []; a.vm = keep[0]; nstamp[0] = keep[1]
    X, W1 = "s[16:19]", "s[88:91]"
    vXo, vWo = 2, 6
    sLA, sLB, sXB, sWB, sC, sCx, sTx, sTw = 20, 21, 22, 23, 24, 25, 26, 27
    srd(16, 2048 * 1024); srd(88, 512 * 2752)
    a(f"""
    v_lshrrev_b32 v{vT}, 3, v{vL}
    v_lshlrev_b32 v{vT}, 10, v{vT}
    v_lshrrev_b32 v{vT2}, 4, v{vL}
    v_xor_b32 v{vT2}, v{vT2}, v{vL}
    v_and_b32 v{vT2}, 7, v{vT2}
    v_lshl_add_u32 v{vXo}, v{vT2}, 4, v{vT}
    v_xor_b32 v{vXo+1}, 64, v{vXo}
    v_add_u32 v{vXo+2}, {2*7168}, v{vXo}
    v_add_u32 v{vXo+3}, {3*7168}, v{vXo+1}
    v_add_u32 v{vXo+1}, 7168, v{vXo+1}
    s_movk_i32 s{sTx}, 5462
    s_movk_i32 s{sTw}, {2752-192}
    v_mul_u32_u24 v{vT}, s{sTx}, v{vL}
    """)
    for j in range(3):
        if j: a(f"v_add_u32 v{vT}, {64*5462}, v{vT}")
        a(f"v_lshrrev_b32 v{vT2}, 16, v{vT}\nv_mad_u32_u24 v{vWo+j}, v{vT2}, s{sTw}, v{vL16}")
    a(f"""
    s_lshr_b32 s{sXB}, s{sQ}, 4
    s_lshl2_add_u32 s{sXB}, s{sXB}, s{sW}
    s_lshl_b32 s{sXB}, s{sXB}, 15
    s_and_b32 s{sC}, s{sQ}, 15
    s_mul_i32 s{sWB}, s{sC}, 192
    s_mul_i32 s{sTx}, s{sW}, {16*2752}
    s_add_u32 s{sWB}, s{sWB}, s{sTx}
    s_bfe_u32 s{sLA}, s{sQ}, 0x10004
    s_mul_i32 s{sLB}, s{sLA}, 1344
    s_add_u32 s{sLB}, s{sLB}, s{sTx}
    s_mul_i32 s{sCx}, s{sW}, 11
    s_add_u32 s{sCx}, s{sCx}, s{sLA}
    s_lshl_b32 s{sCx}, s{sCx}, 15
    s_cmp_eq_u32 s{sC}, 15
    s_cselect_b32 s{sXB}, {"s%d" % sCx if int(OPT.get('ip', 1)) else 0x40000000}, s{sXB}
    s_cselect_b32 s{sWB}, {"s%d" % sLB if int(OPT.get('ip', 1)) > 1 else 0x40000000}, s{sWB}
    s_cselect_b64 s[16:17], s[92:93], s[16:17]
    s_cselect_b64 s[88:89], s[92:93], s[88:89]
    s_add_u32 s{sCx}, s{sQ}, 1
    s_and_b32 s{sCx}, s{sCx}, 7
    s_add_u32 s{sC}, s{sQ}, 2
    s_and_b32 s{sC}, s{sC}, 7
    s_lshl_b32 s{sLA}, s{sW}, 12
    s_mul_i32 s{sLB}, s{sW}, 3072
    s_add_u32 s{sLB}, s{sLB}, 49152
    """)
    def w_ops(c):
        ops = []
        for j in range(3):
            def f(j=j):
                if j == 0:
                    a(f"s_mul_i32 s{sTw}, s{sC}, {64*2752}\ns_add_u32 m0, s{sLB}, {(c&3)*12288}\ns_add_u32 s{sTw}, s{sTw}, s{sWB}")
                a(f"buffer_load_dwordx4 v{vWo+j}, {W1}, s{sTw} offen offset:{j*1024} lds", f"C{c}")
                if j == 0: a(f"s_add_u32 s{sC}, s{sC}, 1\ns_and_b32 s{sC}, s{sC}, 7")
            ops.append(f)
        return ops
    def x_ops(c):
        ops = []
        for pc in range(4):
            def f(pc=pc):
                if pc == 0:
                    a(f"s_lshl_b32 s{sTx}, s{sCx}, 7\ns_add_u32 m0, s{sLA}, {(c%3)*16384}\ns_add_u32 s{sTx}, s{sTx}, s{sXB}")
                a(f"buffer_load_dwordx4 v{vXo+pc}, {X}, s{sTx} offen offset:{pc*1024} lds", f"C{c}")
                if pc == 0: a(f"s_add_u32 s{sCx}, s{sCx}, 1\ns_and_b32 s{sCx}, s{sCx}, 7")
            ops.append(f)
        return ops
    DQ = x_ops(1) + w_ops(2) + x_ops(2) + w_ops(3)
    def dma(n=1):
        for _ in range(n):
            if DQ: DQ.pop(0)()
    dma(int(OPT.get("n0", 0)))
    srd(12, WS_SIZE)
    vOA, vOG, vPb = 50, 51, 59
    a(f"""
    s_lshr_b32 s{sE}, s{sW}, 1
    s_and_b32 s{sPar}, s{sW}, 1
    s_mov_b32 s{sMask}, 0xffff0000
    s_mul_i32 s{sT2}, s{sE}, {USZ}
    s_add_u32 s{sT2}, s{sT2}, {UB0}
    v_lshl_add_u32 v{vT}, v{vL}, 3, s{sT2}
    v_mov_b32 v{vT3}, 0
    v_mov_b32 v{vT4}, 0
    ds_write_b64 v{vT}, {vr(vT3,2)}
    s_lshl2_add_u32 s{sT2}, s{sW}, {FLG}
    v_mov_b32 v58, s{sT2}
    ds_write_b32 v58, v{vT3}
    ds_write_b32 v58, v{vT3} offset:16
    s_lshl_b32 s{sT2}, s{sW}, 12
    s_add_u32 s{sT2}, s{sT2}, {TAB}
    v_add_u32 v{vTab}, s{sT2}, v{vL16}
    v_lshrrev_b32 v{vT}, 4, v{vL}
    v_lshl_add_u32 v{vPb}, v{vT}, 6, s{sT2}
    v_and_b32 v{vT}, 15, v{vL}
    v_lshlrev_b32 v{vOG}, 3, v{vT}
    v_lshlrev_b32 v{vT2}, 2, v{vT}
    v_add_u32 v{vT2}, {512-36}, v{vT2}
    v_cmp_lt_u32 vcc, 8, v{vT}
    v_add_u32 v{vT3}, {1024-96}, v{vOG}
    v_add_u32 v{vT4}, {1536-112}, v{vOG}
    v_cndmask_b32 v{vOA}, v{vT}, v{vT2}, vcc
    v_cmp_lt_u32 vcc, 11, v{vT}
    v_cmp_lt_u32 s[56:57], 13, v{vT}
    v_cvt_f32_u32 v{vOG}, v{vOG}
    v_cndmask_b32 v{vOA}, v{vOA}, v{vT3}, vcc
    v_cndmask_b32 v{vOA}, v{vOA}, v{vT4}, s[56:57]
    v_cvt_f32_u32 v{vOA}, v{vOA}
    """)
    def k_mfma(s_):
        F = 152 + 16 * (s_ & 1)
        for hh in range(2):
            for gt in range(2):
                d = 200 + 8 * hh + 4 * gt
                a(f"v_mfma_f32_16x16x32_bf16 {vr(d,4)}, {vr(F+4*hh,4)}, {vr(F+8+4*gt,4)}, {'0' if s_ == 0 else vr(d,4)}")
    UG = int(OPT.get("ug", 7))
    SP = OPT.get("sprio", 0)
    vUg, vUw, vU, sG = 30, 31, 232, 54
    def u_addr():
        a(f"""
        v_lshrrev_b32 v{vT3}, 2, v{vL}
        v_bfe_u32 v{vT4}, v{vL}, 1, 1
        v_and_b32 v{vT2}, 1, v{vL}
        v_mul_u32_u24 v{vUg}, {GS}, v{vT3}
        v_lshl_add_u32 v{vUg}, v{vT4}, 6, v{vUg}
        v_lshl_add_u32 v{vUg}, v{vT2}, 4, v{vUg}
        v_mul_u32_u24 v{vUw}, {USZ}, v{vT2}
        v_lshl_add_u32 v{vUw}, v{vT3}, 4, v{vUw}
        v_lshl_add_u32 v{vUw}, v{vT4}, 3, v{vUw}
        s_lshl_b32 s{sT}, s{sW}, 10
        s_add_u32 s{sT}, s{sT}, {UB0+480}
        v_add_u32 v{vUw}, s{sT}, v{vUw}
        s_mul_i32 s{sG}, s{sW}, {64*GS}
        s_lshr_b32 s{sT}, s{sQ}, 1
        s_lshl_b32 s{sT}, s{sT}, 7
        s_add_u32 s{sG}, s{sG}, s{sT}
        s_and_b32 s{sT}, s{sQ}, 1
        s_lshl_b32 s{sT}, s{sT}, 5
        s_add_u32 s{sG}, s{sG}, s{sT}
        s_add_u32 s{sG}, s{sG}, {XNP}
        """)
    def u_loads(emit, ks=range(4)):
        emit("s_setprio 3")
        for k in ks:
            emit(f"s_add_u32 s{sG+1}, s{sG}, {k*16*GS}")
            emit(f"buffer_load_dwordx4 {vr(vU+4*k,4)}, v{vUg}, {WS}, s{sG+1} offen sc1 {OPT.get('uf', '')}")
        emit(f"s_setprio {SP}")
    W2 = "s[92:95]"
    vW2o, vTp, sW2, sTp = 62, 63, 28, 29
    vXw, vXr_, vK, vZ, vAa, vBa, vUa, vBp, vPr, vK0, vCb = 32, 33, 34, 35, 36, 37, 38, 39, 40, 41, 42
    def late_addr():
        u_addr()
        srd(92, 1376 * 1024)
        a(f"""
        v_lshrrev_b32 v{vT}, 3, v{vL}
        v_lshlrev_b32 v{vT}, 10, v{vT}
        v_bfe_u32 v{vT2}, v{vL}, 4, 1
        v_lshlrev_b32 v{vT3}, 2, v{vT2}
        v_xor_b32 v{vT3}, v{vT3}, v{vL}
        v_and_b32 v{vT3}, 7, v{vT3}
        v_lshl_add_u32 v{vW2o}, v{vT3}, 4, v{vT}
        v_min_u32 v{vTp}, 47, v{vL}
        v_lshlrev_b32 v{vTp}, 7, v{vTp}
        s_mul_i32 s{sW2}, s{sW}, {352*1024}
        s_and_b32 s{sTp}, s{sQ}, 31
        s_mul_i32 s30, s{sTp}, 5120
        s_mulk_i32 s{sTp}, 6144
        s_add_u32 s{sTp}, s{sTp}, s{sW2}
        s_add_u32 s30, s30, s{sW2}
        s_add_u32 s30, s30, {192*1024}
        s_bfe_u32 s{sT}, s{sQ}, 0x30001
        s_lshl_b32 s{sT}, s{sT}, 7
        s_add_u32 s{sW2}, s{sW2}, s{sT}
        """)
        a(f"""
        v_lshrrev_b32 v{vT2}, 4, v{vL}
        v_and_b32 v{vT3}, 15, v{vL}
        s_lshl_b32 s{sT2}, s{sW}, 12
        s_add_u32 s{sT2}, s{sT2}, {TAB}
        v_lshl_add_u32 v{vXw}, v{vT3}, 4, s{sT2}
        v_lshl_add_u32 v{vXw}, v{vT2}, 10, v{vXw}
        s_lshl_b32 s{sT}, s{sE}, 13
        s_add_u32 s{sT}, s{sT}, {TAB}
        v_add_u32 v{vXr_}, s{sT}, v{vL16}
        s_xor_b32 s{sT2}, s{sT2}, 4096
        v_add_u32 v{vPr}, s{sT2}, v{vL16}
        v_xor_b32 v27, 4, v58
        s_mul_i32 s{sT}, s{sE}, {USZ}
        s_add_u32 s{sT}, s{sT}, {UB0+256}
        s_lshl_b32 s{sT2}, s{sPar}, 8
        v_lshl_add_u32 v{vBa}, v{vT3}, 5, s{sT}
        v_lshl_add_u32 v{vUa}, v{vT2}, 3, v{vBa}
        v_lshlrev_b32 v{vT3}, 4, v{vT2}
        v_add_u32 v{vBa}, v{vT3}, v{vBa}
        v_subrev_u32 v{vBa}, s{sT2}, v{vBa}
        v_bfe_u32 v{vT2}, v{vL}, 2, 2
        v_sub_u32 v{vT4}, 0, v{vT2}
        v_and_b32 v{vT4}, 3, v{vT4}
        v_mul_u32_u24 v{vAa}, 4160, v{vT4}
        v_min_u32 v{vT2}, 1, v{vT2}
        v_lshlrev_b32 v{vT2}, 3, v{vT2}
        v_sub_u32 v{vAa}, v{vAa}, v{vT2}
        v_sub_u32 v{vAa}, v{vAa}, v{vT3}
        v_and_b32 v{vT2}, 3, v{vL}
        v_lshl_add_u32 v{vAa}, v{vT2}, 3, v{vAa}
        s_mul_i32 s{sT}, s{sE}, 16640
        s_add_u32 s{sT}, s{sT}, {CB0}
        v_mov_b32 v{vCb}, s{sT}
        s_add_u32 s{sT2}, s{sT2}, s{sT}
        s_add_u32 s{sT2}, s{sT2}, {32+32-8}
        v_add_u32 v{vAa}, s{sT2}, v{vAa}
        s_lshl_b32 s{sT2}, s{sPar}, 11
        s_add_u32 s{sT2}, s{sT2}, s{sT}
        s_add_u32 s{sT2}, s{sT2}, 32
        v_add_u32 v{vK}, s{sT2}, v{vL16}
        v_and_b32 v{vT2}, 15, v{vL}
        v_lshl_add_u32 v{vBp}, v{vT2}, 5, s{sT2}
        v_lshrrev_b32 v{vT2}, 4, v{vL}
        v_lshl_add_u32 v{vBp}, v{vT2}, 3, v{vBp}
        v_bfe_u32 v{vZ}, v{vL}, 3, 2
        v_mul_u32_u24 v{vZ}, 4160, v{vZ}
        v_and_b32 v{vT4}, 7, v{vL}
        v_lshl_add_u32 v{vZ}, v{vT4}, 2, v{vZ}
        v_add_u32 v{vZ}, s{sT}, v{vZ}
        s_lshl2_add_u32 s{sT}, s{sE}, {K0A}
        v_mov_b32 v{vK0}, s{sT}
        v_and_b32 v{vT4}, 1, v{vL}
        v_cmp_eq_u32 s[58:59], 1, v{vT4}
        v_cmp_le_u32 s[56:57], 32, v{vL}
        """)
    if "la0" in OPT: late_addr()
    def piece(p):
        rg, off = SHARED['LOC'][p]
        a(f"s_add_u32 m0, s{sLA if rg == 'A' else sLB}, {off}\ns_add_u32 s44, s{sW2}, {8192*p}")
        a(f"buffer_load_dwordx4 v{vW2o}, {W2}, s44 offen lds", "P")
    pn = [0]
    PE = int(OPT.get("pe", 0))
    def pieces(n):
        while pn[0] < n: piece(pn[0]); pn[0] += 1
    def touch(half):
        if half: a(f"v_min_u32 v{vTp}, {39*128}, v{vTp}")
        a(f"buffer_load_dword v29, v{vTp}, {W2}, s{sTp+half} offen", "tp")
    TP0, TP1 = int(OPT.get("tp0", 6)), int(OPT.get("tp1", 8))
    PR, PB, FR, KT, KA = 64, 72, 152, 200, 216
    a("s_waitcnt lgkmcnt(0)")
    a.lg = []
    assert int(OPT.get("nkb", 8)) in (7, 8)
    BP = int(OPT.get("bp", 360))
    NKB = int(OPT.get("nkb", 8))
    a.metro = ([int(OPT.get("bb0", 850)), int(OPT.get("b01", 350))] + [int(OPT.get("bq", 440))] * 3 + [BP] * 3 + [BP // 2, 3 * BP // 4])[:NKB]
    a.cost = 0
    uq = list(range(4))
    def on_bar(left):
        nb = NKB - 1 - left
        if nb in (0, 2, 5): stamp()
        if nb == 0: a(f"s_setprio {SP}")
        if nb == TP0: touch(0)
        if nb == TP1: touch(1)
        if nb >= 6: pieces(min(PE, {6: 4, 7: 11}.get(nb, 15)))
        if nb >= UG:
            for _ in range(int(OPT.get("un", 4))):
                if uq: u_loads(lambda t: a(t, "u"), [uq.pop(0)])
    a.on_bar = on_bar
    def pre_bar(left):
        nb = NKB - 1 - left
        if nb >= int(OPT.get("dfl", 1)): dma(99)
        a.wait(vm=f"C{nb}")
    a.pre_bar = pre_bar
    if 'la0' in OPT: a.on_gap = dma
    a.gap_len = int(OPT.get("dg", 32))
    a(f"""
    s_lshl_b32 s{sT}, s{sLdt}, 16
    s_and_b32 s{sT2}, s{sLdt}, s{sMask}
    s_cmp_eq_u32 s{sE}, 0
    s_cselect_b32 s{sT}, s{sT}, s{sT2}
    v_mov_b32 v{vT}, {LOG2E:#x}
    v_mul_f32 v{vT}, s{sT}, v{vT}
    v_exp_f32 v{vT}, v{vT}
    """)
    a.wait(vm="par")
    stamp()
    for k in range(6): a(f"v_lshlrev_b32 v{vPar+k}, 16, v{vPar+k}")
    TM = 136
    a(f"""
    v_cvt_pk_bf16_f32 v{vT}, v{vT}, v{vT}
    v_lshlrev_b32 v{vT}, 16, v{vT}
    v_mul_f32 v{PR}, v{vPar}, v{vT}
    v_mul_f32 v{PR+1}, v{vPar+1}, v{vT}
    v_mul_f32 v{vPar+2}, v{vPar+2}, v{vT}
    v_mul_f32 v{vPar+3}, v{vPar+3}, v{vT}
    v_mul_f32 v{PR}, {LOG2E:#x}, v{PR}
    v_mul_f32 v{PR+1}, 0.15915494, v{PR+1}
    v_rndne_f32 v{vT}, v{PR+1}
    v_sub_f32 v{PR+1}, v{PR+1}, v{vT}
    """)
    cmul(PR + 2, vPar + 4, vPar + 2)
    for i, l in enumerate((128, 256)):
        a(f"v_mul_f32 v{TM+4*i}, {fl(l)}, v{PR}\nv_mul_f32 v{TM+4*i+1}, {fl(l)}, v{PR+1}")
    for i in range(2): a(f"v_fract_f32 v{TM+4*i+1}, v{TM+4*i+1}\nv_exp_f32 v{TM+4*i}, v{TM+4*i}")
    for i in range(2): a(f"v_cos_f32 v{TM+4*i+2}, v{TM+4*i+1}\nv_sin_f32 v{TM+4*i+3}, v{TM+4*i+1}")
    a(f"ds_write_b128 v{vTab}, {vr(PR,4)}", "pw")
    a(f"""
    v_mul_f32 v{TM+2}, v{TM+2}, v{TM}
    v_mul_f32 v{TM+3}, v{TM+3}, v{TM}
    v_mul_f32 v{PR+6}, v{TM+6}, v{TM+4}
    v_mul_f32_e64 v{PR+7}, -v{TM+7}, v{TM+4}
    """)
    cmul(PR + 4, PR + 2, TM + 2)
    a(f"ds_write_b128 v{vTab}, {vr(PR+4,4)} offset:1024", "pw")
    def p_reads(s_):
        for j in range(4):
            for k in range(2):
                a(f"ds_read_b128 {vr(PB+32*(s_&1)+8*j+4*k,4)}, v{vPb} offset:{256*s_+16*j+1024*k}", f"pb{s_}")
    p_reads(0)
    a.on_gap = dma
    if "la0" not in OPT: late_addr()
    for s_ in range(4):
        if s_ < 3: p_reads(s_ + 1)
        a.wait(lg=f"pb{s_}")
        if s_ == 3: a(f"s_load_dwordx2 {sr(sTag,2)}, s[8:9], 128")
        F = FR + 16 * (s_ & 1)
        for jp in range(2):
            js = (2 * jp, 2 * jp + 1)
            P = lambda j: PB + 32 * (s_ & 1) + 8 * j
            T = lambda j, w_: TM + 8 * (j & 1) + 4 * w_
            for j in js:
                for w_, o in enumerate((vOA, vOG)):
                    a(f"v_mul_f32 v{T(j,w_)}, v{P(j)}, v{o}\nv_mul_f32 v{T(j,w_)+1}, v{P(j)+1}, v{o}")
            for j in js:
                a(f"v_fract_f32 v{T(j,0)+1}, v{T(j,0)+1}")
                for w_ in range(2): a(f"v_exp_f32 v{T(j,w_)}, v{T(j,w_)}")
            for j in js:
                for w_ in range(2):
                    a(f"v_cos_f32 v{T(j,w_)+2}, v{T(j,w_)+1}\nv_sin_f32 v{T(j,w_)+3}, v{T(j,w_)+1}")
            for j in js:
                a(f"v_mul_f32 v{T(j,0)+2}, v{T(j,0)+2}, v{T(j,0)}\nv_mul_f32_e64 v{T(j,0)+3}, -v{T(j,0)+3}, v{T(j,0)}")
                a(f"v_mul_f32 v{T(j,1)+2}, v{T(j,1)+2}, v{T(j,1)}\nv_mul_f32 v{T(j,1)+3}, v{T(j,1)+3}, v{T(j,1)}")
            for j in js:
                a(f"v_cvt_pk_bf16_f32 v{F+j}, v{T(j,0)+2}, v{T(j,0)+3}")
                cmul(T(j, 0), T(j, 0) + 2, P(j) + 6)
                cmul(T(j, 1), T(j, 1) + 2, P(j) + 2)
                a(f"v_cvt_pk_bf16_f32 v{F+4+j}, v{T(j,0)}, v{T(j,0)+1}")
                cmul(T(j, 0) + 2, T(j, 1) + 2, P(j) + 4)
                a(f"v_cvt_pk_bf16_f32 v{F+8+j}, v{T(j,1)}, v{T(j,1)+1}")
                a(f"v_cvt_pk_bf16_f32 v{F+12+j}, v{T(j,0)+2}, v{T(j,0)+3}")
            if jp == 0 and s_ > 0: k_mfma(s_ - 1)
    k_mfma(3)
    sys.stderr.write(f"metronome left {a.metro} cost {a.cost}\n")
    SW = int(OPT.get("sw", 0))
    while a.metro: a.tick()
    a.metro = None
    stamp()
    a(f"s_setprio {OPT.get('xprio', 0)}")
    for t in range(4): a(f"ds_write_b128 v{vXw}, {vr(KT+4*t,4)} offset:{256*t}")
    if NKB == 10: a("ds_write_b32 v58, v58 offset:16")
    a(f"s_waitcnt lgkmcnt(0)\ns_cmp_eq_u32 s{sTag}, 0\ns_cbranch_scc1 S_tagslow\nS_tagok:")
    stamp()
    if NKB < 10:
        a("s_barrier")
        pieces(min(PE, {6: 4, 7: 11}.get(NKB, 15)))
        if TP1 == NKB: touch(1)
        if SW:
            assert NKB == 8
            pieces(SW)
            a(f"s_barrier\ns_setprio {OPT.get('xp2', 3)}")
    else:
        a("""
        S_xw:
        ds_read_b32 v28, v27 offset:16
        s_waitcnt lgkmcnt(0)
        v_readfirstlane_b32 s44, v28
        s_cmp_eq_u32 s44, 0
        s_cbranch_scc1 S_xw
        """)
    stamp()
    NREST = max(0, 10 - NKB - 2)
    a(f"s_cmp_lg_u32 s{sPar}, 0\ns_cbranch_scc1 S_par1")
    KP = 64
    PK = 88
    K = lambda i: KA + i
    cnt = [0]
    CBAR = [int(x) for x in OPT.get('cbar', '2,5,6,7').split(',')]
    def packs(run, k):
        for cp in range(4):
            for j in range(4): a(f"v_cvt_pk_bf16_f32 v{PK+16*run+4*cp+j}, v{k[cp+2*j]}, v{k[cp+2*j+1]}")
            if cnt[0] in CBAR[:NREST]: a("s_barrier")
            cnt[0] += 1
            a(f"ds_write_b128 v{vK}, {vr(PK+16*run+4*cp,4)} offset:{4160*cp+1024*run}")
            if SW: pieces(min(24, pn[0] + int(OPT.get("swi", 2))))
    hist0 = list(a.hist); pn0 = pn[0]; vm0 = list(a.vm)
    for q in range(3):
        a(f"ds_read_b128 {vr(KA+4*q,4)}, v{vXr_} offset:{1024*q}\nds_read_b128 {vr(KP+4*q,4)}, v{vXr_} offset:{TSZ+1024*q}")
    a(f"""
    v_mov_b32 v{vT4}, 0
    ds_write_b32 v{vZ}, v{vT4}
    s_waitcnt lgkmcnt(1)
    """)
    for j in range(12): a(f"v_add_f32 v{KA+j}, v{KA+j}, v{KP+j}")
    a(f"""
    v_cndmask_b32 v{K(1)}, v{K(1)}, v{K(0)}, s[56:57]
    v_cndmask_b32 v{K(3)}, v{K(3)}, v{K(4)}, s[56:57]
    v_cndmask_b32 v{K(5)}, v{K(5)}, v{K(4)}, s[56:57]
    v_cndmask_b32 v{K(7)}, v{K(7)}, v{K(8)}, s[56:57]
    v_mov_b32 v{K(12)}, v{K(8)}
    v_mov_b32 v{K(13)}, v{K(8)}
    s_mov_b64 exec, 1
    ds_write_b32 v{vK0}, v{K(0)}
    v_mov_b32 v{K(0)}, 0
    s_mov_b64 exec, -1
    v_mov_b32_dpp v{K(12)}, v{K(1)} wave_shl:1 row_mask:0xf bank_mask:0xf
    v_mov_b32_dpp v{K(13)}, v{K(2)} wave_shl:1 row_mask:0xf bank_mask:0xf
    """)
    packs(1, [K(9)] * 3 + [K(10)] * 3 + [K(11)] * 5)
    packs(0, [K(i) for i in range(9)] + [K(12), K(13)])
    a(f"""
    s_mov_b64 exec, 1
    ds_write_b32 v{vCb}, v{PK} offset:{2*4160+28}
    ds_write_b32 v{vCb}, v{PK+4} offset:{3*4160+28}
    s_mov_b64 exec, -1
    s_branch S_parj
    S_par1:
    """)
    a.hist = hist0; cnt[0] = 0; pn[0] = pn0; a.vm = vm0
    a(f"ds_read_b128 {vr(KA+12,4)}, v{vXr_} offset:3072\nds_read_b128 {vr(KP,4)}, v{vXr_} offset:{TSZ+3072}\ns_waitcnt lgkmcnt(0)")
    for j in range(4): a(f"v_add_f32 v{KA+12+j}, v{KA+12+j}, v{KP+j}")
    a(f"v_cndmask_b32 v{K(0)}, v{K(12)}, v{K(13)}, s[58:59]\nv_cndmask_b32 v{K(1)}, v{K(14)}, v{K(15)}, s[58:59]")
    packs(0, [K(12)] * 4 + [K(0)] + [K(13)] * 6)
    packs(1, [K(14)] * 4 + [K(1)] + [K(15)] * 6)
    a("S_parj:")
    a.lg = []
    a(f"""
    s_lshl_b32 s{sT}, s{sD}, 16
    s_and_b32 s{sT2}, s{sD}, s{sMask}
    s_cmp_eq_u32 s{sE}, 0
    s_cselect_b32 s{sD}, s{sT}, s{sT2}
    s_lshl1_add_u32 s{sT}, s{sQ}, s{sE}
    s_mul_i32 s{sT}, s{sT}, {GC}
    s_add_u32 s{sT}, s{sT}, {Y2}
    s_lshl_b32 s{sT2}, s{sPar}, 9
    s_add_u32 s{sT}, s{sT}, s{sT2}
    s_lshl_b32 s{sT2}, s{sPar}, 10
    s_sub_u32 s{sT2}, 1024, s{sT2}
    v_lshrrev_b32 v{vT}, 5, v{vL}
    v_mad_u32_u24 v{vT}, v{vT}, s{sT2}, v{vL16}
    s_lshl2_add_u32 s{sT2}, s{sQ}, s{sW}
    s_lshl_b32 s{sT2}, s{sT2}, 7
    s_add_u32 s{sT2}, s{sT2}, {FY}
    v_mov_b32 v{vT3}, s{sTag}
    v_mov_b32 v{vT4}, s{sTag+1}
    s_mov_b32 s{sCnt}, 0
    """)
    AS, BS, YA, OV, UU, KD = [64, 128], [96, 160], 192, 10, 2, 26
    stamp()
    CE = "ce" in OPT
    C2 = "c2" in OPT
    if not CE:
        if not SW: a("s_barrier")
        while uq: u_loads(lambda t: a(t, "u"), [uq.pop(0)])
        if TP1 == 9: touch(1)
        if TP1 > 9: pieces(TP1); touch(1)
        if "gp" not in OPT: pieces(int(OPT["c2"]) if C2 else 24)
    assert not uq
    a.wait(vm="u")
    a("S_uchk:")
    a(f"v_cmp_ne_u64 vcc, {sr(sTag,2)}, {vr(vU+2,2)}")
    for k in range(1, 4): a(f"v_cmp_ne_u64 s[{42+2*k}:{43+2*k}], {sr(sTag,2)}, {vr(vU+4*k+2,2)}")
    for k in range(1, 4): a(f"s_or_b64 vcc, vcc, s[{42+2*k}:{43+2*k}]")
    a(f"s_cbranch_vccnz S_uslow\nS_uok:\ns_mov_b32 s{sCnt}, 0")
    stamp()
    for k in range(4): a(f"ds_write_b64 v{vUw}, {vr(vU+4*k,2)} offset:{256*k}")
    if not C2:
        a.wait(vm="P", lg=0)
        a(f"s_setprio {OPT.get('cprio', 1)}\ns_barrier")
    else:
        a(f"""
        ds_write_b32 v58, v58 offset:16
        v_mov_b32 v{vT}, {FLG}
        S_m4:
        ds_read_b128 v[44:47], v{vT} offset:16
        s_waitcnt lgkmcnt(0)
        v_min_u32 v44, v44, v45
        v_min3_u32 v44, v44, v46, v47
        v_cmp_eq_u32 vcc, 0, v44
        s_cbranch_vccnz S_m4
        """)
        CE = True
    a.lg = []
    if CE and not C2: pieces(int(OPT.get("npre", 8)))
    PG, CBI = int(OPT.get("pg", 3)), int(OPT.get("cbi", 90))
    stamp()
    def reads(rho):
        s_ = rho & 1; L = []
        for j in range(8):
            L.append((f"ds_read_b128 {vr(BS[s_]+4*j,4)}, v{vBa} offset:{512*j+64*(3-rho)}", f"f{rho}_{j}"))
            L.append((f"ds_read_b64_tr_b16 {vr(AS[s_]+4*j,2)}, v{vAa} offset:{64*(8*j+rho)+8}", f"f{rho}_{j}"))
            L.append((f"ds_read_b64_tr_b16 {vr(AS[s_]+4*j+2,2)}, v{vAa} offset:{64*(8*j+rho)}", f"f{rho}_{j}"))
        return L
    for t, tag in reads(0): a(t, tag)
    first = [True] * 8
    def cm(rho, p, q):
        a.wait(lg=f"f{rho}_{max(p,q)}")
        ct = p + q; s_ = rho & 1
        a(f"v_mfma_f32_16x16x32_bf16 {vr(YA+4*ct,4)}, {vr(AS[s_]+4*p,4)}, {vr(BS[s_]+4*q,4)}, {'0' if first[ct] else vr(YA+4*ct,4)}")
        first[ct] = False
    for rho in range(3):
        if rho == int(OPT.get("cp3", 0)): a("s_setprio 3")
        nxt = reads(rho + 1)
        for n, (p, q) in enumerate(sorted([(p, q) for p in range(8) for q in range(8) if p + q <= 7], key=lambda x: max(x))):
            cm(rho, p, q)
            if n >= (int(OPT.get('cn0', 8)) if rho == 0 else int(OPT.get('cn', 8))) and nxt:
                t, tag = nxt.pop(0); a(t, tag)
            if n == 35 and 'cw' in OPT: a.wait(lg=0)
            if CE:
                g = 36 * rho + n
                if g % PG == 0 and pn[0] < 24: pieces(pn[0] + 1)
                if g == CBI:
                    assert pn[0] == 24
                    a.wait(vm=0)
                    a("s_barrier")
                    if C2: a("s_setprio 3")
        assert not nxt
    a(f"s_cmp_lg_u32 s{sPar}, 0\ns_cbranch_scc1 S_conv1")
    keep = (list(a.hist), list(a.lg), nstamp[0])
    ZB, PB_ = 64, 80
    for par, (KEEP, SEND) in enumerate((((0, 3, 4, 7), (1, 2, 5, 6)), ((1, 2, 5, 6), (0, 3, 4, 7)))):
        if par: a("S_conv1:")
        a.hist, a.lg, nstamp[0] = list(keep[0]), list(keep[1]), keep[2]
        side = [lambda: a(f"ds_read_b32 v{KD}, v{vK0}", "uu")]
        side += [lambda k=k, ct=ct: a(f"ds_read_b64 {vr(UU+2*k,2)}, v{vUa} offset:{480-256+512*ct}", "uu") for k, ct in enumerate(KEEP)]
        side += [None] * 5
        side += [lambda: (a.wait(lg="uu"), a(f"v_add_f32 v{KD}, s{sD}, v{KD}"))]
        side += [lambda j=j: a(f"v_lshlrev_b32 v{ZB+2*j}, 16, v{UU+j}\nv_and_b32 v{ZB+2*j+1}, s{sMask}, v{UU+j}") for j in range(8)]
        order = [(p, ct - p) for ct in SEND + KEEP for p in range(ct + 1)]
        ends = {}
        for n, (p, q) in enumerate(order): ends[p + q] = n
        wq = list(SEND)
        for n, (p, q) in enumerate(order):
            cm(3, p, q)
            if wq and n >= ends[wq[0]] + 5:
                ct = wq.pop(0); a(f"ds_write_b128 v{vTab}, {vr(YA+4*ct,4)} offset:{1024*SEND.index(ct)}", "sw")
                if not wq: a(f"ds_write_b32 v58, v58", "sw")
            elif side:
                t = side.pop(0)
                if t: t()
            if n == 31:
                assert not wq and not side
                a("ds_read_b32 v28, v27", "pr")
                for k in range(4): a(f"ds_read_b128 {vr(PB_+4*k,4)}, v{vPr} offset:{1024*k}", "pr")
        stamp()
        a.wait(lg=0)
        a(f"""
        v_cmp_eq_u32 vcc, 0, v28
        s_cbranch_vccz S_pok{par}
        S_pw{par}:
        ds_read_b32 v28, v27
        """)
        for k in range(4): a(f"ds_read_b128 {vr(PB_+4*k,4)}, v{vPr} offset:{1024*k}")
        a(f"""
        s_waitcnt lgkmcnt(0)
        v_cmp_eq_u32 vcc, 0, v28
        s_cbranch_vccnz S_pw{par}
        S_pok{par}:
        """)
        a.lg = []
        for j in range(16): a(f"v_fmac_f32 v{PB_+j}, v{KD}, v{ZB+j}")
        a("s_setprio 3")
        for k, ct in enumerate(KEEP):
            for j in range(4): a(f"v_add_f32 v{PB_+4*k+j}, v{PB_+4*k+j}, v{YA+4*ct+j}")
            for j in range(2): a(f"v_cvt_pk_bf16_f32 v{UU+2*k+j}, v{PB_+4*k+2*j}, v{PB_+4*k+2*j+1}")
            a(f"ds_write_b64 v{vBp}, {vr(UU+2*k,2)} offset:{512*k}")
            if k & 1: a(f"ds_read_b128 {vr(OV+2*(k-1),4)}, v{vK} offset:{512*(k-1)}", f"bp{k}")
        if par == 0: a("s_branch S_done")
    a("S_done:")
    for j in range(2):
        a.wait(lg=f"bp{2*j+1}")
        a(f"buffer_store_dwordx4 {vr(OV+4*j,4)}, v{vT}, {WS}, s{sT} offen offset:{2048*j} sc1")
    a(f"s_mov_b64 exec, 1\ns_waitcnt vmcnt(0)\nbuffer_store_dwordx2 {vr(vT3,2)}, off, {WS}, s{sT2} sc1")
    stamp()
    if STAMPS:
        a("s_waitcnt vmcnt(0)"); stamp()
    if "wb" in OPT:
        a(f"s_lshr_b32 s{sT}, s2, 3\ns_or_b32 s{sT}, s{sT}, s{sW}\ns_cmp_lg_u32 s{sT}, 0\ns_cbranch_scc1 S_nowb\nbuffer_wbl2 sc1\nS_nowb:")
    stamp_flush(WS, f"s{sW}", vT)
    a("s_endpgm")
    tag_slow("S", sTag, 8, [192], vNon, sCnt)
    a.raw(f"""S_uslow:
{retry_mark(4)}  s_add_u32 s{sCnt}, s{sCnt}, 1
  s_cmp_ge_u32 s{sCnt}, {SPIN}
  s_cbranch_scc1 S_uok
  s_sleep 4""")
    u_loads(lambda t: a.raw("  " + t))
    a.raw("  s_waitcnt vmcnt(0)\n  s_branch S_uchk")

hdr = open("cdna_kernels/" + NAME + ".s.ref").read().split("\n")
top = [l for l in hdr if l.startswith(";") and "@launch" not in l][:16]
a.raw("\n".join(top))
a.raw("; @launch grid=(256,1,1) block=(512,1,1) lds=163840")
a.raw(""";
; out = x + conv(K, LN(x)) + LN(x)*Dskip + silu(LN(x) w1) w2, one launch, one 512-thread workgroup per CU.
; removed by a rank-1 MFMA with the column sums of w1, the scale in the SiLU epilogue), then a 64x64 tile of h*w2 with K
; (tap index rounded to bf16 as in the reference), its causal convolution as Toeplitz MFMAs, and part of the tile loads.
; (a clock value read once and published in d_debug); xn, the row statistics and the conv result are written through
; (sc1) and read with sc1.  h stays in the die's L2 only after the 16 workgroups of a row block have seen that they all
; report the same XCC id, otherwise it is written through as well.  Every wait on another workgroup is bounded.""")
a.raw(f""".amdgcn_target "amdgcn-amd-amdhsa--gfx950"
.text
.globl {NAME}_kernel
.p2align 8
.type {NAME}_kernel,@function
{NAME}_kernel:""")
stamp()
NST[0] = 14
a(f"""
v_lshrrev_b32 v1, 6, v0
s_cmp_ge_u32 s2, 256
s_cbranch_scc1 L_exit
v_readfirstlane_b32 s32, v1
s_and_b32 s3, s2, 7
s_lshl_b32 s3, s3, 5
s_lshr_b32 s96, s2, 3
s_add_u32 s3, s3, s96
s_cmp_lt_u32 s32, 4
s_cbranch_scc1 L_gemm
""")
if "nocpf" not in OPT:
    a(f"""
    s_getpc_b64 s[94:95]
    s_lshl_b32 s96, s96, 10
    v_and_b32 v255, 7, v0
    v_lshl_add_u32 v255, v255, 7, s96
    v_min_u32 v255, L_exit-{NAME}_kernel-128, v255
    global_load_dword v254, v255, s[94:95]
    """)
EV[1] = False
ssm = ssm_role()
next(ssm)
EV[1] = True
a("L_gemm:")
a.hist = []; a.vm = []; a.lg = []
if STAMPS: nstamp[0] = 1
gemm_role()
a.raw(".p2align 6")
a("L_ssm:")
NST[0] = 14
EV[1] = False
for _ in ssm: pass
a("L_exit:\ns_endpgm")
a.raw(f""".section .rodata,"a"
.p2align 6
.amdhsa_kernel {NAME}_kernel
  .amdhsa_next_free_vgpr 256
  .amdhsa_next_free_sgpr 102
  .amdhsa_accum_offset 256
  .amdhsa_group_segment_fixed_size 0
  .amdhsa_kernarg_size 120
  .amdhsa_user_sgpr_count 2
  .amdhsa_user_sgpr_kernarg_segment_ptr 1
  .amdhsa_system_sgpr_workgroup_id_x 1
.end_amdhsa_kernel""")
sys.stdout.write(a.text())
sys.stderr.write(f"nops inserted: {a.nops}\n")
```

```python
import sys, struct
from asmlib import Asm, vr, sr

NAME = "parallel_sum__ssm_conv_s4__dense_activation_silu__prompt"
OPT = {x.split("=")[0][2:]: (x.split("=")[1] if "=" in x else "1") for x in sys.argv[1:] if x.startswith("--")}
OPT.setdefault("ol", "nt")
STAMPS = "stamps" in OPT
SPIN = int(OPT.get("spin", 100000))
PLF = OPT.get("plf", "sc1").replace("_", " ")
FSF = OPT.get("fsf", "sc1").replace("_", " ")
M1, M2 = OPT.get("m1", "81"), OPT.get("m2", "81")
LOCAL = M1 == "81" and M2 == "81" and "nolocal" not in OPT
HSF = "" if LOCAL else "sc1"

HROW = 88 * 1024
H_SIZE = 64 * HROW
ST = 0x580000
FH = 0x590000
GS = 18432
GC = 4608
FY = 0x5C0000
XNP = 0x600000
XS = 9216
FX = 0x5A0000
FG = 0x5B0000
Y2 = 0xA80000
WS_SIZE = 0x1000000
STAMP_OFF = 0xF80000
LOG2E = 0x3fb8aa3b
fl = lambda x: "0x%08x" % struct.unpack("<I", struct.pack("<f", x))[0]

a = Asm()
SHARED = {}
nstamp = [0]
EV = [0, True]
NST = [16]
def stamp(force=False):
    if "padev" in OPT and EV[1]:
        if EV[0] == int(OPT["padev"]): a("s_memrealtime s[86:87]")
        EV[0] += 1
    if STAMPS and nstamp[0] < NST[0] and (force or ("cs" not in OPT and "g2" not in OPT and "ss" not in OPT) or nstamp[0] in (0, 13) or ("g2" in OPT and nstamp[0] >= 7)):
        i = nstamp[0]; nstamp[0] += 1
        a(f"s_memtime s[{60+2*i}:{61+2*i}]")
def stamp_flush(wsrd, wave_s, vt, row=0):
    if not STAMPS: return
    n = nstamp[0]
    a("s_memrealtime s[98:99]")
    a("s_waitcnt lgkmcnt(0)")
    a(f"s_lshl_b32 s96, s2, 2\ns_add_u32 s96, s96, {wave_s}\ns_lshl_b32 s96, s96, 7\ns_add_u32 s96, s96, {STAMP_OFF+row*512}")
    a("s_mov_b64 exec, 1")
    for i in range(n):
        a(f"v_mov_b32 v{vt}, s{60+2*i}")
        a(f"buffer_store_dword v{vt}, off, {wsrd}, s96 offset:{4*i}")
    a(f"v_mov_b32 v{vt}, s97\nbuffer_store_dword v{vt}, off, {wsrd}, s96 offset:116")
    a(f"v_mov_b32 v{vt}, s100\nbuffer_store_dword v{vt}, off, {wsrd}, s96 offset:120")
    a(f"v_mov_b32 v{vt}, s98\nbuffer_store_dword v{vt}, off, {wsrd}, s96 offset:124")
    nstamp[0] = 0
def retry_mark(bit):
    return f"  s_add_u32 s97, s97, {1 << bit}\n" if STAMPS else ""

def srd(base, size):
    a(f"s_mov_b32 s{base+2}, {size}\ns_mov_b32 s{base+3}, 0x20000")

def cmul(d, x, y):
    a(f"v_mul_f32 v{d}, v{x+1}, v{y+1}")
    a(f"v_mul_f32 v{d+1}, v{x+1}, v{y}")
    a(f"v_fma_f32 v{d}, v{x}, v{y}, -v{d}")
    a(f"v_fmac_f32 v{d+1}, v{x}, v{y+1}")

def tag_slow(pfx, sTag, dbg, offs, vt, sCnt):
    a.raw(f"{pfx}_tagslow:")
    if STAMPS: a.raw(retry_mark(0).rstrip("\n"))
    for o in offs:
        a.raw(f"  s_load_dwordx2 {sr(sTag,2)}, s[{dbg}:{dbg+1}], {o}\n  s_waitcnt lgkmcnt(0)\n  s_cmp_lg_u32 s{sTag}, 0\n  s_cbranch_scc1 {pfx}_tagok")
    a.raw(f"""  s_mov_b32 s{sCnt}, 0
{pfx}_tagloop:
  buffer_load_dwordx2 {vr(vt,2)}, off, s[{dbg}:{dbg+3}], 0 sc1
  s_add_u32 s{sCnt}, s{sCnt}, 1
  s_waitcnt vmcnt(0)
  v_readfirstlane_b32 s{sTag}, v{vt}
  v_readfirstlane_b32 s{sTag+1}, v{vt+1}
  s_nop 3
  s_cmp_lg_u32 s{sTag}, 0
  s_cbranch_scc1 {pfx}_tagok
  s_cmp_lt_u32 s{sCnt}, {SPIN}
  s_cbranch_scc1 {pfx}_tagloop
  s_branch {pfx}_tagok""")

def gemm_role():
    X, W1, WS, W2, OUT, DBG, HS = "s[4:7]", "s[8:11]", "s[12:15]", "s[16:19]", "s[20:23]", "s[24:27]", "s[28:31]"
    sP = 3
    sW, sRB, sM, sXB, sWB, sC, sTx, sT, sLA, sLB, sW2, sHS, sHL = range(32, 45)
    sT2, sT3, sL2e, sCnt, sO, sTag, sFl, sRT = 45, 46, 47, 48, 49, 50, 52, 53
    sB1, sMask, sCG, sXcc, sFar, sHS2, sIa = 54, 55, 56, 57, 58, 59, 101
    sY, sRet = sFl, sFar
    sMean, sNeg = 88, 92
    sXn, sSt, sCx = 89, 90, 96
    SROW, STG = 1056, 98304
    vL = 1
    vXo, vWo, vXr, vWr, vW2o, vW2r, vL16 = 2, 6, 9, 13, 17, 18, 22
    vT, vNon, vCs, vT2, vC2, vSa = 23, 24, 26, 29, 30, 31
    vSt, vNeg = 32, 36
    HALF, vSw, vSr, vIa, vT3 = 88, 92, 93, 94, 95
    ACC1, WF, CSA, XF, CSF = 40, 96, 144, 192, 168
    LX, LF, LG, vId = 224, 232, 248, 252
    ACC2, STASH, HB, HD = 32, 96, 192, 8
    LB0 = 49152
    FARAWAY = 0x40000000
    IP = int(OPT.get('ip', 1))
    a(f"""
    s_load_dwordx2 s[4:5], s[0:1], 0
    s_load_dwordx2 s[8:9], s[0:1], 80
    s_load_dwordx2 s[24:25], s[0:1], 104
    s_load_dwordx2 s[12:13], s[0:1], 112
    s_load_dwordx2 s[16:17], s[0:1], 88
    s_load_dwordx2 s[20:21], s[0:1], 96
    v_and_b32 v{vL}, 63, v0
    s_lshr_b32 s{sRB}, s{sP}, 4
    s_and_b32 s{sM}, s{sP}, 15
    s_and_b32 s{sC}, s{sP}, 7
    s_mov_b32 s{sCx}, s{sC}
    v_lshlrev_b32 v{vL16}, 4, v{vL}
    s_lshl2_add_u32 s{sCnt}, s{sP}, s{sW}
    s_lshl_b32 s{sCnt}, s{sCnt}, 11
    s_setprio 2
    """)
    if STAMPS: a("s_memrealtime s[98:99]")
    srd(4, 2048 * 1024); srd(8, 512 * 2752)
    a(f"""
    v_lshrrev_b32 v{vT}, 3, v{vL}
    v_lshlrev_b32 v{vT}, 10, v{vT}
    v_lshrrev_b32 v{vT2}, 4, v{vL}
    v_xor_b32 v{vT2}, v{vT2}, v{vL}
    v_and_b32 v{vT2}, 7, v{vT2}
    v_lshl_add_u32 v{vXo}, v{vT2}, 4, v{vT}
    v_xor_b32 v{vXo+1}, 64, v{vXo}
    v_add_u32 v{vXo+2}, {2*7168}, v{vXo}
    v_add_u32 v{vXo+3}, {3*7168}, v{vXo+1}
    v_add_u32 v{vXo+1}, 7168, v{vXo+1}
    s_movk_i32 s{sT}, 5462
    s_movk_i32 s{sT2}, {2752-192}
    v_mul_u32_u24 v{vT}, s{sT}, v{vL}
    """)
    for j in range(3):
        if j: a(f"v_add_u32 v{vT}, {64*5462}, v{vT}")
        a(f"v_lshrrev_b32 v{vT2}, 16, v{vT}\nv_mad_u32_u24 v{vWo+j}, v{vT2}, s{sT2}, v{vL16}")
    a(f"""
    s_lshl2_add_u32 s{sXB}, s{sRB}, s{sW}
    s_lshl_b32 s{sXB}, s{sXB}, 15
    s_mul_i32 s{sWB}, s{sM}, 192
    s_mul_i32 s{sT}, s{sW}, {16*2752}
    s_add_u32 s{sWB}, s{sWB}, s{sT}
    s_lshr_b32 s{sO}, s{sXB}, 6
    s_and_b32 s{sW2}, s{sRB}, 1
    s_mul_i32 s{sHL}, s{sW2}, 1344
    s_add_u32 s{sHL}, s{sHL}, s{sT}
    s_mul_i32 s{sHS}, s{sW}, 11
    s_add_u32 s{sHS}, s{sHS}, s{sW2}
    s_lshl_b32 s{sHS}, s{sHS}, 15
    s_cmp_eq_u32 s{sM}, 15             ; the 16th workgroup of a row block has no GEMM1 tile: its tile loads go out of range
    s_cselect_b32 s{sXB}, {"s%d" % sHS if IP else FARAWAY}, s{sXB}
    s_cselect_b32 s{sWB}, {"s%d" % sHL if IP > 1 else FARAWAY}, s{sWB}
    s_lshl_b32 s{sLA}, s{sW}, 12
    s_mul_i32 s{sLB}, s{sW}, 3072
    s_add_u32 s{sLB}, s{sLB}, {LB0}
    s_waitcnt lgkmcnt(0)
    """)
    if STAMPS: a("s_mov_b32 s100, s98\ns_mov_b32 s97, 0")
    stamp()

    def w_ops(c):
        ops = []
        for j in range(3):
            def f(j=j):
                if j == 0:
                    a(f"s_mul_i32 s{sT2}, s{sC}, {64*2752}\ns_add_u32 m0, s{sLB}, {(c&3)*12288}\ns_add_u32 s{sT2}, s{sT2}, s{sWB}")
                a(f"buffer_load_dwordx4 v{vWo+j}, {W1}, s{sT2} offen offset:{j*1024} {OPT.get('w1f', '')} lds", f"C{c}")
                if j == 0: a(f"s_add_u32 s{sC}, s{sC}, 1\ns_and_b32 s{sC}, s{sC}, 7")
            ops.append(f)
        return ops
    def x_ops(c):
        ops = []
        for pc in range(4):
            def f(pc=pc):
                if pc == 0:
                    a(f"s_lshl_b32 s{sTx}, s{sCx}, 7\ns_add_u32 m0, s{sLA}, {(c%3)*16384}\ns_add_u32 s{sTx}, s{sTx}, s{sXB}")
                a(f"buffer_load_dwordx4 v{vXo+pc}, {X}, s{sTx} offen offset:{pc*1024} lds", f"C{c}")
                if pc == 0: a(f"s_add_u32 s{sCx}, s{sCx}, 1\ns_and_b32 s{sCx}, s{sCx}, 7")
            ops.append(f)
        return ops
    DQ = []; QT = []; QK = []
    for c in range(8):
        first = (w_ops(c), x_ops(c)) if c < 2 else (x_ops(c), w_ops(c))
        for grp_ in first:
            isx = len(grp_) == 4
            lim = -1 if c < (3 if isx else 4) else (max(1, 4 * (c - 3)) if isx else 4 * (c - 3) + 2)
            DQ += [(lim, f) for f in grp_]
            QT += [f'C{c}'] * len(grp_)
            QK += [('x' if isx else 'w') + str(c)] * len(grp_)
    def issue(n, s_=-1):
        for _ in range(n):
            if DQ and DQ[0][0] <= s_: DQ.pop(0)[1]()
    for r in range(2):
        a(f"buffer_load_dwordx4 {vr(LX+4*r,4)}, v{vL16}, {X}, s{sCnt} offen offset:{1024*r}", "xrow")
    if IP:
        a(f"s_mov_b64 s[98:99], s[4:5]\ns_cmp_eq_u32 s{sM}, 15\ns_cselect_b64 s[4:5], s[16:17], s[4:5]\ns_cselect_b64 s[8:9], s[16:17], s[8:9]")
    a(f"""
    s_getreg_b32 s{sXcc}, hwreg(HW_REG_XCC_ID, 0, 4)
    s_mov_b32 s{sB1}, 0x3f803f80
    s_mov_b32 s{sMask}, 0xffff0000
    s_mul_i32 s{sT3}, s{sW}, {2*SROW}
    s_add_u32 s{sT3}, s{sT3}, {STG}
    v_add_u32 v{vSw}, s{sT3}, v{vL16}
    v_bfe_u32 v{vT3}, v{vL}, 2, 2
    v_and_b32 v{vT}, 1, v{vL}
    v_lshl_add_u32 v{vT}, v{vT}, 2, v{vT3}
    v_mul_u32_u24 v{vT}, {SROW}, v{vT}
    v_and_b32 v{vT2}, 2, v{vL}
    v_lshl_add_u32 v{vT}, v{vT2}, 2, v{vT}
    v_lshrrev_b32 v{vT2}, 4, v{vL}
    v_lshl_add_u32 v{vT}, v{vT2}, 4, v{vT}
    s_lshl_b32 s{sT3}, s{sW}, 8
    s_add_u32 s{sT3}, s{sT3}, {STG}
    v_add_u32 v{vSr}, s{sT3}, v{vT}
    """)
    issue(7)
    a(f"""
    v_and_b32 v{vSa}, 31, v{vL}
    v_lshrrev_b32 v{vT2}, 5, v{vL}
    v_bfe_u32 v{vC2}, v{vL}, 1, 3
    v_xor_b32 v{vC2}, v{vC2}, v{vT2}
    v_lshl_add_u32 v{vC2}, v{vC2}, 4, s{sLA}
    v_lshl_add_u32 v{vC2}, v{vSa}, 7, v{vC2}
    v_bfe_u32 v{vT3}, v{vL}, 2, 2
    v_lshl_add_u32 v{vT}, v{vT2}, 3, v{vT3}
    v_mul_u32_u24 v{vT}, 192, v{vT}
    v_bfe_u32 v{vT2}, v{vL}, 4, 1
    v_lshl_add_u32 v{vT}, v{vT2}, 5, v{vT}
    v_and_b32 v{vT2}, 3, v{vL}
    v_lshl_add_u32 v{vT}, v{vT2}, 3, v{vT}
    v_add_u32 v{vT}, {LB0}, v{vT}
    """)
    for i in range(4):
        a(f"""
        s_add_u32 s{sT3}, s{sW}, {i}
        s_and_b32 s{sT3}, s{sT3}, 3
        s_lshl_b32 s{sCnt}, s{sT3}, 5
        s_mulk_i32 s{sT3}, 3072
        v_xor_b32 v{vXr+i}, s{sCnt}, v{vC2}
        v_add_u32 v{vWr+i}, s{sT3}, v{vT}
        """)
    issue(3)
    a(f"""
    v_lshrrev_b32 v{vT2}, 4, v{vL}
    """)
    srd(24, 256)
    srd(12, WS_SIZE)
    a(f"""
    v_lshrrev_b32 v{vT}, 2, v{vL}
    v_xor_b32 v{vT}, v{vT}, v{vT2}
    v_and_b32 v{vT}, 1, v{vT}
    v_add_u32 v{vT}, -1, v{vT}
    """)
    for k in range(4): a(f"v_and_b32 v{HALF+k}, s{sB1}, v{vT}")
    FILL = [u.strip() for u in f"""
    s_mov_b32 s18, {1376*1024}
    s_mov_b32 s19, 0x20000
    s_mov_b32 s22, {2048*1024}
    s_mov_b32 s23, 0x20000
    s_mov_b32 s28, s12
    s_mov_b32 s29, s13
    s_mov_b32 s30, {H_SIZE}
    s_mov_b32 s31, 0x20000
    s_mov_b32 s{sL2e}, {LOG2E:#x}
    v_lshlrev_b32 v{vSa}, 4, v{vSa}
    s_add_u32 s{sO}, s{sO}, {ST}
    v_and_b32 v{vIa}, 15, v{vL}
    v_lshlrev_b32 v{vIa}, 7, v{vIa}
    s_lshl_b32 s{sIa}, s{sRB}, 11
    s_add_u32 s{sIa}, s{sIa}, {ST}
    v_lshrrev_b32 v{vT}, 3, v{vL}
    v_lshlrev_b32 v{vT}, 10, v{vT}
    v_bfe_u32 v{vT2}, v{vL}, 4, 1
    v_lshlrev_b32 v{vT3}, 2, v{vT2}
    v_xor_b32 v{vT3}, v{vT3}, v{vL}
    v_and_b32 v{vT3}, 7, v{vT3}
    v_lshl_add_u32 v{vW2o}, v{vT3}, 4, v{vT}
    v_lshrrev_b32 v{vT}, 5, v{vL}
    v_bfe_u32 v{vT3}, v{vL}, 2, 2
    v_lshl_add_u32 v{vT}, v{vT}, 2, v{vT3}
    v_lshlrev_b32 v{vT}, 7, v{vT}
    v_lshl_add_u32 v{vT}, v{vT2}, 5, v{vT}
    v_bfe_u32 v{vT2}, v{vL}, 3, 1
    v_lshl_add_u32 v{vT}, v{vT2}, 6, v{vT}
    v_and_b32 v{vT2}, 3, v{vL}
    v_lshl_add_u32 v{vT}, v{vT2}, 3, v{vT}
    s_lshl_b32 s{sT3}, s{sW}, 5
    s_and_b32 s{sT3}, s{sT3}, 64
    v_xor_b32 v{vT}, s{sT3}, v{vT}
    v_xor_b32 v{vT2}, 64, v{vT}
    v_add_u32 v{vW2r}, s{sLA}, v{vT}
    v_add_u32 v{vW2r+1}, s{sLA}, v{vT2}
    v_add_u32 v{vW2r+2}, s{sLB}, v{vT}
    v_add_u32 v{vW2r+3}, s{sLB}, v{vT2}
    s_and_b32 s{sT3}, s{sP}, 1
    s_lshl1_add_u32 s{sRT}, s{sRB}, s{sT3}
    s_lshr_b32 s{sCG}, s{sM}, 1
    s_mul_i32 s{sW2}, s{sW}, {352*1024}
    s_lshl_b32 s{sT}, s{sCG}, 7
    s_add_u32 s{sW2}, s{sW2}, s{sT}
    s_mul_i32 s{sHL}, s{sRT}, {2*HROW}
    s_mul_i32 s{sT}, s{sW}, {22*1024}
    s_add_u32 s{sHL}, s{sHL}, s{sT}
    s_lshl_b32 s{sT3}, s{sW}, 8
    s_add_u32 s{sT3}, s{sT3}, {LB0}
    v_lshl_add_u32 v{vT2}, v{vL}, 2, s{sT3}
    v_lshl_add_u32 v{vT}, v{vL}, 2, s{sLB}
    s_lshl2_add_u32 s{sT3}, s{sRB}, s{sW}
    s_mul_i32 s{sT3}, s{sT3}, {HROW}
    s_mul_i32 s{sHS}, s{sM}, 6144
    s_add_u32 s{sHS}, s{sHS}, s{sT3}
    s_add_u32 s{sHS2}, s{sHS}, 4096
    s_cmp_ge_u32 s{sM}, 14 | s_cselect_b32 s{sHS2}, {H_SIZE}, s{sHS2}
    s_lshr_b32 s{sT3}, s{sW}, 1
    s_lshl1_add_u32 s{sT3}, s{sRB}, s{sT3}
    s_lshl4_add_u32 s{sT3}, s{sT3}, s{sM}
    s_and_b32 s{sFl}, s{sW}, 1
    s_lshl1_add_u32 s{sFl}, s{sT3}, s{sFl}
    s_lshl_b32 s{sFl}, s{sFl}, 3
    s_add_u32 s{sFl}, s{sFl}, {FH}
    s_cmp_eq_u32 s{sM}, 15 | s_cselect_b32 s{sHS}, {H_SIZE}, s{sHS} | s_cselect_b32 s{sFl}, {WS_SIZE}, s{sFl}
    """.strip().split("\n")]
    def fill_(n):
        for _ in range(n):
            if FILL: a(FILL.pop(0).replace(" | ", "\n"))

    fill_(int(OPT.get("nfill", 0)))
    keepq = [(q, t) for q, t, k in zip(DQ, QT[len(QT)-len(DQ):], QK[len(QK)-len(DQ):]) if k not in ("x1", "x2", "w2", "w3")]
    DQ[:] = [q for q, _ in keepq]; QT[:] = [t for _, t in keepq]
    a(f"s_add_u32 s{sC}, s{sC}, 2\ns_and_b32 s{sC}, s{sC}, 7\ns_add_u32 s{sCx}, s{sCx}, 2\ns_and_b32 s{sCx}, s{sCx}, 7")
    a.wait(vm="xrow")
    stamp()

    vC = CSA; S = [252, 253]; vN = 254; sR = sMean
    def dpp_reduce(fill):
        for ctl in ("row_shr:1 row_mask:0xf bank_mask:0xf bound_ctrl:0", "row_shr:2 row_mask:0xf bank_mask:0xf bound_ctrl:0",
                    "row_shr:4 row_mask:0xf bank_mask:0xf bound_ctrl:0", "row_shr:8 row_mask:0xf bank_mask:0xf bound_ctrl:0",
                    "row_bcast:15 row_mask:0xa bank_mask:0xf", "row_bcast:31 row_mask:0xc bank_mask:0xf"):
            for r in range(2):
                a(f"v_add_f32_dpp v{S[r]}, v{S[r]}, v{S[r]} {ctl}")
            for _ in range(3):
                if fill: a(fill.pop(0))
        while fill: a(fill.pop(0))
    for k in range(4):
        for r in range(2):
            a(f"v_dot2_f32_bf16 v{S[r]}, v{LX+4*r+k}, s{sB1}, {'0' if k == 0 else 'v%d' % S[r]}")
    unpack = lambda: [t for r in range(2) for k in range(4) for t in
                      (f"v_lshlrev_b32 v{LF+8*r+2*k}, 16, v{LX+4*r+k}", f"v_and_b32 v{LF+8*r+2*k+1}, s{sMask}, v{LX+4*r+k}")]
    fill = unpack()
    for _ in range(3): a(fill.pop(0))
    dpp_reduce(fill)
    for r in range(2): a(f"v_mul_f32 v{S[r]}, 0x3b000000, v{S[r]}")
    for r in range(2): a(f"v_cvt_pk_bf16_f32 v{vN+r}, -v{S[r]}, -v{S[r]}")
    for r in range(2): a(f"v_readlane_b32 s{sMean+2*r}, v{S[r]}, 63")
    for r in range(2): a(f"v_readlane_b32 s{sNeg+2*r}, v{vN+r}, 63")
    for k in range(4):
        for r in range(2):
            a(f"v_pk_add_f32 {vr(vC+8*r+2*k,2)}, {vr(LF+8*r+2*k,2)}, {sr(sMean+2*r,2)} op_sel_hi:[1,0] neg_lo:[0,1] neg_hi:[0,1]")
    for r in range(2): a(f"s_and_b32 s{sNeg+2*r}, s{sNeg+2*r}, s{sMask}")
    for r in range(2): a(f"s_or_b32 s{sNeg+2*r+1}, s{sNeg+2*r}, s{sXcc}")
    for r in range(2):
        a(f"v_pk_mul_f32 {vr(vC+8*r,2)}, {vr(vC+8*r,2)}, {vr(vC+8*r,2)}")
    for k in range(1, 4):
        for r in range(2):
            a(f"v_pk_fma_f32 {vr(vC+8*r,2)}, {vr(vC+8*r+2*k,2)}, {vr(vC+8*r+2*k,2)}, {vr(vC+8*r,2)}")
    for r in range(2): a(f"v_add_f32 v{S[r]}, v{vC+8*r}, v{vC+8*r+1}")
    fill = [f"v_pk_add_f32 {vr(LF+8*r+2*k,2)}, {vr(LF+8*r+2*k,2)}, {sr(sNeg+2*r,2)} op_sel_hi:[1,0]" for k in range(4) for r in range(2)]
    fill += [f"v_cvt_pk_bf16_f32 v{LX+4*r+k}, v{LF+8*r+2*k}, v{LF+8*r+2*k+1}" for k in range(4) for r in range(2)]
    dpp_reduce(fill)
    issue(int(OPT.get('n1', 0)))
    def rnd():
        for r in range(2): a(f"v_cvt_pk_bf16_f32 v{S[r]}, v{S[r]}, v{S[r]}")
        for r in range(2): a(f"v_lshlrev_b32 v{S[r]}, 16, v{S[r]}")
    for r in range(2): a(f"v_mul_f32 v{S[r]}, 0x3b000000, v{S[r]}")
    rnd()
    for r in range(2): a(f"v_add_f32 v{S[r]}, 0x3727c5ac, v{S[r]}")
    rnd()
    for r in range(2): a(f"v_sqrt_f32 v{S[r]}, v{S[r]}")
    rnd()
    for r in range(2): a(f"v_rcp_f32 v{S[r]}, v{S[r]}")
    for t in unpack(): a(t)
    for r in range(2): a(f"v_readlane_b32 s{sR+2*r}, v{S[r]}, 63")
    a(f"s_load_dwordx2 {sr(sTag,2)}, s[24:25], 0")
    for r in range(2):
        for k in range(4):
            a(f"v_pk_mul_f32 {vr(LF+8*r+2*k,2)}, {vr(LF+8*r+2*k,2)}, {sr(sR+2*r,2)} op_sel_hi:[1,0]")
        for k in range(4):
            a(f"v_cvt_pk_bf16_f32 v{LX+4*r+k}, v{LF+8*r+2*k}, v{LF+8*r+2*k+1}")
        a(f"ds_write_b128 v{vSw}, {vr(LX+4*r,4)} offset:{SROW*r}", "stg")
    a(f"""
    v_mov_b32 v{LG}, s{sNeg+1}
    v_mov_b32 v{LG+1}, s{sR}
    v_writelane_b32 v{LG}, s{sNeg+3}, 1
    v_writelane_b32 v{LG+1}, s{sR+2}, 1
    s_mul_i32 s{sXn}, s{sP}, {GS}
    s_lshl_b32 s{sT3}, s{sW}, 12
    s_add_u32 s{sXn}, s{sXn}, s{sT3}
    s_add_u32 s{sXn}, s{sXn}, {XNP}
    s_lshl2_add_u32 s{sSt}, s{sP}, s{sW}
    s_lshl_b32 s{sSt}, s{sSt}, 5
    s_add_u32 s{sSt}, s{sSt}, {ST}
    """)
    issue(int(OPT.get('n2', 7)))
    a.wait(lg=0)
    stamp()

    GROUPS = [("A", 2, 4), ("A", 0, 4), ("B", 1, 3), ("A", 1, 4), ("B", 0, 3), ("B", 2, 3), ("B", 3, 3)]
    LOC = []
    for rg, sl, n in GROUPS:
        for k in range(n):
            LOC.append((rg, sl * (16384 if rg == "A" else 12288) + k * 1024))
    PL2 = list(range(4, 24))
    ploc = lambda p: p if p < 24 else PL2[p - 24]
    SHARED['LOC'] = LOC
    pn = [0]
    def p_next():
        p = pn[0]; pn[0] += 1
        rg, off = LOC[ploc(p)]
        a(f"s_add_u32 m0, s{sLA if rg == 'A' else sLB}, {off}")
        a(f"s_add_u32 s{sT3}, s{sW2}, {8192*p}")
        a(f"buffer_load_dwordx4 v{vW2o}, {W2}, s{sT3} offen lds", f"P{p}")

    wb = lambda s_: WF + 12 * (s_ % 3)
    def tr_pair(s_, ft):
        c, i = divmod(s_, 4)
        for e in range(2):
            a(f"ds_read_b64_tr_b16 {vr(wb(s_)+4*ft+2*e,2)}, v{vWr+i} offset:{(c&3)*12288+e*768+ft*64}", f"wf{s_}")
    def rd_x(c, i):
        a(f"ds_read_b128 {vr(XF+16*(c&1)+4*i,4)}, v{vXr+i} offset:{(c%3)*16384}", f"xf{c}_{i}")
    def open_chunk(c):
        if "cs" in OPT and c in (3, 5): stamp(True)
        a.wait(vm=f"C{c}")
        if (c == 0 and "ss" not in OPT) or ("cs" in OPT and c in (3, 5)): stamp(True)
        a("s_barrier")
        if "cs" in OPT and c: stamp(True)

    open_chunk(0)
    rd_x(0, 0)
    for ft in range(3): tr_pair(0, ft)
    for i in range(1, 4): rd_x(0, i)
    for ft in range(3): tr_pair(1, ft)
    a(f"s_cmp_eq_u32 s{sTag}, 0\ns_cbranch_scc1 G_tagslow\nG_tagok:")
    for k in range(5): a(f"v_mov_b32 v{LF+4*k+2}, s{sTag}\nv_mov_b32 v{LF+4*k+3}, s{sTag+1}")
    XSL = {"a": [(0, 1), (0, 2), (1, 0), (1, 2), (2, 1)], "b": [(3, 0), (3, 1), (3, 2), (7, 0), (7, 1)], "c": [(1, 0), (1, 2), (3, 0), (3, 2), (5, 1)]}[OPT.get("xsl", "b")]
    GP = 'gp' in OPT
    PS = int(OPT.get('ps', 22)) if GP else 99
    def bg_op(c, i, ft):
        s_ = 4 * c + i
        if DQ: issue(1, s_)
        elif s_ >= PS and ft != 1:
            lim = 0 if s_ < 20 else 4 if s_ < 24 else 8 if s_ < 26 else 11 if s_ < 28 else 15 if s_ < 30 else 18 if s_ < 31 else 24
            if pn[0] < lim:
                assert not FILL
                p_next()
    def split(dst, src, tmp):
        return [f"v_cvt_pk_bf16_f32 v{tmp}, v{src}, v{src}", f"v_lshlrev_b32 v{tmp}, 16, v{tmp}",
                f"v_sub_f32 v{tmp}, v{src}, v{tmp}", f"v_cvt_pk_bf16_f32 v{dst}, v{src}, v{tmp}"]
    for c in range(8):
        a.comment(f"---- GEMM1 chunk {c}")
        for i in range(4):
            s_ = 4 * c + i
            if i == 2 and c < 7:
                issue(int(OPT.get('flush', 0)), s_ - 1)
                assert not any(t == f'C{c+1}' for t in QT[len(QT)-len(DQ):])
                open_chunk(c + 1)
            a.wait(lg=(f"xf{c}_{3 if s_ else 0}", f"wf{s_}"))
            if "ss" in OPT and int(OPT["ss"]) <= s_ < int(OPT["ss"]) + 12: stamp(True)
            if s_ == 28:
                assert "csw" not in a.lg
                a("s_barrier")
            if s_ == 31: a("s_barrier")
            for ft in range(3):
                cs = i == 0 or c >= 7
                if cs and s_ == 31:
                    a(f"v_mfma_f32_16x16x32_bf16 {vr(CSA+12+4*ft,4)}, {vr(HALF,4)}, {vr(wb(s_)+4*ft,4)}, {vr(CSA+12+4*ft,4)}")
            for ft in range(3):
                cc = "0" if s_ == 0 else vr(ACC1+16*ft, 16)
                a(f"v_mfma_f32_32x32x16_bf16 {vr(ACC1+16*ft,16)}, {vr(wb(s_)+4*ft,4)}, {vr(XF+16*(c&1)+4*i,4)}, {cc}")
                if i == 2 and c < 7:
                    if ft == 0: rd_x(c + 1, 0)
                    rd_x(c + 1, ft + 1)
                if s_ + 2 < 32: tr_pair(s_ + 2, ft)
                if (s_, ft) == (0, 0):
                    for k in range(4): a(f"ds_read_b64_tr_b16 {vr(LF+4*k,2)}, v{vSr} offset:{64*k}", "tr")
                if (s_, ft) in XSL:
                    a.wait(lg="tr")
                    k = XSL.index((s_, ft))
                    if k < 4: a(f"buffer_store_dwordx4 {vr(LF+4*k,4)}, v{vL16}, {WS}, s{sXn} offen offset:{1024*k} sc1", "xn")
                    else: a(f"s_mov_b64 exec, 3\nbuffer_store_dwordx4 {vr(LG,4)}, v{vL16}, {WS}, s{sSt} offen sc1\ns_mov_b64 exec, -1")
                else:
                    bg_op(c, i, ft)
                    if i == 3 or (i == 1 and ft): fill_(4)
                if (i == 0 or c >= 7) and s_ != 31:
                    d = CSA + 4 * ft + (12 if c >= 7 else 0)
                    a(f"v_mfma_f32_16x16x32_bf16 {vr(d,4)}, {vr(HALF,4)}, {vr(wb(s_)+4*ft,4)}, {'0' if s_ in (0, 28) else vr(d,4)}")
                if s_ == 25:
                    for t in split(vCs + ft, CSA + 4 * ft, CSA + 4 * ft + 1): a(t)
                if s_ == 25:
                    for k in range(2):
                        a(f"ds_write2st64_b32 v{vT2}, v{vCs+ft}, v{vCs+ft} offset0:{24*k+4*ft} offset1:{24*k+12+4*ft}", "csw")
                if s_ == 23:
                    for k in range(4): a(f"v_mov_b32 v{CSF+4*ft+k}, 0")
                if s_ == 28:
                    a("s_mov_b32 exec_hi, 0")
                    for k in range(2):
                        a(f"ds_read2st64_b32 {vr(CSF+4*ft+2*k,2)}, v{vT} offset0:{4*ft+2*k} offset1:{4*ft+2*k+1}", "csf")
                    a("s_mov_b32 exec_hi, -1")
                if s_ == 29 and ft == 2:
                    a.wait(vm="st", lg="csf")
                    a(f"""
                    s_mov_b32 s{sCnt}, 0
                    G_stchk:
                    v_cmp_ne_u64 vcc, {sr(sTag,2)}, {vr(vSt+2,2)}
                    v_cmp_ne_u64 s[88:89], {sr(sTag,2)}, {vr(vId+2,2)}
                    v_and_b32 v{vId+1}, 0xffff, v{vId}
                    s_or_b64 vcc, vcc, s[88:89]
                    s_cbranch_vccnz G_stslow
                    G_stok:
                    """)
                if s_ == 30 and ft == 0:
                    a(f"""
                    v_cmp_ne_u32 s[90:91], s{sXcc}, v{vId+1}
                    v_lshrrev_b32 v{vNeg+1}, 16, v{vSt}
                    v_bfi_b32 v{vNeg}, s{sMask}, v{vSt}, v{vNeg+1}
                    v_bfi_b32 v{vNeg+2}, s{sMask}, v{vSt}, v{vNeg+1}
                    """)
                if s_ == 30 and ft == 1:
                    a(f"""
                    v_bfi_b32 v{vNeg+3}, s{sMask}, v{vSt}, v{vNeg+1}
                    v_bfi_b32 v{vNeg+1}, s{sMask}, v{vSt}, v{vNeg+1}
                    v_mul_f32 v{vC2}, s{sL2e}, v{vSt+1}
                    s_or_b32 s{sFar}, s90, {1 if 'forcefar' in OPT else 's91'}
                    v_mov_b32 v{vNon}, s{sTag}
                    v_mov_b32 v{vNon+1}, s{sTag+1}
                    """)
                if s_ == 31:
                    sp = split(CSF + 4 * ft, CSA + 12 + 4 * ft, CSA + 13 + 4 * ft)
                    for t in sp[:3]: a(t)
                    a(f"s_mov_b32 exec_lo, 0\n{sp[3]}\ns_mov_b32 exec_lo, -1")
            if s_ == 23:
                assert not FILL
                a(f"buffer_load_dwordx4 {vr(vSt,4)}, v{vSa}, {WS}, s{sO} offen sc1", "st")
                a(f"buffer_load_dwordx4 {vr(vId,4)}, v{vIa}, {WS}, s{sIa} offen sc1", "st")
    assert not DQ
    stamp()
    for ft in range(3):
        a(f"v_mfma_f32_32x32x16_bf16 {vr(ACC1+16*ft,16)}, {vr(CSF+4*ft,4)}, {vr(vNeg,4)}, {vr(ACC1+16*ft,16)}")
    E1, OB = 208, 224
    def tr_w2(step, tag):
        base = STASH + 8 * (step % 12)
        for j in range(2):
            for e in range(2):
                rg, off = LOC[ploc(2 * step + e)]
                a(f"ds_read_b64_tr_b16 {vr(base+4*j+2*e,2)}, v{vW2r+(0 if rg=='A' else 2)+j} offset:{off}", tag)
    if not GP: pn[0] = 24
    for _ in range(3):
        if pn[0] < 24: p_next()
    GB = int(OPT.get("gb", 0))
    B9, B10 = int(OPT.get("b9", 1)), int(OPT.get("b10", 6))
    for ft in range(3):
        for j in range(2):
            A0 = ACC1 + 16 * ft + 8 * j
            T0 = E1 + 8 * j
            for k in range(8): a(f"v_mul_f32 v{A0+k}, v{vC2}, v{A0+k}")
            for k in range(8): a(f"v_exp_f32_e64 v{T0+k}, -v{A0+k}")
            if pn[0] < 24: p_next()
            for k in range(8): a(f"v_fma_f32 v{T0+k}, v{T0+k}, s{sL2e}, s{sL2e}")
            for k in range(8): a(f"v_rcp_f32 v{T0+k}, v{T0+k}")
            if pn[0] < 24: p_next()
            for k in range(8): a(f"v_mul_f32 v{A0+k}, v{A0+k}, v{T0+k}")
            for k in range(0, 8, 2): a(f"v_cvt_pk_bf16_f32 v{OB+8*ft+4*j+k//2}, v{A0+k}, v{A0+k+1}")
            a(f"buffer_store_dwordx4 {vr(OB+8*ft+4*j,4)}, v{vL16}, {HS}, s{sHS if ft < 2 else sHS2} offen offset:{1024*((2*ft+j)&3)} {OPT.get('hnt', 'nt') if str(2*ft+j) in OPT.get('hn', '012345') else ''}", "hs")
            if GP and 2 * ft + j == GB: a("s_barrier")
    stamp()
    if IP: a("s_mov_b64 s[4:5], s[98:99]")
    vH, vF, vXg, vO, vY, vXl, vR, vP, vYl = 2, 4, 5, 6, 7, 8, 13, 10, 9
    a(f"""
    s_lshl_b32 s{sT}, s{sW}, 3
    s_lshr_b32 s{sT2}, 0x160e0600, s{sT}
    s_and_b32 s{sT2}, s{sT2}, 0xff
    s_lshr_b32 s{sT}, 0x1d150f07, s{sT}
    s_and_b32 s{sT}, s{sT}, 0xff
    v_max_u32 v{vF}, s{sT2}, v{vL}
    v_min_u32 v{vF}, s{sT}, v{vF}
    v_lshlrev_b32 v{vF}, 3, v{vF}
    s_and_b32 s{sT}, s{sW}, 1
    s_mul_i32 s{sT2}, s{sT}, {HROW}
    v_add_u32 v{vH}, s{sT2}, v{vL16}
    s_sub_u32 s{sT2}, {HROW}, s{sT2}
    v_add_u32 v{vH+1}, s{sT2}, v{vL16}
    s_mov_b32 s{sCnt}, 0
    s_lshr_b32 s{sXn}, s{sCG}, 2
    s_mul_i32 s{sXn}, s{sXn}, {HROW}
    s_and_b32 s{sT2}, s{sCG}, 3
    s_mulk_i32 s{sT2}, 5632
    s_add_u32 s{sXn}, s{sXn}, s{sT2}
    s_add_u32 s{sXn}, s{sXn}, s{sHL}
    s_movk_i32 s{sC}, 144
    v_min_u32 v{vSw}, 47, v{vL}
    v_lshlrev_b32 v{vSw}, 7, v{vSw}
    v_min_u32 v12, 43, v{vL}
    v_lshlrev_b32 v12, 7, v12
    """)
    a(f"s_cmp_lg_u32 s{sFar}, 0\ns_cbranch_scc1 G_far")
    a.wait(vm="hs")
    stamp()
    a(f"s_mov_b64 exec, 1\nbuffer_store_dwordx2 {vr(vNon,2)}, off, {WS}, s{sFl}\nG_pub:\ns_mov_b64 exec, -1")
    if "pt" in OPT:
        a(f"buffer_load_dword v{vT3}, v{vSw}, {HS}, s{sHS} offen {OPT['pt'].replace('1', '') if OPT['pt'] != 'sc1' else 'sc1'}", "pt")
    a(f"s_lshl_b32 s{sRet}, s{sRT}, 8\ns_add_u32 s{sRet}, s{sRet}, {FH}")
    if not GP: a("s_barrier")
    assert pn[0] == 24 and not any(str(t).startswith("P") for t in a.vm)
    PK_ = int(OPT.get("pk", 11))
    order = list(range(2, 12)) + [0, 1]
    for n_, k in enumerate(order):
        if n_ == PK_: a(f"buffer_load_dwordx2 {vr(vP,2)}, v{vF}, {WS}, s{sRet} offen sc1", "poll")
        tr_w2(k, f"S{k}")
    def p2():
        a.wait(lg=f"S{ploc(pn[0])//2}")
        p_next()
    for _ in range(int(OPT.get("np0", 12))): p2()
    stamp()
    a.wait(vm="poll")
    a(f"G_hchk:\nv_cmp_ne_u64 vcc, {sr(sTag,2)}, {vr(vP,2)}\ns_add_u32 s{sCnt}, s{sCnt}, 1\ns_cbranch_vccnz G_hslow\nG_hok:")
    stamp()
    if STAMPS: a(f"s_lshl_b32 s{sCnt}, s{sCnt}, 16\ns_add_u32 s97, s97, s{sCnt}")
    HS_ = [(i, 1) for i in range(12)] + [(i, j) for i in range(12, 22) for j in (1, 0)] + [(i, 0) for i in range(12)]
    HR, WR = int(OPT.get("hr", 10)), 232
    grp = [None]
    def h_load(n):
        i, j = HS_[n]
        if i // 4 != grp[0]:
            grp[0] = i // 4; a(f"s_add_u32 s{sTx}, s{sHL}, {4096*(i//4)}")
        a(f"buffer_load_dwordx4 {vr(HB+4*(n%HR),4)}, v{vH+j}, {HS}, s{sTx} offen offset:{1024*(i%4)} {OPT.get('hlf', 'sc1').replace('_', ' ')}", f"h{n}")
    HT = int(OPT.get("ht", 0))
    for n in range(HR - 1):
        if n == HT: a(f"buffer_load_dword v12, v12, {HS}, s{sXn} offen sc1", "ht")
        if n == int(OPT.get("hp", 0)):
            for _ in range(int(OPT.get("np1", 99))):
                if pn[0] < 44: p2()
        h_load(n)
    a(f"""
    s_lshl1_add_u32 s{sT2}, s{sRT}, s{sT}
    s_lshr_b32 s{sT}, s{sW}, 1
    s_lshl1_add_u32 s{sCnt}, s{sCG}, s{sT}    ; own 32-column block
    s_lshl_b32 s{sO}, s{sT2}, 15
    s_lshl_b32 s{sT}, s{sCnt}, 6
    s_add_u32 s{sO}, s{sO}, s{sT}
    s_add_u32 s{sHS}, s{sT2}, 8
    s_bfe_u32 s{sHS}, s{sHS}, 0x10004
    s_lshl_b32 s{sT}, s{sCnt}, 6
    s_add_u32 s{sHS}, s{sHS}, s{sT}
    s_lshl_b32 s{sHS}, s{sHS}, 7
    s_add_u32 s{sHS}, s{sHS}, {FY}
    s_mul_i32 s{sY}, s{sCnt}, {32*GC}
    s_lshl_b32 s{sT}, s{sT2}, 6
    s_add_u32 s{sY}, s{sY}, s{sT}
    s_add_u32 s{sY}, s{sY}, {Y2}
    v_and_b32 v{vT}, 31, v{vL}
    v_lshrrev_b32 v{vT2}, 5, v{vL}
    v_lshlrev_b32 v{vO}, 10, v{vT}
    v_lshl_add_u32 v{vO}, v{vT2}, 4, v{vO}
    v_lshl_add_u32 v{vXl}, v{vT}, 6, s{sLA}
    v_lshl_add_u32 v{vXl}, v{vT2}, 4, v{vXl}
    v_lshlrev_b32 v{vYl}, 3, v{vT2}
    v_sub_u32 v{vF}, v{vT}, v{vYl}
    v_bfe_u32 v{vT}, v{vL}, 2, 2
    v_add_u32 v{vYl}, v{vYl}, v{vT}
    v_lshl_add_u32 v{vYl}, v{vYl}, 6, s{sLA}
    v_bfe_u32 v{vT}, v{vL}, 4, 1
    v_lshl_add_u32 v{vYl}, v{vT}, 5, v{vYl}
    v_and_b32 v{vT}, 3, v{vL}
    v_lshl_add_u32 v{vYl}, v{vT}, 3, v{vYl}
    v_lshrrev_b32 v{vY}, 2, v{vL}
    v_mul_u32_u24 v{vY}, {GC}, v{vY}
    v_lshl_add_u32 v{vY}, v{vT}, 4, v{vY}
    v_lshrrev_b32 v{vXg}, 2, v{vL}
    v_lshlrev_b32 v{vXg}, 10, v{vXg}
    v_and_b32 v{vT}, 3, v{vL}
    v_lshl_add_u32 v{vXg}, v{vT}, 4, v{vXg}
    v_add_u32 v{vR}, s{sLB}, v{vL16}
    """)
    for k in range(1, 4):
        a(f"s_xor_b32 s{sT}, s{sW}, {k}\ns_mulk_i32 s{sT}, 3072\ns_add_u32 s{sT}, s{sT}, {LB0}\nv_add_u32 v{vR+k}, s{sT}, v{vL16}")
    YO = 32768
    YT, YF, XFr, IDN = 232, 240, 248, 24
    XR = 24
    if "touch" in OPT:
        a(f"v_and_b32 v{vT}, 31, v{vL}\nv_mul_u32_u24 v{vT}, {GC}, v{vT}")
        a(f"buffer_load_dword v12, v{vT}, {WS}, s{sY} offen sc1", "yt")
    a(f"v_and_b32 v{vT}, 1, v{vF}\nv_lshlrev_b32 v{vT}, 4, v{vT}\nv_lshlrev_b32 v{vT}, v{vT}, v{vW2o}" if False else
      f"v_and_b32 v{vT}, 1, v{vF}\nv_lshlrev_b32 v{vT}, 4, v{vT}\nv_mov_b32 v11, 0x3f80\nv_lshlrev_b32 v11, v{vT}, v11\nv_ashrrev_i32 v{vF}, 1, v{vF}")
    for k in range(8):
        a(f"v_cmp_eq_u32 s[{88+2*(k&1)}:{89+2*(k&1)}], {8*(k>>2)+(k&3)}, v{vF}")
        if k: a(f"v_cndmask_b32 v{IDN+k-1}, 0, v11, s[{88+2*((k-1)&1)}:{89+2*((k-1)&1)}]")
    a(f"v_cndmask_b32 v{IDN+7}, 0, v11, s[90:91]")
    def y_poll(emit): emit(f"buffer_load_dwordx2 {vr(vP,2)}, v12, {WS}, s{sHS} offen sc1")
    def y_loads(emit):
        emit(f"s_add_u32 m0, s{sLA}, {YO}")
        for k in range(2):
            emit(f"s_add_u32 s{sT2}, s{sY}, {16*k*GC-1024*k}")
            emit(f"buffer_load_dwordx4 v{vY}, {WS}, s{sT2} offen offset:{1024*k} sc1 lds")
    def y_reads(emit):
        for k in range(4): emit(f"ds_read_b64_tr_b16 {vr(YF+2*k,2)}, v{vYl} offset:{YO+1024*(k>>1)+256*(k&1)}")
    YP = int(OPT.get("yp", 30))
    wreg = lambda i: STASH + 8 * i if i < 12 else WR + 8 * (i % 3)
    def w_reads(i, half):
        j = half
        assert pn[0] > 2 * i + 1
        a.wait(vm=f"P{2*i+1}")
        for e in range(2):
            rg, off = LOC[ploc(2 * i + e)]
            a(f"ds_read_b64_tr_b16 {vr(wreg(i)+4*j+2*e,2)}, v{vW2r+(0 if rg=='A' else 2)+j} offset:{off}", f"r{i}")
    started = set()
    def mm(n, jd):
        i, j = HS_[n]; k = 2 * jd + j
        ac = ACC2 + 16 * k
        a(f"v_mfma_f32_32x32x16_bf16 {vr(ac,16)}, {vr(wreg(i)+4*jd,4)}, {vr(HB+4*(n%HR),4)}, {vr(ac,16) if k in started else '0'}")
        started.add(k)
    roff = lambda k, q: (((k - 1) * 4 + q) // 3) * 12288 + (((k - 1) * 4 + q) % 3) * 1024
    def r_write(k, q): a(f"ds_write_b128 v{vR}, {vr(ACC2+16*k+4*q,4)} offset:{roff(k,q)}", "rw")
    def r_read(k, q): a(f"ds_read_b128 {vr(ACC2+16*k+4*q,4)}, v{vR+k} offset:{roff(k,q)}", f"rr{k}")
    YS = int(OPT.get("ys", 37))
    NT = 4
    PR_ = int(OPT.get('pr', 1))
    side = []
    def run_side(c):
        for _ in range(c):
            if side:
                t = side.pop(0)
                if callable(t): t()
                else: a(t)
    for n in range(44 - NT):
        i, j = HS_[n]
        a.wait(vm=f"h{n}", lg=(f"r{i}" if i >= 12 else 0 if n == 0 else None))
        if n == 0 or ("g2" in OPT and n in (12, 24, 32, 36)): stamp(True)
        for jd in range(2):
            mm(n, jd)
            if jd == 0 and n + HR - 1 < 44: h_load(n + HR - 1)
            if pn[0] < 44 and (jd == 1 or n % PR_ == 0): p2()
            if n in (8, 10): w_reads(12 + (n - 8) // 2, jd)
            if 12 <= n < 28 and j == 1: w_reads(i + 2, jd)
            if jd == 1 and n == 5: a(f"v_and_b32 v12, 31, v{vL}\nv_lshlrev_b32 v12, 8, v12")
            if jd == 1 and n == YP: y_poll(lambda t: a(t, "yf"))
            if jd == 1 and n == YS:
                a.wait(vm="yf")
                a(f"v_cmp_ne_u64 s[94:95], {sr(sTag,2)}, {vr(vP,2)}")
                y_loads(lambda t: a(t, "yr"))
            if jd == 1 and n == 30:
                a(f"s_mov_b32 m0, s{sLA}\ns_add_u32 s{sT2}, s{sO}, {16384-1024}")
                a(f"buffer_load_dwordx4 v{vXg}, {X}, s{sO} offen lds", "xr")
                a(f"buffer_load_dwordx4 v{vXg}, {X}, s{sT2} offen offset:1024 lds", "xr")
            g = 2 * (n - 32) + jd
            if 0 <= g < 12 and g % 3 != 2:
                w = g - g // 3; r_write(1 if w < 4 else 3, w & 3)
            if g == 8 and "ol" in OPT:
                a(f"""
                s_and_b32 s{sT}, s{sW}, 1
                s_mulk_i32 s{sT}, {32*144}
                s_lshr_b32 s{sT2}, s{sW}, 1
                s_lshl_b32 s{sT2}, s{sT2}, 6
                s_add_u32 s{sT}, s{sT}, s{sT2}
                s_add_u32 s{sT}, s{sT}, 98304
                v_and_b32 v{vT}, 31, v{vL}
                v_mul_u32_u24 v{vH}, 144, v{vT}
                """)
            if g == 11 and "ol" in OPT:
                a(f"""
                v_lshrrev_b32 v{vT}, 5, v{vL}
                v_lshl_add_u32 v{vH}, v{vT}, 4, v{vH}
                v_add_u32 v{vH}, s{sT}, v{vH}
                v_lshrrev_b32 v{vT}, 3, v{vL}
                v_and_b32 v{vF}, 7, v{vL}
                v_lshlrev_b32 v{vF}, 4, v{vF}
                v_mad_u32_u24 v{vH+1}, v{vT}, s{sC}, v{vF}
                v_lshl_add_u32 v{vF}, v{vT}, 10, v{vF}
                """)
            if g == 13 and "ol" in OPT:
                a(f"""
                s_mul_i32 s{sT}, s{sW}, {16*144}
                s_add_u32 s{sT}, s{sT}, 98304
                v_add_u32 v{vH+1}, s{sT}, v{vH+1}
                s_lshl2_add_u32 s{sXB}, s{sRT}, s{sW}
                s_lshl_b32 s{sXB}, s{sXB}, 14
                s_lshl_b32 s{sT}, s{sCG}, 7
                s_add_u32 s{sXB}, s{sXB}, s{sT}
                s_add_u32 s{sXB+1}, s{sXB}, 8192
                """)
            if g == 12:
                a.wait(vm="xr")
                for q in range(2): a(f"ds_read_b128 {vr(XFr+4*q,4)}, v{vXl} offset:{32*q}", "xl")
            if g == 14:
                a.wait(lg="rw")
                a("s_barrier")
                for q in range(4): r_read(1, q)
            if g == 15:
                for q in range(4): r_read(3, q)
    if "ts" in OPT: stamp()
    side = [lambda: a.wait(lg="rr3")] + [f"v_add_f32 v{ACC2+16+q}, v{ACC2+16+q}, v{ACC2+48+q}" for q in range(16)]
    for q, n in enumerate(range(44 - NT, 44)):
        a.wait(vm=f"h{n}")
        mm(n, 1)
        if q >= 2: run_side(6)
    tail = [lambda n=n: mm(n, 0) for n in range(44 - NT, 44)]
    for src in (XFr, YF):
        for q in range(2):
            tail.append(lambda src=src, q=q: a(f"v_mfma_f32_32x32x16_bf16 {vr(ACC2,16)}, {vr(IDN+4*q,4)}, {vr(src+4*q,4)}, {vr(ACC2,16)}"))
    for q, t in enumerate(tail):
        t()
        if q == 0: run_side(99)
        if 1 <= q <= 4: r_write(2, q - 1)
        if q == 4:
            a(f"s_cmp_lg_u64 s[94:95], 0\ns_cbranch_scc1 G_yslow\nG_yok:")
            a.wait(vm="yr")
            y_reads(lambda t: a(t, "yl"))
        if q == 5:
            a.wait(lg="rw")
            a("s_barrier")
            for q2 in range(4): r_read(2, q2)
            a.wait(lg="yl")
    stamp()
    a.wait(lg="rr2")
    for q in range(16): a(f"v_add_f32 v{ACC2+16+q}, v{ACC2+16+q}, v{ACC2+32+q}")
    for k in range(8):
        a(f"v_pk_add_f32 {vr(ACC2+2*k,2)}, {vr(ACC2+2*k,2)}, {vr(ACC2+16+2*k,2)}")
    for k in range(8):
        a(f"v_cvt_pk_bf16_f32 v{XR+k}, v{ACC2+2*k}, v{ACC2+2*k+1}")
    if "ol" not in OPT:
        for q in range(2):
            a(f"v_permlane32_swap_b32 v{XR+4*q}, v{XR+4*q+2}\nv_permlane32_swap_b32 v{XR+4*q+1}, v{XR+4*q+3}")
            a(f"buffer_store_dwordx4 {vr(XR+4*q,4)}, v{vO}, {OUT}, s{sO} offen offset:{32*q} {OPT.get('osf', '').replace('_', ' ')}")
    else:
        for q in range(2):
            a(f"v_permlane32_swap_b32 v{XR+4*q}, v{XR+4*q+2}\nv_permlane32_swap_b32 v{XR+4*q+1}, v{XR+4*q+3}")
            a(f"ds_write_b128 v{vH}, {vr(XR+4*q,4)} offset:{32*q}")
        a("s_waitcnt lgkmcnt(0)\ns_barrier")
        for q in range(2): a(f"ds_read_b128 {vr(ACC2+4*q,4)}, v{vH+1} offset:{8*144*q}", f"o{q}")
        for q in range(2):
            a.wait(lg=f"o{q}")
            a(f"buffer_store_dwordx4 {vr(ACC2+4*q,4)}, v{vF}, {OUT}, s{sXB+q} offen {OPT['ol'].replace('_', ' ').replace('1', '') if OPT['ol'] != 'sc1' else 'sc1'}")
    stamp()
    if STAMPS:
        a("s_waitcnt vmcnt(0)"); stamp()
    if "padev" in OPT:
        a(f"G_pad2:\ns_memrealtime s[98:99]\ns_waitcnt lgkmcnt(0)\ns_sub_u32 s96, s98, s86\ns_cmp_lt_u32 s96, 3000\ns_cbranch_scc1 G_pad2")
    if "padto" in OPT:
        a(f"G_pad:\ns_memrealtime s[98:99]\ns_waitcnt lgkmcnt(0)\ns_sub_u32 s96, s98, s{sTag}\ns_cmp_lt_u32 s96, {OPT['padto']}\ns_cbranch_scc1 G_pad")
    if "dbg" in OPT:
        n = nstamp[0]
        a(f"s_memrealtime s[98:99]\ns_waitcnt lgkmcnt(0)\ns_lshl2_add_u32 s96, s2, s{sW}\ns_cmp_lg_u32 s96, {4*int(OPT['dbg'])}\ns_cbranch_scc1 G_nodbg\ns_mov_b64 exec, 1")
        for i in range(1, n):
            a(f"s_sub_u32 s96, s{60+2*i}, s60\nv_mov_b32 v{vT}, s96\nbuffer_store_dword v{vT}, off, {DBG}, 0 offset:{4+4*i}")
        a(f"s_sub_u32 s96, s98, s{sTag}\nv_mov_b32 v{vT}, s96\nbuffer_store_dword v{vT}, off, {DBG}, 0 offset:60")
        a("G_nodbg:")
    stamp_flush(WS, f"s{sW}", vT, 256)
    a("s_endpgm")
    tag_slow("G", sTag, 24, [64, 192], vNon, sCnt)
    a.raw(f"""G_stslow:
{retry_mark(4)}  s_add_u32 s{sCnt}, s{sCnt}, 1
  s_cmp_ge_u32 s{sCnt}, {SPIN}
  s_cbranch_scc1 G_stok
  buffer_load_dwordx4 {vr(vSt,4)}, v{vSa}, {WS}, s{sO} offen sc1
  buffer_load_dwordx4 {vr(vId,4)}, v{vIa}, {WS}, s{sIa} offen sc1
  s_waitcnt vmcnt(0)
  s_branch G_stchk
G_hslow:
  s_cmp_ge_u32 s{sCnt}, {SPIN}
  s_cbranch_scc1 G_hok
  buffer_load_dwordx2 {vr(vP,2)}, v{vF}, {WS}, s{sRet} offen sc1
  s_waitcnt vmcnt(0)
  s_branch G_hchk
G_yslow:
  s_mov_b32 s{sCnt}, 0
G_yloop:
{retry_mark(8)}  buffer_load_dwordx2 {vr(vP,2)}, v12, {WS}, s{sHS} offen sc1
  s_add_u32 s{sCnt}, s{sCnt}, 1
  s_waitcnt vmcnt(0)
  v_cmp_ne_u64 vcc, {sr(sTag,2)}, {vr(vP,2)}
  s_cmp_lt_u32 s{sCnt}, {1 if "nossm" in OPT else SPIN}
  s_cselect_b64 vcc, vcc, 0
  s_cbranch_vccnz G_yloop""")
    y_loads(lambda t: a.raw("  " + t))
    a.raw("  s_waitcnt vmcnt(0)\n  s_branch G_yok")
    a.hist = []
    a("G_far:\ns_waitcnt vmcnt(0)")
    for k in range(6):
        a(f"buffer_store_dwordx4 {vr(OB+4*k,4)}, v{vL16}, {HS}, s{sHS if k < 4 else sHS2} offen offset:{1024*(k&3)} sc1")
    a(f"s_waitcnt vmcnt(0)\ns_mov_b64 exec, 1\nbuffer_store_dwordx2 {vr(vNon,2)}, off, {WS}, s{sFl} sc1\ns_branch G_pub")
    a.vm = []; a.lg = []

def ssm_role():
    DBG, WS = "s[8:11]", "s[12:15]"
    sQ, sW, sE, sPar, sT, sT2, sCnt, sB1, sMask = 3, 32, 5, 6, 7, 34, 35, 40, 41
    sLdt, sD, sTag, sU, sXcc = 42, 43, 36, 38, 4
    sMean, sNeg = 44, 48
    vL, LX, LF, vC, LG = 1, 2, 10, 30, 26
    vPar = 44
    vT, vT2, vT3, vT4 = 54, 55, 56, 57
    vNon, vL16, vTab = 52, 60, 61
    SB = 98304
    CB0, UB0, USZ, K0A, FLG, TAB, TSZ, SROW = SB, SB + 33280, 4576, SB + 42432, SB + 42448, SB + 49152, 4096, 1056
    a.hist = []; a.vm = []; a.lg = []
    a(f"""
    s_load_dwordx16 s[16:31], s[0:1], 0
    s_load_dwordx2 s[8:9], s[0:1], 104
    s_load_dwordx2 s[52:53], s[0:1], 64
    s_load_dwordx2 s[92:93], s[0:1], 88
    s_load_dwordx2 s[88:89], s[0:1], 80
    s_load_dwordx2 s[12:13], s[0:1], 112
    s_memrealtime {sr(sTag,2)}
    s_setprio 3
    s_sub_u32 s{sW}, s{sW}, 4
    v_and_b32 v{vL}, 63, v0
    v_and_b32 v{vT}, 255, v0
    s_lshl_b32 s{sT}, s{sQ}, 9
    v_lshl_add_u32 v{vT3}, v{vT}, 1, s{sT}
    s_lshl2_add_u32 s{sT2}, s{sQ}, s{sW}
    s_lshl_b32 s{sT2}, s{sT2}, 11
    v_lshlrev_b32 v{vL16}, 4, v{vL}
    v_lshl_add_u32 v{vT4}, v{vL}, 6, s{sT2}
    s_lshl_b32 s{sT}, s{sQ}, 2
    """)
    srd(8, 256)
    a("s_waitcnt lgkmcnt(0)")
    if STAMPS: a(f"s_mov_b32 s100, s{sTag}\ns_mov_b32 s97, 0")
    stamp()
    a(f"""
    s_or_b32 s{sTag}, s{sTag}, 1
    v_mov_b32 v{vNon}, s{sTag}
    v_mov_b32 v{vNon+1}, s{sTag+1}
    buffer_store_dwordx2 {vr(vNon,2)}, v{vT4}, {DBG}, 0 offen sc1
    """)
    for k in range(6):
        a(f"global_load_ushort v{vPar+k}, v{vT3}, s[{18+2*k}:{19+2*k}]", "par")
    a(f"s_load_dword s{sLdt}, s[30:31], s{sT}\ns_load_dword s{sD}, s[52:53], s{sT}\ns_setprio 0\ns_branch L_ssm")
    keep = (list(a.vm), nstamp[0])
    yield
    a.hist = []; a.lg = []; a.vm = keep[0]; nstamp[0] = keep[1]
    X, W1 = "s[16:19]", "s[88:91]"
    vXo, vWo = 2, 6
    sLA, sLB, sXB, sWB, sC, sCx, sTx, sTw = 20, 21, 22, 23, 24, 25, 26, 27
    srd(16, 2048 * 1024); srd(88, 512 * 2752)
    a(f"""
    v_lshrrev_b32 v{vT}, 3, v{vL}
    v_lshlrev_b32 v{vT}, 10, v{vT}
    v_lshrrev_b32 v{vT2}, 4, v{vL}
    v_xor_b32 v{vT2}, v{vT2}, v{vL}
    v_and_b32 v{vT2}, 7, v{vT2}
    v_lshl_add_u32 v{vXo}, v{vT2}, 4, v{vT}
    v_xor_b32 v{vXo+1}, 64, v{vXo}
    v_add_u32 v{vXo+2}, {2*7168}, v{vXo}
    v_add_u32 v{vXo+3}, {3*7168}, v{vXo+1}
    v_add_u32 v{vXo+1}, 7168, v{vXo+1}
    s_movk_i32 s{sTx}, 5462
    s_movk_i32 s{sTw}, {2752-192}
    v_mul_u32_u24 v{vT}, s{sTx}, v{vL}
    """)
    for j in range(3):
        if j: a(f"v_add_u32 v{vT}, {64*5462}, v{vT}")
        a(f"v_lshrrev_b32 v{vT2}, 16, v{vT}\nv_mad_u32_u24 v{vWo+j}, v{vT2}, s{sTw}, v{vL16}")
    a(f"""
    s_lshr_b32 s{sXB}, s{sQ}, 4
    s_lshl2_add_u32 s{sXB}, s{sXB}, s{sW}
    s_lshl_b32 s{sXB}, s{sXB}, 15
    s_and_b32 s{sC}, s{sQ}, 15
    s_mul_i32 s{sWB}, s{sC}, 192
    s_mul_i32 s{sTx}, s{sW}, {16*2752}
    s_add_u32 s{sWB}, s{sWB}, s{sTx}
    s_bfe_u32 s{sLA}, s{sQ}, 0x10004
    s_mul_i32 s{sLB}, s{sLA}, 1344
    s_add_u32 s{sLB}, s{sLB}, s{sTx}
    s_mul_i32 s{sCx}, s{sW}, 11
    s_add_u32 s{sCx}, s{sCx}, s{sLA}
    s_lshl_b32 s{sCx}, s{sCx}, 15
    s_cmp_eq_u32 s{sC}, 15
    s_cselect_b32 s{sXB}, {"s%d" % sCx if int(OPT.get('ip', 1)) else 0x40000000}, s{sXB}
    s_cselect_b32 s{sWB}, {"s%d" % sLB if int(OPT.get('ip', 1)) > 1 else 0x40000000}, s{sWB}
    s_cselect_b64 s[16:17], s[92:93], s[16:17]
    s_cselect_b64 s[88:89], s[92:93], s[88:89]
    s_add_u32 s{sCx}, s{sQ}, 1
    s_and_b32 s{sCx}, s{sCx}, 7
    s_add_u32 s{sC}, s{sQ}, 2
    s_and_b32 s{sC}, s{sC}, 7
    s_lshl_b32 s{sLA}, s{sW}, 12
    s_mul_i32 s{sLB}, s{sW}, 3072
    s_add_u32 s{sLB}, s{sLB}, 49152
    """)
    def w_ops(c):
        ops = []
        for j in range(3):
            def f(j=j):
                if j == 0:
                    a(f"s_mul_i32 s{sTw}, s{sC}, {64*2752}\ns_add_u32 m0, s{sLB}, {(c&3)*12288}\ns_add_u32 s{sTw}, s{sTw}, s{sWB}")
                a(f"buffer_load_dwordx4 v{vWo+j}, {W1}, s{sTw} offen offset:{j*1024} lds", f"C{c}")
                if j == 0: a(f"s_add_u32 s{sC}, s{sC}, 1\ns_and_b32 s{sC}, s{sC}, 7")
            ops.append(f)
        return ops
    def x_ops(c):
        ops = []
        for pc in range(4):
            def f(pc=pc):
                if pc == 0:
                    a(f"s_lshl_b32 s{sTx}, s{sCx}, 7\ns_add_u32 m0, s{sLA}, {(c%3)*16384}\ns_add_u32 s{sTx}, s{sTx}, s{sXB}")
                a(f"buffer_load_dwordx4 v{vXo+pc}, {X}, s{sTx} offen offset:{pc*1024} lds", f"C{c}")
                if pc == 0: a(f"s_add_u32 s{sCx}, s{sCx}, 1\ns_and_b32 s{sCx}, s{sCx}, 7")
            ops.append(f)
        return ops
    DQ = x_ops(1) + w_ops(2) + x_ops(2) + w_ops(3)
    def dma(n=1):
        for _ in range(n):
            if DQ: DQ.pop(0)()
    dma(int(OPT.get("n0", 0)))
    srd(12, WS_SIZE)
    vOA, vOG, vPb = 50, 51, 59
    a(f"""
    s_lshr_b32 s{sE}, s{sW}, 1
    s_and_b32 s{sPar}, s{sW}, 1
    s_mov_b32 s{sMask}, 0xffff0000
    s_mul_i32 s{sT2}, s{sE}, {USZ}
    s_add_u32 s{sT2}, s{sT2}, {UB0}
    v_lshl_add_u32 v{vT}, v{vL}, 3, s{sT2}
    v_mov_b32 v{vT3}, 0
    v_mov_b32 v{vT4}, 0
    ds_write_b64 v{vT}, {vr(vT3,2)}
    s_lshl2_add_u32 s{sT2}, s{sW}, {FLG}
    v_mov_b32 v58, s{sT2}
    ds_write_b32 v58, v{vT3}
    ds_write_b32 v58, v{vT3} offset:16
    s_lshl_b32 s{sT2}, s{sW}, 12
    s_add_u32 s{sT2}, s{sT2}, {TAB}
    v_add_u32 v{vTab}, s{sT2}, v{vL16}
    v_lshrrev_b32 v{vT}, 4, v{vL}
    v_lshl_add_u32 v{vPb}, v{vT}, 6, s{sT2}
    v_and_b32 v{vT}, 15, v{vL}
    v_lshlrev_b32 v{vOG}, 3, v{vT}
    v_lshlrev_b32 v{vT2}, 2, v{vT}
    v_add_u32 v{vT2}, {512-36}, v{vT2}
    v_cmp_lt_u32 vcc, 8, v{vT}
    v_add_u32 v{vT3}, {1024-96}, v{vOG}
    v_add_u32 v{vT4}, {1536-112}, v{vOG}
    v_cndmask_b32 v{vOA}, v{vT}, v{vT2}, vcc
    v_cmp_lt_u32 vcc, 11, v{vT}
    v_cmp_lt_u32 s[56:57], 13, v{vT}
    v_cvt_f32_u32 v{vOG}, v{vOG}
    v_cndmask_b32 v{vOA}, v{vOA}, v{vT3}, vcc
    v_cndmask_b32 v{vOA}, v{vOA}, v{vT4}, s[56:57]
    v_cvt_f32_u32 v{vOA}, v{vOA}
    """)
    def k_mfma(s_):
        F = 152 + 16 * (s_ & 1)
        for hh in range(2):
            for gt in range(2):
                d = 200 + 8 * hh + 4 * gt
                a(f"v_mfma_f32_16x16x32_bf16 {vr(d,4)}, {vr(F+4*hh,4)}, {vr(F+8+4*gt,4)}, {'0' if s_ == 0 else vr(d,4)}")
    UG = int(OPT.get("ug", 7))
    SP = OPT.get("sprio", 0)
    vUg, vUw, vU, sG = 30, 31, 232, 54
    def u_addr():
        a(f"""
        v_lshrrev_b32 v{vT3}, 2, v{vL}
        v_bfe_u32 v{vT4}, v{vL}, 1, 1
        v_and_b32 v{vT2}, 1, v{vL}
        v_mul_u32_u24 v{vUg}, {GS}, v{vT3}
        v_lshl_add_u32 v{vUg}, v{vT4}, 6, v{vUg}
        v_lshl_add_u32 v{vUg}, v{vT2}, 4, v{vUg}
        v_mul_u32_u24 v{vUw}, {USZ}, v{vT2}
        v_lshl_add_u32 v{vUw}, v{vT3}, 4, v{vUw}
        v_lshl_add_u32 v{vUw}, v{vT4}, 3, v{vUw}
        s_lshl_b32 s{sT}, s{sW}, 10
        s_add_u32 s{sT}, s{sT}, {UB0+480}
        v_add_u32 v{vUw}, s{sT}, v{vUw}
        s_mul_i32 s{sG}, s{sW}, {64*GS}
        s_lshr_b32 s{sT}, s{sQ}, 1
        s_lshl_b32 s{sT}, s{sT}, 7
        s_add_u32 s{sG}, s{sG}, s{sT}
        s_and_b32 s{sT}, s{sQ}, 1
        s_lshl_b32 s{sT}, s{sT}, 5
        s_add_u32 s{sG}, s{sG}, s{sT}
        s_add_u32 s{sG}, s{sG}, {XNP}
        """)
    def u_loads(emit, ks=range(4)):
        emit("s_setprio 3")
        for k in ks:
            emit(f"s_add_u32 s{sG+1}, s{sG}, {k*16*GS}")
            emit(f"buffer_load_dwordx4 {vr(vU+4*k,4)}, v{vUg}, {WS}, s{sG+1} offen sc1 {OPT.get('uf', '')}")
        emit(f"s_setprio {SP}")
    W2 = "s[92:95]"
    vW2o, vTp, sW2, sTp = 62, 63, 28, 29
    vXw, vXr_, vK, vZ, vAa, vBa, vUa, vBp, vPr, vK0, vCb = 32, 33, 34, 35, 36, 37, 38, 39, 40, 41, 42
    def late_addr():
        u_addr()
        srd(92, 1376 * 1024)
        a(f"""
        v_lshrrev_b32 v{vT}, 3, v{vL}
        v_lshlrev_b32 v{vT}, 10, v{vT}
        v_bfe_u32 v{vT2}, v{vL}, 4, 1
        v_lshlrev_b32 v{vT3}, 2, v{vT2}
        v_xor_b32 v{vT3}, v{vT3}, v{vL}
        v_and_b32 v{vT3}, 7, v{vT3}
        v_lshl_add_u32 v{vW2o}, v{vT3}, 4, v{vT}
        v_min_u32 v{vTp}, 47, v{vL}
        v_lshlrev_b32 v{vTp}, 7, v{vTp}
        s_mul_i32 s{sW2}, s{sW}, {352*1024}
        s_and_b32 s{sTp}, s{sQ}, 31
        s_mul_i32 s30, s{sTp}, 5120
        s_mulk_i32 s{sTp}, 6144
        s_add_u32 s{sTp}, s{sTp}, s{sW2}
        s_add_u32 s30, s30, s{sW2}
        s_add_u32 s30, s30, {192*1024}
        s_bfe_u32 s{sT}, s{sQ}, 0x30001
        s_lshl_b32 s{sT}, s{sT}, 7
        s_add_u32 s{sW2}, s{sW2}, s{sT}
        """)
        a(f"""
        v_lshrrev_b32 v{vT2}, 4, v{vL}
        v_and_b32 v{vT3}, 15, v{vL}
        s_lshl_b32 s{sT2}, s{sW}, 12
        s_add_u32 s{sT2}, s{sT2}, {TAB}
        v_lshl_add_u32 v{vXw}, v{vT3}, 4, s{sT2}
        v_lshl_add_u32 v{vXw}, v{vT2}, 10, v{vXw}
        s_lshl_b32 s{sT}, s{sE}, 13
        s_add_u32 s{sT}, s{sT}, {TAB}
        v_add_u32 v{vXr_}, s{sT}, v{vL16}
        s_xor_b32 s{sT2}, s{sT2}, 4096
        v_add_u32 v{vPr}, s{sT2}, v{vL16}
        v_xor_b32 v27, 4, v58
        s_mul_i32 s{sT}, s{sE}, {USZ}
        s_add_u32 s{sT}, s{sT}, {UB0+256}
        s_lshl_b32 s{sT2}, s{sPar}, 8
        v_lshl_add_u32 v{vBa}, v{vT3}, 5, s{sT}
        v_lshl_add_u32 v{vUa}, v{vT2}, 3, v{vBa}
        v_lshlrev_b32 v{vT3}, 4, v{vT2}
        v_add_u32 v{vBa}, v{vT3}, v{vBa}
        v_subrev_u32 v{vBa}, s{sT2}, v{vBa}
        v_bfe_u32 v{vT2}, v{vL}, 2, 2
        v_sub_u32 v{vT4}, 0, v{vT2}
        v_and_b32 v{vT4}, 3, v{vT4}
        v_mul_u32_u24 v{vAa}, 4160, v{vT4}
        v_min_u32 v{vT2}, 1, v{vT2}
        v_lshlrev_b32 v{vT2}, 3, v{vT2}
        v_sub_u32 v{vAa}, v{vAa}, v{vT2}
        v_sub_u32 v{vAa}, v{vAa}, v{vT3}
        v_and_b32 v{vT2}, 3, v{vL}
        v_lshl_add_u32 v{vAa}, v{vT2}, 3, v{vAa}
        s_mul_i32 s{sT}, s{sE}, 16640
        s_add_u32 s{sT}, s{sT}, {CB0}
        v_mov_b32 v{vCb}, s{sT}
        s_add_u32 s{sT2}, s{sT2}, s{sT}
        s_add_u32 s{sT2}, s{sT2}, {32+32-8}
        v_add_u32 v{vAa}, s{sT2}, v{vAa}
        s_lshl_b32 s{sT2}, s{sPar}, 11
        s_add_u32 s{sT2}, s{sT2}, s{sT}
        s_add_u32 s{sT2}, s{sT2}, 32
        v_add_u32 v{vK}, s{sT2}, v{vL16}
        v_and_b32 v{vT2}, 15, v{vL}
        v_lshl_add_u32 v{vBp}, v{vT2}, 5, s{sT2}
        v_lshrrev_b32 v{vT2}, 4, v{vL}
        v_lshl_add_u32 v{vBp}, v{vT2}, 3, v{vBp}
        v_bfe_u32 v{vZ}, v{vL}, 3, 2
        v_mul_u32_u24 v{vZ}, 4160, v{vZ}
        v_and_b32 v{vT4}, 7, v{vL}
        v_lshl_add_u32 v{vZ}, v{vT4}, 2, v{vZ}
        v_add_u32 v{vZ}, s{sT}, v{vZ}
        s_lshl2_add_u32 s{sT}, s{sE}, {K0A}
        v_mov_b32 v{vK0}, s{sT}
        v_and_b32 v{vT4}, 1, v{vL}
        v_cmp_eq_u32 s[58:59], 1, v{vT4}
        v_cmp_le_u32 s[56:57], 32, v{vL}
        """)
    if "la0" in OPT: late_addr()
    def piece(p):
        rg, off = SHARED['LOC'][p]
        a(f"s_add_u32 m0, s{sLA if rg == 'A' else sLB}, {off}\ns_add_u32 s44, s{sW2}, {8192*p}")
        a(f"buffer_load_dwordx4 v{vW2o}, {W2}, s44 offen lds", "P")
    pn = [0]
    PE = int(OPT.get("pe", 0))
    def pieces(n):
        while pn[0] < n: piece(pn[0]); pn[0] += 1
    def touch(half):
        if half: a(f"v_min_u32 v{vTp}, {39*128}, v{vTp}")
        a(f"buffer_load_dword v29, v{vTp}, {W2}, s{sTp+half} offen", "tp")
    TP0, TP1 = int(OPT.get("tp0", 6)), int(OPT.get("tp1", 8))
    PR, PB, FR, KT, KA = 64, 72, 152, 200, 216
    a("s_waitcnt lgkmcnt(0)")
    a.lg = []
    assert int(OPT.get("nkb", 8)) in (7, 8)
    BP = int(OPT.get("bp", 360))
    NKB = int(OPT.get("nkb", 8))
    a.metro = ([int(OPT.get("bb0", 850)), int(OPT.get("b01", 350))] + [int(OPT.get("bq", 440))] * 3 + [BP] * 3 + [BP // 2, 3 * BP // 4])[:NKB]
    a.cost = 0
    uq = list(range(4))
    def on_bar(left):
        nb = NKB - 1 - left
        if nb in (0, 2, 5): stamp()
        if nb == 0: a(f"s_setprio {SP}")
        if nb == TP0: touch(0)
        if nb == TP1: touch(1)
        if nb >= 6: pieces(min(PE, {6: 4, 7: 11}.get(nb, 15)))
        if nb >= UG:
            for _ in range(int(OPT.get("un", 4))):
                if uq: u_loads(lambda t: a(t, "u"), [uq.pop(0)])
    a.on_bar = on_bar
    def pre_bar(left):
        nb = NKB - 1 - left
        if nb >= int(OPT.get("dfl", 1)): dma(99)
        a.wait(vm=f"C{nb}")
    a.pre_bar = pre_bar
    if 'la0' in OPT: a.on_gap = dma
    a.gap_len = int(OPT.get("dg", 32))
    a(f"""
    s_lshl_b32 s{sT}, s{sLdt}, 16
    s_and_b32 s{sT2}, s{sLdt}, s{sMask}
    s_cmp_eq_u32 s{sE}, 0
    s_cselect_b32 s{sT}, s{sT}, s{sT2}
    v_mov_b32 v{vT}, {LOG2E:#x}
    v_mul_f32 v{vT}, s{sT}, v{vT}
    v_exp_f32 v{vT}, v{vT}
    """)
    a.wait(vm="par")
    stamp()
    for k in range(6): a(f"v_lshlrev_b32 v{vPar+k}, 16, v{vPar+k}")
    TM = 136
    a(f"""
    v_cvt_pk_bf16_f32 v{vT}, v{vT}, v{vT}
    v_lshlrev_b32 v{vT}, 16, v{vT}
    v_mul_f32 v{PR}, v{vPar}, v{vT}
    v_mul_f32 v{PR+1}, v{vPar+1}, v{vT}
    v_mul_f32 v{vPar+2}, v{vPar+2}, v{vT}
    v_mul_f32 v{vPar+3}, v{vPar+3}, v{vT}
    v_mul_f32 v{PR}, {LOG2E:#x}, v{PR}
    v_mul_f32 v{PR+1}, 0.15915494, v{PR+1}
    v_rndne_f32 v{vT}, v{PR+1}
    v_sub_f32 v{PR+1}, v{PR+1}, v{vT}
    """)
    cmul(PR + 2, vPar + 4, vPar + 2)
    for i, l in enumerate((128, 256)):
        a(f"v_mul_f32 v{TM+4*i}, {fl(l)}, v{PR}\nv_mul_f32 v{TM+4*i+1}, {fl(l)}, v{PR+1}")
    for i in range(2): a(f"v_fract_f32 v{TM+4*i+1}, v{TM+4*i+1}\nv_exp_f32 v{TM+4*i}, v{TM+4*i}")
    for i in range(2): a(f"v_cos_f32 v{TM+4*i+2}, v{TM+4*i+1}\nv_sin_f32 v{TM+4*i+3}, v{TM+4*i+1}")
    a(f"ds_write_b128 v{vTab}, {vr(PR,4)}", "pw")
    a(f"""
    v_mul_f32 v{TM+2}, v{TM+2}, v{TM}
    v_mul_f32 v{TM+3}, v{TM+3}, v{TM}
    v_mul_f32 v{PR+6}, v{TM+6}, v{TM+4}
    v_mul_f32_e64 v{PR+7}, -v{TM+7}, v{TM+4}
    """)
    cmul(PR + 4, PR + 2, TM + 2)
    a(f"ds_write_b128 v{vTab}, {vr(PR+4,4)} offset:1024", "pw")
    def p_reads(s_):
        for j in range(4):
            for k in range(2):
                a(f"ds_read_b128 {vr(PB+32*(s_&1)+8*j+4*k,4)}, v{vPb} offset:{256*s_+16*j+1024*k}", f"pb{s_}")
    p_reads(0)
    a.on_gap = dma
    if "la0" not in OPT: late_addr()
    for s_ in range(4):
        if s_ < 3: p_reads(s_ + 1)
        a.wait(lg=f"pb{s_}")
        if s_ == 3: a(f"s_load_dwordx2 {sr(sTag,2)}, s[8:9], 128")
        F = FR + 16 * (s_ & 1)
        for jp in range(2):
            js = (2 * jp, 2 * jp + 1)
            P = lambda j: PB + 32 * (s_ & 1) + 8 * j
            T = lambda j, w_: TM + 8 * (j & 1) + 4 * w_
            for j in js:
                for w_, o in enumerate((vOA, vOG)):
                    a(f"v_mul_f32 v{T(j,w_)}, v{P(j)}, v{o}\nv_mul_f32 v{T(j,w_)+1}, v{P(j)+1}, v{o}")
            for j in js:
                a(f"v_fract_f32 v{T(j,0)+1}, v{T(j,0)+1}")
                for w_ in range(2): a(f"v_exp_f32 v{T(j,w_)}, v{T(j,w_)}")
            for j in js:
                for w_ in range(2):
                    a(f"v_cos_f32 v{T(j,w_)+2}, v{T(j,w_)+1}\nv_sin_f32 v{T(j,w_)+3}, v{T(j,w_)+1}")
            for j in js:
                a(f"v_mul_f32 v{T(j,0)+2}, v{T(j,0)+2}, v{T(j,0)}\nv_mul_f32_e64 v{T(j,0)+3}, -v{T(j,0)+3}, v{T(j,0)}")
                a(f"v_mul_f32 v{T(j,1)+2}, v{T(j,1)+2}, v{T(j,1)}\nv_mul_f32 v{T(j,1)+3}, v{T(j,1)+3}, v{T(j,1)}")
            for j in js:
                a(f"v_cvt_pk_bf16_f32 v{F+j}, v{T(j,0)+2}, v{T(j,0)+3}")
                cmul(T(j, 0), T(j, 0) + 2, P(j) + 6)
                cmul(T(j, 1), T(j, 1) + 2, P(j) + 2)
                a(f"v_cvt_pk_bf16_f32 v{F+4+j}, v{T(j,0)}, v{T(j,0)+1}")
                cmul(T(j, 0) + 2, T(j, 1) + 2, P(j) + 4)
                a(f"v_cvt_pk_bf16_f32 v{F+8+j}, v{T(j,1)}, v{T(j,1)+1}")
                a(f"v_cvt_pk_bf16_f32 v{F+12+j}, v{T(j,0)+2}, v{T(j,0)+3}")
            if jp == 0 and s_ > 0: k_mfma(s_ - 1)
    k_mfma(3)
    sys.stderr.write(f"metronome left {a.metro} cost {a.cost}\n")
    SW = int(OPT.get("sw", 0))
    while a.metro: a.tick()
    a.metro = None
    stamp()
    a(f"s_setprio {OPT.get('xprio', 0)}")
    for t in range(4): a(f"ds_write_b128 v{vXw}, {vr(KT+4*t,4)} offset:{256*t}")
    if NKB == 10: a("ds_write_b32 v58, v58 offset:16")
    a(f"s_waitcnt lgkmcnt(0)\ns_cmp_eq_u32 s{sTag}, 0\ns_cbranch_scc1 S_tagslow\nS_tagok:")
    stamp()
    if NKB < 10:
        a("s_barrier")
        pieces(min(PE, {6: 4, 7: 11}.get(NKB, 15)))
        if TP1 == NKB: touch(1)
        if SW:
            assert NKB == 8
            pieces(SW)
            a(f"s_barrier\ns_setprio {OPT.get('xp2', 3)}")
    else:
        a("""
        S_xw:
        ds_read_b32 v28, v27 offset:16
        s_waitcnt lgkmcnt(0)
        v_readfirstlane_b32 s44, v28
        s_cmp_eq_u32 s44, 0
        s_cbranch_scc1 S_xw
        """)
    stamp()
    NREST = max(0, 10 - NKB - 2)
    a(f"s_cmp_lg_u32 s{sPar}, 0\ns_cbranch_scc1 S_par1")
    KP = 64
    PK = 88
    K = lambda i: KA + i
    cnt = [0]
    CBAR = [int(x) for x in OPT.get('cbar', '2,5,6,7').split(',')]
    def packs(run, k):
        for cp in range(4):
            for j in range(4): a(f"v_cvt_pk_bf16_f32 v{PK+16*run+4*cp+j}, v{k[cp+2*j]}, v{k[cp+2*j+1]}")
            if cnt[0] in CBAR[:NREST]: a("s_barrier")
            cnt[0] += 1
            a(f"ds_write_b128 v{vK}, {vr(PK+16*run+4*cp,4)} offset:{4160*cp+1024*run}")
            if SW: pieces(min(24, pn[0] + int(OPT.get("swi", 2))))
    hist0 = list(a.hist); pn0 = pn[0]; vm0 = list(a.vm)
    for q in range(3):
        a(f"ds_read_b128 {vr(KA+4*q,4)}, v{vXr_} offset:{1024*q}\nds_read_b128 {vr(KP+4*q,4)}, v{vXr_} offset:{TSZ+1024*q}")
    a(f"""
    v_mov_b32 v{vT4}, 0
    ds_write_b32 v{vZ}, v{vT4}
    s_waitcnt lgkmcnt(1)
    """)
    for j in range(12): a(f"v_add_f32 v{KA+j}, v{KA+j}, v{KP+j}")
    a(f"""
    v_cndmask_b32 v{K(1)}, v{K(1)}, v{K(0)}, s[56:57]
    v_cndmask_b32 v{K(3)}, v{K(3)}, v{K(4)}, s[56:57]
    v_cndmask_b32 v{K(5)}, v{K(5)}, v{K(4)}, s[56:57]
    v_cndmask_b32 v{K(7)}, v{K(7)}, v{K(8)}, s[56:57]
    v_mov_b32 v{K(12)}, v{K(8)}
    v_mov_b32 v{K(13)}, v{K(8)}
    s_mov_b64 exec, 1
    ds_write_b32 v{vK0}, v{K(0)}
    v_mov_b32 v{K(0)}, 0
    s_mov_b64 exec, -1
    v_mov_b32_dpp v{K(12)}, v{K(1)} wave_shl:1 row_mask:0xf bank_mask:0xf
    v_mov_b32_dpp v{K(13)}, v{K(2)} wave_shl:1 row_mask:0xf bank_mask:0xf
    """)
    packs(1, [K(9)] * 3 + [K(10)] * 3 + [K(11)] * 5)
    packs(0, [K(i) for i in range(9)] + [K(12), K(13)])
    a(f"""
    s_mov_b64 exec, 1
    ds_write_b32 v{vCb}, v{PK} offset:{2*4160+28}
    ds_write_b32 v{vCb}, v{PK+4} offset:{3*4160+28}
    s_mov_b64 exec, -1
    s_branch S_parj
    S_par1:
    """)
    a.hist = hist0; cnt[0] = 0; pn[0] = pn0; a.vm = vm0
    a(f"ds_read_b128 {vr(KA+12,4)}, v{vXr_} offset:3072\nds_read_b128 {vr(KP,4)}, v{vXr_} offset:{TSZ+3072}\ns_waitcnt lgkmcnt(0)")
    for j in range(4): a(f"v_add_f32 v{KA+12+j}, v{KA+12+j}, v{KP+j}")
    a(f"v_cndmask_b32 v{K(0)}, v{K(12)}, v{K(13)}, s[58:59]\nv_cndmask_b32 v{K(1)}, v{K(14)}, v{K(15)}, s[58:59]")
    packs(0, [K(12)] * 4 + [K(0)] + [K(13)] * 6)
    packs(1, [K(14)] * 4 + [K(1)] + [K(15)] * 6)
    a("S_parj:")
    a.lg = []
    a(f"""
    s_lshl_b32 s{sT}, s{sD}, 16
    s_and_b32 s{sT2}, s{sD}, s{sMask}
    s_cmp_eq_u32 s{sE}, 0
    s_cselect_b32 s{sD}, s{sT}, s{sT2}
    s_lshl1_add_u32 s{sT}, s{sQ}, s{sE}
    s_mul_i32 s{sT}, s{sT}, {GC}
    s_add_u32 s{sT}, s{sT}, {Y2}
    s_lshl_b32 s{sT2}, s{sPar}, 9
    s_add_u32 s{sT}, s{sT}, s{sT2}
    s_lshl_b32 s{sT2}, s{sPar}, 10
    s_sub_u32 s{sT2}, 1024, s{sT2}
    v_lshrrev_b32 v{vT}, 5, v{vL}
    v_mad_u32_u24 v{vT}, v{vT}, s{sT2}, v{vL16}
    s_lshl2_add_u32 s{sT2}, s{sQ}, s{sW}
    s_lshl_b32 s{sT2}, s{sT2}, 7
    s_add_u32 s{sT2}, s{sT2}, {FY}
    v_mov_b32 v{vT3}, s{sTag}
    v_mov_b32 v{vT4}, s{sTag+1}
    s_mov_b32 s{sCnt}, 0
    """)
    AS, BS, YA, OV, UU, KD = [64, 128], [96, 160], 192, 10, 2, 26
    stamp()
    CE = "ce" in OPT
    C2 = "c2" in OPT
    if not CE:
        if not SW: a("s_barrier")
        while uq: u_loads(lambda t: a(t, "u"), [uq.pop(0)])
        if TP1 == 9: touch(1)
        if TP1 > 9: pieces(TP1); touch(1)
        if "gp" not in OPT: pieces(int(OPT["c2"]) if C2 else 24)
    assert not uq
    a.wait(vm="u")
    a("S_uchk:")
    a(f"v_cmp_ne_u64 vcc, {sr(sTag,2)}, {vr(vU+2,2)}")
    for k in range(1, 4): a(f"v_cmp_ne_u64 s[{42+2*k}:{43+2*k}], {sr(sTag,2)}, {vr(vU+4*k+2,2)}")
    for k in range(1, 4): a(f"s_or_b64 vcc, vcc, s[{42+2*k}:{43+2*k}]")
    a(f"s_cbranch_vccnz S_uslow\nS_uok:\ns_mov_b32 s{sCnt}, 0")
    stamp()
    for k in range(4): a(f"ds_write_b64 v{vUw}, {vr(vU+4*k,2)} offset:{256*k}")
    if not C2:
        a.wait(vm="P", lg=0)
        a(f"s_setprio {OPT.get('cprio', 1)}\ns_barrier")
    else:
        a(f"""
        ds_write_b32 v58, v58 offset:16
        v_mov_b32 v{vT2}, {FLG}
        S_m4:
        ds_read_b128 v[44:47], v{vT2} offset:16
        s_waitcnt lgkmcnt(0)
        v_min_u32 v44, v44, v45
        v_min3_u32 v44, v44, v46, v47
        v_cmp_eq_u32 vcc, 0, v44
        s_cbranch_vccnz S_m4
        """)
        CE = True
    a.lg = []
    if CE and not C2: pieces(int(OPT.get("npre", 8)))
    PG, CBI = int(OPT.get("pg", 3)), int(OPT.get("cbi", 90))
    stamp()
    def reads(rho):
        s_ = rho & 1; L = []
        for j in range(8):
            L.append((f"ds_read_b128 {vr(BS[s_]+4*j,4)}, v{vBa} offset:{512*j+64*(3-rho)}", f"f{rho}_{j}"))
            L.append((f"ds_read_b64_tr_b16 {vr(AS[s_]+4*j,2)}, v{vAa} offset:{64*(8*j+rho)+8}", f"f{rho}_{j}"))
            L.append((f"ds_read_b64_tr_b16 {vr(AS[s_]+4*j+2,2)}, v{vAa} offset:{64*(8*j+rho)}", f"f{rho}_{j}"))
        return L
    for t, tag in reads(0): a(t, tag)
    first = [True] * 8
    def cm(rho, p, q):
        a.wait(lg=f"f{rho}_{max(p,q)}")
        ct = p + q; s_ = rho & 1
        a(f"v_mfma_f32_16x16x32_bf16 {vr(YA+4*ct,4)}, {vr(AS[s_]+4*p,4)}, {vr(BS[s_]+4*q,4)}, {'0' if first[ct] else vr(YA+4*ct,4)}")
        first[ct] = False
    for rho in range(3):
        if rho == int(OPT.get("cp3", 0)): a("s_setprio 3")
        nxt = reads(rho + 1)
        for n, (p, q) in enumerate(sorted([(p, q) for p in range(8) for q in range(8) if p + q <= 7], key=lambda x: max(x))):
            cm(rho, p, q)
            if n >= (int(OPT.get('cn0', 8)) if rho == 0 else int(OPT.get('cn', 8))) and nxt:
                t, tag = nxt.pop(0); a(t, tag)
            if n == 35 and 'cw' in OPT: a.wait(lg=0)
            if CE:
                g = 36 * rho + n
                if g % PG == 0 and pn[0] < 24: pieces(pn[0] + 1)
                if g == CBI:
                    assert pn[0] == 24
                    a.wait(vm=0)
                    a("s_barrier")
                if (C2 or "pd" in OPT) and g == CBI + int(OPT.get("pd", 12)): a("s_setprio 3")
        assert not nxt
    a(f"s_cmp_lg_u32 s{sPar}, 0\ns_cbranch_scc1 S_conv1")
    keep = (list(a.hist), list(a.lg), nstamp[0])
    ZB, PB_ = 64, 80
    for par, (KEEP, SEND) in enumerate((((0, 3, 4, 7), (1, 2, 5, 6)), ((1, 2, 5, 6), (0, 3, 4, 7)))):
        if par: a("S_conv1:")
        a.hist, a.lg, nstamp[0] = list(keep[0]), list(keep[1]), keep[2]
        side = [lambda: a(f"ds_read_b32 v{KD}, v{vK0}", "uu")]
        side += [lambda k=k, ct=ct: a(f"ds_read_b64 {vr(UU+2*k,2)}, v{vUa} offset:{480-256+512*ct}", "uu") for k, ct in enumerate(KEEP)]
        side += [None] * 5
        side += [lambda: (a.wait(lg="uu"), a(f"v_add_f32 v{KD}, s{sD}, v{KD}"))]
        side += [lambda j=j: a(f"v_lshlrev_b32 v{ZB+2*j}, 16, v{UU+j}\nv_and_b32 v{ZB+2*j+1}, s{sMask}, v{UU+j}") for j in range(8)]
        order = [(p, ct - p) for ct in SEND + KEEP for p in range(ct + 1)]
        ends = {}
        for n, (p, q) in enumerate(order): ends[p + q] = n
        wq = list(SEND)
        for n, (p, q) in enumerate(order):
            cm(3, p, q)
            if wq and n >= ends[wq[0]] + 5:
                ct = wq.pop(0); a(f"ds_write_b128 v{vTab}, {vr(YA+4*ct,4)} offset:{1024*SEND.index(ct)}", "sw")
                if not wq: a(f"ds_write_b32 v58, v58", "sw")
            elif side:
                t = side.pop(0)
                if t: t()
            if n == 31:
                assert not wq and not side
                a("ds_read_b32 v28, v27", "pr")
                for k in range(4): a(f"ds_read_b128 {vr(PB_+4*k,4)}, v{vPr} offset:{1024*k}", "pr")
        stamp()
        a.wait(lg=0)
        a(f"""
        v_cmp_eq_u32 vcc, 0, v28
        s_cbranch_vccz S_pok{par}
        S_pw{par}:
        ds_read_b32 v28, v27
        """)
        for k in range(4): a(f"ds_read_b128 {vr(PB_+4*k,4)}, v{vPr} offset:{1024*k}")
        a(f"""
        s_waitcnt lgkmcnt(0)
        v_cmp_eq_u32 vcc, 0, v28
        s_cbranch_vccnz S_pw{par}
        S_pok{par}:
        """)
        a.lg = []
        for j in range(16): a(f"v_fmac_f32 v{PB_+j}, v{KD}, v{ZB+j}")
        a("s_setprio 3")
        for k, ct in enumerate(KEEP):
            for j in range(4): a(f"v_add_f32 v{PB_+4*k+j}, v{PB_+4*k+j}, v{YA+4*ct+j}")
            for j in range(2): a(f"v_cvt_pk_bf16_f32 v{UU+2*k+j}, v{PB_+4*k+2*j}, v{PB_+4*k+2*j+1}")
            a(f"ds_write_b64 v{vBp}, {vr(UU+2*k,2)} offset:{512*k}")
            if k & 1: a(f"ds_read_b128 {vr(OV+2*(k-1),4)}, v{vK} offset:{512*(k-1)}", f"bp{k}")
        if par == 0: a("s_branch S_done")
    a("S_done:")
    for j in range(2):
        a.wait(lg=f"bp{2*j+1}")
        a(f"buffer_store_dwordx4 {vr(OV+4*j,4)}, v{vT}, {WS}, s{sT} offen offset:{2048*j} sc1")
    a(f"s_mov_b64 exec, 1\ns_waitcnt vmcnt(0)\nbuffer_store_dwordx2 {vr(vT3,2)}, off, {WS}, s{sT2} sc1")
    stamp()
    if STAMPS:
        a("s_waitcnt vmcnt(0)"); stamp()
    if "wb" in OPT:
        a(f"s_lshr_b32 s{sT}, s2, 3\ns_or_b32 s{sT}, s{sT}, s{sW}\ns_cmp_lg_u32 s{sT}, 0\ns_cbranch_scc1 S_nowb\nbuffer_wbl2 sc1\nS_nowb:")
    stamp_flush(WS, f"s{sW}", vT)
    a("s_endpgm")
    tag_slow("S", sTag, 8, [192], vNon, sCnt)
    a.raw(f"""S_uslow:
{retry_mark(4)}  s_add_u32 s{sCnt}, s{sCnt}, 1
  s_cmp_ge_u32 s{sCnt}, {SPIN}
  s_cbranch_scc1 S_uok
  s_sleep 4""")
    u_loads(lambda t: a.raw("  " + t))
    a.raw("  s_waitcnt vmcnt(0)\n  s_branch S_uchk")

hdr = open("cdna_kernels/" + NAME + ".s.ref").read().split("\n")
top = [l for l in hdr if l.startswith(";") and "@launch" not in l][:16]
a.raw("\n".join(top))
a.raw("; @launch grid=(256,1,1) block=(512,1,1) lds=163840")
a.raw(""";
; out = x + conv(K, LN(x)) + LN(x)*Dskip + silu(LN(x) w1) w2, one launch, one 512-thread workgroup per CU.
; removed by a rank-1 MFMA with the column sums of w1, the scale in the SiLU epilogue), then a 64x64 tile of h*w2 with K
; (tap index rounded to bf16 as in the reference), its causal convolution as Toeplitz MFMAs, and part of the tile loads.
; (a clock value read once and published in d_debug).  xn and the row statistics travel as tagged 16-byte granules, the
; conv result as plain data behind one flag line per producing wave; all of them are written through (sc1) and read with
; sc1.  h is left to the die's L2 only after the 16 workgroups of a row block have seen that they all report the same
; XCC id, otherwise it is written through as well.  Every wait on another workgroup is bounded.""")
a.raw(f""".amdgcn_target "amdgcn-amd-amdhsa--gfx950"
.text
.globl {NAME}_kernel
.p2align 8
.type {NAME}_kernel,@function
{NAME}_kernel:""")
stamp()
NST[0] = 14
a(f"""
v_lshrrev_b32 v1, 6, v0
s_cmp_ge_u32 s2, 256
s_cbranch_scc1 L_exit
v_readfirstlane_b32 s32, v1
s_and_b32 s3, s2, 7
s_lshl_b32 s3, s3, 5
s_lshr_b32 s96, s2, 3
s_add_u32 s3, s3, s96
s_cmp_lt_u32 s32, 4
s_cbranch_scc1 L_gemm
""")
if "nocpf" not in OPT:
    a(f"""
    s_getpc_b64 s[94:95]
    s_lshl_b32 s96, s96, 10
    v_and_b32 v255, 7, v0
    v_lshl_add_u32 v255, v255, 7, s96
    v_min_u32 v255, L_exit-{NAME}_kernel-128, v255
    v_mov_b32 v253, s95
    v_add_co_u32 v252, vcc, s94, v255
    v_addc_co_u32 v253, vcc, 0, v253, vcc
    global_load_dword v254, v[252:253], off
    """)
EV[1] = False
ssm = ssm_role()
next(ssm)
EV[1] = True
a("L_gemm:")
a.hist = []; a.vm = []; a.lg = []
if STAMPS: nstamp[0] = 1
gemm_role()
a.raw(".p2align 6")
a("L_ssm:")
NST[0] = 14
EV[1] = False
for _ in ssm: pass
a("L_exit:\ns_endpgm")
a.raw(f""".section .rodata,"a"
.p2align 6
.amdhsa_kernel {NAME}_kernel
  .amdhsa_next_free_vgpr 256
  .amdhsa_next_free_sgpr 102
  .amdhsa_accum_offset 256
  .amdhsa_group_segment_fixed_size 0
  .amdhsa_kernarg_size 120
  .amdhsa_user_sgpr_count 2
  .amdhsa_user_sgpr_kernarg_segment_ptr 1
  .amdhsa_system_sgpr_workgroup_id_x 1
.end_amdhsa_kernel""")
sys.stdout.write(a.text())
sys.stderr.write(f"nops inserted: {a.nops}\n")
```

```python
import sys, struct
from asmlib import Asm, vr, sr

NAME = "parallel_sum__ssm_conv_s4__dense_activation_silu__prompt"
OPT = {x.split("=")[0][2:]: (x.split("=")[1] if "=" in x else "1") for x in sys.argv[1:] if x.startswith("--")}
OPT.setdefault("ol", "nt")
OPT.setdefault("fb", "15")
OPT.setdefault("np0", "20")
OPT.setdefault("pe", "11")
OPT.setdefault("tp0", "5")
STAMPS = "stamps" in OPT
SPIN = int(OPT.get("spin", 100000))
PLF = OPT.get("plf", "sc1").replace("_", " ")
FSF = OPT.get("fsf", "sc1").replace("_", " ")
M1, M2 = OPT.get("m1", "81"), OPT.get("m2", "81")
LOCAL = M1 == "81" and M2 == "81" and "nolocal" not in OPT
HSF = "" if LOCAL else "sc1"

HROW = 88 * 1024
H_SIZE = 64 * HROW
ST = 0x580000
FH = 0x5E0000
GS = 18432
GC = 4608
FY = 0x5C0000
XNP = 0x600000
XS = 9216
FX = 0x5A0000
FG = 0x5B0000
Y2 = 0xA80000
WS_SIZE = 0x1000000
STAMP_OFF = 0xF80000
LOG2E = 0x3fb8aa3b
fl = lambda x: "0x%08x" % struct.unpack("<I", struct.pack("<f", x))[0]

M2_42 = OPT.get('m2', '42') == '42'
a = Asm()
SHARED = {}
nstamp = [0]
EV = [0, True]
NST = [16]
def stamp(force=False):
    if "padev" in OPT and EV[1]:
        if EV[0] == int(OPT["padev"]): a("s_memrealtime s[86:87]")
        EV[0] += 1
    if STAMPS and nstamp[0] < NST[0] and (force or ("cs" not in OPT and "g2" not in OPT and "ss" not in OPT) or nstamp[0] in (0, 13) or ("g2" in OPT and nstamp[0] >= 7)):
        i = nstamp[0]; nstamp[0] += 1
        a(f"s_memtime s[{60+2*i}:{61+2*i}]")
def stamp_flush(wsrd, wave_s, vt, row=0):
    if not STAMPS: return
    n = nstamp[0]
    a("s_memrealtime s[98:99]")
    a("s_waitcnt lgkmcnt(0)")
    a(f"s_lshl_b32 s96, s2, 2\ns_add_u32 s96, s96, {wave_s}\ns_lshl_b32 s96, s96, 7\ns_add_u32 s96, s96, {STAMP_OFF+row*512}")
    a("s_mov_b64 exec, 1")
    for i in range(n):
        a(f"v_mov_b32 v{vt}, s{60+2*i}")
        a(f"buffer_store_dword v{vt}, off, {wsrd}, s96 offset:{4*i}")
    a(f"v_mov_b32 v{vt}, s97\nbuffer_store_dword v{vt}, off, {wsrd}, s96 offset:116")
    a(f"v_mov_b32 v{vt}, s100\nbuffer_store_dword v{vt}, off, {wsrd}, s96 offset:120")
    a(f"v_mov_b32 v{vt}, s98\nbuffer_store_dword v{vt}, off, {wsrd}, s96 offset:124")
    nstamp[0] = 0
def retry_mark(bit):
    return f"  s_add_u32 s97, s97, {1 << bit}\n" if STAMPS else ""

def srd(base, size):
    a(f"s_mov_b32 s{base+2}, {size}\ns_mov_b32 s{base+3}, 0x20000")

def cmul(d, x, y):
    a(f"v_mul_f32 v{d}, v{x+1}, v{y+1}")
    a(f"v_mul_f32 v{d+1}, v{x+1}, v{y}")
    a(f"v_fma_f32 v{d}, v{x}, v{y}, -v{d}")
    a(f"v_fmac_f32 v{d+1}, v{x}, v{y+1}")

def tag_slow(pfx, sTag, dbg, offs, vt, sCnt):
    a.raw(f"{pfx}_tagslow:")
    if STAMPS: a.raw(retry_mark(0).rstrip("\n"))
    for o in offs:
        a.raw(f"  s_load_dwordx2 {sr(sTag,2)}, s[{dbg}:{dbg+1}], {o}\n  s_waitcnt lgkmcnt(0)\n  s_cmp_lg_u32 s{sTag}, 0\n  s_cbranch_scc1 {pfx}_tagok")
    a.raw(f"""  s_mov_b32 s{sCnt}, 0
{pfx}_tagloop:
  buffer_load_dwordx2 {vr(vt,2)}, off, s[{dbg}:{dbg+3}], 0 sc1
  s_add_u32 s{sCnt}, s{sCnt}, 1
  s_waitcnt vmcnt(0)
  v_readfirstlane_b32 s{sTag}, v{vt}
  v_readfirstlane_b32 s{sTag+1}, v{vt+1}
  s_nop 3
  s_cmp_lg_u32 s{sTag}, 0
  s_cbranch_scc1 {pfx}_tagok
  s_cmp_lt_u32 s{sCnt}, {SPIN}
  s_cbranch_scc1 {pfx}_tagloop
  s_branch {pfx}_tagok""")

def gemm_role():
    X, W1, WS, W2, OUT, DBG, HS = "s[4:7]", "s[8:11]", "s[12:15]", "s[16:19]", "s[20:23]", "s[24:27]", "s[28:31]"
    sP = 3
    sW, sRB, sM, sXB, sWB, sC, sTx, sT, sLA, sLB, sW2, sHS, sHL = range(32, 45)
    sT2, sT3, sL2e, sCnt, sO, sTag, sFl, sRT = 45, 46, 47, 48, 49, 50, 52, 53
    sB1, sMask, sCG, sXcc, sFar, sHS2, sIa = 54, 55, 56, 57, 58, 59, 101
    sY, sRet = sFl, sFar
    sMean, sNeg = 88, 92
    sXn, sSt, sCx = 89, 90, 96
    SROW, STG = 1056, 98304
    vL = 1
    vXo, vWo, vXr, vWr, vW2o, vW2r, vL16 = 2, 6, 9, 13, 17, 18, 22
    vT, vNon, vCs, vT2, vC2, vSa = 23, 24, 26, 29, 30, 31
    vSt, vNeg = 32, 36
    HALF, vSw, vSr, vIa, vT3 = 88, 92, 93, 94, 95
    ACC1, WF, CSA, XF, CSF = 40, 96, 144, 192, 168
    LX, LF, LG, vId = 224, 232, 248, 252
    ACC2, STASH, HB, HD = 32, 96, 192, 8
    LB0 = 49152
    FARAWAY = 0x40000000
    IP = int(OPT.get('ip', 0))
    a(f"""
    s_load_dwordx2 s[4:5], s[0:1], 0
    s_load_dwordx2 s[8:9], s[0:1], 80
    s_load_dwordx2 s[24:25], s[0:1], 104
    s_load_dwordx2 s[12:13], s[0:1], 112
    s_load_dwordx2 s[16:17], s[0:1], 88
    s_load_dwordx2 s[20:21], s[0:1], 96
    v_and_b32 v{vL}, 63, v0
    s_bfe_u32 s{sT}, s2, 0x20001
    s_bfe_u32 s{sT2}, s2, 0x20003
    s_lshl2_add_u32 s{sRB}, s{sT}, s{sT2}
    s_and_b32 s{sT}, s2, 1
    s_bfe_u32 s{sC}, s2, 0x30005
    s_lshl3_add_u32 s{sM}, s{sT}, s{sC}
    s_mov_b32 s{sCx}, s{sC}
    v_lshlrev_b32 v{vL16}, 4, v{vL}
    s_lshl2_add_u32 s{sCnt}, s{sP}, s{sW}
    s_lshl_b32 s{sCnt}, s{sCnt}, 11
    s_setprio 2
    """)
    if STAMPS: a("s_memrealtime s[98:99]")
    srd(4, 2048 * 1024); srd(8, 512 * 2752)
    a(f"""
    v_lshrrev_b32 v{vT}, 3, v{vL}
    v_lshlrev_b32 v{vT}, 10, v{vT}
    v_lshrrev_b32 v{vT2}, 4, v{vL}
    v_xor_b32 v{vT2}, v{vT2}, v{vL}
    v_and_b32 v{vT2}, 7, v{vT2}
    v_lshl_add_u32 v{vXo}, v{vT2}, 4, v{vT}
    v_xor_b32 v{vXo+1}, 64, v{vXo}
    v_add_u32 v{vXo+2}, {2*7168}, v{vXo}
    v_add_u32 v{vXo+3}, {3*7168}, v{vXo+1}
    v_add_u32 v{vXo+1}, 7168, v{vXo+1}
    s_movk_i32 s{sT}, 5462
    s_movk_i32 s{sT2}, {2752-192}
    v_mul_u32_u24 v{vT}, s{sT}, v{vL}
    """)
    for j in range(3):
        if j: a(f"v_add_u32 v{vT}, {64*5462}, v{vT}")
        a(f"v_lshrrev_b32 v{vT2}, 16, v{vT}\nv_mad_u32_u24 v{vWo+j}, v{vT2}, s{sT2}, v{vL16}")
    a(f"""
    s_lshl2_add_u32 s{sXB}, s{sRB}, s{sW}
    s_lshl_b32 s{sXB}, s{sXB}, 15
    s_mul_i32 s{sWB}, s{sM}, 192
    s_mul_i32 s{sT}, s{sW}, {16*2752}
    s_add_u32 s{sWB}, s{sWB}, s{sT}
    s_lshr_b32 s{sO}, s{sXB}, 6
    s_cmp_eq_u32 s{sM}, 15             ; the 16th workgroup of a row block has no GEMM1 tile: its tile loads go out of range
    s_cselect_b32 s{sXB}, {"s%d" % sHS if IP else FARAWAY}, s{sXB}
    s_cselect_b32 s{sWB}, {"s%d" % sHL if IP > 1 else FARAWAY}, s{sWB}
    s_lshl_b32 s{sLA}, s{sW}, 12
    s_mul_i32 s{sLB}, s{sW}, 3072
    s_add_u32 s{sLB}, s{sLB}, {LB0}
    s_waitcnt lgkmcnt(0)
    """)
    if STAMPS: a("s_mov_b32 s100, s98\ns_mov_b32 s97, 0")
    stamp()

    def w_ops(c):
        ops = []
        for j in range(3):
            def f(j=j):
                if j == 0:
                    a(f"s_mul_i32 s{sT2}, s{sC}, {64*2752}\ns_add_u32 m0, s{sLB}, {(c&3)*12288}\ns_add_u32 s{sT2}, s{sT2}, s{sWB}")
                a(f"buffer_load_dwordx4 v{vWo+j}, {W1}, s{sT2} offen offset:{j*1024} {OPT.get('w1f', '')} lds", f"C{c}")
                if j == 0: a(f"s_add_u32 s{sC}, s{sC}, 1\ns_and_b32 s{sC}, s{sC}, 7")
            ops.append(f)
        return ops
    def x_ops(c):
        ops = []
        for pc in range(4):
            def f(pc=pc):
                if pc == 0:
                    a(f"s_lshl_b32 s{sTx}, s{sCx}, 7\ns_add_u32 m0, s{sLA}, {(c%3)*16384}\ns_add_u32 s{sTx}, s{sTx}, s{sXB}")
                a(f"buffer_load_dwordx4 v{vXo+pc}, {X}, s{sTx} offen offset:{pc*1024} lds", f"C{c}")
                if pc == 0: a(f"s_add_u32 s{sCx}, s{sCx}, 1\ns_and_b32 s{sCx}, s{sCx}, 7")
            ops.append(f)
        return ops
    DQ = []; QT = []; QK = []
    for c in range(8):
        first = (w_ops(c), x_ops(c)) if c < 2 else (x_ops(c), w_ops(c))
        for grp_ in first:
            isx = len(grp_) == 4
            lim = -1 if c < (3 if isx else 4) else (max(1, 4 * (c - 3)) if isx else 4 * (c - 3) + 2)
            DQ += [(lim, f) for f in grp_]
            QT += [f'C{c}'] * len(grp_)
            QK += [('x' if isx else 'w') + str(c)] * len(grp_)
    def issue(n, s_=-1):
        for _ in range(n):
            if DQ and DQ[0][0] <= s_: DQ.pop(0)[1]()
    for r in range(2):
        a(f"buffer_load_dwordx4 {vr(LX+4*r,4)}, v{vL16}, {X}, s{sCnt} offen offset:{1024*r}", "xrow")
    if IP:
        a(f"s_mov_b64 s[98:99], s[4:5]\ns_cmp_eq_u32 s{sM}, 15\ns_cselect_b64 s[4:5], s[16:17], s[4:5]\ns_cselect_b64 s[8:9], s[16:17], s[8:9]")
    a(f"""
    s_mov_b32 s{sB1}, 0x3f803f80
    s_mov_b32 s{sMask}, 0xffff0000
    s_mul_i32 s{sT3}, s{sW}, {2*SROW}
    s_add_u32 s{sT3}, s{sT3}, {STG}
    v_add_u32 v{vSw}, s{sT3}, v{vL16}
    v_bfe_u32 v{vT3}, v{vL}, 2, 2
    v_and_b32 v{vT}, 1, v{vL}
    v_lshl_add_u32 v{vT}, v{vT}, 2, v{vT3}
    v_mul_u32_u24 v{vT}, {SROW}, v{vT}
    v_and_b32 v{vT2}, 2, v{vL}
    v_lshl_add_u32 v{vT}, v{vT2}, 2, v{vT}
    v_lshrrev_b32 v{vT2}, 4, v{vL}
    v_lshl_add_u32 v{vT}, v{vT2}, 4, v{vT}
    s_lshl_b32 s{sT3}, s{sW}, 8
    s_add_u32 s{sT3}, s{sT3}, {STG}
    v_add_u32 v{vSr}, s{sT3}, v{vT}
    """)
    issue(7)
    a(f"""
    v_and_b32 v{vSa}, 31, v{vL}
    v_lshrrev_b32 v{vT2}, 5, v{vL}
    v_bfe_u32 v{vC2}, v{vL}, 1, 3
    v_xor_b32 v{vC2}, v{vC2}, v{vT2}
    v_lshl_add_u32 v{vC2}, v{vC2}, 4, s{sLA}
    v_lshl_add_u32 v{vC2}, v{vSa}, 7, v{vC2}
    v_bfe_u32 v{vT3}, v{vL}, 2, 2
    v_lshl_add_u32 v{vT}, v{vT2}, 3, v{vT3}
    v_mul_u32_u24 v{vT}, 192, v{vT}
    v_bfe_u32 v{vT2}, v{vL}, 4, 1
    v_lshl_add_u32 v{vT}, v{vT2}, 5, v{vT}
    v_and_b32 v{vT2}, 3, v{vL}
    v_lshl_add_u32 v{vT}, v{vT2}, 3, v{vT}
    v_add_u32 v{vT}, {LB0}, v{vT}
    """)
    for i in range(4):
        a(f"""
        s_add_u32 s{sT3}, s{sW}, {i}
        s_and_b32 s{sT3}, s{sT3}, 3
        s_lshl_b32 s{sCnt}, s{sT3}, 5
        s_mulk_i32 s{sT3}, 3072
        v_xor_b32 v{vXr+i}, s{sCnt}, v{vC2}
        v_add_u32 v{vWr+i}, s{sT3}, v{vT}
        """)
    issue(3)
    a(f"""
    v_lshrrev_b32 v{vT2}, 4, v{vL}
    """)
    srd(24, 256)
    srd(12, WS_SIZE)
    a(f"""
    v_lshrrev_b32 v{vT}, 2, v{vL}
    v_xor_b32 v{vT}, v{vT}, v{vT2}
    v_and_b32 v{vT}, 1, v{vT}
    v_add_u32 v{vT}, -1, v{vT}
    """)
    for k in range(4): a(f"v_and_b32 v{HALF+k}, s{sB1}, v{vT}")
    FILL = [u.strip() for u in f"""
    s_mov_b32 s18, {1376*1024}
    s_mov_b32 s19, 0x20000
    s_mov_b32 s22, {2048*1024}
    s_mov_b32 s23, 0x20000
    s_mov_b32 s28, s12
    s_mov_b32 s29, s13
    s_mov_b32 s30, {H_SIZE}
    s_mov_b32 s31, 0x20000
    s_mov_b32 s{sL2e}, {LOG2E:#x}
    v_lshlrev_b32 v{vSa}, 4, v{vSa}
    s_add_u32 s{sO}, s{sO}, {ST}
    v_lshrrev_b32 v{vT}, 3, v{vL}
    v_lshlrev_b32 v{vT}, 10, v{vT}
    v_bfe_u32 v{vT2}, v{vL}, 4, 1
    v_lshlrev_b32 v{vT3}, 2, v{vT2}
    v_xor_b32 v{vT3}, v{vT3}, v{vL}
    v_and_b32 v{vT3}, 7, v{vT3}
    v_lshl_add_u32 v{vW2o}, v{vT3}, 4, v{vT}
    v_lshrrev_b32 v{vT}, 5, v{vL}
    v_bfe_u32 v{vT3}, v{vL}, 2, 2
    v_lshl_add_u32 v{vT}, v{vT}, 2, v{vT3}
    v_lshlrev_b32 v{vT}, 7, v{vT}
    v_lshl_add_u32 v{vT}, v{vT2}, 5, v{vT}
    v_bfe_u32 v{vT2}, v{vL}, 3, 1
    v_lshl_add_u32 v{vT}, v{vT2}, 6, v{vT}
    v_and_b32 v{vT2}, 3, v{vL}
    v_lshl_add_u32 v{vT}, v{vT2}, 3, v{vT}
    s_lshl_b32 s{sT3}, s{sW}, 5
    s_and_b32 s{sT3}, s{sT3}, 64
    v_xor_b32 v{vT}, s{sT3}, v{vT}
    v_xor_b32 v{vT2}, 64, v{vT}
    v_add_u32 v{vW2r}, s{sLA}, v{vT}
    v_add_u32 v{vW2r+1}, s{sLA}, v{vT2}
    v_add_u32 v{vW2r+2}, s{sLB}, v{vT}
    v_add_u32 v{vW2r+3}, s{sLB}, v{vT2}
    s_bfe_u32 s{sT}, s2, {"0x20001" if M2_42 else "0x30000"}
    s_bfe_u32 s{sT3}, s2, {"0x30003" if M2_42 else "0x20003"}
    {"s_lshl3_add_u32" if M2_42 else "s_lshl2_add_u32"} s{sRT}, s{sT}, s{sT3}
    s_and_b32 s{sT}, s2, {1 if M2_42 else 0}
    s_bfe_u32 s{sT3}, s2, {"0x20006" if M2_42 else "0x30005"}
    s_lshl2_add_u32 s{sCG}, s{sT}, s{sT3}
    s_mul_i32 s{sW2}, s{sW}, {352*1024}
    s_lshl_b32 s{sT}, s{sCG}, 7
    s_add_u32 s{sW2}, s{sW2}, s{sT}
    s_mul_i32 s{sHL}, s{sRT}, {2*HROW}
    s_mul_i32 s{sT}, s{sW}, {22*1024}
    s_add_u32 s{sHL}, s{sHL}, s{sT}
    s_lshl_b32 s{sT3}, s{sW}, 8
    s_add_u32 s{sT3}, s{sT3}, {LB0}
    v_lshl_add_u32 v{vT2}, v{vL}, 2, s{sT3}
    v_lshl_add_u32 v{vT}, v{vL}, 2, s{sLB}
    s_lshl2_add_u32 s{sT3}, s{sRB}, s{sW}
    s_mul_i32 s{sT3}, s{sT3}, {HROW}
    s_mul_i32 s{sHS}, s{sM}, 6144
    s_add_u32 s{sHS}, s{sHS}, s{sT3}
    s_add_u32 s{sHS2}, s{sHS}, 4096
    s_cmp_ge_u32 s{sM}, 14 | s_cselect_b32 s{sHS2}, {H_SIZE}, s{sHS2}
    s_lshr_b32 s{sT3}, s{sW}, 1
    s_lshl1_add_u32 s{sT3}, s{sRB}, s{sT3}
    s_lshl4_add_u32 s{sT3}, s{sT3}, s{sM}
    s_and_b32 s{sFl}, s{sW}, 1
    s_lshl1_add_u32 s{sFl}, s{sT3}, s{sFl}
    s_lshl_b32 s{sFl}, s{sFl}, 7
    s_add_u32 s{sFl}, s{sFl}, {FH}
    s_cmp_eq_u32 s{sM}, 15 | s_cselect_b32 s{sHS}, {H_SIZE}, s{sHS} | s_cselect_b32 s{sFl}, {WS_SIZE}, s{sFl}
    """.strip().split("\n")]
    def fill_(n):
        for _ in range(n):
            if FILL: a(FILL.pop(0).replace(" | ", "\n"))

    fill_(int(OPT.get("nfill", 0)))
    keepq = [(q, t) for q, t, k in zip(DQ, QT[len(QT)-len(DQ):], QK[len(QK)-len(DQ):]) if k not in ("x1", "x2", "w2", "w3")]
    DQ[:] = [q for q, _ in keepq]; QT[:] = [t for _, t in keepq]
    a(f"s_add_u32 s{sC}, s{sC}, 2\ns_and_b32 s{sC}, s{sC}, 7\ns_add_u32 s{sCx}, s{sCx}, 2\ns_and_b32 s{sCx}, s{sCx}, 7")
    a.wait(vm="xrow")
    stamp()

    vC = CSA; S = [252, 253]; vN = 254; sR = sMean
    def dpp_reduce(fill):
        for ctl in ("row_shr:1 row_mask:0xf bank_mask:0xf bound_ctrl:0", "row_shr:2 row_mask:0xf bank_mask:0xf bound_ctrl:0",
                    "row_shr:4 row_mask:0xf bank_mask:0xf bound_ctrl:0", "row_shr:8 row_mask:0xf bank_mask:0xf bound_ctrl:0",
                    "row_bcast:15 row_mask:0xa bank_mask:0xf", "row_bcast:31 row_mask:0xc bank_mask:0xf"):
            for r in range(2):
                a(f"v_add_f32_dpp v{S[r]}, v{S[r]}, v{S[r]} {ctl}")
            for _ in range(3):
                if fill: a(fill.pop(0))
        while fill: a(fill.pop(0))
    for k in range(4):
        for r in range(2):
            a(f"v_dot2_f32_bf16 v{S[r]}, v{LX+4*r+k}, s{sB1}, {'0' if k == 0 else 'v%d' % S[r]}")
    unpack = lambda: [t for r in range(2) for k in range(4) for t in
                      (f"v_lshlrev_b32 v{LF+8*r+2*k}, 16, v{LX+4*r+k}", f"v_and_b32 v{LF+8*r+2*k+1}, s{sMask}, v{LX+4*r+k}")]
    fill = unpack()
    for _ in range(3): a(fill.pop(0))
    dpp_reduce(fill)
    for r in range(2): a(f"v_mul_f32 v{S[r]}, 0x3b000000, v{S[r]}")
    for r in range(2): a(f"v_cvt_pk_bf16_f32 v{vN+r}, -v{S[r]}, -v{S[r]}")
    for r in range(2): a(f"v_readlane_b32 s{sMean+2*r}, v{S[r]}, 63")
    for r in range(2): a(f"v_readlane_b32 s{sNeg+2*r+1}, v{vN+r}, 63")
    for k in range(4):
        for r in range(2):
            a(f"v_pk_add_f32 {vr(vC+8*r+2*k,2)}, {vr(LF+8*r+2*k,2)}, {sr(sMean+2*r,2)} op_sel_hi:[1,0] neg_lo:[0,1] neg_hi:[0,1]")
    for r in range(2): a(f"s_and_b32 s{sNeg+2*r}, s{sNeg+2*r+1}, s{sMask}")
    for r in range(2):
        a(f"v_pk_mul_f32 {vr(vC+8*r,2)}, {vr(vC+8*r,2)}, {vr(vC+8*r,2)}")
    for k in range(1, 4):
        for r in range(2):
            a(f"v_pk_fma_f32 {vr(vC+8*r,2)}, {vr(vC+8*r+2*k,2)}, {vr(vC+8*r+2*k,2)}, {vr(vC+8*r,2)}")
    for r in range(2): a(f"v_add_f32 v{S[r]}, v{vC+8*r}, v{vC+8*r+1}")
    fill = [f"v_pk_add_f32 {vr(LF+8*r+2*k,2)}, {vr(LF+8*r+2*k,2)}, {sr(sNeg+2*r,2)} op_sel_hi:[1,0]" for k in range(4) for r in range(2)]
    fill += [f"v_cvt_pk_bf16_f32 v{LX+4*r+k}, v{LF+8*r+2*k}, v{LF+8*r+2*k+1}" for k in range(4) for r in range(2)]
    dpp_reduce(fill)
    issue(int(OPT.get('n1', 0)))
    def rnd():
        for r in range(2): a(f"v_cvt_pk_bf16_f32 v{S[r]}, v{S[r]}, v{S[r]}")
        for r in range(2): a(f"v_lshlrev_b32 v{S[r]}, 16, v{S[r]}")
    for r in range(2): a(f"v_mul_f32 v{S[r]}, 0x3b000000, v{S[r]}")
    rnd()
    for r in range(2): a(f"v_add_f32 v{S[r]}, 0x3727c5ac, v{S[r]}")
    rnd()
    for r in range(2): a(f"v_sqrt_f32 v{S[r]}, v{S[r]}")
    rnd()
    for r in range(2): a(f"v_rcp_f32 v{S[r]}, v{S[r]}")
    for t in unpack(): a(t)
    for r in range(2): a(f"v_readlane_b32 s{sR+2*r}, v{S[r]}, 63")
    a(f"s_load_dwordx2 {sr(sTag,2)}, s[24:25], 0")
    for r in range(2):
        for k in range(4):
            a(f"v_pk_mul_f32 {vr(LF+8*r+2*k,2)}, {vr(LF+8*r+2*k,2)}, {sr(sR+2*r,2)} op_sel_hi:[1,0]")
        for k in range(4):
            a(f"v_cvt_pk_bf16_f32 v{LX+4*r+k}, v{LF+8*r+2*k}, v{LF+8*r+2*k+1}")
        a(f"ds_write_b128 v{vSw}, {vr(LX+4*r,4)} offset:{SROW*r}", "stg")
    a(f"""
    v_mov_b32 v{LG}, s{sNeg+1}
    v_mov_b32 v{LG+1}, s{sR}
    v_writelane_b32 v{LG}, s{sNeg+3}, 1
    v_writelane_b32 v{LG+1}, s{sR+2}, 1
    s_mul_i32 s{sXn}, s{sP}, {GS}
    s_lshl_b32 s{sT3}, s{sW}, 12
    s_add_u32 s{sXn}, s{sXn}, s{sT3}
    s_add_u32 s{sXn}, s{sXn}, {XNP}
    s_lshl2_add_u32 s{sSt}, s{sP}, s{sW}
    s_lshl_b32 s{sSt}, s{sSt}, 5
    s_add_u32 s{sSt}, s{sSt}, {ST}
    """)
    issue(int(OPT.get('n2', 7)))
    a.wait(lg=0)
    stamp()

    GROUPS = [("A", 2, 4), ("A", 0, 4), ("B", 1, 3), ("A", 1, 4), ("B", 0, 3), ("B", 2, 3), ("B", 3, 3)]
    LOC = []
    for rg, sl, n in GROUPS:
        for k in range(n):
            LOC.append((rg, sl * (16384 if rg == "A" else 12288) + k * 1024))
    PL2 = list(range(4, 24))
    ploc = lambda p: p if p < 24 else PL2[p - 24]
    SHARED['LOC'] = LOC
    pn = [0]
    def p_next():
        p = pn[0]; pn[0] += 1
        rg, off = LOC[ploc(p)]
        a(f"s_add_u32 m0, s{sLA if rg == 'A' else sLB}, {off}")
        a(f"s_add_u32 s{sT3}, s{sW2}, {8192*p}")
        a(f"buffer_load_dwordx4 v{vW2o}, {W2}, s{sT3} offen lds", f"P{p}")

    wb = lambda s_: WF + 12 * (s_ % 3)
    def tr_pair(s_, ft):
        c, i = divmod(s_, 4)
        for e in range(2):
            a(f"ds_read_b64_tr_b16 {vr(wb(s_)+4*ft+2*e,2)}, v{vWr+i} offset:{(c&3)*12288+e*768+ft*64}", f"wf{s_}")
    def rd_x(c, i):
        a(f"ds_read_b128 {vr(XF+16*(c&1)+4*i,4)}, v{vXr+i} offset:{(c%3)*16384}", f"xf{c}_{i}")
    def open_chunk(c):
        if "cs" in OPT and c in (3, 5): stamp(True)
        a.wait(vm=f"C{c}")
        if (c == 0 and "ss" not in OPT) or ("cs" in OPT and c in (3, 5)): stamp(True)
        a("s_barrier")
        if "cs" in OPT and c: stamp(True)

    open_chunk(0)
    rd_x(0, 0)
    for ft in range(3): tr_pair(0, ft)
    for i in range(1, 4): rd_x(0, i)
    for ft in range(3): tr_pair(1, ft)
    a(f"s_cmp_eq_u32 s{sTag}, 0\ns_cbranch_scc1 G_tagslow\nG_tagok:")
    for k in range(5): a(f"v_mov_b32 v{LF+4*k+2}, s{sTag}\nv_mov_b32 v{LF+4*k+3}, s{sTag+1}")
    XSL = {"a": [(0, 1), (0, 2), (1, 0), (1, 2), (2, 1)], "b": [(3, 0), (3, 1), (3, 2), (7, 0), (7, 1)], "c": [(1, 0), (1, 2), (3, 0), (3, 2), (5, 1)], "d": [(19, 0), (19, 1), (19, 2), (20, 0), (3, 0)], "e": [(3, 0), (7, 0), (11, 0), (15, 0), (3, 1)], "f": [(11, 0), (11, 1), (11, 2), (13, 1), (3, 0)]}[OPT.get("xsl", "b")]
    GP = 'gp' in OPT
    PS = int(OPT.get('ps', 22)) if GP else 99
    def bg_op(c, i, ft):
        s_ = 4 * c + i
        if DQ: issue(1, s_)
        elif s_ >= PS and ft != 1:
            lim = 0 if s_ < 20 else 4 if s_ < 24 else 8 if s_ < 26 else 11 if s_ < 28 else 15 if s_ < 30 else 18 if s_ < 31 else 24
            if pn[0] < lim:
                assert not FILL
                p_next()
    def split(dst, src, tmp):
        return [f"v_cvt_pk_bf16_f32 v{tmp}, v{src}, v{src}", f"v_lshlrev_b32 v{tmp}, 16, v{tmp}",
                f"v_sub_f32 v{tmp}, v{src}, v{tmp}", f"v_cvt_pk_bf16_f32 v{dst}, v{src}, v{tmp}"]
    for c in range(8):
        a.comment(f"---- GEMM1 chunk {c}")
        for i in range(4):
            s_ = 4 * c + i
            if i == 2 and c < 7:
                issue(int(OPT.get('flush', 0)), s_ - 1)
                assert not any(t == f'C{c+1}' for t in QT[len(QT)-len(DQ):])
                open_chunk(c + 1)
            a.wait(lg=(f"xf{c}_{3 if s_ else 0}", f"wf{s_}"))
            if "ss" in OPT and int(OPT["ss"]) <= s_ < int(OPT["ss"]) + 12: stamp(True)
            if s_ == 28:
                assert "csw" not in a.lg
                a("s_barrier")
            if s_ == 31: a("s_barrier")
            for ft in range(3):
                cs = i == 0 or c >= 7
                if cs and s_ == 31:
                    a(f"v_mfma_f32_16x16x32_bf16 {vr(CSA+12+4*ft,4)}, {vr(HALF,4)}, {vr(wb(s_)+4*ft,4)}, {vr(CSA+12+4*ft,4)}")
            for ft in range(3):
                cc = "0" if s_ == 0 else vr(ACC1+16*ft, 16)
                a(f"v_mfma_f32_32x32x16_bf16 {vr(ACC1+16*ft,16)}, {vr(wb(s_)+4*ft,4)}, {vr(XF+16*(c&1)+4*i,4)}, {cc}")
                if i == 2 and c < 7:
                    if ft == 0: rd_x(c + 1, 0)
                    rd_x(c + 1, ft + 1)
                if s_ + 2 < 32: tr_pair(s_ + 2, ft)
                if (s_, ft) == (0, 0):
                    for k in range(4): a(f"ds_read_b64_tr_b16 {vr(LF+4*k,2)}, v{vSr} offset:{64*k}", "tr")
                if (s_, ft) in XSL:
                    a.wait(lg="tr")
                    k = XSL.index((s_, ft))
                    if k < 4: a(f"buffer_store_dwordx4 {vr(LF+4*k,4)}, v{vL16}, {WS}, s{sXn} offen offset:{1024*k} sc1", "xn")
                    else: a(f"s_mov_b64 exec, 3\nbuffer_store_dwordx4 {vr(LG,4)}, v{vL16}, {WS}, s{sSt} offen sc1\ns_mov_b64 exec, -1")
                else:
                    bg_op(c, i, ft)
                    if i == 3 or (i == 1 and ft): fill_(4)
                if (i == 0 or c >= 7) and s_ != 31:
                    d = CSA + 4 * ft + (12 if c >= 7 else 0)
                    a(f"v_mfma_f32_16x16x32_bf16 {vr(d,4)}, {vr(HALF,4)}, {vr(wb(s_)+4*ft,4)}, {'0' if s_ in (0, 28) else vr(d,4)}")
                if s_ == 25:
                    for t in split(vCs + ft, CSA + 4 * ft, CSA + 4 * ft + 1): a(t)
                if s_ == 25:
                    for k in range(2):
                        a(f"ds_write2st64_b32 v{vT2}, v{vCs+ft}, v{vCs+ft} offset0:{24*k+4*ft} offset1:{24*k+12+4*ft}", "csw")
                if s_ == 23:
                    for k in range(4): a(f"v_mov_b32 v{CSF+4*ft+k}, 0")
                if s_ == 28:
                    a("s_mov_b32 exec_hi, 0")
                    for k in range(2):
                        a(f"ds_read2st64_b32 {vr(CSF+4*ft+2*k,2)}, v{vT} offset0:{4*ft+2*k} offset1:{4*ft+2*k+1}", "csf")
                    a("s_mov_b32 exec_hi, -1")
                if s_ == 29 and ft == 2:
                    a.wait(vm="st", lg="csf")
                    a(f"""
                    s_mov_b32 s{sCnt}, 0
                    G_stchk:
                    v_cmp_ne_u64 vcc, {sr(sTag,2)}, {vr(vSt+2,2)}
                    s_cbranch_vccnz G_stslow
                    G_stok:
                    """)
                if s_ == 30 and ft == 0:
                    a(f"""
                    v_mov_b32 v{vNeg}, v{vSt}
                    v_mov_b32 v{vNeg+1}, v{vSt}
                    v_mov_b32 v{vNeg+2}, v{vSt}
                    v_mov_b32 v{vNeg+3}, v{vSt}
                    """)
                if s_ == 30 and ft == 1:
                    a(f"""
                    v_mul_f32 v{vC2}, s{sL2e}, v{vSt+1}
                    v_mov_b32 v{vNon}, s{sTag}
                    v_mov_b32 v{vNon+1}, s{sTag+1}
                    """)
                if s_ == 31:
                    sp = split(CSF + 4 * ft, CSA + 12 + 4 * ft, CSA + 13 + 4 * ft)
                    for t in sp[:3]: a(t)
                    a(f"s_mov_b32 exec_lo, 0\n{sp[3]}\ns_mov_b32 exec_lo, -1")
            if s_ == 23:
                assert not FILL
                a(f"buffer_load_dwordx4 {vr(vSt,4)}, v{vSa}, {WS}, s{sO} offen sc1", "st")
    assert not DQ
    stamp()
    for ft in range(3):
        a(f"v_mfma_f32_32x32x16_bf16 {vr(ACC1+16*ft,16)}, {vr(CSF+4*ft,4)}, {vr(vNeg,4)}, {vr(ACC1+16*ft,16)}")
    E1, OB = 208, 224
    def tr_w2(step, tag):
        base = STASH + 8 * (step % 12)
        for j in range(2):
            for e in range(2):
                rg, off = LOC[ploc(2 * step + e)]
                a(f"ds_read_b64_tr_b16 {vr(base+4*j+2*e,2)}, v{vW2r+(0 if rg=='A' else 2)+j} offset:{off}", tag)
    if not GP: pn[0] = 24
    for _ in range(3):
        if pn[0] < 24: p_next()
    GB = int(OPT.get("gb", 0))
    B9, B10 = int(OPT.get("b9", 1)), int(OPT.get("b10", 6))
    for ft in range(3):
        for j in range(2):
            A0 = ACC1 + 16 * ft + 8 * j
            T0 = E1 + 8 * j
            for k in range(8): a(f"v_mul_f32 v{A0+k}, v{vC2}, v{A0+k}")
            for k in range(8): a(f"v_exp_f32_e64 v{T0+k}, -v{A0+k}")
            if pn[0] < 24: p_next()
            for k in range(8): a(f"v_fma_f32 v{T0+k}, v{T0+k}, s{sL2e}, s{sL2e}")
            for k in range(8): a(f"v_rcp_f32 v{T0+k}, v{T0+k}")
            if pn[0] < 24: p_next()
            for k in range(8): a(f"v_mul_f32 v{A0+k}, v{A0+k}, v{T0+k}")
            for k in range(0, 8, 2): a(f"v_cvt_pk_bf16_f32 v{OB+8*ft+4*j+k//2}, v{A0+k}, v{A0+k+1}")
            a(f"buffer_store_dwordx4 {vr(OB+8*ft+4*j,4)}, v{vL16}, {HS}, s{sHS if ft < 2 else sHS2} offen offset:{1024*((2*ft+j)&3)} {OPT.get('hnt', 'sc1') if str(2*ft+j) in OPT.get('hn', '012345') else ''}", "hs")
            if GP and 2 * ft + j == GB: a("s_barrier")
    stamp()
    if IP: a("s_mov_b64 s[4:5], s[98:99]")
    vH, vF, vXg, vO, vY, vXl, vR, vP, vYl = 2, 4, 5, 6, 7, 8, 13, 10, 9
    a(f"""
    s_lshl_b32 s{sT}, s{sW}, 3
    s_lshr_b32 s{sT2}, 0x160e0600, s{sT}
    s_and_b32 s{sT2}, s{sT2}, 0xff
    s_lshr_b32 s{sT}, 0x1d150f07, s{sT}
    s_and_b32 s{sT}, s{sT}, 0xff
    v_max_u32 v{vF}, s{sT2}, v{vL}
    v_min_u32 v{vF}, s{sT}, v{vF}
    v_lshlrev_b32 v{vF}, 7, v{vF}
    s_and_b32 s{sT}, s{sW}, 1
    s_mul_i32 s{sT2}, s{sT}, {HROW}
    v_add_u32 v{vH}, s{sT2}, v{vL16}
    s_sub_u32 s{sT2}, {HROW}, s{sT2}
    v_add_u32 v{vH+1}, s{sT2}, v{vL16}
    s_mov_b32 s{sCnt}, 0
    s_movk_i32 s{sC}, 144
    """)
    def publish():
        a.wait(vm="hs")
        stamp()
        a(f"s_mov_b64 exec, 1\nbuffer_store_dwordx2 {vr(vNon,2)}, off, {WS}, s{sFl} sc1\nG_pub:\ns_mov_b64 exec, -1")
    FB = 'fb' in OPT
    if not FB: publish()
    if "pt" in OPT:
        a(f"buffer_load_dword v{vT3}, v{vSw}, {HS}, s{sHS} offen {OPT['pt'].replace('1', '') if OPT['pt'] != 'sc1' else 'sc1'}", "pt")
    a(f"s_lshl_b32 s{sRet}, s{sRT}, 12\ns_add_u32 s{sRet}, s{sRet}, {FH}")
    if not GP: a("s_barrier")
    assert pn[0] == 24 and not any(str(t).startswith("P") for t in a.vm)
    PK_ = int(OPT.get("pk", 11))
    order = list(range(2, 12)) + [0, 1]
    for n_, k in enumerate(order):
        if n_ == PK_ and not FB: a(f"buffer_load_dwordx2 {vr(vP,2)}, v{vF}, {WS}, s{sRet} offen sc1", "poll")
        tr_w2(k, f"S{k}")
    def p2():
        a.wait(lg=f"S{ploc(pn[0])//2}")
        p_next()
    if FB: publish()
    for k_ in range(int(OPT.get("np0", 12))):
        if FB and k_ == int(OPT["fb"]): a(f"buffer_load_dwordx2 {vr(vP,2)}, v{vF}, {WS}, s{sRet} offen sc1", "poll")
        p2()
    stamp()
    a.wait(vm="poll")
    a(f"G_hchk:\nv_cmp_ne_u64 vcc, {sr(sTag,2)}, {vr(vP,2)}\ns_add_u32 s{sCnt}, s{sCnt}, 1\ns_cbranch_vccnz G_hslow\nG_hok:")
    stamp()
    if STAMPS: a(f"s_lshl_b32 s{sCnt}, s{sCnt}, 16\ns_add_u32 s97, s97, s{sCnt}")
    HS_ = [(i, 1) for i in range(12)] + [(i, j) for i in range(12, 22) for j in (1, 0)] + [(i, 0) for i in range(12)]
    HR, WR = int(OPT.get("hr", 10)), 232
    grp = [None]
    def h_load(n):
        i, j = HS_[n]
        if i // 4 != grp[0]:
            grp[0] = i // 4; a(f"s_add_u32 s{sTx}, s{sHL}, {4096*(i//4)}")
        a(f"buffer_load_dwordx4 {vr(HB+4*(n%HR),4)}, v{vH+j}, {HS}, s{sTx} offen offset:{1024*(i%4)} {OPT.get('hlf', 'sc1').replace('_', ' ')}", f"h{n}")
    HT = int(OPT.get("ht", 99))
    for n in range(HR - 1):
        if n == HT:
            if M2_42:
                a(f"buffer_load_dword v{vT3}, v12, {HS}, s{sXn} offen sc1", "ht")
                a(f"s_add_u32 s{sXn}, s{sXn}, {HROW}")
            a(f"buffer_load_dword v12, v12, {HS}, s{sXn} offen sc1", "ht")
        if n == int(OPT.get("hp", 0)):
            for _ in range(int(OPT.get("np1", 99))):
                if pn[0] < 44: p2()
        h_load(n)
    a(f"""
    s_lshl1_add_u32 s{sT2}, s{sRT}, s{sT}
    s_lshr_b32 s{sT}, s{sW}, 1
    s_lshl1_add_u32 s{sCnt}, s{sCG}, s{sT}    ; own 32-column block
    s_lshl_b32 s{sO}, s{sT2}, 15
    s_lshl_b32 s{sT}, s{sCnt}, 6
    s_add_u32 s{sO}, s{sO}, s{sT}
    s_add_u32 s{sHS}, s{sT2}, 8
    s_bfe_u32 s{sHS}, s{sHS}, 0x10004
    s_lshl_b32 s{sT}, s{sCnt}, 6
    s_add_u32 s{sHS}, s{sHS}, s{sT}
    s_lshl_b32 s{sHS}, s{sHS}, 7
    s_add_u32 s{sHS}, s{sHS}, {FY}
    s_mul_i32 s{sY}, s{sCnt}, {32*GC}
    s_lshl_b32 s{sT}, s{sT2}, 6
    s_add_u32 s{sY}, s{sY}, s{sT}
    s_add_u32 s{sY}, s{sY}, {Y2}
    v_and_b32 v{vT}, 31, v{vL}
    v_lshrrev_b32 v{vT2}, 5, v{vL}
    v_lshlrev_b32 v{vO}, 10, v{vT}
    v_lshl_add_u32 v{vO}, v{vT2}, 4, v{vO}
    v_lshl_add_u32 v{vXl}, v{vT}, 6, s{sLA}
    v_lshl_add_u32 v{vXl}, v{vT2}, 4, v{vXl}
    v_lshlrev_b32 v{vYl}, 3, v{vT2}
    v_sub_u32 v{vF}, v{vT}, v{vYl}
    v_bfe_u32 v{vT}, v{vL}, 2, 2
    v_add_u32 v{vYl}, v{vYl}, v{vT}
    v_lshl_add_u32 v{vYl}, v{vYl}, 6, s{sLA}
    v_bfe_u32 v{vT}, v{vL}, 4, 1
    v_lshl_add_u32 v{vYl}, v{vT}, 5, v{vYl}
    v_and_b32 v{vT}, 3, v{vL}
    v_lshl_add_u32 v{vYl}, v{vT}, 3, v{vYl}
    v_lshrrev_b32 v{vY}, 2, v{vL}
    v_mul_u32_u24 v{vY}, {GC}, v{vY}
    v_lshl_add_u32 v{vY}, v{vT}, 4, v{vY}
    v_lshrrev_b32 v{vXg}, 2, v{vL}
    v_lshlrev_b32 v{vXg}, 10, v{vXg}
    v_and_b32 v{vT}, 3, v{vL}
    v_lshl_add_u32 v{vXg}, v{vT}, 4, v{vXg}
    v_add_u32 v{vR}, s{sLB}, v{vL16}
    """)
    for k in range(1, 4):
        a(f"s_xor_b32 s{sT}, s{sW}, {k}\ns_mulk_i32 s{sT}, 3072\ns_add_u32 s{sT}, s{sT}, {LB0}\nv_add_u32 v{vR+k}, s{sT}, v{vL16}")
    YO = 32768
    YT, YF, XFr, IDN = 232, 240, 248, 24
    XR = 24
    if "touch" in OPT:
        a(f"v_and_b32 v{vT}, 31, v{vL}\nv_mul_u32_u24 v{vT}, {GC}, v{vT}")
        a(f"buffer_load_dword v12, v{vT}, {WS}, s{sY} offen sc1", "yt")
    a(f"v_and_b32 v{vT}, 1, v{vF}\nv_lshlrev_b32 v{vT}, 4, v{vT}\nv_lshlrev_b32 v{vT}, v{vT}, v{vW2o}" if False else
      f"v_and_b32 v{vT}, 1, v{vF}\nv_lshlrev_b32 v{vT}, 4, v{vT}\nv_mov_b32 v11, 0x3f80\nv_lshlrev_b32 v11, v{vT}, v11\nv_ashrrev_i32 v{vF}, 1, v{vF}")
    for k in range(8):
        a(f"v_cmp_eq_u32 s[{88+2*(k&1)}:{89+2*(k&1)}], {8*(k>>2)+(k&3)}, v{vF}")
        if k: a(f"v_cndmask_b32 v{IDN+k-1}, 0, v11, s[{88+2*((k-1)&1)}:{89+2*((k-1)&1)}]")
    a(f"v_cndmask_b32 v{IDN+7}, 0, v11, s[90:91]")
    def y_poll(emit): emit(f"buffer_load_dwordx2 {vr(vP,2)}, v12, {WS}, s{sHS} offen sc1")
    def y_loads(emit):
        emit(f"s_add_u32 m0, s{sLA}, {YO}")
        for k in range(2):
            emit(f"s_add_u32 s{sT2}, s{sY}, {16*k*GC-1024*k}")
            emit(f"buffer_load_dwordx4 v{vY}, {WS}, s{sT2} offen offset:{1024*k} sc1 lds")
    def y_reads(emit):
        for k in range(4): emit(f"ds_read_b64_tr_b16 {vr(YF+2*k,2)}, v{vYl} offset:{YO+1024*(k>>1)+256*(k&1)}")
    YP = int(OPT.get("yp", 30))
    wreg = lambda i: STASH + 8 * i if i < 12 else WR + 8 * (i % 3)
    def w_reads(i, half):
        j = half
        assert pn[0] > 2 * i + 1
        a.wait(vm=f"P{2*i+1}")
        for e in range(2):
            rg, off = LOC[ploc(2 * i + e)]
            a(f"ds_read_b64_tr_b16 {vr(wreg(i)+4*j+2*e,2)}, v{vW2r+(0 if rg=='A' else 2)+j} offset:{off}", f"r{i}")
    started = set()
    def mm(n, jd):
        i, j = HS_[n]; k = 2 * jd + j
        ac = ACC2 + 16 * k
        a(f"v_mfma_f32_32x32x16_bf16 {vr(ac,16)}, {vr(wreg(i)+4*jd,4)}, {vr(HB+4*(n%HR),4)}, {vr(ac,16) if k in started else '0'}")
        started.add(k)
    roff = lambda k, q: (((k - 1) * 4 + q) // 3) * 12288 + (((k - 1) * 4 + q) % 3) * 1024
    def r_write(k, q): a(f"ds_write_b128 v{vR}, {vr(ACC2+16*k+4*q,4)} offset:{roff(k,q)}", "rw")
    def r_read(k, q): a(f"ds_read_b128 {vr(ACC2+16*k+4*q,4)}, v{vR+k} offset:{roff(k,q)}", f"rr{k}")
    YS = int(OPT.get("ys", 37))
    NT = 4
    PR_ = int(OPT.get('pr', 1))
    side = []
    def run_side(c):
        for _ in range(c):
            if side:
                t = side.pop(0)
                if callable(t): t()
                else: a(t)
    for n in range(44 - NT):
        i, j = HS_[n]
        a.wait(vm=f"h{n}", lg=(f"r{i}" if i >= 12 else 0 if n == 0 else None))
        if n == 0 or ("g2" in OPT and n in (12, 24, 32, 36)): stamp(True)
        for jd in range(2):
            mm(n, jd)
            if jd == 0 and n + HR - 1 < 44: h_load(n + HR - 1)
            if pn[0] < 44 and (jd == 1 or n % PR_ == 0): p2()
            if n in (8, 10): w_reads(12 + (n - 8) // 2, jd)
            if 12 <= n < 28 and j == 1: w_reads(i + 2, jd)
            if jd == 1 and n == 5: a(f"v_and_b32 v12, 31, v{vL}\nv_lshlrev_b32 v12, 8, v12")
            if jd == 1 and n == YP: y_poll(lambda t: a(t, "yf"))
            if jd == 1 and n == YS:
                a.wait(vm="yf")
                a(f"v_cmp_ne_u64 s[94:95], {sr(sTag,2)}, {vr(vP,2)}")
                y_loads(lambda t: a(t, "yr"))
            if jd == 1 and n == 30:
                a(f"s_mov_b32 m0, s{sLA}\ns_add_u32 s{sT2}, s{sO}, {16384-1024}")
                a(f"buffer_load_dwordx4 v{vXg}, {X}, s{sO} offen lds", "xr")
                a(f"buffer_load_dwordx4 v{vXg}, {X}, s{sT2} offen offset:1024 lds", "xr")
            g = 2 * (n - 32) + jd
            if 0 <= g < 12 and g % 3 != 2:
                w = g - g // 3; r_write(1 if w < 4 else 3, w & 3)
            if g == 8 and "ol" in OPT:
                a(f"""
                s_and_b32 s{sT}, s{sW}, 1
                s_mulk_i32 s{sT}, {32*144}
                s_lshr_b32 s{sT2}, s{sW}, 1
                s_lshl_b32 s{sT2}, s{sT2}, 6
                s_add_u32 s{sT}, s{sT}, s{sT2}
                s_add_u32 s{sT}, s{sT}, 98304
                v_and_b32 v{vT}, 31, v{vL}
                v_mul_u32_u24 v{vH}, 144, v{vT}
                """)
            if g == 11 and "ol" in OPT:
                a(f"""
                v_lshrrev_b32 v{vT}, 5, v{vL}
                v_lshl_add_u32 v{vH}, v{vT}, 4, v{vH}
                v_add_u32 v{vH}, s{sT}, v{vH}
                v_lshrrev_b32 v{vT}, 3, v{vL}
                v_and_b32 v{vF}, 7, v{vL}
                v_lshlrev_b32 v{vF}, 4, v{vF}
                v_mad_u32_u24 v{vH+1}, v{vT}, s{sC}, v{vF}
                v_lshl_add_u32 v{vF}, v{vT}, 10, v{vF}
                """)
            if g == 13 and "ol" in OPT:
                a(f"""
                s_mul_i32 s{sT}, s{sW}, {16*144}
                s_add_u32 s{sT}, s{sT}, 98304
                v_add_u32 v{vH+1}, s{sT}, v{vH+1}
                s_lshl2_add_u32 s{sXB}, s{sRT}, s{sW}
                s_lshl_b32 s{sXB}, s{sXB}, 14
                s_lshl_b32 s{sT}, s{sCG}, 7
                s_add_u32 s{sXB}, s{sXB}, s{sT}
                s_add_u32 s{sXB+1}, s{sXB}, 8192
                """)
            if g == 12:
                a.wait(vm="xr")
                for q in range(2): a(f"ds_read_b128 {vr(XFr+4*q,4)}, v{vXl} offset:{32*q}", "xl")
            if g == 14:
                a.wait(lg="rw")
                a("s_barrier")
                for q in range(4): r_read(1, q)
            if g == 15:
                for q in range(4): r_read(3, q)
    if "ts" in OPT: stamp()
    side = [lambda: a.wait(lg="rr3")] + [f"v_add_f32 v{ACC2+16+q}, v{ACC2+16+q}, v{ACC2+48+q}" for q in range(16)]
    for q, n in enumerate(range(44 - NT, 44)):
        a.wait(vm=f"h{n}")
        mm(n, 1)
        if q >= 2: run_side(6)
    tail = [lambda n=n: mm(n, 0) for n in range(44 - NT, 44)]
    for src in (XFr, YF):
        for q in range(2):
            tail.append(lambda src=src, q=q: a(f"v_mfma_f32_32x32x16_bf16 {vr(ACC2,16)}, {vr(IDN+4*q,4)}, {vr(src+4*q,4)}, {vr(ACC2,16)}"))
    for q, t in enumerate(tail):
        t()
        if q == 0: run_side(99)
        if 1 <= q <= 4: r_write(2, q - 1)
        if q == 4:
            a(f"s_cmp_lg_u64 s[94:95], 0\ns_cbranch_scc1 G_yslow\nG_yok:")
            a.wait(vm="yr")
            y_reads(lambda t: a(t, "yl"))
        if q == 5:
            a.wait(lg="rw")
            a("s_barrier")
            for q2 in range(4): r_read(2, q2)
            a.wait(lg="yl")
    stamp()
    a.wait(lg="rr2")
    for q in range(16): a(f"v_add_f32 v{ACC2+16+q}, v{ACC2+16+q}, v{ACC2+32+q}")
    for k in range(8):
        a(f"v_pk_add_f32 {vr(ACC2+2*k,2)}, {vr(ACC2+2*k,2)}, {vr(ACC2+16+2*k,2)}")
    for k in range(8):
        a(f"v_cvt_pk_bf16_f32 v{XR+k}, v{ACC2+2*k}, v{ACC2+2*k+1}")
    if "ol" not in OPT:
        for q in range(2):
            a(f"v_permlane32_swap_b32 v{XR+4*q}, v{XR+4*q+2}\nv_permlane32_swap_b32 v{XR+4*q+1}, v{XR+4*q+3}")
            a(f"buffer_store_dwordx4 {vr(XR+4*q,4)}, v{vO}, {OUT}, s{sO} offen offset:{32*q} {OPT.get('osf', '').replace('_', ' ')}")
    else:
        for q in range(2):
            a(f"v_permlane32_swap_b32 v{XR+4*q}, v{XR+4*q+2}\nv_permlane32_swap_b32 v{XR+4*q+1}, v{XR+4*q+3}")
            a(f"ds_write_b128 v{vH}, {vr(XR+4*q,4)} offset:{32*q}")
        a("s_waitcnt lgkmcnt(0)\ns_barrier")
        for q in range(2): a(f"ds_read_b128 {vr(ACC2+4*q,4)}, v{vH+1} offset:{8*144*q}", f"o{q}")
        for q in range(2):
            a.wait(lg=f"o{q}")
            a(f"buffer_store_dwordx4 {vr(ACC2+4*q,4)}, v{vF}, {OUT}, s{sXB+q} offen {OPT['ol'].replace('_', ' ').replace('1', '') if OPT['ol'] != 'sc1' else 'sc1'}")
    stamp()
    if STAMPS:
        a("s_waitcnt vmcnt(0)"); stamp()
    if "padev" in OPT:
        a(f"G_pad2:\ns_memrealtime s[98:99]\ns_waitcnt lgkmcnt(0)\ns_sub_u32 s96, s98, s86\ns_cmp_lt_u32 s96, 3000\ns_cbranch_scc1 G_pad2")
    if "padto" in OPT:
        a(f"G_pad:\ns_memrealtime s[98:99]\ns_waitcnt lgkmcnt(0)\ns_sub_u32 s96, s98, s{sTag}\ns_cmp_lt_u32 s96, {OPT['padto']}\ns_cbranch_scc1 G_pad")
    if "dbg" in OPT:
        n = nstamp[0]
        a(f"s_memrealtime s[98:99]\ns_waitcnt lgkmcnt(0)\ns_lshl2_add_u32 s96, s2, s{sW}\ns_cmp_lg_u32 s96, {4*int(OPT['dbg'])}\ns_cbranch_scc1 G_nodbg\ns_mov_b64 exec, 1")
        for i in range(1, n):
            a(f"s_sub_u32 s96, s{60+2*i}, s60\nv_mov_b32 v{vT}, s96\nbuffer_store_dword v{vT}, off, {DBG}, 0 offset:{4+4*i}")
        a(f"s_sub_u32 s96, s98, s{sTag}\nv_mov_b32 v{vT}, s96\nbuffer_store_dword v{vT}, off, {DBG}, 0 offset:60")
        a("G_nodbg:")
    stamp_flush(WS, f"s{sW}", vT, 256)
    a("s_endpgm")
    tag_slow("G", sTag, 24, [64, 192], vNon, sCnt)
    a.raw(f"""G_stslow:
{retry_mark(4)}  s_add_u32 s{sCnt}, s{sCnt}, 1
  s_cmp_ge_u32 s{sCnt}, {SPIN}
  s_cbranch_scc1 G_stok
  buffer_load_dwordx4 {vr(vSt,4)}, v{vSa}, {WS}, s{sO} offen sc1
  s_waitcnt vmcnt(0)
  s_branch G_stchk
G_hslow:
  s_cmp_ge_u32 s{sCnt}, {SPIN}
  s_cbranch_scc1 G_hok
  buffer_load_dwordx2 {vr(vP,2)}, v{vF}, {WS}, s{sRet} offen sc1
  s_waitcnt vmcnt(0)
  s_branch G_hchk
G_yslow:
  s_mov_b32 s{sCnt}, 0
G_yloop:
{retry_mark(8)}  buffer_load_dwordx2 {vr(vP,2)}, v12, {WS}, s{sHS} offen sc1
  s_add_u32 s{sCnt}, s{sCnt}, 1
  s_waitcnt vmcnt(0)
  v_cmp_ne_u64 vcc, {sr(sTag,2)}, {vr(vP,2)}
  s_cmp_lt_u32 s{sCnt}, {1 if "nossm" in OPT else SPIN}
  s_cselect_b64 vcc, vcc, 0
  s_cbranch_vccnz G_yloop""")
    y_loads(lambda t: a.raw("  " + t))
    a.raw("  s_waitcnt vmcnt(0)\n  s_branch G_yok")
    a.vm = []; a.lg = []

def ssm_role():
    DBG, WS = "s[8:11]", "s[12:15]"
    sQ, sW, sE, sPar, sT, sT2, sCnt, sB1, sMask = 3, 32, 5, 6, 7, 34, 35, 40, 41
    sLdt, sD, sTag, sU, sXcc = 42, 43, 36, 38, 4
    sMean, sNeg = 44, 48
    vL, LX, LF, vC, LG = 1, 2, 10, 30, 26
    vPar = 44
    vT, vT2, vT3, vT4 = 54, 55, 56, 57
    vNon, vL16, vTab = 52, 60, 61
    SB = 98304
    CB0, UB0, USZ, K0A, FLG, TAB, TSZ, SROW = SB, SB + 33280, 4576, SB + 42432, SB + 42448, SB + 49152, 4096, 1056
    a.hist = []; a.vm = []; a.lg = []
    a(f"""
    s_load_dwordx16 s[16:31], s[0:1], 0
    s_load_dwordx2 s[8:9], s[0:1], 104
    s_load_dwordx2 s[52:53], s[0:1], 64
    s_load_dwordx2 s[92:93], s[0:1], 88
    s_load_dwordx2 s[88:89], s[0:1], 80
    s_load_dwordx2 s[12:13], s[0:1], 112
    s_memrealtime {sr(sTag,2)}
    s_setprio 3
    s_sub_u32 s{sW}, s{sW}, 4
    v_and_b32 v{vL}, 63, v0
    v_and_b32 v{vT}, 255, v0
    s_lshl_b32 s{sT}, s{sQ}, 9
    v_lshl_add_u32 v{vT3}, v{vT}, 1, s{sT}
    s_lshl2_add_u32 s{sT2}, s{sQ}, s{sW}
    s_lshl_b32 s{sT2}, s{sT2}, 11
    v_lshlrev_b32 v{vL16}, 4, v{vL}
    v_lshl_add_u32 v{vT4}, v{vL}, 6, s{sT2}
    s_lshl_b32 s{sT}, s{sQ}, 2
    """)
    srd(8, 256)
    a("s_waitcnt lgkmcnt(0)")
    if STAMPS: a(f"s_mov_b32 s100, s{sTag}\ns_mov_b32 s97, 0")
    stamp()
    a(f"""
    s_or_b32 s{sTag}, s{sTag}, 1
    v_mov_b32 v{vNon}, s{sTag}
    v_mov_b32 v{vNon+1}, s{sTag+1}
    buffer_store_dwordx2 {vr(vNon,2)}, v{vT4}, {DBG}, 0 offen sc1
    """)
    for k in range(6):
        a(f"global_load_ushort v{vPar+k}, v{vT3}, s[{18+2*k}:{19+2*k}]", "par")
    a(f"s_load_dword s{sLdt}, s[30:31], s{sT}\ns_load_dword s{sD}, s[52:53], s{sT}\ns_setprio 0\ns_branch L_ssm")
    keep = (list(a.vm), nstamp[0])
    yield
    a.hist = []; a.lg = []; a.vm = keep[0]; nstamp[0] = keep[1]
    X, W1 = "s[16:19]", "s[88:91]"
    vXo, vWo = 2, 6
    sLA, sLB, sXB, sWB, sC, sCx, sTx, sTw = 20, 21, 22, 23, 24, 25, 26, 27
    srd(16, 2048 * 1024); srd(88, 512 * 2752)
    a(f"""
    v_lshrrev_b32 v{vT}, 3, v{vL}
    v_lshlrev_b32 v{vT}, 10, v{vT}
    v_lshrrev_b32 v{vT2}, 4, v{vL}
    v_xor_b32 v{vT2}, v{vT2}, v{vL}
    v_and_b32 v{vT2}, 7, v{vT2}
    v_lshl_add_u32 v{vXo}, v{vT2}, 4, v{vT}
    v_xor_b32 v{vXo+1}, 64, v{vXo}
    v_add_u32 v{vXo+2}, {2*7168}, v{vXo}
    v_add_u32 v{vXo+3}, {3*7168}, v{vXo+1}
    v_add_u32 v{vXo+1}, 7168, v{vXo+1}
    s_movk_i32 s{sTx}, 5462
    s_movk_i32 s{sTw}, {2752-192}
    v_mul_u32_u24 v{vT}, s{sTx}, v{vL}
    """)
    for j in range(3):
        if j: a(f"v_add_u32 v{vT}, {64*5462}, v{vT}")
        a(f"v_lshrrev_b32 v{vT2}, 16, v{vT}\nv_mad_u32_u24 v{vWo+j}, v{vT2}, s{sTw}, v{vL16}")
    a(f"""
    s_bfe_u32 s{sXB}, s2, 0x20001
    s_bfe_u32 s{sC}, s2, 0x20003
    s_lshl2_add_u32 s{sXB}, s{sXB}, s{sC}
    s_lshl2_add_u32 s{sXB}, s{sXB}, s{sW}
    s_lshl_b32 s{sXB}, s{sXB}, 15
    s_and_b32 s{sC}, s2, 1
    s_bfe_u32 s{sCx}, s2, 0x30005
    s_lshl3_add_u32 s{sC}, s{sC}, s{sCx}
    s_mul_i32 s{sWB}, s{sC}, 192
    s_mul_i32 s{sTx}, s{sW}, {16*2752}
    s_add_u32 s{sWB}, s{sWB}, s{sTx}
    s_cmp_eq_u32 s{sC}, 15
    s_cselect_b32 s{sXB}, {"s%d" % sCx if int(OPT.get('ip', 0)) else 0x40000000}, s{sXB}
    s_cselect_b32 s{sWB}, {"s%d" % sLB if int(OPT.get('ip', 0)) > 1 else 0x40000000}, s{sWB}
    s_add_u32 s{sCx}, s{sC}, 1
    s_and_b32 s{sCx}, s{sCx}, 7
    s_add_u32 s{sC}, s{sC}, 2
    s_and_b32 s{sC}, s{sC}, 7
    s_lshl_b32 s{sLA}, s{sW}, 12
    s_mul_i32 s{sLB}, s{sW}, 3072
    s_add_u32 s{sLB}, s{sLB}, 49152
    """)
    def w_ops(c):
        ops = []
        for j in range(3):
            def f(j=j):
                if j == 0:
                    a(f"s_mul_i32 s{sTw}, s{sC}, {64*2752}\ns_add_u32 m0, s{sLB}, {(c&3)*12288}\ns_add_u32 s{sTw}, s{sTw}, s{sWB}")
                a(f"buffer_load_dwordx4 v{vWo+j}, {W1}, s{sTw} offen offset:{j*1024} lds", f"C{c}")
                if j == 0: a(f"s_add_u32 s{sC}, s{sC}, 1\ns_and_b32 s{sC}, s{sC}, 7")
            ops.append(f)
        return ops
    def x_ops(c):
        ops = []
        for pc in range(4):
            def f(pc=pc):
                if pc == 0:
                    a(f"s_lshl_b32 s{sTx}, s{sCx}, 7\ns_add_u32 m0, s{sLA}, {(c%3)*16384}\ns_add_u32 s{sTx}, s{sTx}, s{sXB}")
                a(f"buffer_load_dwordx4 v{vXo+pc}, {X}, s{sTx} offen offset:{pc*1024} lds", f"C{c}")
                if pc == 0: a(f"s_add_u32 s{sCx}, s{sCx}, 1\ns_and_b32 s{sCx}, s{sCx}, 7")
            ops.append(f)
        return ops
    DQ = x_ops(1) + w_ops(2) + x_ops(2) + w_ops(3)
    def dma(n=1):
        for _ in range(n):
            if DQ: DQ.pop(0)()
    dma(int(OPT.get("n0", 0)))
    srd(12, WS_SIZE)
    vOA, vOG, vPb = 50, 51, 59
    a(f"""
    s_lshr_b32 s{sE}, s{sW}, 1
    s_and_b32 s{sPar}, s{sW}, 1
    s_mov_b32 s{sMask}, 0xffff0000
    s_mul_i32 s{sT2}, s{sE}, {USZ}
    s_add_u32 s{sT2}, s{sT2}, {UB0}
    v_lshl_add_u32 v{vT}, v{vL}, 3, s{sT2}
    v_mov_b32 v{vT3}, 0
    v_mov_b32 v{vT4}, 0
    ds_write_b64 v{vT}, {vr(vT3,2)}
    s_lshl2_add_u32 s{sT2}, s{sW}, {FLG}
    v_mov_b32 v58, s{sT2}
    ds_write_b32 v58, v{vT3}
    ds_write_b32 v58, v{vT3} offset:16
    s_lshl_b32 s{sT2}, s{sW}, 12
    s_add_u32 s{sT2}, s{sT2}, {TAB}
    v_add_u32 v{vTab}, s{sT2}, v{vL16}
    v_lshrrev_b32 v{vT}, 4, v{vL}
    v_lshl_add_u32 v{vPb}, v{vT}, 6, s{sT2}
    v_and_b32 v{vT}, 15, v{vL}
    v_lshlrev_b32 v{vOG}, 3, v{vT}
    v_lshlrev_b32 v{vT2}, 2, v{vT}
    v_add_u32 v{vT2}, {512-36}, v{vT2}
    v_cmp_lt_u32 vcc, 8, v{vT}
    v_add_u32 v{vT3}, {1024-96}, v{vOG}
    v_add_u32 v{vT4}, {1536-112}, v{vOG}
    v_cndmask_b32 v{vOA}, v{vT}, v{vT2}, vcc
    v_cmp_lt_u32 vcc, 11, v{vT}
    v_cmp_lt_u32 s[56:57], 13, v{vT}
    v_cvt_f32_u32 v{vOG}, v{vOG}
    v_cndmask_b32 v{vOA}, v{vOA}, v{vT3}, vcc
    v_cndmask_b32 v{vOA}, v{vOA}, v{vT4}, s[56:57]
    v_cvt_f32_u32 v{vOA}, v{vOA}
    """)
    def k_mfma(s_):
        F = 152 + 16 * (s_ & 1)
        for hh in range(2):
            for gt in range(2):
                d = 200 + 8 * hh + 4 * gt
                a(f"v_mfma_f32_16x16x32_bf16 {vr(d,4)}, {vr(F+4*hh,4)}, {vr(F+8+4*gt,4)}, {'0' if s_ == 0 else vr(d,4)}")
    UG = int(OPT.get("ug", 7))
    SP = OPT.get("sprio", 0)
    vUg, vUw, vU, sG = 30, 31, 232, 54
    def u_addr():
        a(f"""
        v_lshrrev_b32 v{vT3}, 2, v{vL}
        v_bfe_u32 v{vT4}, v{vL}, 1, 1
        v_and_b32 v{vT2}, 1, v{vL}
        v_mul_u32_u24 v{vUg}, {GS}, v{vT3}
        v_lshl_add_u32 v{vUg}, v{vT4}, 6, v{vUg}
        v_lshl_add_u32 v{vUg}, v{vT2}, 4, v{vUg}
        v_mul_u32_u24 v{vUw}, {USZ}, v{vT2}
        v_lshl_add_u32 v{vUw}, v{vT3}, 4, v{vUw}
        v_lshl_add_u32 v{vUw}, v{vT4}, 3, v{vUw}
        s_lshl_b32 s{sT}, s{sW}, 10
        s_add_u32 s{sT}, s{sT}, {UB0+480}
        v_add_u32 v{vUw}, s{sT}, v{vUw}
        s_mul_i32 s{sG}, s{sW}, {64*GS}
        s_lshr_b32 s{sT}, s{sQ}, 1
        s_lshl_b32 s{sT}, s{sT}, 7
        s_add_u32 s{sG}, s{sG}, s{sT}
        s_and_b32 s{sT}, s{sQ}, 1
        s_lshl_b32 s{sT}, s{sT}, 5
        s_add_u32 s{sG}, s{sG}, s{sT}
        s_add_u32 s{sG}, s{sG}, {XNP}
        """)
    def u_loads(emit, ks=range(4)):
        emit("s_setprio 3")
        for k in ks:
            emit(f"s_add_u32 s{sG+1}, s{sG}, {k*16*GS}")
            emit(f"buffer_load_dwordx4 {vr(vU+4*k,4)}, v{vUg}, {WS}, s{sG+1} offen sc1 {OPT.get('uf', '')}")
        emit(f"s_setprio {SP}")
    W2 = "s[92:95]"
    vW2o, vTp, sW2, sTp = 62, 63, 28, 29
    vXw, vXr_, vK, vZ, vAa, vBa, vUa, vBp, vPr, vK0, vCb = 32, 33, 34, 35, 36, 37, 38, 39, 40, 41, 42
    def late_addr():
        u_addr()
        srd(92, 1376 * 1024)
        a(f"""
        v_lshrrev_b32 v{vT}, 3, v{vL}
        v_lshlrev_b32 v{vT}, 10, v{vT}
        v_bfe_u32 v{vT2}, v{vL}, 4, 1
        v_lshlrev_b32 v{vT3}, 2, v{vT2}
        v_xor_b32 v{vT3}, v{vT3}, v{vL}
        v_and_b32 v{vT3}, 7, v{vT3}
        v_lshl_add_u32 v{vW2o}, v{vT3}, 4, v{vT}
        v_min_u32 v{vTp}, {23 if M2_42 else 47}, v{vL}
        v_lshrrev_b32 v{vT}, {2 if M2_42 else 3}, v{vTp}
        v_and_b32 v{vTp}, {3 if M2_42 else 7}, v{vTp}
        v_lshlrev_b32 v{vTp}, 7, v{vTp}
        v_lshl_add_u32 v{vTp}, v{vT}, 10, v{vTp}
        s_mul_i32 s{sW2}, s{sW}, {352*1024}
        s_and_b32 s{sTp}, s{sQ}, 31
        s_mul_i32 s30, s{sTp}, 5120
        s_mulk_i32 s{sTp}, 6144
        s_add_u32 s{sTp}, s{sTp}, s{sW2}
        s_add_u32 s30, s30, s{sW2}
        s_add_u32 s30, s30, {192*1024}
        s_and_b32 s{sT}, s2, {1 if M2_42 else 0}
        s_lshl_b32 s{sT2}, s{sT}, 9
        s_add_u32 s{sTp}, s{sTp}, s{sT2}
        s_add_u32 s30, s30, s{sT2}
        s_bfe_u32 s{sT2}, s2, {"0x20006" if M2_42 else "0x30005"}
        s_lshl2_add_u32 s{sT}, s{sT}, s{sT2}
        s_lshl_b32 s{sT}, s{sT}, 7
        s_add_u32 s{sW2}, s{sW2}, s{sT}
        """)
        a(f"""
        v_lshrrev_b32 v{vT2}, 4, v{vL}
        v_and_b32 v{vT3}, 15, v{vL}
        s_lshl_b32 s{sT2}, s{sW}, 12
        s_add_u32 s{sT2}, s{sT2}, {TAB}
        v_lshl_add_u32 v{vXw}, v{vT3}, 4, s{sT2}
        v_lshl_add_u32 v{vXw}, v{vT2}, 10, v{vXw}
        s_lshl_b32 s{sT}, s{sE}, 13
        s_add_u32 s{sT}, s{sT}, {TAB}
        v_add_u32 v{vXr_}, s{sT}, v{vL16}
        s_xor_b32 s{sT2}, s{sT2}, 4096
        v_add_u32 v{vPr}, s{sT2}, v{vL16}
        v_xor_b32 v27, 4, v58
        s_mul_i32 s{sT}, s{sE}, {USZ}
        s_add_u32 s{sT}, s{sT}, {UB0+256}
        s_lshl_b32 s{sT2}, s{sPar}, 8
        v_lshl_add_u32 v{vBa}, v{vT3}, 5, s{sT}
        v_lshl_add_u32 v{vUa}, v{vT2}, 3, v{vBa}
        v_lshlrev_b32 v{vT3}, 4, v{vT2}
        v_add_u32 v{vBa}, v{vT3}, v{vBa}
        v_subrev_u32 v{vBa}, s{sT2}, v{vBa}
        v_bfe_u32 v{vT2}, v{vL}, 2, 2
        v_sub_u32 v{vT4}, 0, v{vT2}
        v_and_b32 v{vT4}, 3, v{vT4}
        v_mul_u32_u24 v{vAa}, 4160, v{vT4}
        v_min_u32 v{vT2}, 1, v{vT2}
        v_lshlrev_b32 v{vT2}, 3, v{vT2}
        v_sub_u32 v{vAa}, v{vAa}, v{vT2}
        v_sub_u32 v{vAa}, v{vAa}, v{vT3}
        v_and_b32 v{vT2}, 3, v{vL}
        v_lshl_add_u32 v{vAa}, v{vT2}, 3, v{vAa}
        s_mul_i32 s{sT}, s{sE}, 16640
        s_add_u32 s{sT}, s{sT}, {CB0}
        v_mov_b32 v{vCb}, s{sT}
        s_add_u32 s{sT2}, s{sT2}, s{sT}
        s_add_u32 s{sT2}, s{sT2}, {32+32-8}
        v_add_u32 v{vAa}, s{sT2}, v{vAa}
        s_lshl_b32 s{sT2}, s{sPar}, 11
        s_add_u32 s{sT2}, s{sT2}, s{sT}
        s_add_u32 s{sT2}, s{sT2}, 32
        v_add_u32 v{vK}, s{sT2}, v{vL16}
        v_and_b32 v{vT2}, 15, v{vL}
        v_lshl_add_u32 v{vBp}, v{vT2}, 5, s{sT2}
        v_lshrrev_b32 v{vT2}, 4, v{vL}
        v_lshl_add_u32 v{vBp}, v{vT2}, 3, v{vBp}
        v_bfe_u32 v{vZ}, v{vL}, 3, 2
        v_mul_u32_u24 v{vZ}, 4160, v{vZ}
        v_and_b32 v{vT4}, 7, v{vL}
        v_lshl_add_u32 v{vZ}, v{vT4}, 2, v{vZ}
        v_add_u32 v{vZ}, s{sT}, v{vZ}
        s_lshl2_add_u32 s{sT}, s{sE}, {K0A}
        v_mov_b32 v{vK0}, s{sT}
        v_and_b32 v{vT4}, 1, v{vL}
        v_cmp_eq_u32 s[58:59], 1, v{vT4}
        v_cmp_le_u32 s[56:57], 32, v{vL}
        """)
    if "la0" in OPT: late_addr()
    def piece(p):
        rg, off = SHARED['LOC'][p]
        a(f"s_add_u32 m0, s{sLA if rg == 'A' else sLB}, {off}\ns_add_u32 s44, s{sW2}, {8192*p}")
        a(f"buffer_load_dwordx4 v{vW2o}, {W2}, s44 offen lds", "P")
    pn = [0]
    PE = int(OPT.get("pe", 0))
    def pieces(n):
        while pn[0] < n: piece(pn[0]); pn[0] += 1
    def touch(half):
        if half: a(f"v_min_u32 v{vTp}, {4096+384 if M2_42 else 39*128}, v{vTp}")
        a(f"buffer_load_dword v29, v{vTp}, {W2}, s{sTp+half} offen", "tp")
    TP0, TP1 = int(OPT.get("tp0", 6)), int(OPT.get("tp1", 8))
    PR, PB, FR, KT, KA = 64, 72, 152, 200, 216
    a("s_waitcnt lgkmcnt(0)")
    a.lg = []
    assert int(OPT.get("nkb", 8)) in (7, 8)
    BP = int(OPT.get("bp", 420))
    NKB = int(OPT.get("nkb", 8))
    a.metro = ([int(OPT.get("bb0", 700)), int(OPT.get("b01", 350))] + [int(OPT.get("bq", 400))] * 3 + [BP] * 3 + [BP // 2, 3 * BP // 4])[:NKB]
    a.cost = 0
    uq = list(range(4))
    def on_bar(left):
        nb = NKB - 1 - left
        if nb in (0, 2, 5): stamp()
        if nb == 0: a(f"s_setprio {SP}")
        if nb == TP0: touch(0)
        if nb == TP1: touch(1)
        if nb >= 6: pieces(min(PE, {6: 4, 7: 11}.get(nb, 15)))
        if nb >= UG:
            for _ in range(int(OPT.get("un", 4))):
                if uq: u_loads(lambda t: a(t, "u"), [uq.pop(0)])
    a.on_bar = on_bar
    def pre_bar(left):
        nb = NKB - 1 - left
        if nb >= int(OPT.get("dfl", 1)): dma(99)
        a.wait(vm=f"C{nb}")
    a.pre_bar = pre_bar
    if 'la0' in OPT: a.on_gap = dma
    a.gap_len = int(OPT.get("dg", 32))
    a(f"""
    s_lshl_b32 s{sT}, s{sLdt}, 16
    s_and_b32 s{sT2}, s{sLdt}, s{sMask}
    s_cmp_eq_u32 s{sE}, 0
    s_cselect_b32 s{sT}, s{sT}, s{sT2}
    v_mov_b32 v{vT}, {LOG2E:#x}
    v_mul_f32 v{vT}, s{sT}, v{vT}
    v_exp_f32 v{vT}, v{vT}
    """)
    a.wait(vm="par")
    stamp()
    for k in range(6): a(f"v_lshlrev_b32 v{vPar+k}, 16, v{vPar+k}")
    TM = 136
    a(f"""
    v_cvt_pk_bf16_f32 v{vT}, v{vT}, v{vT}
    v_lshlrev_b32 v{vT}, 16, v{vT}
    v_mul_f32 v{PR}, v{vPar}, v{vT}
    v_mul_f32 v{PR+1}, v{vPar+1}, v{vT}
    v_mul_f32 v{vPar+2}, v{vPar+2}, v{vT}
    v_mul_f32 v{vPar+3}, v{vPar+3}, v{vT}
    v_mul_f32 v{PR}, {LOG2E:#x}, v{PR}
    v_mul_f32 v{PR+1}, 0.15915494, v{PR+1}
    v_rndne_f32 v{vT}, v{PR+1}
    v_sub_f32 v{PR+1}, v{PR+1}, v{vT}
    """)
    cmul(PR + 2, vPar + 4, vPar + 2)
    for i, l in enumerate((128, 256)):
        a(f"v_mul_f32 v{TM+4*i}, {fl(l)}, v{PR}\nv_mul_f32 v{TM+4*i+1}, {fl(l)}, v{PR+1}")
    for i in range(2): a(f"v_fract_f32 v{TM+4*i+1}, v{TM+4*i+1}\nv_exp_f32 v{TM+4*i}, v{TM+4*i}")
    for i in range(2): a(f"v_cos_f32 v{TM+4*i+2}, v{TM+4*i+1}\nv_sin_f32 v{TM+4*i+3}, v{TM+4*i+1}")
    a(f"ds_write_b128 v{vTab}, {vr(PR,4)}", "pw")
    a(f"""
    v_mul_f32 v{TM+2}, v{TM+2}, v{TM}
    v_mul_f32 v{TM+3}, v{TM+3}, v{TM}
    v_mul_f32 v{PR+6}, v{TM+6}, v{TM+4}
    v_mul_f32_e64 v{PR+7}, -v{TM+7}, v{TM+4}
    """)
    cmul(PR + 4, PR + 2, TM + 2)
    a(f"ds_write_b128 v{vTab}, {vr(PR+4,4)} offset:1024", "pw")
    def p_reads(s_):
        for j in range(4):
            for k in range(2):
                a(f"ds_read_b128 {vr(PB+32*(s_&1)+8*j+4*k,4)}, v{vPb} offset:{256*s_+16*j+1024*k}", f"pb{s_}")
    p_reads(0)
    a.on_gap = dma
    if "la0" not in OPT: late_addr()
    for s_ in range(4):
        if s_ < 3: p_reads(s_ + 1)
        a.wait(lg=f"pb{s_}")
        if s_ == 3: a(f"s_load_dwordx2 {sr(sTag,2)}, s[8:9], 128")
        F = FR + 16 * (s_ & 1)
        for jp in range(2):
            js = (2 * jp, 2 * jp + 1)
            P = lambda j: PB + 32 * (s_ & 1) + 8 * j
            T = lambda j, w_: TM + 8 * (j & 1) + 4 * w_
            for j in js:
                for w_, o in enumerate((vOA, vOG)):
                    a(f"v_mul_f32 v{T(j,w_)}, v{P(j)}, v{o}\nv_mul_f32 v{T(j,w_)+1}, v{P(j)+1}, v{o}")
            for j in js:
                a(f"v_fract_f32 v{T(j,0)+1}, v{T(j,0)+1}")
                for w_ in range(2): a(f"v_exp_f32 v{T(j,w_)}, v{T(j,w_)}")
            for j in js:
                for w_ in range(2):
                    a(f"v_cos_f32 v{T(j,w_)+2}, v{T(j,w_)+1}\nv_sin_f32 v{T(j,w_)+3}, v{T(j,w_)+1}")
            for j in js:
                a(f"v_mul_f32 v{T(j,0)+2}, v{T(j,0)+2}, v{T(j,0)}\nv_mul_f32_e64 v{T(j,0)+3}, -v{T(j,0)+3}, v{T(j,0)}")
                a(f"v_mul_f32 v{T(j,1)+2}, v{T(j,1)+2}, v{T(j,1)}\nv_mul_f32 v{T(j,1)+3}, v{T(j,1)+3}, v{T(j,1)}")
            for j in js:
                a(f"v_cvt_pk_bf16_f32 v{F+j}, v{T(j,0)+2}, v{T(j,0)+3}")
                cmul(T(j, 0), T(j, 0) + 2, P(j) + 6)
                cmul(T(j, 1), T(j, 1) + 2, P(j) + 2)
                a(f"v_cvt_pk_bf16_f32 v{F+4+j}, v{T(j,0)}, v{T(j,0)+1}")
                cmul(T(j, 0) + 2, T(j, 1) + 2, P(j) + 4)
                a(f"v_cvt_pk_bf16_f32 v{F+8+j}, v{T(j,1)}, v{T(j,1)+1}")
                a(f"v_cvt_pk_bf16_f32 v{F+12+j}, v{T(j,0)+2}, v{T(j,0)+3}")
            if jp == 0 and s_ > 0: k_mfma(s_ - 1)
    k_mfma(3)
    sys.stderr.write(f"metronome left {a.metro} cost {a.cost}\n")
    SW = int(OPT.get("sw", 0))
    while a.metro: a.tick()
    a.metro = None
    stamp()
    a(f"s_setprio {OPT.get('xprio', 0)}")
    for t in range(4): a(f"ds_write_b128 v{vXw}, {vr(KT+4*t,4)} offset:{256*t}")
    if NKB == 10: a("ds_write_b32 v58, v58 offset:16")
    a(f"s_waitcnt lgkmcnt(0)\ns_cmp_eq_u32 s{sTag}, 0\ns_cbranch_scc1 S_tagslow\nS_tagok:")
    stamp()
    if NKB < 10:
        a("s_barrier")
        pieces(min(PE, {6: 4, 7: 11}.get(NKB, 15)))
        if TP1 == NKB: touch(1)
        if SW:
            assert NKB == 8
            pieces(SW)
            a(f"s_barrier\ns_setprio {OPT.get('xp2', 3)}")
    else:
        a("""
        S_xw:
        ds_read_b32 v28, v27 offset:16
        s_waitcnt lgkmcnt(0)
        v_readfirstlane_b32 s44, v28
        s_cmp_eq_u32 s44, 0
        s_cbranch_scc1 S_xw
        """)
    stamp()
    NREST = max(0, 10 - NKB - 2)
    a(f"s_cmp_lg_u32 s{sPar}, 0\ns_cbranch_scc1 S_par1")
    KP = 64
    PK = 88
    K = lambda i: KA + i
    cnt = [0]
    CBAR = [int(x) for x in OPT.get('cbar', '2,5,6,7').split(',')]
    def packs(run, k):
        for cp in range(4):
            for j in range(4): a(f"v_cvt_pk_bf16_f32 v{PK+16*run+4*cp+j}, v{k[cp+2*j]}, v{k[cp+2*j+1]}")
            if cnt[0] in CBAR[:NREST]: a("s_barrier")
            cnt[0] += 1
            a(f"ds_write_b128 v{vK}, {vr(PK+16*run+4*cp,4)} offset:{4160*cp+1024*run}")
            if SW: pieces(min(24, pn[0] + int(OPT.get("swi", 2))))
    hist0 = list(a.hist); pn0 = pn[0]; vm0 = list(a.vm)
    for q in range(3):
        a(f"ds_read_b128 {vr(KA+4*q,4)}, v{vXr_} offset:{1024*q}\nds_read_b128 {vr(KP+4*q,4)}, v{vXr_} offset:{TSZ+1024*q}")
    a(f"""
    v_mov_b32 v{vT4}, 0
    ds_write_b32 v{vZ}, v{vT4}
    s_waitcnt lgkmcnt(1)
    """)
    for j in range(12): a(f"v_add_f32 v{KA+j}, v{KA+j}, v{KP+j}")
    a(f"""
    v_cndmask_b32 v{K(1)}, v{K(1)}, v{K(0)}, s[56:57]
    v_cndmask_b32 v{K(3)}, v{K(3)}, v{K(4)}, s[56:57]
    v_cndmask_b32 v{K(5)}, v{K(5)}, v{K(4)}, s[56:57]
    v_cndmask_b32 v{K(7)}, v{K(7)}, v{K(8)}, s[56:57]
    v_mov_b32 v{K(12)}, v{K(8)}
    v_mov_b32 v{K(13)}, v{K(8)}
    s_mov_b64 exec, 1
    ds_write_b32 v{vK0}, v{K(0)}
    v_mov_b32 v{K(0)}, 0
    s_mov_b64 exec, -1
    v_mov_b32_dpp v{K(12)}, v{K(1)} wave_shl:1 row_mask:0xf bank_mask:0xf
    v_mov_b32_dpp v{K(13)}, v{K(2)} wave_shl:1 row_mask:0xf bank_mask:0xf
    """)
    packs(1, [K(9)] * 3 + [K(10)] * 3 + [K(11)] * 5)
    packs(0, [K(i) for i in range(9)] + [K(12), K(13)])
    a(f"""
    s_mov_b64 exec, 1
    ds_write_b32 v{vCb}, v{PK} offset:{2*4160+28}
    ds_write_b32 v{vCb}, v{PK+4} offset:{3*4160+28}
    s_mov_b64 exec, -1
    s_branch S_parj
    S_par1:
    """)
    a.hist = hist0; cnt[0] = 0; pn[0] = pn0; a.vm = vm0
    a(f"ds_read_b128 {vr(KA+12,4)}, v{vXr_} offset:3072\nds_read_b128 {vr(KP,4)}, v{vXr_} offset:{TSZ+3072}\ns_waitcnt lgkmcnt(0)")
    for j in range(4): a(f"v_add_f32 v{KA+12+j}, v{KA+12+j}, v{KP+j}")
    a(f"v_cndmask_b32 v{K(0)}, v{K(12)}, v{K(13)}, s[58:59]\nv_cndmask_b32 v{K(1)}, v{K(14)}, v{K(15)}, s[58:59]")
    packs(0, [K(12)] * 4 + [K(0)] + [K(13)] * 6)
    packs(1, [K(14)] * 4 + [K(1)] + [K(15)] * 6)
    a("S_parj:")
    a.lg = []
    a(f"""
    s_lshl_b32 s{sT}, s{sD}, 16
    s_and_b32 s{sT2}, s{sD}, s{sMask}
    s_cmp_eq_u32 s{sE}, 0
    s_cselect_b32 s{sD}, s{sT}, s{sT2}
    s_lshl1_add_u32 s{sT}, s{sQ}, s{sE}
    s_mul_i32 s{sT}, s{sT}, {GC}
    s_add_u32 s{sT}, s{sT}, {Y2}
    s_lshl_b32 s{sT2}, s{sPar}, 9
    s_add_u32 s{sT}, s{sT}, s{sT2}
    s_lshl_b32 s{sT2}, s{sPar}, 10
    s_sub_u32 s{sT2}, 1024, s{sT2}
    v_lshrrev_b32 v{vT}, 5, v{vL}
    v_mad_u32_u24 v{vT}, v{vT}, s{sT2}, v{vL16}
    s_lshl2_add_u32 s{sT2}, s{sQ}, s{sW}
    s_lshl_b32 s{sT2}, s{sT2}, 7
    s_add_u32 s{sT2}, s{sT2}, {FY}
    v_mov_b32 v{vT3}, s{sTag}
    v_mov_b32 v{vT4}, s{sTag+1}
    s_mov_b32 s{sCnt}, 0
    """)
    AS, BS, YA, OV, UU, KD = [64, 128], [96, 160], 192, 10, 2, 26
    stamp()
    CE = "ce" in OPT
    C2 = "c2" in OPT
    if not CE:
        if not SW: a("s_barrier")
        while uq: u_loads(lambda t: a(t, "u"), [uq.pop(0)])
        if TP1 == 9: touch(1)
        if TP1 > 9: pieces(TP1); touch(1)
        if "gp" not in OPT: pieces(int(OPT["c2"]) if C2 else 24)
    assert not uq
    a.wait(vm="u")
    a("S_uchk:")
    a(f"v_cmp_ne_u64 vcc, {sr(sTag,2)}, {vr(vU+2,2)}")
    for k in range(1, 4): a(f"v_cmp_ne_u64 s[{42+2*k}:{43+2*k}], {sr(sTag,2)}, {vr(vU+4*k+2,2)}")
    for k in range(1, 4): a(f"s_or_b64 vcc, vcc, s[{42+2*k}:{43+2*k}]")
    a(f"s_cbranch_vccnz S_uslow\nS_uok:\ns_mov_b32 s{sCnt}, 0")
    stamp()
    for k in range(4): a(f"ds_write_b64 v{vUw}, {vr(vU+4*k,2)} offset:{256*k}")
    if not C2:
        a.wait(vm="P", lg=0)
        a(f"s_setprio {OPT.get('cprio', 1)}\ns_barrier")
    else:
        a(f"""
        ds_write_b32 v58, v58 offset:16
        v_mov_b32 v{vT2}, {FLG}
        S_m4:
        ds_read_b128 v[44:47], v{vT2} offset:16
        s_waitcnt lgkmcnt(0)
        v_min_u32 v44, v44, v45
        v_min3_u32 v44, v44, v46, v47
        v_cmp_eq_u32 vcc, 0, v44
        s_cbranch_vccnz S_m4
        """)
        CE = True
    a.lg = []
    if CE and not C2: pieces(int(OPT.get("npre", 8)))
    PG, CBI = int(OPT.get("pg", 3)), int(OPT.get("cbi", 90))
    stamp()
    def reads(rho):
        s_ = rho & 1; L = []
        for j in range(8):
            L.append((f"ds_read_b128 {vr(BS[s_]+4*j,4)}, v{vBa} offset:{512*j+64*(3-rho)}", f"f{rho}_{j}"))
            L.append((f"ds_read_b64_tr_b16 {vr(AS[s_]+4*j,2)}, v{vAa} offset:{64*(8*j+rho)+8}", f"f{rho}_{j}"))
            L.append((f"ds_read_b64_tr_b16 {vr(AS[s_]+4*j+2,2)}, v{vAa} offset:{64*(8*j+rho)}", f"f{rho}_{j}"))
        return L
    for t, tag in reads(0): a(t, tag)
    first = [True] * 8
    def cm(rho, p, q):
        a.wait(lg=f"f{rho}_{max(p,q)}")
        ct = p + q; s_ = rho & 1
        a(f"v_mfma_f32_16x16x32_bf16 {vr(YA+4*ct,4)}, {vr(AS[s_]+4*p,4)}, {vr(BS[s_]+4*q,4)}, {'0' if first[ct] else vr(YA+4*ct,4)}")
        first[ct] = False
    for rho in range(3):
        if rho == int(OPT.get("cp3", 0)): a("s_setprio 3")
        nxt = reads(rho + 1)
        for n, (p, q) in enumerate(sorted([(p, q) for p in range(8) for q in range(8) if p + q <= 7], key=lambda x: max(x))):
            cm(rho, p, q)
            if n >= (int(OPT.get('cn0', 8)) if rho == 0 else int(OPT.get('cn', 8))) and nxt:
                t, tag = nxt.pop(0); a(t, tag)
            if n == 35 and 'cw' in OPT: a.wait(lg=0)
            if CE:
                g = 36 * rho + n
                if g % PG == 0 and pn[0] < 24: pieces(pn[0] + 1)
                if g == CBI:
                    assert pn[0] == 24
                    a.wait(vm=0)
                    a("s_barrier")
                if (C2 or "pd" in OPT) and g == CBI + int(OPT.get("pd", 12)): a("s_setprio 3")
        assert not nxt
    a(f"s_cmp_lg_u32 s{sPar}, 0\ns_cbranch_scc1 S_conv1")
    keep = (list(a.hist), list(a.lg), nstamp[0])
    ZB, PB_ = 64, 80
    for par, (KEEP, SEND) in enumerate((((0, 3, 4, 7), (1, 2, 5, 6)), ((1, 2, 5, 6), (0, 3, 4, 7)))):
        if par: a("S_conv1:")
        a.hist, a.lg, nstamp[0] = list(keep[0]), list(keep[1]), keep[2]
        side = [lambda: a(f"ds_read_b32 v{KD}, v{vK0}", "uu")]
        side += [lambda k=k, ct=ct: a(f"ds_read_b64 {vr(UU+2*k,2)}, v{vUa} offset:{480-256+512*ct}", "uu") for k, ct in enumerate(KEEP)]
        side += [None] * 5
        side += [lambda: (a.wait(lg="uu"), a(f"v_add_f32 v{KD}, s{sD}, v{KD}"))]
        side += [lambda j=j: a(f"v_lshlrev_b32 v{ZB+2*j}, 16, v{UU+j}\nv_and_b32 v{ZB+2*j+1}, s{sMask}, v{UU+j}") for j in range(8)]
        order = [(p, ct - p) for ct in SEND + KEEP for p in range(ct + 1)]
        ends = {}
        for n, (p, q) in enumerate(order): ends[p + q] = n
        wq = list(SEND)
        for n, (p, q) in enumerate(order):
            cm(3, p, q)
            if wq and n >= ends[wq[0]] + 5:
                ct = wq.pop(0); a(f"ds_write_b128 v{vTab}, {vr(YA+4*ct,4)} offset:{1024*SEND.index(ct)}", "sw")
                if not wq: a(f"ds_write_b32 v58, v58", "sw")
            elif side:
                t = side.pop(0)
                if t: t()
            if n == 31:
                assert not wq and not side
                a("ds_read_b32 v28, v27", "pr")
                for k in range(4): a(f"ds_read_b128 {vr(PB_+4*k,4)}, v{vPr} offset:{1024*k}", "pr")
        stamp()
        a.wait(lg=0)
        a(f"""
        v_cmp_eq_u32 vcc, 0, v28
        s_cbranch_vccz S_pok{par}
        S_pw{par}:
        ds_read_b32 v28, v27
        """)
        for k in range(4): a(f"ds_read_b128 {vr(PB_+4*k,4)}, v{vPr} offset:{1024*k}")
        a(f"""
        s_waitcnt lgkmcnt(0)
        v_cmp_eq_u32 vcc, 0, v28
        s_cbranch_vccnz S_pw{par}
        S_pok{par}:
        """)
        a.lg = []
        for j in range(16): a(f"v_fmac_f32 v{PB_+j}, v{KD}, v{ZB+j}")
        a("s_setprio 3")
        for k, ct in enumerate(KEEP):
            for j in range(4): a(f"v_add_f32 v{PB_+4*k+j}, v{PB_+4*k+j}, v{YA+4*ct+j}")
            for j in range(2): a(f"v_cvt_pk_bf16_f32 v{UU+2*k+j}, v{PB_+4*k+2*j}, v{PB_+4*k+2*j+1}")
            a(f"ds_write_b64 v{vBp}, {vr(UU+2*k,2)} offset:{512*k}")
            if k & 1: a(f"ds_read_b128 {vr(OV+2*(k-1),4)}, v{vK} offset:{512*(k-1)}", f"bp{k}")
        if par == 0: a("s_branch S_done")
    a("S_done:")
    for j in range(2):
        a.wait(lg=f"bp{2*j+1}")
        a(f"buffer_store_dwordx4 {vr(OV+4*j,4)}, v{vT}, {WS}, s{sT} offen offset:{2048*j} sc1")
    a(f"s_mov_b64 exec, 1\ns_waitcnt vmcnt(0)\nbuffer_store_dwordx2 {vr(vT3,2)}, off, {WS}, s{sT2} sc1")
    stamp()
    if STAMPS:
        a("s_waitcnt vmcnt(0)"); stamp()
    if "wb" in OPT:
        a(f"s_lshr_b32 s{sT}, s2, 3\ns_or_b32 s{sT}, s{sT}, s{sW}\ns_cmp_lg_u32 s{sT}, 0\ns_cbranch_scc1 S_nowb\nbuffer_wbl2 sc1\nS_nowb:")
    stamp_flush(WS, f"s{sW}", vT)
    a("s_endpgm")
    tag_slow("S", sTag, 8, [192], vNon, sCnt)
    a.raw(f"""S_uslow:
{retry_mark(4)}  s_add_u32 s{sCnt}, s{sCnt}, 1
  s_cmp_ge_u32 s{sCnt}, {SPIN}
  s_cbranch_scc1 S_uok
  s_sleep 4""")
    u_loads(lambda t: a.raw("  " + t))
    a.raw("  s_waitcnt vmcnt(0)\n  s_branch S_uchk")

hdr = open("cdna_kernels/" + NAME + ".s.ref").read().split("\n")
top = [l for l in hdr if l.startswith(";") and "@launch" not in l][:16]
a.raw("\n".join(top))
a.raw("; @launch grid=(256,1,1) block=(512,1,1) lds=163840")
a.raw(""";
; out = x + conv(K, LN(x)) + LN(x)*Dskip + silu(LN(x) w1) w2, one launch, one 512-thread workgroup per CU.
; removed by a rank-1 MFMA with the column sums of w1, the scale in the SiLU epilogue), then a 64x64 tile of h*w2 with K
; (tap index rounded to bf16 as in the reference), its causal convolution as Toeplitz MFMAs, and part of the tile loads.
; (a clock value read once and published in d_debug).  xn and the row statistics travel as tagged 16-byte granules, h and
; the conv result as plain data behind one flag line per producing wave (stored after that wave's vmcnt(0)); everything
; is written through (sc1) and read with sc1, so no placement is assumed.  Every wait on another workgroup is bounded.""")
a.raw(f""".amdgcn_target "amdgcn-amd-amdhsa--gfx950"
.text
.globl {NAME}_kernel
.p2align 8
.type {NAME}_kernel,@function
{NAME}_kernel:""")
stamp()
NST[0] = 14
a(f"""
v_lshrrev_b32 v1, 6, v0
s_cmp_ge_u32 s2, 256
s_cbranch_scc1 L_exit
v_readfirstlane_b32 s32, v1
s_and_b32 s3, s2, 7
s_lshl_b32 s3, s3, 5
s_lshr_b32 s96, s2, 3
s_add_u32 s3, s3, s96
s_cmp_lt_u32 s32, 4
s_cbranch_scc1 L_gemm
""")
if "nocpf" not in OPT:
    a(f"""
    s_getpc_b64 s[94:95]
    s_lshl_b32 s96, s96, 10
    v_and_b32 v255, 7, v0
    v_lshl_add_u32 v255, v255, 7, s96
    v_min_u32 v255, L_exit-{NAME}_kernel-128, v255
    v_mov_b32 v253, s95
    v_add_co_u32 v252, vcc, s94, v255
    v_addc_co_u32 v253, vcc, 0, v253, vcc
    global_load_dword v254, v[252:253], off
    """)
EV[1] = False
ssm = ssm_role()
next(ssm)
EV[1] = True
a("L_gemm:")
a.hist = []; a.vm = []; a.lg = []
if STAMPS: nstamp[0] = 1
gemm_role()
a.raw(".p2align 6")
a("L_ssm:")
NST[0] = 14
EV[1] = False
for _ in ssm: pass
a("L_exit:\ns_endpgm")
a.raw(f""".section .rodata,"a"
.p2align 6
.amdhsa_kernel {NAME}_kernel
  .amdhsa_next_free_vgpr 256
  .amdhsa_next_free_sgpr 102
  .amdhsa_accum_offset 256
  .amdhsa_group_segment_fixed_size 0
  .amdhsa_kernarg_size 120
  .amdhsa_user_sgpr_count 2
  .amdhsa_user_sgpr_kernarg_segment_ptr 1
  .amdhsa_system_sgpr_workgroup_id_x 1
.end_amdhsa_kernel""")
sys.stdout.write(a.text())
sys.stderr.write(f"nops inserted: {a.nops}\n")
```

```python
import sys, struct
from asmlib import Asm, vr, sr

NAME = "parallel_sum__ssm_conv_s4__dense_activation_silu__prompt"
OPT = {x.split("=")[0][2:]: (x.split("=")[1] if "=" in x else "1") for x in sys.argv[1:] if x.startswith("--")}
OPT.setdefault("ol", "sc1")
OPT.setdefault("rx", "1")
OPT.setdefault("fb", "18")
OPT.setdefault("np0", "20")
OPT.setdefault("pe", "11")
OPT.setdefault("tp0", "5")
STAMPS = "stamps" in OPT
SPIN = int(OPT.get("spin", 100000))
PLF = OPT.get("plf", "sc1").replace("_", " ")
FSF = OPT.get("fsf", "sc1").replace("_", " ")
M1, M2 = OPT.get("m1", "81"), OPT.get("m2", "81")
LOCAL = M1 == "81" and M2 == "81" and "nolocal" not in OPT
HSF = "" if LOCAL else "sc1"

HROW = 88 * 1024
H_SIZE = 64 * HROW
ST = 0x580000
FH = 0x5E0000
GS = 18432
GC = 4608
FY = 0x5C0000
XNP = 0x600000
XS = 9216
FX = 0x5A0000
FG = 0x5B0000
Y2 = 0xA80000
WS_SIZE = 0x1000000
STAMP_OFF = 0xF80000
LOG2E = 0x3fb8aa3b
fl = lambda x: "0x%08x" % struct.unpack("<I", struct.pack("<f", x))[0]

M2_42 = OPT.get('m2', '42') == '42'
a = Asm()
SHARED = {}
nstamp = [0]
EV = [0, True]
NST = [16]
def stamp(force=False):
    if "padev" in OPT and EV[1]:
        if EV[0] == int(OPT["padev"]): a("s_memrealtime s[86:87]")
        EV[0] += 1
    if STAMPS and nstamp[0] < NST[0] and (force or ("cs" not in OPT and "g2" not in OPT and "ss" not in OPT) or nstamp[0] in (0, 13) or ("g2" in OPT and nstamp[0] >= 7)):
        i = nstamp[0]; nstamp[0] += 1
        a(f"s_memtime s[{60+2*i}:{61+2*i}]")
def stamp_flush(wsrd, wave_s, vt, row=0):
    if not STAMPS: return
    n = nstamp[0]
    a("s_memrealtime s[98:99]")
    a("s_waitcnt lgkmcnt(0)")
    a(f"s_lshl_b32 s96, s2, 2\ns_add_u32 s96, s96, {wave_s}\ns_lshl_b32 s96, s96, 7\ns_add_u32 s96, s96, {STAMP_OFF+row*512}")
    a("s_mov_b64 exec, 1")
    for i in range(n):
        a(f"v_mov_b32 v{vt}, s{60+2*i}")
        a(f"buffer_store_dword v{vt}, off, {wsrd}, s96 offset:{4*i}")
    a(f"v_mov_b32 v{vt}, s97\nbuffer_store_dword v{vt}, off, {wsrd}, s96 offset:116")
    a(f"v_mov_b32 v{vt}, s100\nbuffer_store_dword v{vt}, off, {wsrd}, s96 offset:120")
    a(f"v_mov_b32 v{vt}, s98\nbuffer_store_dword v{vt}, off, {wsrd}, s96 offset:124")
    nstamp[0] = 0
def retry_mark(bit):
    return f"  s_add_u32 s97, s97, {1 << bit}\n" if STAMPS else ""

def srd(base, size):
    a(f"s_mov_b32 s{base+2}, {size}\ns_mov_b32 s{base+3}, 0x20000")

def cmul(d, x, y):
    a(f"v_mul_f32 v{d}, v{x+1}, v{y+1}")
    a(f"v_mul_f32 v{d+1}, v{x+1}, v{y}")
    a(f"v_fma_f32 v{d}, v{x}, v{y}, -v{d}")
    a(f"v_fmac_f32 v{d+1}, v{x}, v{y+1}")

def tag_slow(pfx, sTag, dbg, offs, vt, sCnt):
    a.raw(f"{pfx}_tagslow:")
    if STAMPS: a.raw(retry_mark(0).rstrip("\n"))
    for o in offs:
        a.raw(f"  s_load_dwordx2 {sr(sTag,2)}, s[{dbg}:{dbg+1}], {o}\n  s_waitcnt lgkmcnt(0)\n  s_cmp_lg_u32 s{sTag}, 0\n  s_cbranch_scc1 {pfx}_tagok")
    a.raw(f"""  s_mov_b32 s{sCnt}, 0
{pfx}_tagloop:
  buffer_load_dwordx2 {vr(vt,2)}, off, s[{dbg}:{dbg+3}], 0 sc1
  s_add_u32 s{sCnt}, s{sCnt}, 1
  s_waitcnt vmcnt(0)
  v_readfirstlane_b32 s{sTag}, v{vt}
  v_readfirstlane_b32 s{sTag+1}, v{vt+1}
  s_nop 3
  s_cmp_lg_u32 s{sTag}, 0
  s_cbranch_scc1 {pfx}_tagok
  s_cmp_lt_u32 s{sCnt}, {SPIN}
  s_cbranch_scc1 {pfx}_tagloop
  s_branch {pfx}_tagok""")

def gemm_role():
    X, W1, WS, W2, OUT, DBG, HS = "s[4:7]", "s[8:11]", "s[12:15]", "s[16:19]", "s[20:23]", "s[24:27]", "s[28:31]"
    sP = 3
    sW, sRB, sM, sXB, sWB, sC, sTx, sT, sLA, sLB, sW2, sHS, sHL = range(32, 45)
    sT2, sT3, sL2e, sCnt, sO, sTag, sFl, sRT = 45, 46, 47, 48, 49, 50, 52, 53
    sB1, sMask, sCG, sXcc, sFar, sHS2, sIa = 54, 55, 56, 57, 58, 59, 101
    sY, sRet = sFl, sFar
    sMean, sNeg = 88, 92
    sXn, sSt, sCx = 89, 90, 96
    SROW, STG = 1056, 98304
    vL = 1
    vXo, vWo, vXr, vWr, vW2o, vW2r, vL16 = 2, 6, 9, 13, 17, 18, 22
    vT, vNon, vCs, vT2, vC2, vSa = 23, 24, 26, 29, 30, 31
    vSt, vNeg = 32, 36
    HALF, vSw, vSr, vIa, vT3 = 88, 92, 93, 94, 95
    ACC1, WF, CSA, XF, CSF = 40, 96, 144, 192, 168
    LX, LF, LG, vId = 224, 232, 248, 252
    ACC2, STASH, HB, HD = 32, 96, 192, 8
    LB0 = 49152
    FARAWAY = 0x40000000
    IP = int(OPT.get('ip', 0))
    a(f"""
    s_load_dwordx2 s[4:5], s[0:1], 0
    s_load_dwordx2 s[8:9], s[0:1], 80
    s_load_dwordx2 s[24:25], s[0:1], 104
    s_load_dwordx2 s[12:13], s[0:1], 112
    s_load_dwordx2 s[16:17], s[0:1], 88
    s_load_dwordx2 s[20:21], s[0:1], 96
    v_and_b32 v{vL}, 63, v0
    s_bfe_u32 s{sT}, s2, 0x20001
    s_bfe_u32 s{sT2}, s2, 0x20003
    s_lshl2_add_u32 s{sRB}, s{sT}, s{sT2}
    s_and_b32 s{sT}, s2, 1
    s_bfe_u32 s{sC}, s2, 0x30005
    s_lshl3_add_u32 s{sM}, s{sT}, s{sC}
    s_and_b32 s{sT}, s2, {6 if 'rx' in OPT else 0}
    s_add_u32 s{sC}, s{sC}, s{sT}
    s_and_b32 s{sC}, s{sC}, 7
    s_mov_b32 s{sCx}, s{sC}
    v_lshlrev_b32 v{vL16}, 4, v{vL}
    s_lshl2_add_u32 s{sCnt}, s{sP}, s{sW}
    s_lshl_b32 s{sCnt}, s{sCnt}, 11
    s_setprio 2
    """)
    if STAMPS: a("s_memrealtime s[98:99]")
    srd(4, 2048 * 1024); srd(8, 512 * 2752)
    a(f"""
    v_lshrrev_b32 v{vT}, 3, v{vL}
    v_lshlrev_b32 v{vT}, 10, v{vT}
    v_lshrrev_b32 v{vT2}, 4, v{vL}
    v_xor_b32 v{vT2}, v{vT2}, v{vL}
    v_and_b32 v{vT2}, 7, v{vT2}
    v_lshl_add_u32 v{vXo}, v{vT2}, 4, v{vT}
    v_xor_b32 v{vXo+1}, 64, v{vXo}
    v_add_u32 v{vXo+2}, {2*7168}, v{vXo}
    v_add_u32 v{vXo+3}, {3*7168}, v{vXo+1}
    v_add_u32 v{vXo+1}, 7168, v{vXo+1}
    s_movk_i32 s{sT}, 5462
    s_movk_i32 s{sT2}, {2752-192}
    v_mul_u32_u24 v{vT}, s{sT}, v{vL}
    """)
    for j in range(3):
        if j: a(f"v_add_u32 v{vT}, {64*5462}, v{vT}")
        a(f"v_lshrrev_b32 v{vT2}, 16, v{vT}\nv_mad_u32_u24 v{vWo+j}, v{vT2}, s{sT2}, v{vL16}")
    a(f"""
    s_lshl2_add_u32 s{sXB}, s{sRB}, s{sW}
    s_lshl_b32 s{sXB}, s{sXB}, 15
    s_mul_i32 s{sWB}, s{sM}, 192
    s_mul_i32 s{sT}, s{sW}, {16*2752}
    s_add_u32 s{sWB}, s{sWB}, s{sT}
    s_lshr_b32 s{sO}, s{sXB}, 6
    s_cmp_eq_u32 s{sM}, 15             ; the 16th workgroup of a row block has no GEMM1 tile: its tile loads go out of range
    s_cselect_b32 s{sXB}, {"s%d" % sHS if IP else FARAWAY}, s{sXB}
    s_cselect_b32 s{sWB}, {"s%d" % sHL if IP > 1 else FARAWAY}, s{sWB}
    s_lshl_b32 s{sLA}, s{sW}, 12
    s_mul_i32 s{sLB}, s{sW}, 3072
    s_add_u32 s{sLB}, s{sLB}, {LB0}
    s_waitcnt lgkmcnt(0)
    """)
    if STAMPS: a("s_mov_b32 s100, s98\ns_mov_b32 s97, 0")
    stamp()

    def w_ops(c):
        ops = []
        for j in range(3):
            def f(j=j):
                if j == 0:
                    a(f"s_mul_i32 s{sT2}, s{sC}, {64*2752}\ns_add_u32 m0, s{sLB}, {(c&3)*12288}\ns_add_u32 s{sT2}, s{sT2}, s{sWB}")
                a(f"buffer_load_dwordx4 v{vWo+j}, {W1}, s{sT2} offen offset:{j*1024} {OPT.get('w1f', '')} lds", f"C{c}")
                if j == 0: a(f"s_add_u32 s{sC}, s{sC}, 1\ns_and_b32 s{sC}, s{sC}, 7")
            ops.append(f)
        return ops
    def x_ops(c):
        ops = []
        for pc in range(4):
            def f(pc=pc):
                if pc == 0:
                    a(f"s_lshl_b32 s{sTx}, s{sCx}, 7\ns_add_u32 m0, s{sLA}, {(c%3)*16384}\ns_add_u32 s{sTx}, s{sTx}, s{sXB}")
                a(f"buffer_load_dwordx4 v{vXo+pc}, {X}, s{sTx} offen offset:{pc*1024} lds", f"C{c}")
                if pc == 0: a(f"s_add_u32 s{sCx}, s{sCx}, 1\ns_and_b32 s{sCx}, s{sCx}, 7")
            ops.append(f)
        return ops
    DQ = []; QT = []; QK = []
    for c in range(8):
        first = (w_ops(c), x_ops(c)) if c < 2 else (x_ops(c), w_ops(c))
        for grp_ in first:
            isx = len(grp_) == 4
            lim = -1 if c < (3 if isx else 4) else (max(1, 4 * (c - 3)) if isx else 4 * (c - 3) + 2)
            DQ += [(lim, f) for f in grp_]
            QT += [f'C{c}'] * len(grp_)
            QK += [('x' if isx else 'w') + str(c)] * len(grp_)
    def issue(n, s_=-1):
        for _ in range(n):
            if DQ and DQ[0][0] <= s_: DQ.pop(0)[1]()
    for r in range(2):
        a(f"buffer_load_dwordx4 {vr(LX+4*r,4)}, v{vL16}, {X}, s{sCnt} offen offset:{1024*r}", "xrow")
    if IP:
        a(f"s_mov_b64 s[98:99], s[4:5]\ns_cmp_eq_u32 s{sM}, 15\ns_cselect_b64 s[4:5], s[16:17], s[4:5]\ns_cselect_b64 s[8:9], s[16:17], s[8:9]")
    a(f"""
    s_mov_b32 s{sB1}, 0x3f803f80
    s_mov_b32 s{sMask}, 0xffff0000
    s_mul_i32 s{sT3}, s{sW}, {2*SROW}
    s_add_u32 s{sT3}, s{sT3}, {STG}
    v_add_u32 v{vSw}, s{sT3}, v{vL16}
    v_bfe_u32 v{vT3}, v{vL}, 2, 2
    v_and_b32 v{vT}, 1, v{vL}
    v_lshl_add_u32 v{vT}, v{vT}, 2, v{vT3}
    v_mul_u32_u24 v{vT}, {SROW}, v{vT}
    v_and_b32 v{vT2}, 2, v{vL}
    v_lshl_add_u32 v{vT}, v{vT2}, 2, v{vT}
    v_lshrrev_b32 v{vT2}, 4, v{vL}
    v_lshl_add_u32 v{vT}, v{vT2}, 4, v{vT}
    s_lshl_b32 s{sT3}, s{sW}, 8
    s_add_u32 s{sT3}, s{sT3}, {STG}
    v_add_u32 v{vSr}, s{sT3}, v{vT}
    """)
    issue(7)
    a(f"""
    v_and_b32 v{vSa}, 31, v{vL}
    v_lshrrev_b32 v{vT2}, 5, v{vL}
    v_bfe_u32 v{vC2}, v{vL}, 1, 3
    v_xor_b32 v{vC2}, v{vC2}, v{vT2}
    v_lshl_add_u32 v{vC2}, v{vC2}, 4, s{sLA}
    v_lshl_add_u32 v{vC2}, v{vSa}, 7, v{vC2}
    v_bfe_u32 v{vT3}, v{vL}, 2, 2
    v_lshl_add_u32 v{vT}, v{vT2}, 3, v{vT3}
    v_mul_u32_u24 v{vT}, 192, v{vT}
    v_bfe_u32 v{vT2}, v{vL}, 4, 1
    v_lshl_add_u32 v{vT}, v{vT2}, 5, v{vT}
    v_and_b32 v{vT2}, 3, v{vL}
    v_lshl_add_u32 v{vT}, v{vT2}, 3, v{vT}
    v_add_u32 v{vT}, {LB0}, v{vT}
    """)
    for i in range(4):
        a(f"""
        s_add_u32 s{sT3}, s{sW}, {i}
        s_and_b32 s{sT3}, s{sT3}, 3
        s_lshl_b32 s{sCnt}, s{sT3}, 5
        s_mulk_i32 s{sT3}, 3072
        v_xor_b32 v{vXr+i}, s{sCnt}, v{vC2}
        v_add_u32 v{vWr+i}, s{sT3}, v{vT}
        """)
    issue(3)
    a(f"""
    v_lshrrev_b32 v{vT2}, 4, v{vL}
    """)
    srd(24, 256)
    srd(12, WS_SIZE)
    a(f"""
    v_lshrrev_b32 v{vT}, 2, v{vL}
    v_xor_b32 v{vT}, v{vT}, v{vT2}
    v_and_b32 v{vT}, 1, v{vT}
    v_add_u32 v{vT}, -1, v{vT}
    """)
    for k in range(4): a(f"v_and_b32 v{HALF+k}, s{sB1}, v{vT}")
    FILL = [u.strip() for u in f"""
    s_mov_b32 s18, {1376*1024}
    s_mov_b32 s19, 0x20000
    s_mov_b32 s22, {2048*1024}
    s_mov_b32 s23, 0x20000
    s_mov_b32 s28, s12
    s_mov_b32 s29, s13
    s_mov_b32 s30, {H_SIZE}
    s_mov_b32 s31, 0x20000
    s_mov_b32 s{sL2e}, {LOG2E:#x}
    v_lshlrev_b32 v{vSa}, 4, v{vSa}
    s_add_u32 s{sO}, s{sO}, {ST}
    v_lshrrev_b32 v{vT}, 3, v{vL}
    v_lshlrev_b32 v{vT}, 10, v{vT}
    v_bfe_u32 v{vT2}, v{vL}, 4, 1
    v_lshlrev_b32 v{vT3}, 2, v{vT2}
    v_xor_b32 v{vT3}, v{vT3}, v{vL}
    v_and_b32 v{vT3}, 7, v{vT3}
    v_lshl_add_u32 v{vW2o}, v{vT3}, 4, v{vT}
    v_lshrrev_b32 v{vT}, 5, v{vL}
    v_bfe_u32 v{vT3}, v{vL}, 2, 2
    v_lshl_add_u32 v{vT}, v{vT}, 2, v{vT3}
    v_lshlrev_b32 v{vT}, 7, v{vT}
    v_lshl_add_u32 v{vT}, v{vT2}, 5, v{vT}
    v_bfe_u32 v{vT2}, v{vL}, 3, 1
    v_lshl_add_u32 v{vT}, v{vT2}, 6, v{vT}
    v_and_b32 v{vT2}, 3, v{vL}
    v_lshl_add_u32 v{vT}, v{vT2}, 3, v{vT}
    s_lshl_b32 s{sT3}, s{sW}, 5
    s_and_b32 s{sT3}, s{sT3}, 64
    v_xor_b32 v{vT}, s{sT3}, v{vT}
    v_xor_b32 v{vT2}, 64, v{vT}
    v_add_u32 v{vW2r}, s{sLA}, v{vT}
    v_add_u32 v{vW2r+1}, s{sLA}, v{vT2}
    v_add_u32 v{vW2r+2}, s{sLB}, v{vT}
    v_add_u32 v{vW2r+3}, s{sLB}, v{vT2}
    s_bfe_u32 s{sT}, s2, {"0x20001" if M2_42 else "0x30000"}
    s_bfe_u32 s{sT3}, s2, {"0x30003" if M2_42 else "0x20003"}
    {"s_lshl3_add_u32" if M2_42 else "s_lshl2_add_u32"} s{sRT}, s{sT}, s{sT3}
    s_and_b32 s{sT}, s2, {1 if M2_42 else 0}
    s_bfe_u32 s{sT3}, s2, {"0x20006" if M2_42 else "0x30005"}
    s_lshl2_add_u32 s{sCG}, s{sT}, s{sT3}
    s_mul_i32 s{sW2}, s{sW}, {352*1024}
    s_lshl_b32 s{sT}, s{sCG}, 7
    s_add_u32 s{sW2}, s{sW2}, s{sT}
    s_mul_i32 s{sHL}, s{sRT}, {2*HROW}
    s_mul_i32 s{sT}, s{sW}, {22*1024}
    s_add_u32 s{sHL}, s{sHL}, s{sT}
    s_lshl_b32 s{sT3}, s{sW}, 8
    s_add_u32 s{sT3}, s{sT3}, {LB0}
    v_lshl_add_u32 v{vT2}, v{vL}, 2, s{sT3}
    v_lshl_add_u32 v{vT}, v{vL}, 2, s{sLB}
    s_lshl2_add_u32 s{sT3}, s{sRB}, s{sW}
    s_mul_i32 s{sT3}, s{sT3}, {HROW}
    s_mul_i32 s{sHS}, s{sM}, 6144
    s_add_u32 s{sHS}, s{sHS}, s{sT3}
    s_add_u32 s{sHS2}, s{sHS}, 4096
    s_cmp_ge_u32 s{sM}, 14 | s_cselect_b32 s{sHS2}, {H_SIZE}, s{sHS2}
    s_lshr_b32 s{sT3}, s{sW}, 1
    s_lshl1_add_u32 s{sT3}, s{sRB}, s{sT3}
    s_lshl4_add_u32 s{sT3}, s{sT3}, s{sM}
    s_and_b32 s{sFl}, s{sW}, 1
    s_lshl1_add_u32 s{sFl}, s{sT3}, s{sFl}
    s_lshl_b32 s{sFl}, s{sFl}, 7
    s_add_u32 s{sFl}, s{sFl}, {FH}
    s_cmp_eq_u32 s{sM}, 15 | s_cselect_b32 s{sHS}, {H_SIZE}, s{sHS} | s_cselect_b32 s{sFl}, {WS_SIZE}, s{sFl}
    """.strip().split("\n")]
    def fill_(n):
        for _ in range(n):
            if FILL: a(FILL.pop(0).replace(" | ", "\n"))

    fill_(int(OPT.get("nfill", 0)))
    keepq = [(q, t) for q, t, k in zip(DQ, QT[len(QT)-len(DQ):], QK[len(QK)-len(DQ):]) if k not in ("x1", "x2", "w2", "w3")]
    DQ[:] = [q for q, _ in keepq]; QT[:] = [t for _, t in keepq]
    a(f"s_add_u32 s{sC}, s{sC}, 2\ns_and_b32 s{sC}, s{sC}, 7\ns_add_u32 s{sCx}, s{sCx}, 2\ns_and_b32 s{sCx}, s{sCx}, 7")
    a.wait(vm="xrow")
    stamp()

    vC = CSA; S = [252, 253]; vN = 254; sR = sMean
    def dpp_reduce(fill):
        for ctl in ("row_shr:1 row_mask:0xf bank_mask:0xf bound_ctrl:0", "row_shr:2 row_mask:0xf bank_mask:0xf bound_ctrl:0",
                    "row_shr:4 row_mask:0xf bank_mask:0xf bound_ctrl:0", "row_shr:8 row_mask:0xf bank_mask:0xf bound_ctrl:0",
                    "row_bcast:15 row_mask:0xa bank_mask:0xf", "row_bcast:31 row_mask:0xc bank_mask:0xf"):
            for r in range(2):
                a(f"v_add_f32_dpp v{S[r]}, v{S[r]}, v{S[r]} {ctl}")
            for _ in range(3):
                if fill: a(fill.pop(0))
        while fill: a(fill.pop(0))
    for k in range(4):
        for r in range(2):
            a(f"v_dot2_f32_bf16 v{S[r]}, v{LX+4*r+k}, s{sB1}, {'0' if k == 0 else 'v%d' % S[r]}")
    unpack = lambda: [t for r in range(2) for k in range(4) for t in
                      (f"v_lshlrev_b32 v{LF+8*r+2*k}, 16, v{LX+4*r+k}", f"v_and_b32 v{LF+8*r+2*k+1}, s{sMask}, v{LX+4*r+k}")]
    fill = unpack()
    for _ in range(3): a(fill.pop(0))
    dpp_reduce(fill)
    for r in range(2): a(f"v_mul_f32 v{S[r]}, 0x3b000000, v{S[r]}")
    for r in range(2): a(f"v_cvt_pk_bf16_f32 v{vN+r}, -v{S[r]}, -v{S[r]}")
    for r in range(2): a(f"v_readlane_b32 s{sMean+2*r}, v{S[r]}, 63")
    for r in range(2): a(f"v_readlane_b32 s{sNeg+2*r+1}, v{vN+r}, 63")
    for k in range(4):
        for r in range(2):
            a(f"v_pk_add_f32 {vr(vC+8*r+2*k,2)}, {vr(LF+8*r+2*k,2)}, {sr(sMean+2*r,2)} op_sel_hi:[1,0] neg_lo:[0,1] neg_hi:[0,1]")
    for r in range(2): a(f"s_and_b32 s{sNeg+2*r}, s{sNeg+2*r+1}, s{sMask}")
    for r in range(2):
        a(f"v_pk_mul_f32 {vr(vC+8*r,2)}, {vr(vC+8*r,2)}, {vr(vC+8*r,2)}")
    for k in range(1, 4):
        for r in range(2):
            a(f"v_pk_fma_f32 {vr(vC+8*r,2)}, {vr(vC+8*r+2*k,2)}, {vr(vC+8*r+2*k,2)}, {vr(vC+8*r,2)}")
    for r in range(2): a(f"v_add_f32 v{S[r]}, v{vC+8*r}, v{vC+8*r+1}")
    fill = [f"v_pk_add_f32 {vr(LF+8*r+2*k,2)}, {vr(LF+8*r+2*k,2)}, {sr(sNeg+2*r,2)} op_sel_hi:[1,0]" for k in range(4) for r in range(2)]
    fill += [f"v_cvt_pk_bf16_f32 v{LX+4*r+k}, v{LF+8*r+2*k}, v{LF+8*r+2*k+1}" for k in range(4) for r in range(2)]
    dpp_reduce(fill)
    issue(int(OPT.get('n1', 0)))
    def rnd():
        for r in range(2): a(f"v_cvt_pk_bf16_f32 v{S[r]}, v{S[r]}, v{S[r]}")
        for r in range(2): a(f"v_lshlrev_b32 v{S[r]}, 16, v{S[r]}")
    for r in range(2): a(f"v_mul_f32 v{S[r]}, 0x3b000000, v{S[r]}")
    rnd()
    for r in range(2): a(f"v_add_f32 v{S[r]}, 0x3727c5ac, v{S[r]}")
    rnd()
    for r in range(2): a(f"v_sqrt_f32 v{S[r]}, v{S[r]}")
    rnd()
    for r in range(2): a(f"v_rcp_f32 v{S[r]}, v{S[r]}")
    for t in unpack(): a(t)
    for r in range(2): a(f"v_readlane_b32 s{sR+2*r}, v{S[r]}, 63")
    a(f"s_load_dwordx2 {sr(sTag,2)}, s[24:25], 0")
    for r in range(2):
        for k in range(4):
            a(f"v_pk_mul_f32 {vr(LF+8*r+2*k,2)}, {vr(LF+8*r+2*k,2)}, {sr(sR+2*r,2)} op_sel_hi:[1,0]")
        for k in range(4):
            a(f"v_cvt_pk_bf16_f32 v{LX+4*r+k}, v{LF+8*r+2*k}, v{LF+8*r+2*k+1}")
        a(f"ds_write_b128 v{vSw}, {vr(LX+4*r,4)} offset:{SROW*r}", "stg")
    a(f"""
    v_mov_b32 v{LG}, s{sNeg+1}
    v_mov_b32 v{LG+1}, s{sR}
    v_writelane_b32 v{LG}, s{sNeg+3}, 1
    v_writelane_b32 v{LG+1}, s{sR+2}, 1
    s_mul_i32 s{sXn}, s{sP}, {GS}
    s_lshl_b32 s{sT3}, s{sW}, 12
    s_add_u32 s{sXn}, s{sXn}, s{sT3}
    s_add_u32 s{sXn}, s{sXn}, {XNP}
    s_lshl2_add_u32 s{sSt}, s{sP}, s{sW}
    s_lshl_b32 s{sSt}, s{sSt}, 5
    s_add_u32 s{sSt}, s{sSt}, {ST}
    """)
    issue(int(OPT.get('n2', 7)))
    a.wait(lg=0)
    stamp()

    GROUPS = [("A", 2, 4), ("A", 0, 4), ("B", 1, 3), ("A", 1, 4), ("B", 0, 3), ("B", 2, 3), ("B", 3, 3)]
    LOC = []
    for rg, sl, n in GROUPS:
        for k in range(n):
            LOC.append((rg, sl * (16384 if rg == "A" else 12288) + k * 1024))
    PL2 = list(range(4, 24))
    ploc = lambda p: p if p < 24 else PL2[p - 24]
    SHARED['LOC'] = LOC
    pn = [0]
    def p_next():
        p = pn[0]; pn[0] += 1
        rg, off = LOC[ploc(p)]
        a(f"s_add_u32 m0, s{sLA if rg == 'A' else sLB}, {off}")
        a(f"s_add_u32 s{sT3}, s{sW2}, {8192*p}")
        a(f"buffer_load_dwordx4 v{vW2o}, {W2}, s{sT3} offen lds", f"P{p}")

    wb = lambda s_: WF + 12 * (s_ % 3)
    def tr_pair(s_, ft):
        c, i = divmod(s_, 4)
        for e in range(2):
            a(f"ds_read_b64_tr_b16 {vr(wb(s_)+4*ft+2*e,2)}, v{vWr+i} offset:{(c&3)*12288+e*768+ft*64}", f"wf{s_}")
    def rd_x(c, i):
        a(f"ds_read_b128 {vr(XF+16*(c&1)+4*i,4)}, v{vXr+i} offset:{(c%3)*16384}", f"xf{c}_{i}")
    def open_chunk(c):
        if "cs" in OPT and c in (3, 5): stamp(True)
        a.wait(vm=f"C{c}")
        if (c == 0 and "ss" not in OPT) or ("cs" in OPT and c in (3, 5)): stamp(True)
        a("s_barrier")
        if "cs" in OPT and c: stamp(True)

    open_chunk(0)
    rd_x(0, 0)
    for ft in range(3): tr_pair(0, ft)
    for i in range(1, 4): rd_x(0, i)
    for ft in range(3): tr_pair(1, ft)
    a(f"s_cmp_eq_u32 s{sTag}, 0\ns_cbranch_scc1 G_tagslow\nG_tagok:")
    for k in range(5): a(f"v_mov_b32 v{LF+4*k+2}, s{sTag}\nv_mov_b32 v{LF+4*k+3}, s{sTag+1}")
    XSL = {"a": [(0, 1), (0, 2), (1, 0), (1, 2), (2, 1)], "b": [(3, 0), (3, 1), (3, 2), (7, 0), (7, 1)], "c": [(1, 0), (1, 2), (3, 0), (3, 2), (5, 1)], "d": [(19, 0), (19, 1), (19, 2), (20, 0), (3, 0)], "e": [(3, 0), (7, 0), (11, 0), (15, 0), (3, 1)], "f": [(11, 0), (11, 1), (11, 2), (13, 1), (3, 0)]}[OPT.get("xsl", "b")]
    GP = 'gp' in OPT
    PS = int(OPT.get('ps', 22)) if GP else 99
    def bg_op(c, i, ft):
        s_ = 4 * c + i
        if DQ: issue(1, s_)
        elif s_ >= PS and ft != 1:
            lim = 0 if s_ < 20 else 4 if s_ < 24 else 8 if s_ < 26 else 11 if s_ < 28 else 15 if s_ < 30 else 18 if s_ < 31 else 24
            if pn[0] < lim:
                assert not FILL
                p_next()
    def split(dst, src, tmp):
        return [f"v_cvt_pk_bf16_f32 v{tmp}, v{src}, v{src}", f"v_lshlrev_b32 v{tmp}, 16, v{tmp}",
                f"v_sub_f32 v{tmp}, v{src}, v{tmp}", f"v_cvt_pk_bf16_f32 v{dst}, v{src}, v{tmp}"]
    for c in range(8):
        a.comment(f"---- GEMM1 chunk {c}")
        for i in range(4):
            s_ = 4 * c + i
            if i == 2 and c < 7:
                issue(int(OPT.get('flush', 0)), s_ - 1)
                assert not any(t == f'C{c+1}' for t in QT[len(QT)-len(DQ):])
                open_chunk(c + 1)
            a.wait(lg=(f"xf{c}_{3 if s_ else 0}", f"wf{s_}"))
            if "ss" in OPT and int(OPT["ss"]) <= s_ < int(OPT["ss"]) + 12: stamp(True)
            if s_ == 28:
                assert "csw" not in a.lg
                a("s_barrier")
            if s_ == 31: a("s_barrier")
            for ft in range(3):
                cs = i == 0 or c >= 7
                if cs and s_ == 31:
                    a(f"v_mfma_f32_16x16x32_bf16 {vr(CSA+12+4*ft,4)}, {vr(HALF,4)}, {vr(wb(s_)+4*ft,4)}, {vr(CSA+12+4*ft,4)}")
            for ft in range(3):
                cc = "0" if s_ == 0 else vr(ACC1+16*ft, 16)
                a(f"v_mfma_f32_32x32x16_bf16 {vr(ACC1+16*ft,16)}, {vr(wb(s_)+4*ft,4)}, {vr(XF+16*(c&1)+4*i,4)}, {cc}")
                if i == 2 and c < 7:
                    if ft == 0: rd_x(c + 1, 0)
                    rd_x(c + 1, ft + 1)
                if s_ + 2 < 32: tr_pair(s_ + 2, ft)
                if (s_, ft) == (0, 0):
                    for k in range(4): a(f"ds_read_b64_tr_b16 {vr(LF+4*k,2)}, v{vSr} offset:{64*k}", "tr")
                if (s_, ft) in XSL:
                    a.wait(lg="tr")
                    k = XSL.index((s_, ft))
                    if k < 4: a(f"buffer_store_dwordx4 {vr(LF+4*k,4)}, v{vL16}, {WS}, s{sXn} offen offset:{1024*k} sc1", "xn")
                    else: a(f"s_mov_b64 exec, 3\nbuffer_store_dwordx4 {vr(LG,4)}, v{vL16}, {WS}, s{sSt} offen sc1\ns_mov_b64 exec, -1")
                else:
                    bg_op(c, i, ft)
                    if i == 3 or (i == 1 and ft): fill_(4)
                if (i == 0 or c >= 7) and s_ != 31:
                    d = CSA + 4 * ft + (12 if c >= 7 else 0)
                    a(f"v_mfma_f32_16x16x32_bf16 {vr(d,4)}, {vr(HALF,4)}, {vr(wb(s_)+4*ft,4)}, {'0' if s_ in (0, 28) else vr(d,4)}")
                if s_ == 25:
                    for t in split(vCs + ft, CSA + 4 * ft, CSA + 4 * ft + 1): a(t)
                if s_ == 25:
                    for k in range(2):
                        a(f"ds_write2st64_b32 v{vT2}, v{vCs+ft}, v{vCs+ft} offset0:{24*k+4*ft} offset1:{24*k+12+4*ft}", "csw")
                if s_ == 23:
                    for k in range(4): a(f"v_mov_b32 v{CSF+4*ft+k}, 0")
                if s_ == 28:
                    a("s_mov_b32 exec_hi, 0")
                    for k in range(2):
                        a(f"ds_read2st64_b32 {vr(CSF+4*ft+2*k,2)}, v{vT} offset0:{4*ft+2*k} offset1:{4*ft+2*k+1}", "csf")
                    a("s_mov_b32 exec_hi, -1")
                if s_ == 29 and ft == 2:
                    a.wait(vm="st", lg="csf")
                    a(f"""
                    s_mov_b32 s{sCnt}, 0
                    G_stchk:
                    v_cmp_ne_u64 vcc, {sr(sTag,2)}, {vr(vSt+2,2)}
                    s_cbranch_vccnz G_stslow
                    G_stok:
                    """)
                if s_ == 30 and ft == 0:
                    a(f"""
                    v_mov_b32 v{vNeg}, v{vSt}
                    v_mov_b32 v{vNeg+1}, v{vSt}
                    v_mov_b32 v{vNeg+2}, v{vSt}
                    v_mov_b32 v{vNeg+3}, v{vSt}
                    """)
                if s_ == 30 and ft == 1:
                    a(f"""
                    v_mul_f32 v{vC2}, s{sL2e}, v{vSt+1}
                    v_mov_b32 v{vNon}, s{sTag}
                    v_mov_b32 v{vNon+1}, s{sTag+1}
                    """)
                if s_ == 31:
                    sp = split(CSF + 4 * ft, CSA + 12 + 4 * ft, CSA + 13 + 4 * ft)
                    for t in sp[:3]: a(t)
                    a(f"s_mov_b32 exec_lo, 0\n{sp[3]}\ns_mov_b32 exec_lo, -1")
            if s_ == 23:
                assert not FILL
                a(f"buffer_load_dwordx4 {vr(vSt,4)}, v{vSa}, {WS}, s{sO} offen sc1", "st")
    assert not DQ
    stamp()
    for ft in range(3):
        a(f"v_mfma_f32_32x32x16_bf16 {vr(ACC1+16*ft,16)}, {vr(CSF+4*ft,4)}, {vr(vNeg,4)}, {vr(ACC1+16*ft,16)}")
    E1, OB = 208, 224
    def tr_w2(step, tag):
        base = STASH + 8 * (step % 12)
        for j in range(2):
            for e in range(2):
                rg, off = LOC[ploc(2 * step + e)]
                a(f"ds_read_b64_tr_b16 {vr(base+4*j+2*e,2)}, v{vW2r+(0 if rg=='A' else 2)+j} offset:{off}", tag)
    if not GP: pn[0] = 24
    for _ in range(3):
        if pn[0] < 24: p_next()
    GB = int(OPT.get("gb", 0))
    B9, B10 = int(OPT.get("b9", 1)), int(OPT.get("b10", 6))
    for ft in range(3):
        for j in range(2):
            A0 = ACC1 + 16 * ft + 8 * j
            T0 = E1 + 8 * j
            for k in range(8): a(f"v_mul_f32 v{A0+k}, v{vC2}, v{A0+k}")
            for k in range(8): a(f"v_exp_f32_e64 v{T0+k}, -v{A0+k}")
            if pn[0] < 24: p_next()
            for k in range(8): a(f"v_fma_f32 v{T0+k}, v{T0+k}, s{sL2e}, s{sL2e}")
            for k in range(8): a(f"v_rcp_f32 v{T0+k}, v{T0+k}")
            if pn[0] < 24: p_next()
            for k in range(8): a(f"v_mul_f32 v{A0+k}, v{A0+k}, v{T0+k}")
            for k in range(0, 8, 2): a(f"v_cvt_pk_bf16_f32 v{OB+8*ft+4*j+k//2}, v{A0+k}, v{A0+k+1}")
            a(f"buffer_store_dwordx4 {vr(OB+8*ft+4*j,4)}, v{vL16}, {HS}, s{sHS if ft < 2 else sHS2} offen offset:{1024*((2*ft+j)&3)} {OPT.get('hnt', 'sc1') if str(2*ft+j) in OPT.get('hn', '012345') else ''}", "hs")
            if GP and 2 * ft + j == GB: a("s_barrier")
    stamp()
    if IP: a("s_mov_b64 s[4:5], s[98:99]")
    vH, vF, vXg, vO, vY, vXl, vR, vP, vYl = 2, 4, 5, 6, 7, 8, 13, 10, 9
    a(f"""
    s_lshl_b32 s{sT}, s{sW}, 3
    s_lshr_b32 s{sT2}, 0x160e0600, s{sT}
    s_and_b32 s{sT2}, s{sT2}, 0xff
    s_lshr_b32 s{sT}, 0x1d150f07, s{sT}
    s_and_b32 s{sT}, s{sT}, 0xff
    v_max_u32 v{vF}, s{sT2}, v{vL}
    v_min_u32 v{vF}, s{sT}, v{vF}
    v_lshlrev_b32 v{vF}, 7, v{vF}
    s_and_b32 s{sT}, s{sW}, 1
    s_mul_i32 s{sT2}, s{sT}, {HROW}
    v_add_u32 v{vH}, s{sT2}, v{vL16}
    s_sub_u32 s{sT2}, {HROW}, s{sT2}
    v_add_u32 v{vH+1}, s{sT2}, v{vL16}
    s_mov_b32 s{sCnt}, 0
    s_movk_i32 s{sC}, 144
    """)
    def publish():
        a.wait(vm="hs")
        stamp()
        a(f"s_mov_b64 exec, 1\nbuffer_store_dwordx2 {vr(vNon,2)}, off, {WS}, s{sFl} sc1\nG_pub:\ns_mov_b64 exec, -1")
    FB = 'fb' in OPT
    if not FB: publish()
    if "pt" in OPT:
        a(f"buffer_load_dword v{vT3}, v{vSw}, {HS}, s{sHS} offen {OPT['pt'].replace('1', '') if OPT['pt'] != 'sc1' else 'sc1'}", "pt")
    a(f"s_lshl_b32 s{sRet}, s{sRT}, 12\ns_add_u32 s{sRet}, s{sRet}, {FH}")
    if not GP: a("s_barrier")
    assert pn[0] == 24 and not any(str(t).startswith("P") for t in a.vm)
    PK_ = int(OPT.get("pk", 11))
    order = list(range(2, 12)) + [0, 1]
    for n_, k in enumerate(order):
        if n_ == PK_ and not FB: a(f"buffer_load_dwordx2 {vr(vP,2)}, v{vF}, {WS}, s{sRet} offen sc1", "poll")
        tr_w2(k, f"S{k}")
    def p2():
        a.wait(lg=f"S{ploc(pn[0])//2}")
        p_next()
    if FB: publish()
    for k_ in range(int(OPT.get("np0", 12))):
        if FB and k_ == int(OPT["fb"]): a(f"buffer_load_dwordx2 {vr(vP,2)}, v{vF}, {WS}, s{sRet} offen sc1", "poll")
        p2()
    stamp()
    a.wait(vm="poll")
    a(f"G_hchk:\nv_cmp_ne_u64 vcc, {sr(sTag,2)}, {vr(vP,2)}\ns_add_u32 s{sCnt}, s{sCnt}, 1\ns_cbranch_vccnz G_hslow\nG_hok:")
    stamp()
    if STAMPS: a(f"s_lshl_b32 s{sCnt}, s{sCnt}, 16\ns_add_u32 s97, s97, s{sCnt}")
    HS_ = [(i, 1) for i in range(12)] + [(i, j) for i in range(12, 22) for j in (1, 0)] + [(i, 0) for i in range(12)]
    HR, WR = int(OPT.get("hr", 10)), 232
    grp = [None]
    def h_load(n):
        i, j = HS_[n]
        if i // 4 != grp[0]:
            grp[0] = i // 4; a(f"s_add_u32 s{sTx}, s{sHL}, {4096*(i//4)}")
        a(f"buffer_load_dwordx4 {vr(HB+4*(n%HR),4)}, v{vH+j}, {HS}, s{sTx} offen offset:{1024*(i%4)} {OPT.get('hlf', 'sc1').replace('_', ' ')}", f"h{n}")
    HT = int(OPT.get("ht", 99))
    for n in range(HR - 1):
        if n == HT:
            if M2_42:
                a(f"buffer_load_dword v{vT3}, v12, {HS}, s{sXn} offen sc1", "ht")
                a(f"s_add_u32 s{sXn}, s{sXn}, {HROW}")
            a(f"buffer_load_dword v12, v12, {HS}, s{sXn} offen sc1", "ht")
        if n == int(OPT.get("hp", 0)):
            for _ in range(int(OPT.get("np1", 99))):
                if pn[0] < 44: p2()
        h_load(n)
    a(f"""
    s_lshl1_add_u32 s{sT2}, s{sRT}, s{sT}
    s_lshr_b32 s{sT}, s{sW}, 1
    s_lshl1_add_u32 s{sCnt}, s{sCG}, s{sT}    ; own 32-column block
    s_lshl_b32 s{sO}, s{sT2}, 15
    s_lshl_b32 s{sT}, s{sCnt}, 6
    s_add_u32 s{sO}, s{sO}, s{sT}
    s_add_u32 s{sHS}, s{sT2}, 8
    s_bfe_u32 s{sHS}, s{sHS}, 0x10004
    s_lshl_b32 s{sT}, s{sCnt}, 6
    s_add_u32 s{sHS}, s{sHS}, s{sT}
    s_lshl_b32 s{sHS}, s{sHS}, 7
    s_add_u32 s{sHS}, s{sHS}, {FY}
    s_mul_i32 s{sY}, s{sCnt}, {32*GC}
    s_lshl_b32 s{sT}, s{sT2}, 6
    s_add_u32 s{sY}, s{sY}, s{sT}
    s_add_u32 s{sY}, s{sY}, {Y2}
    v_and_b32 v{vT}, 31, v{vL}
    v_lshrrev_b32 v{vT2}, 5, v{vL}
    v_lshlrev_b32 v{vO}, 10, v{vT}
    v_lshl_add_u32 v{vO}, v{vT2}, 4, v{vO}
    v_lshl_add_u32 v{vXl}, v{vT}, 6, s{sLA}
    v_lshl_add_u32 v{vXl}, v{vT2}, 4, v{vXl}
    v_lshlrev_b32 v{vYl}, 3, v{vT2}
    v_sub_u32 v{vF}, v{vT}, v{vYl}
    v_bfe_u32 v{vT}, v{vL}, 2, 2
    v_add_u32 v{vYl}, v{vYl}, v{vT}
    v_lshl_add_u32 v{vYl}, v{vYl}, 6, s{sLA}
    v_bfe_u32 v{vT}, v{vL}, 4, 1
    v_lshl_add_u32 v{vYl}, v{vT}, 5, v{vYl}
    v_and_b32 v{vT}, 3, v{vL}
    v_lshl_add_u32 v{vYl}, v{vT}, 3, v{vYl}
    v_lshrrev_b32 v{vY}, 2, v{vL}
    v_mul_u32_u24 v{vY}, {GC}, v{vY}
    v_lshl_add_u32 v{vY}, v{vT}, 4, v{vY}
    v_lshrrev_b32 v{vXg}, 2, v{vL}
    v_lshlrev_b32 v{vXg}, 10, v{vXg}
    v_and_b32 v{vT}, 3, v{vL}
    v_lshl_add_u32 v{vXg}, v{vT}, 4, v{vXg}
    v_add_u32 v{vR}, s{sLB}, v{vL16}
    """)
    for k in range(1, 4):
        a(f"s_xor_b32 s{sT}, s{sW}, {k}\ns_mulk_i32 s{sT}, 3072\ns_add_u32 s{sT}, s{sT}, {LB0}\nv_add_u32 v{vR+k}, s{sT}, v{vL16}")
    YO = 32768
    YT, YF, XFr, IDN = 232, 240, 248, 24
    XR = 24
    if "touch" in OPT:
        a(f"v_and_b32 v{vT}, 31, v{vL}\nv_mul_u32_u24 v{vT}, {GC}, v{vT}")
        a(f"buffer_load_dword v12, v{vT}, {WS}, s{sY} offen sc1", "yt")
    a(f"v_and_b32 v{vT}, 1, v{vF}\nv_lshlrev_b32 v{vT}, 4, v{vT}\nv_lshlrev_b32 v{vT}, v{vT}, v{vW2o}" if False else
      f"v_and_b32 v{vT}, 1, v{vF}\nv_lshlrev_b32 v{vT}, 4, v{vT}\nv_mov_b32 v11, 0x3f80\nv_lshlrev_b32 v11, v{vT}, v11\nv_ashrrev_i32 v{vF}, 1, v{vF}")
    for k in range(8):
        a(f"v_cmp_eq_u32 s[{88+2*(k&1)}:{89+2*(k&1)}], {8*(k>>2)+(k&3)}, v{vF}")
        if k: a(f"v_cndmask_b32 v{IDN+k-1}, 0, v11, s[{88+2*((k-1)&1)}:{89+2*((k-1)&1)}]")
    a(f"v_cndmask_b32 v{IDN+7}, 0, v11, s[90:91]")
    def y_poll(emit): emit(f"buffer_load_dwordx2 {vr(vP,2)}, v12, {WS}, s{sHS} offen sc1")
    def y_loads(emit):
        emit(f"s_add_u32 m0, s{sLA}, {YO}")
        for k in range(2):
            emit(f"s_add_u32 s{sT2}, s{sY}, {16*k*GC-1024*k}")
            emit(f"buffer_load_dwordx4 v{vY}, {WS}, s{sT2} offen offset:{1024*k} sc1 lds")
    def y_reads(emit):
        for k in range(4): emit(f"ds_read_b64_tr_b16 {vr(YF+2*k,2)}, v{vYl} offset:{YO+1024*(k>>1)+256*(k&1)}")
    YP = int(OPT.get("yp", 30))
    wreg = lambda i: STASH + 8 * i if i < 12 else WR + 8 * (i % 3)
    def w_reads(i, half):
        j = half
        assert pn[0] > 2 * i + 1
        a.wait(vm=f"P{2*i+1}")
        for e in range(2):
            rg, off = LOC[ploc(2 * i + e)]
            a(f"ds_read_b64_tr_b16 {vr(wreg(i)+4*j+2*e,2)}, v{vW2r+(0 if rg=='A' else 2)+j} offset:{off}", f"r{i}")
    started = set()
    def mm(n, jd):
        i, j = HS_[n]; k = 2 * jd + j
        ac = ACC2 + 16 * k
        a(f"v_mfma_f32_32x32x16_bf16 {vr(ac,16)}, {vr(wreg(i)+4*jd,4)}, {vr(HB+4*(n%HR),4)}, {vr(ac,16) if k in started else '0'}")
        started.add(k)
    roff = lambda k, q: (((k - 1) * 4 + q) // 3) * 12288 + (((k - 1) * 4 + q) % 3) * 1024
    def r_write(k, q): a(f"ds_write_b128 v{vR}, {vr(ACC2+16*k+4*q,4)} offset:{roff(k,q)}", "rw")
    def r_read(k, q): a(f"ds_read_b128 {vr(ACC2+16*k+4*q,4)}, v{vR+k} offset:{roff(k,q)}", f"rr{k}")
    YS = int(OPT.get("ys", 37))
    NT = 4
    PR_ = int(OPT.get('pr', 1))
    side = []
    def run_side(c):
        for _ in range(c):
            if side:
                t = side.pop(0)
                if callable(t): t()
                else: a(t)
    for n in range(44 - NT):
        i, j = HS_[n]
        a.wait(vm=f"h{n}", lg=(f"r{i}" if i >= 12 else 0 if n == 0 else None))
        if n == 0 or ("g2" in OPT and n in (12, 24, 32, 36)): stamp(True)
        for jd in range(2):
            mm(n, jd)
            if jd == 0 and n + HR - 1 < 44: h_load(n + HR - 1)
            if pn[0] < 44 and (jd == 1 or n % PR_ == 0): p2()
            if n in (8, 10): w_reads(12 + (n - 8) // 2, jd)
            if 12 <= n < 28 and j == 1: w_reads(i + 2, jd)
            if jd == 1 and n == 5: a(f"v_and_b32 v12, 31, v{vL}\nv_lshlrev_b32 v12, 8, v12")
            if jd == 1 and n == YP: y_poll(lambda t: a(t, "yf"))
            if jd == 1 and n == YS:
                a.wait(vm="yf")
                a(f"v_cmp_ne_u64 s[94:95], {sr(sTag,2)}, {vr(vP,2)}")
                y_loads(lambda t: a(t, "yr"))
            if jd == 1 and n == 30:
                a(f"s_mov_b32 m0, s{sLA}\ns_add_u32 s{sT2}, s{sO}, {16384-1024}")
                a(f"buffer_load_dwordx4 v{vXg}, {X}, s{sO} offen lds", "xr")
                a(f"buffer_load_dwordx4 v{vXg}, {X}, s{sT2} offen offset:1024 lds", "xr")
            g = 2 * (n - 32) + jd
            if 0 <= g < 12 and g % 3 != 2:
                w = g - g // 3; r_write(1 if w < 4 else 3, w & 3)
            if g == 8 and "ol" in OPT:
                a(f"""
                s_and_b32 s{sT}, s{sW}, 1
                s_mulk_i32 s{sT}, {32*144}
                s_lshr_b32 s{sT2}, s{sW}, 1
                s_lshl_b32 s{sT2}, s{sT2}, 6
                s_add_u32 s{sT}, s{sT}, s{sT2}
                s_add_u32 s{sT}, s{sT}, 98304
                v_and_b32 v{vT}, 31, v{vL}
                v_mul_u32_u24 v{vH}, 144, v{vT}
                """)
            if g == 11 and "ol" in OPT:
                a(f"""
                v_lshrrev_b32 v{vT}, 5, v{vL}
                v_lshl_add_u32 v{vH}, v{vT}, 4, v{vH}
                v_add_u32 v{vH}, s{sT}, v{vH}
                v_lshrrev_b32 v{vT}, 3, v{vL}
                v_and_b32 v{vF}, 7, v{vL}
                v_lshlrev_b32 v{vF}, 4, v{vF}
                v_mad_u32_u24 v{vH+1}, v{vT}, s{sC}, v{vF}
                v_lshl_add_u32 v{vF}, v{vT}, 10, v{vF}
                """)
            if g == 13 and "ol" in OPT:
                a(f"""
                s_mul_i32 s{sT}, s{sW}, {16*144}
                s_add_u32 s{sT}, s{sT}, 98304
                v_add_u32 v{vH+1}, s{sT}, v{vH+1}
                s_lshl2_add_u32 s{sXB}, s{sRT}, s{sW}
                s_lshl_b32 s{sXB}, s{sXB}, 14
                s_lshl_b32 s{sT}, s{sCG}, 7
                s_add_u32 s{sXB}, s{sXB}, s{sT}
                s_add_u32 s{sXB+1}, s{sXB}, 8192
                """)
            if g == 12:
                a.wait(vm="xr")
                for q in range(2): a(f"ds_read_b128 {vr(XFr+4*q,4)}, v{vXl} offset:{32*q}", "xl")
            if g == 14:
                a.wait(lg="rw")
                a("s_barrier")
                for q in range(4): r_read(1, q)
            if g == 15:
                for q in range(4): r_read(3, q)
    if "ts" in OPT: stamp()
    side = [lambda: a.wait(lg="rr3")] + [f"v_add_f32 v{ACC2+16+q}, v{ACC2+16+q}, v{ACC2+48+q}" for q in range(16)]
    for q, n in enumerate(range(44 - NT, 44)):
        a.wait(vm=f"h{n}")
        mm(n, 1)
        if q >= 2: run_side(6)
    tail = [lambda n=n: mm(n, 0) for n in range(44 - NT, 44)]
    for src in (XFr, YF):
        for q in range(2):
            tail.append(lambda src=src, q=q: a(f"v_mfma_f32_32x32x16_bf16 {vr(ACC2,16)}, {vr(IDN+4*q,4)}, {vr(src+4*q,4)}, {vr(ACC2,16)}"))
    for q, t in enumerate(tail):
        t()
        if q == 0: run_side(99)
        if 1 <= q <= 4: r_write(2, q - 1)
        if q == 4:
            a(f"s_cmp_lg_u64 s[94:95], 0\ns_cbranch_scc1 G_yslow\nG_yok:")
            a.wait(vm="yr")
            y_reads(lambda t: a(t, "yl"))
        if q == 5:
            a.wait(lg="rw")
            a("s_barrier")
            for q2 in range(4): r_read(2, q2)
            a.wait(lg="yl")
    stamp()
    a.wait(lg="rr2")
    for q in range(16): a(f"v_add_f32 v{ACC2+16+q}, v{ACC2+16+q}, v{ACC2+32+q}")
    for k in range(8):
        a(f"v_pk_add_f32 {vr(ACC2+2*k,2)}, {vr(ACC2+2*k,2)}, {vr(ACC2+16+2*k,2)}")
    for k in range(8):
        a(f"v_cvt_pk_bf16_f32 v{XR+k}, v{ACC2+2*k}, v{ACC2+2*k+1}")
    if "ol" not in OPT:
        for q in range(2):
            a(f"v_permlane32_swap_b32 v{XR+4*q}, v{XR+4*q+2}\nv_permlane32_swap_b32 v{XR+4*q+1}, v{XR+4*q+3}")
            a(f"buffer_store_dwordx4 {vr(XR+4*q,4)}, v{vO}, {OUT}, s{sO} offen offset:{32*q} {OPT.get('osf', '').replace('_', ' ')}")
    else:
        for q in range(2):
            a(f"v_permlane32_swap_b32 v{XR+4*q}, v{XR+4*q+2}\nv_permlane32_swap_b32 v{XR+4*q+1}, v{XR+4*q+3}")
            a(f"ds_write_b128 v{vH}, {vr(XR+4*q,4)} offset:{32*q}")
        a("s_waitcnt lgkmcnt(0)\ns_barrier")
        for q in range(2): a(f"ds_read_b128 {vr(ACC2+4*q,4)}, v{vH+1} offset:{8*144*q}", f"o{q}")
        for q in range(2):
            a.wait(lg=f"o{q}")
            a(f"buffer_store_dwordx4 {vr(ACC2+4*q,4)}, v{vF}, {OUT}, s{sXB+q} offen {OPT['ol'].replace('_', ' ').replace('1', '') if OPT['ol'] != 'sc1' else 'sc1'}")
    stamp()
    if STAMPS:
        a("s_waitcnt vmcnt(0)"); stamp()
    if "padev" in OPT:
        a(f"G_pad2:\ns_memrealtime s[98:99]\ns_waitcnt lgkmcnt(0)\ns_sub_u32 s96, s98, s86\ns_cmp_lt_u32 s96, 3000\ns_cbranch_scc1 G_pad2")
    if "padto" in OPT:
        a(f"G_pad:\ns_memrealtime s[98:99]\ns_waitcnt lgkmcnt(0)\ns_sub_u32 s96, s98, s{sTag}\ns_cmp_lt_u32 s96, {OPT['padto']}\ns_cbranch_scc1 G_pad")
    if "dbg" in OPT:
        n = nstamp[0]
        a(f"s_memrealtime s[98:99]\ns_waitcnt lgkmcnt(0)\ns_lshl2_add_u32 s96, s2, s{sW}\ns_cmp_lg_u32 s96, {4*int(OPT['dbg'])}\ns_cbranch_scc1 G_nodbg\ns_mov_b64 exec, 1")
        for i in range(1, n):
            a(f"s_sub_u32 s96, s{60+2*i}, s60\nv_mov_b32 v{vT}, s96\nbuffer_store_dword v{vT}, off, {DBG}, 0 offset:{4+4*i}")
        a(f"s_sub_u32 s96, s98, s{sTag}\nv_mov_b32 v{vT}, s96\nbuffer_store_dword v{vT}, off, {DBG}, 0 offset:60")
        a("G_nodbg:")
    stamp_flush(WS, f"s{sW}", vT, 256)
    a("s_endpgm")
    tag_slow("G", sTag, 24, [64, 192], vNon, sCnt)
    a.raw(f"""G_stslow:
{retry_mark(4)}  s_add_u32 s{sCnt}, s{sCnt}, 1
  s_cmp_ge_u32 s{sCnt}, {SPIN}
  s_cbranch_scc1 G_stok
  buffer_load_dwordx4 {vr(vSt,4)}, v{vSa}, {WS}, s{sO} offen sc1
  s_waitcnt vmcnt(0)
  s_branch G_stchk
G_hslow:
  s_cmp_ge_u32 s{sCnt}, {SPIN}
  s_cbranch_scc1 G_hok
  buffer_load_dwordx2 {vr(vP,2)}, v{vF}, {WS}, s{sRet} offen sc1
  s_waitcnt vmcnt(0)
  s_branch G_hchk
G_yslow:
  s_mov_b32 s{sCnt}, 0
G_yloop:
{retry_mark(8)}  buffer_load_dwordx2 {vr(vP,2)}, v12, {WS}, s{sHS} offen sc1
  s_add_u32 s{sCnt}, s{sCnt}, 1
  s_waitcnt vmcnt(0)
  v_cmp_ne_u64 vcc, {sr(sTag,2)}, {vr(vP,2)}
  s_cmp_lt_u32 s{sCnt}, {1 if "nossm" in OPT else SPIN}
  s_cselect_b64 vcc, vcc, 0
  s_cbranch_vccnz G_yloop""")
    y_loads(lambda t: a.raw("  " + t))
    a.raw("  s_waitcnt vmcnt(0)\n  s_branch G_yok")
    a.vm = []; a.lg = []

def ssm_role():
    DBG, WS = "s[8:11]", "s[12:15]"
    sQ, sW, sE, sPar, sT, sT2, sCnt, sB1, sMask = 3, 32, 5, 6, 7, 34, 35, 40, 41
    sLdt, sD, sTag, sU, sXcc = 42, 43, 36, 38, 4
    sMean, sNeg = 44, 48
    vL, LX, LF, vC, LG = 1, 2, 10, 30, 26
    vPar = 44
    vT, vT2, vT3, vT4 = 54, 55, 56, 57
    vNon, vL16, vTab = 52, 60, 61
    SB = 98304
    CB0, UB0, USZ, K0A, FLG, TAB, TSZ, SROW = SB, SB + 33280, 4576, SB + 42432, SB + 42448, SB + 49152, 4096, 1056
    a.hist = []; a.vm = []; a.lg = []
    a(f"""
    s_load_dwordx16 s[16:31], s[0:1], 0
    s_load_dwordx2 s[8:9], s[0:1], 104
    s_load_dwordx2 s[52:53], s[0:1], 64
    s_load_dwordx2 s[92:93], s[0:1], 88
    s_load_dwordx2 s[88:89], s[0:1], 80
    s_load_dwordx2 s[12:13], s[0:1], 112
    s_memrealtime {sr(sTag,2)}
    s_setprio 3
    s_sub_u32 s{sW}, s{sW}, 4
    v_and_b32 v{vL}, 63, v0
    v_and_b32 v{vT}, 255, v0
    s_lshl_b32 s{sT}, s{sQ}, 9
    v_lshl_add_u32 v{vT3}, v{vT}, 1, s{sT}
    s_lshl2_add_u32 s{sT2}, s{sQ}, s{sW}
    s_lshl_b32 s{sT2}, s{sT2}, 11
    v_lshlrev_b32 v{vL16}, 4, v{vL}
    v_lshl_add_u32 v{vT4}, v{vL}, 6, s{sT2}
    s_lshl_b32 s{sT}, s{sQ}, 2
    """)
    srd(8, 256)
    a("s_waitcnt lgkmcnt(0)")
    if STAMPS: a(f"s_mov_b32 s100, s{sTag}\ns_mov_b32 s97, 0")
    stamp()
    a(f"""
    s_or_b32 s{sTag}, s{sTag}, 1
    v_mov_b32 v{vNon}, s{sTag}
    v_mov_b32 v{vNon+1}, s{sTag+1}
    buffer_store_dwordx2 {vr(vNon,2)}, v{vT4}, {DBG}, 0 offen sc1
    """)
    for k in range(6):
        a(f"global_load_ushort v{vPar+k}, v{vT3}, s[{18+2*k}:{19+2*k}]", "par")
    a(f"s_load_dword s{sLdt}, s[30:31], s{sT}\ns_load_dword s{sD}, s[52:53], s{sT}")
    MP = OPT.get("mp", "")
    if MP:
        a(f"s_mul_i32 s{sT}, s2, {43*128}\nv_min_u32 v{vT}, 42, v{vT}\nv_lshl_add_u32 v251, v{vT}, 7, s{sT}")
        if "1" in MP: a("global_load_dword v250, v251, s[88:89]", "mp")
        if "2" in MP: a("global_load_dword v249, v251, s[92:93]", "mp")
    a("s_setprio 0\ns_branch L_ssm")
    keep = (list(a.vm), nstamp[0])
    yield
    a.hist = []; a.lg = []; a.vm = keep[0]; nstamp[0] = keep[1]
    X, W1 = "s[16:19]", "s[88:91]"
    vXo, vWo = 2, 6
    sLA, sLB, sXB, sWB, sC, sCx, sTx, sTw = 20, 21, 22, 23, 24, 25, 26, 27
    srd(16, 2048 * 1024); srd(88, 512 * 2752)
    a(f"""
    v_lshrrev_b32 v{vT}, 3, v{vL}
    v_lshlrev_b32 v{vT}, 10, v{vT}
    v_lshrrev_b32 v{vT2}, 4, v{vL}
    v_xor_b32 v{vT2}, v{vT2}, v{vL}
    v_and_b32 v{vT2}, 7, v{vT2}
    v_lshl_add_u32 v{vXo}, v{vT2}, 4, v{vT}
    v_xor_b32 v{vXo+1}, 64, v{vXo}
    v_add_u32 v{vXo+2}, {2*7168}, v{vXo}
    v_add_u32 v{vXo+3}, {3*7168}, v{vXo+1}
    v_add_u32 v{vXo+1}, 7168, v{vXo+1}
    s_movk_i32 s{sTx}, 5462
    s_movk_i32 s{sTw}, {2752-192}
    v_mul_u32_u24 v{vT}, s{sTx}, v{vL}
    """)
    for j in range(3):
        if j: a(f"v_add_u32 v{vT}, {64*5462}, v{vT}")
        a(f"v_lshrrev_b32 v{vT2}, 16, v{vT}\nv_mad_u32_u24 v{vWo+j}, v{vT2}, s{sTw}, v{vL16}")
    a(f"""
    s_bfe_u32 s{sXB}, s2, 0x20001
    s_bfe_u32 s{sC}, s2, 0x20003
    s_lshl2_add_u32 s{sXB}, s{sXB}, s{sC}
    s_lshl2_add_u32 s{sXB}, s{sXB}, s{sW}
    s_lshl_b32 s{sXB}, s{sXB}, 15
    s_and_b32 s{sC}, s2, 1
    s_bfe_u32 s{sCx}, s2, 0x30005
    s_lshl3_add_u32 s{sC}, s{sC}, s{sCx}
    s_mul_i32 s{sWB}, s{sC}, 192
    s_mul_i32 s{sTx}, s{sW}, {16*2752}
    s_add_u32 s{sWB}, s{sWB}, s{sTx}
    s_cmp_eq_u32 s{sC}, 15
    s_cselect_b32 s{sXB}, {"s%d" % sCx if int(OPT.get('ip', 0)) else 0x40000000}, s{sXB}
    s_cselect_b32 s{sWB}, {"s%d" % sLB if int(OPT.get('ip', 0)) > 1 else 0x40000000}, s{sWB}
    s_and_b32 s{sCx}, s2, {6 if 'rx' in OPT else 0}
    s_add_u32 s{sC}, s{sC}, s{sCx}
    s_add_u32 s{sCx}, s{sC}, 1
    s_and_b32 s{sCx}, s{sCx}, 7
    s_add_u32 s{sC}, s{sC}, 2
    s_and_b32 s{sC}, s{sC}, 7
    s_lshl_b32 s{sLA}, s{sW}, 12
    s_mul_i32 s{sLB}, s{sW}, 3072
    s_add_u32 s{sLB}, s{sLB}, 49152
    """)
    def w_ops(c):
        ops = []
        for j in range(3):
            def f(j=j):
                if j == 0:
                    a(f"s_mul_i32 s{sTw}, s{sC}, {64*2752}\ns_add_u32 m0, s{sLB}, {(c&3)*12288}\ns_add_u32 s{sTw}, s{sTw}, s{sWB}")
                a(f"buffer_load_dwordx4 v{vWo+j}, {W1}, s{sTw} offen offset:{j*1024} lds", f"C{c}")
                if j == 0: a(f"s_add_u32 s{sC}, s{sC}, 1\ns_and_b32 s{sC}, s{sC}, 7")
            ops.append(f)
        return ops
    def x_ops(c):
        ops = []
        for pc in range(4):
            def f(pc=pc):
                if pc == 0:
                    a(f"s_lshl_b32 s{sTx}, s{sCx}, 7\ns_add_u32 m0, s{sLA}, {(c%3)*16384}\ns_add_u32 s{sTx}, s{sTx}, s{sXB}")
                a(f"buffer_load_dwordx4 v{vXo+pc}, {X}, s{sTx} offen offset:{pc*1024} lds", f"C{c}")
                if pc == 0: a(f"s_add_u32 s{sCx}, s{sCx}, 1\ns_and_b32 s{sCx}, s{sCx}, 7")
            ops.append(f)
        return ops
    DQ = x_ops(1) + w_ops(2) + x_ops(2) + w_ops(3)
    def dma(n=1):
        for _ in range(n):
            if DQ: DQ.pop(0)()
    dma(int(OPT.get("n0", 0)))
    srd(12, WS_SIZE)
    vOA, vOG, vPb = 50, 51, 59
    a(f"""
    s_lshr_b32 s{sE}, s{sW}, 1
    s_and_b32 s{sPar}, s{sW}, 1
    s_mov_b32 s{sMask}, 0xffff0000
    s_mul_i32 s{sT2}, s{sE}, {USZ}
    s_add_u32 s{sT2}, s{sT2}, {UB0}
    v_lshl_add_u32 v{vT}, v{vL}, 3, s{sT2}
    v_mov_b32 v{vT3}, 0
    v_mov_b32 v{vT4}, 0
    ds_write_b64 v{vT}, {vr(vT3,2)}
    s_lshl2_add_u32 s{sT2}, s{sW}, {FLG}
    v_mov_b32 v58, s{sT2}
    ds_write_b32 v58, v{vT3}
    ds_write_b32 v58, v{vT3} offset:16
    s_lshl_b32 s{sT2}, s{sW}, 12
    s_add_u32 s{sT2}, s{sT2}, {TAB}
    v_add_u32 v{vTab}, s{sT2}, v{vL16}
    v_lshrrev_b32 v{vT}, 4, v{vL}
    v_lshl_add_u32 v{vPb}, v{vT}, 6, s{sT2}
    v_and_b32 v{vT}, 15, v{vL}
    v_lshlrev_b32 v{vOG}, 3, v{vT}
    v_lshlrev_b32 v{vT2}, 2, v{vT}
    v_add_u32 v{vT2}, {512-36}, v{vT2}
    v_cmp_lt_u32 vcc, 8, v{vT}
    v_add_u32 v{vT3}, {1024-96}, v{vOG}
    v_add_u32 v{vT4}, {1536-112}, v{vOG}
    v_cndmask_b32 v{vOA}, v{vT}, v{vT2}, vcc
    v_cmp_lt_u32 vcc, 11, v{vT}
    v_cmp_lt_u32 s[56:57], 13, v{vT}
    v_cvt_f32_u32 v{vOG}, v{vOG}
    v_cndmask_b32 v{vOA}, v{vOA}, v{vT3}, vcc
    v_cndmask_b32 v{vOA}, v{vOA}, v{vT4}, s[56:57]
    v_cvt_f32_u32 v{vOA}, v{vOA}
    """)
    def k_mfma(s_):
        F = 152 + 16 * (s_ & 1)
        for hh in range(2):
            for gt in range(2):
                d = 200 + 8 * hh + 4 * gt
                a(f"v_mfma_f32_16x16x32_bf16 {vr(d,4)}, {vr(F+4*hh,4)}, {vr(F+8+4*gt,4)}, {'0' if s_ == 0 else vr(d,4)}")
    UG = int(OPT.get("ug", 7))
    SP = OPT.get("sprio", 0)
    vUg, vUw, vU, sG = 30, 31, 232, 54
    def u_addr():
        a(f"""
        v_lshrrev_b32 v{vT3}, 2, v{vL}
        v_bfe_u32 v{vT4}, v{vL}, 1, 1
        v_and_b32 v{vT2}, 1, v{vL}
        v_mul_u32_u24 v{vUg}, {GS}, v{vT3}
        v_lshl_add_u32 v{vUg}, v{vT4}, 6, v{vUg}
        v_lshl_add_u32 v{vUg}, v{vT2}, 4, v{vUg}
        v_mul_u32_u24 v{vUw}, {USZ}, v{vT2}
        v_lshl_add_u32 v{vUw}, v{vT3}, 4, v{vUw}
        v_lshl_add_u32 v{vUw}, v{vT4}, 3, v{vUw}
        s_lshl_b32 s{sT}, s{sW}, 10
        s_add_u32 s{sT}, s{sT}, {UB0+480}
        v_add_u32 v{vUw}, s{sT}, v{vUw}
        s_mul_i32 s{sG}, s{sW}, {64*GS}
        s_lshr_b32 s{sT}, s{sQ}, 1
        s_lshl_b32 s{sT}, s{sT}, 7
        s_add_u32 s{sG}, s{sG}, s{sT}
        s_and_b32 s{sT}, s{sQ}, 1
        s_lshl_b32 s{sT}, s{sT}, 5
        s_add_u32 s{sG}, s{sG}, s{sT}
        s_add_u32 s{sG}, s{sG}, {XNP}
        """)
    def u_loads(emit, ks=range(4)):
        emit("s_setprio 3")
        for k in ks:
            emit(f"s_add_u32 s{sG+1}, s{sG}, {k*16*GS}")
            emit(f"buffer_load_dwordx4 {vr(vU+4*k,4)}, v{vUg}, {WS}, s{sG+1} offen sc1 {OPT.get('uf', '')}")
        emit(f"s_setprio {SP}")
    W2 = "s[92:95]"
    vW2o, vTp, sW2, sTp = 62, 63, 28, 29
    vXw, vXr_, vK, vZ, vAa, vBa, vUa, vBp, vPr, vK0, vCb = 32, 33, 34, 35, 36, 37, 38, 39, 40, 41, 42
    def late_addr():
        u_addr()
        srd(92, 1376 * 1024)
        a(f"""
        v_lshrrev_b32 v{vT}, 3, v{vL}
        v_lshlrev_b32 v{vT}, 10, v{vT}
        v_bfe_u32 v{vT2}, v{vL}, 4, 1
        v_lshlrev_b32 v{vT3}, 2, v{vT2}
        v_xor_b32 v{vT3}, v{vT3}, v{vL}
        v_and_b32 v{vT3}, 7, v{vT3}
        v_lshl_add_u32 v{vW2o}, v{vT3}, 4, v{vT}
        v_min_u32 v{vTp}, {23 if M2_42 else 47}, v{vL}
        v_lshrrev_b32 v{vT}, {2 if M2_42 else 3}, v{vTp}
        v_and_b32 v{vTp}, {3 if M2_42 else 7}, v{vTp}
        v_lshlrev_b32 v{vTp}, 7, v{vTp}
        v_lshl_add_u32 v{vTp}, v{vT}, 10, v{vTp}
        s_mul_i32 s{sW2}, s{sW}, {352*1024}
        s_and_b32 s{sTp}, s{sQ}, 31
        s_mul_i32 s30, s{sTp}, 5120
        s_mulk_i32 s{sTp}, 6144
        s_add_u32 s{sTp}, s{sTp}, s{sW2}
        s_add_u32 s30, s30, s{sW2}
        s_add_u32 s30, s30, {192*1024}
        s_and_b32 s{sT}, s2, {1 if M2_42 else 0}
        s_lshl_b32 s{sT2}, s{sT}, 9
        s_add_u32 s{sTp}, s{sTp}, s{sT2}
        s_add_u32 s30, s30, s{sT2}
        s_bfe_u32 s{sT2}, s2, {"0x20006" if M2_42 else "0x30005"}
        s_lshl2_add_u32 s{sT}, s{sT}, s{sT2}
        s_lshl_b32 s{sT}, s{sT}, 7
        s_add_u32 s{sW2}, s{sW2}, s{sT}
        """)
        a(f"""
        v_lshrrev_b32 v{vT2}, 4, v{vL}
        v_and_b32 v{vT3}, 15, v{vL}
        s_lshl_b32 s{sT2}, s{sW}, 12
        s_add_u32 s{sT2}, s{sT2}, {TAB}
        v_lshl_add_u32 v{vXw}, v{vT3}, 4, s{sT2}
        v_lshl_add_u32 v{vXw}, v{vT2}, 10, v{vXw}
        s_lshl_b32 s{sT}, s{sE}, 13
        s_add_u32 s{sT}, s{sT}, {TAB}
        v_add_u32 v{vXr_}, s{sT}, v{vL16}
        s_xor_b32 s{sT2}, s{sT2}, 4096
        v_add_u32 v{vPr}, s{sT2}, v{vL16}
        v_xor_b32 v27, 4, v58
        s_mul_i32 s{sT}, s{sE}, {USZ}
        s_add_u32 s{sT}, s{sT}, {UB0+256}
        s_lshl_b32 s{sT2}, s{sPar}, 8
        v_lshl_add_u32 v{vBa}, v{vT3}, 5, s{sT}
        v_lshl_add_u32 v{vUa}, v{vT2}, 3, v{vBa}
        v_lshlrev_b32 v{vT3}, 4, v{vT2}
        v_add_u32 v{vBa}, v{vT3}, v{vBa}
        v_subrev_u32 v{vBa}, s{sT2}, v{vBa}
        v_bfe_u32 v{vT2}, v{vL}, 2, 2
        v_sub_u32 v{vT4}, 0, v{vT2}
        v_and_b32 v{vT4}, 3, v{vT4}
        v_mul_u32_u24 v{vAa}, 4160, v{vT4}
        v_min_u32 v{vT2}, 1, v{vT2}
        v_lshlrev_b32 v{vT2}, 3, v{vT2}
        v_sub_u32 v{vAa}, v{vAa}, v{vT2}
        v_sub_u32 v{vAa}, v{vAa}, v{vT3}
        v_and_b32 v{vT2}, 3, v{vL}
        v_lshl_add_u32 v{vAa}, v{vT2}, 3, v{vAa}
        s_mul_i32 s{sT}, s{sE}, 16640
        s_add_u32 s{sT}, s{sT}, {CB0}
        v_mov_b32 v{vCb}, s{sT}
        s_add_u32 s{sT2}, s{sT2}, s{sT}
        s_add_u32 s{sT2}, s{sT2}, {32+32-8}
        v_add_u32 v{vAa}, s{sT2}, v{vAa}
        s_lshl_b32 s{sT2}, s{sPar}, 11
        s_add_u32 s{sT2}, s{sT2}, s{sT}
        s_add_u32 s{sT2}, s{sT2}, 32
        v_add_u32 v{vK}, s{sT2}, v{vL16}
        v_and_b32 v{vT2}, 15, v{vL}
        v_lshl_add_u32 v{vBp}, v{vT2}, 5, s{sT2}
        v_lshrrev_b32 v{vT2}, 4, v{vL}
        v_lshl_add_u32 v{vBp}, v{vT2}, 3, v{vBp}
        v_bfe_u32 v{vZ}, v{vL}, 3, 2
        v_mul_u32_u24 v{vZ}, 4160, v{vZ}
        v_and_b32 v{vT4}, 7, v{vL}
        v_lshl_add_u32 v{vZ}, v{vT4}, 2, v{vZ}
        v_add_u32 v{vZ}, s{sT}, v{vZ}
        s_lshl2_add_u32 s{sT}, s{sE}, {K0A}
        v_mov_b32 v{vK0}, s{sT}
        v_and_b32 v{vT4}, 1, v{vL}
        v_cmp_eq_u32 s[58:59], 1, v{vT4}
        v_cmp_le_u32 s[56:57], 32, v{vL}
        """)
    if "la0" in OPT: late_addr()
    def piece(p):
        rg, off = SHARED['LOC'][p]
        a(f"s_add_u32 m0, s{sLA if rg == 'A' else sLB}, {off}\ns_add_u32 s44, s{sW2}, {8192*p}")
        a(f"buffer_load_dwordx4 v{vW2o}, {W2}, s44 offen lds", "P")
    pn = [0]
    PE = int(OPT.get("pe", 0))
    def pieces(n):
        while pn[0] < n: piece(pn[0]); pn[0] += 1
    def touch(half):
        if half: a(f"v_min_u32 v{vTp}, {4096+384 if M2_42 else 39*128}, v{vTp}")
        a(f"buffer_load_dword v29, v{vTp}, {W2}, s{sTp+half} offen", "tp")
    TP0, TP1 = int(OPT.get("tp0", 6)), int(OPT.get("tp1", 8))
    PR, PB, FR, KT, KA = 64, 72, 152, 200, 216
    a("s_waitcnt lgkmcnt(0)")
    a.lg = []
    assert int(OPT.get("nkb", 8)) in (7, 8)
    BP = int(OPT.get("bp", 420))
    NKB = int(OPT.get("nkb", 8))
    a.metro = ([int(OPT.get("bb0", 700)), int(OPT.get("b01", 350))] + [int(OPT.get("bq", 400))] * 3 + [BP] * 3 + [BP // 2, 3 * BP // 4])[:NKB]
    a.cost = 0
    uq = list(range(4))
    def on_bar(left):
        nb = NKB - 1 - left
        if nb in (0, 2, 5): stamp()
        if nb == 0: a(f"s_setprio {SP}")
        if "b" in MP and nb == int(OPT.get("mpb", 1)): a("global_load_dword v249, v251, s[92:93]", "mp")
        if nb == TP0: touch(0)
        if nb == TP1: touch(1)
        if nb >= 6: pieces(min(PE, {6: 4, 7: 11}.get(nb, 15)))
        if nb >= UG:
            for _ in range(int(OPT.get("un", 4))):
                if uq: u_loads(lambda t: a(t, "u"), [uq.pop(0)])
    a.on_bar = on_bar
    def pre_bar(left):
        nb = NKB - 1 - left
        if nb >= int(OPT.get("dfl", 1)): dma(99)
        a.wait(vm=f"C{nb}")
    a.pre_bar = pre_bar
    if 'la0' in OPT: a.on_gap = dma
    a.gap_len = int(OPT.get("dg", 32))
    a(f"""
    s_lshl_b32 s{sT}, s{sLdt}, 16
    s_and_b32 s{sT2}, s{sLdt}, s{sMask}
    s_cmp_eq_u32 s{sE}, 0
    s_cselect_b32 s{sT}, s{sT}, s{sT2}
    v_mov_b32 v{vT}, {LOG2E:#x}
    v_mul_f32 v{vT}, s{sT}, v{vT}
    v_exp_f32 v{vT}, v{vT}
    """)
    a.wait(vm="par")
    stamp()
    for k in range(6): a(f"v_lshlrev_b32 v{vPar+k}, 16, v{vPar+k}")
    TM = 136
    a(f"""
    v_cvt_pk_bf16_f32 v{vT}, v{vT}, v{vT}
    v_lshlrev_b32 v{vT}, 16, v{vT}
    v_mul_f32 v{PR}, v{vPar}, v{vT}
    v_mul_f32 v{PR+1}, v{vPar+1}, v{vT}
    v_mul_f32 v{vPar+2}, v{vPar+2}, v{vT}
    v_mul_f32 v{vPar+3}, v{vPar+3}, v{vT}
    v_mul_f32 v{PR}, {LOG2E:#x}, v{PR}
    v_mul_f32 v{PR+1}, 0.15915494, v{PR+1}
    v_rndne_f32 v{vT}, v{PR+1}
    v_sub_f32 v{PR+1}, v{PR+1}, v{vT}
    """)
    cmul(PR + 2, vPar + 4, vPar + 2)
    for i, l in enumerate((128, 256)):
        a(f"v_mul_f32 v{TM+4*i}, {fl(l)}, v{PR}\nv_mul_f32 v{TM+4*i+1}, {fl(l)}, v{PR+1}")
    for i in range(2): a(f"v_fract_f32 v{TM+4*i+1}, v{TM+4*i+1}\nv_exp_f32 v{TM+4*i}, v{TM+4*i}")
    for i in range(2): a(f"v_cos_f32 v{TM+4*i+2}, v{TM+4*i+1}\nv_sin_f32 v{TM+4*i+3}, v{TM+4*i+1}")
    a(f"ds_write_b128 v{vTab}, {vr(PR,4)}", "pw")
    a(f"""
    v_mul_f32 v{TM+2}, v{TM+2}, v{TM}
    v_mul_f32 v{TM+3}, v{TM+3}, v{TM}
    v_mul_f32 v{PR+6}, v{TM+6}, v{TM+4}
    v_mul_f32_e64 v{PR+7}, -v{TM+7}, v{TM+4}
    """)
    cmul(PR + 4, PR + 2, TM + 2)
    a(f"ds_write_b128 v{vTab}, {vr(PR+4,4)} offset:1024", "pw")
    def p_reads(s_):
        for j in range(4):
            for k in range(2):
                a(f"ds_read_b128 {vr(PB+32*(s_&1)+8*j+4*k,4)}, v{vPb} offset:{256*s_+16*j+1024*k}", f"pb{s_}")
    p_reads(0)
    a.on_gap = dma
    if "la0" not in OPT: late_addr()
    for s_ in range(4):
        if s_ < 3: p_reads(s_ + 1)
        a.wait(lg=f"pb{s_}")
        if s_ == 3: a(f"s_load_dwordx2 {sr(sTag,2)}, s[8:9], 128")
        F = FR + 16 * (s_ & 1)
        for jp in range(2):
            js = (2 * jp, 2 * jp + 1)
            P = lambda j: PB + 32 * (s_ & 1) + 8 * j
            T = lambda j, w_: TM + 8 * (j & 1) + 4 * w_
            for j in js:
                for w_, o in enumerate((vOA, vOG)):
                    a(f"v_mul_f32 v{T(j,w_)}, v{P(j)}, v{o}\nv_mul_f32 v{T(j,w_)+1}, v{P(j)+1}, v{o}")
            for j in js:
                a(f"v_fract_f32 v{T(j,0)+1}, v{T(j,0)+1}")
                for w_ in range(2): a(f"v_exp_f32 v{T(j,w_)}, v{T(j,w_)}")
            for j in js:
                for w_ in range(2):
                    a(f"v_cos_f32 v{T(j,w_)+2}, v{T(j,w_)+1}\nv_sin_f32 v{T(j,w_)+3}, v{T(j,w_)+1}")
            for j in js:
                a(f"v_mul_f32 v{T(j,0)+2}, v{T(j,0)+2}, v{T(j,0)}\nv_mul_f32_e64 v{T(j,0)+3}, -v{T(j,0)+3}, v{T(j,0)}")
                a(f"v_mul_f32 v{T(j,1)+2}, v{T(j,1)+2}, v{T(j,1)}\nv_mul_f32 v{T(j,1)+3}, v{T(j,1)+3}, v{T(j,1)}")
            for j in js:
                a(f"v_cvt_pk_bf16_f32 v{F+j}, v{T(j,0)+2}, v{T(j,0)+3}")
                cmul(T(j, 0), T(j, 0) + 2, P(j) + 6)
                cmul(T(j, 1), T(j, 1) + 2, P(j) + 2)
                a(f"v_cvt_pk_bf16_f32 v{F+4+j}, v{T(j,0)}, v{T(j,0)+1}")
                cmul(T(j, 0) + 2, T(j, 1) + 2, P(j) + 4)
                a(f"v_cvt_pk_bf16_f32 v{F+8+j}, v{T(j,1)}, v{T(j,1)+1}")
                a(f"v_cvt_pk_bf16_f32 v{F+12+j}, v{T(j,0)+2}, v{T(j,0)+3}")
            if jp == 0 and s_ > 0: k_mfma(s_ - 1)
    k_mfma(3)
    sys.stderr.write(f"metronome left {a.metro} cost {a.cost}\n")
    SW = int(OPT.get("sw", 0))
    while a.metro: a.tick()
    a.metro = None
    stamp()
    a(f"s_setprio {OPT.get('xprio', 0)}")
    for t in range(4): a(f"ds_write_b128 v{vXw}, {vr(KT+4*t,4)} offset:{256*t}")
    if NKB == 10: a("ds_write_b32 v58, v58 offset:16")
    a(f"s_waitcnt lgkmcnt(0)\ns_cmp_eq_u32 s{sTag}, 0\ns_cbranch_scc1 S_tagslow\nS_tagok:")
    stamp()
    if NKB < 10:
        a("s_barrier")
        pieces(min(PE, {6: 4, 7: 11}.get(NKB, 15)))
        if TP1 == NKB: touch(1)
        if SW:
            assert NKB == 8
            pieces(SW)
            a(f"s_barrier\ns_setprio {OPT.get('xp2', 3)}")
    else:
        a("""
        S_xw:
        ds_read_b32 v28, v27 offset:16
        s_waitcnt lgkmcnt(0)
        v_readfirstlane_b32 s44, v28
        s_cmp_eq_u32 s44, 0
        s_cbranch_scc1 S_xw
        """)
    stamp()
    NREST = max(0, 10 - NKB - 2)
    a(f"s_cmp_lg_u32 s{sPar}, 0\ns_cbranch_scc1 S_par1")
    KP = 64
    PK = 88
    K = lambda i: KA + i
    cnt = [0]
    CBAR = [int(x) for x in OPT.get('cbar', '2,5,6,7').split(',')]
    def packs(run, k):
        for cp in range(4):
            for j in range(4): a(f"v_cvt_pk_bf16_f32 v{PK+16*run+4*cp+j}, v{k[cp+2*j]}, v{k[cp+2*j+1]}")
            if cnt[0] in CBAR[:NREST]: a("s_barrier")
            cnt[0] += 1
            a(f"ds_write_b128 v{vK}, {vr(PK+16*run+4*cp,4)} offset:{4160*cp+1024*run}")
            if SW: pieces(min(24, pn[0] + int(OPT.get("swi", 2))))
    hist0 = list(a.hist); pn0 = pn[0]; vm0 = list(a.vm)
    for q in range(3):
        a(f"ds_read_b128 {vr(KA+4*q,4)}, v{vXr_} offset:{1024*q}\nds_read_b128 {vr(KP+4*q,4)}, v{vXr_} offset:{TSZ+1024*q}")
    a(f"""
    v_mov_b32 v{vT4}, 0
    ds_write_b32 v{vZ}, v{vT4}
    s_waitcnt lgkmcnt(1)
    """)
    for j in range(12): a(f"v_add_f32 v{KA+j}, v{KA+j}, v{KP+j}")
    a(f"""
    v_cndmask_b32 v{K(1)}, v{K(1)}, v{K(0)}, s[56:57]
    v_cndmask_b32 v{K(3)}, v{K(3)}, v{K(4)}, s[56:57]
    v_cndmask_b32 v{K(5)}, v{K(5)}, v{K(4)}, s[56:57]
    v_cndmask_b32 v{K(7)}, v{K(7)}, v{K(8)}, s[56:57]
    v_mov_b32 v{K(12)}, v{K(8)}
    v_mov_b32 v{K(13)}, v{K(8)}
    s_mov_b64 exec, 1
    ds_write_b32 v{vK0}, v{K(0)}
    v_mov_b32 v{K(0)}, 0
    s_mov_b64 exec, -1
    v_mov_b32_dpp v{K(12)}, v{K(1)} wave_shl:1 row_mask:0xf bank_mask:0xf
    v_mov_b32_dpp v{K(13)}, v{K(2)} wave_shl:1 row_mask:0xf bank_mask:0xf
    """)
    packs(1, [K(9)] * 3 + [K(10)] * 3 + [K(11)] * 5)
    packs(0, [K(i) for i in range(9)] + [K(12), K(13)])
    a(f"""
    s_mov_b64 exec, 1
    ds_write_b32 v{vCb}, v{PK} offset:{2*4160+28}
    ds_write_b32 v{vCb}, v{PK+4} offset:{3*4160+28}
    s_mov_b64 exec, -1
    s_branch S_parj
    S_par1:
    """)
    a.hist = hist0; cnt[0] = 0; pn[0] = pn0; a.vm = vm0
    a(f"ds_read_b128 {vr(KA+12,4)}, v{vXr_} offset:3072\nds_read_b128 {vr(KP,4)}, v{vXr_} offset:{TSZ+3072}\ns_waitcnt lgkmcnt(0)")
    for j in range(4): a(f"v_add_f32 v{KA+12+j}, v{KA+12+j}, v{KP+j}")
    a(f"v_cndmask_b32 v{K(0)}, v{K(12)}, v{K(13)}, s[58:59]\nv_cndmask_b32 v{K(1)}, v{K(14)}, v{K(15)}, s[58:59]")
    packs(0, [K(12)] * 4 + [K(0)] + [K(13)] * 6)
    packs(1, [K(14)] * 4 + [K(1)] + [K(15)] * 6)
    a("S_parj:")
    a.lg = []
    a(f"""
    s_lshl_b32 s{sT}, s{sD}, 16
    s_and_b32 s{sT2}, s{sD}, s{sMask}
    s_cmp_eq_u32 s{sE}, 0
    s_cselect_b32 s{sD}, s{sT}, s{sT2}
    s_lshl1_add_u32 s{sT}, s{sQ}, s{sE}
    s_mul_i32 s{sT}, s{sT}, {GC}
    s_add_u32 s{sT}, s{sT}, {Y2}
    s_lshl_b32 s{sT2}, s{sPar}, 9
    s_add_u32 s{sT}, s{sT}, s{sT2}
    s_lshl_b32 s{sT2}, s{sPar}, 10
    s_sub_u32 s{sT2}, 1024, s{sT2}
    v_lshrrev_b32 v{vT}, 5, v{vL}
    v_mad_u32_u24 v{vT}, v{vT}, s{sT2}, v{vL16}
    s_lshl2_add_u32 s{sT2}, s{sQ}, s{sW}
    s_lshl_b32 s{sT2}, s{sT2}, 7
    s_add_u32 s{sT2}, s{sT2}, {FY}
    v_mov_b32 v{vT3}, s{sTag}
    v_mov_b32 v{vT4}, s{sTag+1}
    s_mov_b32 s{sCnt}, 0
    """)
    AS, BS, YA, OV, UU, KD = [64, 128], [96, 160], 192, 10, 2, 26
    stamp()
    CE = "ce" in OPT
    C2 = "c2" in OPT
    if not CE:
        if not SW: a("s_barrier")
        while uq: u_loads(lambda t: a(t, "u"), [uq.pop(0)])
        if TP1 == 9: touch(1)
        if TP1 > 9: pieces(TP1); touch(1)
        if "gp" not in OPT: pieces(int(OPT["c2"]) if C2 else 24)
    assert not uq
    a.wait(vm="u")
    a("S_uchk:")
    a(f"v_cmp_ne_u64 vcc, {sr(sTag,2)}, {vr(vU+2,2)}")
    for k in range(1, 4): a(f"v_cmp_ne_u64 s[{42+2*k}:{43+2*k}], {sr(sTag,2)}, {vr(vU+4*k+2,2)}")
    for k in range(1, 4): a(f"s_or_b64 vcc, vcc, s[{42+2*k}:{43+2*k}]")
    a(f"s_cbranch_vccnz S_uslow\nS_uok:\ns_mov_b32 s{sCnt}, 0")
    stamp()
    for k in range(4): a(f"ds_write_b64 v{vUw}, {vr(vU+4*k,2)} offset:{256*k}")
    if not C2:
        a.wait(vm="P", lg=0)
        a(f"s_setprio {OPT.get('cprio', 1)}\ns_barrier")
    else:
        a(f"""
        ds_write_b32 v58, v58 offset:16
        v_mov_b32 v{vT2}, {FLG}
        S_m4:
        ds_read_b128 v[44:47], v{vT2} offset:16
        s_waitcnt lgkmcnt(0)
        v_min_u32 v44, v44, v45
        v_min3_u32 v44, v44, v46, v47
        v_cmp_eq_u32 vcc, 0, v44
        s_cbranch_vccnz S_m4
        """)
        CE = True
    a.lg = []
    if CE and not C2: pieces(int(OPT.get("npre", 8)))
    PG, CBI = int(OPT.get("pg", 3)), int(OPT.get("cbi", 90))
    stamp()
    def reads(rho):
        s_ = rho & 1; L = []
        for j in range(8):
            L.append((f"ds_read_b128 {vr(BS[s_]+4*j,4)}, v{vBa} offset:{512*j+64*(3-rho)}", f"f{rho}_{j}"))
            L.append((f"ds_read_b64_tr_b16 {vr(AS[s_]+4*j,2)}, v{vAa} offset:{64*(8*j+rho)+8}", f"f{rho}_{j}"))
            L.append((f"ds_read_b64_tr_b16 {vr(AS[s_]+4*j+2,2)}, v{vAa} offset:{64*(8*j+rho)}", f"f{rho}_{j}"))
        return L
    for t, tag in reads(0): a(t, tag)
    first = [True] * 8
    def cm(rho, p, q):
        a.wait(lg=f"f{rho}_{max(p,q)}")
        ct = p + q; s_ = rho & 1
        a(f"v_mfma_f32_16x16x32_bf16 {vr(YA+4*ct,4)}, {vr(AS[s_]+4*p,4)}, {vr(BS[s_]+4*q,4)}, {'0' if first[ct] else vr(YA+4*ct,4)}")
        first[ct] = False
    for rho in range(3):
        if rho == int(OPT.get("cp3", 0)): a("s_setprio 3")
        nxt = reads(rho + 1)
        for n, (p, q) in enumerate(sorted([(p, q) for p in range(8) for q in range(8) if p + q <= 7], key=lambda x: max(x))):
            cm(rho, p, q)
            if n >= (int(OPT.get('cn0', 8)) if rho == 0 else int(OPT.get('cn', 8))) and nxt:
                t, tag = nxt.pop(0); a(t, tag)
            if n == 35 and 'cw' in OPT: a.wait(lg=0)
            if CE:
                g = 36 * rho + n
                if g % PG == 0 and pn[0] < 24: pieces(pn[0] + 1)
                if g == CBI:
                    assert pn[0] == 24
                    a.wait(vm=0)
                    a("s_barrier")
                if (C2 or "pd" in OPT) and g == CBI + int(OPT.get("pd", 12)): a("s_setprio 3")
        assert not nxt
    a(f"s_cmp_lg_u32 s{sPar}, 0\ns_cbranch_scc1 S_conv1")
    keep = (list(a.hist), list(a.lg), nstamp[0])
    ZB, PB_ = 64, 80
    for par, (KEEP, SEND) in enumerate((((0, 3, 4, 7), (1, 2, 5, 6)), ((1, 2, 5, 6), (0, 3, 4, 7)))):
        if par: a("S_conv1:")
        a.hist, a.lg, nstamp[0] = list(keep[0]), list(keep[1]), keep[2]
        side = [lambda: a(f"ds_read_b32 v{KD}, v{vK0}", "uu")]
        side += [lambda k=k, ct=ct: a(f"ds_read_b64 {vr(UU+2*k,2)}, v{vUa} offset:{480-256+512*ct}", "uu") for k, ct in enumerate(KEEP)]
        side += [None] * 5
        side += [lambda: (a.wait(lg="uu"), a(f"v_add_f32 v{KD}, s{sD}, v{KD}"))]
        side += [lambda j=j: a(f"v_lshlrev_b32 v{ZB+2*j}, 16, v{UU+j}\nv_and_b32 v{ZB+2*j+1}, s{sMask}, v{UU+j}") for j in range(8)]
        order = [(p, ct - p) for ct in SEND + KEEP for p in range(ct + 1)]
        ends = {}
        for n, (p, q) in enumerate(order): ends[p + q] = n
        wq = list(SEND)
        for n, (p, q) in enumerate(order):
            cm(3, p, q)
            if wq and n >= ends[wq[0]] + 5:
                ct = wq.pop(0); a(f"ds_write_b128 v{vTab}, {vr(YA+4*ct,4)} offset:{1024*SEND.index(ct)}", "sw")
                if not wq: a(f"ds_write_b32 v58, v58", "sw")
            elif side:
                t = side.pop(0)
                if t: t()
            if n == 31:
                assert not wq and not side
                a("ds_read_b32 v28, v27", "pr")
                for k in range(4): a(f"ds_read_b128 {vr(PB_+4*k,4)}, v{vPr} offset:{1024*k}", "pr")
        stamp()
        a.wait(lg=0)
        a(f"""
        v_cmp_eq_u32 vcc, 0, v28
        s_cbranch_vccz S_pok{par}
        S_pw{par}:
        ds_read_b32 v28, v27
        """)
        for k in range(4): a(f"ds_read_b128 {vr(PB_+4*k,4)}, v{vPr} offset:{1024*k}")
        a(f"""
        s_waitcnt lgkmcnt(0)
        v_cmp_eq_u32 vcc, 0, v28
        s_cbranch_vccnz S_pw{par}
        S_pok{par}:
        """)
        a.lg = []
        for j in range(16): a(f"v_fmac_f32 v{PB_+j}, v{KD}, v{ZB+j}")
        a("s_setprio 3")
        for k, ct in enumerate(KEEP):
            for j in range(4): a(f"v_add_f32 v{PB_+4*k+j}, v{PB_+4*k+j}, v{YA+4*ct+j}")
            for j in range(2): a(f"v_cvt_pk_bf16_f32 v{UU+2*k+j}, v{PB_+4*k+2*j}, v{PB_+4*k+2*j+1}")
            a(f"ds_write_b64 v{vBp}, {vr(UU+2*k,2)} offset:{512*k}")
            if k & 1: a(f"ds_read_b128 {vr(OV+2*(k-1),4)}, v{vK} offset:{512*(k-1)}", f"bp{k}")
        if par == 0: a("s_branch S_done")
    a("S_done:")
    for j in range(2):
        a.wait(lg=f"bp{2*j+1}")
        a(f"buffer_store_dwordx4 {vr(OV+4*j,4)}, v{vT}, {WS}, s{sT} offen offset:{2048*j} sc1")
    a(f"s_mov_b64 exec, 1\ns_waitcnt vmcnt(0)\nbuffer_store_dwordx2 {vr(vT3,2)}, off, {WS}, s{sT2} sc1")
    stamp()
    if STAMPS:
        a("s_waitcnt vmcnt(0)"); stamp()
    if "wb" in OPT:
        a(f"s_lshr_b32 s{sT}, s2, 3\ns_or_b32 s{sT}, s{sT}, s{sW}\ns_cmp_lg_u32 s{sT}, 0\ns_cbranch_scc1 S_nowb\nbuffer_wbl2 sc1\nS_nowb:")
    stamp_flush(WS, f"s{sW}", vT)
    a("s_endpgm")
    tag_slow("S", sTag, 8, [192], vNon, sCnt)
    a.raw(f"""S_uslow:
{retry_mark(4)}  s_add_u32 s{sCnt}, s{sCnt}, 1
  s_cmp_ge_u32 s{sCnt}, {SPIN}
  s_cbranch_scc1 S_uok
  s_sleep 4""")
    u_loads(lambda t: a.raw("  " + t))
    a.raw("  s_waitcnt vmcnt(0)\n  s_branch S_uchk")

hdr = open("cdna_kernels/" + NAME + ".s.ref").read().split("\n")
top = [l for l in hdr if l.startswith(";") and "@launch" not in l][:16]
a.raw("\n".join(top))
a.raw("; @launch grid=(256,1,1) block=(512,1,1) lds=163840")
a.raw(""";
; out = x + conv(K, LN(x)) + LN(x)*Dskip + silu(LN(x) w1) w2, one launch, one 512-thread workgroup per CU.
; removed by a rank-1 MFMA with the column sums of w1, the scale in the SiLU epilogue), then a 64x64 tile of h*w2 with K
; (tap index rounded to bf16 as in the reference), its causal convolution as Toeplitz MFMAs, and part of the tile loads.
; (a clock value read once and published in d_debug).  xn and the row statistics travel as tagged 16-byte granules, h and
; the conv result as plain data behind one flag line per producing wave (stored after that wave's vmcnt(0)); everything
; is written through (sc1) and read with sc1, so no placement is assumed.  Every wait on another workgroup is bounded.""")
a.raw(f""".amdgcn_target "amdgcn-amd-amdhsa--gfx950"
.text
.globl {NAME}_kernel
.p2align 8
.type {NAME}_kernel,@function
{NAME}_kernel:""")
stamp()
NST[0] = 14
a(f"""
v_lshrrev_b32 v1, 6, v0
s_cmp_ge_u32 s2, 256
s_cbranch_scc1 L_exit
v_readfirstlane_b32 s32, v1
s_and_b32 s3, s2, 7
s_lshl_b32 s3, s3, 5
s_lshr_b32 s96, s2, 3
s_add_u32 s3, s3, s96
s_cmp_lt_u32 s32, 4
s_cbranch_scc1 L_gemm
""")
if "nocpf" not in OPT:
    a(f"""
    s_getpc_b64 s[94:95]
    s_lshl_b32 s96, s96, 10
    v_and_b32 v255, 7, v0
    v_lshl_add_u32 v255, v255, 7, s96
    v_min_u32 v255, L_exit-{NAME}_kernel-128, v255
    v_mov_b32 v253, s95
    v_add_co_u32 v252, vcc, s94, v255
    v_addc_co_u32 v253, vcc, 0, v253, vcc
    global_load_dword v254, v[252:253], off
    """)
EV[1] = False
ssm = ssm_role()
next(ssm)
EV[1] = True
a("L_gemm:")
a.hist = []; a.vm = []; a.lg = []
if STAMPS: nstamp[0] = 1
gemm_role()
a.raw(".p2align 6")
a("L_ssm:")
NST[0] = 14
EV[1] = False
for _ in ssm: pass
a("L_exit:\ns_endpgm")
a.raw(f""".section .rodata,"a"
.p2align 6
.amdhsa_kernel {NAME}_kernel
  .amdhsa_next_free_vgpr 256
  .amdhsa_next_free_sgpr 102
  .amdhsa_accum_offset 256
  .amdhsa_group_segment_fixed_size 0
  .amdhsa_kernarg_size 120
  .amdhsa_user_sgpr_count 2
  .amdhsa_user_sgpr_kernarg_segment_ptr 1
  .amdhsa_system_sgpr_workgroup_id_x 1
.end_amdhsa_kernel""")
sys.stdout.write(a.text())
sys.stderr.write(f"nops inserted: {a.nops}\n")
```
